```python
import torch

def _softmax(x, axis=-1):
    return torch.softmax(x, dim=axis)
def _gelu(x):
    return torch.nn.functional.gelu(x, approximate="tanh")
def _silu(x):
    return torch.nn.functional.silu(x)
def _sigmoid(x):
    return torch.sigmoid(x)
def _layernorm(x, axis=-1, eps=1e-5):
    m = x.mean(dim=axis, keepdim=True)
    v = x.var(dim=axis, keepdim=True, unbiased=False)
    return (x - m) / torch.sqrt(v + eps)
def _scatter_add(tgt, idx, src, axis=0):
    return tgt.clone().index_add_(axis, idx, src)
def _segment_sum(src, seg, n):
    out = torch.zeros((n,) + src.shape[1:], dtype=src.dtype)
    return out.index_add_(0, seg, src)
def _pad(x, pw):
    flat = tuple(v for pair in reversed(pw) for v in pair)
    return torch.nn.functional.pad(x, flat)

kernel_name = 'standalone__gqa_block_cached__near_ridge'

def setup_inputs():

    _w = (lambda a: (lambda t: t.to(torch.bfloat16) if t.is_floating_point() else t)(torch.as_tensor(a)))
    B, Sq, D = 16, 48, 576
    Hq, Hkv, Sk, Dh = 32, 16, 48, 128
    assert Hq % Hkv == 0, (Hq, Hkv)
    return {
        "x": _w((lambda *s: torch.randn(*s, dtype=torch.bfloat16) * 0.8)(B, Sq, D)),
        "k_cache": _w((lambda *s: torch.randn(*s, dtype=torch.bfloat16) * 0.8)(B, Hkv, Sk, Dh)),
        "v_cache": _w((lambda *s: torch.randn(*s, dtype=torch.bfloat16) * 0.05)(B, Hkv, Sk, Dh)),
        "wq": _w((lambda *s: torch.randn(*s, dtype=torch.bfloat16) * 0.8)(D, Hq * Dh) * (D ** -0.5)),
        "wo": _w((lambda *s: torch.randn(*s, dtype=torch.bfloat16) * 0.05)(Hq * Dh, D) * ((Hq * Dh) ** -0.5)),
    }

def reference(x, k_cache, v_cache, wq, wo):
    B, Sq, D = x.shape
    Hq, Dh = 32, 128
    Hkv = k_cache.shape[1]
    rep = Hq // Hkv
    q = (lambda x, *d: x.permute(*d))((x @ wq).reshape(B, Sq, Hq, Dh), 0, 2, 1, 3)
    k = (lambda x, n, axis: torch.repeat_interleave(x, n, dim=axis))(k_cache, rep, axis=1)
    v = (lambda x, n, axis: torch.repeat_interleave(x, n, dim=axis))(v_cache, rep, axis=1)
    scores = torch.einsum("bhqd,bhkd->bhqk", q, k) * (Dh ** -0.5)
    p = _softmax(scores, axis=-1)
    o = torch.einsum("bhqk,bhkd->bhqd", p, v)
    return (lambda x, *d: x.permute(*d))(o, 0, 2, 1, 3).reshape(B, Sq, Hq * Dh) @ wo
```

```python
KN = 'standalone__gqa_block_cached__near_ridge_kernel'
STAMP_OFF = 0xF000000
SIZES = dict(x=884736, k=3145728, v=3145728, wq=4718592, wo=4718592, out=884736, dbg=256, ws=268435456)
SLOT = dict(x=0, k=8, v=16, wq=24, wo=32, out=40, dbg=48, ws=56)

class Asm:
    def __init__(self):
        self.lines = []
        self.nlab = 0
    def __call__(self, s=''):
        for l in s.split('\n'):
            self.lines.append(l)
    def label(self, base='L'):
        self.nlab += 1
        return '%s_%d' % (base, self.nlab)
    def text(self):
        return '\n'.join(self.lines) + '\n'

HEAD = '''.amdgcn_target "amdgcn-amd-amdhsa--gfx950"
.text
'''
def kernel_begin(name):
    return '''.globl %s
.p2align 8
.type %s,@function
%s:''' % (name, name, name)

def kernel_desc(name, vgpr, accum, sgpr=102):
    return '''.section .rodata,"a"
.p2align 6
.amdhsa_kernel %s
  .amdhsa_next_free_vgpr %d
  .amdhsa_next_free_sgpr %d
  .amdhsa_accum_offset %d
  .amdhsa_group_segment_fixed_size 0
  .amdhsa_kernarg_size 64
  .amdhsa_user_sgpr_count 2
  .amdhsa_user_sgpr_kernarg_segment_ptr 1
  .amdhsa_system_sgpr_workgroup_id_x 1
  .amdhsa_float_denorm_mode_32 3
.end_amdhsa_kernel
.text''' % (name, vgpr, sgpr, accum)
```

```python
import re
TRANS = ('v_exp_', 'v_log_', 'v_rcp_', 'v_rsq_', 'v_sqrt_', 'v_sin_', 'v_cos_')
def regs(tok):
    tok = tok.strip()
    tok = re.sub(r'^-|^abs\(|\)$|^\|', '', tok).rstrip('|')
    m = re.fullmatch(r'([vas])\[(\d+):(\d+)\]', tok)
    if m: return {(m.group(1), i) for i in range(int(m.group(2)), int(m.group(3)) + 1)}
    m = re.fullmatch(r'([vas])(\d+)', tok)
    if m: return {(m.group(1), int(m.group(2)))}
    if tok in ('vcc', 'vcc_lo', 'vcc_hi'): return {('s', 'vcc')}
    if tok == 'm0': return {('s', 'm0')}
    if tok in ('exec', 'exec_lo', 'exec_hi'): return {('s', 'exec')}
    return set()
class I:
    def __init__(self, line):
        self.line = line
        t = line.split(';')[0].strip()
        self.op = t.split()[0] if t else ''
        rest = t[len(self.op):].strip()
        self.ops = [x.strip() for x in rest.split(',')] if rest else []
        self.mods = ''
        if self.ops:
            parts = self.ops[-1].split()
            self.ops[-1] = parts[0]; self.mods = ' '.join(parts[1:])
        op = self.op
        self.mfma = op.startswith('v_mfma')
        self.valu = op.startswith('v_') and not self.mfma
        self.salu = op.startswith('s_')
        self.ds = op.startswith('ds_')
        self.vmem = op.startswith(('buffer_', 'global_', 'flat_'))
        self.trans = op.startswith(TRANS)
        self.dpp = '_dpp' in op or 'row_' in self.mods or 'quad_perm' in self.mods
        self.perm = op.startswith('v_permlane')
        self.rdlane = op.startswith(('v_readlane', 'v_readfirstlane'))
        R = [regs(o) for o in self.ops]
        self.w = set(); self.r = set(); self.C = set(); self.AB = set(); self.stdata = set(); self.ldsdma = False
        self.passes = 0
        if self.mfma:
            self.w = R[0]; self.AB = R[1] | R[2]; self.C = R[3]; self.r = self.AB | self.C
            self.passes = 8 if '32x32' in op else 4
        elif self.valu:
            if op in ('v_nop',): pass
            elif self.perm: self.w = R[0] | R[1]; self.r = R[0] | R[1]
            elif op.startswith('v_cmp'):
                self.w = R[0]; self.r = set().union(*R[1:])
                if op.startswith('v_cmpx'): self.w |= {('s', 'exec')}
            elif '_co_' in op:
                self.w = R[0] | R[1]; self.r = set().union(*R[2:])
            else:
                self.w = R[0]; self.r = set().union(*R[1:]) if len(R) > 1 else set()
                if op.startswith(('v_fmac', 'v_pk_fmac', 'v_writelane', 'v_dot2c')) or self.dpp: self.r |= R[0]
        elif self.ds:
            if op.startswith(('ds_read', 'ds_bpermute', 'ds_permute', 'ds_swizzle')) or '_rtn' in op:
                self.w = R[0]; self.r = set().union(*R[1:])
            else: self.r = set().union(*R)
        elif self.vmem:
            allr = set().union(*R) if R else set()
            if ' lds' in ' ' + self.mods or 'load_lds' in op:
                self.ldsdma = True; self.r = allr | {('s', 'm0')}
            elif '_load' in op:
                self.w = R[0]; self.r = set().union(*R[1:])
            elif 'atomic' in op:
                self.r = allr
                if 'sc0' in self.mods: self.w = R[0]
            else:
                self.r = allr
                if op.endswith(('x3', 'x4')):
                    self.stdata = R[0] if op.startswith('buffer_') else R[1]
        elif self.salu:
            if op.startswith(('s_cmp', 's_cbranch', 's_branch', 's_waitcnt', 's_barrier', 's_nop', 's_endpgm', 's_sleep', 's_setprio', 's_bitcmp')):
                self.r = set().union(*R) if R else set()
            else:
                self.w = R[0] if R else set(); self.r = set().union(*R[1:]) if len(R) > 1 else set()
                if 'saveexec' in op: self.w |= {('s', 'exec')}
        self.states = 1
        if op == 's_nop': self.states = int(self.ops[0], 0) + 1
def need(p, c):
    n = 0
    vw = {x for x in p.w if x[0] in 'va'}
    sw = {x for x in p.w if x[0] == 's'}
    if p.valu:
        if c.mfma and vw & c.r: n = max(n, 2)
        if c.perm and vw & c.r: n = max(n, 2)
        if c.dpp and vw & c.r: n = max(n, 2)
        if c.rdlane and vw & c.r: n = max(n, 1)
        if p.trans and (c.valu or c.mfma) and vw & c.r: n = max(n, 1)
        if c.vmem and sw & c.r: n = max(n, 5)
        if c.valu and sw & c.r: n = max(n, 4 if c.op.startswith(('v_readlane', 'v_writelane')) else 2)
        if ('s', 'exec') in sw:
            if c.mfma or c.perm or c.rdlane: n = max(n, 4)
            if c.dpp: n = max(n, 5)
        if 'op_sel' in p.mods or 'sdwa' in p.op:
            if c.valu and vw & (c.r | c.w): n = max(n, 1)
    if p.mfma:
        big = {4: 8, 8: 12}[p.passes]
        if c.mfma:
            if p.w & c.AB: n = max(n, big)
            if p.w & c.C and not (p.w == c.C and p.passes == c.passes): n = max(n, big - 2)
            if p.w & c.w and not (p.w == c.C and p.passes == c.passes): n = max(n, big - 2)
        elif c.valu or c.ds or c.vmem:
            if p.w & (c.r | c.w): n = max(n, big)
        if c.valu and p.C & c.w: n = max(n, {4: 3, 8: 7}[p.passes])
    if p.salu and ('s', 'm0') in sw and c.ldsdma: n = max(n, 1)
    if p.stdata and (p.stdata & c.w): n = max(n, 2)
    return n
def pad(lines, verbose=False):
    out = []; hist = []
    npad = 0
    for l in lines:
        t = l.split(';')[0].strip()
        if not t or t.endswith(':') or t.startswith('.'):
            out.append(l); continue
        c = I(l)
        req = 0; dist = 0
        for p in reversed(hist):
            k = need(p, c) - dist
            if k > req: req = k
            dist += p.states
            if dist > 20: break
        if req > 0:
            s = 's_nop %d' % (req - 1)
            out.append(s); hist.append(I(s)); npad += req
        out.append(l); hist.append(c)
        if len(hist) > 40: hist = hist[-30:]
    if verbose: print('padded states:', npad)
    return out
```

```python
import sys, math, struct
from asmlib import *
import hazard

def f2i(x): return struct.unpack('<I', struct.pack('<f', x))[0]

class Cnt:
    def __init__(self, a, name, mx):
        self.a = a; self.name = name; self.mx = mx; self.seq = []
    def issue(self, tag): self.seq.append(tag)
    def n_for(self, tags):
        if isinstance(tags, str): tags = [tags]
        last = max((i for i, t in enumerate(self.seq) if t in tags), default=-1)
        if last < 0: return None
        return len(self.seq) - 1 - last
    def wait(self, tags):
        n = self.n_for(tags)
        if n is None: return
        n = min(n, self.mx)
        self.a('s_waitcnt %s(%d)' % (self.name, n))
        self.seq = self.seq[len(self.seq) - n:] if n else []
    def wait_all(self):
        self.a('s_waitcnt %s(0)' % self.name); self.seq = []

def interleave(main, fill, start=0, per=2):
    out = []; k = 0
    for i, m in enumerate(main):
        out.append(m)
        if i >= start:
            for _ in range(per):
                if k < len(fill): out.append(fill[k]); k += 1
    out += fill[k:]
    return out

RING = 0; XO = 81920; KO = 137216; VO = 149504; QO = XO; EO = XO + 24576
PART = 0

def v(n, c=1): return 'v%d' % n if c == 1 else 'v[%d:%d]' % (n, n + c - 1)

def gen(stamps=False, rot=True):
    a = Asm()
    K1 = 'f16_main_kernel'; K2 = 'f16_reduce_kernel'
    a('; @launch kernel=%s grid=(256,1,1) block=(256,1,1) lds=163840' % K1)
    a('; @launch kernel=%s grid=(432,1,1) block=(256,1,1) lds=0' % K2)
    a(HEAD); a(kernel_begin(K1))
    vm = Cnt(a, 'vmcnt', 63); lg = Cnt(a, 'lgkmcnt', 15)
    nst = [0]
    def stamp():
        if stamps:
            a('s_memrealtime s[%d:%d]' % (68 + 2 * nst[0], 69 + 2 * nst[0])); nst[0] += 1
    def run(seq):
        for x in seq:
            if callable(x): x()
            else: a(x)
    stamp()
    a('s_cmp_ge_u32 s2, 256\ns_cbranch_scc1 L_end')
    SX, SK, SV, SWQ, SWO, SWS = 24, 28, 32, 36, 40, 44
    for r, n in ((SX, 'x'), (SWQ, 'wq'), (SK, 'k'), (SV, 'v'), (SWO, 'wo'), (SWS, 'ws')):
        a('s_load_dwordx2 s[%d:%d], s[0:1], %d' % (r, r + 1, SLOT[n]))
    for r, n in ((SX, 'x'), (SWQ, 'wq'), (SK, 'k'), (SV, 'v'), (SWO, 'wo'), (SWS, 'ws')):
        a('s_mov_b32 s%d, %d\ns_mov_b32 s%d, 0x20000' % (r + 2, SIZES[n], r + 3))
    a('v_lshrrev_b32 v1, 6, v0\nv_and_b32 v0, 63, v0\nv_readfirstlane_b32 s20, v1')
    a('s_and_b32 s21, s2, 7\ns_lshl_b32 s21, s21, 1\ns_bfe_u32 s3, s2, 0x10003\ns_add_u32 s21, s21, s3')
    a('s_lshr_b32 s22, s2, 4')
    if rot: a('s_mul_i32 s23, s22, 9\ns_lshr_b32 s23, s23, 4')
    else: a('s_mov_b32 s23, 0')
    L = 0; VQ, VG, VR, VC, VL3, VL7, T0, T1 = 1, 2, 3, 4, 5, 6, 7, 8
    a('v_and_b32 v1, 15, v0')
    a('v_lshrrev_b32 v2, 4, v0')
    a('v_bfe_u32 v3, v0, 2, 2')
    a('v_and_b32 v4, 3, v0')
    a('v_lshrrev_b32 v5, 3, v0')
    a('v_and_b32 v6, 7, v0')
    XV = 10
    a('s_and_b32 s52, s20, 1\ns_mul_i32 s53, s52, 3')
    for jj in range(3):
        a('s_add_u32 s54, s53, %d\ns_and_b32 s55, s54, 1\ns_lshl_b32 s55, s55, 2\ns_lshl_b32 s54, s54, 3' % jj)
        a('v_add_u32 v7, s55, v2\nv_xor_b32 v7, v7, v6\nv_add_u32 v8, s54, v5\nv_mul_u32_u24 v8, 1152, v8\nv_lshl_add_u32 v%d, v7, 4, v8' % (XV + jj))
        if jj: a('v_subrev_u32 v%d, %d, v%d' % (XV + jj, 1024 * jj, XV + jj))
    WQV = 13
    a('v_and_b32 v7, 1, v2')
    for j in range(4):
        a('v_or_b32 v8, %d, v7\nv_lshlrev_b32 v8, 1, v8\nv_xor_b32 v8, v8, v6\nv_add_u32 v9, %d, v5\nv_lshlrev_b32 v9, 13, v9\nv_lshl_add_u32 v%d, v8, 4, v9' % ((j & 1) << 1, 8 * j, WQV + j))
        if j: a('v_subrev_u32 v%d, %d, v%d' % (WQV + j, 1024 * j, WQV + j))
    a('s_mul_i32 s56, s20, 20480')
    a('s_lshl_b32 s57, s21, 9\ns_lshl_b32 s3, s20, 7\ns_add_u32 s57, s57, s3')
    a('s_mul_i32 s58, s22, 55296')
    a('s_waitcnt lgkmcnt(0)')
    stamp()
    a('s_lshr_b32 s59, s20, 1')
    a('s_mul_i32 s60, s59, 6144\ns_mul_i32 s3, s52, 3072\ns_add_u32 s60, s60, s3\ns_add_u32 s60, s60, %d' % XO)
    a('s_lshl_b32 s59, s59, 7\ns_add_u32 s58, s58, s59')
    for i in range(5):
        if i == 4: a('s_cmp_ge_u32 s20, 2\ns_cbranch_scc1 L_x4')
        a('s_mov_b32 m0, s60')
        for jj in range(3):
            a('buffer_load_dwordx4 v%d, s[%d:%d], s58 offen offset:%d lds' % (XV + jj, SX, SX + 3, 1024 * jj))
        if i < 4: a('s_add_u32 s60, s60, 12288\ns_add_u32 s58, s58, 256')
        if i == 4: a('L_x4:')
    vm.issue('x')
    WQS = 61
    a('s_lshl_b32 s61, s23, 1')
    def dma_wq(i):
        seq = []
        seq.append('s_add_u32 m0, s56, %d\ns_lshl_b32 s62, s61, 18\ns_add_u32 s62, s62, s57' % ((i % 5) * 4096))
        for j in range(4):
            def f(j=j):
                a('buffer_load_dwordx4 v%d, s[%d:%d], s62 offen offset:%d lds' % (WQV + j, SWQ, SWQ + 3, 1024 * j)); vm.issue('wq%d' % i)
            seq.append(f)
        seq.append('s_add_u32 s61, s61, 1\ns_cmp_eq_u32 s61, 18\ns_cselect_b32 s61, 0, s61')
        return seq
    for i in range(5): run(dma_wq(i))
    a('s_lshl_b32 s62, s22, 4\ns_add_u32 s62, s62, s21\ns_mul_i32 s62, s62, 12288')
    a('s_mul_i32 s53, s20, 3\ns_mul_i32 s63, s20, 3072')
    for (srd, base, isv) in ((SK, KO, 0), (SV, VO, 1)):
        a('s_add_u32 m0, s63, %d' % base)
        for jj in range(3):
            a('s_add_u32 s54, s53, %d\ns_lshl_b32 s54, s54, 2' % jj)
            a('v_add_u32 v7, s54, v2')
            if isv: a('v_and_b32 v8, 7, v7\nv_lshlrev_b32 v8, 1, v8')
            else: a('v_and_b32 v8, 15, v7')
            a('v_xor_b32 v8, v8, v1\nv_lshlrev_b32 v7, 8, v7\nv_lshl_add_u32 v7, v8, 4, v7')
            if jj: a('v_subrev_u32 v7, %d, v7' % (1024 * jj))
            a('buffer_load_dwordx4 v7, s[%d:%d], s62 offen offset:%d lds' % (srd, srd + 3, 1024 * jj)); vm.issue('kv')
    WOV = 17
    a('v_lshlrev_b32 v7, 1, v2\nv_xor_b32 v7, v7, v6\ns_lshl_b32 s54, s20, 6')
    for j in range(4):
        a('v_add_u32 v8, %d, v5\nv_add_u32 v8, s54, v8\nv_mul_u32_u24 v8, 1152, v8\nv_lshl_add_u32 v%d, v7, 4, v8' % (8 * j, WOV + j))
        if j: a('v_subrev_u32 v%d, %d, v%d' % (WOV + j, 1024 * j, WOV + j))
    a('s_mul_i32 s64, s21, %d' % (256 * 1152))
    a('s_mov_b32 s65, s23')
    a('s_lshl_b32 s66, s20, 12\ns_add_u32 s66, s66, %d' % EO)
    WOSLOT = [(3, 4), (0, 1), (2, 'E')]
    def dma_wo(s, hf):
        sl = WOSLOT[s % 3][hf]
        seq = []
        m0 = 's_mov_b32 m0, s66' if sl == 'E' else 's_add_u32 m0, s56, %d' % (sl * 4096)
        seq.append(m0 + '\ns_lshl_b32 s62, s65, 7\ns_add_u32 s62, s62, s64' + ('\ns_add_u32 s62, s62, %d' % (32 * 1152) if hf else ''))
        for j in range(4):
            def f(j=j):
                a('buffer_load_dwordx4 v%d, s[%d:%d], s62 offen offset:%d lds' % (WOV + j, SWO, SWO + 3, 1024 * j)); vm.issue('wo%d' % s)
            seq.append(f)
        if hf: seq.append('s_add_u32 s65, s65, 1\ns_cmp_eq_u32 s65, 9\ns_cselect_b32 s65, 0, s65')
        return seq
    XB = 21
    a('v_lshrrev_b32 v7, 1, v1\nv_xor_b32 v7, v7, v2\nv_lshlrev_b32 v7, 4, v7\nv_lshl_add_u32 v7, v1, 7, v7')
    a('v_add_u32 v21, %d, v7\nv_xor_b32 v7, 64, v7\nv_add_u32 v22, %d, v7' % (XO, XO))
    WB = 25
    a('v_and_b32 v7, 1, v2\nv_lshrrev_b32 v8, 1, v3\nv_lshl_add_u32 v7, v7, 1, v8')
    a('v_lshl_add_u32 v8, v2, 3, v3\nv_lshlrev_b32 v8, 7, v8\nv_lshl_add_u32 v8, v4, 3, v8\nv_add_u32 v8, s56, v8')
    for dt in range(4):
        a('v_xor_b32 v9, %d, v7\nv_lshl_add_u32 v%d, v9, 5, v8' % (dt, WB + dt))
    OB = 29
    a('v_xor_b32 v9, s20, v7\nv_lshl_add_u32 v8, v2, 2, v3\nv_lshlrev_b32 v8, 7, v8\nv_lshl_add_u32 v8, v4, 3, v8\nv_lshl_add_u32 v29, v9, 5, v8\nv_add_u32 v30, 0x10000, v29')
    ACC = 32
    FA = [80, 108]
    a('s_mov_b32 s67, s23')
    def xaddr():
        return ['s_mul_i32 s3, s67, 6144', 'v_add_u32 v23, s3, v21', 'v_add_u32 v24, s3, v22', 's_add_u32 s67, s67, 1\ns_cmp_eq_u32 s67, 9\ns_cselect_b32 s67, 0, s67']
    def reads_A(i):
        seq = []
        st = FA[i & 1]
        def rd(s):
            def f(): a(s); lg.issue('fa%d' % i)
            return f
        for qt in range(3):
            seq.append(rd('ds_read_b128 %s, v%d offset:%d' % (v(st + 16 + 4 * qt, 4), 23 + (i & 1), 2048 * qt)))
        for dt in range(4):
            for hh in range(2):
                seq.append(rd('ds_read_b64_tr_b16 %s, v%d offset:%d' % (v(st + 4 * dt + 2 * hh, 2), WB + dt, (i % 5) * 4096 + 512 * hh)))
        return seq
    def mfma_A(i):
        st = FA[i & 1]; seq = []
        for dt in range(4):
            for qt in range(3):
                d = v(ACC + 4 * (3 * dt + qt), 4)
                seq.append('v_mfma_f32_16x16x32_bf16 %s, %s, %s, %s' % (d, v(st + 4 * dt, 4), v(st + 16 + 4 * qt, 4), d if i else '0'))
        return seq
    run(xaddr())
    vm.wait(['x', 'wq0'])
    a('s_barrier')
    stamp()
    run(reads_A(0))
    KF = 136
    VF = 184
    for i in range(18):
        lg.wait_all()
        m = mfma_A(i)
        if i < 17:
            it = i + 5
            d = dma_wq(it) if it < 18 else dma_wo((it - 18) >> 1, (it - 18) & 1)
            fill = list(d)
            if (i + 1) % 2 == 0: fill += xaddr()
            fill.append(lambda i=i: vm.wait('wq%d' % (i + 1)))
            fill += reads_A(i + 1)
            run(interleave(m, fill, 0, 2))
        else:
            a('s_barrier')
            fill = dma_wo(2, 0) + dma_wo(2, 1)
            fill.append('v_xor_b32 v7, v1, v2\nv_lshlrev_b32 v7, 4, v7\nv_lshl_add_u32 v7, v1, 8, v7')
            for kk in range(4):
                fill.append('v_xor_b32 v8, %d, v7\nv_add_u32 v%d, %d, v8' % (64 * kk, 21 + kk, KO))
            for kt in range(3):
                for kk in range(4):
                    def f(kt=kt, kk=kk):
                        a('ds_read_b128 %s, v%d offset:%d' % (v(KF + 16 * kt + 4 * kk, 4), 21 + kk, 4096 * kt)); lg.issue('kf')
                    fill.append(f)
            run(interleave(m, fill, 0, 2))
    stamp()
    a('v_lshl_add_u32 v7, v2, 2, v3\nv_and_b32 v8, 7, v7\nv_lshlrev_b32 v7, 8, v7\nv_lshl_add_u32 v7, v4, 3, v7\nv_add_u32 v7, %d, v7' % VO)
    for dt in range(8):
        a('v_xor_b32 v9, %d, v8\nv_lshl_add_u32 v9, v9, 5, v7' % dt)
        for kt in range(3):
            a('ds_read_b64_tr_b16 %s, v9 offset:%d' % (v(VF + 6 * dt + 2 * kt, 2), 4096 * kt)); lg.issue('vf')
    a('s_lshr_b32 s52, s20, 1\ns_mul_i32 s52, s52, 12288\ns_and_b32 s53, s20, 1\ns_lshl_b32 s54, s53, 11\ns_add_u32 s54, s54, s52\ns_add_u32 s54, s54, %d' % QO)
    a('v_lshrrev_b32 v7, 1, v2\nv_lshl_add_u32 v7, v7, 4, v1\nv_lshlrev_b32 v7, 4, v7\nv_and_b32 v8, 1, v2\nv_lshl_add_u32 v7, v8, 3, v7\nv_add_u32 v7, s54, v7')
    for dt in range(4):
        for qt in range(3):
            s = ACC + 4 * (3 * dt + qt); d = 80 + 2 * (3 * dt + qt)
            a('v_cvt_pk_bf16_f32 v%d, v%d, v%d\nv_cvt_pk_bf16_f32 v%d, v%d, v%d' % (d, s, s + 1, d + 1, s + 2, s + 3))
            a('ds_write_b64 v7, %s offset:%d' % (v(d, 2), qt * 4096 + (dt >> 1) * 1024 + (dt & 1) * 512)); lg.issue('qw')
    lg.wait_all()
    a('s_barrier')
    a('s_lshl_b32 s53, s53, 13\ns_add_u32 s52, s52, s53\ns_add_u32 s52, s52, %d' % QO)
    a('v_lshlrev_b32 v22, 4, v0\nv_add_u32 v21, s52, v22\nv_add_u32 v22, %d, v22' % QO)
    a('s_mov_b32 s55, 0x%x' % f2i(128 ** -0.5 * math.log2(math.e)))
    QF = 32; S = 48; P = 60; O = 80
    def unit(off):
        for kk in range(4):
            a('ds_read_b128 %s, v21 offset:%d' % (v(QF + 4 * kk, 4), off + 1024 * kk))
        a('s_waitcnt lgkmcnt(0)')
        for kk in range(4):
            for kt in range(3):
                d = v(S + 4 * kt, 4)
                a('v_mfma_f32_16x16x32_bf16 %s, %s, %s, %s' % (d, v(KF + 16 * kt + 4 * kk, 4), v(QF + 4 * kk, 4), d if kk else '0'))
        a('v_max3_f32 v7, v%d, v%d, v%d' % (S, S + 1, S + 2))
        for t in range(3, 11, 2): a('v_max3_f32 v7, v7, v%d, v%d' % (S + t, S + t + 1))
        a('v_max_f32 v7, v7, v%d' % (S + 11))
        a('v_mov_b32 v8, v7\nv_permlane16_swap_b32 v7, v8\nv_max_f32 v7, v7, v8')
        a('v_mov_b32 v8, v7\nv_permlane32_swap_b32 v7, v8\nv_max_f32 v7, v7, v8')
        a('v_mul_f32 v7, s55, v7')
        for t in range(12): a('v_fma_f32 v%d, v%d, s55, -v7' % (S + t, S + t))
        for t in range(12): a('v_exp_f32 v%d, v%d' % (S + t, S + t))
        a('v_add_f32 v7, v%d, v%d\nv_add_f32 v8, v%d, v%d' % (S, S + 1, S + 2, S + 3))
        for t in range(4, 12, 2): a('v_add_f32 v7, v7, v%d\nv_add_f32 v8, v8, v%d' % (S + t, S + t + 1))
        a('v_add_f32 v7, v7, v8')
        a('v_mov_b32 v8, v7\nv_permlane16_swap_b32 v7, v8\nv_add_f32 v7, v7, v8')
        a('v_mov_b32 v8, v7\nv_permlane32_swap_b32 v7, v8\nv_add_f32 v7, v7, v8')
        a('v_rcp_f32 v7, v7')
        for t in range(12): a('v_mul_f32 v%d, v%d, v7' % (S + t, S + t))
        for t in range(6): a('v_cvt_pk_bf16_f32 v%d, v%d, v%d' % (P + t, S + 2 * t, S + 2 * t + 1))
        for dt in range(8):
            a('v_mfma_f32_16x16x32_bf16 %s, %s, %s, 0' % (v(O + 4 * dt, 4), v(VF + 6 * dt, 4), v(P, 4)))
        for dt in range(8):
            d = v(O + 4 * dt, 4)
            a('v_mfma_f32_16x16x16_bf16 %s, %s, %s, %s' % (d, v(VF + 6 * dt + 4, 2), v(P + 4, 2), d))
        for kk in range(4):
            for t in range(4):
                a('v_cvt_pk_bf16_f32 v%d, v%d, v%d' % (QF + 4 * kk + t, O + 8 * kk + 2 * t, O + 8 * kk + 2 * t + 1))
            a('ds_write_b128 v21, %s offset:%d' % (v(QF + 4 * kk, 4), off + 1024 * kk))
        a('s_waitcnt lgkmcnt(0)')
    unit(0)
    a('s_bitcmp1_b32 s20, 0\ns_cbranch_scc1 L_u1')
    unit(4096)
    a('L_u1:')
    OF = 136
    WF = [32, 64]
    BA = [96, 108]
    PK = 120
    def reads_B(s):
        seq = []
        for ks in range(8):
            sl = WOSLOT[s % 3][ks & 1]
            base = EO + (ks >> 1) * 4096 if sl == 'E' else (ks >> 1) * 20480 + sl * 4096
            for hh in range(2):
                off = base + 2048 * hh
                def f(off=off, ks=ks, hh=hh):
                    a('ds_read_b64_tr_b16 %s, v%d offset:%d' % (v(WF[s & 1] + 4 * ks + 2 * hh, 2), OB + (off >> 16), off & 0xffff)); lg.issue('wf')
                seq.append(f)
        return seq
    def mfma_B(s):
        seq = []
        for ks in range(8):
            for qt in range(3):
                d = v(BA[s & 1] + 4 * qt, 4)
                seq.append('v_mfma_f32_16x16x32_bf16 %s, %s, %s, %s' % (d, v(WF[s & 1] + 4 * ks, 4), v(OF + 12 * ks + 4 * qt, 4), d if ks else '0'))
        return seq
    a('s_lshl_b32 s52, s22, 4\ns_add_u32 s52, s52, s21\ns_mul_i32 s52, s52, 55296\ns_mul_i32 s53, s20, 1536\ns_add_u32 s52, s52, s53\ns_add_u32 s52, s52, %d' % PART)
    a('s_mov_b32 s53, s23\nv_lshlrev_b32 v23, 3, v0')
    def store_B(s):
        seq = ['s_mul_i32 s54, s53, 6144\ns_add_u32 s54, s54, s52']
        for qt in range(3):
            b_ = BA[s & 1] + 4 * qt
            seq.append('v_cvt_pk_bf16_f32 v%d, v%d, v%d' % (PK + 2 * qt, b_, b_ + 1))
            seq.append('v_cvt_pk_bf16_f32 v%d, v%d, v%d' % (PK + 2 * qt + 1, b_ + 2, b_ + 3))
            def f(qt=qt):
                a('buffer_store_dwordx2 %s, v23, s[%d:%d], s54 offen offset:%d' % (v(PK + 2 * qt, 2), SWS, SWS + 3, 512 * qt)); vm.issue('st')
            seq.append(f)
        seq.append('s_add_u32 s53, s53, 1\ns_cmp_eq_u32 s53, 9\ns_cselect_b32 s53, 0, s53')
        return seq
    vm.wait('wo0')
    a('s_barrier')
    stamp()
    for ks in range(8):
        for qt in range(3):
            a('ds_read_b128 %s, v22 offset:%d' % (v(OF + 12 * ks + 4 * qt, 4), ((ks >> 2) * 3 + qt) * 4096 + (ks & 3) * 1024)); lg.issue('of')
    run(reads_B(0))
    for s in range(1, 10):
        lg.wait_all()
        fill = []
        if s < 9:
            vm.wait('wo%d' % s)
            a('s_barrier')
            if s + 2 < 9: fill += dma_wo(s + 2, 0) + dma_wo(s + 2, 1)
            fill += reads_B(s)
        if s >= 2: fill += store_B(s - 2)
        run(interleave(mfma_B(s - 1), fill, 0, 2))
    run(store_B(8))
    stamp()
    if stamps:
        a('s_waitcnt vmcnt(0)')
        stamp()
        a('s_waitcnt lgkmcnt(0)')
        a('s_cmp_lg_u32 s20, 0\ns_cbranch_scc1 L_end')
        a('v_mov_b32 v2, 0')
        for i in range(nst[0]):
            a('v_mov_b32 v4, s%d\nv_mov_b32 v5, s%d' % (68 + 2 * i, 69 + 2 * i))
            a('s_lshl_b32 s3, s2, 7\ns_add_u32 s3, s3, %d' % (STAMP_OFF + 8 * i))
            a('buffer_store_dwordx2 v[4:5], v2, s[%d:%d], s3 offen' % (SWS, SWS + 3))
    a('L_end:\ns_endpgm')
    a(kernel_begin(K2))
    a('s_cmp_ge_u32 s2, 432\ns_cbranch_scc1 L_end2')
    a('s_load_dwordx2 s[8:9], s[0:1], %d\ns_load_dwordx2 s[12:13], s[0:1], %d' % (SLOT['ws'], SLOT['out']))
    a('s_mov_b32 s10, %d\ns_mov_b32 s11, 0x20000\ns_mov_b32 s14, %d\ns_mov_b32 s15, 0x20000' % (SIZES['ws'], SIZES['out']))
    a('v_lshrrev_b32 v1, 6, v0\nv_and_b32 v0, 63, v0\nv_readfirstlane_b32 s20, v1')
    a('s_mul_i32 s21, s2, 2428\ns_lshr_b32 s21, s21, 16')
    a('s_mul_i32 s22, s21, 27\ns_sub_u32 s22, s2, s22')
    a('s_mul_i32 s23, s22, 21846\ns_lshr_b32 s23, s23, 16')
    a('s_mul_i32 s24, s23, 3\ns_sub_u32 s24, s22, s24')
    a('s_mul_i32 s25, s21, %d\ns_mul_i32 s26, s23, 6144\ns_add_u32 s25, s25, s26\ns_mul_i32 s26, s20, 1536\ns_add_u32 s25, s25, s26\ns_lshl_b32 s26, s24, 9\ns_add_u32 s25, s25, s26' % (16 * 55296))
    a('s_add_u32 s25, s25, %d' % PART)
    a('v_lshlrev_b32 v1, 3, v0')
    a('s_waitcnt lgkmcnt(0)')
    for h in range(16):
        a('buffer_load_dwordx2 %s, v1, s[8:11], s25 offen' % v(8 + 2 * h, 2))
        a('s_add_u32 s25, s25, 55296')
    a('v_and_b32 v2, 15, v0\nv_mul_u32_u24 v2, 1152, v2\nv_lshrrev_b32 v3, 4, v0\nv_lshl_add_u32 v2, v3, 3, v2')
    a('s_mul_i32 s25, s21, 55296\ns_mul_i32 s26, s24, %d\ns_add_u32 s25, s25, s26\ns_lshl_b32 s26, s23, 7\ns_add_u32 s25, s25, s26\ns_lshl_b32 s26, s20, 5\ns_add_u32 s25, s25, s26' % (16 * 1152))
    for h in range(16):
        a('s_waitcnt vmcnt(%d)' % (15 - h))
        for t in range(2):
            src = 8 + 2 * h + t
            if h == 0:
                a('v_lshlrev_b32 v%d, 16, v%d\nv_and_b32 v%d, 0xffff0000, v%d' % (4 + 2 * t, src, 5 + 2 * t, src))
            else:
                a('v_lshlrev_b32 v3, 16, v%d\nv_add_f32 v%d, v%d, v3\nv_and_b32 v3, 0xffff0000, v%d\nv_add_f32 v%d, v%d, v3' % (src, 4 + 2 * t, 4 + 2 * t, src, 5 + 2 * t, 5 + 2 * t))
    a('v_cvt_pk_bf16_f32 v4, v4, v5\nv_cvt_pk_bf16_f32 v5, v6, v7')
    a('buffer_store_dwordx2 v[4:5], v2, s[12:15], s25 offen')
    a('L_end2:\ns_endpgm')
    a(kernel_desc(K1, 256, 256))
    a(kernel_desc(K2, 48, 48))
    a.lines = hazard.pad(a.lines, True)
    return a.text()
if __name__ == '__main__':
    open('f16_v1.s', 'w').write(gen())
    open('f16_v1_st.s', 'w').write(gen(stamps=True))
    open('f16_v1_st_norot.s', 'w').write(gen(stamps=True, rot=False))
```

```python
import sys, math, struct
from asmlib import *
import hazard
from gen_f16 import Cnt, interleave, f2i, v

L_K = 0; L_X = 24576; L_WQ = 61440; L_V = 114688; L_Q = 24576; L_W = 49152; L_P = 0
G_FL = 0x0
G_P = 0x10000
G_PM = 0x400000
G_PO = 0xC00000
SX, SWQ, SK, SV, SWO, SWS, SOUT = 24, 28, 32, 36, 40, 44, 48
SPIN = 1 << 14

def gen(stamps=False, opt=None):
    o = dict(order='qqqKqqqqqq', win=24, ackbar=3, poll0=4, codepf=True)
    if opt: o.update(opt)
    a = Asm()
    a('; @launch grid=(256,1,1) block=(512,1,1) lds=163840')
    a(HEAD); a(kernel_begin(KN))
    def run(seq):
        for x in seq:
            if callable(x): x()
            else: a(x)
    class St:
        def __init__(s, base, n): s.base = base; s.n = n; s.k = 0
        def __call__(s):
            if stamps:
                assert s.k < s.n
                a('s_memrealtime s[%d:%d]' % (70 + 2 * s.k, 71 + 2 * s.k)); s.k += 1
        def flush(s, wave, lab):
            if stamps:
                a('s_cmp_lg_u32 s20, %d\ns_cbranch_scc1 %s' % (wave, lab))
                a('s_waitcnt lgkmcnt(0)\nv_mov_b32 v2, 0\ns_lshl_b32 s3, s2, 7\ns_add_u32 s3, s3, %d' % (STAMP_OFF + 8 * s.base))
                for i in range(s.k):
                    a('v_mov_b32 v4, s%d\nv_mov_b32 v5, s%d' % (70 + 2 * i, 71 + 2 * i))
                    a('buffer_store_dwordx2 v[4:5], v2, s[%d:%d], s3 offen offset:%d' % (SWS, SWS + 3, 8 * i))
    stC = St(0, 8); stL = St(8, 4); stH = St(12, 4)
    stC()
    a('s_cmp_ge_u32 s2, 256\ns_cbranch_scc1 L_end')
    a('s_load_dwordx2 s[%d:%d], s[0:1], %d' % (SX, SX + 1, SLOT['x']))
    a('s_load_dwordx2 s[%d:%d], s[0:1], %d' % (SWQ, SWQ + 1, SLOT['wq']))
    a('s_load_dwordx4 s[4:7], s[0:1], %d' % SLOT['k'])
    a('s_load_dwordx8 s[8:15], s[0:1], %d' % SLOT['wo'])
    a('v_lshrrev_b32 v1, 6, v0\nv_and_b32 v0, 63, v0\nv_readfirstlane_b32 s20, v1')
    a('s_and_b32 s21, s2, 7\ns_bfe_u32 s22, s2, 0x20003\ns_lshr_b32 s23, s2, 5')
    a('v_and_b32 v1, 15, v0\nv_lshrrev_b32 v2, 4, v0')
    def srd(r, src, n):
        if src is not None: a('s_mov_b32 s%d, s%d\ns_mov_b32 s%d, s%d' % (r, src, r + 1, src + 1))
        a('s_mov_b32 s%d, %d\ns_mov_b32 s%d, 0x20000' % (r + 2, SIZES[n], r + 3))
    a('s_cmp_lt_u32 s20, 4\ns_cbranch_scc1 L_comp')
    a('s_cmp_ge_u32 s20, 6\ns_cbranch_scc1 L_help')
    vm = Cnt(a, 'vmcnt', 63)
    XV, WV, OV, KV, DV = 8, 12, 16, 20, 24
    srd(SX, None, 'x'); srd(SWQ, None, 'wq')
    a('s_and_b32 s16, s20, 1')
    a('v_lshrrev_b32 v3, 3, v0\nv_and_b32 v4, 7, v0')
    a('v_mul_u32_u24 v5, 1152, v3\nv_xor_b32 v6, v4, v2\nv_lshl_add_u32 v%d, v6, 4, v5' % XV)
    a('v_xor_b32 v6, 64, v%d\nv_add_u32 v%d, %d, v6' % (XV, XV + 1, 8 * 1152 - 1024))
    a('v_add_u32 v%d, %d, v%d\nv_add_u32 v%d, %d, v%d' % (XV + 2, 2 * (8 * 1152 - 1024), XV, XV + 3, 2 * (8 * 1152 - 1024), XV + 1))
    a('v_lshlrev_b32 v6, 1, v2\nv_xor_b32 v6, v6, v1\nv_lshlrev_b32 v6, 4, v6')
    a('v_lshl_add_u32 v%d, v2, 13, v6' % WV)
    a('v_add_u32 v%d, %d, v%d' % (WV + 1, 4 * 8192 - 1024, WV))
    a('v_xor_b32 v7, 128, v%d\nv_add_u32 v%d, %d, v7\nv_add_u32 v%d, %d, v7' % (WV, WV + 2, 2 * (4 * 8192 - 1024), WV + 3, 3 * (4 * 8192 - 1024)))
    a('s_add_u32 s17, s22, s23\ns_mul_i32 s3, s17, 43\ns_lshr_b32 s3, s3, 7\ns_mul_i32 s3, s3, 3\ns_sub_u32 s17, s17, s3\ns_mul_i32 s17, s17, 3')
    a('s_lshl_b32 s18, s23, 1\ns_add_u32 s18, s18, s16\ns_mul_i32 s52, s18, 55296')
    a('s_lshl_b32 s53, s21, 10\ns_lshl_b32 s3, s22, 8\ns_add_u32 s53, s53, s3\ns_lshl_b32 s3, s16, 18\ns_add_u32 s53, s53, s3')
    a('s_mul_i32 s54, s16, 6144\ns_lshl_b32 s55, s16, 13\ns_mul_i32 s56, s16, 12288')
    a('s_waitcnt lgkmcnt(0)')
    stL()
    def group(vreg, n, srd_, soff, tag):
        for j in range(n):
            a('buffer_load_dwordx4 v%d, s[%d:%d], %s offen offset:%d lds' % (vreg + j, srd_, srd_ + 3, soff, 1024 * j)); vm.issue(tag)
    def item_q(c):
        st = c % 3; tag = 'q%d' % c
        a('s_add_u32 m0, s54, %d\ns_lshl_b32 s57, s17, 7\ns_add_u32 s57, s57, s52' % (L_X + 12288 * st))
        group(XV, 4, SX, 's57', tag)
        a('s_add_u32 m0, s54, %d\ns_add_u32 s57, s57, %d' % (L_X + 12288 * st + 4096, 32 * 1152))
        group(XV, 2, SX, 's57', tag)
        a('s_add_u32 m0, s55, %d\ns_lshl_b32 s57, s17, 19\ns_add_u32 s57, s57, s53' % (L_WQ + 16384 * st))
        group(WV, 4, SWQ, 's57', tag)
        a('s_add_u32 m0, s55, %d\ns_add_u32 s57, s57, %d' % (L_WQ + 16384 * st + 4096, 16 * 8192))
        group(WV, 4, SWQ, 's57', tag)
        a('s_add_u32 s17, s17, 1\ns_cmp_eq_u32 s17, 9\ns_cselect_b32 s17, 0, s17')
    def item_kv(srd_, kvreg, ldsbase, tag, dyn):
        a('s_lshl_b32 s57, s18, 4\ns_lshl_b32 s3, s21, 1\ns_add_u32 s57, s57, s3\ns_add_u32 s57, s57, %s\ns_mul_i32 s57, s57, 12288' % kvreg)
        if dyn: a('s_mul_i32 s58, %s, 24576\ns_add_u32 s58, s58, s56' % kvreg)
        for t in range(3):
            a('s_add_u32 m0, %s, %d' % ('s58' if dyn else 's56', ldsbase + 4096 * t))
            if t: a('s_add_u32 s57, s57, 4096')
            group(KV, 4, srd_, 's57', tag)
    def item_w(p):
        a('s_add_u32 m0, s55, %d\ns_mul_i32 s57, s59, %d\ns_add_u32 s57, s57, s60' % (L_W + 16384 * (p & 3), 64 * 1152))
        group(OV, 4, SWO, 's57', 'w%d' % p)
        a('s_add_u32 m0, s55, %d\ns_add_u32 s57, s57, %d' % (L_W + 16384 * (p & 3) + 4096, 16 * 1152))
        group(OV, 4, SWO, 's57', 'w%d' % p)
        a('s_add_u32 s59, s59, 1\ns_and_b32 s59, s59, 7')
    def item_o(p):
        a('s_add_u32 m0, s55, %d\ns_mul_i32 s57, s61, %d\ns_add_u32 s57, s57, s62' % (L_W + 16384 * (p & 3), 128 * 1152))
        group(DV, 4, SWO, 's57', 'w%d' % p)
        a('s_add_u32 m0, s55, %d\ns_add_u32 s57, s57, %d' % (L_W + 16384 * (p & 3) + 4096, 32 * 1152))
        group(DV, 4, SWO, 's57', 'w%d' % p)
        a('s_xor_b32 s61, s61, 1')
    def late_setup():
        srd(SK, 4, 'k'); srd(SV, 6, 'v'); srd(SWO, 8, 'wo'); srd(SWS, 14, 'ws')
        a('v_mul_u32_u24 v7, 1152, v2\nv_add_u32 v%d, v7, v6\nv_add_u32 v%d, %d, v%d' % (OV, OV + 1, 4 * 1152 - 1024, OV))
        a('v_xor_b32 v6, 128, v6\nv_add_u32 v7, v7, v6\nv_add_u32 v%d, %d, v7\nv_add_u32 v%d, %d, v7' % (OV + 2, 2 * (4 * 1152 - 1024), OV + 3, 3 * (4 * 1152 - 1024)))
        a('v_xor_b32 v6, v1, v2\nv_lshlrev_b32 v6, 4, v6\nv_lshl_add_u32 v%d, v2, 8, v6' % KV)
        for j in range(1, 4): a('v_xor_b32 v%d, %d, v%d' % (KV + j, 64 * j, KV))
        a('v_and_b32 v6, 1, v2\nv_lshlrev_b32 v6, 1, v6\nv_xor_b32 v6, v6, v4\nv_lshl_add_u32 v%d, v6, 4, v5' % DV)
        a('v_xor_b32 v6, 64, v%d\nv_add_u32 v%d, %d, v6' % (DV, DV + 1, 8 * 1152 - 1024))
        a('v_add_u32 v%d, %d, v%d\nv_add_u32 v%d, %d, v%d' % (DV + 2, 2 * (8 * 1152 - 1024), DV, DV + 3, 2 * (8 * 1152 - 1024), DV + 1))
        a('s_lshr_b32 s63, s22, 1\ns_and_b32 s64, s22, 1\ns_xor_b32 s65, s64, 1')
        a('s_and_b32 s59, s23, 3\ns_lshl_b32 s59, s59, 1')
        a('s_lshl_b32 s60, s21, 9\ns_lshl_b32 s3, s16, 5\ns_add_u32 s60, s60, s3\ns_mul_i32 s60, s60, 1152\ns_lshl_b32 s3, s22, 8\ns_add_u32 s60, s60, s3')
        a('s_and_b32 s61, s23, 1')
        a('s_lshl_b32 s62, s21, 9\ns_lshl_b32 s3, s63, 8\ns_add_u32 s62, s62, s3\ns_lshl_b32 s3, s16, 6\ns_add_u32 s62, s62, s3\ns_mul_i32 s62, s62, 1152\ns_add_u32 s62, s62, 1024')
    nq = 0; nbar = 0; since = {}
    def barA():
        nonlocal nbar
        vm.wait('q%d' % nbar); a('s_barrier'); nbar += 1
    for t in o['order'] + 'V':
        if t == 'q':
            while nq - 2 > nbar - 1 and nq >= 3: barA()
            item_q(nq); sz = 28; nq += 1
            if nq == 1: late_setup()
        elif t == 'K': item_kv(SK, 's63', L_K, 'k', False); sz = 24
        elif t == 'V': item_kv(SV, 's64', L_V, 'v', True); sz = 24
        for c in list(since): since[c] += sz
        if t == 'q': since[nq - 1] = 0
        while nbar < nq and since[nbar] >= o['win']: barA()
    while nbar < 9: barA()
    stL()
    a('s_barrier')
    item_kv(SV, 's65', L_V, 'v', True)
    nb = 0
    for p in range(10):
        if p >= 2:
            vm.wait(['v', 'w%d' % nb]); a('s_barrier'); nb += 1
        (item_w if p < 8 else item_o)(p)
    while nb < 10:
        vm.wait('w%d' % nb); a('s_barrier'); nb += 1
    stL()
    a('s_branch L_tail')
    a('L_comp:')
    lg = Cnt(a, 'lgkmcnt', 15)
    XA, WA, VA, KA = 10, 12, 16, 20
    ACC = 32; F = [80, 108]; VWS = 136; VWO = 232; KF = 136; QF = 184; S = 200; P = 244
    a('v_bfe_u32 v3, v0, 2, 2\nv_and_b32 v4, 3, v0')
    a('s_lshr_b32 s16, s20, 1\ns_and_b32 s17, s20, 1')
    a('v_lshrrev_b32 v7, 1, v1\nv_xor_b32 v7, v7, v2\nv_lshlrev_b32 v7, 4, v7\nv_lshl_add_u32 v7, v1, 7, v7')
    a('s_mul_i32 s3, s16, 6144\ns_add_u32 s3, s3, %d' % L_X)
    a('v_add_u32 v%d, s3, v7\nv_xor_b32 v7, 64, v7\nv_add_u32 v%d, s3, v7' % (XA, XA + 1))
    a('v_and_b32 v7, 1, v2\nv_lshl_add_u32 v7, v7, 2, v3\ns_lshl_b32 s3, s17, 2\nv_xor_b32 v7, s3, v7')
    a('v_lshl_add_u32 v8, v2, 3, v3\nv_lshlrev_b32 v8, 8, v8\nv_lshl_add_u32 v8, v4, 3, v8\nv_add_u32 v8, %d, v8' % L_WQ)
    for t in range(4): a('v_xor_b32 v9, %d, v7\nv_lshl_add_u32 v%d, v9, 5, v8' % (t, WA + t))
    a('s_mov_b32 s18, s20')
    def unit_setup():
        a('s_cmp_ge_u32 s18, 3\ns_cselect_b32 s3, 12288, 0')
        a('v_xor_b32 v7, v1, v2\nv_lshlrev_b32 v7, 4, v7\nv_lshl_add_u32 v27, v1, 8, v7')
        for kk in range(4): a('v_xor_b32 v8, %d, v27\nv_add_u32 v%d, s3, v8' % (64 * kk, KA + kk))
        a('v_lshlrev_b32 v25, 4, v0\nv_lshlrev_b32 v26, 3, v0\ns_lshl_b32 s3, s18, 12\ns_add_u32 s3, s3, %d\nv_add_u32 v24, s3, v25' % L_Q)
        a('s_mov_b32 s19, 0x%x' % f2i(128 ** -0.5 * math.log2(math.e)))
        a('s_mul_i32 s52, s2, 9216\ns_mul_i32 s3, s18, 1536\ns_add_u32 s52, s52, s3\ns_add_u32 s52, s52, %d' % G_P)
        a('s_mul_i32 s53, s22, 9216\ns_add_u32 s53, s53, s3\ns_add_u32 s53, s53, %d' % L_P)
    def k_reads():
        return ['ds_read_b128 %s, v%d offset:%d' % (v(KF + 16 * kt + 4 * kk, 4), KA + kk, 4096 * kt) for kk in range(4) for kt in range(3)]
    unit_setup()
    a('s_mul_i32 s3, s16, 12288\ns_lshl_b32 s54, s17, 11\ns_add_u32 s3, s3, s54\ns_add_u32 s3, s3, %d' % L_Q)
    a('v_lshrrev_b32 v7, 1, v2\nv_lshl_add_u32 v7, v7, 4, v1\nv_lshlrev_b32 v7, 4, v7\nv_and_b32 v8, 1, v2\nv_lshl_add_u32 v7, v8, 3, v7\nv_add_u32 v28, s3, v7')
    a('s_and_b32 s54, s23, 3\ns_lshr_b32 s3, s54, 1\ns_mul_i32 s3, s3, 24576\ns_mul_i32 s55, s16, 12288\ns_add_u32 s3, s3, s55\ns_add_u32 s3, s3, %d' % L_V)
    for kq in range(4): a('v_xor_b32 v8, %d, v27\nv_add_u32 v%d, s3, v8' % (64 * kq, VA + kq))
    a('s_waitcnt lgkmcnt(0)')
    srd(SWS, 14, 'ws')
    def wreads(st, off):
        return ['ds_read_b64_tr_b16 %s, v%d offset:%d' % (v(st + 4 * t + 2 * hh, 2), WA + t, off + 1024 * hh) for t in range(4) for hh in range(2)]
    def reads_A(c, ks):
        st = F[ks]
        return ['ds_read_b128 %s, v%d offset:%d' % (v(st + 16 + 4 * qt, 4), XA + ks, 12288 * (c % 3) + 2048 * qt) for qt in range(3)] + wreads(st, 16384 * (c % 3) + 8192 * ks)
    def mfma_A(ks, first):
        st = F[ks]
        return ['v_mfma_f32_16x16x32_bf16 %s, %s, %s, %s' % (v(ACC + 4 * (3 * t + q), 4), v(st + 4 * t, 4), v(st + 16 + 4 * q, 4), '0' if first else v(ACC + 4 * (3 * t + q), 4)) for t in range(4) for q in range(3)]
    W0 = 's_waitcnt lgkmcnt(0)'
    a('s_barrier')
    stC()
    run(reads_A(0, 0))
    for c in range(9):
        a(W0)
        run(interleave(mfma_A(0, c == 0), reads_A(c, 1), 0, 2))
        a(W0)
        if c < 8:
            a('s_barrier')
            if c == 7: stC()
            run(interleave(mfma_A(1, False), reads_A(c + 1, 0), 0, 2))
        else:
            run(interleave(mfma_A(1, False), k_reads(), 0, 2))
    for t in range(4):
        for q in range(3):
            s_ = ACC + 4 * (3 * t + q); d = F[0] + 2 * (3 * t + q)
            a('v_cvt_pk_bf16_f32 v%d, v%d, v%d\nv_cvt_pk_bf16_f32 v%d, v%d, v%d' % (d, s_, s_ + 1, d + 1, s_ + 2, s_ + 3))
            a('ds_write_b64 v28, %s offset:%d' % (v(d, 2), q * 4096 + (t >> 1) * 1024 + (t & 1) * 512))
    a('L_unit:')
    a(W0)
    a('s_barrier')
    for kk in range(4): a('ds_read_b128 %s, v24 offset:%d' % (v(QF + 4 * kk, 4), 1024 * kk))
    for kk in range(4):
        a('s_waitcnt lgkmcnt(%d)' % (0 if stamps else 3 - kk))
        for kt in range(3):
            d = v(S + 4 * kt, 4)
            a('v_mfma_f32_16x16x32_bf16 %s, %s, %s, %s' % (d, v(KF + 16 * kt + 4 * kk, 4), v(QF + 4 * kk, 4), d if kk else '0'))
    a('v_max3_f32 v7, v%d, v%d, v%d\nv_max3_f32 v9, v%d, v%d, v%d' % (S, S + 1, S + 2, S + 3, S + 4, S + 5))
    a('v_max3_f32 v7, v7, v%d, v%d\nv_max3_f32 v9, v9, v%d, v%d\nv_max3_f32 v7, v7, v%d, v%d\nv_max_f32 v7, v7, v9' % (S + 6, S + 7, S + 8, S + 9, S + 10, S + 11))
    a('v_mov_b32 v8, v7\nv_permlane16_swap_b32 v7, v8\nv_max_f32 v7, v7, v8')
    a('v_mov_b32 v8, v7\nv_permlane32_swap_b32 v7, v8\nv_max_f32 v7, v7, v8')
    a('v_mul_f32 v7, s19, v7')
    for t in range(12): a('v_fma_f32 v%d, v%d, s19, -v7' % (S + t, S + t))
    for t in range(12): a('v_exp_f32 v%d, v%d' % (S + t, S + t))
    a('v_add_f32 v7, v%d, v%d\nv_add_f32 v8, v%d, v%d' % (S, S + 1, S + 2, S + 3))
    for t in range(4, 12, 2): a('v_add_f32 v7, v7, v%d\nv_add_f32 v8, v8, v%d' % (S + t, S + t + 1))
    a('v_add_f32 v7, v7, v8')
    a('v_mov_b32 v8, v7\nv_permlane16_swap_b32 v7, v8\nv_add_f32 v7, v7, v8')
    a('v_mov_b32 v8, v7\nv_permlane32_swap_b32 v7, v8\nv_add_f32 v7, v7, v8')
    a('v_rcp_f32 v7, v7')
    for t in range(12): a('v_mul_f32 v%d, v%d, v7' % (S + t, S + t))
    for t in range(6): a('v_cvt_pk_bf16_f32 v%d, v%d, v%d' % (P + t, S + 2 * t, S + 2 * t + 1))
    a('buffer_store_dwordx4 %s, v25, s[%d:%d], s52 offen sc1' % (v(P, 4), SWS, SWS + 3))
    a('buffer_store_dwordx2 %s, v26, s[%d:%d], s52 offen offset:1024 sc1' % (v(P + 4, 2), SWS, SWS + 3))
    a('v_add_u32 v7, s53, v25\nv_add_u32 v8, s53, v26')
    if stamps: a('s_memrealtime s[68:69]')
    a('s_barrier')
    a('ds_write_b128 v7, %s\nds_write_b64 v8, %s offset:1024' % (v(P, 4), v(P + 4, 2)))
    a('s_cmp_ge_u32 s20, 4\ns_cbranch_scc1 L_help2')
    if stamps:
        a('s_waitcnt lgkmcnt(0)\ns_mov_b64 s[%d:%d], s[68:69]' % (70 + 2 * stC.k, 71 + 2 * stC.k)); stC.k += 1
    stC()
    for t in range(4): a('v_subrev_u32 v%d, %d, v%d' % (WA + t, L_WQ - L_W, WA + t))
    def reads_W(p, ks):
        st = F[ks]
        return ['ds_read_b128 %s, v%d offset:%d' % (v(st + 16 + 4 * kt, 4), VA + 2 * (p & 1) + ks, 4096 * kt) for kt in range(3)] + wreads(st, 16384 * (p & 3) + 8192 * ks)
    def mfma_W(ks, first):
        st = F[ks]
        return ['v_mfma_f32_16x16x32_bf16 %s, %s, %s, %s' % (v(ACC + 4 * (3 * t + kt), 4), v(st + 16 + 4 * kt, 4), v(st + 4 * t, 4), '0' if first else v(ACC + 4 * (3 * t + kt), 4)) for t in range(4) for kt in range(3)]
    def vwpos(base, i, kt): return base + ([0, 2, 4][kt] if i % 2 == 0 else [8, 10, 6][kt])
    def cvt2(d, s_): return 'v_cvt_pk_bf16_f32 v%d, v%d, v%d\nv_cvt_pk_bf16_f32 v%d, v%d, v%d' % (d, s_, s_ + 1, d + 1, s_ + 2, s_ + 3)
    def cvt_W(i):
        return [cvt2(vwpos(VWS + 48 * (i >> 1) + 12 * t, i, kt), ACC + 4 * (3 * t + kt)) for t in range(4) for kt in range(3)]
    def next_head():
        return ['s_lshr_b32 s55, s54, 1\ns_add_u32 s54, s54, 1\ns_and_b32 s54, s54, 3\ns_lshr_b32 s3, s54, 1\ns_sub_i32 s3, s3, s55\ns_mul_i32 s3, s3, 24576'] + \
               ['v_add_u32 v%d, s3, v%d' % (VA + k, VA + k) for k in range(4)]
    OA = 29
    odd_setup = ['v_and_b32 v7, 1, v2\nv_lshrrev_b32 v8, 1, v3\nv_lshl_add_u32 v7, v7, 1, v8\nv_xor_b32 v7, s20, v7',
                 'v_lshl_add_u32 v8, v2, 3, v3\nv_lshlrev_b32 v8, 7, v8\nv_lshl_add_u32 v8, v4, 3, v8\nv_lshl_add_u32 v8, v7, 5, v8\nv_add_u32 v%d, %d, v8' % (OA, L_W),
                 's_mul_i32 s3, s22, 12288\ns_add_u32 s3, s3, %d' % L_V] + \
                ['v_xor_b32 v8, %d, v27\nv_add_u32 v%d, s3, v8' % (64 * kq, KA + kq) for kq in range(4)]
    run(reads_W(0, 0))
    run(odd_setup)
    OW = ACC + 12
    OV_ = F[0]
    def reads_O(e):
        return ['ds_read_b64_tr_b16 %s, v%d offset:%d' % (v(OW + 16 * e + 4 * kq + 2 * hh, 2), OA, 16384 * e + 4096 * kq + 512 * hh) for kq in range(4) for hh in range(2)]
    def mfma_O(e):
        return ['v_mfma_f32_16x16x32_bf16 %s, %s, %s, %s' % (v(ACC + 4 * kt, 4), v(OV_ + 12 * kq + 4 * kt, 4), v(OW + 16 * e + 4 * kq, 4), v(ACC + 4 * kt, 4) if kq else '0') for kq in range(4) for kt in range(3)]
    for p in range(8):
        a(W0)
        m = mfma_W(0, p % 2 == 0)
        if p % 2 == 0 and p > 0:
            cv = cvt_W((p >> 1) - 1); rd = reads_W(p, 1); seq = []
            for i in range(12):
                seq += [cv[i], m[i]]
                if i < len(rd): seq.append(rd[i])
            run(seq)
        else:
            run(interleave(m, reads_W(p, 1), 0, 2))
        a(W0)
        if p + 1 == o['ackbar']: a('s_waitcnt vmcnt(0)')
        a('s_barrier')
        if p < 7:
            fill = (next_head() if p % 2 == 1 else []) + reads_W(p + 1, 0)
            run(interleave(mfma_W(1, False), fill, 0, 2))
        else:
            vr = ['ds_read_b128 %s, v%d offset:%d' % (v(OV_ + 12 * kq + 4 * kt, 4), KA + kq, 4096 * kt) for kq in range(4) for kt in range(3)]
            run(interleave(mfma_W(1, False), vr[:7], 0, 2))
            run(vr[7:])
            run(cvt_W(3))
            run(reads_O(0))
    a(W0)
    a('s_barrier')
    run(interleave(mfma_O(0), reads_O(1), 0, 2))
    run([cvt2(vwpos(VWO, 0, kt), ACC + 4 * kt) for kt in range(3)])
    a(W0)
    run(mfma_O(1))
    a('s_and_b32 s54, s23, 3\ns_mul_i32 s55, s16, 4608')
    for i in range(4):
        a('s_add_u32 s3, s54, %d\ns_and_b32 s3, s3, 3\ns_mul_i32 s3, s3, 9216\ns_add_u32 s3, s3, s55' % i)
        a('v_add_u32 v%d, s3, v25\nv_add_u32 v%d, s3, v26' % (10 + i, 14 + i))
    a('s_and_b32 s55, s22, 1\ns_mul_i32 s55, s55, 4608\ns_and_b32 s54, s22, 2\ns_and_b32 s56, s23, 1\ns_add_u32 s54, s54, s56')
    for e in range(2):
        a('s_xor_b32 s3, s54, %d\ns_mul_i32 s3, s3, 9216\ns_add_u32 s3, s3, s55' % e)
        a('v_add_u32 v%d, s3, v25\nv_add_u32 v%d, s3, v26' % (18 + e, 20 + e))
    run([cvt2(vwpos(VWO, 1, kt), ACC + 4 * kt) for kt in range(3)])
    a('s_lshr_b32 s3, s2, 3\ns_lshl_b32 s3, s3, 3\ns_lshl_b32 s54, s20, 1\ns_add_u32 s3, s3, s54\ns_mul_i32 s56, s3, 24576\ns_lshl_b32 s3, s21, 10\ns_add_u32 s56, s56, s3\ns_add_u32 s56, s56, %d' % G_PM)
    a('s_add_u32 s57, s56, 24576')
    a('s_lshl_b32 s3, s23, 1\ns_and_b32 s54, s22, 1\ns_add_u32 s3, s3, s54\ns_mul_i32 s3, s3, 12\ns_mul_i32 s54, s20, 3\ns_add_u32 s3, s3, s54\ns_lshl_b32 s58, s3, 13')
    a('s_lshl_b32 s3, s21, 1\ns_lshr_b32 s54, s22, 1\ns_add_u32 s3, s3, s54\ns_lshl_b32 s3, s3, 9\ns_add_u32 s58, s58, s3\ns_add_u32 s58, s58, %d' % G_PO)
    stC()
    a('s_barrier')
    stC()
    def preads(dst, fa, ha, qt):
        off = L_P + 1536 * qt
        return ['ds_read_b128 %s, v%d offset:%d' % (v(dst, 4), fa, off),
                'ds_read_b64 %s, v%d offset:%d' % (v(dst + 4, 2), ha, off + 1024),
                'ds_read_b64 %s, v%d offset:%d' % (v(dst + 6, 2), ha + 1, off + 1024),
                'ds_read_b128 %s, v%d offset:%d' % (v(dst + 8, 4), fa + 1, off)]
    def reads_F(qt, dst): return preads(dst, 10, 14, qt) + preads(dst + 12, 12, 16, qt)
    def mfma_F(src, acc):
        return ['v_mfma_f32_16x16x32_bf16 %s, %s, %s, %s' % (v(acc + 4 * t, 4), v(VWS + 48 * (k // 3) + 12 * t + 4 * (k % 3), 4), v(src + 4 * k, 4), v(acc + 4 * t, 4) if k else '0') for k in range(6) for t in range(4)]
    PK = 244
    def store_F(qt, acc):
        seq = []
        for h in range(2):
            seq += [cvt2(PK + 4 * h, acc + 8 * h), cvt2(PK + 4 * h + 2, acc + 8 * h + 4)]
            seq.append('buffer_store_dwordx4 %s, v25, s[%d:%d], s%d offen sc1' % (v(PK + 4 * h, 4), SWS, SWS + 3, 56 + h))
        seq.append('s_add_u32 s56, s56, 8192\ns_add_u32 s57, s57, 8192')
        return seq
    PB = [F[0], F[0] + 24]; PO_ = ACC + 12
    for qt in range(3): run(preads(PO_ + 12 * qt, 18, 20, qt))
    run(reads_F(0, PB[0]))
    a('s_waitcnt lgkmcnt(%d)' % (0 if stamps else 8))
    for k in range(3):
        for qt in range(3):
            a('v_mfma_f32_16x16x32_bf16 %s, %s, %s, %s' % (v(ACC + 4 * qt, 4), v(VWO + 4 * k, 4), v(PO_ + 12 * qt + 4 * k, 4), v(ACC + 4 * qt, 4) if k else '0'))
    oddst = []
    for qt in range(3):
        oddst += [cvt2(PK + 2 * qt, ACC + 4 * qt), 'buffer_store_dwordx2 %s, v26, s[%d:%d], s58 offen sc1\ns_add_u32 s58, s58, 8192' % (v(PK + 2 * qt, 2), SWS, SWS + 3)]
    AB = [ACC + 16, ACC + 32]
    a(W0)
    run(interleave(mfma_F(PB[0], AB[0]), reads_F(1, PB[1]) + oddst, 0, 1))
    a(W0)
    run(interleave(mfma_F(PB[1], AB[1]), reads_F(2, PB[0]) + store_F(0, AB[0]), 0, 1))
    a(W0)
    run(interleave(mfma_F(PB[0], AB[0]), store_F(1, AB[1]), 8, 1))
    run(store_F(2, AB[0]))
    stC()
    a('s_waitcnt vmcnt(0)')
    a('s_barrier')
    stC.flush(0, 'L_end')
    a('s_endpgm')
    a('L_help:')
    a('s_sub_u32 s18, s20, 2')
    a('s_waitcnt lgkmcnt(0)')
    srd(SWS, 14, 'ws')
    a('s_cmp_eq_u32 s20, 6\ns_cbranch_scc1 L_h0')
    if o['codepf']:
        a('s_getpc_b64 s[66:67]\nL_pc:\ns_sub_u32 s66, s66, L_pc-%s\ns_subb_u32 s67, s67, 0' % KN)
        a('s_lshr_b32 s3, s2, 3\ns_lshl_b32 s3, s3, 7\nv_lshlrev_b32 v7, 12, v0\nv_add_u32 v7, s3, v7')
        a('v_cmp_gt_u32 vcc, L_codeend-%s, v7\ns_and_saveexec_b64 s[64:65], vcc' % KN)
        a('global_load_dword v14, v7, s[66:67]')
        a('s_mov_b64 exec, s[64:65]')
    a('s_cmp_ge_u32 s2, 8\ns_cbranch_scc1 L_h0')
    a('v_mov_b32 v8, 0\nv_mov_b32 v9, 0\nv_mov_b32 v10, 0\nv_mov_b32 v11, 0\nv_lshlrev_b32 v7, 4, v0\ns_lshl_b32 s3, s2, 12')
    if G_FL: a('s_add_u32 s3, s3, %d' % G_FL)
    for j in range(4): a('buffer_store_dwordx4 v[8:11], v7, s[%d:%d], s3 offen offset:%d sc1' % (SWS, SWS + 3, 1024 * j))
    a('s_lshl_b32 s3, s2, 2\nv_mov_b32 v12, s3\nv_mov_b32 v13, 1\ns_waitcnt vmcnt(0)')
    a('s_mov_b64 exec, 1\nglobal_store_dword v12, v13, s[12:13] sc1\ns_mov_b64 exec, -1')
    a('L_h0:')
    unit_setup()
    for c in range(9):
        a('s_barrier')
        if c == 5: a('s_load_dwordx8 s[84:91], s[12:13], 0')
        if c == 7:
            a('s_mov_b32 s54, %d\nL_hs:\ns_waitcnt lgkmcnt(0)' % SPIN)
            a('s_and_b32 s84, s84, s85\ns_and_b32 s86, s86, s87\ns_and_b32 s88, s88, s89\ns_and_b32 s90, s90, s91\ns_and_b32 s84, s84, s86\ns_and_b32 s88, s88, s90\ns_and_b32 s84, s84, s88')
            a('s_cbranch_scc1 L_hsok\ns_sub_u32 s54, s54, 1\ns_cbranch_scc1 L_hsok\ns_load_dwordx8 s[84:91], s[12:13], 0 glc\ns_branch L_hs\nL_hsok:')
            run(k_reads())
    a('s_branch L_unit')
    a('L_help2:')
    a('s_lshl_b32 s3, s2, 7\ns_add_u32 s66, s14, s3\ns_addc_u32 s67, s15, 0')
    if G_FL: a('s_add_u32 s66, s66, %d\ns_addc_u32 s67, s67, 0' % G_FL)
    a('s_mov_b32 s55, 0')
    a('v_mov_b32 v13, 1')
    def poll_issue(): a('s_load_dwordx4 s[84:87], s[66:67], 0 glc')
    def poll_check(lab_fail):
        a('s_waitcnt lgkmcnt(0)\ns_and_b32 s84, s84, s85\ns_and_b32 s86, s86, s87\ns_and_b32 s84, s84, s86\ns_cbranch_scc0 %s' % lab_fail)
    nbH = 1
    while nbH <= o['poll0']:
        if nbH == o['ackbar']: a('s_waitcnt vmcnt(0) lgkmcnt(0)')
        a('s_barrier')
        if nbH == o['ackbar']:
            a('s_cmp_lg_u32 s20, 6\ns_cbranch_scc1 L_nf')
            a('s_and_b32 s3, s2, 0xe7\ns_lshl_b32 s3, s3, 7\ns_lshl_b32 s54, s22, 2\ns_add_u32 s3, s3, s54\nv_lshlrev_b32 v12, 10, v0')
            if G_FL: a('s_add_u32 s3, s3, %d' % G_FL)
            a('s_mov_b64 exec, 15\nbuffer_store_dword v13, v12, s[%d:%d], s3 offen sc1\ns_mov_b64 exec, -1' % (SWS, SWS + 3))
            stH()
            a('L_nf:')
        nbH += 1
    a('s_mov_b32 s56, %d\ns_mov_b32 s54, %d' % (9 - o['poll0'], SPIN))
    a('L_pp:')
    poll_issue()
    for _ in range(2):
        l_ = a.label('L_sk')
        a('s_cmp_eq_u32 s56, 0\ns_cbranch_scc1 %s\ns_barrier\ns_sub_u32 s56, s56, 1\n%s:' % (l_, l_))
    a('s_sub_u32 s54, s54, 1\ns_cbranch_scc1 L_pok')
    poll_check('L_pp')
    a('L_pok:')
    stH()
    def fetch(d, lo, hi):
        a('s_add_u32 s3, s22, %s\ns_and_b32 s3, s3, 3\ns_mul_i32 s57, s3, 9216\ns_lshl_b32 s3, s3, 3\ns_and_b32 s58, s2, 0xe7\ns_or_b32 s58, s58, s3\ns_mul_i32 s58, s58, 9216\ns_add_u32 s58, s58, %d' % (d, G_P))
        if lo: a('s_add_u32 s57, s57, %s\ns_add_u32 s58, s58, %s' % (lo, lo))
        for j in range(hi):
            if j % 4 == 0:
                a('s_add_u32 m0, s57, %d' % (L_P + 1024 * j))
                if j: a('s_add_u32 s58, s58, 4096')
            a('buffer_load_dwordx4 v25, s[%d:%d], s58 offen offset:%d sc1 lds' % (SWS, SWS + 3, 1024 * (j % 4)))
    a('s_and_b32 s59, s20, 1\ns_lshl_b32 s60, s59, 1\ns_add_u32 s60, s60, 1\ns_lshl_b32 s59, s59, 12')
    fetch('s60', None, 9)
    fetch('2', 's59', 5)
    a('L_pb:\ns_cmp_eq_u32 s56, 0\ns_cbranch_scc1 L_pbd\ns_barrier\ns_sub_u32 s56, s56, 1\ns_branch L_pb\nL_pbd:')
    a('s_waitcnt vmcnt(0)')
    a('L_tail:')
    a('s_barrier')
    srd(SOUT, 10, 'out')
    a('s_lshl_b32 s3, s2, 7\ns_add_u32 s66, s14, s3\ns_addc_u32 s67, s15, 0')
    if G_FL: a('s_add_u32 s66, s66, %d\ns_addc_u32 s67, s67, 0' % G_FL)
    a('s_lshl_b32 s52, s21, 1\ns_lshr_b32 s3, s22, 1\ns_add_u32 s52, s52, s3')
    a('v_mul_u32_u24 v3, 1152, v1\nv_lshl_add_u32 v3, v2, 3, v3')
    a('s_mov_b32 s54, %d' % SPIN)
    a('s_cmp_eq_u32 s20, 7\ns_cbranch_scc1 L_odd')
    a('s_and_b32 s3, s2, 0xf8\nv_add_u32 v4, s3, v0\nv_lshlrev_b32 v4, 7, v4\ns_lshl_b32 s3, s21, 2\ns_add_u32 s3, s3, 32\nv_add_u32 v4, s3, v4')
    a('v_subrev_u32 v5, 8, v0\nv_lshrrev_b32 v6, 1, v5\nv_and_b32 v5, 1, v5\nv_lshl_add_u32 v5, v5, 4, v6\ns_and_b32 s3, s2, 0xe8\nv_add_u32 v5, s3, v5\nv_lshlrev_b32 v5, 7, v5')
    a('s_lshl_b32 s3, s52, 2\ns_add_u32 s3, s3, 64\nv_add_u32 v5, s3, v5\nv_cmp_gt_u32 vcc, 8, v0\nv_cndmask_b32 v4, v5, v4, vcc\nv_mov_b32 v5, 1')
    a('s_sub_u32 s53, s20, 4')
    a('s_mul_i32 s55, s2, 3\ns_add_u32 s55, s55, s53\ns_lshl_b32 s55, s55, 13\ns_add_u32 s55, s55, %d\ns_add_u32 s56, s55, 4096' % G_PM)
    a('s_lshl_b32 s57, s23, 1\ns_lshr_b32 s3, s21, 2\ns_add_u32 s57, s57, s3\ns_mul_i32 s57, s57, 3\ns_add_u32 s57, s57, s53\ns_mul_i32 s57, s57, %d' % (16 * 1152))
    a('s_lshl_b32 s3, s22, 8\ns_add_u32 s57, s57, s3\ns_and_b32 s3, s21, 3\ns_lshl_b32 s3, s3, 6\ns_add_u32 s57, s57, s3')
    a('v_lshlrev_b32 v6, 4, v0')
    a('s_barrier')
    a('s_cmp_lg_u32 s20, 6\ns_cbranch_scc1 L_mp')
    a('s_mov_b64 exec, 0xfffff\nbuffer_store_dword v5, v4, s[%d:%d], %s offen sc1\ns_mov_b64 exec, -1' % (SWS, SWS + 3, '0'))
    a('L_mp:')
    a('s_load_dwordx8 s[84:91], s[66:67], 32 glc\ns_sub_u32 s54, s54, 1\ns_cbranch_scc1 L_mok\ns_waitcnt lgkmcnt(0)')
    a('s_and_b32 s84, s84, s85\ns_and_b32 s86, s86, s87\ns_and_b32 s88, s88, s89\ns_and_b32 s90, s90, s91\ns_and_b32 s84, s84, s86\ns_and_b32 s88, s88, s90\ns_and_b32 s84, s84, s88')
    a('s_cbranch_scc0 L_mp\nL_mok:')
    if stamps: a('s_memrealtime s[78:79]')
    for j in range(8):
        a('buffer_load_dwordx4 %s, v6, s[%d:%d], s%d offen offset:%d sc1' % (v(32 + 4 * j, 4), SWS, SWS + 3, 55 + j // 4, 1024 * (j % 4)))
    def accum(src, n, first):
        for t in range(n):
            if first: a('v_lshlrev_b32 v%d, 16, v%d\nv_and_b32 v%d, 0xffff0000, v%d' % (8 + 2 * t, src + t, 9 + 2 * t, src + t))
            else: a('v_lshlrev_b32 v16, 16, v%d\nv_and_b32 v17, 0xffff0000, v%d\nv_add_f32 v%d, v%d, v16\nv_add_f32 v%d, v%d, v17' % (src + t, src + t, 8 + 2 * t, 8 + 2 * t, 9 + 2 * t, 9 + 2 * t))
    for j in range(8):
        a('s_waitcnt vmcnt(%d)' % (7 - j)); accum(32 + 4 * j, 4, j == 0)
    for t in range(4): a('v_cvt_pk_bf16_f32 v%d, v%d, v%d' % (8 + t, 8 + 2 * t, 9 + 2 * t))
    a('buffer_store_dwordx2 v[8:9], v3, s[%d:%d], s57 offen\nbuffer_store_dwordx2 v[10:11], v3, s[%d:%d], s57 offen offset:32' % (SOUT, SOUT + 3, SOUT, SOUT + 3))
    if stamps:
        a('s_waitcnt vmcnt(0)')
        a('s_cmp_eq_u32 s20, 6\ns_cbranch_scc1 L_sth')
        a('s_memrealtime s[76:77]'); stL.k = 4
        stL.flush(4, 'L_end'); a('s_endpgm')
        a('L_sth:\ns_memrealtime s[76:77]\ns_waitcnt lgkmcnt(0)\ns_mov_b64 s[74:75], s[78:79]'); stH.k = 4
        stH.flush(6, 'L_end')
    a('s_endpgm')
    a('L_odd:')
    a('s_lshl_b32 s3, s23, 1\ns_and_b32 s53, s22, 1\ns_add_u32 s53, s53, s3')
    a('s_mul_i32 s55, s53, 12\ns_add_u32 s55, s55, s52\ns_lshl_b32 s55, s55, 13\ns_add_u32 s55, s55, %d\ns_add_u32 s56, s55, 4096' % G_PO)
    a('s_mul_i32 s58, s52, 43\ns_lshr_b32 s58, s58, 7\ns_mul_i32 s3, s58, 3\ns_sub_u32 s3, s52, s3')
    a('s_mul_i32 s57, s53, 3\ns_add_u32 s57, s57, s3\ns_mul_i32 s57, s57, %d\ns_lshl_b32 s58, s58, 5\ns_add_u32 s57, s57, s58\ns_add_u32 s57, s57, 1024' % (16 * 1152))
    a('v_lshlrev_b32 v6, 3, v0')
    a('s_barrier')
    a('s_cmp_ge_u32 s52, 12\ns_cbranch_scc1 L_end')
    a('L_op:')
    a('s_load_dwordx16 s[84:99], s[66:67], 64 glc\ns_sub_u32 s54, s54, 1\ns_cbranch_scc1 L_ook\ns_waitcnt lgkmcnt(0)')
    for i in range(0, 16, 4): a('s_and_b64 s[%d:%d], s[%d:%d], s[%d:%d]' % (84 + i, 85 + i, 84 + i, 85 + i, 86 + i, 87 + i))
    a('s_and_b64 s[84:85], s[84:85], s[88:89]\ns_and_b64 s[92:93], s[92:93], s[96:97]\ns_and_b64 s[84:85], s[84:85], s[92:93]\ns_and_b32 s84, s84, s85')
    a('s_cbranch_scc0 L_op\nL_ook:')
    for j in range(16):
        a('buffer_load_dwordx2 %s, v6, s[%d:%d], s%d offen offset:%d sc1' % (v(32 + 2 * j, 2), SWS, SWS + 3, 55 + j // 8, 512 * (j % 8)))
    for j in range(16):
        a('s_waitcnt vmcnt(%d)' % (15 - j)); accum(32 + 2 * j, 2, j == 0)
    for t in range(2): a('v_cvt_pk_bf16_f32 v%d, v%d, v%d' % (8 + t, 8 + 2 * t, 9 + 2 * t))
    a('buffer_store_dwordx2 v[8:9], v3, s[%d:%d], s57 offen' % (SOUT, SOUT + 3))
    a('L_end:\ns_endpgm\nL_codeend:')
    a(kernel_desc(KN, 256, 256))
    a.lines = hazard.pad(a.lines, False)
    return a.text()
if __name__ == '__main__':
    open('p8_v1.s', 'w').write(gen())
    open('p8_v1_st.s', 'w').write(gen(stamps=True))
```

```python
import sys, math, struct
from asmlib import *
import hazard
from gen_f16 import Cnt, interleave, f2i, v

L_X = [0, 12288, 49152]; L_K = 24576; L_Q = 0; L_P = 24576; L_W = 61440; L_F = 110592; L_V = 114688
G_FL = 0x0
G_P = 0x40000
G_PM = 0x400000
G_PO = 0xC00000
SX, SWQ, SK, SV, SWO, SWS, SOUT = 24, 28, 32, 36, 40, 44, 48
SPIN = 1 << 14

def gen(stamps=False, opt=None):
    o = dict(order='qqqKqqqqqq', win=24, codepf=True, hprio=0, cprio=0, per=2, early_flag=False, rot='g3', pk=False, lprio=0)
    if opt: o.update(opt)
    a = Asm()
    a('; @launch grid=(256,1,1) block=(512,1,1) lds=163840')
    a(HEAD); a(kernel_begin(KN))
    def run(seq):
        for x in seq:
            if callable(x): x()
            else: a(x)
    class St:
        def __init__(s, base, n, r0): s.base = base; s.n = n; s.k = 0; s.r0 = r0; s.done = 0
        def __call__(s, name='x', lvl=1):
            if stamps >= lvl:
                assert s.k < s.n, name
                a('; stamp %d %s' % (s.base + s.k, name))
                a('s_memrealtime s[%d:%d]' % (s.r0 + 2 * s.k, s.r0 + 1 + 2 * s.k)); s.k += 1
        def flush(s, wave):
            if stamps:
                l_ = a.label('L_nst')
                a('s_cmp_lg_u32 s20, %d\ns_cbranch_scc1 %s' % (wave, l_))
                a('s_waitcnt lgkmcnt(0)\nv_mov_b32 v31, 0\ns_lshl_b32 s3, s2, 9\ns_add_u32 s3, s3, %d' % (STAMP_OFF + 8 * s.base))
                for i in range(s.k):
                    a('v_mov_b32 v254, s%d\nv_mov_b32 v255, s%d' % (s.r0 + 2 * i, s.r0 + 1 + 2 * i))
                    a('buffer_store_dwordx2 v[254:255], v31, s[%d:%d], s3 offen offset:%d' % (SWS, SWS + 3, 8 * i))
                a(l_ + ':')
    stC = St(0, 21, 60); stL = St(24, 17, 68); stH = St(44, 8, 68)
    W0 = 's_waitcnt lgkmcnt(0)'
    stC('start')
    a('s_cmp_ge_u32 s2, 256\ns_cbranch_scc1 L_end')
    a('s_load_dwordx2 s[%d:%d], s[0:1], %d' % (SX, SX + 1, SLOT['x']))
    a('s_load_dwordx2 s[%d:%d], s[0:1], %d' % (SWQ, SWQ + 1, SLOT['wq']))
    a('s_load_dwordx4 s[4:7], s[0:1], %d' % SLOT['k'])
    a('s_load_dwordx8 s[8:15], s[0:1], %d' % SLOT['wo'])
    a('v_lshrrev_b32 v1, 6, v0\nv_and_b32 v0, 63, v0\nv_readfirstlane_b32 s20, v1')
    a('s_and_b32 s21, s2, 7\ns_bfe_u32 s22, s2, 0x20003\ns_lshr_b32 s23, s2, 5')
    a('v_and_b32 v1, 15, v0\nv_lshrrev_b32 v2, 4, v0')
    def srd(r, src, n):
        if src is not None: a('s_mov_b32 s%d, s%d\ns_mov_b32 s%d, s%d' % (r, src, r + 1, src + 1))
        a('s_mov_b32 s%d, %d\ns_mov_b32 s%d, 0x20000' % (r + 2, SIZES[n], r + 3))
    H0 = 's_lshl_b32 s16, s22, 1\ns_xor_b32 s16, s16, s23\ns_and_b32 s16, s16, 3'
    a('s_cmp_lt_u32 s20, 4\ns_cbranch_scc1 L_comp')
    a('s_cmp_gt_u32 s20, 4\ns_cbranch_scc1 L_help')
    vm = Cnt(a, 'vmcnt', 63)
    XV, WV, OV, KV, DV, VV = 8, 12, 16, 20, 24, 28
    if o['lprio']: a('s_setprio %d' % o['lprio'])
    srd(SX, None, 'x'); srd(SWQ, None, 'wq')
    a('v_lshrrev_b32 v3, 3, v0\nv_and_b32 v4, 7, v0')
    def quad(base, step):
        a('v_xor_b32 v7, 64, v%d\nv_add_u32 v%d, %d, v7' % (base, base + 1, step))
        a('v_add_u32 v%d, %d, v%d\nv_add_u32 v%d, %d, v%d' % (base + 2, 2 * step, base, base + 3, 2 * step, base + 1))
    a('v_mul_u32_u24 v5, 1152, v3\nv_xor_b32 v32, v4, v2\nv_lshl_add_u32 v%d, v32, 4, v5' % XV)
    quad(XV, 8 * 1152 - 1024)
    a('v_lshlrev_b32 v6, 1, v2\nv_xor_b32 v6, v6, v1\nv_lshlrev_b32 v6, 4, v6')
    a('v_lshl_add_u32 v%d, v2, 13, v6' % WV)
    a('v_add_u32 v%d, %d, v%d' % (WV + 1, 4 * 8192 - 1024, WV))
    a('v_xor_b32 v7, 128, v%d\nv_add_u32 v%d, %d, v7\nv_add_u32 v%d, %d, v7' % (WV, WV + 2, 2 * (4 * 8192 - 1024), WV + 3, 3 * (4 * 8192 - 1024)))
    if o['rot'] == 'g3':
        a('s_add_u32 s17, s22, s23\ns_mul_i32 s3, s17, 43\ns_lshr_b32 s3, s3, 7\ns_mul_i32 s3, s3, 3\ns_sub_u32 s17, s17, s3\ns_mul_i32 s17, s17, 3')
    elif o['rot'] == 'g4':
        a('s_add_u32 s17, s22, s23\ns_and_b32 s17, s17, 3\ns_mul_i32 s17, s17, 9\ns_lshr_b32 s17, s17, 2')
    elif o['rot'] == 'g2':
        a('s_add_u32 s17, s22, s23\ns_and_b32 s17, s17, 1\ns_mul_i32 s17, s17, 5')
    else: a('s_mov_b32 s17, 0')
    a('s_mul_i32 s52, s23, 110592')
    a('s_lshl_b32 s53, s21, 10\ns_lshl_b32 s3, s22, 8\ns_add_u32 s53, s53, s3')
    a('s_waitcnt lgkmcnt(0)')
    stL('L kernarg')
    def group(vreg, n, srd_, lds, tag, adv=None):
        seq = ['s_mov_b32 m0, %d' % lds + ('\ns_add_u32 s57, s57, %d' % adv if adv else '')]
        for j in range(n):
            def f(j=j):
                if len(vm.seq) >= 60:
                    a('s_waitcnt vmcnt(44)'); vm.seq = vm.seq[-44:]
                a('buffer_load_dwordx4 v%d, s[%d:%d], s57 offen offset:%d lds' % (vreg + j, srd_, srd_ + 3, 1024 * j)); vm.issue(tag)
            seq.append(f)
        return seq
    def item_q(c):
        st = c % 3; tag = 'n%d' % c
        seq = ['s_lshl_b32 s57, s17, 7\ns_add_u32 s57, s57, s52']
        for t in range(3): seq += group(XV, 4, SX, L_X[st] + 4096 * t, tag, 32 * 1152 if t else None)
        seq += ['s_lshl_b32 s57, s17, 19\ns_add_u32 s57, s57, s53']
        for t in range(4): seq += group(WV, 4, SWQ, L_W + 16384 * st + 4096 * t, tag, 16 * 8192 if t else None)
        seq += ['s_add_u32 s17, s17, 1\ns_cmp_eq_u32 s17, 9\ns_cselect_b32 s17, 0, s17']
        return seq
    def item_k():
        seq = ['s_lshr_b32 s3, s22, 1\ns_add_u32 s57, s54, s3\ns_mul_i32 s57, s57, 12288']
        for t in range(6): seq += group(KV, 4, SK, L_K + 4096 * t, 'k', None if t == 0 else (4096 if t != 3 else 16 * 12288 - 8192))
        return seq
    def item_p(p):
        n = 9 + p; tag = 'n%d' % n; seq = []
        lds = L_W + 16384 * (n % 3)
        if p < 8:
            if p & 2 == 0:
                vp = (p >> 2) * 2 + (p & 1)
                seq += ['s_lshr_b32 s3, s16, 1\ns_xor_b32 s3, s3, %d\ns_add_u32 s57, s54, s3\ns_mul_i32 s57, s57, 12288' % (p >> 2) + ('\ns_add_u32 s57, s57, 128' if p & 1 else '')]
                for b in range(2):
                    seq += group(VV, 4, SV, L_V + 12288 * vp + 6144 * b, tag, 16 * 12288 - 8192 if b else None)
                    seq += group(VV, 2, SV, L_V + 12288 * vp + 6144 * b + 4096, tag, 8192)
            seq += ['s_xor_b32 s3, s16, %d\ns_mul_i32 s57, s3, %d\ns_add_u32 s57, s57, s60' % (p >> 1, 128 * 1152) + ('\ns_add_u32 s57, s57, %d' % (64 * 1152) if p & 1 else '')]
            for t in range(4): seq += group(OV, 4, SWO, lds + 4096 * t, tag, 16 * 1152 if t else None)
        else:
            seq += ['s_and_b32 s3, s23, 1\ns_xor_b32 s3, s3, %d\ns_mul_i32 s57, s3, %d\ns_add_u32 s57, s57, s62' % (p & 1, 128 * 1152)]
            for t in range(4): seq += group(DV, 4, SWO, lds + 4096 * t, tag, 32 * 1152 if t else None)
        return seq
    def late_setup():
        srd(SK, 4, 'k'); srd(SV, 6, 'v'); srd(SWO, 8, 'wo'); srd(SWS, 14, 'ws')
        a('v_mul_u32_u24 v7, 1152, v2\nv_add_u32 v%d, v7, v6\nv_add_u32 v%d, %d, v%d' % (OV, OV + 1, 4 * 1152 - 1024, OV))
        a('v_xor_b32 v6, 128, v6\nv_add_u32 v7, v7, v6\nv_add_u32 v%d, %d, v7\nv_add_u32 v%d, %d, v7' % (OV + 2, 2 * (4 * 1152 - 1024), OV + 3, 3 * (4 * 1152 - 1024)))
        a('v_xor_b32 v6, v1, v2\nv_lshlrev_b32 v6, 4, v6\nv_lshl_add_u32 v%d, v2, 8, v6' % KV)
        for j in range(1, 4): a('v_xor_b32 v%d, %d, v%d' % (KV + j, 64 * j, KV))
        a('v_and_b32 v6, 1, v2\nv_lshlrev_b32 v6, 1, v6\nv_xor_b32 v6, v6, v4\nv_lshl_add_u32 v%d, v6, 4, v5' % DV)
        quad(DV, 8 * 1152 - 1024)
        a('v_lshlrev_b32 v6, 8, v3\nv_lshl_add_u32 v%d, v32, 4, v6' % VV)
        quad(VV, 8 * 256 - 1024)
        a(H0)
        a('s_lshl_b32 s54, s23, 5\ns_lshl_b32 s3, s21, 1\ns_add_u32 s54, s54, s3')
        a('s_mul_i32 s60, s21, %d\ns_lshr_b32 s3, s22, 1\ns_mul_i32 s62, s3, %d\ns_add_u32 s62, s62, s60\ns_add_u32 s62, s62, 1024' % (512 * 1152, 256 * 1152))
        a('s_lshl_b32 s3, s22, 8\ns_add_u32 s60, s60, s3')
        a('v_and_b32 v33, 3, v0\nv_lshlrev_b32 v33, 8, v33\nv_add_u32 v33, %d, v33' % L_F)
        a('v_lshlrev_b32 v34, 2, v0\nv_add_u32 v34, %d, v34' % (L_F + 1024))
    nq = 0; nbar = 0; since = {}
    def bar():
        nonlocal nbar
        vm.wait('n%d' % nbar)
        if nbar >= 6: stL('L at B%d' % nbar, 2)
        a('s_barrier'); nbar += 1
    for t in o['order'] + 'ppp':
        if t in 'qp':
            while nbar < nq - 1 and nq >= 3: bar()
            run(item_q(nq) if t == 'q' else item_p(nq - 9)); sz = 28 if nq < 11 else 16; nq += 1
            if nq == 1: late_setup()
        elif t == 'K': run(item_k()); sz = 24
        for c in list(since): since[c] += sz
        if t in 'qp': since[nq - 1] = 0
        while nbar < min(nq, 11) and since[nbar] >= o['win']: bar()
    while nbar < 11: bar()
    def full(p):
        vm.wait('n%d' % (9 + p))
        a('v_mov_b32 v35, %d\nds_write_b32 v34, v35' % (p + 1))
    for p in range(3, 10):
        if p >= 4:
            l_ = a.label('L_fr')
            a('%s:\nds_read_b32 v36, v33\ns_waitcnt lgkmcnt(0)\nv_cmp_gt_u32 vcc, %d, v36\ns_cbranch_vccnz %s' % (l_, p - 2, l_))
        stL('L free p%d' % p, 2)
        seq = item_p(p)
        k = 11 if not (p < 8 and p & 2 == 0) else 14
        run(seq[:k]); full(p - 1); run(seq[k:])
    full(9)
    stL('L done')
    stL.flush(4)
    srd(SOUT, 10, 'out')
    a('s_lshl_b32 s3, s2, 9\ns_add_u32 s3, s3, %d\ns_add_u32 s66, s14, s3\ns_addc_u32 s67, s15, 0' % (G_FL + 384))
    a('s_lshl_b32 s52, s21, 1\ns_lshr_b32 s3, s22, 1\ns_add_u32 s52, s52, s3')
    a('v_mul_u32_u24 v3, 1152, v1\nv_lshl_add_u32 v3, v2, 3, v3')
    a('s_mov_b32 s54, %d' % SPIN)
    a('s_lshl_b32 s3, s23, 1\ns_and_b32 s53, s22, 1\ns_add_u32 s53, s53, s3')
    a('s_mul_i32 s55, s53, 12\ns_add_u32 s55, s55, s52\ns_lshl_b32 s55, s55, 13\ns_add_u32 s55, s55, %d\ns_add_u32 s56, s55, 4096' % G_PO)
    a('s_mul_i32 s58, s52, 43\ns_lshr_b32 s58, s58, 7\ns_mul_i32 s3, s58, 3\ns_sub_u32 s3, s52, s3')
    a('s_mul_i32 s57, s53, 3\ns_add_u32 s57, s57, s3\ns_mul_i32 s57, s57, %d\ns_lshl_b32 s58, s58, 5\ns_add_u32 s57, s57, s58\ns_add_u32 s57, s57, 1024' % (16 * 1152))
    a('v_lshlrev_b32 v6, 3, v0')
    a(W0)
    a('s_barrier')
    a('s_cmp_ge_u32 s52, 12\ns_cbranch_scc1 L_lend')
    a('L_op:')
    a('s_load_dwordx16 s[84:99], s[66:67], 0 glc\ns_sub_u32 s54, s54, 1\ns_cbranch_scc1 L_ook\ns_waitcnt lgkmcnt(0)')
    def and16(b):
        for i in range(0, 16, 4): a('s_and_b64 s[%d:%d], s[%d:%d], s[%d:%d]' % (b + i, b + 1 + i, b + i, b + 1 + i, b + 2 + i, b + 3 + i))
        a('s_and_b64 s[%d:%d], s[%d:%d], s[%d:%d]\ns_and_b64 s[%d:%d], s[%d:%d], s[%d:%d]\ns_and_b64 s[%d:%d], s[%d:%d], s[%d:%d]\ns_and_b32 s%d, s%d, s%d' % (
            b, b + 1, b, b + 1, b + 4, b + 5, b + 8, b + 9, b + 8, b + 9, b + 12, b + 13, b, b + 1, b, b + 1, b + 8, b + 9, b, b, b + 1))
    and16(84)
    a('s_cbranch_scc0 L_op\nL_ook:')
    def accum(src, n, first):
        for t in range(n):
            if first: a('v_lshlrev_b32 v%d, 16, v%d\nv_and_b32 v%d, 0xffff0000, v%d' % (8 + 2 * t, src + t, 9 + 2 * t, src + t))
            else: a('v_lshlrev_b32 v16, 16, v%d\nv_and_b32 v17, 0xffff0000, v%d\nv_pk_add_f32 v[%d:%d], v[%d:%d], v[16:17]' % (src + t, src + t, 8 + 2 * t, 9 + 2 * t, 8 + 2 * t, 9 + 2 * t))
    for j in range(16):
        a('buffer_load_dwordx2 %s, v6, s[%d:%d], s%d offen offset:%d sc1' % (v(32 + 2 * j, 2), SWS, SWS + 3, 55 + j // 8, 512 * (j % 8)))
    for j in range(16):
        a('s_waitcnt vmcnt(%d)' % (15 - j)); accum(32 + 2 * j, 2, j == 0)
    for t in range(2): a('v_cvt_pk_bf16_f32 v%d, v%d, v%d' % (8 + t, 8 + 2 * t, 9 + 2 * t))
    a('buffer_store_dwordx2 v[8:9], v3, s[%d:%d], s57 offen' % (SOUT, SOUT + 3))
    a('L_lend:')
    a('s_endpgm')
    a('L_comp:')
    XA, WA, VA, OVA, OA, QA, FRA, FUA, FV, FC = 10, 12, 16, 18, 20, 21, 22, 23, 24, 27
    ACC = 32; F = [80, 108]; VWS = 136; VWO = 232; PK = 244
    if o['cprio']: a('s_setprio %d' % o['cprio'])
    a('v_bfe_u32 v3, v0, 2, 2\nv_and_b32 v4, 3, v0')
    a('s_lshr_b32 s18, s20, 1\ns_and_b32 s17, s20, 1')
    a(H0)
    a('v_lshrrev_b32 v7, 1, v1\nv_xor_b32 v7, v7, v2\nv_lshlrev_b32 v7, 4, v7\nv_lshl_add_u32 v5, v1, 7, v7\nv_xor_b32 v6, 64, v5')
    a('s_mul_i32 s3, s18, 6144')
    a('v_add_u32 v%d, s3, v5\nv_add_u32 v%d, s3, v6' % (XA, XA + 1))
    a('s_add_u32 s3, s3, %d\nv_add_u32 v%d, s3, v5\nv_add_u32 v%d, s3, v6' % (L_V, VA, VA + 1))
    a('s_xor_b32 s3, s22, s16\ns_lshr_b32 s3, s3, 1\ns_mul_i32 s3, s3, 24576\ns_and_b32 s19, s22, 1\ns_mul_i32 s19, s19, 6144\ns_add_u32 s3, s3, s19\ns_add_u32 s3, s3, %d' % L_V)
    a('v_add_u32 v%d, s3, v5\nv_add_u32 v%d, s3, v6' % (OVA, OVA + 1))
    a('v_and_b32 v7, 1, v2\nv_lshl_add_u32 v7, v7, 2, v3\ns_lshl_b32 s3, s17, 2\nv_xor_b32 v7, s3, v7')
    a('v_lshl_add_u32 v5, v2, 3, v3\nv_lshlrev_b32 v8, 8, v5\nv_lshl_add_u32 v8, v4, 3, v8\nv_add_u32 v8, %d, v8' % L_W)
    for t in range(4): a('v_xor_b32 v9, %d, v7\nv_lshl_add_u32 v%d, v9, 5, v8' % (t, WA + t))
    a('v_and_b32 v7, 1, v2\nv_lshrrev_b32 v8, 1, v3\nv_lshl_add_u32 v7, v7, 1, v8\nv_xor_b32 v7, s20, v7')
    a('v_lshlrev_b32 v8, 7, v5\nv_lshl_add_u32 v8, v4, 3, v8\nv_lshl_add_u32 v8, v7, 5, v8\nv_add_u32 v%d, %d, v8' % (OA, L_W))
    a('s_mul_i32 s3, s18, 12288\ns_lshl_b32 s19, s17, 11\ns_add_u32 s3, s3, s19' + ('\ns_add_u32 s3, s3, %d' % L_Q if L_Q else ''))
    a('v_lshrrev_b32 v7, 1, v2\nv_lshl_add_u32 v7, v7, 4, v1\nv_lshlrev_b32 v7, 4, v7\nv_and_b32 v8, 1, v2\nv_lshl_add_u32 v7, v8, 3, v7\nv_add_u32 v%d, s3, v7' % QA)
    a('v_lshlrev_b32 v25, 4, v0\nv_lshlrev_b32 v26, 3, v0\nv_lshlrev_b32 v7, 2, v0')
    a('s_lshl_b32 s3, s20, 8\ns_add_u32 s3, s3, %d\nv_add_u32 v%d, s3, v7\nv_add_u32 v%d, %d, v7' % (L_F, FRA, FUA, L_F + 1024))
    a('s_and_b32 s59, s2, 0xf8\ns_lshl_b32 s3, s20, 1\ns_add_u32 s59, s59, s3\ns_mul_i32 s56, s59, 24576\ns_lshl_b32 s3, s21, 10\ns_add_u32 s56, s56, s3\ns_add_u32 s56, s56, %d' % G_PM)
    a('s_add_u32 s57, s56, 24576')
    a('s_lshl_b32 s3, s23, 1\ns_and_b32 s54, s22, 1\ns_add_u32 s3, s3, s54\ns_mul_i32 s3, s3, 12\ns_mul_i32 s54, s20, 3\ns_add_u32 s3, s3, s54\ns_lshl_b32 s58, s3, 13')
    a('s_lshl_b32 s3, s21, 1\ns_lshr_b32 s55, s22, 1\ns_add_u32 s55, s55, s3\ns_lshl_b32 s3, s55, 9\ns_add_u32 s58, s58, s3\ns_add_u32 s58, s58, %d' % G_PO)
    a('v_add_u32 v7, s59, v0\nv_lshlrev_b32 v7, 9, v7\ns_lshl_b32 s3, s21, 2\ns_add_u32 s3, s3, %d\nv_add_u32 v7, s3, v7' % (G_FL + 32))
    a('s_sub_u32 s54, s54, 2\nv_add_u32 v8, s54, v0\nv_lshrrev_b32 v9, 1, v8\nv_and_b32 v8, 1, v8\nv_lshl_add_u32 v8, v8, 4, v9\ns_and_b32 s3, s2, 0xe8\nv_add_u32 v8, s3, v8\nv_lshlrev_b32 v8, 9, v8')
    a('s_lshl_b32 s3, s55, 2\ns_add_u32 s3, s3, %d\nv_add_u32 v8, s3, v8\nv_cmp_gt_u32 vcc, 2, v0\nv_cndmask_b32 v28, v8, v7, vcc\nv_mov_b32 v29, 1' % (G_FL + 384))
    a(W0)
    srd(SWS, 14, 'ws')
    def reads(n, ks):
        st = F[ks]
        if n < 9: r = ['ds_read_b128 %s, v%d offset:%d' % (v(st + 16 + 4 * q, 4), XA + ks, L_X[n % 3] + 2048 * q) for q in range(3)]
        else:
            p = n - 9; vp = (p >> 2) * 2 + (p & 1)
            r = ['ds_read_b128 %s, v%d offset:%d' % (v(st + 16 + 4 * q, 4), VA + ks, 12288 * vp + 2048 * q) for q in range(3)]
        w = ['ds_read_b64_tr_b16 %s, v%d offset:%d' % (v(st + 4 * t + 2 * hh, 2), WA + t, 16384 * (n % 3) + 8192 * ks + 1024 * hh) for t in range(4) for hh in range(2)]
        return r + w
    ORD = [(t, q if t % 2 == 0 else 2 - q) for t in range(4) for q in range(3)]
    def mfma(n, ks):
        st = F[ks]; first = ks == 0 and (n == 0 or (n >= 9 and n % 2 == 1))
        out = []
        for t, q in ORD:
            d = v(ACC + 4 * (3 * t + q), 4); A = v(st + 4 * t, 4); B = v(st + 16 + 4 * q, 4)
            if n >= 9: A, B = B, A
            out.append('v_mfma_f32_16x16x32_bf16 %s, %s, %s, %s' % (d, A, B, '0' if first else d))
        return out
    def vwpos(base, i, kt): return base + ([0, 2, 4][kt] if i % 2 == 0 else [8, 10, 6][kt])
    def cvt2(d, s_): return 'v_cvt_pk_bf16_f32 v%d, v%d, v%d\nv_cvt_pk_bf16_f32 v%d, v%d, v%d' % (d, s_, s_ + 1, d + 1, s_ + 2, s_ + 3)
    def cvt_W(i): return [cvt2(vwpos(VWS + 48 * (i >> 1) + 12 * t, i, kt), ACC + 4 * (3 * t + kt)) for t, kt in ORD]
    QT = 184
    def cvt_Q(): return [cvt2(QT + 2 * (3 * t + q), ACC + 4 * (3 * t + q)) + '\nds_write_b64 v%d, %s offset:%d' % (QA, v(QT + 2 * (3 * t + q), 2), q * 4096 + (t >> 1) * 1024 + (t & 1) * 512) for t, q in ORD]
    slow = []
    def chk(p):
        l1 = 'L_sl%d' % p; l2 = 'L_bk%d' % p
        slow.append('%s:\nds_read_b32 v%d, v%d\ns_waitcnt lgkmcnt(0)\nv_cmp_gt_u32 vcc, %d, v%d\ns_cbranch_vccnz %s\ns_branch %s' % (l1, FV, FUA, p + 1, FV, l1, l2))
        return ['v_cmp_gt_u32 vcc, %d, v%d' % (p + 1, FV), 's_cbranch_vccnz %s\n%s:' % (l1, l2)]
    rdfull = 'ds_read_b32 v%d, v%d' % (FV, FUA)
    def free(p): return ['v_mov_b32 v%d, %d\nds_write_b32 v%d, v%d' % (FC, p + 1, FRA, FC)]
    OW = ACC + 12; OV_ = F[0]
    def reads_O(e):
        return ['ds_read_b64_tr_b16 %s, v%d offset:%d' % (v(OW + 16 * e + 4 * kq + 2 * hh, 2), OA, 16384 * ((17 + e) % 3) + 4096 * kq + 512 * hh) for kq in range(4) for hh in range(2)]
    def mfma_O(e):
        return ['v_mfma_f32_16x16x32_bf16 %s, %s, %s, %s' % (v(ACC + 4 * kt, 4), v(OV_ + 12 * kq + 4 * kt, 4), v(OW + 16 * e + 4 * kq, 4), v(ACC + 4 * kt, 4) if kq else '0') for kq in range(4) for kt in range(3)]
    PER = o['per']
    a('s_barrier')
    stC('B0')
    run(reads(0, 0))
    for n in range(17):
        p = n - 9
        a(W0)
        m = mfma(n, 0); rd = reads(n, 1) + ([rdfull] if p >= 1 else [])
        if n >= 9 and n % 2 == 1:
            cv = cvt_Q() if n == 9 else cvt_W((p >> 1) - 1); seq = []
            for i in range(12):
                seq += [cv[i], m[i]]
                if i < len(rd): seq.append(rd[i])
            run(seq)
        else:
            run(interleave(m, rd, 0, PER))
        a(W0)
        if n >= 5: stC('C mid n%d' % n, 2)
        if n < 10:
            a('s_barrier')
            if n in (7, 9): stC('B%d' % (n + 1))
            run(interleave(mfma(n, 1), reads(n + 1, 0), 0, PER))
        elif n < 16:
            m = mfma(n, 1); c = chk(p + 1)
            run([m[0], c[0]] + (free(p) if p <= 6 else []) + [m[1], c[1]])
            run(reads(n + 1, 0)[:1])
            run(interleave(m[2:], reads(n + 1, 0)[1:], 0, PER))
        else:
            vr = ['ds_read_b128 %s, v%d offset:%d' % (v(OV_ + 12 * kq + 4 * kt, 4), OVA + (kq & 1), 12288 * (kq >> 1) + 2048 * kt) for kq in range(4) for kt in range(3)]
            run(interleave(mfma(n, 1), chk(8) + vr[:7], 0, PER))
            run(vr[7:] + [rdfull])
            run(cvt_W(3))
            run(reads_O(0))
    a(W0)
    run(interleave(mfma_O(0), chk(9) + reads_O(1), 0, 2))
    padr = ['s_mul_i32 s55, s18, 4608']
    for i in range(4):
        padr.append('s_xor_b32 s3, s16, %d\ns_mul_i32 s3, s3, 9216\ns_add_u32 s3, s3, s55' % i)
        padr.append('v_add_u32 v%d, s3, v25\nv_add_u32 v%d, s3, v26' % (10 + i, 14 + i))
    padr.append('s_and_b32 s55, s22, 1\ns_mul_i32 s55, s55, 4608\ns_and_b32 s54, s22, 2\ns_and_b32 s53, s23, 1\ns_add_u32 s54, s54, s53')
    for e in range(2):
        padr.append('s_xor_b32 s3, s54, %d\ns_mul_i32 s3, s3, 9216\ns_add_u32 s3, s3, s55' % e)
        padr.append('v_add_u32 v%d, s3, v25\nv_add_u32 v%d, s3, v26' % (18 + e, 20 + e))
    run(padr[:3])
    run([cvt2(vwpos(VWO, 0, kt), ACC + 4 * kt) for kt in range(3)])
    a(W0)
    run(interleave(mfma_O(1), padr[3:], 0, 1))
    stC('VW end')
    a('s_barrier')
    stC('BF')
    def preads(dst, fa, ha, qt):
        off = L_P + 1536 * qt
        return ['ds_read_b128 %s, v%d offset:%d' % (v(dst, 4), fa, off),
                'ds_read_b64 %s, v%d offset:%d' % (v(dst + 4, 2), ha, off + 1024),
                'ds_read_b64 %s, v%d offset:%d' % (v(dst + 6, 2), ha + 1, off + 1024),
                'ds_read_b128 %s, v%d offset:%d' % (v(dst + 8, 4), fa + 1, off)]
    def reads_F(qt, dst): return preads(dst, 10, 14, qt) + preads(dst + 12, 12, 16, qt)
    def mfma_F(src, acc):
        return ['v_mfma_f32_16x16x32_bf16 %s, %s, %s, %s' % (v(acc + 4 * t, 4), v(VWS + 48 * (k // 3) + 12 * t + 4 * (k % 3), 4), v(src + 4 * k, 4), v(acc + 4 * t, 4) if k else '0') for t in range(4) for k in range(6)]
    def store_F(h, acc):
        return [cvt2(PK + 4 * h, acc + 8 * h), cvt2(PK + 4 * h + 2, acc + 8 * h + 4),
                'buffer_store_dwordx4 %s, v25, s[%d:%d], s%d offen sc1\ns_add_u32 s%d, s%d, 8192' % (v(PK + 4 * h, 4), SWS, SWS + 3, 56 + h, 56 + h, 56 + h)]
    PB = [F[0], F[0] + 24]; PO_ = ACC + 12
    for qt in range(3): run(preads(PO_ + 12 * qt, 18, 20, qt))
    run([cvt2(vwpos(VWO, 1, kt), ACC + 4 * kt) for kt in range(3)])
    run(reads_F(0, PB[0]))
    a('s_waitcnt lgkmcnt(%d)' % (0 if stamps else 8))
    for qt in range(3):
        for k in range(3):
            a('v_mfma_f32_16x16x32_bf16 %s, %s, %s, %s' % (v(ACC + 4 * qt, 4), v(VWO + 4 * k, 4), v(PO_ + 12 * qt + 4 * k, 4), v(ACC + 4 * qt, 4) if k else '0'))
    oddst = []
    for qt in range(3):
        oddst += [cvt2(VWO + 2 * qt, ACC + 4 * qt), 'buffer_store_dwordx2 %s, v26, s[%d:%d], s58 offen sc1\ns_add_u32 s58, s58, 8192' % (v(VWO + 2 * qt, 2), SWS, SWS + 3)]
    AB = [ACC + 16, ACC + 32]
    def flag(mask, off): return 's_mov_b64 exec, %d\nbuffer_store_dword v29, v28, s[%d:%d], 0 offen offset:%d sc1\ns_mov_b64 exec, -1' % (mask, SWS, SWS + 3, off)
    a(W0)
    m = mfma_F(PB[0], AB[0])
    run(interleave(m[:16], reads_F(1, PB[1]) + oddst, 0, 1)); run(interleave(m[16:], store_F(0, AB[0]), 1, 1))
    a(W0)
    m = mfma_F(PB[1], AB[1])
    run(interleave(m[:16], reads_F(2, PB[0])[:4] + store_F(1, AB[0]) + reads_F(2, PB[0])[4:], 0, 1)); run(interleave(m[16:], store_F(0, AB[1]), 1, 1))
    a(W0)
    m = mfma_F(PB[0], AB[0])
    run(interleave(m[:16], store_F(1, AB[1]), 4, 1)); run(interleave(m[16:], store_F(0, AB[0]), 1, 1))
    run(store_F(1, AB[0]))
    stC('final end')
    a('s_waitcnt vmcnt(4)'); a(flag(31, 0))
    a('s_waitcnt vmcnt(3)'); a(flag(3, 128))
    a('s_waitcnt vmcnt(2)'); a(flag(3, 256))
    stC('flags sent')
    stC.flush(0)
    a('s_endpgm')
    for s_ in slow: a(s_)
    a('L_help:')
    KF = [32, 80]; QF = [128, 144]; S = [160, 172]; P = [184, 192]; KA = 10
    a('s_sub_u32 s18, s20, 5')
    a('v_lshlrev_b32 v25, 4, v0\nv_lshlrev_b32 v26, 3, v0')
    a('v_mov_b32 v8, 0\nv_mov_b32 v9, 0\nv_mov_b32 v10, 0\nv_mov_b32 v11, 0\nv_mov_b32 v29, 1')
    a('v_add_u32 v7, %d, v25\nds_write_b128 v7, v[8:11]\nds_write_b128 v7, v[8:11] offset:1024' % L_F)
    a(W0)
    srd(SWS, 14, 'ws'); srd(SOUT, 10, 'out')
    a('s_cmp_eq_u32 s20, 5\ns_cbranch_scc1 L_h0')
    a('s_cmp_eq_u32 s20, 6\ns_cbranch_scc1 L_h1')
    if o['codepf']:
        a('s_getpc_b64 s[66:67]\nL_pc:\ns_sub_u32 s66, s66, L_pc-%s\ns_subb_u32 s67, s67, 0' % KN)
        a('s_lshr_b32 s3, s2, 3\ns_lshl_b32 s3, s3, 7\nv_lshlrev_b32 v7, 12, v0\nv_add_u32 v7, s3, v7')
        a('v_cmp_gt_u32 vcc, L_codeend-%s, v7\ns_and_saveexec_b64 s[64:65], vcc' % KN)
        a('global_load_dword v30, v7, s[66:67]')
        a('s_mov_b64 exec, s[64:65]')
    a('s_branch L_h0')
    a('L_h1:')
    a('s_cmp_ge_u32 s2, 32\ns_cbranch_scc1 L_h0')
    a('s_lshl_b32 s3, s2, 12' + ('\ns_add_u32 s3, s3, %d' % G_FL if G_FL else ''))
    for j in range(4): a('buffer_store_dwordx4 v[8:11], v25, s[%d:%d], s3 offen offset:%d sc1' % (SWS, SWS + 3, 1024 * j))
    a('s_lshl_b32 s3, s2, 2\nv_mov_b32 v12, s3\ns_waitcnt vmcnt(0)')
    a('s_mov_b64 exec, 1\nglobal_store_dword v12, v29, s[12:13] sc1\ns_mov_b64 exec, -1')
    a('L_h0:')
    a('v_xor_b32 v7, v1, v2\nv_lshlrev_b32 v7, 4, v7\nv_lshl_add_u32 v7, v1, 8, v7')
    a('s_cmp_ge_u32 s18, 2\ns_cselect_b32 s52, 12288, 0\ns_cmp_ge_u32 s18, 1\ns_cselect_b32 s53, 12288, 0')
    for kk in range(4): a('v_xor_b32 v8, %d, v7\nv_add_u32 v%d, s52, v8\nv_add_u32 v%d, s53, v8' % (64 * kk, KA + kk, KA + 4 + kk))
    a('s_lshl_b32 s3, s18, 13\nv_add_u32 v24, s3, v25')
    assert L_Q == 0
    a('s_mov_b32 s19, 0x%x' % f2i(128 ** -0.5 * math.log2(math.e)))
    a('s_mul_i32 s17, s18, 3072\ns_mul_i32 s52, s2, 9216\ns_add_u32 s52, s52, s17\ns_add_u32 s52, s52, %d' % G_P)
    a('s_mul_i32 s3, s22, 9216\ns_add_u32 s3, s3, s17\ns_add_u32 s3, s3, %d\nv_add_u32 v22, s3, v25\nv_add_u32 v23, s3, v26' % L_P)
    a('s_lshl_b32 s3, s2, 9\ns_lshl_b32 s53, s18, 7\ns_add_u32 s3, s3, s53\ns_add_u32 s66, s14, s3\ns_addc_u32 s67, s15, 0')
    assert G_FL == 0
    a('s_and_b32 s3, s2, 0xe7\ns_lshl_b32 s3, s3, 9\ns_add_u32 s53, s53, s3\ns_lshl_b32 s3, s22, 2\ns_add_u32 s53, s53, s3\nv_lshlrev_b32 v21, 12, v0')
    a('v_mul_u32_u24 v3, 1152, v1\nv_lshl_add_u32 v3, v2, 3, v3')
    a('s_mul_i32 s55, s2, 3\ns_add_u32 s55, s55, s18\ns_lshl_b32 s55, s55, 13\ns_add_u32 s55, s55, %d\ns_add_u32 s56, s55, 4096' % G_PM)
    a('s_lshl_b32 s61, s23, 1\ns_lshr_b32 s3, s21, 2\ns_add_u32 s61, s61, s3\ns_mul_i32 s61, s61, 3\ns_add_u32 s61, s61, s18\ns_mul_i32 s61, s61, %d' % (16 * 1152))
    a('s_lshl_b32 s3, s22, 8\ns_add_u32 s61, s61, s3\ns_and_b32 s3, s21, 3\ns_lshl_b32 s3, s3, 6\ns_add_u32 s61, s61, s3')
    hs = 's_load_dwordx16 s[84:99], s[12:13], 0%s\ns_load_dwordx16 s[28:43], s[12:13], 64%s'
    for c in range(11):
        if c == 10: a(W0)
        a('s_barrier')
        if c == 5:
            a('s_cmp_lg_u32 s20, 5\ns_cbranch_scc1 L_hs0'); a(hs % ('', '')); a('L_hs0:')
        if c == 7:
            a('s_cmp_lg_u32 s20, 5\ns_cbranch_scc1 L_hsok')
            a('s_mov_b32 s54, %d\nL_hs:\ns_waitcnt lgkmcnt(0)' % SPIN)
            and16(84); and16(28); a('s_and_b32 s84, s84, s28')
            a('s_cbranch_scc1 L_hsok\ns_sub_u32 s54, s54, 1\ns_cbranch_scc1 L_hsok'); a(hs % (' glc', ' glc')); a('s_branch L_hs\nL_hsok:')
        if c == 8:
            for u in range(2):
                for kk in range(4):
                    for kt in range(3): a('ds_read_b128 %s, v%d offset:%d' % (v(KF[u] + 16 * kt + 4 * kk, 4), KA + 4 * u + kk, L_K + 4096 * kt))
    if o['hprio']: a('s_setprio %d' % o['hprio'])
    for u in range(2):
        for kk in range(4): a('ds_read_b128 %s, v24 offset:%d' % (v(QF[u] + 4 * kk, 4), 4096 * u + 1024 * kk))
    def smfma(u):
        return ['v_mfma_f32_16x16x32_bf16 %s, %s, %s, %s' % (v(S[u] + 4 * kt, 4), v(KF[u] + 16 * kt + 4 * kk, 4), v(QF[u] + 4 * kk, 4), v(S[u] + 4 * kt, 4) if kk else '0') for kt in range(3) for kk in range(4)]
    def soft(u):
        s_ = S[u]; x, y = (4, 5) if u == 0 else (6, 7); q = []
        q += ['v_max3_f32 v%d, v%d, v%d, v%d' % (x, s_, s_ + 1, s_ + 2), 'v_max3_f32 v%d, v%d, v%d, v%d' % (y, s_ + 3, s_ + 4, s_ + 5)]
        q += ['v_max3_f32 v%d, v%d, v%d, v%d' % (x, x, s_ + 6, s_ + 7), 'v_max3_f32 v%d, v%d, v%d, v%d' % (y, y, s_ + 8, s_ + 9), 'v_max3_f32 v%d, v%d, v%d, v%d' % (x, x, s_ + 10, s_ + 11), 'v_max_f32 v%d, v%d, v%d' % (x, x, y)]
        def xl(op):
            r = []
            for w_ in ('16', '32'): r += ['v_mov_b32 v%d, v%d' % (y, x), 'v_permlane%s_swap_b32 v%d, v%d' % (w_, x, y), '%s v%d, v%d, v%d' % (op, x, x, y)]
            return r
        q += xl('v_max_f32')
        q += ['v_mul_f32 v%d, s19, v%d' % (x, x)]
        q += ['v_fma_f32 v%d, v%d, s19, -v%d' % (s_ + t, s_ + t, x) for t in range(12)]
        q += ['v_exp_f32 v%d, v%d' % (s_ + t, s_ + t) for t in range(12)]
        if o['pk']:
            q += ['v_pk_add_f32 v[%d:%d], v[%d:%d], v[%d:%d]' % (x, y, s_, s_ + 1, s_ + 2, s_ + 3)]
            q += ['v_pk_add_f32 v[%d:%d], v[%d:%d], v[%d:%d]' % (x, y, x, y, s_ + t, s_ + t + 1) for t in range(4, 12, 2)]
        else:
            q += ['v_add_f32 v%d, v%d, v%d' % (x, s_, s_ + 1), 'v_add_f32 v%d, v%d, v%d' % (y, s_ + 2, s_ + 3)]
            for t in range(4, 12, 2): q += ['v_add_f32 v%d, v%d, v%d' % (x, x, s_ + t), 'v_add_f32 v%d, v%d, v%d' % (y, y, s_ + t + 1)]
        q += ['v_add_f32 v%d, v%d, v%d' % (x, x, y)]
        q += xl('v_add_f32')
        q += ['v_rcp_f32 v%d, v%d' % (x, x)]
        if o['pk']:
            q += ['v_pk_mul_f32 v[%d:%d], v[%d:%d], v[%d:%d] op_sel_hi:[1,0]' % (s_ + t, s_ + t + 1, s_ + t, s_ + t + 1, x, y) for t in range(0, 12, 2)]
        else:
            q += ['v_mul_f32 v%d, v%d, v%d' % (s_ + t, s_ + t, x) for t in range(12)]
        q += ['v_cvt_pk_bf16_f32 v%d, v%d, v%d' % (P[u] + t, s_ + 2 * t, s_ + 2 * t + 1) for t in range(6)]
        q += ['buffer_store_dwordx4 %s, v25, s[%d:%d], s52 offen offset:%d sc1' % (v(P[u], 4), SWS, SWS + 3, 1536 * u)]
        q += ['buffer_store_dwordx2 %s, v26, s[%d:%d], s52 offen offset:%d sc1' % (v(P[u] + 4, 2), SWS, SWS + 3, 1536 * u + 1024)]
        return q
    a('s_waitcnt lgkmcnt(4)')
    run(smfma(0))
    a(W0)
    s0, s1 = soft(0), soft(1)
    run(interleave(smfma(1), s0[:12], 6, 2))
    s0 = s0[12:]
    seq = []
    for i in range(max(len(s0), len(s1))):
        if i < len(s0): seq.append(s0[i])
        if i < len(s1): seq.append(s1[i])
    run(seq)
    stH('P stored')
    for u in range(2):
        a('ds_write_b128 v22, %s offset:%d\nds_write_b64 v23, %s offset:%d' % (v(P[u], 4), 1536 * u, v(P[u] + 4, 2), 1536 * u + 1024))
    a('s_waitcnt vmcnt(0)')
    a('s_mov_b64 exec, 15\nbuffer_store_dword v29, v21, s[%d:%d], s53 offen sc1\ns_mov_b64 exec, -1' % (SWS, SWS + 3))
    stH('P acked')
    a('s_mov_b32 s54, %d' % SPIN)
    a('L_pp:\ns_load_dwordx4 s[84:87], s[66:67], 0 glc\ns_sub_u32 s54, s54, 1\ns_cbranch_scc1 L_pok\ns_waitcnt lgkmcnt(0)')
    a('s_and_b64 s[84:85], s[84:85], s[86:87]\ns_and_b32 s84, s84, s85\ns_cbranch_scc0 L_pp\nL_pok:')
    stH('P flags ok')
    for d in (1, 2, 3):
        a('s_xor_b32 s3, s22, %d\ns_mul_i32 s3, s3, 9216\ns_add_u32 s3, s3, s17\ns_add_u32 m0, s3, %d' % (d, L_P))
        a('s_xor_b32 s58, s2, %d\ns_mul_i32 s58, s58, 9216\ns_add_u32 s58, s58, s17\ns_add_u32 s58, s58, %d' % (d << 3, G_P))
        for j in range(3): a('buffer_load_dwordx4 v25, s[%d:%d], s58 offen offset:%d sc1 lds' % (SWS, SWS + 3, 1024 * j))
    a('s_waitcnt vmcnt(0) lgkmcnt(0)')
    stH('P landed')
    a('s_barrier')
    a('s_mov_b32 s54, %d' % SPIN)
    a('L_mp:')
    a('s_load_dwordx8 s[84:91], s[66:67], 32 glc\ns_sub_u32 s54, s54, 1\ns_cbranch_scc1 L_mok\ns_waitcnt lgkmcnt(0)')
    a('s_and_b64 s[84:85], s[84:85], s[86:87]\ns_and_b64 s[88:89], s[88:89], s[90:91]\ns_and_b64 s[84:85], s[84:85], s[88:89]\ns_and_b32 s84, s84, s85')
    a('s_cbranch_scc0 L_mp\nL_mok:')
    stH('main flags ok')
    for j in range(8):
        a('buffer_load_dwordx4 %s, v25, s[%d:%d], s%d offen offset:%d sc1' % (v(32 + 4 * j, 4), SWS, SWS + 3, 55 + j // 4, 1024 * (j % 4)))
    for j in range(8):
        a('s_waitcnt vmcnt(%d)' % (7 - j)); accum(32 + 4 * j, 4, j == 0)
    for t in range(4): a('v_cvt_pk_bf16_f32 v%d, v%d, v%d' % (8 + t, 8 + 2 * t, 9 + 2 * t))
    a('buffer_store_dwordx2 v[8:9], v3, s[%d:%d], s61 offen\nbuffer_store_dwordx2 v[10:11], v3, s[%d:%d], s61 offen offset:32' % (SOUT, SOUT + 3, SOUT, SOUT + 3))
    if stamps:
        a('s_waitcnt vmcnt(0)'); stH('end'); stH.flush(7)
    a('L_end:\ns_endpgm\nL_codeend:')
    a(kernel_desc(KN, 256, 256))
    a.lines = hazard.pad(a.lines, False)
    return a.text()
if __name__ == '__main__':
    open('p8_v2.s', 'w').write(gen())
    open('p8_v2_st.s', 'w').write(gen(stamps=1))
    open('p8_v2_st2.s', 'w').write(gen(stamps=2))
    open('p8_v2_st2_lp.s', 'w').write(gen(stamps=2, opt=dict(lprio=3)))
    open('p8_v2_st2_hp.s', 'w').write(gen(stamps=2, opt=dict(lprio=3, hprio=2)))
```

```python
import re
TRANS = ('v_exp_', 'v_log_', 'v_rcp_', 'v_rsq_', 'v_sqrt_', 'v_sin_', 'v_cos_')
def regs(tok):
    tok = tok.strip()
    tok = re.sub(r'^-|^abs\(|\)$|^\|', '', tok).rstrip('|')
    m = re.fullmatch(r'([vas])\[(\d+):(\d+)\]', tok)
    if m: return {(m.group(1), i) for i in range(int(m.group(2)), int(m.group(3)) + 1)}
    m = re.fullmatch(r'([vas])(\d+)', tok)
    if m: return {(m.group(1), int(m.group(2)))}
    if tok in ('vcc', 'vcc_lo', 'vcc_hi'): return {('s', 'vcc')}
    if tok == 'm0': return {('s', 'm0')}
    if tok in ('exec', 'exec_lo', 'exec_hi'): return {('s', 'exec')}
    return set()
class I:
    def __init__(self, line):
        self.line = line
        t = line.split(';')[0].strip()
        self.op = t.split()[0] if t else ''
        rest = t[len(self.op):].strip()
        xm = re.findall(r'\b(?:op_sel_hi|op_sel|neg_lo|neg_hi|quad_perm):\[[^\]]*\]', rest)
        for x in xm: rest = rest.replace(x, '')
        rest = rest.strip()
        self.ops = [x.strip() for x in rest.split(',')] if rest else []
        self.mods = ''
        if self.ops:
            parts = self.ops[-1].split()
            self.ops[-1] = parts[0]; self.mods = ' '.join(parts[1:] + [x for x in xm if not self.op.startswith('v_pk_')])
        op = self.op
        self.mfma = op.startswith('v_mfma')
        self.valu = op.startswith('v_') and not self.mfma
        self.salu = op.startswith('s_')
        self.ds = op.startswith('ds_')
        self.vmem = op.startswith(('buffer_', 'global_', 'flat_'))
        self.trans = op.startswith(TRANS)
        self.dpp = '_dpp' in op or 'row_' in self.mods or 'quad_perm' in self.mods
        self.perm = op.startswith('v_permlane')
        self.rdlane = op.startswith(('v_readlane', 'v_readfirstlane'))
        R = [regs(o) for o in self.ops]
        self.w = set(); self.r = set(); self.C = set(); self.AB = set(); self.stdata = set(); self.ldsdma = False
        self.passes = 0
        if self.mfma:
            self.w = R[0]; self.AB = R[1] | R[2]; self.C = R[3]; self.r = self.AB | self.C
            self.passes = 8 if '32x32' in op else 4
        elif self.valu:
            if op in ('v_nop',): pass
            elif self.perm: self.w = R[0] | R[1]; self.r = R[0] | R[1]
            elif op.startswith('v_cmp'):
                self.w = R[0]; self.r = set().union(*R[1:])
                if op.startswith('v_cmpx'): self.w |= {('s', 'exec')}
            elif '_co_' in op:
                self.w = R[0] | R[1]; self.r = set().union(*R[2:])
            else:
                self.w = R[0]; self.r = set().union(*R[1:]) if len(R) > 1 else set()
                if op.startswith(('v_fmac', 'v_pk_fmac', 'v_writelane', 'v_dot2c')) or self.dpp: self.r |= R[0]
        elif self.ds:
            if op.startswith(('ds_read', 'ds_bpermute', 'ds_permute', 'ds_swizzle')) or '_rtn' in op:
                self.w = R[0]; self.r = set().union(*R[1:])
            else: self.r = set().union(*R)
        elif self.vmem:
            allr = set().union(*R) if R else set()
            if ' lds' in ' ' + self.mods or 'load_lds' in op:
                self.ldsdma = True; self.r = allr | {('s', 'm0')}
            elif '_load' in op:
                self.w = R[0]; self.r = set().union(*R[1:])
            elif 'atomic' in op:
                self.r = allr
                if 'sc0' in self.mods: self.w = R[0]
            else:
                self.r = allr
                if op.endswith(('x3', 'x4')):
                    self.stdata = R[0] if op.startswith('buffer_') else R[1]
        elif self.salu:
            if op.startswith(('s_cmp', 's_cbranch', 's_branch', 's_waitcnt', 's_barrier', 's_nop', 's_endpgm', 's_sleep', 's_setprio', 's_bitcmp', 's_setpc')):
                self.r = set().union(*R) if R else set()
            else:
                self.w = R[0] if R else set(); self.r = set().union(*R[1:]) if len(R) > 1 else set()
                if 'saveexec' in op: self.w |= {('s', 'exec')}
        self.states = 1
        if op == 's_nop': self.states = int(self.ops[0], 0) + 1
def need(p, c):
    n = 0
    vw = {x for x in p.w if x[0] in 'va'}
    sw = {x for x in p.w if x[0] == 's'}
    if p.valu:
        if c.mfma and vw & c.r: n = max(n, 2)
        if c.perm and vw & c.r: n = max(n, 2)
        if c.dpp and vw & c.r: n = max(n, 2)
        if c.rdlane and vw & c.r: n = max(n, 1)
        if p.trans and (c.valu or c.mfma) and vw & c.r: n = max(n, 1)
        if c.vmem and sw & c.r: n = max(n, 5)
        if c.valu and sw & c.r: n = max(n, 4 if c.op.startswith(('v_readlane', 'v_writelane')) else 2)
        if ('s', 'exec') in sw:
            if c.mfma or c.perm or c.rdlane: n = max(n, 4)
            if c.dpp: n = max(n, 5)
        if 'op_sel' in p.mods or 'sdwa' in p.op:
            if c.valu and vw & (c.r | c.w): n = max(n, 1)
    if p.mfma:
        big = {4: 8, 8: 12}[p.passes]
        if c.mfma:
            if p.w & c.AB: n = max(n, big)
            if p.w & c.C and not (p.w == c.C and p.passes == c.passes): n = max(n, big - 2)
            if p.w & c.w and not (p.w == c.C and p.passes == c.passes): n = max(n, big - 2)
        elif c.valu or c.ds or c.vmem:
            if p.w & (c.r | c.w): n = max(n, big)
        if c.valu and p.C & c.w: n = max(n, {4: 3, 8: 7}[p.passes])
    if p.salu and ('s', 'm0') in sw and c.ldsdma: n = max(n, 1)
    if p.stdata and (p.stdata & c.w): n = max(n, 2)
    return n
def pad(lines, verbose=False):
    out = []; hist = []
    npad = 0
    for l in lines:
        t = l.split(';')[0].strip()
        if not t or t.endswith(':') or t.startswith('.'):
            out.append(l); continue
        c = I(l)
        req = 0; dist = 0
        for p in reversed(hist):
            k = need(p, c) - dist
            if k > req: req = k
            dist += p.states
            if dist > 20: break
        if req > 0:
            s = 's_nop %d' % (req - 1)
            out.append(s); hist.append(I(s)); npad += req
        out.append(l); hist.append(c)
        if len(hist) > 40: hist = hist[-30:]
    if verbose: print('padded states:', npad)
    return out
```

```python
import sys, math, struct
from asmlib import *
import hazard
from gen_f16 import Cnt, interleave, f2i, v

L_W = 0; L_X0 = 49152; XOFF = [0, 12288, 49152]; L_K = 73728; L_Q = 49152; L_P = 73728; L_F = 110592; L_V = 114688
G_FL = 0x0
G_P = 0x40000
G_PM = 0x400000
G_PO = 0xC00000
SX, SWQ, SK, SV, SWO, SWS, SOUT = 24, 28, 32, 36, 40, 44, 48
SPIN = 1 << 14
MF = 'v_mfma_f32_16x16x32_bf16 %s, %s, %s, %s'

def gen(stamps=0, opt=None):
    o = dict(order='qqqKqqqqqq', win=24, codepf=True, rot='g3', pk=True, lprio=0, afterB8=1, afterBQ=4, ack='w1', poll0='w2', prog=False, x4=True, xo=12, uprio=0, early_flag=True, outsc='', first_half=False, hsbar=5, poll='s', psleep=0, tlb=0, remap=0)
    if opt: o.update(opt)
    a = Asm()
    a('; @launch grid=(256,1,1) block=(512,1,1) lds=163840')
    a(HEAD); a(kernel_begin(KN))
    def run(seq):
        for x in seq:
            if callable(x): x()
            else: a(x)
    class St:
        def __init__(s, base, n, r0): s.base = base; s.n = n; s.k = 0; s.r0 = r0
        def __call__(s, name='x', lvl=1):
            if stamps >= lvl:
                assert s.k < s.n, name
                a('; stamp %d %s' % (s.base + s.k, name))
                a('s_memrealtime s[%d:%d]' % (s.r0 + 2 * s.k, s.r0 + 1 + 2 * s.k)); s.k += 1
        def flush(s, wave):
            if stamps:
                l_ = a.label('L_nst')
                a('s_cmp_lg_u32 s20, %d\ns_cbranch_scc1 %s' % (wave, l_))
                a('s_waitcnt lgkmcnt(0)\nv_mov_b32 v31, 0\ns_lshl_b32 s3, s2, 9\ns_add_u32 s3, s3, %d' % (STAMP_OFF + 8 * s.base))
                for i in range(s.k):
                    a('v_mov_b32 v254, s%d\nv_mov_b32 v255, s%d' % (s.r0 + 2 * i, s.r0 + 1 + 2 * i))
                    a('buffer_store_dwordx2 v[254:255], v31, s[%d:%d], s3 offen offset:%d' % (SWS, SWS + 3, 8 * i))
                a(l_ + ':')
    stC = St(0, 21, 60); stL = St(24, 17, 68); stH = St(44, 6, 72)
    W0 = 's_waitcnt lgkmcnt(0)'
    stC('start')
    a('s_cmp_ge_u32 s2, 256\ns_cbranch_scc1 L_end')
    a('s_load_dwordx2 s[%d:%d], s[0:1], %d' % (SX, SX + 1, SLOT['x']))
    a('s_load_dwordx2 s[%d:%d], s[0:1], %d' % (SWQ, SWQ + 1, SLOT['wq']))
    a('s_load_dwordx4 s[4:7], s[0:1], %d' % SLOT['k'])
    a('s_load_dwordx8 s[8:15], s[0:1], %d' % SLOT['wo'])
    if o['remap'] == 1: a('s_lshr_b32 s3, s2, 2\ns_and_b32 s3, s3, 0x18\ns_xor_b32 s2, s2, s3')
    if o['remap'] == 2: a('s_lshr_b32 s3, s2, 3\ns_and_b32 s3, s3, 0x18\ns_lshl_b32 s21, s2, 2\ns_and_b32 s21, s21, 0xe0\ns_and_b32 s2, s2, 7\ns_or_b32 s2, s2, s3\ns_or_b32 s2, s2, s21')
    if o['remap'] == 3: a('s_xor_b32 s2, s2, 0x18')
    a('v_lshrrev_b32 v1, 6, v0\nv_and_b32 v0, 63, v0\nv_readfirstlane_b32 s20, v1')
    a('s_and_b32 s21, s2, 7\ns_bfe_u32 s22, s2, 0x20003\ns_lshr_b32 s23, s2, 5')
    a('v_and_b32 v1, 15, v0\nv_lshrrev_b32 v2, 4, v0')
    def srd(r, src, n):
        if src is not None: a('s_mov_b32 s%d, s%d\ns_mov_b32 s%d, s%d' % (r, src, r + 1, src + 1))
        a('s_mov_b32 s%d, %d\ns_mov_b32 s%d, 0x20000' % (r + 2, SIZES[n], r + 3))
    H0 = 's_and_b32 s16, s22, 2\ns_add_u32 s16, s16, s22\ns_xor_b32 s16, s16, s23'
    a('s_cmp_lt_u32 s20, 4\ns_cbranch_scc1 L_comp')
    a('s_cmp_gt_u32 s20, 4\ns_cbranch_scc1 L_help')
    def gpoll(name, nw, off):
        sl = ('s_sleep %d\n' % o['psleep']) if o['psleep'] else ''
        if o['poll'] == 's':
            a('L_%s:\n%ss_load_dwordx%d s[84:%d], s[66:67], %d glc\ns_sub_u32 s54, s54, 1\ns_cbranch_scc1 L_%sok\ns_waitcnt lgkmcnt(0)' % (name, sl, nw, 83 + nw, off, name))
            k = nw
            while k > 2:
                k //= 2
                for i in range(0, k, 2): a('s_and_b64 s[%d:%d], s[%d:%d], s[%d:%d]' % (84 + i, 85 + i, 84 + i, 85 + i, 84 + k + i, 85 + k + i))
            a('s_and_b32 s84, s84, s85\ns_cbranch_scc0 L_%s\nL_%sok:' % (name, name))
        else:
            a('v_and_b32 v19, %d, v0\nv_lshlrev_b32 v19, 2, v19' % (nw - 1))
            a('L_%s:\n%sbuffer_load_dword v18, v19, s[%d:%d], s62 offen offset:%d sc1\ns_sub_u32 s54, s54, 1\ns_cbranch_scc1 L_%sok\ns_waitcnt vmcnt(0)' % (name, sl, SWS, SWS + 3, off, name))
            a('v_cmp_ne_u32 vcc, 1, v18\ns_cbranch_vccnz L_%s\nL_%sok:' % (name, name))
    vm = Cnt(a, 'vmcnt', 63)
    XV, WV, OV, KV, DV, VV = 8, 12, 16, 20, 24, 28
    if o['lprio']: a('s_setprio %d' % o['lprio'])
    srd(SX, None, 'x'); srd(SWQ, None, 'wq')
    a('v_lshrrev_b32 v3, 3, v0\nv_and_b32 v4, 7, v0')
    def quad(base, step):
        a('v_xor_b32 v7, 64, v%d\nv_add_u32 v%d, %d, v7' % (base, base + 1, step))
        a('v_add_u32 v%d, %d, v%d\nv_add_u32 v%d, %d, v%d' % (base + 2, 2 * step, base, base + 3, 2 * step, base + 1))
    a('v_mul_u32_u24 v5, 1152, v3\nv_xor_b32 v32, v4, v2\nv_lshl_add_u32 v%d, v32, 4, v5' % XV)
    quad(XV, 8 * 1152 - 1024)
    a('v_lshlrev_b32 v6, 1, v2\nv_xor_b32 v6, v6, v1\nv_lshlrev_b32 v6, 4, v6')
    a('v_lshl_add_u32 v%d, v2, 13, v6' % WV)
    a('v_add_u32 v%d, %d, v%d' % (WV + 1, 4 * 8192 - 1024, WV))
    a('v_xor_b32 v7, 128, v%d\nv_add_u32 v%d, %d, v7\nv_add_u32 v%d, %d, v7' % (WV, WV + 2, 2 * (4 * 8192 - 1024), WV + 3, 3 * (4 * 8192 - 1024)))
    if o['rot'] == 'g3':
        a('s_add_u32 s17, s22, s23\ns_mul_i32 s3, s17, 43\ns_lshr_b32 s3, s3, 7\ns_mul_i32 s3, s3, 3\ns_sub_u32 s17, s17, s3\ns_mul_i32 s17, s17, 3')
    elif o['rot'] == 'g4':
        a('s_add_u32 s17, s22, s23\ns_and_b32 s17, s17, 3\ns_mul_i32 s17, s17, 9\ns_lshr_b32 s17, s17, 2')
    elif o['rot'] == 'g2':
        a('s_add_u32 s17, s22, s23\ns_and_b32 s17, s17, 1\ns_mul_i32 s17, s17, 5')
    elif o['rot'] == 'g9':
        a('s_lshl_b32 s17, s22, 1\ns_add_u32 s17, s17, s23\ns_cmp_ge_u32 s17, 9\ns_cselect_b32 s3, 9, 0\ns_sub_u32 s17, s17, s3')
    else: a('s_mov_b32 s17, 0')
    a('s_mul_i32 s52, s23, 110592')
    a('s_lshl_b32 s53, s21, 10\ns_lshl_b32 s3, s22, 8\ns_add_u32 s53, s53, s3')
    a('s_waitcnt lgkmcnt(0)')
    stL('L kernarg')
    def group(vreg, n, srd_, lds, tag, adv=None, dyn=None):
        seq = [('s_add_u32 m0, %s, %d' % (dyn, lds) if dyn else 's_mov_b32 m0, %d' % lds) + ('\ns_add_u32 s57, s57, %s' % adv if adv else '')]
        for j in range(n):
            def f(j=j):
                if len(vm.seq) >= 60:
                    a('s_waitcnt vmcnt(44)'); vm.seq = vm.seq[-44:]
                a('buffer_load_dwordx4 v%d, s[%d:%d], s57 offen offset:%d lds' % (vreg + j, srd_, srd_ + 3, 1024 * j)); vm.issue(tag)
            seq.append(f)
        return seq
    def item_q(c):
        st = c % 3; tag = 'n%d' % c
        seq = ['s_lshl_b32 s57, s17, 7\ns_add_u32 s57, s57, s52']
        for t in range(3): seq += group(XV, 4, SX, L_X0 + XOFF[st] + 4096 * t, tag, 32 * 1152 if t else None)
        seq += ['s_lshl_b32 s57, s17, 19\ns_add_u32 s57, s57, s53']
        for t in range(4): seq += group(WV, 4, SWQ, L_W + 16384 * st + 4096 * t, tag, 16 * 8192 if t else None)
        seq += ['s_add_u32 s17, s17, 1\ns_cmp_eq_u32 s17, 9\ns_cselect_b32 s17, 0, s17']
        return seq
    def item_k():
        seq = ['s_lshr_b32 s3, s22, 1\ns_add_u32 s57, s54, s3\ns_mul_i32 s57, s57, 12288']
        for t in range(6): seq += group(KV, 4, SK, L_K + 4096 * t, 'k', None if t == 0 else (4096 if t != 3 else 16 * 12288 - 8192))
        return seq
    WSLOT = {'w0': 0, 'w1': 1, 'w2': 2, 'w3': 3, 'w4': 0, 'w5': 1, 'w6': 2, 'w7': 3, 'o0': 0, 'o1': 1}
    NEED = {'w3': 1, 'w4': 2, 'w5': 3, 'w6': 5, 'w7': 6}
    L_O1 = L_P
    STAGES = ['w0', 'w1', 'o0', 'o1', 'w2', 'w3', 'w4', 'w5', 'w6', 'w7']
    def item_v(vp):
        seq = ['s_lshr_b32 s3, s16, 2\ns_xor_b32 s3, s3, %d\ns_add_u32 s57, s54, s3\ns_mul_i32 s57, s57, 12288\ns_xor_b32 s3, s16, %d\ns_and_b32 s3, s3, 1\ns_lshl_b32 s3, s3, 7\ns_add_u32 s57, s57, s3' % (vp >> 1, vp & 1)]
        for b in range(2):
            seq += group(VV, 4, SV, L_V + 12288 * vp + 6144 * b, 'v%d' % vp, 16 * 12288 - 8192 if b else None)
            seq += group(VV, 2, SV, L_V + 12288 * vp + 6144 * b + 4096, 'v%d' % vp, 8192)
        return seq
    def item_w(p):
        lds = L_W + 16384 * WSLOT['w%d' % p]
        seq = ['s_xor_b32 s3, s16, %d\ns_mul_i32 s57, s3, %d\ns_add_u32 s57, s57, s60' % (p, 64 * 1152)]
        for t in range(4): seq += group(OV, 4, SWO, lds + 4096 * t, 'w%d' % p, 16 * 1152 if t else None)
        return seq
    def item_o(e):
        lds = L_W + 16384 * WSLOT['o%d' % e]; seq = []
        for hf in range(2):
            seq += ['s_xor_b32 s3, s16, %d\ns_mul_i32 s57, s3, %d\ns_add_u32 s57, s57, s62' % (2 * e + hf, 64 * 1152)]
            for t in range(2): seq += group(DV, 4, SWO, lds + 8192 * hf + 4096 * t, 'o%d' % e, 32 * 1152 if t else None)
        return seq
    def item(nm): return {'v': item_v, 'w': item_w, 'o': item_o}[nm[0]](int(nm[1]))
    def late_setup():
        srd(SK, 4, 'k'); srd(SV, 6, 'v'); srd(SWO, 8, 'wo'); srd(SWS, 14, 'ws')
        a('v_mul_u32_u24 v7, 1152, v2\nv_add_u32 v%d, v7, v6\nv_add_u32 v%d, %d, v%d' % (OV, OV + 1, 4 * 1152 - 1024, OV))
        a('v_xor_b32 v6, 128, v6\nv_add_u32 v7, v7, v6\nv_add_u32 v%d, %d, v7\nv_add_u32 v%d, %d, v7' % (OV + 2, 2 * (4 * 1152 - 1024), OV + 3, 3 * (4 * 1152 - 1024)))
        a('v_xor_b32 v6, v1, v2\nv_lshlrev_b32 v6, 4, v6\nv_lshl_add_u32 v%d, v2, 8, v6' % KV)
        for j in range(1, 4): a('v_xor_b32 v%d, %d, v%d' % (KV + j, 64 * j, KV))
        a('v_and_b32 v6, 1, v2\nv_lshlrev_b32 v6, 1, v6\nv_xor_b32 v6, v6, v4\nv_lshl_add_u32 v%d, v6, 4, v5' % DV)
        quad(DV, 8 * 1152 - 1024)
        a('v_lshlrev_b32 v6, 8, v3\nv_lshl_add_u32 v%d, v32, 4, v6' % VV)
        quad(VV, 8 * 256 - 1024)
        a(H0)
        a('s_lshl_b32 s54, s23, 5\ns_lshl_b32 s3, s21, 1\ns_add_u32 s54, s54, s3')
        a('s_mul_i32 s60, s21, %d\ns_add_u32 s62, s60, 1024\ns_lshl_b32 s3, s22, 8\ns_add_u32 s60, s60, s3' % (512 * 1152))
    nq = 0; nbar = 0; since = {}
    def bar():
        nonlocal nbar
        vm.wait('n%d' % nbar)
        if nbar in (1, 2, 3, 8): stL('L at B%d' % nbar, 2)
        a('s_barrier'); nbar += 1
    for t in o['order']:
        if t == 'q':
            while nbar < nq - 1 and nq >= 3: bar()
            seq = item_q(nq)
            if o['first_half'] and nq in (1, 2) and nbar == nq - 1:
                run(seq[:16]); bar(); run(seq[16:])
            else: run(seq)
            sz = 28; nq += 1
            if nq == 1: late_setup()
        elif t == 'K': run(item_k()); sz = 24
        for c in list(since): since[c] += sz
        if t == 'q': since[nq - 1] = 0
        while nbar < nq and since[nbar] >= o['win']: bar()
    while nbar < 8: bar()
    run(item_v(0) + item_w(0))
    bar()
    XB = [('BQ', []), ('BP', ['v0', 'w0']), ('w0', ['v1', 'w1']), ('w1', ['w2']), ('w2', ['w3']), ('w3', ['v2', 'w4']),
          ('w4', ['v3', 'w5']), ('w5', ['w6']), ('w6', ['w7']), ('w7', []), ('O', ['o0', 'o1'])]
    plan = o.get('plan') or {'B8': ['v1', 'w1'], 'BQ': ['w2', 'v2'], 'BP': [], 'w0': ['w3', 'v3'], 'w1': ['w4'], 'w2': ['w5'], 'w3': ['w6'], 'w4': ['w7'], 'w5': ['o0'], 'w6': ['o1']}
    FREEAT = {'w1': 'B8', 'w2': 'BQ', 'w3': 'BP', 'w4': 'w1', 'w5': 'w2', 'w6': 'w3', 'w7': 'w4', 'o0': 'w5', 'o1': 'w6'}
    names = ['B8'] + [x_[0] for x_ in XB]
    issued = {'v0', 'w0'}
    last = 'B8'
    for nm, need in XB:
        for it in plan.get(last, []):
            assert it[0] == 'v' or names.index(FREEAT[it]) <= names.index(last), (it, last)
            run(item(it)); issued.add(it)
        assert all(x_ in issued for x_ in need), (nm, need)
        vm.wait(need)
        stL('L at ' + nm, 2)
        a('s_barrier'); last = nm
    assert len(issued) == 14
    stL('L done')
    stL.flush(4)
    srd(SOUT, 10, 'out')
    a('s_lshl_b32 s52, s21, 1\ns_lshr_b32 s3, s22, 1\ns_add_u32 s52, s52, s3')
    a('s_cmp_ge_u32 s52, 12\ns_cbranch_scc1 L_end')
    a('s_lshl_b32 s3, s2, 9\ns_add_u32 s62, s3, %d\ns_add_u32 s66, s14, s62\ns_addc_u32 s67, s15, 0' % (G_FL + 384))
    a('s_mov_b32 s54, %d' % SPIN)
    a('s_lshl_b32 s3, s23, 1\ns_and_b32 s53, s22, 1\ns_add_u32 s53, s53, s3')
    a('s_mul_i32 s55, s53, 12\ns_add_u32 s55, s55, s52\ns_lshl_b32 s55, s55, 13\ns_add_u32 s55, s55, %d\ns_add_u32 s56, s55, 4096' % G_PO)
    a('s_mul_i32 s58, s52, 43\ns_lshr_b32 s58, s58, 7\ns_mul_i32 s3, s58, 3\ns_sub_u32 s3, s52, s3')
    a('s_mul_i32 s57, s53, 3\ns_add_u32 s57, s57, s3\ns_mul_i32 s57, s57, %d\ns_lshl_b32 s58, s58, 5\ns_add_u32 s57, s57, s58\ns_add_u32 s57, s57, 1024' % (16 * 1152))
    a('v_lshlrev_b32 v6, 3, v0')
    def and16(b):
        for i in range(0, 16, 4): a('s_and_b64 s[%d:%d], s[%d:%d], s[%d:%d]' % (b + i, b + 1 + i, b + i, b + 1 + i, b + 2 + i, b + 3 + i))
        a('s_and_b64 s[%d:%d], s[%d:%d], s[%d:%d]\ns_and_b64 s[%d:%d], s[%d:%d], s[%d:%d]\ns_and_b64 s[%d:%d], s[%d:%d], s[%d:%d]\ns_and_b32 s%d, s%d, s%d' % (
            b, b + 1, b, b + 1, b + 4, b + 5, b + 8, b + 9, b + 8, b + 9, b + 12, b + 13, b, b + 1, b, b + 1, b + 8, b + 9, b, b, b + 1))
    def reduce(name, nsrc, w, off, vaddr, outs, st=None):
        per = nsrc // 2; sz = 256 * w
        def ld(j): return 'buffer_load_dwordx%d %s, v%d, s[%d:%d], s%d offen offset:%d sc1' % (w, v(32 + w * j, w), vaddr, SWS, SWS + 3, 55 + j // per, sz * (j % per))
        if o['x4'] and w == 4: a('v_mul_u32_u24 v3, 1152, v1\nv_lshl_add_u32 v3, v2, 4, v3')
        else: a('v_mul_u32_u24 v3, 1152, v1\nv_lshl_add_u32 v3, v2, 3, v3')
        a('s_mov_b32 s28, 0x00003f80\ns_mov_b32 s29, 0x3f800000')
        if o['prog']:
            a('s_mov_b32 s63, 0')
            a('L_%s:\ns_load_dwordx%d s[84:%d], s[66:67], %d glc\ns_sub_u32 s54, s54, 1\ns_cselect_b32 s30, -1, 0\ns_waitcnt lgkmcnt(0)' % (name, nsrc, 83 + nsrc, off))
            k = nsrc; sh = 1
            while k > 1:
                for i in range(0, nsrc, 2 * sh):
                    if sh <= 4: a('s_lshl%d_add_u32 s%d, s%d, s%d' % (sh, 84 + i, 84 + i + sh, 84 + i))
                    else: a('s_lshl_b32 s%d, s%d, %d\ns_or_b32 s%d, s%d, s%d' % (84 + i + sh, 84 + i + sh, sh, 84 + i, 84 + i, 84 + i + sh))
                k //= 2; sh *= 2
            a('s_or_b32 s84, s84, s30\ns_and_b32 s84, s84, %d\ns_andn2_b32 s85, s84, s63\ns_cbranch_scc0 L_%s\ns_or_b32 s63, s63, s84' % ((1 << nsrc) - 1, name))
            for j in range(nsrc):
                a('s_bitcmp1_b32 s85, %d\ns_cbranch_scc0 L_%s_%d\n%s\nL_%s_%d:' % (j, name, j, ld(j), name, j))
            a('s_cmp_lg_u32 s63, %d\ns_cbranch_scc1 L_%s' % ((1 << nsrc) - 1, name))
            if st: st('flags ok')
            a('s_waitcnt vmcnt(0)')
        else:
            gpoll(name, nsrc, off)
            if st: st('flags ok')
            for j in range(nsrc): a(ld(j))
        for j in range(nsrc):
            if not o['prog']: a('s_waitcnt vmcnt(%d)' % (nsrc - 1 - j))
            for t in range(w):
                src = 32 + w * j + t
                if j == 0: a('v_lshlrev_b32 v%d, 16, v%d\nv_and_b32 v%d, 0xffff0000, v%d' % (8 + 2 * t, src, 9 + 2 * t, src))
                elif o.get('dot'): a('v_dot2_f32_bf16 v%d, v%d, s28, v%d\nv_dot2_f32_bf16 v%d, v%d, s29, v%d' % (8 + 2 * t, src, 8 + 2 * t, 9 + 2 * t, src, 9 + 2 * t))
                else: a('v_lshlrev_b32 v16, 16, v%d\nv_and_b32 v17, 0xffff0000, v%d\nv_pk_add_f32 v[%d:%d], v[%d:%d], v[16:17]' % (src, src, 8 + 2 * t, 9 + 2 * t, 8 + 2 * t, 9 + 2 * t))
        for t in range(w): a('v_cvt_pk_bf16_f32 v%d, v%d, v%d' % (8 + t, 8 + 2 * t, 9 + 2 * t))
        if w == 4 and o['x4']:
            a('v_permlane32_swap_b32 v8, v10\nv_permlane32_swap_b32 v9, v11\nv_permlane16_swap_b32 v8, v10\nv_permlane16_swap_b32 v9, v11')
            a('buffer_store_dwordx4 v[8:11], v3, s[%d:%d], %s offen %s' % (SOUT, SOUT + 3, outs, o['outsc']))
        else:
            for t in range(w // 2): a('buffer_store_dwordx2 v[%d:%d], v3, s[%d:%d], %s offen offset:%d %s' % (8 + 2 * t, 9 + 2 * t, SOUT, SOUT + 3, outs, 32 * t, o['outsc']))
    reduce('op', 16, 2, 0, 6, 's57')
    a('s_endpgm')
    a('L_comp:')
    lg = Cnt(a, 'lgkmcnt', 15)
    XA, WA, VA, OVA, OA, QA, FRA, FUA, FV, FC, PFA = 10, 12, 16, 18, 20, 21, 22, 23, 24, 27, 31
    A = 32; F = [80, 108]; B = 136; C = 184; VWO = 232; SP = 244
    KF = B; QF = 80; S = 96; P = SP; KA = 184; UA = 254; QT = 192
    a('v_bfe_u32 v3, v0, 2, 2\nv_and_b32 v4, 3, v0')
    a('s_lshr_b32 s18, s20, 1\ns_and_b32 s17, s20, 1')
    a(H0)
    a('v_lshrrev_b32 v7, 1, v1\nv_xor_b32 v7, v7, v2\nv_lshlrev_b32 v7, 4, v7\nv_lshl_add_u32 v5, v1, 7, v7\nv_xor_b32 v6, 64, v5')
    a('s_mul_i32 s3, s18, 6144\ns_add_u32 s3, s3, %d' % L_X0)
    a('v_add_u32 v%d, s3, v5\nv_add_u32 v%d, s3, v6' % (XA, XA + 1))
    a('s_add_u32 s3, s3, %d\nv_add_u32 v%d, s3, v5\nv_add_u32 v%d, s3, v6' % (L_V - L_X0, VA, VA + 1))
    a('s_and_b32 s3, s22, 1\ns_mul_i32 s3, s3, 6144\ns_add_u32 s3, s3, %d' % L_V)
    a('v_add_u32 v%d, s3, v5\nv_add_u32 v%d, s3, v6' % (OVA, OVA + 1))
    a('v_and_b32 v7, 1, v2\nv_lshl_add_u32 v7, v7, 2, v3\ns_lshl_b32 s3, s17, 2\nv_xor_b32 v7, s3, v7')
    a('v_lshl_add_u32 v5, v2, 3, v3\nv_lshlrev_b32 v8, 8, v5\nv_lshl_add_u32 v8, v4, 3, v8')
    assert L_W == 0
    for t in range(4): a('v_xor_b32 v9, %d, v7\nv_lshl_add_u32 v%d, v9, 5, v8' % (t, WA + t))
    a('v_and_b32 v7, 1, v2\nv_lshrrev_b32 v8, 1, v3\nv_lshl_add_u32 v7, v7, 1, v8\nv_xor_b32 v7, s20, v7')
    a('v_lshlrev_b32 v8, 7, v5\nv_lshl_add_u32 v8, v4, 3, v8\nv_lshl_add_u32 v%d, v7, 5, v8' % OA)
    a('s_mul_i32 s3, s18, 12288\ns_lshl_b32 s19, s17, 11\ns_add_u32 s3, s3, s19\ns_add_u32 s3, s3, %d' % L_Q)
    a('v_lshlrev_b32 v25, 4, v0\nv_lshlrev_b32 v26, 3, v0\nv_add_u32 v%d, s3, v25' % QA)
    a('s_and_b32 s59, s2, 0xf8\ns_lshl_b32 s3, s20, 1\ns_add_u32 s59, s59, s3\ns_mul_i32 s56, s59, 24576\ns_lshl_b32 s3, s21, 10\ns_add_u32 s56, s56, s3\ns_add_u32 s56, s56, %d' % G_PM)
    a('s_add_u32 s57, s56, 24576')
    a('s_lshl_b32 s3, s23, 1\ns_and_b32 s54, s22, 1\ns_add_u32 s3, s3, s54\ns_mul_i32 s3, s3, 12\ns_mul_i32 s54, s20, 3\ns_add_u32 s3, s3, s54\ns_lshl_b32 s58, s3, 13')
    a('s_lshl_b32 s3, s21, 1\ns_lshr_b32 s55, s22, 1\ns_add_u32 s55, s55, s3\ns_lshl_b32 s3, s55, 9\ns_add_u32 s58, s58, s3\ns_add_u32 s58, s58, %d' % G_PO)
    a('v_add_u32 v7, s59, v0\nv_lshlrev_b32 v7, 9, v7\ns_lshl_b32 s3, s21, 2\ns_add_u32 s3, s3, %d\nv_add_u32 v7, s3, v7' % (G_FL + 32))
    a('s_sub_u32 s54, s54, 2\nv_add_u32 v8, s54, v0\nv_lshrrev_b32 v9, 1, v8\nv_and_b32 v8, 1, v8\nv_lshl_add_u32 v8, v8, 4, v9\ns_and_b32 s3, s2, 0xe8\nv_add_u32 v8, s3, v8\nv_lshlrev_b32 v8, 9, v8')
    a('s_lshl_b32 s3, s55, 2\ns_add_u32 s3, s3, %d\nv_add_u32 v8, s3, v8\nv_mov_b32 v9, 0x7ff00000' % (G_FL + 256))
    a('v_cmp_gt_u32 vcc, 5, v0\nv_cndmask_b32 v8, v9, v8, vcc\nv_cmp_gt_u32 vcc, 2, v0\nv_cndmask_b32 v30, v8, v7, vcc\nv_cndmask_b32 v28, v9, v7, vcc\nv_mov_b32 v29, 1')
    a('s_mov_b32 s52, s20')
    def unit_setup():
        a('s_cmp_ge_u32 s52, 3\ns_cselect_b32 s3, 12288, 0\ns_add_u32 s3, s3, %d' % L_K)
        a('v_lshrrev_b32 v7, 1, v2\nv_xor_b32 v7, v1, v7\nv_lshlrev_b32 v7, 4, v7\nv_lshl_add_u32 v7, v1, 8, v7\nv_and_b32 v8, 1, v2\nv_lshl_add_u32 v7, v8, 3, v7')
        for j in range(8): a('v_xor_b32 v8, %d, v7\nv_add_u32 v%d, s3, v8' % (32 * j, KA + j))
        a('s_lshl_b32 s3, s52, 12\ns_add_u32 s3, s3, %d\nv_add_u32 v%d, s3, v25' % (L_Q, UA))
        a('s_mov_b32 s50, 0x%x\ns_mov_b32 s51, s50' % f2i(128 ** -0.5 * math.log2(math.e)))
        a('s_mul_i32 s3, s52, 1536\ns_mul_i32 s49, s2, 9216\ns_add_u32 s49, s49, s3\ns_add_u32 s49, s49, %d' % G_P)
    def k_reads(): return ['ds_read_b64 %s, v%d offset:%d' % (v(KF + 16 * kt + 2 * j, 2), KA + j, 4096 * kt) for j in range(8) for kt in range(3)]
    unit_setup()
    a(W0)
    srd(SWS, 14, 'ws')
    def wreads(st, off): return ['ds_read_b64_tr_b16 %s, v%d offset:%d' % (v(st + 4 * t + 2 * hh, 2), WA + t, off + 1024 * hh) for t in range(4) for hh in range(2)]
    def reads_A(n, ks):
        return ['ds_read_b128 %s, v%d offset:%d' % (v(F[ks] + 16 + 4 * q, 4), XA + ks, XOFF[n % 3] + 2048 * q) for q in range(3)] + wreads(F[ks], 16384 * (n % 3) + 8192 * ks)
    ORD = [(t, q if t % 2 == 0 else 2 - q) for t in range(4) for q in range(3)]
    def mfma(acc, ks, first, swap, od=None):
        out = []
        for t, q in od or ORD:
            d = v(acc + 4 * (3 * t + q), 4); x = v(F[ks] + 4 * t, 4); y = v(F[ks] + 16 + 4 * q, 4)
            if swap: x, y = y, x
            out.append(MF % (d, x, y, '0' if first else d))
        return out
    def cvt(d, s_): return ['v_cvt_pk_bf16_f32 v%d, v%d, v%d' % (d, s_, s_ + 1), 'v_cvt_pk_bf16_f32 v%d, v%d, v%d' % (d + 1, s_ + 2, s_ + 3)]
    a('s_barrier')
    stC('B0')
    run(reads_A(0, 0))
    for n in range(9):
        a(W0)
        run(interleave(mfma(A, 0, n == 0, False), reads_A(n, 1), 0, 2))
        if n < 8:
            a(W0)
            a('s_barrier')
            if n == 7: stC('B8')
            run(interleave(mfma(A, 1, False, False), reads_A(n + 1, 0) + (k_reads()[8 * (n - 4):8 * (n - 3)] if 4 <= n < 7 else []), 0, 2))
        else:
            a(W0)
            od = [(2 * tp + u, q) for tp in range(2) for q in range(3) for u in range(2)]
            qw = []
            for i, (t, q) in enumerate(od):
                qw += cvt(QT + 2 * i, A + 4 * (3 * t + q))
                if t & 1: qw[-1] += '\nds_write_b128 v%d, %s offset:%d' % (QA, v(QT + 2 * i - 2, 4), q * 4096 + (t >> 1) * 1024)
            run(interleave(mfma(A, 1, False, False, od), qw, 6, 2))
    if o['uprio']: a('s_setprio %d' % o['uprio'])
    a('L_unit:')
    a(W0)
    a('s_barrier')
    stC('BQ')
    for kk in range(4): a('ds_read_b128 %s, v%d offset:%d' % (v(QF + 4 * kk, 4), UA, 1024 * kk))
    for kk in range(4):
        a('s_waitcnt lgkmcnt(%d)' % (3 - kk))
        for kt in range(3): a(MF % (v(S + 4 * kt, 4), v(KF + 16 * kt + 4 * kk, 4), v(QF + 4 * kk, 4), v(S + 4 * kt, 4) if kk else '0'))
    x, y = 6, 7
    a('v_max3_f32 v6, v%d, v%d, v%d\nv_max3_f32 v7, v%d, v%d, v%d' % (S, S + 1, S + 2, S + 3, S + 4, S + 5))
    a('v_max3_f32 v6, v6, v%d, v%d\nv_max3_f32 v7, v7, v%d, v%d\nv_max3_f32 v6, v6, v%d, v%d' % (S + 6, S + 7, S + 8, S + 9, S + 10, S + 11))
    def xl(op, first):
        a(first)
        a('v_permlane16_swap_b32 v6, v7\n%s v8, v6, v7\n%s v7, v6, v7\nv_permlane32_swap_b32 v8, v7\n%s v6, v8, v7' % (op, op, op))
    xl('v_max_f32', 'v_max_f32 v6, v6, v7\nv_mov_b32 v7, v6')
    a('v_mul_f32 v6, s50, v6')
    if o['pk']:
        for t in range(0, 12, 2): a('v_pk_fma_f32 v[%d:%d], v[%d:%d], s[50:51], v[6:7] op_sel_hi:[1,1,0] neg_lo:[0,0,1] neg_hi:[0,0,1]' % (S + t, S + t + 1, S + t, S + t + 1))
    else:
        for t in range(12): a('v_fma_f32 v%d, v%d, s50, -v6' % (S + t, S + t))
    for t in range(12): a('v_exp_f32 v%d, v%d' % (S + t, S + t))
    if o['pk']:
        a('v_pk_add_f32 v[6:7], v[%d:%d], v[%d:%d]\nv_pk_add_f32 v[4:5], v[%d:%d], v[%d:%d]' % (S, S + 1, S + 2, S + 3, S + 4, S + 5, S + 6, S + 7))
        a('v_pk_add_f32 v[6:7], v[6:7], v[%d:%d]\nv_pk_add_f32 v[4:5], v[4:5], v[%d:%d]\nv_pk_add_f32 v[4:5], v[4:5], v[6:7]' % (S + 8, S + 9, S + 10, S + 11))
    else:
        a('v_add_f32 v4, v%d, v%d\nv_add_f32 v5, v%d, v%d' % (S, S + 1, S + 2, S + 3))
        for t in range(4, 12, 2): a('v_add_f32 v4, v4, v%d\nv_add_f32 v5, v5, v%d' % (S + t, S + t + 1))
    xl('v_add_f32', 'v_add_f32 v6, v4, v5\nv_add_f32 v7, v4, v5')
    a('v_rcp_f32 v6, v6')
    if o['pk']:
        for t in range(0, 12, 2): a('v_pk_mul_f32 v[%d:%d], v[%d:%d], v[6:7] op_sel_hi:[1,0]' % (S + t, S + t + 1, S + t, S + t + 1))
    else:
        for t in range(12): a('v_mul_f32 v%d, v%d, v6' % (S + t, S + t))
    for t in range(6): a('v_cvt_pk_bf16_f32 v%d, v%d, v%d' % (P + t, S + 2 * t, S + 2 * t + 1))
    a('buffer_store_dwordx4 %s, v25, s[%d:%d], s49 offen sc1' % (v(P, 4), SWS, SWS + 3))
    a('buffer_store_dwordx2 %s, v26, s[%d:%d], s49 offen offset:1024 sc1' % (v(P + 4, 2), SWS, SWS + 3))
    stC('C at BP')
    a('s_barrier')
    a('s_cmp_ge_u32 s20, 4\ns_cbranch_scc1 L_help2')
    stC('BP')
    def ds(txt, tag):
        def f(): a(txt); lg.issue(tag)
        return f
    def step(m, dsops, extra=(), waits=None, pre=(), xstart=0, dstart=0):
        n = len(m); per = [[] for _ in range(n)]
        for i, x_ in enumerate(pre): per[i].append(x_)
        nd = n - dstart
        for i, x_ in enumerate(dsops): per[dstart + (i if len(dsops) <= nd else i * nd // len(dsops))].append(x_)
        nx = n - xstart
        for i, x_ in enumerate(extra): per[xstart + (i * nx // len(extra))].append(x_)
        for i in range(n):
            if waits and i in waits: lg.wait(waits[i])
            a(m[i]); run(per[i])
    def reads_W(p, ks):
        vp = (p >> 2) * 2 + (p & 1); tg = 'w%d%d' % (p, ks)
        r = ['ds_read_b128 %s, v%d offset:%d' % (v(F[ks] + 16 + 4 * q, 4), VA + ks, 12288 * vp + 2048 * q) for q in range(3)] + wreads(F[ks], 16384 * WSLOT['w%d' % p] + 8192 * ks)
        return [ds(x_, tg + ('lo' if i < 7 else 'hi')) for i, x_ in enumerate(r)]
    def wW(p, ks, more=()): return {0: ['w%d%dlo' % (p, ks)] + list(more), 6: ['w%d%dhi' % (p, ks)]}
    def vwpos(base, i, kt): return base + ([0, 2, 4][kt] if i % 2 == 0 else [8, 10, 6][kt])
    HACC = [B, A, B, A]; HDST = [C, C, B, B]
    def cvt_W(i): return [x_ for t in range(4) for kt in range(3) for x_ in cvt(vwpos(HDST[i] + 12 * t, i, kt), HACC[i] + 4 * (3 * t + kt))]
    def xb(nm): return [('s_waitcnt vmcnt(0)\n' if nm == o['ack'] else '') + 's_barrier']
    def ins(lst, i, x_): return lst[:i] + [x_] + lst[i:]
    OS = [108, 32, 52, 80]; OACC = [[232, 236, 240], [128, 132, 72]]
    def rdO(kq):
        tg = 'os%d' % kq
        return [ds('ds_read_b128 %s, v%d offset:%d' % (v(OS[kq] + 4 * kt, 4), OVA + (kq & 1), 12288 * (kq >> 1) + 2048 * kt), tg) for kt in range(3)] + \
               [ds('ds_read_b64_tr_b16 %s, v%d offset:%d' % (v(OS[kq] + 12 + 4 * e + 2 * hh, 2), OA, 16384 * WSLOT['o%d' % e] + 4096 * kq + 512 * hh), tg) for e in range(2) for hh in range(2)]
    mfma_O = [MF % (v(OACC[e][kt], 4), v(OS[kq] + 4 * kt, 4), v(OS[kq] + 12 + 4 * e, 4), v(OACC[e][kt], 4) if kq else '0') for kq in range(4) for e in range(2) for kt in range(3)]
    cvt_O = [x_ for e in range(2) for kt in range(3) for x_ in cvt(vwpos(VWO, e, kt), OACC[e][kt])]
    PFULL = [10, 11, 22, 23]; PHALF = [4, 5, 6, 7]; POF = [24, 21]; POH = [8, 9]
    padr = []
    for i in range(4):
        padr.append('s_xor_b32 s3, s53, %d\ns_mul_i32 s3, s3, 9216\ns_add_u32 s3, s3, s55' % i)
        padr.append('v_add_u32 v%d, s3, v25' % PFULL[i]); padr.append('v_add_u32 v%d, s3, v26' % PHALF[i])
        if i < 2:
            padr.append('s_add_u32 s3, s3, s54\nv_add_u32 v%d, s3, v25' % POF[i]); padr.append('v_add_u32 v%d, s3, v26' % POH[i])
    a('s_mul_i32 s55, s18, 4608\ns_and_b32 s54, s22, 1\ns_mul_i32 s54, s54, 4608\ns_sub_u32 s54, s54, s55\ns_add_u32 s55, s55, %d\ns_lshr_b32 s53, s16, 1' % L_P)
    def preads(dst, fa, ha, qt, tag):
        off = 1536 * qt
        return [ds('ds_read_b128 %s, v%d offset:%d' % (v(dst[0], 4), fa[0], off), tag),
                ds('ds_read_b64 %s, v%d offset:%d' % (v(dst[1], 2), ha[0], off + 1024), tag),
                ds('ds_read_b64 %s, v%d offset:%d' % (v(dst[1] + 2, 2), ha[1], off + 1024), tag),
                ds('ds_read_b128 %s, v%d offset:%d' % (v(dst[2], 4), fa[1], off), tag)]
    PB = [[80 + 4 * k for k in range(6)], [104 + 4 * k for k in range(6)], [92, 96, 100, 128, 132, 72]]
    def reads_F(qt): return preads(PB[qt][:3], PFULL[:2], PHALF[:2], qt, 'p%da' % qt) + preads(PB[qt][3:], PFULL[2:], PHALF[2:], qt, 'p%db' % qt)
    run(reads_W(0, 0))
    for p in range(8):
        i = p >> 1
        if i == 0: ex0, ex1 = (padr[:5], padr[5:10]) if p == 0 else (padr[10:13], padr[13:])
        else:
            cv = cvt_W(i - 1)
            ex0, ex1 = (cv[:6], cv[6:12]) if p % 2 == 0 else (cv[12:18], cv[18:])
        step(mfma(HACC[i], 0, p % 2 == 0, True), reads_W(p, 1), extra=ex0, xstart=4 if p % 2 == 0 else 0, waits=wW(p, 0))
        step(mfma(HACC[i], 1, False, True), reads_W(p + 1, 0) if p < 7 else reads_F(0), extra=ex1, xstart=1, waits=wW(p, 1), pre=xb('w%d' % p))
        stC('s%d' % p if p < 7 else 'VW end', 2 if p < 7 else 1)
    RACC = [[244, 248, 252, 104], [32, 36, 40, 44], [104, 108, 112, 116]]
    PK = [76, 12]; OP = [48, 60, 80]
    def fm(qt, t, k): return MF % (v(RACC[qt][t], 4), v([C, B][k // 3] + 12 * t + 4 * (k % 3), 4), v(PB[qt][k], 4), v(RACC[qt][t], 4) if k else '0')
    def store_F(qt, h):
        return cvt(PK[h], RACC[qt][2 * h]) + cvt(PK[h] + 2, RACC[qt][2 * h + 1]) + \
               ['buffer_store_dwordx4 %s, v25, s[%d:%d], s%d offen sc1\ns_add_u32 s%d, s%d, 8192' % (v(PK[h], 4), SWS, SWS + 3, 56 + h, 56 + h, 56 + h)]
    def flag(reg, off): return 'buffer_store_dword v29, v%d, s[%d:%d], 0 offen offset:%d sc1' % (reg, SWS, SWS + 3, off)
    m = [fm(0, t, k) for k in range(6) for t in range(4)]
    c3 = cvt_W(3)
    c3 = [c3[6 * t + j] for t in range(4) for j in (4, 5)] + [c3[6 * t + j] for t in range(4) for j in range(4)]
    xo = o['xo']; nc = min(24, 2 * (xo - 3))
    step(m[:xo], [], extra=c3[:nc], xstart=3, waits={0: ['p0a'], 11: ['p0b']})
    seq = rdO(0) + rdO(1)
    k1 = min(len(seq), 24 - xo + 2)
    if nc < 24:
        step(m[xo:18], seq[:18 - xo], extra=c3[nc:], pre=xb('O'))
        step(m[18:], seq[18 - xo:k1])
    else: step(m[xo:], seq[:k1], pre=xb('O'))
    stC('R0', 2)
    step(mfma_O[:15], seq[k1:] + rdO(2) + rdO(3), extra=store_F(0, 0) + store_F(0, 1), xstart=3, waits={0: ['os0'], 6: ['os1'], 12: ['os2']})
    step(mfma_O[15:], reads_F(1), waits={3: ['os3']})
    stC('O', 2)
    m = [fm(1, t, k) for t in range(4) for k in range(6)]
    op = [x_ for qt in range(3) for x_ in preads([OP[qt], OP[qt] + 4, OP[qt] + 8], POF, POH, qt, 'po')]
    step(m[:17], op + reads_F(2)[:4], extra=cvt_O, xstart=3, waits={0: ['p1a'], 3: ['p1b']})
    step(m[17:], reads_F(2)[4:], extra=store_F(1, 0))
    m = [MF % (v(SP + 4 * qt, 4), v(VWO + 4 * k, 4), v(OP[qt] + 4 * k, 4), v(SP + 4 * qt, 4) if k else '0') for qt in range(3) for k in range(3)]
    ef = ['s_waitcnt vmcnt(1)\n' + flag(28, 0)] if o['early_flag'] else []
    step(m, [], extra=store_F(1, 1), xstart=4, waits={0: ['po']}, pre=ef)
    oddst = []
    for qt in range(3):
        oddst += cvt(VWO + 2 * qt, SP + 4 * qt) + ['buffer_store_dwordx2 %s, v26, s[%d:%d], s58 offen sc1\ns_add_u32 s58, s58, 8192' % (v(VWO + 2 * qt, 2), SWS, SWS + 3)]
    m = [fm(2, t, k) for t in range(4) for k in range(6)]
    step(m[:17], [], extra=oddst, xstart=2, waits={0: ['p2a'], 3: ['p2b']})
    step(m[17:], [], extra=store_F(2, 0))
    run(store_F(2, 1))
    stC('final end')
    if o['early_flag']:
        a('s_waitcnt vmcnt(2)'); a(flag(30, 128))
        a('s_waitcnt vmcnt(1)'); a(flag(28, 256))
    else:
        a('s_waitcnt vmcnt(7)'); a(flag(28, 0))
        a('s_waitcnt vmcnt(3)'); a(flag(30, 128))
        a('s_waitcnt vmcnt(2)'); a(flag(28, 256))
    stC('flags sent')
    stC.flush(0)
    a('s_endpgm')
    a('L_help:')
    a('s_sub_u32 s18, s20, 5\ns_sub_u32 s52, s20, 1')
    a('v_lshlrev_b32 v25, 4, v0\nv_lshlrev_b32 v26, 3, v0')
    a('v_mov_b32 v12, 0\nv_mov_b32 v13, 0\nv_mov_b32 v14, 0\nv_mov_b32 v15, 0\nv_mov_b32 v29, 1\nv_mov_b32 v28, 0x7ff00000\nv_mov_b32 v30, v28')
    a(W0)
    srd(SWS, 14, 'ws')
    a('s_cmp_eq_u32 s20, 7\ns_cbranch_scc1 L_h2')
    a('s_cmp_eq_u32 s20, 5\ns_cbranch_scc1 L_h0')
    a('s_cmp_ge_u32 s2, 32\ns_cbranch_scc1 L_h0')
    a('s_lshl_b32 s3, s2, 12')
    assert G_FL == 0
    for j in range(4): a('buffer_store_dwordx4 v[12:15], v25, s[%d:%d], s3 offen offset:%d sc1' % (SWS, SWS + 3, 1024 * j))
    a('s_lshl_b32 s3, s2, 2\nv_mov_b32 v16, s3\ns_waitcnt vmcnt(0)')
    a('s_mov_b64 exec, 1\nglobal_store_dword v16, v29, s[12:13] sc1\ns_mov_b64 exec, -1')
    a('L_h0:')
    unit_setup()
    for c in range(9):
        a('s_barrier')
        if c == 4: run(k_reads())
    a('s_branch L_unit')
    a('L_h2:')
    if o['codepf']:
        a('s_getpc_b64 s[66:67]\nL_pc:\ns_sub_u32 s66, s66, L_pc-%s\ns_subb_u32 s67, s67, 0' % KN)
        a('s_lshr_b32 s3, s2, 3\ns_lshl_b32 s3, s3, 7\nv_lshlrev_b32 v7, 12, v0\nv_add_u32 v7, s3, v7')
        a('v_cmp_gt_u32 vcc, L_codeend-%s, v7\ns_and_saveexec_b64 s[64:65], vcc' % KN)
        a('global_load_dword v31, v7, s[66:67]')
        a('s_mov_b64 exec, s[64:65]')
    def tlb_touch():
        a('s_lshl_b32 s3, s2, 7\nv_lshlrev_b32 v7, 21, v0\nv_add_u32 v7, s3, v7\nv_add_u32 v8, 0x1f0000, v7')
        a('s_mov_b64 exec, 0x7f\nglobal_load_dword v32, v8, s[14:15]')
        if o['tlb'] in (1, 3):
            a('s_mov_b64 exec, 7\nglobal_load_dword v33, v7, s[8:9]')
            a('s_mov_b64 exec, 3\nglobal_load_dword v34, v7, s[4:5]\nglobal_load_dword v35, v7, s[6:7]')
        a('s_mov_b64 exec, 1\nglobal_load_dword v36, v7, s[10:11]\ns_mov_b64 exec, -1')
    if o['tlb'] in (1, 2): tlb_touch()
    hs = 's_load_dwordx16 s[84:99], s[12:13], 0%s\ns_load_dwordx16 s[28:43], s[12:13], 64%s'
    for c in range(10):
        a('s_barrier')
        if c == o['hsbar']: a(hs % ('', ''))
        if c == 0 and o['tlb'] == 3: tlb_touch()
        if c == 8 and o['tlb'] == 4: tlb_touch()
    a('s_mov_b32 s54, %d\nL_hs:\ns_waitcnt lgkmcnt(0)' % SPIN)
    and16(84); and16(28); a('s_and_b32 s84, s84, s28')
    a('s_cbranch_scc1 L_hsok\ns_sub_u32 s54, s54, 1\ns_cbranch_scc1 L_hsok'); a(hs % (' glc', ' glc')); a('s_branch L_hs\nL_hsok:')
    a('s_barrier')
    a('L_help2:')
    a('s_barrier')
    a('s_mul_i32 s17, s18, 3072')
    srd(SOUT, 10, 'out')
    a('s_lshl_b32 s3, s2, 9\ns_lshl_b32 s53, s18, 7\ns_add_u32 s62, s3, s53\ns_add_u32 s66, s14, s62\ns_addc_u32 s67, s15, 0')
    a('s_and_b32 s3, s2, 0xe7\ns_lshl_b32 s3, s3, 9\ns_add_u32 s53, s53, s3\ns_lshl_b32 s3, s22, 2\ns_add_u32 s53, s53, s3\nv_lshlrev_b32 v21, 12, v0')
    a('s_mul_i32 s55, s2, 3\ns_add_u32 s55, s55, s18\ns_lshl_b32 s55, s55, 13\ns_add_u32 s55, s55, %d\ns_add_u32 s56, s55, 4096' % G_PM)
    a('s_lshl_b32 s59, s23, 1\ns_lshr_b32 s3, s21, 2\ns_add_u32 s59, s59, s3\ns_mul_i32 s59, s59, 3\ns_add_u32 s59, s59, s18\ns_mul_i32 s59, s59, %d' % (16 * 1152))
    a('s_lshl_b32 s3, s22, 8\ns_add_u32 s59, s59, s3\ns_and_b32 s3, s21, 3\ns_lshl_b32 s3, s3, 6\ns_add_u32 s59, s59, s3')
    xs = [x_[0] for x_ in XB[3:-1]]
    k = 0
    while True:
        nm = xs[k]; k += 1
        run(xb(nm))
        if nm == o['ack']:
            a('s_mov_b64 exec, 15\nbuffer_store_dword v29, v21, s[%d:%d], s53 offen sc1\ns_mov_b64 exec, -1' % (SWS, SWS + 3))
            stH('P flag sent')
        if nm == o['poll0']: break
    assert xs.index(o['ack']) < k
    a('s_mov_b32 s54, %d\ns_mov_b32 s52, %d' % (SPIN, len(xs) - 1 - k))
    a('L_pp:\ns_load_dwordx4 s[84:87], s[66:67], 0 glc')
    a('s_cmp_eq_u32 s52, 0\ns_cbranch_scc1 L_pp1\ns_barrier\ns_sub_u32 s52, s52, 1\nL_pp1:')
    a('s_sub_u32 s54, s54, 1\ns_cbranch_scc1 L_ppok\ns_waitcnt lgkmcnt(0)')
    a('s_and_b64 s[84:85], s[84:85], s[86:87]\ns_and_b32 s84, s84, s85\ns_cbranch_scc0 L_pp\nL_ppok:')
    stH('P flags ok')
    a('s_and_b32 s58, s2, 0xe7\ns_mul_i32 s58, s58, 9216\ns_add_u32 s58, s58, s17\ns_add_u32 s58, s58, %d' % G_P)
    for d in range(4):
        a('s_add_u32 m0, s17, %d' % (L_P + 9216 * d))
        if d: a('s_add_u32 s58, s58, %d' % (8 * 9216))
        for j in range(3): a('buffer_load_dwordx4 v25, s[%d:%d], s58 offen offset:%d sc1 lds' % (SWS, SWS + 3, 1024 * j))
    a('L_pb:\ns_cmp_eq_u32 s52, 0\ns_cbranch_scc1 L_pbd\ns_barrier\ns_sub_u32 s52, s52, 1\ns_branch L_pb\nL_pbd:')
    a('s_waitcnt vmcnt(0)')
    stH('P landed')
    a('s_barrier\ns_barrier')
    a('s_mov_b32 s54, %d' % SPIN)
    reduce('mp', 8, 4, 32, 25, 's59', stH)
    if stamps:
        a('s_waitcnt vmcnt(0)'); stH('end'); stH.flush(7)
    a('L_end:\ns_endpgm\nL_codeend:')
    a(kernel_desc(KN, 256, 256))
    a.lines = hazard.pad(a.lines, False)
    return a.text()
if __name__ == '__main__':
    import json
    name = sys.argv[1] if len(sys.argv) > 1 else 'p8_v5'
    opt = json.loads(sys.argv[2]) if len(sys.argv) > 2 else None
    open(name + '.s', 'w').write(gen(0, opt))
    open(name + '_st.s', 'w').write(gen(1, opt))
    open(name + '_st2.s', 'w').write(gen(2, opt))
```

```python
import sys, math, struct
from asmlib import *
import hazard
from gen_f16 import Cnt, interleave, f2i, v

L_W = 0; L_X0 = 49152; XOFF = [0, 12288, 49152]; L_K = 73728; L_Q = 49152; L_P = 73728; L_F = 110592; L_V = 114688
G_FL = 0x0
G_P = 0x40000
G_PM = 0x400000
G_PO = 0xC00000
SX, SWQ, SK, SV, SWO, SWS, SOUT = 24, 28, 32, 36, 40, 44, 48
SPIN = 1 << 14
MF = 'v_mfma_f32_16x16x32_bf16 %s, %s, %s, %s'

def gen(stamps=0, opt=None):
    o = dict(order='qqqKqqqqqq', win=24, codepf=True, rot='g3', pk=True, lprio=0, afterB8=1, afterBQ=4, ack='w1', poll0='w3', cprio=0, prog=False, x4=True, xo=14, ef=1, split=1, uprio=0, early_flag=True, outsc='', first_half=False, hsbar=5, poll='s', psleep=0, tlb=0, remap=0, oddpf=8, rot2=1, lateat=3, own=1, b8a=0, tm=1, q64=2, stlb=0, qs=5, fine0=1, wqfirst=0, skip=['w0', 'w5'], noself=1)
    if opt: o.update(opt)
    a = Asm()
    a('; @launch grid=(256,1,1) block=(512,1,1) lds=163840')
    a(HEAD); a(kernel_begin(KN))
    def run(seq):
        for x in seq:
            if callable(x): x()
            else: a(x)
    class St:
        def __init__(s, base, n, r0): s.base = base; s.n = n; s.k = 0; s.r0 = r0
        def __call__(s, name='x', lvl=1):
            if (stamps >= lvl and lvl < 2) or stamps == lvl:
                assert s.k < s.n, name
                a('; stamp %d %s' % (s.base + s.k, name))
                a('s_memrealtime s[%d:%d]' % (s.r0 + 2 * s.k, s.r0 + 1 + 2 * s.k)); s.k += 1
        def flush(s, wave):
            if stamps:
                l_ = a.label('L_nst')
                a('s_cmp_lg_u32 s20, %d\ns_cbranch_scc1 %s' % (wave, l_))
                a('s_waitcnt lgkmcnt(0)\nv_mov_b32 v31, 0\ns_lshl_b32 s3, s2, 9\ns_add_u32 s3, s3, %d' % (STAMP_OFF + 8 * s.base))
                for i in range(s.k):
                    a('v_mov_b32 v254, s%d\nv_mov_b32 v255, s%d' % (s.r0 + 2 * i, s.r0 + 1 + 2 * i))
                    a('buffer_store_dwordx2 v[254:255], v31, s[%d:%d], s3 offen offset:%d' % (SWS, SWS + 3, 8 * i))
                a(l_ + ':')
    stC = St(0, 21, 60); stL = St(24, 17, 68); stH = St(44, 6, 32)
    W0 = 's_waitcnt lgkmcnt(0)'
    stC('start')
    a('s_cmp_ge_u32 s2, 256\ns_cbranch_scc1 L_end')
    a('s_load_dwordx2 s[%d:%d], s[0:1], %d' % (SX, SX + 1, SLOT['x']))
    a('s_load_dwordx2 s[%d:%d], s[0:1], %d' % (SWQ, SWQ + 1, SLOT['wq']))
    a('s_load_dwordx4 s[4:7], s[0:1], %d' % SLOT['k'])
    a('s_load_dwordx8 s[8:15], s[0:1], %d' % SLOT['wo'])
    if o['remap'] == 1: a('s_lshr_b32 s3, s2, 2\ns_and_b32 s3, s3, 0x18\ns_xor_b32 s2, s2, s3')
    if o['remap'] == 2: a('s_lshr_b32 s3, s2, 3\ns_and_b32 s3, s3, 0x18\ns_lshl_b32 s21, s2, 2\ns_and_b32 s21, s21, 0xe0\ns_and_b32 s2, s2, 7\ns_or_b32 s2, s2, s3\ns_or_b32 s2, s2, s21')
    if o['remap'] == 3: a('s_xor_b32 s2, s2, 0x18')
    a('v_lshrrev_b32 v1, 6, v0\nv_and_b32 v0, 63, v0\nv_readfirstlane_b32 s20, v1')
    a('s_and_b32 s21, s2, 7\ns_bfe_u32 s22, s2, 0x20003\ns_lshr_b32 s23, s2, 5')
    a('v_and_b32 v1, 15, v0\nv_lshrrev_b32 v2, 4, v0')
    def srd(r, src, n):
        if src is not None: a('s_mov_b32 s%d, s%d\ns_mov_b32 s%d, s%d' % (r, src, r + 1, src + 1))
        a('s_mov_b32 s%d, %d\ns_mov_b32 s%d, 0x20000' % (r + 2, SIZES[n], r + 3))
    H0 = 's_and_b32 s16, s22, 2\ns_add_u32 s16, s16, s22\ns_xor_b32 s16, s16, s23'
    if o['rot2'] == 1: H0 = 's_and_b32 s16, s22, 2\ns_xor_b32 s16, s16, s23\ns_and_b32 s16, s16, 3\ns_lshl_b32 s16, s16, 1'
    if o['rot2'] == 2: H0 = 's_and_b32 s16, s22, 2\ns_lshl_b32 s16, s16, 1\ns_xor_b32 s16, s16, s23'
    if o['rot2'] == 3: H0 = 's_and_b32 s16, s23, 3\ns_lshl_b32 s16, s16, 1\ns_and_b32 s3, s22, 2\ns_add_u32 s3, s3, s22\ns_xor_b32 s16, s16, s3'
    a('s_cmp_lt_u32 s20, 4\ns_cbranch_scc1 L_comp')
    a('s_cmp_gt_u32 s20, 4\ns_cbranch_scc1 L_help')
    def gpoll(name, nw, off):
        sl = ('s_sleep %d\n' % o['psleep']) if o['psleep'] else ''
        if o['poll'] == 's':
            a('L_%s:\n%ss_load_dwordx%d s[84:%d], s[66:67], %d glc\ns_sub_u32 s54, s54, 1\ns_cbranch_scc1 L_%sok\ns_waitcnt lgkmcnt(0)' % (name, sl, nw, 83 + nw, off, name))
            k = nw
            while k > 2:
                k //= 2
                for i in range(0, k, 2): a('s_and_b64 s[%d:%d], s[%d:%d], s[%d:%d]' % (84 + i, 85 + i, 84 + i, 85 + i, 84 + k + i, 85 + k + i))
            a('s_and_b32 s84, s84, s85\ns_cbranch_scc0 L_%s\nL_%sok:' % (name, name))
        else:
            a('v_and_b32 v19, %d, v0\nv_lshlrev_b32 v19, 2, v19' % (nw - 1))
            a('L_%s:\n%sbuffer_load_dword v18, v19, s[%d:%d], s62 offen offset:%d sc1\ns_sub_u32 s54, s54, 1\ns_cbranch_scc1 L_%sok\ns_waitcnt vmcnt(0)' % (name, sl, SWS, SWS + 3, off, name))
            a('v_cmp_ne_u32 vcc, 1, v18\ns_cbranch_vccnz L_%s\nL_%sok:' % (name, name))
    vm = Cnt(a, 'vmcnt', 63)
    XV, WV, OV, KV, DV, VV = 8, 12, 16, 20, 24, 28
    if o['lprio']: a('s_setprio %d' % o['lprio'])
    srd(SX, None, 'x'); srd(SWQ, None, 'wq')
    a('v_lshrrev_b32 v3, 3, v0\nv_and_b32 v4, 7, v0')
    def quad(base, step):
        a('v_xor_b32 v7, 64, v%d\nv_add_u32 v%d, %d, v7' % (base, base + 1, step))
        a('v_add_u32 v%d, %d, v%d\nv_add_u32 v%d, %d, v%d' % (base + 2, 2 * step, base, base + 3, 2 * step, base + 1))
    a('v_mul_u32_u24 v5, 1152, v3\nv_xor_b32 v32, v4, v2\nv_lshl_add_u32 v%d, v32, 4, v5' % XV)
    quad(XV, 8 * 1152 - 1024)
    a('v_lshlrev_b32 v6, 1, v2\nv_xor_b32 v6, v6, v1\nv_lshlrev_b32 v6, 4, v6')
    a('v_lshl_add_u32 v%d, v2, 13, v6' % WV)
    a('v_add_u32 v%d, %d, v%d' % (WV + 1, 4 * 8192 - 1024, WV))
    a('v_xor_b32 v7, 128, v%d\nv_add_u32 v%d, %d, v7\nv_add_u32 v%d, %d, v7' % (WV, WV + 2, 2 * (4 * 8192 - 1024), WV + 3, 3 * (4 * 8192 - 1024)))
    if o['rot'] == 'g3':
        a('s_add_u32 s17, s22, s23\ns_mul_i32 s3, s17, 43\ns_lshr_b32 s3, s3, 7\ns_mul_i32 s3, s3, 3\ns_sub_u32 s17, s17, s3\ns_mul_i32 s17, s17, 3')
    elif o['rot'] == 'g4':
        a('s_add_u32 s17, s22, s23\ns_and_b32 s17, s17, 3\ns_mul_i32 s17, s17, 9\ns_lshr_b32 s17, s17, 2')
    elif o['rot'] == 'g2':
        a('s_add_u32 s17, s22, s23\ns_and_b32 s17, s17, 1\ns_mul_i32 s17, s17, 5')
    elif o['rot'] == 'g9':
        a('s_lshl_b32 s17, s22, 1\ns_add_u32 s17, s17, s23\ns_cmp_ge_u32 s17, 9\ns_cselect_b32 s3, 9, 0\ns_sub_u32 s17, s17, s3')
    else: a('s_mov_b32 s17, 0')
    a('s_mul_i32 s52, s23, 110592')
    a('s_lshl_b32 s53, s21, 10\ns_lshl_b32 s3, s22, 8\ns_add_u32 s53, s53, s3')
    a('s_waitcnt lgkmcnt(0)')
    stL('L kernarg')
    if o['stlb'] >= 1:
        a('s_lshl_b32 s57, s17, 19\ns_add_u32 s57, s57, s53\ns_load_dword s58, s[%d:%d], s57' % (SWQ, SWQ + 1))
    if o['stlb'] >= 2:
        a('s_mov_b32 s57, 0x200000\ns_mov_b32 s59, 0x400000')
        for base in (SWQ, 8, 4, 6): a('s_load_dword s58, s[%d:%d], 0\ns_load_dword s58, s[%d:%d], s57' % (base, base + 1, base, base + 1))
        for base in (SWQ, 8): a('s_load_dword s58, s[%d:%d], s59' % (base, base + 1))
    def group(vreg, n, srd_, lds, tag, adv=None, dyn=None):
        seq = [('s_add_u32 m0, %s, %d' % (dyn, lds) if dyn else 's_mov_b32 m0, %d' % lds) + ('\ns_add_u32 s57, s57, %s' % adv if adv else '')]
        for j in range(n):
            def f(j=j):
                if len(vm.seq) >= 60:
                    a('s_waitcnt vmcnt(44)'); vm.seq = vm.seq[-44:]
                a('buffer_load_dwordx4 v%d, s[%d:%d], s57 offen offset:%d lds' % (vreg + j, srd_, srd_ + 3, 1024 * j)); vm.issue(tag)
            seq.append(f)
        return seq
    def item_q(c):
        st = c % 3; tag = 'n%d' % c
        sx = ['s_lshl_b32 s57, s17, 7\ns_add_u32 s57, s57, s52']
        for t in range(3): sx += group(XV, 4, SX, L_X0 + XOFF[st] + 4096 * t, tag, 32 * 1152 if t else None)
        sw = ['s_lshl_b32 s57, s17, 19\ns_add_u32 s57, s57, s53']
        for t in range(4): sw += group(WV, 4, SWQ, L_W + 16384 * st + 4096 * t, tag + ('b' if c == 8 and t >= 2 and o['b8a'] else ''), 16 * 8192 if t else None)
        seq = sw + sx if o['wqfirst'] else sx + sw
        seq += ['s_add_u32 s17, s17, 1\ns_cmp_eq_u32 s17, 9\ns_cselect_b32 s17, 0, s17']
        return seq
    def item_k():
        seq = ['s_lshr_b32 s3, s22, 1\ns_add_u32 s57, s54, s3\ns_mul_i32 s57, s57, 12288']
        for t in range(6): seq += group(KV, 4, SK, L_K + 4096 * t, 'k', None if t == 0 else (4096 if t != 3 else 16 * 12288 - 8192))
        return seq
    WSLOT = {'w0': 0, 'w1': 1, 'w2': 2, 'w3': 4.5, 'w4': 3, 'w5': 0, 'w6': 1, 'w7': 2, 'o0': 3, 'o1': 0}
    assert L_P == 4.5 * 16384
    NEED = {'w3': 1, 'w4': 2, 'w5': 3, 'w6': 5, 'w7': 6}
    L_O1 = L_P
    STAGES = ['w0', 'w1', 'o0', 'o1', 'w2', 'w3', 'w4', 'w5', 'w6', 'w7']
    def item_v(vp):
        seq = ['s_lshr_b32 s3, s16, 2\ns_xor_b32 s3, s3, %d\ns_add_u32 s57, s54, s3\ns_mul_i32 s57, s57, 12288\ns_xor_b32 s3, s16, %d\ns_and_b32 s3, s3, 1\ns_lshl_b32 s3, s3, 7\ns_add_u32 s57, s57, s3' % (vp >> 1, vp & 1)]
        for b in range(2):
            seq += group(VV, 4, SV, L_V + 12288 * vp + 6144 * b, 'v%d' % vp, 16 * 12288 - 8192 if b else None)
            seq += group(VV, 2, SV, L_V + 12288 * vp + 6144 * b + 4096, 'v%d' % vp, 8192)
        return seq
    def item_w(p):
        lds = int(L_W + 16384 * WSLOT['w%d' % p])
        seq = ['s_xor_b32 s3, s16, %d\ns_mul_i32 s57, s3, %d\ns_add_u32 s57, s57, s60' % (p, 64 * 1152)]
        for t in range(4): seq += group(OV, 4, SWO, lds + 4096 * t, 'w%d' % p, 16 * 1152 if t else None)
        return seq
    def item_o(e):
        lds = L_W + 16384 * WSLOT['o%d' % e]; seq = []
        for hf in range(2):
            seq += ['s_xor_b32 s3, s16, %d\ns_mul_i32 s57, s3, %d\ns_add_u32 s57, s57, s62' % (2 * e + hf, 64 * 1152)]
            for t in range(2): seq += group(DV, 4, SWO, lds + 8192 * hf + 4096 * t, 'o%d' % e, 32 * 1152 if t else None)
        return seq
    def item(nm):
        seq = {'v': item_v, 'w': item_w, 'o': item_o}[nm[0]](int(nm[1]))
        cut = 9 if nm[0] == 'v' else 11
        if nm[2:] == 'a': return seq[:cut] + ['s_mov_b32 s61, s57']
        if nm[2:] == 'b': return ['s_mov_b32 s57, s61'] + seq[cut:]
        return seq
    def late_setup():
        srd(SK, 4, 'k'); srd(SV, 6, 'v'); srd(SWO, 8, 'wo'); srd(SWS, 14, 'ws')
        a('v_mul_u32_u24 v7, 1152, v2\nv_add_u32 v%d, v7, v6\nv_add_u32 v%d, %d, v%d' % (OV, OV + 1, 4 * 1152 - 1024, OV))
        a('v_xor_b32 v6, 128, v6\nv_add_u32 v7, v7, v6\nv_add_u32 v%d, %d, v7\nv_add_u32 v%d, %d, v7' % (OV + 2, 2 * (4 * 1152 - 1024), OV + 3, 3 * (4 * 1152 - 1024)))
        a('v_xor_b32 v6, v1, v2\nv_lshlrev_b32 v6, 4, v6\nv_lshl_add_u32 v%d, v2, 8, v6' % KV)
        for j in range(1, 4): a('v_xor_b32 v%d, %d, v%d' % (KV + j, 64 * j, KV))
        a('v_and_b32 v6, 1, v2\nv_lshlrev_b32 v6, 1, v6\nv_xor_b32 v6, v6, v4\nv_lshl_add_u32 v%d, v6, 4, v5' % DV)
        quad(DV, 8 * 1152 - 1024)
        a('v_lshlrev_b32 v6, 8, v3\nv_lshl_add_u32 v%d, v32, 4, v6' % VV)
        quad(VV, 8 * 256 - 1024)
        a(H0)
        a('s_lshl_b32 s54, s23, 5\ns_lshl_b32 s3, s21, 1\ns_add_u32 s54, s54, s3')
        a('s_mul_i32 s60, s21, %d\ns_add_u32 s62, s60, 1024\ns_lshl_b32 s3, s22, 8\ns_add_u32 s60, s60, s3' % (512 * 1152))
    nq = 0; nbar = 0; since = {}
    def bar():
        nonlocal nbar
        vm.wait('n%d' % nbar)
        if nbar in (1, 2, 3, 8): stL('L at B%d' % nbar, 2)
        if nbar < 4: stL('L at B%d' % nbar, 3)
        a('s_barrier'); nbar += 1
    for t in o['order']:
        if t == 'q':
            while nbar < nq - 1 and nq >= 3: bar()
            seq = item_q(nq)
            if o['first_half'] and nq in (1, 2) and nbar == nq - 1:
                run(seq[:16]); bar(); run(seq[16:])
            else: run(seq)
            sz = 28; nq += 1
            if nq <= 2: stL('L issued q%d' % (nq - 1), 3)
            if nq == o['lateat']: late_setup()
        elif t == 'K': run(item_k()); sz = 24
        elif t == 'V': run(item_v(0)); sz = 12
        for c in list(since): since[c] += sz
        if t == 'q': since[nq - 1] = 0
        while nbar < nq and since[nbar] >= o['win']: bar()
    while nbar < 8: bar()
    pre8 = o.get('pre8') or (['w0'] if 'V' in o['order'] else ['v0', 'w0'])
    seq = [x_ for it in pre8 for x_ in item(it)]
    if o['b8a']:
        run(seq[:-10]); bar(); run(seq[-10:]); vm.wait('n8b'); a('s_barrier')
    else:
        run(seq); bar()
    XB = [('BQ', []), ('BP', ['v0', 'w0']), ('w0', ['v1', 'w1']), ('w1', ['w2']), ('w2', ['w3']), ('w3', ['v2', 'w4']),
          ('w4', ['v3', 'w5']), ('w5', ['w6']), ('w6', ['w7']), ('w7', []), ('O', ['o0', 'o1'])]
    for sk in o['skip']:
        i_ = [x_[0] for x_ in XB].index(sk)
        XB[i_ - 1] = (XB[i_ - 1][0], XB[i_ - 1][1] + XB[i_][1]); del XB[i_]
    XN = [x_[0] for x_ in XB]
    plan = o.get('plan') or {'B8': ['v1', 'w1'], 'BQ': ['w2', 'w3'], 'BP': ['v2', 'w4', 'v3a'], 'w1': ['v3b', 'w5'], 'w2': ['w6'], 'w3': ['w7'], 'w6': ['o0'], 'w7': ['o1']}
    FREEAT = {'w1': 'B8', 'w2': 'BQ', 'w3': 'BQ', 'w4': 'BP', 'w5': 'w1', 'w6': 'w2', 'w7': 'w3', 'o0': 'w5', 'o1': 'w6'}
    ALLN = ['B8', 'BQ', 'BP'] + ['w%d' % i_ for i_ in range(8)] + ['O']
    names = ['B8'] + [x_[0] for x_ in XB]
    issued = set(pre8) | ({'v0'} if 'V' in o['order'] else set())
    last = 'B8'
    for nm, need in XB:
        for it in plan.get(last, []):
            assert it[0] == 'v' or ALLN.index(FREEAT[it[:2]]) <= ALLN.index(last), (it, last)
            run(item(it))
            if it[2:] != 'a': issued.add(it[:2])
        assert all(x_ in issued for x_ in need), (nm, need)
        vm.wait(need)
        stL('L at ' + nm, 2)
        a('s_barrier'); last = nm
    assert len(issued) == 14
    stL('L done')
    stL.flush(4)
    if o['stlb']: a(W0)
    srd(SOUT, 10, 'out')
    a('s_lshl_b32 s52, s21, 1\ns_lshr_b32 s3, s22, 1\ns_add_u32 s52, s52, s3')
    a('s_cmp_ge_u32 s52, 12\ns_cbranch_scc1 L_end')
    a('s_lshl_b32 s3, s2, 9\ns_add_u32 s62, s3, %d\ns_add_u32 s66, s14, s62\ns_addc_u32 s67, s15, 0' % (G_FL + 384))
    a('s_mov_b32 s54, %d' % SPIN)
    a('s_lshl_b32 s3, s23, 1\ns_and_b32 s53, s22, 1\ns_add_u32 s53, s53, s3')
    a('s_mul_i32 s55, s53, 12\ns_add_u32 s55, s55, s52\ns_lshl_b32 s55, s55, 13\ns_add_u32 s55, s55, %d\ns_add_u32 s56, s55, 4096' % G_PO)
    a('s_mul_i32 s58, s52, 43\ns_lshr_b32 s58, s58, 7\ns_mul_i32 s3, s58, 3\ns_sub_u32 s3, s52, s3')
    a('s_mul_i32 s57, s53, 3\ns_add_u32 s57, s57, s3\ns_mul_i32 s57, s57, %d\ns_lshl_b32 s58, s58, 5\ns_add_u32 s57, s57, s58\ns_add_u32 s57, s57, 1024' % (16 * 1152))
    a('v_lshlrev_b32 v6, 3, v0')
    def and16(b):
        for i in range(0, 16, 4): a('s_and_b64 s[%d:%d], s[%d:%d], s[%d:%d]' % (b + i, b + 1 + i, b + i, b + 1 + i, b + 2 + i, b + 3 + i))
        a('s_and_b64 s[%d:%d], s[%d:%d], s[%d:%d]\ns_and_b64 s[%d:%d], s[%d:%d], s[%d:%d]\ns_and_b64 s[%d:%d], s[%d:%d], s[%d:%d]\ns_and_b32 s%d, s%d, s%d' % (
            b, b + 1, b, b + 1, b + 4, b + 5, b + 8, b + 9, b + 8, b + 9, b + 12, b + 13, b, b + 1, b, b + 1, b + 8, b + 9, b, b, b + 1))
    def reduce(name, nsrc, w, off, vaddr, outs, st=None):
        per = nsrc // 2; sz = 256 * w
        def ld(j): return 'buffer_load_dwordx%d %s, v%d, s[%d:%d], s%d offen offset:%d sc1' % (w, v(32 + w * j, w), vaddr, SWS, SWS + 3, 55 + j // per, sz * (j % per))
        if o['x4'] and w == 4: a('v_mul_u32_u24 v3, 1152, v1\nv_lshl_add_u32 v3, v2, 4, v3')
        else: a('v_mul_u32_u24 v3, 1152, v1\nv_lshl_add_u32 v3, v2, 3, v3')
        a('s_mov_b32 s28, 0x00003f80\ns_mov_b32 s29, 0x3f800000')
        if o['prog']:
            a('s_mov_b32 s63, 0')
            a('L_%s:\ns_load_dwordx%d s[84:%d], s[66:67], %d glc\ns_sub_u32 s54, s54, 1\ns_cselect_b32 s30, -1, 0\ns_waitcnt lgkmcnt(0)' % (name, nsrc, 83 + nsrc, off))
            k = nsrc; sh = 1
            while k > 1:
                for i in range(0, nsrc, 2 * sh):
                    if sh <= 4: a('s_lshl%d_add_u32 s%d, s%d, s%d' % (sh, 84 + i, 84 + i + sh, 84 + i))
                    else: a('s_lshl_b32 s%d, s%d, %d\ns_or_b32 s%d, s%d, s%d' % (84 + i + sh, 84 + i + sh, sh, 84 + i, 84 + i, 84 + i + sh))
                k //= 2; sh *= 2
            a('s_or_b32 s84, s84, s30\ns_and_b32 s84, s84, %d\ns_andn2_b32 s85, s84, s63\ns_cbranch_scc0 L_%s\ns_or_b32 s63, s63, s84' % ((1 << nsrc) - 1, name))
            for j in range(nsrc):
                a('s_bitcmp1_b32 s85, %d\ns_cbranch_scc0 L_%s_%d\n%s\nL_%s_%d:' % (j, name, j, ld(j), name, j))
            a('s_cmp_lg_u32 s63, %d\ns_cbranch_scc1 L_%s' % ((1 << nsrc) - 1, name))
            if st: st('flags ok')
            a('s_waitcnt vmcnt(0)')
        else:
            gpoll(name, nsrc, off)
            if st: st('flags ok')
            own = o['own'] and w == 4
            for j in range(nsrc):
                if j or not own: a(ld(j))
            if own: a('ds_read_b128 v[32:35], v27')
        for j in range(nsrc):
            if not o['prog']: a(W0 if own and j == 0 else 's_waitcnt vmcnt(%d)' % (nsrc - 1 - j))
            for t in range(w):
                src = 32 + w * j + t
                if j == 0: a('v_lshlrev_b32 v%d, 16, v%d\nv_and_b32 v%d, 0xffff0000, v%d' % (8 + 2 * t, src, 9 + 2 * t, src))
                elif o.get('dot'): a('v_dot2_f32_bf16 v%d, v%d, s28, v%d\nv_dot2_f32_bf16 v%d, v%d, s29, v%d' % (8 + 2 * t, src, 8 + 2 * t, 9 + 2 * t, src, 9 + 2 * t))
                else: a('v_lshlrev_b32 v16, 16, v%d\nv_and_b32 v17, 0xffff0000, v%d\nv_pk_add_f32 v[%d:%d], v[%d:%d], v[16:17]' % (src, src, 8 + 2 * t, 9 + 2 * t, 8 + 2 * t, 9 + 2 * t))
        for t in range(w): a('v_cvt_pk_bf16_f32 v%d, v%d, v%d' % (8 + t, 8 + 2 * t, 9 + 2 * t))
        if w == 4 and o['x4']:
            a('v_permlane32_swap_b32 v8, v10\nv_permlane32_swap_b32 v9, v11\nv_permlane16_swap_b32 v8, v10\nv_permlane16_swap_b32 v9, v11')
            a('buffer_store_dwordx4 v[8:11], v3, s[%d:%d], %s offen %s' % (SOUT, SOUT + 3, outs, o['outsc']))
        else:
            for t in range(w // 2): a('buffer_store_dwordx2 v[%d:%d], v3, s[%d:%d], %s offen offset:%d %s' % (8 + 2 * t, 9 + 2 * t, SOUT, SOUT + 3, outs, 32 * t, o['outsc']))
    reduce('op', 16, 2, 0, 6, 's57')
    a('s_endpgm')
    a('L_comp:')
    lg = Cnt(a, 'lgkmcnt', 15)
    stC('C entry', 3)
    XA, WA, VA, OVA, OA, QA, FRA, FUA, FV, FC, PFA = 10, 12, 16, 18, 20, 21, 22, 23, 24, 27, 31
    A = 32; F = [80, 108]; B = 136; C = 184; VWO = 232; SP = 244
    KF = B; QF = 80; S = 96; P = SP; KA = 184; UA = 254; QT = 192
    a('v_bfe_u32 v3, v0, 2, 2\nv_and_b32 v4, 3, v0')
    a('s_lshr_b32 s18, s20, 1\ns_and_b32 s17, s20, 1')
    a(H0)
    a('v_lshrrev_b32 v7, 1, v1\nv_xor_b32 v7, v7, v2\nv_lshlrev_b32 v7, 4, v7\nv_lshl_add_u32 v5, v1, 7, v7\nv_xor_b32 v6, 64, v5')
    a('s_mul_i32 s3, s18, 6144\ns_add_u32 s3, s3, %d' % L_X0)
    a('v_add_u32 v%d, s3, v5\nv_add_u32 v%d, s3, v6' % (XA, XA + 1))
    a('s_add_u32 s3, s3, %d\nv_add_u32 v%d, s3, v5\nv_add_u32 v%d, s3, v6' % (L_V - L_X0, VA, VA + 1))
    a('s_and_b32 s3, s22, 1\ns_mul_i32 s3, s3, 6144\ns_add_u32 s3, s3, %d' % L_V)
    a('v_add_u32 v%d, s3, v5\nv_add_u32 v%d, s3, v6' % (OVA, OVA + 1))
    a('v_and_b32 v7, 1, v2\nv_lshl_add_u32 v7, v7, 2, v3\ns_lshl_b32 s3, s17, 2\nv_xor_b32 v7, s3, v7')
    a('v_lshl_add_u32 v5, v2, 3, v3\nv_lshlrev_b32 v8, 8, v5\nv_lshl_add_u32 v8, v4, 3, v8')
    assert L_W == 0
    for t in range(4): a('v_xor_b32 v9, %d, v7\nv_lshl_add_u32 v%d, v9, 5, v8' % (t, WA + t))
    a('v_and_b32 v7, 1, v2\nv_lshrrev_b32 v8, 1, v3\nv_lshl_add_u32 v7, v7, 1, v8\nv_xor_b32 v7, s20, v7')
    a('v_lshlrev_b32 v8, 7, v5\nv_lshl_add_u32 v8, v4, 3, v8\nv_lshl_add_u32 v%d, v7, 5, v8' % OA)
    a('s_mul_i32 s3, s18, 12288\ns_lshl_b32 s19, s17, 11\ns_add_u32 s3, s3, s19\ns_add_u32 s3, s3, %d' % L_Q)
    a('v_lshlrev_b32 v25, 4, v0\nv_lshlrev_b32 v26, 3, v0\nv_add_u32 v%d, s3, v%d' % (QA, 26 if o['q64'] else 25))
    a('s_and_b32 s59, s2, 0xf8\ns_lshl_b32 s48, s20, 1\ns_add_u32 s59, s59, s48\ns_mul_i32 s56, s59, 24576\ns_add_u32 s56, s56, %d\ns_add_u32 s57, s56, 24576' % G_PM)
    a('s_xor_b32 s48, s48, s21\ns_lshl_b32 s3, s48, 10\ns_add_u32 s56, s56, s3\ns_xor_b32 s3, s3, 1024\ns_add_u32 s57, s57, s3')
    if o['own']:
        a('s_cmp_eq_u32 s48, 0\ns_cselect_b32 s56, 0x7ff00000, s56\ns_cmp_eq_u32 s48, 1\ns_cselect_b32 s57, 0x7ff00000, s57\nv_add_u32 v27, %d, v25' % L_F)
    a('s_lshl_b32 s3, s23, 1\ns_and_b32 s54, s22, 1\ns_add_u32 s3, s3, s54\ns_mul_i32 s3, s3, 12\ns_mul_i32 s54, s20, 3\ns_add_u32 s3, s3, s54\ns_lshl_b32 s58, s3, 13')
    a('s_lshl_b32 s3, s21, 1\ns_lshr_b32 s55, s22, 1\ns_add_u32 s55, s55, s3\ns_lshl_b32 s3, s55, 9\ns_add_u32 s58, s58, s3\ns_add_u32 s58, s58, %d' % G_PO)
    a('v_add_u32 v7, s59, v0\nv_lshlrev_b32 v7, 9, v7\ns_lshl_b32 s3, s21, 2\ns_add_u32 s3, s3, %d\nv_add_u32 v7, s3, v7' % (G_FL + 32))
    a('s_sub_u32 s54, s54, 2\nv_add_u32 v8, s54, v0\nv_lshrrev_b32 v9, 1, v8\nv_and_b32 v8, 1, v8\nv_lshl_add_u32 v8, v8, 4, v9\ns_and_b32 s3, s2, 0xe8\nv_add_u32 v8, s3, v8\nv_lshlrev_b32 v8, 9, v8')
    a('s_lshl_b32 s3, s55, 2\ns_add_u32 s3, s3, %d\nv_add_u32 v8, s3, v8\nv_mov_b32 v9, 0x7ff00000' % (G_FL + 128))
    a('v_cmp_gt_u32 vcc, 5, v0\nv_cndmask_b32 v8, v9, v8, vcc\nv_cmp_gt_u32 vcc, 2, v0\nv_cndmask_b32 v30, v8, v7, vcc\nv_cndmask_b32 v28, v9, v7, vcc\nv_mov_b32 v29, 1')
    a('s_mov_b32 s52, s20')
    def unit_setup():
        a('s_cmp_ge_u32 s52, 3\ns_cselect_b32 s3, 12288, 0\ns_add_u32 s3, s3, %d' % L_K)
        a('v_lshrrev_b32 v7, 1, v2\nv_xor_b32 v7, v1, v7\nv_lshlrev_b32 v7, 4, v7\nv_lshl_add_u32 v7, v1, 8, v7\nv_and_b32 v8, 1, v2\nv_lshl_add_u32 v7, v8, 3, v7')
        for j in range(8): a('v_xor_b32 v8, %d, v7\nv_add_u32 v%d, s3, v8' % (32 * j, KA + j))
        a('s_lshl_b32 s3, s52, 12\ns_add_u32 s3, s3, %d\nv_add_u32 v%d, s3, v%d' % (L_Q, UA, 26 if o['q64'] else 25))
        a('s_mov_b32 s50, 0x%x\ns_mov_b32 s51, s50' % f2i(128 ** -0.5 * math.log2(math.e)))
        a('s_mul_i32 s3, s52, 1536\ns_mul_i32 s49, s2, 9216\ns_add_u32 s49, s49, s3\ns_add_u32 s49, s49, %d' % G_P)
    def k_reads(): return ['ds_read_b64 %s, v%d offset:%d' % (v(KF + 16 * kt + 2 * j, 2), KA + j, 4096 * kt) for j in range(8) for kt in range(3)]
    unit_setup()
    a(W0)
    srd(SWS, 14, 'ws')
    def wreads(st, off, wa=WA): return ['ds_read_b64_tr_b16 %s, v%d offset:%d' % (v(st + 4 * t + 2 * hh, 2), wa + t, off + 1024 * hh) for t in range(4) for hh in range(2)]
    def reads_A(n, ks, st=None):
        st = st or F[ks]
        return ['ds_read_b128 %s, v%d offset:%d' % (v(st + 16 + 4 * q, 4), XA + ks, XOFF[n % 3] + 2048 * q) for q in range(3)] + wreads(st, 16384 * (n % 3) + 8192 * ks)
    ORD = [(t, q if t % 2 == 0 else 2 - q) for t in range(4) for q in range(3)]
    def mfma(acc, ks, first, swap, od=None):
        out = []
        for t, q in od or ORD:
            d = v(acc + 4 * (3 * t + q), 4); x = v(F[ks] + 4 * t, 4); y = v(F[ks] + 16 + 4 * q, 4)
            if swap: x, y = y, x
            out.append(MF % (d, x, y, '0' if first else d))
        return out
    def cvt(d, s_): return ['v_cvt_pk_bf16_f32 v%d, v%d, v%d' % (d, s_, s_ + 1), 'v_cvt_pk_bf16_f32 v%d, v%d, v%d' % (d + 1, s_ + 2, s_ + 3)]
    stC('C at B0', 3)
    a('s_barrier')
    stC('B0')
    run(reads_A(0, 0))
    for n in range(9):
        if n == 7 and o['tm']:
            assert not o['b8a']
            F2 = 204; QT = F[1]
            a(W0)
            run(interleave(mfma(A, 0, False, False), reads_A(7, 1), 0, 2))
            a(W0); a('s_barrier'); stC('B8')
            r0, r1 = reads_A(8, 0), reads_A(8, 1, F2)
            rr = []
            for idx in ([0], [3, 4], [5, 6], [1], [2], [7, 8], [9, 10]):
                rr += [r0[i] for i in idx] + [r1[i] for i in idx]
            run(interleave(mfma(A, 1, False, False), rr, 0, 2))
            stC('end 7,1', 3)
            m = []; qw = []
            for i, (tp, q) in enumerate([(tp, q) for tp in range(2) for q in range(3)]):
                for u in range(2):
                    t = 2 * tp + u; d = v(A + 4 * (3 * t + q), 4)
                    for st in (F[0], F2): m.append(MF % (d, v(st + 4 * t, 4), v(st + 16 + 4 * q, 4), d))
                    qw += cvt(QT + 4 * i + 2 * u, A + 4 * (3 * t + q))
                    if o['q64']: qw[-1] += '\nds_write_b64 v%d, %s offset:%d' % (QA, v(QT + 4 * i + 2 * u, 2), q * 4096 + tp * 1024 + u * 512)
                if not o['q64']: qw[-1] += '\nds_write_b128 v%d, %s offset:%d' % (QA, v(QT + 4 * i, 4), q * 4096 + tp * 1024)
            m[0] = 's_waitcnt lgkmcnt(12)\n' + m[0]; m[4] = 's_waitcnt lgkmcnt(8)\n' + m[4]; m[8] = ('s_waitcnt lgkmcnt(%d)' % (1 if o['q64'] and o['qs'] <= 6 else 0)) + '\n' + m[8]
            run(interleave(m, qw, o['qs'], 1))
            stC('Q issued', 3)
            if stamps == 3: a(W0); stC('Q done', 3)
            break
        if n == 8: stC('end 7,1', 3)
        a(W0)
        run(interleave(mfma(A, 0, n == 0, False), (['s_barrier'] if n == 8 and o['b8a'] else []) + reads_A(n, 1), 0, 2))
        if n < 8:
            a(W0)
            a('s_barrier')
            if n == 7: stC('B8')
            run(interleave(mfma(A, 1, False, False), reads_A(n + 1, 0) + (k_reads()[8 * (n - 4):8 * (n - 3)] if 4 <= n < 7 else []), 0, 2))
        else:
            stC('end 8,0', 3)
            a(W0)
            od = [(2 * tp + u, q) for tp in range(2) for q in range(3) for u in range(2)]
            qw = []
            for i, (t, q) in enumerate(od):
                qw += cvt(QT + 2 * i, A + 4 * (3 * t + q))
                if t & 1: qw[-1] += '\nds_write_b128 v%d, %s offset:%d' % (QA, v(QT + 2 * i - 2, 4), q * 4096 + (t >> 1) * 1024)
            run(interleave(mfma(A, 1, False, False, od), qw, 6, 2))
            stC('Q issued', 3)
            if stamps == 3: a(W0); stC('Q done', 3)
    if o['uprio']: a('s_setprio %d' % o['uprio'])
    a('L_unit:')
    a(W0)
    a('s_barrier')
    stC('BQ')
    for kk in range(4):
        if o['q64'] == 1: a('ds_read2st64_b64 %s, v%d offset0:%d offset1:%d' % (v(QF + 4 * kk, 4), UA, 2 * kk, 2 * kk + 1))
        elif o['q64'] == 2: a('ds_read_b64 %s, v%d offset:%d\nds_read_b64 %s, v%d offset:%d' % (v(QF + 4 * kk, 2), UA, 1024 * kk, v(QF + 4 * kk + 2, 2), UA, 1024 * kk + 512))
        else: a('ds_read_b128 %s, v%d offset:%d' % (v(QF + 4 * kk, 4), UA, 1024 * kk))
    for kk in range(4):
        a('s_waitcnt lgkmcnt(%d)' % ((3 - kk) * (2 if o['q64'] == 2 else 1)))
        for kt in range(3): a(MF % (v(S + 4 * kt, 4), v(KF + 16 * kt + 4 * kk, 4), v(QF + 4 * kk, 4), v(S + 4 * kt, 4) if kk else '0'))
    x, y = 6, 7
    a('v_max3_f32 v6, v%d, v%d, v%d\nv_max3_f32 v7, v%d, v%d, v%d' % (S, S + 1, S + 2, S + 3, S + 4, S + 5))
    a('v_max3_f32 v6, v6, v%d, v%d\nv_max3_f32 v7, v7, v%d, v%d\nv_max3_f32 v6, v6, v%d, v%d' % (S + 6, S + 7, S + 8, S + 9, S + 10, S + 11))
    def xl(op, first):
        a(first)
        a('v_permlane16_swap_b32 v6, v7\n%s v8, v6, v7\n%s v7, v6, v7\nv_permlane32_swap_b32 v8, v7\n%s v6, v8, v7' % (op, op, op))
    xl('v_max_f32', 'v_max_f32 v6, v6, v7\nv_mov_b32 v7, v6')
    a('v_mul_f32 v6, s50, v6')
    if o['pk']:
        for t in range(0, 12, 2): a('v_pk_fma_f32 v[%d:%d], v[%d:%d], s[50:51], v[6:7] op_sel_hi:[1,1,0] neg_lo:[0,0,1] neg_hi:[0,0,1]' % (S + t, S + t + 1, S + t, S + t + 1))
    else:
        for t in range(12): a('v_fma_f32 v%d, v%d, s50, -v6' % (S + t, S + t))
    for t in range(12): a('v_exp_f32 v%d, v%d' % (S + t, S + t))
    if o['pk']:
        a('v_pk_add_f32 v[6:7], v[%d:%d], v[%d:%d]\nv_pk_add_f32 v[4:5], v[%d:%d], v[%d:%d]' % (S, S + 1, S + 2, S + 3, S + 4, S + 5, S + 6, S + 7))
        a('v_pk_add_f32 v[6:7], v[6:7], v[%d:%d]\nv_pk_add_f32 v[4:5], v[4:5], v[%d:%d]\nv_pk_add_f32 v[4:5], v[4:5], v[6:7]' % (S + 8, S + 9, S + 10, S + 11))
    else:
        a('v_add_f32 v4, v%d, v%d\nv_add_f32 v5, v%d, v%d' % (S, S + 1, S + 2, S + 3))
        for t in range(4, 12, 2): a('v_add_f32 v4, v4, v%d\nv_add_f32 v5, v5, v%d' % (S + t, S + t + 1))
    xl('v_add_f32', 'v_add_f32 v6, v4, v5\nv_add_f32 v7, v4, v5')
    a('v_rcp_f32 v6, v6')
    if o['pk']:
        for t in range(0, 12, 2): a('v_pk_mul_f32 v[%d:%d], v[%d:%d], v[6:7] op_sel_hi:[1,0]' % (S + t, S + t + 1, S + t, S + t + 1))
    else:
        for t in range(12): a('v_mul_f32 v%d, v%d, v6' % (S + t, S + t))
    for t in range(6): a('v_cvt_pk_bf16_f32 v%d, v%d, v%d' % (P + t, S + 2 * t, S + 2 * t + 1))
    a('buffer_store_dwordx4 %s, v25, s[%d:%d], s49 offen sc1' % (v(P, 4), SWS, SWS + 3))
    a('buffer_store_dwordx2 %s, v26, s[%d:%d], s49 offen offset:1024 sc1' % (v(P + 4, 2), SWS, SWS + 3))
    stC('C at BP')
    a('s_barrier')
    a('s_cmp_ge_u32 s20, 4\ns_cbranch_scc1 L_help2')
    if o['cprio'] or o['uprio']: a('s_setprio %d' % o['cprio'])
    stC('BP')
    def ds(txt, tag):
        def f(): a(txt); lg.issue(tag)
        return f
    def step(m, dsops, extra=(), waits=None, pre=(), xstart=0, dstart=0):
        n = len(m); per = [[] for _ in range(n)]
        for i, x_ in enumerate(pre): per[i].append(x_)
        nd = n - dstart
        for i, x_ in enumerate(dsops): per[dstart + (i if len(dsops) <= nd else i * nd // len(dsops))].append(x_)
        nx = n - xstart
        for i, x_ in enumerate(extra): per[xstart + (i * nx // len(extra))].append(x_)
        for i in range(n):
            if waits and i in waits: lg.wait(waits[i])
            a(m[i]); run(per[i])
    def reads_W(p, ks):
        vp = (p >> 2) * 2 + (p & 1); tg = 'w%d%d' % (p, ks)
        r = ['ds_read_b128 %s, v%d offset:%d' % (v(F[ks] + 16 + 4 * q, 4), VA + ks, 12288 * vp + 2048 * q) for q in range(3)] + (wreads(F[ks], 16384 * WSLOT['w%d' % p] + 8192 * ks) if p != 3 else wreads(F[ks], 8192 * ks, 250))
        if (p, ks) == (0, 0) and o['fine0']:
            r = [r[0], r[3], r[4], r[1], r[2]] + r[5:]
            return [ds(x_, 'f%d' % i) for i, x_ in enumerate(r)]
        return [ds(x_, tg + ('lo' if i < 7 else 'hi')) for i, x_ in enumerate(r)]
    def wW(p, ks, more=()): return {0: 'f2', 1: 'f3', 2: 'f4', 3: 'f6', 6: 'f8', 9: 'f10'} if (p, ks) == (0, 0) and o['fine0'] else {0: ['w%d%dlo' % (p, ks)] + list(more), 6: ['w%d%dhi' % (p, ks)]}
    def vwpos(base, i, kt): return base + ([0, 2, 4][kt] if i % 2 == 0 else [8, 10, 6][kt])
    HACC = [B, A, B, A]; HDST = [C, C, B, B]
    def cvt_W(i): return [x_ for t in range(4) for kt in range(3) for x_ in cvt(vwpos(HDST[i] + 12 * t, i, kt), HACC[i] + 4 * (3 * t + kt))]
    def xb(nm): return [('s_waitcnt vmcnt(0)\n' if nm == o['ack'] else '') + 's_barrier'] if nm in XN else []
    def ins(lst, i, x_): return lst[:i] + [x_] + lst[i:]
    OS = [[80, 84, 88, 92, 96], [48, 52, 56, 60, 64], [108, 112, 116, 120, 124], [100, 104, 128, 132, 68]]; OACC = [[232, 236, 240], [244, 248, 252]]
    def rdO(kq):
        tg = 'os%d' % kq
        return [ds('ds_read_b128 %s, v%d offset:%d' % (v(OS[kq][kt], 4), OVA + (kq & 1), 12288 * (kq >> 1) + 2048 * kt), tg) for kt in range(3)] + \
               [ds('ds_read_b64_tr_b16 %s, v%d offset:%d' % (v(OS[kq][3 + e] + 2 * hh, 2), OA, 16384 * WSLOT['o%d' % e] + 4096 * kq + 512 * hh), tg) for e in range(2) for hh in range(2)]
    mfma_O = [MF % (v(OACC[e][kt], 4), v(OS[kq][kt], 4), v(OS[kq][3 + e], 4), v(OACC[e][kt], 4) if kq else '0') for kq in range(4) for e in range(2) for kt in range(3)]
    cvt_O = [x_ for e in range(2) for kt in range(3) for x_ in cvt(vwpos(VWO, e, kt), OACC[e][kt])]
    PFULL = [10, 11, 22, 23]; PHALF = [4, 5, 6, 7]; POF = [24, 21]; POH = [8, 9]
    padr = []
    for i in range(4):
        padr.append('s_xor_b32 s3, s53, %d\ns_mul_i32 s3, s3, 9216\ns_add_u32 s3, s3, s55' % i)
        padr.append('v_add_u32 v%d, s3, v25' % PFULL[i]); padr.append('v_add_u32 v%d, s3, v26' % PHALF[i])
        if i < 2:
            padr.append('s_add_u32 s3, s3, s54\nv_add_u32 v%d, s3, v25' % POF[i]); padr.append('v_add_u32 v%d, s3, v26' % POH[i])
    a('s_mul_i32 s55, s18, 4608\ns_and_b32 s54, s22, 1\ns_mul_i32 s54, s54, 4608\ns_sub_u32 s54, s54, s55\ns_add_u32 s55, s55, %d\ns_lshr_b32 s53, s16, 1' % L_P)
    def preads(dst, fa, ha, qt, tag):
        off = 1536 * qt
        return [ds('ds_read_b128 %s, v%d offset:%d' % (v(dst[0], 4), fa[0], off), tag),
                ds('ds_read_b64 %s, v%d offset:%d' % (v(dst[1], 2), ha[0], off + 1024), tag),
                ds('ds_read_b64 %s, v%d offset:%d' % (v(dst[1] + 2, 2), ha[1], off + 1024), tag),
                ds('ds_read_b128 %s, v%d offset:%d' % (v(dst[2], 4), fa[1], off), tag)]
    PB = [[80 + 4 * k for k in range(6)], [108 + 4 * k for k in range(6)], [80, 84, 88, 92, 96, 72]]
    def reads_F(qt): return preads(PB[qt][:3], PFULL[:2], PHALF[:2], qt, 'p%da' % qt) + preads(PB[qt][3:], PFULL[2:], PHALF[2:], qt, 'p%db' % qt)
    run(reads_W(0, 0))
    for p in range(8):
        i = p >> 1
        if i == 0: ex0, ex1 = (padr[:5], padr[5:10]) if p == 0 else (padr[10:], ['v_add_u32 v%d, %d, v%d' % (250 + t, L_P, WA + t) for t in range(4)])
        else:
            cv = cvt_W(i - 1)
            ex0, ex1 = (cv[:6], cv[6:12]) if p % 2 == 0 else (cv[12:18], cv[18:])
        step(mfma(HACC[i], 0, p % 2 == 0, True), reads_W(p, 1), extra=ex0, xstart=4 if p % 2 == 0 else 0, waits=wW(p, 0))
        step(mfma(HACC[i], 1, False, True), reads_W(p + 1, 0) if p < 7 else reads_F(0), extra=ex1, xstart=1, waits=wW(p, 1), pre=xb('w%d' % p))
        stC('s%d' % p if p < 7 else 'VW end', 2 if p < 7 else 1)
    RACC = [[244, 248, 252, 104], [32, 36, 40, 44], [32, 36, 40, 44]]
    PK = [76, 12]; OP = [[48, 52, 56], [60, 64, 108], [112, 116, 120]]
    def fm(qt, t, k): return MF % (v(RACC[qt][t], 4), v([C, B][k // 3] + 12 * t + 4 * (k % 3), 4), v(PB[qt][k], 4), v(RACC[qt][t], 4) if k else '0')
    def store_F(qt, h):
        l_ = 'L_own%d%d' % (qt, h)
        ownw = '\ns_cmp_lg_u32 s48, %d\ns_cbranch_scc1 %s\nds_write_b128 v27, %s offset:%d\n%s:' % (h, l_, v(PK[h], 4), 1024 * qt, l_) if o['own'] else ''
        return cvt(PK[h], RACC[qt][2 * h]) + cvt(PK[h] + 2, RACC[qt][2 * h + 1]) + \
               ['buffer_store_dwordx4 %s, v25, s[%d:%d], s%d offen sc1\ns_add_u32 s%d, s%d, 8192' % (v(PK[h], 4), SWS, SWS + 3, 56 + h, 56 + h, 56 + h) + ownw]
    def flag(reg, off): return 'buffer_store_dword v29, v%d, s[%d:%d], 0 offen offset:%d sc1' % (reg, SWS, SWS + 3, off)
    m = [fm(0, t, k) for k in range(6) for t in range(4)]
    c3 = cvt_W(3)
    c3 = [c3[6 * t + j] for t in range(4) for j in (4, 5)] + [c3[6 * t + j] for t in range(4) for j in range(4)]
    step(m[:19], reads_F(1), extra=c3, xstart=3, waits={0: ['p0a'], 11: ['p0b']})
    step(m[19:], [])
    stC('R0', 2)
    xo = o['xo']
    m = [fm(1, t, k) for t in range(4) for k in range(6)]
    step(m[:xo], [], extra=store_F(0, 0) + store_F(0, 1), xstart=3, waits={0: ['p1a'], 3: ['p1b']})
    seq = rdO(0) + rdO(1); k1 = min(14, 24 - xo)
    step(m[xo:], seq[:k1], extra=store_F(1, 0), xstart=max(0, 18 - xo), pre=xb('O'))
    stC('R1', 2)
    ef0 = ['s_waitcnt vmcnt(2)\n' + flag(28, 0)] if o['ef'] >= 1 else []
    step(mfma_O[:15], seq[k1:] + rdO(2) + rdO(3), extra=store_F(1, 1), xstart=4, waits={0: ['os0'], 6: ['os1'], 12: ['os2']})
    step(mfma_O[15:], reads_F(2), waits={3: ['os3']}, extra=ef0, xstart=8)
    stC('O', 2)
    m = [fm(2, t, k) for t in range(4) for k in range(6)]
    op = [x_ for qt in range(3) for x_ in preads(OP[qt], POF, POH, qt, 'po%d' % qt)]
    step(m[:12], op, extra=cvt_O, xstart=2, waits={0: ['p2a'], 3: ['p2b']})
    mo = [MF % (v(SP + 4 * qt, 4), v(VWO + 4 * k, 4), v(OP[qt][k], 4), v(SP + 4 * qt, 4) if k else '0') for qt in range(3) for k in range(3)]
    step(mo, [], extra=store_F(2, 0), xstart=3, waits={0: ['po1'], 6: ['po2']})
    oddst = []
    for qt in range(3):
        oddst += cvt(VWO + 2 * qt, SP + 4 * qt) + ['buffer_store_dwordx2 %s, v26, s[%d:%d], s58 offen sc1\ns_add_u32 s58, s58, 8192' % (v(VWO + 2 * qt, 2), SWS, SWS + 3)]
    step(m[12:], [], extra=oddst, xstart=1)
    if o['ef'] >= 2: a('s_waitcnt vmcnt(5)'); a(flag(28, 128))
    run(store_F(2, 1))
    stC('final end')
    if o['own']: a(W0)
    if o['ef'] == 0: a('s_waitcnt vmcnt(7)'); a(flag(28, 0))
    if o['ef'] < 2: a('s_waitcnt vmcnt(6)'); a(flag(28, 128))
    if o.get('split'):
        a('s_waitcnt vmcnt(%d)' % [3, 2, 2][o['ef']]); a('s_mov_b64 exec, 29'); a(flag(30, 256))
        a('s_waitcnt vmcnt(%d)' % [3, 2, 1][o['ef']]); a('s_mov_b64 exec, 2'); a(flag(30, 256)); a('s_mov_b64 exec, -1')
    else:
        a('s_waitcnt vmcnt(%d)' % [2, 1, 0][o['ef']]); a(flag(30, 256))
    stC('flags sent')
    stC.flush(0)
    a('s_endpgm')
    a('L_help:')
    a('s_sub_u32 s18, s20, 5\ns_sub_u32 s52, s20, 1')
    a('v_lshlrev_b32 v25, 4, v0\nv_lshlrev_b32 v26, 3, v0')
    a('v_mov_b32 v12, 0\nv_mov_b32 v13, 0\nv_mov_b32 v14, 0\nv_mov_b32 v15, 0\nv_mov_b32 v29, 1\nv_mov_b32 v28, 0x7ff00000\nv_mov_b32 v30, v28')
    a(W0)
    srd(SWS, 14, 'ws')
    a('s_cmp_eq_u32 s20, 7\ns_cbranch_scc1 L_h2')
    a('s_cmp_eq_u32 s20, 5\ns_cbranch_scc1 L_h0')
    a('s_cmp_ge_u32 s2, 32\ns_cbranch_scc1 L_h0')
    a('s_lshl_b32 s3, s2, 12')
    assert G_FL == 0
    for j in range(4): a('buffer_store_dwordx4 v[12:15], v25, s[%d:%d], s3 offen offset:%d sc1' % (SWS, SWS + 3, 1024 * j))
    a('s_lshl_b32 s3, s2, 2\nv_mov_b32 v16, s3\ns_waitcnt vmcnt(0)')
    a('s_mov_b64 exec, 1\nglobal_store_dword v16, v29, s[12:13] sc1\ns_mov_b64 exec, -1')
    a('L_h0:')
    unit_setup()
    for c in range(9 + o['b8a']):
        a('s_barrier')
        if c == 4: run(k_reads())
    a('s_branch L_unit')
    a('L_h2:')
    if o['codepf']:
        a('s_getpc_b64 s[66:67]\nL_pc:\ns_sub_u32 s66, s66, L_pc-%s\ns_subb_u32 s67, s67, 0' % KN)
        a('s_lshr_b32 s3, s2, 3\ns_lshl_b32 s3, s3, 7\nv_lshlrev_b32 v7, 12, v0\nv_add_u32 v7, s3, v7')
        a('v_cmp_gt_u32 vcc, L_codeend-%s, v7\ns_and_saveexec_b64 s[64:65], vcc' % KN)
        a('global_load_dword v31, v7, s[66:67]')
        a('s_mov_b64 exec, s[64:65]')
    def tlb_touch():
        a('s_lshl_b32 s3, s2, 7\nv_lshlrev_b32 v7, 21, v0\nv_add_u32 v7, s3, v7\nv_add_u32 v8, 0x1f0000, v7')
        a('s_mov_b64 exec, 0x7f\nglobal_load_dword v32, v8, s[14:15]')
        if o['tlb'] in (1, 3):
            a('s_mov_b64 exec, 7\nglobal_load_dword v33, v7, s[8:9]')
            a('s_mov_b64 exec, 3\nglobal_load_dword v34, v7, s[4:5]\nglobal_load_dword v35, v7, s[6:7]')
        a('s_mov_b64 exec, 1\nglobal_load_dword v36, v7, s[10:11]\ns_mov_b64 exec, -1')
    if o['tlb'] in (1, 2): tlb_touch()
    hs = 's_load_dwordx16 s[84:99], s[12:13], 0%s\ns_load_dwordx16 s[28:43], s[12:13], 64%s'
    for c in range(10 + o['b8a']):
        a('s_barrier')
        if c == o['hsbar']: a(hs % ('', ''))
        if c == o['oddpf']:
            a('s_lshl_b32 s3, s21, 5\ns_lshr_b32 s17, s2, 3\ns_add_u32 s3, s3, s17\ns_mul_i32 s3, s3, %d\ns_add_u32 s3, s3, 1024' % (16 * 1152))
            a('v_mul_u32_u24 v7, 1152, v1\nv_add_u32 v7, s3, v7\ns_mov_b64 exec, 0xffff\nglobal_load_dword v37, v7, s[8:9]\ns_mov_b64 exec, -1')
        if c == 0 and o['tlb'] == 3: tlb_touch()
        if c == 8 and o['tlb'] == 4: tlb_touch()
    a('s_mov_b32 s54, %d\nL_hs:\ns_waitcnt lgkmcnt(0)' % SPIN)
    and16(84); and16(28); a('s_and_b32 s84, s84, s28')
    a('s_cbranch_scc1 L_hsok\ns_sub_u32 s54, s54, 1\ns_cbranch_scc1 L_hsok'); a(hs % (' glc', ' glc')); a('s_branch L_hs\nL_hsok:')
    a('s_barrier')
    a('L_help2:')
    run(xb('w0'))
    a('s_mul_i32 s17, s18, 3072')
    srd(SOUT, 10, 'out')
    a('s_lshl_b32 s3, s2, 9\ns_lshl_b32 s53, s18, 7\ns_add_u32 s62, s3, s53\ns_add_u32 s66, s14, s62\ns_addc_u32 s67, s15, 0')
    a('s_and_b32 s3, s2, 0xe7\ns_lshl_b32 s3, s3, 9\ns_add_u32 s53, s53, s3\ns_lshl_b32 s3, s22, 2\ns_add_u32 s53, s53, s3\nv_lshlrev_b32 v21, 12, v0')
    a('s_mul_i32 s55, s2, 3\ns_add_u32 s55, s55, s18\ns_lshl_b32 s55, s55, 13\ns_add_u32 s55, s55, %d\ns_add_u32 s56, s55, 4096' % G_PM)
    a('s_lshl_b32 s59, s23, 1\ns_lshr_b32 s3, s21, 2\ns_add_u32 s59, s59, s3\ns_mul_i32 s59, s59, 3\ns_add_u32 s59, s59, s18\ns_mul_i32 s59, s59, %d' % (16 * 1152))
    a('s_lshl_b32 s3, s22, 8\ns_add_u32 s59, s59, s3\ns_and_b32 s3, s21, 3\ns_lshl_b32 s3, s3, 6\ns_add_u32 s59, s59, s3')
    xs = [x_ for x_ in XN[2:-1] if x_ != 'w0']
    k = 0
    while True:
        nm = xs[k]; k += 1
        run(xb(nm))
        if nm == o['ack']:
            a('s_mov_b64 exec, 15' + ('\ns_bitset0_b64 exec, s22' if o['noself'] else '') + '\nbuffer_store_dword v29, v21, s[%d:%d], s53 offen sc1\ns_mov_b64 exec, -1' % (SWS, SWS + 3))
            stH('P flag sent')
        if nm == o['poll0']: break
    assert xs.index(o['ack']) < k and ALLN.index(xs[k]) >= ALLN.index('w4') and k < len(xs) - 1
    a('s_mov_b32 s54, %d\ns_mov_b32 s52, %d' % (SPIN, len(xs) - 1 - k))
    a('L_pp:\ns_load_dwordx4 s[84:87], s[66:67], 0 glc')
    a('s_cmp_eq_u32 s52, 0\ns_cbranch_scc1 L_pp1\ns_barrier\ns_sub_u32 s52, s52, 1\nL_pp1:')
    a('s_sub_u32 s54, s54, 1\ns_cbranch_scc1 L_ppok\ns_waitcnt lgkmcnt(0)')
    a('s_add_u32 s84, s84, s85\ns_add_u32 s86, s86, s87\ns_add_u32 s84, s84, s86\ns_cmp_eq_u32 s84, %d\ns_cbranch_scc0 L_pp\nL_ppok:' % (4 - o['noself']))
    stH('P flags ok')
    a('s_and_b32 s58, s2, 0xe7\ns_mul_i32 s58, s58, 9216\ns_add_u32 s58, s58, s17\ns_add_u32 s58, s58, %d' % G_P)
    for d in range(4):
        a('s_add_u32 m0, s17, %d' % (L_P + 9216 * d))
        if d: a('s_add_u32 s58, s58, %d' % (8 * 9216))
        for j in range(3): a('buffer_load_dwordx4 v25, s[%d:%d], s58 offen offset:%d sc1 lds' % (SWS, SWS + 3, 1024 * j))
    a('L_pb:\ns_cmp_eq_u32 s52, 0\ns_cbranch_scc1 L_pbd\ns_barrier\ns_sub_u32 s52, s52, 1\ns_branch L_pb\nL_pbd:')
    a('s_waitcnt vmcnt(0)')
    stH('P landed')
    a('s_barrier\ns_barrier')
    a('s_mov_b32 s54, %d' % SPIN)
    a('s_lshl_b32 s3, s18, 10\ns_add_u32 s3, s3, %d\nv_add_u32 v27, s3, v25' % L_F)
    reduce('mp', 8, 4, 32, 25, 's59', stH)
    if stamps:
        a('s_waitcnt vmcnt(0)'); stH('end'); stH.flush(7)
    a('L_end:\ns_endpgm\nL_codeend:')
    a(kernel_desc(KN, 256, 256))
    a.lines = hazard.pad(a.lines, False)
    return a.text()
if __name__ == '__main__':
    import json
    name = sys.argv[1] if len(sys.argv) > 1 else 'p8_v8'
    opt = json.loads(sys.argv[2]) if len(sys.argv) > 2 else None
    open(name + '.s', 'w').write(gen(0, opt))
    open(name + '_st.s', 'w').write(gen(1, opt))
    open(name + '_st2.s', 'w').write(gen(2, opt))
    open(name + '_st3.s', 'w').write(gen(3, opt))
```

```python
import sys, math, struct
from asmlib import *
import hazard
from gen_f16 import Cnt, interleave, f2i, v

L_W = 0; L_X0 = 49152; XOFF = [0, 12288, 49152]; L_K = 73728; L_Q = 49152; L_P = 73728; L_F = 110592; L_V = 114688
G_FL = 0x0
G_P = 0x40000
G_PM = 0x400000
G_PO = 0xC00000
SX, SWQ, SK, SV, SWO, SWS, SOUT = 24, 28, 32, 36, 40, 44, 48
SPIN = 1 << 14
MF = 'v_mfma_f32_16x16x32_bf16 %s, %s, %s, %s'

def gen(stamps=0, opt=None):
    o = dict(order='qqqKqqqqqq', win=24, codepf=True, rot='g3', pk=True, lprio=0, afterB8=1, afterBQ=4, ack='w1', poll0='w3', cprio=0, prog=False, x4=True, xo=14, ef=1, split=1, uprio=0, early_flag=True, outsc='', first_half=False, hsbar=5, poll='s', psleep=0, tlb=0, remap=0, oddpf=8, rot2=1, lateat=1, wqfirst=0, skip=['w5'])
    if opt: o.update(opt)
    a = Asm()
    a('; @launch grid=(256,1,1) block=(512,1,1) lds=163840')
    a(HEAD); a(kernel_begin(KN))
    def run(seq):
        for x in seq:
            if callable(x): x()
            else: a(x)
    class St:
        def __init__(s, base, n, r0): s.base = base; s.n = n; s.k = 0; s.r0 = r0
        def __call__(s, name='x', lvl=1):
            if stamps >= lvl:
                assert s.k < s.n, name
                a('; stamp %d %s' % (s.base + s.k, name))
                a('s_memrealtime s[%d:%d]' % (s.r0 + 2 * s.k, s.r0 + 1 + 2 * s.k)); s.k += 1
        def flush(s, wave):
            if stamps:
                l_ = a.label('L_nst')
                a('s_cmp_lg_u32 s20, %d\ns_cbranch_scc1 %s' % (wave, l_))
                a('s_waitcnt lgkmcnt(0)\nv_mov_b32 v31, 0\ns_lshl_b32 s3, s2, 9\ns_add_u32 s3, s3, %d' % (STAMP_OFF + 8 * s.base))
                for i in range(s.k):
                    a('v_mov_b32 v254, s%d\nv_mov_b32 v255, s%d' % (s.r0 + 2 * i, s.r0 + 1 + 2 * i))
                    a('buffer_store_dwordx2 v[254:255], v31, s[%d:%d], s3 offen offset:%d' % (SWS, SWS + 3, 8 * i))
                a(l_ + ':')
    stC = St(0, 21, 60); stL = St(24, 17, 68); stH = St(44, 6, 72)
    W0 = 's_waitcnt lgkmcnt(0)'
    stC('start')
    a('s_cmp_ge_u32 s2, 256\ns_cbranch_scc1 L_end')
    a('s_load_dwordx2 s[%d:%d], s[0:1], %d' % (SX, SX + 1, SLOT['x']))
    a('s_load_dwordx2 s[%d:%d], s[0:1], %d' % (SWQ, SWQ + 1, SLOT['wq']))
    a('s_load_dwordx4 s[4:7], s[0:1], %d' % SLOT['k'])
    a('s_load_dwordx8 s[8:15], s[0:1], %d' % SLOT['wo'])
    if o['remap'] == 1: a('s_lshr_b32 s3, s2, 2\ns_and_b32 s3, s3, 0x18\ns_xor_b32 s2, s2, s3')
    if o['remap'] == 2: a('s_lshr_b32 s3, s2, 3\ns_and_b32 s3, s3, 0x18\ns_lshl_b32 s21, s2, 2\ns_and_b32 s21, s21, 0xe0\ns_and_b32 s2, s2, 7\ns_or_b32 s2, s2, s3\ns_or_b32 s2, s2, s21')
    if o['remap'] == 3: a('s_xor_b32 s2, s2, 0x18')
    a('v_lshrrev_b32 v1, 6, v0\nv_and_b32 v0, 63, v0\nv_readfirstlane_b32 s20, v1')
    a('s_and_b32 s21, s2, 7\ns_bfe_u32 s22, s2, 0x20003\ns_lshr_b32 s23, s2, 5')
    a('v_and_b32 v1, 15, v0\nv_lshrrev_b32 v2, 4, v0')
    def srd(r, src, n):
        if src is not None: a('s_mov_b32 s%d, s%d\ns_mov_b32 s%d, s%d' % (r, src, r + 1, src + 1))
        a('s_mov_b32 s%d, %d\ns_mov_b32 s%d, 0x20000' % (r + 2, SIZES[n], r + 3))
    H0 = 's_and_b32 s16, s22, 2\ns_add_u32 s16, s16, s22\ns_xor_b32 s16, s16, s23'
    if o['rot2'] == 1: H0 = 's_and_b32 s16, s22, 2\ns_xor_b32 s16, s16, s23\ns_and_b32 s16, s16, 3\ns_lshl_b32 s16, s16, 1'
    if o['rot2'] == 2: H0 = 's_and_b32 s16, s22, 2\ns_lshl_b32 s16, s16, 1\ns_xor_b32 s16, s16, s23'
    if o['rot2'] == 3: H0 = 's_and_b32 s16, s23, 3\ns_lshl_b32 s16, s16, 1\ns_and_b32 s3, s22, 2\ns_add_u32 s3, s3, s22\ns_xor_b32 s16, s16, s3'
    a('s_cmp_lt_u32 s20, 4\ns_cbranch_scc1 L_comp')
    a('s_cmp_gt_u32 s20, 4\ns_cbranch_scc1 L_help')
    def gpoll(name, nw, off):
        sl = ('s_sleep %d\n' % o['psleep']) if o['psleep'] else ''
        if o['poll'] == 's':
            a('L_%s:\n%ss_load_dwordx%d s[84:%d], s[66:67], %d glc\ns_sub_u32 s54, s54, 1\ns_cbranch_scc1 L_%sok\ns_waitcnt lgkmcnt(0)' % (name, sl, nw, 83 + nw, off, name))
            k = nw
            while k > 2:
                k //= 2
                for i in range(0, k, 2): a('s_and_b64 s[%d:%d], s[%d:%d], s[%d:%d]' % (84 + i, 85 + i, 84 + i, 85 + i, 84 + k + i, 85 + k + i))
            a('s_and_b32 s84, s84, s85\ns_cbranch_scc0 L_%s\nL_%sok:' % (name, name))
        else:
            a('v_and_b32 v19, %d, v0\nv_lshlrev_b32 v19, 2, v19' % (nw - 1))
            a('L_%s:\n%sbuffer_load_dword v18, v19, s[%d:%d], s62 offen offset:%d sc1\ns_sub_u32 s54, s54, 1\ns_cbranch_scc1 L_%sok\ns_waitcnt vmcnt(0)' % (name, sl, SWS, SWS + 3, off, name))
            a('v_cmp_ne_u32 vcc, 1, v18\ns_cbranch_vccnz L_%s\nL_%sok:' % (name, name))
    vm = Cnt(a, 'vmcnt', 63)
    XV, WV, OV, KV, DV, VV = 8, 12, 16, 20, 24, 28
    if o['lprio']: a('s_setprio %d' % o['lprio'])
    srd(SX, None, 'x'); srd(SWQ, None, 'wq')
    a('v_lshrrev_b32 v3, 3, v0\nv_and_b32 v4, 7, v0')
    def quad(base, step):
        a('v_xor_b32 v7, 64, v%d\nv_add_u32 v%d, %d, v7' % (base, base + 1, step))
        a('v_add_u32 v%d, %d, v%d\nv_add_u32 v%d, %d, v%d' % (base + 2, 2 * step, base, base + 3, 2 * step, base + 1))
    a('v_mul_u32_u24 v5, 1152, v3\nv_xor_b32 v32, v4, v2\nv_lshl_add_u32 v%d, v32, 4, v5' % XV)
    quad(XV, 8 * 1152 - 1024)
    a('v_lshlrev_b32 v6, 1, v2\nv_xor_b32 v6, v6, v1\nv_lshlrev_b32 v6, 4, v6')
    a('v_lshl_add_u32 v%d, v2, 13, v6' % WV)
    a('v_add_u32 v%d, %d, v%d' % (WV + 1, 4 * 8192 - 1024, WV))
    a('v_xor_b32 v7, 128, v%d\nv_add_u32 v%d, %d, v7\nv_add_u32 v%d, %d, v7' % (WV, WV + 2, 2 * (4 * 8192 - 1024), WV + 3, 3 * (4 * 8192 - 1024)))
    if o['rot'] == 'g3':
        a('s_add_u32 s17, s22, s23\ns_mul_i32 s3, s17, 43\ns_lshr_b32 s3, s3, 7\ns_mul_i32 s3, s3, 3\ns_sub_u32 s17, s17, s3\ns_mul_i32 s17, s17, 3')
    elif o['rot'] == 'g4':
        a('s_add_u32 s17, s22, s23\ns_and_b32 s17, s17, 3\ns_mul_i32 s17, s17, 9\ns_lshr_b32 s17, s17, 2')
    elif o['rot'] == 'g2':
        a('s_add_u32 s17, s22, s23\ns_and_b32 s17, s17, 1\ns_mul_i32 s17, s17, 5')
    elif o['rot'] == 'g9':
        a('s_lshl_b32 s17, s22, 1\ns_add_u32 s17, s17, s23\ns_cmp_ge_u32 s17, 9\ns_cselect_b32 s3, 9, 0\ns_sub_u32 s17, s17, s3')
    else: a('s_mov_b32 s17, 0')
    a('s_mul_i32 s52, s23, 110592')
    a('s_lshl_b32 s53, s21, 10\ns_lshl_b32 s3, s22, 8\ns_add_u32 s53, s53, s3')
    a('s_waitcnt lgkmcnt(0)')
    stL('L kernarg')
    def group(vreg, n, srd_, lds, tag, adv=None, dyn=None):
        seq = [('s_add_u32 m0, %s, %d' % (dyn, lds) if dyn else 's_mov_b32 m0, %d' % lds) + ('\ns_add_u32 s57, s57, %s' % adv if adv else '')]
        for j in range(n):
            def f(j=j):
                if len(vm.seq) >= 60:
                    a('s_waitcnt vmcnt(44)'); vm.seq = vm.seq[-44:]
                a('buffer_load_dwordx4 v%d, s[%d:%d], s57 offen offset:%d lds' % (vreg + j, srd_, srd_ + 3, 1024 * j)); vm.issue(tag)
            seq.append(f)
        return seq
    def item_q(c):
        st = c % 3; tag = 'n%d' % c
        sx = ['s_lshl_b32 s57, s17, 7\ns_add_u32 s57, s57, s52']
        for t in range(3): sx += group(XV, 4, SX, L_X0 + XOFF[st] + 4096 * t, tag, 32 * 1152 if t else None)
        sw = ['s_lshl_b32 s57, s17, 19\ns_add_u32 s57, s57, s53']
        for t in range(4): sw += group(WV, 4, SWQ, L_W + 16384 * st + 4096 * t, tag, 16 * 8192 if t else None)
        seq = sw + sx if o['wqfirst'] else sx + sw
        seq += ['s_add_u32 s17, s17, 1\ns_cmp_eq_u32 s17, 9\ns_cselect_b32 s17, 0, s17']
        return seq
    def item_k():
        seq = ['s_lshr_b32 s3, s22, 1\ns_add_u32 s57, s54, s3\ns_mul_i32 s57, s57, 12288']
        for t in range(6): seq += group(KV, 4, SK, L_K + 4096 * t, 'k', None if t == 0 else (4096 if t != 3 else 16 * 12288 - 8192))
        return seq
    WSLOT = {'w0': 0, 'w1': 1, 'w2': 2, 'w3': 4.5, 'w4': 3, 'w5': 0, 'w6': 1, 'w7': 2, 'o0': 3, 'o1': 0}
    assert L_P == 4.5 * 16384
    NEED = {'w3': 1, 'w4': 2, 'w5': 3, 'w6': 5, 'w7': 6}
    L_O1 = L_P
    STAGES = ['w0', 'w1', 'o0', 'o1', 'w2', 'w3', 'w4', 'w5', 'w6', 'w7']
    def item_v(vp):
        seq = ['s_lshr_b32 s3, s16, 2\ns_xor_b32 s3, s3, %d\ns_add_u32 s57, s54, s3\ns_mul_i32 s57, s57, 12288\ns_xor_b32 s3, s16, %d\ns_and_b32 s3, s3, 1\ns_lshl_b32 s3, s3, 7\ns_add_u32 s57, s57, s3' % (vp >> 1, vp & 1)]
        for b in range(2):
            seq += group(VV, 4, SV, L_V + 12288 * vp + 6144 * b, 'v%d' % vp, 16 * 12288 - 8192 if b else None)
            seq += group(VV, 2, SV, L_V + 12288 * vp + 6144 * b + 4096, 'v%d' % vp, 8192)
        return seq
    def item_w(p):
        lds = int(L_W + 16384 * WSLOT['w%d' % p])
        seq = ['s_xor_b32 s3, s16, %d\ns_mul_i32 s57, s3, %d\ns_add_u32 s57, s57, s60' % (p, 64 * 1152)]
        for t in range(4): seq += group(OV, 4, SWO, lds + 4096 * t, 'w%d' % p, 16 * 1152 if t else None)
        return seq
    def item_o(e):
        lds = L_W + 16384 * WSLOT['o%d' % e]; seq = []
        for hf in range(2):
            seq += ['s_xor_b32 s3, s16, %d\ns_mul_i32 s57, s3, %d\ns_add_u32 s57, s57, s62' % (2 * e + hf, 64 * 1152)]
            for t in range(2): seq += group(DV, 4, SWO, lds + 8192 * hf + 4096 * t, 'o%d' % e, 32 * 1152 if t else None)
        return seq
    def item(nm): return {'v': item_v, 'w': item_w, 'o': item_o}[nm[0]](int(nm[1]))
    def late_setup():
        srd(SK, 4, 'k'); srd(SV, 6, 'v'); srd(SWO, 8, 'wo'); srd(SWS, 14, 'ws')
        a('v_mul_u32_u24 v7, 1152, v2\nv_add_u32 v%d, v7, v6\nv_add_u32 v%d, %d, v%d' % (OV, OV + 1, 4 * 1152 - 1024, OV))
        a('v_xor_b32 v6, 128, v6\nv_add_u32 v7, v7, v6\nv_add_u32 v%d, %d, v7\nv_add_u32 v%d, %d, v7' % (OV + 2, 2 * (4 * 1152 - 1024), OV + 3, 3 * (4 * 1152 - 1024)))
        a('v_xor_b32 v6, v1, v2\nv_lshlrev_b32 v6, 4, v6\nv_lshl_add_u32 v%d, v2, 8, v6' % KV)
        for j in range(1, 4): a('v_xor_b32 v%d, %d, v%d' % (KV + j, 64 * j, KV))
        a('v_and_b32 v6, 1, v2\nv_lshlrev_b32 v6, 1, v6\nv_xor_b32 v6, v6, v4\nv_lshl_add_u32 v%d, v6, 4, v5' % DV)
        quad(DV, 8 * 1152 - 1024)
        a('v_lshlrev_b32 v6, 8, v3\nv_lshl_add_u32 v%d, v32, 4, v6' % VV)
        quad(VV, 8 * 256 - 1024)
        a(H0)
        a('s_lshl_b32 s54, s23, 5\ns_lshl_b32 s3, s21, 1\ns_add_u32 s54, s54, s3')
        a('s_mul_i32 s60, s21, %d\ns_add_u32 s62, s60, 1024\ns_lshl_b32 s3, s22, 8\ns_add_u32 s60, s60, s3' % (512 * 1152))
    nq = 0; nbar = 0; since = {}
    def bar():
        nonlocal nbar
        vm.wait('n%d' % nbar)
        if nbar in (1, 2, 3, 8): stL('L at B%d' % nbar, 2)
        a('s_barrier'); nbar += 1
    for t in o['order']:
        if t == 'q':
            while nbar < nq - 1 and nq >= 3: bar()
            seq = item_q(nq)
            if o['first_half'] and nq in (1, 2) and nbar == nq - 1:
                run(seq[:16]); bar(); run(seq[16:])
            else: run(seq)
            sz = 28; nq += 1
            if nq == o['lateat']: late_setup()
        elif t == 'K': run(item_k()); sz = 24
        elif t == 'V': run(item_v(0)); sz = 12
        for c in list(since): since[c] += sz
        if t == 'q': since[nq - 1] = 0
        while nbar < nq and since[nbar] >= o['win']: bar()
    while nbar < 8: bar()
    pre8 = o.get('pre8') or (['w0'] if 'V' in o['order'] else ['v0', 'w0'])
    for it in pre8: run(item(it))
    bar()
    XB = [('BQ', []), ('BP', ['v0', 'w0']), ('w0', ['v1', 'w1']), ('w1', ['w2']), ('w2', ['w3']), ('w3', ['v2', 'w4']),
          ('w4', ['v3', 'w5']), ('w5', ['w6']), ('w6', ['w7']), ('w7', []), ('O', ['o0', 'o1'])]
    for sk in o['skip']:
        i_ = [x_[0] for x_ in XB].index(sk)
        XB[i_ - 1] = (XB[i_ - 1][0], XB[i_ - 1][1] + XB[i_][1]); del XB[i_]
    XN = [x_[0] for x_ in XB]
    plan = o.get('plan') or {'B8': ['v1', 'w1'], 'BQ': ['w2', 'w3'], 'BP': ['v2'], 'w0': ['w4'], 'w1': ['v3', 'w5'], 'w2': ['w6'], 'w3': ['w7'], 'w6': ['o0'], 'w7': ['o1']}
    FREEAT = {'w1': 'B8', 'w2': 'BQ', 'w3': 'BQ', 'w4': 'BP', 'w5': 'w1', 'w6': 'w2', 'w7': 'w3', 'o0': 'w5', 'o1': 'w6'}
    ALLN = ['B8', 'BQ', 'BP'] + ['w%d' % i_ for i_ in range(8)] + ['O']
    names = ['B8'] + [x_[0] for x_ in XB]
    issued = set(pre8) | ({'v0'} if 'V' in o['order'] else set())
    last = 'B8'
    for nm, need in XB:
        for it in plan.get(last, []):
            assert it[0] == 'v' or ALLN.index(FREEAT[it]) <= ALLN.index(last), (it, last)
            run(item(it)); issued.add(it)
        assert all(x_ in issued for x_ in need), (nm, need)
        vm.wait(need)
        stL('L at ' + nm, 2)
        a('s_barrier'); last = nm
    assert len(issued) == 14
    stL('L done')
    stL.flush(4)
    srd(SOUT, 10, 'out')
    a('s_lshl_b32 s52, s21, 1\ns_lshr_b32 s3, s22, 1\ns_add_u32 s52, s52, s3')
    a('s_cmp_ge_u32 s52, 12\ns_cbranch_scc1 L_end')
    a('s_lshl_b32 s3, s2, 9\ns_add_u32 s62, s3, %d\ns_add_u32 s66, s14, s62\ns_addc_u32 s67, s15, 0' % (G_FL + 384))
    a('s_mov_b32 s54, %d' % SPIN)
    a('s_lshl_b32 s3, s23, 1\ns_and_b32 s53, s22, 1\ns_add_u32 s53, s53, s3')
    a('s_mul_i32 s55, s53, 12\ns_add_u32 s55, s55, s52\ns_lshl_b32 s55, s55, 13\ns_add_u32 s55, s55, %d\ns_add_u32 s56, s55, 4096' % G_PO)
    a('s_mul_i32 s58, s52, 43\ns_lshr_b32 s58, s58, 7\ns_mul_i32 s3, s58, 3\ns_sub_u32 s3, s52, s3')
    a('s_mul_i32 s57, s53, 3\ns_add_u32 s57, s57, s3\ns_mul_i32 s57, s57, %d\ns_lshl_b32 s58, s58, 5\ns_add_u32 s57, s57, s58\ns_add_u32 s57, s57, 1024' % (16 * 1152))
    a('v_lshlrev_b32 v6, 3, v0')
    def and16(b):
        for i in range(0, 16, 4): a('s_and_b64 s[%d:%d], s[%d:%d], s[%d:%d]' % (b + i, b + 1 + i, b + i, b + 1 + i, b + 2 + i, b + 3 + i))
        a('s_and_b64 s[%d:%d], s[%d:%d], s[%d:%d]\ns_and_b64 s[%d:%d], s[%d:%d], s[%d:%d]\ns_and_b64 s[%d:%d], s[%d:%d], s[%d:%d]\ns_and_b32 s%d, s%d, s%d' % (
            b, b + 1, b, b + 1, b + 4, b + 5, b + 8, b + 9, b + 8, b + 9, b + 12, b + 13, b, b + 1, b, b + 1, b + 8, b + 9, b, b, b + 1))
    def reduce(name, nsrc, w, off, vaddr, outs, st=None):
        per = nsrc // 2; sz = 256 * w
        def ld(j): return 'buffer_load_dwordx%d %s, v%d, s[%d:%d], s%d offen offset:%d sc1' % (w, v(32 + w * j, w), vaddr, SWS, SWS + 3, 55 + j // per, sz * (j % per))
        if o['x4'] and w == 4: a('v_mul_u32_u24 v3, 1152, v1\nv_lshl_add_u32 v3, v2, 4, v3')
        else: a('v_mul_u32_u24 v3, 1152, v1\nv_lshl_add_u32 v3, v2, 3, v3')
        a('s_mov_b32 s28, 0x00003f80\ns_mov_b32 s29, 0x3f800000')
        if o['prog']:
            a('s_mov_b32 s63, 0')
            a('L_%s:\ns_load_dwordx%d s[84:%d], s[66:67], %d glc\ns_sub_u32 s54, s54, 1\ns_cselect_b32 s30, -1, 0\ns_waitcnt lgkmcnt(0)' % (name, nsrc, 83 + nsrc, off))
            k = nsrc; sh = 1
            while k > 1:
                for i in range(0, nsrc, 2 * sh):
                    if sh <= 4: a('s_lshl%d_add_u32 s%d, s%d, s%d' % (sh, 84 + i, 84 + i + sh, 84 + i))
                    else: a('s_lshl_b32 s%d, s%d, %d\ns_or_b32 s%d, s%d, s%d' % (84 + i + sh, 84 + i + sh, sh, 84 + i, 84 + i, 84 + i + sh))
                k //= 2; sh *= 2
            a('s_or_b32 s84, s84, s30\ns_and_b32 s84, s84, %d\ns_andn2_b32 s85, s84, s63\ns_cbranch_scc0 L_%s\ns_or_b32 s63, s63, s84' % ((1 << nsrc) - 1, name))
            for j in range(nsrc):
                a('s_bitcmp1_b32 s85, %d\ns_cbranch_scc0 L_%s_%d\n%s\nL_%s_%d:' % (j, name, j, ld(j), name, j))
            a('s_cmp_lg_u32 s63, %d\ns_cbranch_scc1 L_%s' % ((1 << nsrc) - 1, name))
            if st: st('flags ok')
            a('s_waitcnt vmcnt(0)')
        else:
            gpoll(name, nsrc, off)
            if st: st('flags ok')
            for j in range(nsrc): a(ld(j))
        for j in range(nsrc):
            if not o['prog']: a('s_waitcnt vmcnt(%d)' % (nsrc - 1 - j))
            for t in range(w):
                src = 32 + w * j + t
                if j == 0: a('v_lshlrev_b32 v%d, 16, v%d\nv_and_b32 v%d, 0xffff0000, v%d' % (8 + 2 * t, src, 9 + 2 * t, src))
                elif o.get('dot'): a('v_dot2_f32_bf16 v%d, v%d, s28, v%d\nv_dot2_f32_bf16 v%d, v%d, s29, v%d' % (8 + 2 * t, src, 8 + 2 * t, 9 + 2 * t, src, 9 + 2 * t))
                else: a('v_lshlrev_b32 v16, 16, v%d\nv_and_b32 v17, 0xffff0000, v%d\nv_pk_add_f32 v[%d:%d], v[%d:%d], v[16:17]' % (src, src, 8 + 2 * t, 9 + 2 * t, 8 + 2 * t, 9 + 2 * t))
        for t in range(w): a('v_cvt_pk_bf16_f32 v%d, v%d, v%d' % (8 + t, 8 + 2 * t, 9 + 2 * t))
        if w == 4 and o['x4']:
            a('v_permlane32_swap_b32 v8, v10\nv_permlane32_swap_b32 v9, v11\nv_permlane16_swap_b32 v8, v10\nv_permlane16_swap_b32 v9, v11')
            a('buffer_store_dwordx4 v[8:11], v3, s[%d:%d], %s offen %s' % (SOUT, SOUT + 3, outs, o['outsc']))
        else:
            for t in range(w // 2): a('buffer_store_dwordx2 v[%d:%d], v3, s[%d:%d], %s offen offset:%d %s' % (8 + 2 * t, 9 + 2 * t, SOUT, SOUT + 3, outs, 32 * t, o['outsc']))
    reduce('op', 16, 2, 0, 6, 's57')
    a('s_endpgm')
    a('L_comp:')
    lg = Cnt(a, 'lgkmcnt', 15)
    XA, WA, VA, OVA, OA, QA, FRA, FUA, FV, FC, PFA = 10, 12, 16, 18, 20, 21, 22, 23, 24, 27, 31
    A = 32; F = [80, 108]; B = 136; C = 184; VWO = 232; SP = 244
    KF = B; QF = 80; S = 96; P = SP; KA = 184; UA = 254; QT = 192
    a('v_bfe_u32 v3, v0, 2, 2\nv_and_b32 v4, 3, v0')
    a('s_lshr_b32 s18, s20, 1\ns_and_b32 s17, s20, 1')
    a(H0)
    a('v_lshrrev_b32 v7, 1, v1\nv_xor_b32 v7, v7, v2\nv_lshlrev_b32 v7, 4, v7\nv_lshl_add_u32 v5, v1, 7, v7\nv_xor_b32 v6, 64, v5')
    a('s_mul_i32 s3, s18, 6144\ns_add_u32 s3, s3, %d' % L_X0)
    a('v_add_u32 v%d, s3, v5\nv_add_u32 v%d, s3, v6' % (XA, XA + 1))
    a('s_add_u32 s3, s3, %d\nv_add_u32 v%d, s3, v5\nv_add_u32 v%d, s3, v6' % (L_V - L_X0, VA, VA + 1))
    a('s_and_b32 s3, s22, 1\ns_mul_i32 s3, s3, 6144\ns_add_u32 s3, s3, %d' % L_V)
    a('v_add_u32 v%d, s3, v5\nv_add_u32 v%d, s3, v6' % (OVA, OVA + 1))
    a('v_and_b32 v7, 1, v2\nv_lshl_add_u32 v7, v7, 2, v3\ns_lshl_b32 s3, s17, 2\nv_xor_b32 v7, s3, v7')
    a('v_lshl_add_u32 v5, v2, 3, v3\nv_lshlrev_b32 v8, 8, v5\nv_lshl_add_u32 v8, v4, 3, v8')
    assert L_W == 0
    for t in range(4): a('v_xor_b32 v9, %d, v7\nv_lshl_add_u32 v%d, v9, 5, v8' % (t, WA + t))
    a('v_and_b32 v7, 1, v2\nv_lshrrev_b32 v8, 1, v3\nv_lshl_add_u32 v7, v7, 1, v8\nv_xor_b32 v7, s20, v7')
    a('v_lshlrev_b32 v8, 7, v5\nv_lshl_add_u32 v8, v4, 3, v8\nv_lshl_add_u32 v%d, v7, 5, v8' % OA)
    a('s_mul_i32 s3, s18, 12288\ns_lshl_b32 s19, s17, 11\ns_add_u32 s3, s3, s19\ns_add_u32 s3, s3, %d' % L_Q)
    a('v_lshlrev_b32 v25, 4, v0\nv_lshlrev_b32 v26, 3, v0\nv_add_u32 v%d, s3, v25' % QA)
    a('s_and_b32 s59, s2, 0xf8\ns_lshl_b32 s3, s20, 1\ns_add_u32 s59, s59, s3\ns_mul_i32 s56, s59, 24576\ns_lshl_b32 s3, s21, 10\ns_add_u32 s56, s56, s3\ns_add_u32 s56, s56, %d' % G_PM)
    a('s_add_u32 s57, s56, 24576')
    a('s_lshl_b32 s3, s23, 1\ns_and_b32 s54, s22, 1\ns_add_u32 s3, s3, s54\ns_mul_i32 s3, s3, 12\ns_mul_i32 s54, s20, 3\ns_add_u32 s3, s3, s54\ns_lshl_b32 s58, s3, 13')
    a('s_lshl_b32 s3, s21, 1\ns_lshr_b32 s55, s22, 1\ns_add_u32 s55, s55, s3\ns_lshl_b32 s3, s55, 9\ns_add_u32 s58, s58, s3\ns_add_u32 s58, s58, %d' % G_PO)
    a('v_add_u32 v7, s59, v0\nv_lshlrev_b32 v7, 9, v7\ns_lshl_b32 s3, s21, 2\ns_add_u32 s3, s3, %d\nv_add_u32 v7, s3, v7' % (G_FL + 32))
    a('s_sub_u32 s54, s54, 2\nv_add_u32 v8, s54, v0\nv_lshrrev_b32 v9, 1, v8\nv_and_b32 v8, 1, v8\nv_lshl_add_u32 v8, v8, 4, v9\ns_and_b32 s3, s2, 0xe8\nv_add_u32 v8, s3, v8\nv_lshlrev_b32 v8, 9, v8')
    a('s_lshl_b32 s3, s55, 2\ns_add_u32 s3, s3, %d\nv_add_u32 v8, s3, v8\nv_mov_b32 v9, 0x7ff00000' % (G_FL + 128))
    a('v_cmp_gt_u32 vcc, 5, v0\nv_cndmask_b32 v8, v9, v8, vcc\nv_cmp_gt_u32 vcc, 2, v0\nv_cndmask_b32 v30, v8, v7, vcc\nv_cndmask_b32 v28, v9, v7, vcc\nv_mov_b32 v29, 1')
    a('s_mov_b32 s52, s20')
    def unit_setup():
        a('s_cmp_ge_u32 s52, 3\ns_cselect_b32 s3, 12288, 0\ns_add_u32 s3, s3, %d' % L_K)
        a('v_lshrrev_b32 v7, 1, v2\nv_xor_b32 v7, v1, v7\nv_lshlrev_b32 v7, 4, v7\nv_lshl_add_u32 v7, v1, 8, v7\nv_and_b32 v8, 1, v2\nv_lshl_add_u32 v7, v8, 3, v7')
        for j in range(8): a('v_xor_b32 v8, %d, v7\nv_add_u32 v%d, s3, v8' % (32 * j, KA + j))
        a('s_lshl_b32 s3, s52, 12\ns_add_u32 s3, s3, %d\nv_add_u32 v%d, s3, v25' % (L_Q, UA))
        a('s_mov_b32 s50, 0x%x\ns_mov_b32 s51, s50' % f2i(128 ** -0.5 * math.log2(math.e)))
        a('s_mul_i32 s3, s52, 1536\ns_mul_i32 s49, s2, 9216\ns_add_u32 s49, s49, s3\ns_add_u32 s49, s49, %d' % G_P)
    def k_reads(): return ['ds_read_b64 %s, v%d offset:%d' % (v(KF + 16 * kt + 2 * j, 2), KA + j, 4096 * kt) for j in range(8) for kt in range(3)]
    unit_setup()
    a(W0)
    srd(SWS, 14, 'ws')
    def wreads(st, off, wa=WA): return ['ds_read_b64_tr_b16 %s, v%d offset:%d' % (v(st + 4 * t + 2 * hh, 2), wa + t, off + 1024 * hh) for t in range(4) for hh in range(2)]
    def reads_A(n, ks):
        return ['ds_read_b128 %s, v%d offset:%d' % (v(F[ks] + 16 + 4 * q, 4), XA + ks, XOFF[n % 3] + 2048 * q) for q in range(3)] + wreads(F[ks], 16384 * (n % 3) + 8192 * ks)
    ORD = [(t, q if t % 2 == 0 else 2 - q) for t in range(4) for q in range(3)]
    def mfma(acc, ks, first, swap, od=None):
        out = []
        for t, q in od or ORD:
            d = v(acc + 4 * (3 * t + q), 4); x = v(F[ks] + 4 * t, 4); y = v(F[ks] + 16 + 4 * q, 4)
            if swap: x, y = y, x
            out.append(MF % (d, x, y, '0' if first else d))
        return out
    def cvt(d, s_): return ['v_cvt_pk_bf16_f32 v%d, v%d, v%d' % (d, s_, s_ + 1), 'v_cvt_pk_bf16_f32 v%d, v%d, v%d' % (d + 1, s_ + 2, s_ + 3)]
    a('s_barrier')
    stC('B0')
    run(reads_A(0, 0))
    for n in range(9):
        a(W0)
        run(interleave(mfma(A, 0, n == 0, False), reads_A(n, 1), 0, 2))
        if n < 8:
            a(W0)
            a('s_barrier')
            if n == 7: stC('B8')
            run(interleave(mfma(A, 1, False, False), reads_A(n + 1, 0) + (k_reads()[8 * (n - 4):8 * (n - 3)] if 4 <= n < 7 else []), 0, 2))
        else:
            a(W0)
            od = [(2 * tp + u, q) for tp in range(2) for q in range(3) for u in range(2)]
            qw = []
            for i, (t, q) in enumerate(od):
                qw += cvt(QT + 2 * i, A + 4 * (3 * t + q))
                if t & 1: qw[-1] += '\nds_write_b128 v%d, %s offset:%d' % (QA, v(QT + 2 * i - 2, 4), q * 4096 + (t >> 1) * 1024)
            run(interleave(mfma(A, 1, False, False, od), qw, 6, 2))
    if o['uprio']: a('s_setprio %d' % o['uprio'])
    a('L_unit:')
    a(W0)
    a('s_barrier')
    stC('BQ')
    for kk in range(4): a('ds_read_b128 %s, v%d offset:%d' % (v(QF + 4 * kk, 4), UA, 1024 * kk))
    for kk in range(4):
        a('s_waitcnt lgkmcnt(%d)' % (3 - kk))
        for kt in range(3): a(MF % (v(S + 4 * kt, 4), v(KF + 16 * kt + 4 * kk, 4), v(QF + 4 * kk, 4), v(S + 4 * kt, 4) if kk else '0'))
    x, y = 6, 7
    a('v_max3_f32 v6, v%d, v%d, v%d\nv_max3_f32 v7, v%d, v%d, v%d' % (S, S + 1, S + 2, S + 3, S + 4, S + 5))
    a('v_max3_f32 v6, v6, v%d, v%d\nv_max3_f32 v7, v7, v%d, v%d\nv_max3_f32 v6, v6, v%d, v%d' % (S + 6, S + 7, S + 8, S + 9, S + 10, S + 11))
    def xl(op, first):
        a(first)
        a('v_permlane16_swap_b32 v6, v7\n%s v8, v6, v7\n%s v7, v6, v7\nv_permlane32_swap_b32 v8, v7\n%s v6, v8, v7' % (op, op, op))
    xl('v_max_f32', 'v_max_f32 v6, v6, v7\nv_mov_b32 v7, v6')
    a('v_mul_f32 v6, s50, v6')
    if o['pk']:
        for t in range(0, 12, 2): a('v_pk_fma_f32 v[%d:%d], v[%d:%d], s[50:51], v[6:7] op_sel_hi:[1,1,0] neg_lo:[0,0,1] neg_hi:[0,0,1]' % (S + t, S + t + 1, S + t, S + t + 1))
    else:
        for t in range(12): a('v_fma_f32 v%d, v%d, s50, -v6' % (S + t, S + t))
    for t in range(12): a('v_exp_f32 v%d, v%d' % (S + t, S + t))
    if o['pk']:
        a('v_pk_add_f32 v[6:7], v[%d:%d], v[%d:%d]\nv_pk_add_f32 v[4:5], v[%d:%d], v[%d:%d]' % (S, S + 1, S + 2, S + 3, S + 4, S + 5, S + 6, S + 7))
        a('v_pk_add_f32 v[6:7], v[6:7], v[%d:%d]\nv_pk_add_f32 v[4:5], v[4:5], v[%d:%d]\nv_pk_add_f32 v[4:5], v[4:5], v[6:7]' % (S + 8, S + 9, S + 10, S + 11))
    else:
        a('v_add_f32 v4, v%d, v%d\nv_add_f32 v5, v%d, v%d' % (S, S + 1, S + 2, S + 3))
        for t in range(4, 12, 2): a('v_add_f32 v4, v4, v%d\nv_add_f32 v5, v5, v%d' % (S + t, S + t + 1))
    xl('v_add_f32', 'v_add_f32 v6, v4, v5\nv_add_f32 v7, v4, v5')
    a('v_rcp_f32 v6, v6')
    if o['pk']:
        for t in range(0, 12, 2): a('v_pk_mul_f32 v[%d:%d], v[%d:%d], v[6:7] op_sel_hi:[1,0]' % (S + t, S + t + 1, S + t, S + t + 1))
    else:
        for t in range(12): a('v_mul_f32 v%d, v%d, v6' % (S + t, S + t))
    for t in range(6): a('v_cvt_pk_bf16_f32 v%d, v%d, v%d' % (P + t, S + 2 * t, S + 2 * t + 1))
    a('buffer_store_dwordx4 %s, v25, s[%d:%d], s49 offen sc1' % (v(P, 4), SWS, SWS + 3))
    a('buffer_store_dwordx2 %s, v26, s[%d:%d], s49 offen offset:1024 sc1' % (v(P + 4, 2), SWS, SWS + 3))
    stC('C at BP')
    a('s_barrier')
    a('s_cmp_ge_u32 s20, 4\ns_cbranch_scc1 L_help2')
    if o['cprio'] or o['uprio']: a('s_setprio %d' % o['cprio'])
    stC('BP')
    def ds(txt, tag):
        def f(): a(txt); lg.issue(tag)
        return f
    def step(m, dsops, extra=(), waits=None, pre=(), xstart=0, dstart=0):
        n = len(m); per = [[] for _ in range(n)]
        for i, x_ in enumerate(pre): per[i].append(x_)
        nd = n - dstart
        for i, x_ in enumerate(dsops): per[dstart + (i if len(dsops) <= nd else i * nd // len(dsops))].append(x_)
        nx = n - xstart
        for i, x_ in enumerate(extra): per[xstart + (i * nx // len(extra))].append(x_)
        for i in range(n):
            if waits and i in waits: lg.wait(waits[i])
            a(m[i]); run(per[i])
    def reads_W(p, ks):
        vp = (p >> 2) * 2 + (p & 1); tg = 'w%d%d' % (p, ks)
        r = ['ds_read_b128 %s, v%d offset:%d' % (v(F[ks] + 16 + 4 * q, 4), VA + ks, 12288 * vp + 2048 * q) for q in range(3)] + (wreads(F[ks], 16384 * WSLOT['w%d' % p] + 8192 * ks) if p != 3 else wreads(F[ks], 8192 * ks, 250))
        return [ds(x_, tg + ('lo' if i < 7 else 'hi')) for i, x_ in enumerate(r)]
    def wW(p, ks, more=()): return {0: ['w%d%dlo' % (p, ks)] + list(more), 6: ['w%d%dhi' % (p, ks)]}
    def vwpos(base, i, kt): return base + ([0, 2, 4][kt] if i % 2 == 0 else [8, 10, 6][kt])
    HACC = [B, A, B, A]; HDST = [C, C, B, B]
    def cvt_W(i): return [x_ for t in range(4) for kt in range(3) for x_ in cvt(vwpos(HDST[i] + 12 * t, i, kt), HACC[i] + 4 * (3 * t + kt))]
    def xb(nm): return [('s_waitcnt vmcnt(0)\n' if nm == o['ack'] else '') + 's_barrier'] if nm in XN else []
    def ins(lst, i, x_): return lst[:i] + [x_] + lst[i:]
    OS = [[80, 84, 88, 92, 96], [48, 52, 56, 60, 64], [108, 112, 116, 120, 124], [100, 104, 128, 132, 68]]; OACC = [[232, 236, 240], [244, 248, 252]]
    def rdO(kq):
        tg = 'os%d' % kq
        return [ds('ds_read_b128 %s, v%d offset:%d' % (v(OS[kq][kt], 4), OVA + (kq & 1), 12288 * (kq >> 1) + 2048 * kt), tg) for kt in range(3)] + \
               [ds('ds_read_b64_tr_b16 %s, v%d offset:%d' % (v(OS[kq][3 + e] + 2 * hh, 2), OA, 16384 * WSLOT['o%d' % e] + 4096 * kq + 512 * hh), tg) for e in range(2) for hh in range(2)]
    mfma_O = [MF % (v(OACC[e][kt], 4), v(OS[kq][kt], 4), v(OS[kq][3 + e], 4), v(OACC[e][kt], 4) if kq else '0') for kq in range(4) for e in range(2) for kt in range(3)]
    cvt_O = [x_ for e in range(2) for kt in range(3) for x_ in cvt(vwpos(VWO, e, kt), OACC[e][kt])]
    PFULL = [10, 11, 22, 23]; PHALF = [4, 5, 6, 7]; POF = [24, 21]; POH = [8, 9]
    padr = []
    for i in range(4):
        padr.append('s_xor_b32 s3, s53, %d\ns_mul_i32 s3, s3, 9216\ns_add_u32 s3, s3, s55' % i)
        padr.append('v_add_u32 v%d, s3, v25' % PFULL[i]); padr.append('v_add_u32 v%d, s3, v26' % PHALF[i])
        if i < 2:
            padr.append('s_add_u32 s3, s3, s54\nv_add_u32 v%d, s3, v25' % POF[i]); padr.append('v_add_u32 v%d, s3, v26' % POH[i])
    a('s_mul_i32 s55, s18, 4608\ns_and_b32 s54, s22, 1\ns_mul_i32 s54, s54, 4608\ns_sub_u32 s54, s54, s55\ns_add_u32 s55, s55, %d\ns_lshr_b32 s53, s16, 1' % L_P)
    def preads(dst, fa, ha, qt, tag):
        off = 1536 * qt
        return [ds('ds_read_b128 %s, v%d offset:%d' % (v(dst[0], 4), fa[0], off), tag),
                ds('ds_read_b64 %s, v%d offset:%d' % (v(dst[1], 2), ha[0], off + 1024), tag),
                ds('ds_read_b64 %s, v%d offset:%d' % (v(dst[1] + 2, 2), ha[1], off + 1024), tag),
                ds('ds_read_b128 %s, v%d offset:%d' % (v(dst[2], 4), fa[1], off), tag)]
    PB = [[80 + 4 * k for k in range(6)], [108 + 4 * k for k in range(6)], [80, 84, 88, 92, 96, 72]]
    def reads_F(qt): return preads(PB[qt][:3], PFULL[:2], PHALF[:2], qt, 'p%da' % qt) + preads(PB[qt][3:], PFULL[2:], PHALF[2:], qt, 'p%db' % qt)
    run(reads_W(0, 0))
    for p in range(8):
        i = p >> 1
        if i == 0: ex0, ex1 = (padr[:5], padr[5:10]) if p == 0 else (padr[10:], ['v_add_u32 v%d, %d, v%d' % (250 + t, L_P, WA + t) for t in range(4)])
        else:
            cv = cvt_W(i - 1)
            ex0, ex1 = (cv[:6], cv[6:12]) if p % 2 == 0 else (cv[12:18], cv[18:])
        step(mfma(HACC[i], 0, p % 2 == 0, True), reads_W(p, 1), extra=ex0, xstart=4 if p % 2 == 0 else 0, waits=wW(p, 0))
        step(mfma(HACC[i], 1, False, True), reads_W(p + 1, 0) if p < 7 else reads_F(0), extra=ex1, xstart=1, waits=wW(p, 1), pre=xb('w%d' % p))
        stC('s%d' % p if p < 7 else 'VW end', 2 if p < 7 else 1)
    RACC = [[244, 248, 252, 104], [32, 36, 40, 44], [32, 36, 40, 44]]
    PK = [76, 12]; OP = [[48, 52, 56], [60, 64, 108], [112, 116, 120]]
    def fm(qt, t, k): return MF % (v(RACC[qt][t], 4), v([C, B][k // 3] + 12 * t + 4 * (k % 3), 4), v(PB[qt][k], 4), v(RACC[qt][t], 4) if k else '0')
    def store_F(qt, h):
        return cvt(PK[h], RACC[qt][2 * h]) + cvt(PK[h] + 2, RACC[qt][2 * h + 1]) + \
               ['buffer_store_dwordx4 %s, v25, s[%d:%d], s%d offen sc1\ns_add_u32 s%d, s%d, 8192' % (v(PK[h], 4), SWS, SWS + 3, 56 + h, 56 + h, 56 + h)]
    def flag(reg, off): return 'buffer_store_dword v29, v%d, s[%d:%d], 0 offen offset:%d sc1' % (reg, SWS, SWS + 3, off)
    m = [fm(0, t, k) for k in range(6) for t in range(4)]
    c3 = cvt_W(3)
    c3 = [c3[6 * t + j] for t in range(4) for j in (4, 5)] + [c3[6 * t + j] for t in range(4) for j in range(4)]
    step(m[:19], reads_F(1), extra=c3, xstart=3, waits={0: ['p0a'], 11: ['p0b']})
    step(m[19:], [])
    stC('R0', 2)
    xo = o['xo']
    m = [fm(1, t, k) for t in range(4) for k in range(6)]
    step(m[:xo], [], extra=store_F(0, 0) + store_F(0, 1), xstart=3, waits={0: ['p1a'], 3: ['p1b']})
    seq = rdO(0) + rdO(1); k1 = min(14, 24 - xo)
    step(m[xo:], seq[:k1], extra=store_F(1, 0), xstart=max(0, 18 - xo), pre=xb('O'))
    stC('R1', 2)
    ef0 = ['s_waitcnt vmcnt(2)\n' + flag(28, 0)] if o['ef'] >= 1 else []
    step(mfma_O[:15], seq[k1:] + rdO(2) + rdO(3), extra=store_F(1, 1), xstart=4, waits={0: ['os0'], 6: ['os1'], 12: ['os2']})
    step(mfma_O[15:], reads_F(2), waits={3: ['os3']}, extra=ef0, xstart=8)
    stC('O', 2)
    m = [fm(2, t, k) for t in range(4) for k in range(6)]
    op = [x_ for qt in range(3) for x_ in preads(OP[qt], POF, POH, qt, 'po%d' % qt)]
    step(m[:12], op, extra=cvt_O, xstart=2, waits={0: ['p2a'], 3: ['p2b']})
    mo = [MF % (v(SP + 4 * qt, 4), v(VWO + 4 * k, 4), v(OP[qt][k], 4), v(SP + 4 * qt, 4) if k else '0') for qt in range(3) for k in range(3)]
    step(mo, [], extra=store_F(2, 0), xstart=3, waits={0: ['po1'], 6: ['po2']})
    oddst = []
    for qt in range(3):
        oddst += cvt(VWO + 2 * qt, SP + 4 * qt) + ['buffer_store_dwordx2 %s, v26, s[%d:%d], s58 offen sc1\ns_add_u32 s58, s58, 8192' % (v(VWO + 2 * qt, 2), SWS, SWS + 3)]
    step(m[12:], [], extra=oddst, xstart=1)
    if o['ef'] >= 2: a('s_waitcnt vmcnt(5)'); a(flag(28, 128))
    run(store_F(2, 1))
    stC('final end')
    if o['ef'] == 0: a('s_waitcnt vmcnt(7)'); a(flag(28, 0))
    if o['ef'] < 2: a('s_waitcnt vmcnt(6)'); a(flag(28, 128))
    if o.get('split'):
        a('s_waitcnt vmcnt(%d)' % [3, 2, 2][o['ef']]); a('s_mov_b64 exec, 29'); a(flag(30, 256))
        a('s_waitcnt vmcnt(%d)' % [3, 2, 1][o['ef']]); a('s_mov_b64 exec, 2'); a(flag(30, 256)); a('s_mov_b64 exec, -1')
    else:
        a('s_waitcnt vmcnt(%d)' % [2, 1, 0][o['ef']]); a(flag(30, 256))
    stC('flags sent')
    stC.flush(0)
    a('s_endpgm')
    a('L_help:')
    a('s_sub_u32 s18, s20, 5\ns_sub_u32 s52, s20, 1')
    a('v_lshlrev_b32 v25, 4, v0\nv_lshlrev_b32 v26, 3, v0')
    a('v_mov_b32 v12, 0\nv_mov_b32 v13, 0\nv_mov_b32 v14, 0\nv_mov_b32 v15, 0\nv_mov_b32 v29, 1\nv_mov_b32 v28, 0x7ff00000\nv_mov_b32 v30, v28')
    a(W0)
    srd(SWS, 14, 'ws')
    a('s_cmp_eq_u32 s20, 7\ns_cbranch_scc1 L_h2')
    a('s_cmp_eq_u32 s20, 5\ns_cbranch_scc1 L_h0')
    a('s_cmp_ge_u32 s2, 32\ns_cbranch_scc1 L_h0')
    a('s_lshl_b32 s3, s2, 12')
    assert G_FL == 0
    for j in range(4): a('buffer_store_dwordx4 v[12:15], v25, s[%d:%d], s3 offen offset:%d sc1' % (SWS, SWS + 3, 1024 * j))
    a('s_lshl_b32 s3, s2, 2\nv_mov_b32 v16, s3\ns_waitcnt vmcnt(0)')
    a('s_mov_b64 exec, 1\nglobal_store_dword v16, v29, s[12:13] sc1\ns_mov_b64 exec, -1')
    a('L_h0:')
    unit_setup()
    for c in range(9):
        a('s_barrier')
        if c == 4: run(k_reads())
    a('s_branch L_unit')
    a('L_h2:')
    if o['codepf']:
        a('s_getpc_b64 s[66:67]\nL_pc:\ns_sub_u32 s66, s66, L_pc-%s\ns_subb_u32 s67, s67, 0' % KN)
        a('s_lshr_b32 s3, s2, 3\ns_lshl_b32 s3, s3, 7\nv_lshlrev_b32 v7, 12, v0\nv_add_u32 v7, s3, v7')
        a('v_cmp_gt_u32 vcc, L_codeend-%s, v7\ns_and_saveexec_b64 s[64:65], vcc' % KN)
        a('global_load_dword v31, v7, s[66:67]')
        a('s_mov_b64 exec, s[64:65]')
    def tlb_touch():
        a('s_lshl_b32 s3, s2, 7\nv_lshlrev_b32 v7, 21, v0\nv_add_u32 v7, s3, v7\nv_add_u32 v8, 0x1f0000, v7')
        a('s_mov_b64 exec, 0x7f\nglobal_load_dword v32, v8, s[14:15]')
        if o['tlb'] in (1, 3):
            a('s_mov_b64 exec, 7\nglobal_load_dword v33, v7, s[8:9]')
            a('s_mov_b64 exec, 3\nglobal_load_dword v34, v7, s[4:5]\nglobal_load_dword v35, v7, s[6:7]')
        a('s_mov_b64 exec, 1\nglobal_load_dword v36, v7, s[10:11]\ns_mov_b64 exec, -1')
    if o['tlb'] in (1, 2): tlb_touch()
    hs = 's_load_dwordx16 s[84:99], s[12:13], 0%s\ns_load_dwordx16 s[28:43], s[12:13], 64%s'
    for c in range(10):
        a('s_barrier')
        if c == o['hsbar']: a(hs % ('', ''))
        if c == o['oddpf']:
            a('s_lshl_b32 s3, s21, 5\ns_lshr_b32 s17, s2, 3\ns_add_u32 s3, s3, s17\ns_mul_i32 s3, s3, %d\ns_add_u32 s3, s3, 1024' % (16 * 1152))
            a('v_mul_u32_u24 v7, 1152, v1\nv_add_u32 v7, s3, v7\ns_mov_b64 exec, 0xffff\nglobal_load_dword v37, v7, s[8:9]\ns_mov_b64 exec, -1')
        if c == 0 and o['tlb'] == 3: tlb_touch()
        if c == 8 and o['tlb'] == 4: tlb_touch()
    a('s_mov_b32 s54, %d\nL_hs:\ns_waitcnt lgkmcnt(0)' % SPIN)
    and16(84); and16(28); a('s_and_b32 s84, s84, s28')
    a('s_cbranch_scc1 L_hsok\ns_sub_u32 s54, s54, 1\ns_cbranch_scc1 L_hsok'); a(hs % (' glc', ' glc')); a('s_branch L_hs\nL_hsok:')
    a('s_barrier')
    a('L_help2:')
    run(xb('w0'))
    a('s_mul_i32 s17, s18, 3072')
    srd(SOUT, 10, 'out')
    a('s_lshl_b32 s3, s2, 9\ns_lshl_b32 s53, s18, 7\ns_add_u32 s62, s3, s53\ns_add_u32 s66, s14, s62\ns_addc_u32 s67, s15, 0')
    a('s_and_b32 s3, s2, 0xe7\ns_lshl_b32 s3, s3, 9\ns_add_u32 s53, s53, s3\ns_lshl_b32 s3, s22, 2\ns_add_u32 s53, s53, s3\nv_lshlrev_b32 v21, 12, v0')
    a('s_mul_i32 s55, s2, 3\ns_add_u32 s55, s55, s18\ns_lshl_b32 s55, s55, 13\ns_add_u32 s55, s55, %d\ns_add_u32 s56, s55, 4096' % G_PM)
    a('s_lshl_b32 s59, s23, 1\ns_lshr_b32 s3, s21, 2\ns_add_u32 s59, s59, s3\ns_mul_i32 s59, s59, 3\ns_add_u32 s59, s59, s18\ns_mul_i32 s59, s59, %d' % (16 * 1152))
    a('s_lshl_b32 s3, s22, 8\ns_add_u32 s59, s59, s3\ns_and_b32 s3, s21, 3\ns_lshl_b32 s3, s3, 6\ns_add_u32 s59, s59, s3')
    xs = [x_ for x_ in XN[2:-1] if x_ != 'w0']
    k = 0
    while True:
        nm = xs[k]; k += 1
        run(xb(nm))
        if nm == o['ack']:
            a('s_mov_b64 exec, 15\nbuffer_store_dword v29, v21, s[%d:%d], s53 offen sc1\ns_mov_b64 exec, -1' % (SWS, SWS + 3))
            stH('P flag sent')
        if nm == o['poll0']: break
    assert xs.index(o['ack']) < k and ALLN.index(xs[k]) >= ALLN.index('w4') and k < len(xs) - 1
    a('s_mov_b32 s54, %d\ns_mov_b32 s52, %d' % (SPIN, len(xs) - 1 - k))
    a('L_pp:\ns_load_dwordx4 s[84:87], s[66:67], 0 glc')
    a('s_cmp_eq_u32 s52, 0\ns_cbranch_scc1 L_pp1\ns_barrier\ns_sub_u32 s52, s52, 1\nL_pp1:')
    a('s_sub_u32 s54, s54, 1\ns_cbranch_scc1 L_ppok\ns_waitcnt lgkmcnt(0)')
    a('s_and_b64 s[84:85], s[84:85], s[86:87]\ns_and_b32 s84, s84, s85\ns_cbranch_scc0 L_pp\nL_ppok:')
    stH('P flags ok')
    a('s_and_b32 s58, s2, 0xe7\ns_mul_i32 s58, s58, 9216\ns_add_u32 s58, s58, s17\ns_add_u32 s58, s58, %d' % G_P)
    for d in range(4):
        a('s_add_u32 m0, s17, %d' % (L_P + 9216 * d))
        if d: a('s_add_u32 s58, s58, %d' % (8 * 9216))
        for j in range(3): a('buffer_load_dwordx4 v25, s[%d:%d], s58 offen offset:%d sc1 lds' % (SWS, SWS + 3, 1024 * j))
    a('L_pb:\ns_cmp_eq_u32 s52, 0\ns_cbranch_scc1 L_pbd\ns_barrier\ns_sub_u32 s52, s52, 1\ns_branch L_pb\nL_pbd:')
    a('s_waitcnt vmcnt(0)')
    stH('P landed')
    a('s_barrier\ns_barrier')
    a('s_mov_b32 s54, %d' % SPIN)
    reduce('mp', 8, 4, 32, 25, 's59', stH)
    if stamps:
        a('s_waitcnt vmcnt(0)'); stH('end'); stH.flush(7)
    a('L_end:\ns_endpgm\nL_codeend:')
    a(kernel_desc(KN, 256, 256))
    a.lines = hazard.pad(a.lines, False)
    return a.text()
if __name__ == '__main__':
    import json
    name = sys.argv[1] if len(sys.argv) > 1 else 'p8_v7'
    opt = json.loads(sys.argv[2]) if len(sys.argv) > 2 else None
    open(name + '.s', 'w').write(gen(0, opt))
    open(name + '_st.s', 'w').write(gen(1, opt))
    open(name + '_st2.s', 'w').write(gen(2, opt))
```

```python
import sys, math, struct
from asmlib import *
import hazard
from gen_f16 import Cnt, interleave, f2i, v

L_W = 0; L_X0 = 49152; XOFF = [0, 12288, 49152]; L_K = 73728; L_Q = 49152; L_P = 73728; L_F = 110592; L_V = 114688
G_FL = 0x0
G_P = 0x40000
G_PM = 0x400000
G_PO = 0xC00000
SX, SWQ, SK, SV, SWO, SWS, SOUT = 24, 28, 32, 36, 40, 44, 48
SPIN = 1 << 16
MF = 'v_mfma_f32_16x16x32_bf16 %s, %s, %s, %s'

def gen(stamps=0, opt=None):
    o = dict(order='qqqKqqqqqq', win=24, codepf=True, rot='g3', pk=True, lprio=0, afterB8=1, afterBQ=4, ack='w1', poll0='w3', cprio=0, prog=False, x4=True, xo=12, ef=2, xe='H', sent=1, clr='w7', e2=0, nt={}, split=1, uprio=0, early_flag=True, outsc='', first_half=False, hsbar=4, poll='s', psleep=0, tlb=0, remap=0, oddpf=7, rot2=1, lateat=3, own=1, b8a=0, tm=1, q64=2, stlb=0, hack='', atom=1, rep=1, wsw=1, ownp=1, atune=0, oe=0, hsbar_=0, ownat='w3', e0=4, e1='end', m0o=1, rsl=6, qs=5, fine0=1, wqfirst=0, skip=['w0', 'w5'], noself=1)
    if opt: o.update(opt)
    a = Asm()
    a('; @launch grid=(256,1,1) block=(512,1,1) lds=163840')
    a(HEAD); a(kernel_begin(KN))
    def run(seq):
        for x in seq:
            if callable(x): x()
            else: a(x)
    class St:
        def __init__(s, base, n, r0): s.base = base; s.n = n; s.k = 0; s.r0 = r0
        def __call__(s, name='x', lvl=1):
            if ((stamps >= lvl and lvl < 2) or stamps == lvl) and (stamps != 5 or name in ('start', 'final end')):
                assert s.k < s.n, name
                a('; stamp %d %s' % (s.base + s.k, name))
                a('s_memrealtime s[%d:%d]' % (s.r0 + 2 * s.k, s.r0 + 1 + 2 * s.k)); s.k += 1
        def flush(s, wave):
            if stamps and s.k:
                l_ = a.label('L_nst')
                a('s_cmp_lg_u32 s20, %d\ns_cbranch_scc1 %s' % (wave, l_))
                a('s_waitcnt lgkmcnt(0)\nv_mov_b32 v31, 0\ns_lshl_b32 s3, s2, 9\ns_add_u32 s3, s3, %d' % (STAMP_OFF + 8 * s.base))
                for i in range(s.k):
                    a('v_mov_b32 v254, s%d\nv_mov_b32 v255, s%d' % (s.r0 + 2 * i, s.r0 + 1 + 2 * i))
                    a('buffer_store_dwordx2 v[254:255], v31, s[%d:%d], s3 offen offset:%d' % (SWS, SWS + 3, 8 * i))
                a(l_ + ':')
    stC = St(0, 21, 60); stL = St(24, 17, 68); stH = St(44, 6, 32)
    W0 = 's_waitcnt lgkmcnt(0)'
    FOP = 'buffer_atomic_add' if o['atom'] else 'buffer_store_dword'
    MOFF = (4 if o['rep'] > 1 else 64) if o['atom'] else 32
    OOFF = 0
    assert o['rep'] in (1, 2) and (o['atom'] or o['rep'] == 1)
    stC('start')
    a('s_cmp_ge_u32 s2, 256\ns_cbranch_scc1 L_end')
    a('s_load_dwordx2 s[%d:%d], s[0:1], %d' % (SX, SX + 1, SLOT['x']))
    a('s_load_dwordx2 s[%d:%d], s[0:1], %d' % (SWQ, SWQ + 1, SLOT['wq']))
    a('s_load_dwordx4 s[4:7], s[0:1], %d' % SLOT['k'])
    a('s_load_dwordx8 s[8:15], s[0:1], %d' % SLOT['wo'])
    if o['remap'] == 1: a('s_lshr_b32 s3, s2, 2\ns_and_b32 s3, s3, 0x18\ns_xor_b32 s2, s2, s3')
    if o['remap'] == 2: a('s_lshr_b32 s3, s2, 3\ns_and_b32 s3, s3, 0x18\ns_lshl_b32 s21, s2, 2\ns_and_b32 s21, s21, 0xe0\ns_and_b32 s2, s2, 7\ns_or_b32 s2, s2, s3\ns_or_b32 s2, s2, s21')
    if o['remap'] == 3: a('s_xor_b32 s2, s2, 0x18')
    a('v_lshrrev_b32 v1, 6, v0\nv_and_b32 v0, 63, v0\nv_readfirstlane_b32 s20, v1')
    if o['wsw']: a('s_xor_b32 s20, s20, 4')
    a('s_and_b32 s21, s2, 7\ns_bfe_u32 s22, s2, 0x20003\ns_lshr_b32 s23, s2, 5')
    a('v_and_b32 v1, 15, v0\nv_lshrrev_b32 v2, 4, v0')
    def srd(r, src, n):
        if src is not None: a('s_mov_b32 s%d, s%d\ns_mov_b32 s%d, s%d' % (r, src, r + 1, src + 1))
        a('s_mov_b32 s%d, %d\ns_mov_b32 s%d, 0x20000' % (r + 2, SIZES[n], r + 3))
    H0 = 's_and_b32 s16, s22, 2\ns_add_u32 s16, s16, s22\ns_xor_b32 s16, s16, s23'
    if o['rot2'] == 1: H0 = 's_and_b32 s16, s22, 2\ns_xor_b32 s16, s16, s23\ns_and_b32 s16, s16, 3\ns_lshl_b32 s16, s16, 1'
    if o['rot2'] == 2: H0 = 's_and_b32 s16, s22, 2\ns_lshl_b32 s16, s16, 1\ns_xor_b32 s16, s16, s23'
    if o['rot2'] == 3: H0 = 's_and_b32 s16, s23, 3\ns_lshl_b32 s16, s16, 1\ns_and_b32 s3, s22, 2\ns_add_u32 s3, s3, s22\ns_xor_b32 s16, s16, s3'
    a('s_cmp_lt_u32 s20, 4\ns_cbranch_scc1 L_comp')
    a('s_cmp_gt_u32 s20, 4\ns_cbranch_scc1 L_help')
    def gpoll(name, nw, off):
        sl = ('s_sleep %d\n' % o['psleep']) if o['psleep'] else ''
        if o['rep'] == 2:
            a(W0 + '\ns_mov_b64 s[84:85], 0\ns_load_dword s85, s[66:67], %d glc\ns_sleep %d' % (off + 64, o['rsl']))
            a('L_%s:' % name)
            for r_ in range(2):
                a('s_load_dword s%d, s[66:67], %d glc\ns_waitcnt lgkmcnt(1)\ns_max_u32 s30, s84, s85\ns_cmp_ge_u32 s30, %d\ns_cbranch_scc1 L_%sok' % (84 + r_, off + 64 * r_, nw, name))
            a('s_sub_u32 s54, s54, 1\ns_cbranch_scc0 L_%s\nL_%sok:' % (name, name))
        elif o['atom']:
            a('L_%s:\n%ss_load_dword s84, s[66:67], %d glc\ns_sub_u32 s54, s54, 1\ns_cbranch_scc1 L_%sok\ns_waitcnt lgkmcnt(0)' % (name, sl, off, name))
            a('s_cmp_lt_u32 s84, %d\ns_cbranch_scc1 L_%s\nL_%sok:' % (nw, name, name))
        elif o['poll'] == 'p':
            a(W0)
            for i in range(0, nw, 2): a('s_mov_b64 s[%d:%d], 0' % (84 + i, 85 + i))
            a('L_%s:\ns_load_dwordx%d s[84:%d], s[66:67], %d glc\n%ss_sub_u32 s54, s54, 1\ns_cbranch_scc1 L_%sok' % (name, nw, 83 + nw, off, sl, name))
            a('s_and_b64 s[30:31], s[84:85], s[86:87]')
            for i in range(4, nw, 2): a('s_and_b64 s[30:31], s[30:31], s[%d:%d]' % (84 + i, 85 + i))
            a('s_and_b32 s30, s30, s31\ns_cbranch_scc0 L_%s\nL_%sok:' % (name, name))
        elif o['poll'] == 's':
            a('L_%s:\n%ss_load_dwordx%d s[84:%d], s[66:67], %d glc\ns_sub_u32 s54, s54, 1\ns_cbranch_scc1 L_%sok\ns_waitcnt lgkmcnt(0)' % (name, sl, nw, 83 + nw, off, name))
            k = nw
            while k > 2:
                k //= 2
                for i in range(0, k, 2): a('s_and_b64 s[%d:%d], s[%d:%d], s[%d:%d]' % (84 + i, 85 + i, 84 + i, 85 + i, 84 + k + i, 85 + k + i))
            a('s_and_b32 s84, s84, s85\ns_cbranch_scc0 L_%s\nL_%sok:' % (name, name))
        else:
            a('v_and_b32 v19, %d, v0\nv_lshlrev_b32 v19, 2, v19' % (nw - 1))
            a('L_%s:\n%sbuffer_load_dword v18, v19, s[%d:%d], s62 offen offset:%d sc1\ns_sub_u32 s54, s54, 1\ns_cbranch_scc1 L_%sok\ns_waitcnt vmcnt(0)' % (name, sl, SWS, SWS + 3, off, name))
            a('v_cmp_ne_u32 vcc, 1, v18\ns_cbranch_vccnz L_%s\nL_%sok:' % (name, name))
    def clears(all12=False, va=4, vd=12):
        a('s_lshl_b32 s3, s23, 1\ns_and_b32 s58, s22, 1\ns_add_u32 s3, s3, s58\ns_mul_i32 s3, s3, 3\n' + ('' if all12 else 's_add_u32 s3, s3, s18\n') + 's_lshl_b32 s58, s3, 15')
        a('s_lshl_b32 s3, s21, 1\ns_lshr_b32 s59, s22, 1\ns_add_u32 s3, s3, s59\ns_lshl_b32 s3, s3, 9\ns_add_u32 s58, s58, s3\ns_add_u32 s58, s58, %d' % G_PO) if all12 else \
        a('s_lshl_b32 s3, s21, 1\ns_lshr_b32 s57, s22, 1\ns_add_u32 s3, s3, s57\ns_lshl_b32 s3, s3, 9\ns_add_u32 s58, s58, s3\ns_add_u32 s58, s58, %d' % G_PO)
        a('v_and_b32 v%d, 31, v0\nv_lshrrev_b32 v%d, 5, v0\nv_lshlrev_b32 v%d, 4, v%d\nv_lshl_add_u32 v%d, v%d, 13, v%d' % (va, va + 1, va, va, va, va + 1, va))
        for i in range(4): a('v_mov_b32 v%d, -1' % (vd + i))
        for i in range(6 if all12 else 2):
            if i: a('s_add_u32 s58, s58, 16384')
            a('buffer_store_dwordx4 v[%d:%d], v%d, s[%d:%d], s58 offen sc1' % (vd, vd + 3, va, SWS, SWS + 3))
            if all12: vm.issue('clr')
    vm = Cnt(a, 'vmcnt', 63)
    XV, WV, OV, KV, DV, VV = 8, 12, 16, 20, 24, 28
    if o['lprio']: a('s_setprio %d' % o['lprio'])
    srd(SX, None, 'x'); srd(SWQ, None, 'wq')
    a('v_lshrrev_b32 v3, 3, v0\nv_and_b32 v4, 7, v0')
    def quad(base, step):
        a('v_xor_b32 v7, 64, v%d\nv_add_u32 v%d, %d, v7' % (base, base + 1, step))
        a('v_add_u32 v%d, %d, v%d\nv_add_u32 v%d, %d, v%d' % (base + 2, 2 * step, base, base + 3, 2 * step, base + 1))
    a('v_mul_u32_u24 v5, 1152, v3\nv_xor_b32 v32, v4, v2\nv_lshl_add_u32 v%d, v32, 4, v5' % XV)
    quad(XV, 8 * 1152 - 1024)
    a('v_lshlrev_b32 v6, 1, v2\nv_xor_b32 v6, v6, v1\nv_lshlrev_b32 v6, 4, v6')
    a('v_lshl_add_u32 v%d, v2, 13, v6' % WV)
    a('v_add_u32 v%d, %d, v%d' % (WV + 1, 4 * 8192 - 1024, WV))
    a('v_xor_b32 v7, 128, v%d\nv_add_u32 v%d, %d, v7\nv_add_u32 v%d, %d, v7' % (WV, WV + 2, 2 * (4 * 8192 - 1024), WV + 3, 3 * (4 * 8192 - 1024)))
    if o['rot'] == 'g3':
        a('s_add_u32 s17, s22, s23\ns_mul_i32 s3, s17, 43\ns_lshr_b32 s3, s3, 7\ns_mul_i32 s3, s3, 3\ns_sub_u32 s17, s17, s3\ns_mul_i32 s17, s17, 3')
    elif o['rot'] == 'g4':
        a('s_add_u32 s17, s22, s23\ns_and_b32 s17, s17, 3\ns_mul_i32 s17, s17, 9\ns_lshr_b32 s17, s17, 2')
    elif o['rot'] == 'g2':
        a('s_add_u32 s17, s22, s23\ns_and_b32 s17, s17, 1\ns_mul_i32 s17, s17, 5')
    elif o['rot'] == 'g9':
        a('s_lshl_b32 s17, s22, 1\ns_add_u32 s17, s17, s23\ns_cmp_ge_u32 s17, 9\ns_cselect_b32 s3, 9, 0\ns_sub_u32 s17, s17, s3')
    else: a('s_mov_b32 s17, 0')
    a('s_mul_i32 s52, s23, 110592')
    a('s_lshl_b32 s53, s21, 10\ns_lshl_b32 s3, s22, 8\ns_add_u32 s53, s53, s3')
    a('s_waitcnt lgkmcnt(0)')
    stL('L kernarg')
    if o['stlb'] >= 1:
        a('s_lshl_b32 s57, s17, 19\ns_add_u32 s57, s57, s53\ns_load_dword s58, s[%d:%d], s57' % (SWQ, SWQ + 1))
    if o['stlb'] >= 2:
        a('s_mov_b32 s57, 0x200000\ns_mov_b32 s59, 0x400000')
        for base in (SWQ, 8, 4, 6): a('s_load_dword s58, s[%d:%d], 0\ns_load_dword s58, s[%d:%d], s57' % (base, base + 1, base, base + 1))
        for base in (SWQ, 8): a('s_load_dword s58, s[%d:%d], s59' % (base, base + 1))
    def group(vreg, n, srd_, lds, tag, adv=None, dyn=None):
        seq = [('s_add_u32 m0, %s, %d' % (dyn, lds) if dyn else 's_mov_b32 m0, %d' % lds) + ('\ns_add_u32 s57, s57, %s' % adv if adv else '')]
        for j in range(n):
            def f(j=j):
                if len(vm.seq) >= 60:
                    a('s_waitcnt vmcnt(44)'); vm.seq = vm.seq[-44:]
                a('buffer_load_dwordx4 v%d, s[%d:%d], s57 offen offset:%d %s lds' % (vreg + j, srd_, srd_ + 3, 1024 * j, o['nt'].get({SX: 'x', SWQ: 'q', SK: 'k', SV: 'v', SWO: 'o'}[srd_] + tag[-1], o['nt'].get({SX: 'x', SWQ: 'q', SK: 'k', SV: 'v', SWO: 'o'}[srd_], '')))); vm.issue(tag)
            seq.append(f)
        return seq
    def item_q(c):
        st = c % 3; tag = 'n%d' % c
        m0o = o['m0o'] and c >= o['lateat']
        sx = ['s_lshl_b32 s57, s17, 7\ns_add_u32 s57, s57, s52']
        for t in range(3): sx += group(40 + 4 * t if m0o and t else XV, 4, SX, L_X0 + XOFF[st] + 4096 * t, tag, 32 * 1152 if t and not m0o else None)
        sw = ['s_lshl_b32 s57, s17, 19\ns_add_u32 s57, s57, s53']
        for t in range(4): sw += group(52 + 4 * t if m0o and t else WV, 4, SWQ, L_W + 16384 * st + 4096 * t, tag + ('b' if c == 8 and t >= 2 and o['b8a'] else ''), 16 * 8192 if t and not m0o else None)
        seq = sw + sx if o['wqfirst'] else sx + sw
        seq += ['s_add_u32 s17, s17, 1\ns_cmp_eq_u32 s17, 9\ns_cselect_b32 s17, 0, s17']
        return seq
    def item_k():
        seq = ['s_lshr_b32 s3, s22, 1\ns_add_u32 s57, s54, s3\ns_mul_i32 s57, s57, 12288']
        for t in range(6): seq += group(KV, 4, SK, L_K + 4096 * t, 'k', None if t == 0 else (4096 if t != 3 else 16 * 12288 - 8192))
        return seq
    WSLOT = {'w0': 0, 'w1': 1, 'w2': 2, 'w3': 4.5, 'w4': 3, 'w5': 0, 'w6': 1, 'w7': 2, 'o0': 3, 'o1': 0}
    assert L_P == 4.5 * 16384
    NEED = {'w3': 1, 'w4': 2, 'w5': 3, 'w6': 5, 'w7': 6}
    L_O1 = L_P
    STAGES = ['w0', 'w1', 'o0', 'o1', 'w2', 'w3', 'w4', 'w5', 'w6', 'w7']
    def item_v(vp):
        seq = ['s_lshr_b32 s3, s16, 2\ns_xor_b32 s3, s3, %d\ns_add_u32 s57, ' % (vp >> 1) + ('s63' if 'd' in o['hack'] else 's54') + ', s3\ns_mul_i32 s57, s57, 12288\ns_xor_b32 s3, s16, %d\ns_and_b32 s3, s3, 1\ns_lshl_b32 s3, s3, 7\ns_add_u32 s57, s57, s3' % (vp & 1)]
        for b in range(2):
            seq += group(VV, 4, SV, L_V + 12288 * vp + 6144 * b, 'v%d' % vp, 16 * 12288 - 8192 if b else None)
            seq += group(VV, 2, SV, L_V + 12288 * vp + 6144 * b + 4096, 'v%d' % vp, 8192)
        return seq
    def item_w(p):
        lds = int(L_W + 16384 * WSLOT['w%d' % p])
        seq = ['s_xor_b32 s3, s16, %d\ns_mul_i32 s57, s3, %d\ns_add_u32 s57, s57, s60' % (p, 64 * 1152)]
        for t in range(4): seq += group(68 + 4 * t if o['m0o'] and t else OV, 4, SWO, lds + 4096 * t, 'w%d' % p, 16 * 1152 if t and not o['m0o'] else None)
        return seq
    def item_o(e):
        lds = L_W + 16384 * WSLOT['o%d' % e]; seq = []
        for hf in range(2):
            seq += ['s_xor_b32 s3, s16, %d\ns_mul_i32 s57, s3, %d\ns_add_u32 s57, s57, s62' % (2 * e + hf, 64 * 1152)]
            for t in range(2): seq += group(DV, 4, SWO, lds + 8192 * hf + 4096 * t, 'o%d' % e, 32 * 1152 if t else None)
        return seq
    def item(nm):
        seq = {'v': item_v, 'w': item_w, 'o': item_o}[nm[0]](int(nm[1]))
        cut = 9 if nm[0] == 'v' else 11
        if nm[2:] == 'a': return seq[:cut] + ['s_mov_b32 s61, s57']
        if nm[2:] == 'b': return ['s_mov_b32 s57, s61'] + seq[cut:]
        return seq
    def late_setup():
        srd(SK, 4, 'k'); srd(SV, 6, 'v'); srd(SWO, 8, 'wo'); srd(SWS, 14, 'ws')
        if 'd' in o['hack']: srd(SV, SX, 'x'); srd(SWO, SX, 'x')
        if 'k' in o['hack']: srd(SK, SX, 'x')
        a('v_mul_u32_u24 v7, 1152, v2\nv_add_u32 v%d, v7, v6\nv_add_u32 v%d, %d, v%d' % (OV, OV + 1, 4 * 1152 - 1024, OV))
        a('v_xor_b32 v6, 128, v6\nv_add_u32 v7, v7, v6\nv_add_u32 v%d, %d, v7\nv_add_u32 v%d, %d, v7' % (OV + 2, 2 * (4 * 1152 - 1024), OV + 3, 3 * (4 * 1152 - 1024)))
        a('v_xor_b32 v6, v1, v2\nv_lshlrev_b32 v6, 4, v6\nv_lshl_add_u32 v%d, v2, 8, v6' % KV)
        for j in range(1, 4): a('v_xor_b32 v%d, %d, v%d' % (KV + j, 64 * j, KV))
        a('v_and_b32 v6, 1, v2\nv_lshlrev_b32 v6, 1, v6\nv_xor_b32 v6, v6, v4\nv_lshl_add_u32 v%d, v6, 4, v5' % DV)
        quad(DV, 8 * 1152 - 1024)
        a('v_lshlrev_b32 v6, 8, v3\nv_lshl_add_u32 v%d, v32, 4, v6' % VV)
        quad(VV, 8 * 256 - 1024)
        if o['m0o']:
            for base, src, n, st_ in ((40, XV, 3, 32 * 1152), (52, WV, 4, 16 * 8192), (68, OV, 4, 16 * 1152)):
                for t in range(1, n):
                    a('s_mov_b32 s3, %d' % (t * st_))
                    for j in range(4): a('v_add_u32 v%d, s3, v%d' % (base + 4 * t + j, src + j))
        a(H0)
        a('s_lshl_b32 s54, s23, 5\ns_lshl_b32 s3, s21, 1\ns_add_u32 s54, s54, s3')
        if 'd' in o['hack']: a('s_and_b32 s63, s23, 1\ns_lshl_b32 s63, s63, 5')
        a(('s_mov_b32 s60, 0 ; %d' if 'd' in o['hack'] else 's_mul_i32 s60, s21, %d') % (512 * 1152))
        a('s_add_u32 s62, s60, 1024\ns_lshl_b32 s3, s22, 8\ns_add_u32 s60, s60, s3')
    nq = 0; nbar = 0; since = {}
    def bar():
        nonlocal nbar
        vm.wait('n%d' % nbar)
        if nbar in (1, 2, 3, 8): stL('L at B%d' % nbar, 2)
        if nbar < 4: stL('L at B%d' % nbar, 3)
        a('s_barrier'); nbar += 1
    for t in o['order']:
        if t == 'q':
            while nbar < nq - 1 and nq >= 3: bar()
            seq = item_q(nq)
            if o['first_half'] and nq in (1, 2) and nbar == nq - 1:
                run(seq[:16]); bar(); run(seq[16:])
            else: run(seq)
            sz = 28; nq += 1
            if nq <= 2: stL('L issued q%d' % (nq - 1), 3)
            if o['sent'] and o['clr'] == 'L%d' % nq: srd(SWS, 14, 'ws'); clears(True, 90, 92)
            if nq == o['lateat']: late_setup()
        elif t == 'K': run(item_k()); sz = 24
        elif t == 'V': run(item_v(0)); sz = 12
        for c in list(since): since[c] += sz
        if t == 'q': since[nq - 1] = 0
        while nbar < nq and since[nbar] >= o['win']: bar()
    while nbar < 8: bar()
    pre8 = o.get('pre8') or (['w0'] if 'V' in o['order'] else ['v0', 'w0'])
    seq = [x_ for it in pre8 for x_ in item(it)]
    if o['b8a']:
        run(seq[:-10]); bar(); run(seq[-10:]); vm.wait('n8b'); a('s_barrier')
    else:
        run(seq); bar()
    XB = [('BQ', []), ('BP', ['v0', 'w0']), ('w0', ['v1', 'w1']), ('w1', ['w2']), ('w2', ['w3']), ('w3', ['v2', 'w4']),
          ('w4', ['v3', 'w5']), ('w5', ['w6']), ('w6', ['w7']), ('w7', []), ('O', ['o0', 'o1'])]
    for sk in o['skip']:
        i_ = [x_[0] for x_ in XB].index(sk)
        XB[i_ - 1] = (XB[i_ - 1][0], XB[i_ - 1][1] + XB[i_][1]); del XB[i_]
    XN = [x_[0] for x_ in XB]
    plan = o.get('plan') or {'B8': ['v1', 'w1'], 'BQ': ['w2', 'w3', 'v2'], 'BP': ['w4', 'v3'], 'w1': ['w5'], 'w2': ['w6'], 'w3': ['w7'], 'w6': ['o0'], 'w7': ['o1']}
    FREEAT = {'w1': 'B8', 'w2': 'BQ', 'w3': 'BQ', 'w4': 'BP', 'w5': 'w1', 'w6': 'w2', 'w7': 'w3', 'o0': 'w5', 'o1': 'w6'}
    ALLN = ['B8', 'BQ', 'BP'] + ['w%d' % i_ for i_ in range(8)] + ['O']
    names = ['B8'] + [x_[0] for x_ in XB]
    issued = set(pre8) | ({'v0'} if 'V' in o['order'] else set())
    last = 'B8'
    for nm, need in XB:
        for it in plan.get(last, []):
            assert it[0] == 'v' or ALLN.index(FREEAT[it[:2]]) <= ALLN.index(last), (it, last)
            run(item(it))
            if it[2:] != 'a': issued.add(it[:2])
        assert all(x_ in issued for x_ in need), (nm, need)
        vm.wait(need)
        stL('L at ' + nm, 2)
        a('s_barrier'); last = nm
    assert len(issued) == 14
    stL('L done')
    stL.flush(4)
    if 'f' in o['hack']: a('s_endpgm')
    if o['stlb']: a(W0)
    srd(SOUT, 10, 'out')
    a('s_lshl_b32 s52, s21, 1\ns_lshr_b32 s3, s22, 1\ns_add_u32 s52, s52, s3')
    if stamps == 4: a('s_min_u32 s52, s52, 11\ns_lshr_b32 s3, s52, 1\ns_and_b32 s75, s52, 1\ns_lshl_b32 s75, s75, 4\ns_or_b32 s75, s75, s3\ns_and_b32 s3, s2, 0xe8\ns_or_b32 s75, s75, s3')
    a('s_cmp_ge_u32 s52, 12\ns_cbranch_scc1 L_end')
    a('s_lshl_b32 s3, %s, 9\ns_add_u32 s62, s3, %d\ns_add_u32 s66, s14, s62\ns_addc_u32 s67, s15, 0' % ('s75' if stamps == 4 else 's2', G_FL + 384))
    a('s_mov_b32 s54, %d' % SPIN)
    a('s_lshl_b32 s3, s23, 1\ns_and_b32 s53, s22, 1\ns_add_u32 s53, s53, s3')
    a('s_mul_i32 s55, s53, 12\ns_add_u32 s55, s55, s52\ns_lshl_b32 s55, s55, 13\ns_add_u32 s55, s55, %d\ns_add_u32 s56, s55, 4096' % G_PO)
    a('s_mul_i32 s58, s52, 43\ns_lshr_b32 s58, s58, 7\ns_mul_i32 s3, s58, 3\ns_sub_u32 s3, s52, s3')
    a('s_mul_i32 s57, s53, 3\ns_add_u32 s57, s57, s3\ns_mul_i32 s57, s57, %d\ns_lshl_b32 s58, s58, 5\ns_add_u32 s57, s57, s58\ns_add_u32 s57, s57, 1024' % (16 * 1152))
    a('v_lshlrev_b32 v6, 3, v0')
    def and16(b):
        for i in range(0, 16, 4): a('s_and_b64 s[%d:%d], s[%d:%d], s[%d:%d]' % (b + i, b + 1 + i, b + i, b + 1 + i, b + 2 + i, b + 3 + i))
        a('s_and_b64 s[%d:%d], s[%d:%d], s[%d:%d]\ns_and_b64 s[%d:%d], s[%d:%d], s[%d:%d]\ns_and_b64 s[%d:%d], s[%d:%d], s[%d:%d]\ns_and_b32 s%d, s%d, s%d' % (
            b, b + 1, b, b + 1, b + 4, b + 5, b + 8, b + 9, b + 8, b + 9, b + 12, b + 13, b, b + 1, b, b + 1, b + 8, b + 9, b, b, b + 1))
    def reduce(name, nsrc, w, off, vaddr, outs, st=None):
        per = nsrc // 2; sz = 256 * w
        def ld(j): return 'buffer_load_dwordx%d %s, v%d, s[%d:%d], s%d offen offset:%d sc1' % (w, v(32 + w * j, w), vaddr, SWS, SWS + 3, 55 + j // per, sz * (j % per))
        if o['x4'] and w == 4: a('v_mul_u32_u24 v3, 1152, v1\nv_lshl_add_u32 v3, v2, 4, v3')
        else: a('v_mul_u32_u24 v3, 1152, v1\nv_lshl_add_u32 v3, v2, 3, v3')
        a('s_mov_b32 s28, 0x00003f80\ns_mov_b32 s29, 0x3f800000')
        if o['prog']:
            a('s_mov_b32 s63, 0')
            a('L_%s:\ns_load_dwordx%d s[84:%d], s[66:67], %d glc\ns_sub_u32 s54, s54, 1\ns_cselect_b32 s30, -1, 0\ns_waitcnt lgkmcnt(0)' % (name, nsrc, 83 + nsrc, off))
            k = nsrc; sh = 1
            while k > 1:
                for i in range(0, nsrc, 2 * sh):
                    if sh <= 4: a('s_lshl%d_add_u32 s%d, s%d, s%d' % (sh, 84 + i, 84 + i + sh, 84 + i))
                    else: a('s_lshl_b32 s%d, s%d, %d\ns_or_b32 s%d, s%d, s%d' % (84 + i + sh, 84 + i + sh, sh, 84 + i, 84 + i, 84 + i + sh))
                k //= 2; sh *= 2
            a('s_or_b32 s84, s84, s30\ns_and_b32 s84, s84, %d\ns_andn2_b32 s85, s84, s63\ns_cbranch_scc0 L_%s\ns_or_b32 s63, s63, s84' % ((1 << nsrc) - 1, name))
            for j in range(nsrc):
                a('s_bitcmp1_b32 s85, %d\ns_cbranch_scc0 L_%s_%d\n%s\nL_%s_%d:' % (j, name, j, ld(j), name, j))
            a('s_cmp_lg_u32 s63, %d\ns_cbranch_scc1 L_%s' % ((1 << nsrc) - 1, name))
            if st: st('flags ok')
            a('s_waitcnt vmcnt(0)')
        else:
            own = o['own'] and w == 4
            oe = own and o['oe'] and o['xe'] in ('E', 'G', 'H') and o['atom']
            if o['xe']: a('s_barrier')
            if oe: a('ds_read_b128 v[32:35], v27')
            gpoll(name, nsrc - (1 if oe else 0), off)
            if stamps == 4: a('s_memrealtime s[68:69]')
            if st: st('flags ok')
            if o['sent'] and w == 2: a('s_mov_b32 s63, 0\nL_again:')
            for j in range(nsrc):
                if j or not own: a(ld(j))
            if own and not oe: a('ds_read_b128 v[32:35], v27')
        for j in range(nsrc):
            if not o['prog'] and not (oe and j == 0): a(W0 if own and j == 0 else 's_waitcnt vmcnt(%d)' % (nsrc - 1 - j))
            for t in range(w):
                src = 32 + w * j + t
                if j == 0: a('v_lshlrev_b32 v%d, 16, v%d\nv_and_b32 v%d, 0xffff0000, v%d' % (8 + 2 * t, src, 9 + 2 * t, src))
                elif o.get('dot'): a('v_dot2_f32_bf16 v%d, v%d, s28, v%d\nv_dot2_f32_bf16 v%d, v%d, s29, v%d' % (8 + 2 * t, src, 8 + 2 * t, 9 + 2 * t, src, 9 + 2 * t))
                else: a('v_lshlrev_b32 v16, 16, v%d\nv_and_b32 v17, 0xffff0000, v%d\nv_pk_add_f32 v[%d:%d], v[%d:%d], v[16:17]' % (src, src, 8 + 2 * t, 9 + 2 * t, 8 + 2 * t, 9 + 2 * t))
        if o['sent'] and w == 2: a('v_cmp_u_f32 vcc, v8, v10\ns_cbranch_vccnz L_retry\nL_accept:')
        if stamps == 4: a('s_memrealtime s[70:71]')
        for t in range(w): a('v_cvt_pk_bf16_f32 v%d, v%d, v%d' % (8 + t, 8 + 2 * t, 9 + 2 * t))
        if w == 4 and o['x4']:
            a('v_permlane32_swap_b32 v8, v10\nv_permlane32_swap_b32 v9, v11\nv_permlane16_swap_b32 v8, v10\nv_permlane16_swap_b32 v9, v11')
            a('buffer_store_dwordx4 v[8:11], v3, s[%d:%d], %s offen %s' % (SOUT, SOUT + 3, outs, o['outsc']))
        else:
            for t in range(w // 2): a('buffer_store_dwordx2 v[%d:%d], v3, s[%d:%d], %s offen offset:%d %s' % (8 + 2 * t, 9 + 2 * t, SOUT, SOUT + 3, outs, 32 * t, o['outsc']))
        if stamps >= 4:
            a('s_waitcnt vmcnt(0)\ns_memrealtime s[72:73]\ns_waitcnt lgkmcnt(0)\nv_mov_b32 v31, 0\ns_lshl_b32 s3, s2, 9\ns_mul_i32 s74, s20, 24\ns_add_u32 s3, s3, s74\ns_add_u32 s3, s3, %d' % (STAMP_OFF + 8 * 50 - 96))
            for i in range(3) if stamps == 4 else [2]:
                a('v_mov_b32 v254, s%d\nv_mov_b32 v255, s%d' % (68 + 2 * i, 69 + 2 * i))
                a('buffer_store_dwordx2 v[254:255], v31, s[%d:%d], s3 offen offset:%d' % (SWS, SWS + 3, 8 * i))
    if stamps == 4:
        for w_, nm in enumerate(['odd', 'r0', 'r1', 'r2']):
            for i, x_ in enumerate(['flags', 'summed', 'end']): a('; stamp %d %s %s' % (50 + 3 * w_ + i, nm, x_))
    reduce('op', 16, 2, 0, 6, 's57')
    a('s_endpgm')
    if o['sent']:
        a('L_retry:\ns_cmp_lg_u32 s63, 0\ns_cbranch_scc1 L_accept\ns_mov_b32 s63, 1\ns_mov_b32 s54, %d' % SPIN)
        gpoll('oq', 16, 64)
        a('s_branch L_again')
    a('L_comp:')
    lg = Cnt(a, 'lgkmcnt', 15)
    stC('C entry', 3)
    XA, WA, VA, OVA, OA, QA, FRA, FUA, FV, FC, PFA = 10, 12, 16, 18, 20, 21, 22, 23, 24, 27, 31
    A = 32; F = [80, 108]; B = 136; C = 184; VWO = 232; SP = 244
    KF = B; QF = 80; S = 96; P = SP; KA = 184; UA = 254; QT = 192
    a('v_bfe_u32 v3, v0, 2, 2\nv_and_b32 v4, 3, v0')
    a('s_lshr_b32 s18, s20, 1\ns_and_b32 s17, s20, 1')
    a(H0)
    a('v_lshrrev_b32 v7, 1, v1\nv_xor_b32 v7, v7, v2\nv_lshlrev_b32 v7, 4, v7\nv_lshl_add_u32 v5, v1, 7, v7\nv_xor_b32 v6, 64, v5')
    a('s_mul_i32 s3, s18, 6144\ns_add_u32 s3, s3, %d' % L_X0)
    a('v_add_u32 v%d, s3, v5\nv_add_u32 v%d, s3, v6' % (XA, XA + 1))
    a('s_add_u32 s3, s3, %d\nv_add_u32 v%d, s3, v5\nv_add_u32 v%d, s3, v6' % (L_V - L_X0, VA, VA + 1))
    a('s_and_b32 s3, s22, 1\ns_mul_i32 s3, s3, 6144\ns_add_u32 s3, s3, %d' % L_V)
    a('v_add_u32 v%d, s3, v5\nv_add_u32 v%d, s3, v6' % (OVA, OVA + 1))
    a('v_and_b32 v7, 1, v2\nv_lshl_add_u32 v7, v7, 2, v3\ns_lshl_b32 s3, s17, 2\nv_xor_b32 v7, s3, v7')
    a('v_lshl_add_u32 v5, v2, 3, v3\nv_lshlrev_b32 v8, 8, v5\nv_lshl_add_u32 v8, v4, 3, v8')
    assert L_W == 0
    for t in range(4): a('v_xor_b32 v9, %d, v7\nv_lshl_add_u32 v%d, v9, 5, v8' % (t, WA + t))
    a('v_and_b32 v7, 1, v2\nv_lshrrev_b32 v8, 1, v3\nv_lshl_add_u32 v7, v7, 1, v8\nv_xor_b32 v7, s20, v7')
    a('v_lshlrev_b32 v8, 7, v5\nv_lshl_add_u32 v8, v4, 3, v8\nv_lshl_add_u32 v%d, v7, 5, v8' % OA)
    a('s_mul_i32 s3, s18, 12288\ns_lshl_b32 s19, s17, 11\ns_add_u32 s3, s3, s19\ns_add_u32 s3, s3, %d' % L_Q)
    a('v_lshlrev_b32 v25, 4, v0\nv_lshlrev_b32 v26, 3, v0\nv_add_u32 v%d, s3, v%d' % (QA, 26 if o['q64'] else 25))
    a('s_and_b32 s59, s2, 0xf8\ns_lshl_b32 s48, s20, 1\ns_add_u32 s59, s59, s48\ns_mul_i32 s56, s59, 24576\ns_add_u32 s56, s56, %d\ns_add_u32 s57, s56, 24576' % G_PM)
    a('s_xor_b32 s48, s48, s21\ns_lshl_b32 s3, s48, 10\ns_add_u32 s56, s56, s3\ns_xor_b32 s3, s3, 1024\ns_add_u32 s57, s57, s3')
    if o['own']:
        a('s_cmp_eq_u32 s48, 0\ns_cselect_b32 s56, 0x7ff00000, s56\ns_cmp_eq_u32 s48, 1\ns_cselect_b32 s57, 0x7ff00000, s57\nv_add_u32 v27, %d, v25' % L_F)
    a('s_lshl_b32 s3, s23, 1\ns_and_b32 s54, s22, 1\ns_add_u32 s3, s3, s54\ns_mul_i32 s3, s3, 12\ns_mul_i32 s54, s20, 3\ns_add_u32 s3, s3, s54\ns_lshl_b32 s58, s3, 13')
    a('s_lshl_b32 s3, s21, 1\ns_lshr_b32 s55, s22, 1\ns_add_u32 s55, s55, s3\ns_lshl_b32 s3, s55, 9\ns_add_u32 s58, s58, s3\ns_add_u32 s58, s58, %d' % G_PO)
    a('v_and_b32 v5, 7, v0\nv_lshrrev_b32 v6, 3, v0')
    a('v_add_u32 v7, s59, v5\nv_lshlrev_b32 v7, 9, v7\n' + ('s_mov_b32 s3, %d' % (G_FL + MOFF) if o['atom'] else 's_lshl_b32 s3, s21, 2\ns_add_u32 s3, s3, %d' % (G_FL + MOFF)) + '\nv_add_u32 v7, s3, v7')
    a('s_sub_u32 s54, s54, 2\nv_add_u32 v8, s54, v5\nv_lshrrev_b32 v9, 1, v8\nv_and_b32 v8, 1, v8\nv_lshl_add_u32 v8, v8, 4, v9\ns_and_b32 s3, s2, 0xe8\nv_add_u32 v8, s3, v8\nv_lshlrev_b32 v8, 9, v8')
    a(('s_mov_b32 s3, %d' if o['atom'] else 's_lshl_b32 s3, s55, 2\ns_add_u32 s3, s3, %d') % (G_FL + 128 + OOFF) + '\nv_add_u32 v8, s3, v8\nv_mov_b32 v9, 0x7ff00000')
    a('v_lshl_add_u32 v7, v6, 6, v7\nv_lshl_add_u32 v8, v6, 6, v8\nv_cmp_gt_u32 vcc, %d, v6\nv_cndmask_b32 v5, 7, v5, vcc' % o['rep'])
    if o['own'] and o['oe'] and o['xe'] in ('E', 'G', 'H') and o['atom']: a('v_cmp_ne_u32 vcc, s48, v5\nv_cndmask_b32 v7, v9, v7, vcc')
    a('v_cmp_gt_u32 vcc, 5, v5\nv_cndmask_b32 v8, v9, v8, vcc\nv_cmp_gt_u32 vcc, 2, v5\nv_cndmask_b32 v30, v8, v7, vcc\nv_cndmask_b32 v28, v9, v7, vcc\nv_mov_b32 v29, 1')
    if 'g' in o['hack']: a('s_mov_b32 s56, 0x7ff00000\ns_mov_b32 s57, s56\ns_mov_b32 s58, s56')
    a('s_mov_b32 s52, s20')
    def unit_setup():
        a('s_cmp_ge_u32 s52, 3\ns_cselect_b32 s3, 12288, 0\ns_add_u32 s3, s3, %d' % L_K)
        a('v_lshrrev_b32 v7, 1, v2\nv_xor_b32 v7, v1, v7\nv_lshlrev_b32 v7, 4, v7\nv_lshl_add_u32 v7, v1, 8, v7\nv_and_b32 v8, 1, v2\nv_lshl_add_u32 v7, v8, 3, v7')
        for j in range(8): a('v_xor_b32 v8, %d, v7\nv_add_u32 v%d, s3, v8' % (32 * j, KA + j))
        a('s_lshl_b32 s3, s52, 12\ns_add_u32 s3, s3, %d\nv_add_u32 v%d, s3, v%d' % (L_Q, UA, 26 if o['q64'] else 25))
        a('s_mov_b32 s50, 0x%x\ns_mov_b32 s51, s50' % f2i(128 ** -0.5 * math.log2(math.e)))
        a('s_mul_i32 s3, s52, 1536\ns_mul_i32 s49, s2, 9216\ns_add_u32 s49, s49, s3\ns_add_u32 s49, s49, %d' % G_P)
    def k_reads(): return ['ds_read_b64 %s, v%d offset:%d' % (v(KF + 16 * kt + 2 * j, 2), KA + j, 4096 * kt) for j in range(8) for kt in range(3)]
    unit_setup()
    a(W0)
    srd(SWS, 14, 'ws')
    def wreads(st, off, wa=WA): return ['ds_read_b64_tr_b16 %s, v%d offset:%d' % (v(st + 4 * t + 2 * hh, 2), wa + t, off + 1024 * hh) for t in range(4) for hh in range(2)]
    def reads_A(n, ks, st=None):
        st = st or F[ks]
        return ['ds_read_b128 %s, v%d offset:%d' % (v(st + 16 + 4 * q, 4), XA + ks, XOFF[n % 3] + 2048 * q) for q in range(3)] + wreads(st, 16384 * (n % 3) + 8192 * ks)
    ORD = [(t, q if t % 2 == 0 else 2 - q) for t in range(4) for q in range(3)]
    def mfma(acc, ks, first, swap, od=None):
        out = []
        for t, q in od or ORD:
            d = v(acc + 4 * (3 * t + q), 4); x = v(F[ks] + 4 * t, 4); y = v(F[ks] + 16 + 4 * q, 4)
            if swap: x, y = y, x
            out.append(MF % (d, x, y, '0' if first else d))
        return out
    def cvt(d, s_): return ['v_cvt_pk_bf16_f32 v%d, v%d, v%d' % (d, s_, s_ + 1), 'v_cvt_pk_bf16_f32 v%d, v%d, v%d' % (d + 1, s_ + 2, s_ + 3)]
    def ds(txt, tag):
        def f(): a(txt); lg.issue(tag)
        return f
    def step(m, dsops, extra=(), waits=None, pre=(), xstart=0, dstart=0):
        n = len(m); per = [[] for _ in range(n)]
        for i, x_ in enumerate(pre): per[i].append(x_)
        nd = n - dstart
        for i, x_ in enumerate(dsops): per[dstart + (i if len(dsops) <= nd else i * nd // len(dsops))].append(x_)
        nx = n - xstart
        for i, x_ in enumerate(extra): per[xstart + (i * nx // len(extra))].append(x_)
        for i in range(n):
            if waits and i in waits: lg.wait(waits[i])
            a(m[i]); run(per[i])
    stC('C at B0', 3)
    a('s_barrier')
    stC('B0')
    def tA(n, ks): return [ds(x_, 'a%d%d%s' % (n, ks, 'lo' if i < 7 else 'hi')) for i, x_ in enumerate(reads_A(n, ks))]
    if o['atune']:
        bg = o['atune']
        run(tA(0, 0))
        for n in range(7):
            kr = [ds(x_, 'k') for x_ in k_reads()[6 * (n - 3):6 * (n - 2)]] if 3 <= n < 7 else []
            m = mfma(A, 0, n == 0, False)
            step(m[:10], tA(n, 1), waits={0: 'a%d0lo' % n, 6: 'a%d0hi' % n}); step(m[10:], [])
            m = mfma(A, 1, False, False)
            step(m[:bg], [], waits={0: 'a%d1lo' % n})
            lg.wait_all(); a('s_barrier')
            r = tA(n + 1, 0)
            run(r[:1]); step(m[bg:], r[1:] + kr)
        lg.seq = []
    else: run(reads_A(0, 0))
    for n in range(7 if o['atune'] else 0, 9):
        if n == 7 and o['tm']:
            assert not o['b8a']
            F2 = 204; QT = F[1]
            a(W0)
            run(interleave(mfma(A, 0, False, False), reads_A(7, 1), 0, 2))
            a(W0); a('s_barrier'); stC('B8')
            r0, r1 = reads_A(8, 0), reads_A(8, 1, F2)
            rr = []
            for idx in ([0], [3, 4], [5, 6], [1], [2], [7, 8], [9, 10]):
                rr += [r0[i] for i in idx] + [r1[i] for i in idx]
            run(interleave(mfma(A, 1, False, False), rr, 0, 2))
            stC('end 7,1', 3)
            m = []; qw = []
            for i, (tp, q) in enumerate([(tp, q) for tp in range(2) for q in range(3)]):
                for u in range(2):
                    t = 2 * tp + u; d = v(A + 4 * (3 * t + q), 4)
                    for st in (F[0], F2): m.append(MF % (d, v(st + 4 * t, 4), v(st + 16 + 4 * q, 4), d))
                    qw += cvt(QT + 4 * i + 2 * u, A + 4 * (3 * t + q))
                    if o['q64'] and 'q' not in o['hack']: qw[-1] += '\nds_write_b64 v%d, %s offset:%d' % (QA, v(QT + 4 * i + 2 * u, 2), q * 4096 + tp * 1024 + u * 512)
                if not o['q64']: qw[-1] += '\nds_write_b128 v%d, %s offset:%d' % (QA, v(QT + 4 * i, 4), q * 4096 + tp * 1024)
            m[0] = 's_waitcnt lgkmcnt(12)\n' + m[0]; m[4] = 's_waitcnt lgkmcnt(8)\n' + m[4]; m[8] = ('s_waitcnt lgkmcnt(%d)' % (1 if o['q64'] and o['qs'] <= 6 and 'q' not in o['hack'] else 0)) + '\n' + m[8]
            run(interleave(m, qw, o['qs'], 1))
            stC('Q issued', 3)
            if stamps == 3: a(W0); stC('Q done', 3)
            break
        if n == 8: stC('end 7,1', 3)
        a(W0)
        run(interleave(mfma(A, 0, n == 0, False), (['s_barrier'] if n == 8 and o['b8a'] else []) + reads_A(n, 1), 0, 2))
        if n < 8:
            a(W0)
            a('s_barrier')
            if n == 7: stC('B8')
            run(interleave(mfma(A, 1, False, False), reads_A(n + 1, 0) + (k_reads()[8 * (n - 4):8 * (n - 3)] if 4 <= n < 7 else []), 0, 2))
        else:
            stC('end 8,0', 3)
            a(W0)
            od = [(2 * tp + u, q) for tp in range(2) for q in range(3) for u in range(2)]
            qw = []
            for i, (t, q) in enumerate(od):
                qw += cvt(QT + 2 * i, A + 4 * (3 * t + q))
                if t & 1: qw[-1] += '\nds_write_b128 v%d, %s offset:%d' % (QA, v(QT + 2 * i - 2, 4), q * 4096 + (t >> 1) * 1024)
            run(interleave(mfma(A, 1, False, False, od), qw, 6, 2))
            stC('Q issued', 3)
            if stamps == 3: a(W0); stC('Q done', 3)
    if o['uprio']: a('s_setprio %d' % o['uprio'])
    a('L_unit:')
    a(W0)
    a('s_barrier')
    stC('BQ')
    for kk in range(4):
        if o['q64'] == 1: a('ds_read2st64_b64 %s, v%d offset0:%d offset1:%d' % (v(QF + 4 * kk, 4), UA, 2 * kk, 2 * kk + 1))
        elif o['q64'] == 2: a('ds_read_b64 %s, v%d offset:%d\nds_read_b64 %s, v%d offset:%d' % (v(QF + 4 * kk, 2), UA, 1024 * kk, v(QF + 4 * kk + 2, 2), UA, 1024 * kk + 512))
        else: a('ds_read_b128 %s, v%d offset:%d' % (v(QF + 4 * kk, 4), UA, 1024 * kk))
    for kk in range(4):
        a('s_waitcnt lgkmcnt(%d)' % ((3 - kk) * (2 if o['q64'] == 2 else 1)))
        for kt in range(3): a(MF % (v(S + 4 * kt, 4), v(KF + 16 * kt + 4 * kk, 4), v(QF + 4 * kk, 4), v(S + 4 * kt, 4) if kk else '0'))
    if 's' in o['hack']: a('s_branch L_hs_skip')
    if 'h' in o['hack']: a('s_cmp_ge_u32 s20, 4\ns_cbranch_scc1 L_hs_skip')
    x, y = 6, 7
    a('v_max3_f32 v6, v%d, v%d, v%d\nv_max3_f32 v7, v%d, v%d, v%d' % (S, S + 1, S + 2, S + 3, S + 4, S + 5))
    a('v_max3_f32 v6, v6, v%d, v%d\nv_max3_f32 v7, v7, v%d, v%d\nv_max3_f32 v6, v6, v%d, v%d' % (S + 6, S + 7, S + 8, S + 9, S + 10, S + 11))
    def xl(op, first):
        a(first)
        a('v_permlane16_swap_b32 v6, v7\n%s v8, v6, v7\n%s v7, v6, v7\nv_permlane32_swap_b32 v8, v7\n%s v6, v8, v7' % (op, op, op))
    xl('v_max_f32', 'v_max_f32 v6, v6, v7\nv_mov_b32 v7, v6')
    a('v_mul_f32 v6, s50, v6')
    if o['pk']:
        for t in range(0, 12, 2): a('v_pk_fma_f32 v[%d:%d], v[%d:%d], s[50:51], v[6:7] op_sel_hi:[1,1,0] neg_lo:[0,0,1] neg_hi:[0,0,1]' % (S + t, S + t + 1, S + t, S + t + 1))
    else:
        for t in range(12): a('v_fma_f32 v%d, v%d, s50, -v6' % (S + t, S + t))
    for t in range(12): a('v_exp_f32 v%d, v%d' % (S + t, S + t))
    if o['pk']:
        a('v_pk_add_f32 v[6:7], v[%d:%d], v[%d:%d]\nv_pk_add_f32 v[4:5], v[%d:%d], v[%d:%d]' % (S, S + 1, S + 2, S + 3, S + 4, S + 5, S + 6, S + 7))
        a('v_pk_add_f32 v[6:7], v[6:7], v[%d:%d]\nv_pk_add_f32 v[4:5], v[4:5], v[%d:%d]\nv_pk_add_f32 v[4:5], v[4:5], v[6:7]' % (S + 8, S + 9, S + 10, S + 11))
    else:
        a('v_add_f32 v4, v%d, v%d\nv_add_f32 v5, v%d, v%d' % (S, S + 1, S + 2, S + 3))
        for t in range(4, 12, 2): a('v_add_f32 v4, v4, v%d\nv_add_f32 v5, v5, v%d' % (S + t, S + t + 1))
    xl('v_add_f32', 'v_add_f32 v6, v4, v5\nv_add_f32 v7, v4, v5')
    a('v_rcp_f32 v6, v6')
    if o['pk']:
        for t in range(0, 12, 2): a('v_pk_mul_f32 v[%d:%d], v[%d:%d], v[6:7] op_sel_hi:[1,0]' % (S + t, S + t + 1, S + t, S + t + 1))
    else:
        for t in range(12): a('v_mul_f32 v%d, v%d, v6' % (S + t, S + t))
    for t in range(6): a('v_cvt_pk_bf16_f32 v%d, v%d, v%d' % (P + t, S + 2 * t, S + 2 * t + 1))
    a('L_hs_skip:')
    if 'e' not in o['hack'] and 'y' not in o['hack']:
        a('buffer_store_dwordx4 %s, v25, s[%d:%d], s49 offen sc1' % (v(P, 4), SWS, SWS + 3))
        a('buffer_store_dwordx2 %s, v26, s[%d:%d], s49 offen offset:1024 sc1' % (v(P + 4, 2), SWS, SWS + 3))
    stC('C at BP')
    a('s_barrier')
    a('s_cmp_ge_u32 s20, 4\ns_cbranch_scc1 L_help2')
    if o['cprio'] or o['uprio']: a('s_setprio %d' % o['cprio'])
    stC('BP')
    def reads_W(p, ks):
        vp = (p >> 2) * 2 + (p & 1); tg = 'w%d%d' % (p, ks)
        r = ['ds_read_b128 %s, v%d offset:%d' % (v(F[ks] + 16 + 4 * q, 4), VA + ks, 12288 * vp + 2048 * q) for q in range(3)] + (wreads(F[ks], 16384 * WSLOT['w%d' % p] + 8192 * ks) if p != 3 else wreads(F[ks], 8192 * ks, 250))
        if (p, ks) == (0, 0) and o['fine0']:
            r = [r[0], r[3], r[4], r[1], r[2]] + r[5:]
            return [ds(x_, 'f%d' % i) for i, x_ in enumerate(r)]
        return [ds(x_, tg + ('lo' if i < 7 else 'hi')) for i, x_ in enumerate(r)]
    def wW(p, ks, more=()): return {0: 'f2', 1: 'f3', 2: 'f4', 3: 'f6', 6: 'f8', 9: 'f10'} if (p, ks) == (0, 0) and o['fine0'] else {0: ['w%d%dlo' % (p, ks)] + list(more), 6: ['w%d%dhi' % (p, ks)]}
    def vwpos(base, i, kt): return base + ([0, 2, 4][kt] if i % 2 == 0 else [8, 10, 6][kt])
    HACC = [B, A, B, A]; HDST = [C, C, B, B]
    def cvt_W(i): return [x_ for t in range(4) for kt in range(3) for x_ in cvt(vwpos(HDST[i] + 12 * t, i, kt), HACC[i] + 4 * (3 * t + kt))]
    def xb(nm): return [('s_waitcnt vmcnt(0)\n' if nm == o['ack'] and 'w' not in o['hack'] else '') + 's_barrier'] if nm in XN else []
    def ins(lst, i, x_): return lst[:i] + [x_] + lst[i:]
    OS = [[108, 112, 116, 120, 124], [48, 52, 56, 60, 64], [80, 84, 88, 92, 96], [100, 128, 132, 68, 72]]; OACC = [[232, 236, 240], [32, 36, 40]]
    def rdO(kq):
        tg = 'os%d' % kq
        return [ds('ds_read_b128 %s, v%d offset:%d' % (v(OS[kq][kt], 4), OVA + (kq & 1), 12288 * (kq >> 1) + 2048 * kt), tg) for kt in range(3)] + \
               [ds('ds_read_b64_tr_b16 %s, v%d offset:%d' % (v(OS[kq][3 + e] + 2 * hh, 2), OA, 16384 * WSLOT['o%d' % e] + 4096 * kq + 512 * hh), tg) for e in range(2) for hh in range(2)]
    mfma_O = [MF % (v(OACC[e][kt], 4), v(OS[kq][kt], 4), v(OS[kq][3 + e], 4), v(OACC[e][kt], 4) if kq else '0') for kq in range(4) for e in range(2) for kt in range(3)]
    cvt_O = [x_ for e in range(2) for kt in range(3) for x_ in cvt(vwpos(VWO, e, kt), OACC[e][kt])]
    PFULL = [10, 11, 22, 23]; PHALF = [4, 5, 6, 7]; POF = [24, 21]; POH = [8, 9]
    padr = []
    for i in range(4):
        padr.append('s_xor_b32 s3, s53, %d\ns_mul_i32 s3, s3, 9216\ns_add_u32 s3, s3, s55' % i)
        padr.append('v_add_u32 v%d, s3, v25' % PFULL[i]); padr.append('v_add_u32 v%d, s3, v26' % PHALF[i])
        if i < 2:
            padr.append('s_add_u32 s3, s3, s54\nv_add_u32 v%d, s3, v25' % POF[i]); padr.append('v_add_u32 v%d, s3, v26' % POH[i])
    a('s_mul_i32 s55, s18, 4608\ns_and_b32 s54, s22, 1\ns_mul_i32 s54, s54, 4608\ns_sub_u32 s54, s54, s55\ns_add_u32 s55, s55, %d\ns_lshr_b32 s53, s16, 1\ns_xor_b32 s53, s53, s22\ns_xor_b32 s53, s53, 3' % L_P)
    def preads(dst, fa, ha, qt, tag):
        off = 1536 * qt
        return [ds('ds_read_b128 %s, v%d offset:%d' % (v(dst[0], 4), fa[0], off), tag),
                ds('ds_read_b64 %s, v%d offset:%d' % (v(dst[1], 2), ha[0], off + 1024), tag),
                ds('ds_read_b64 %s, v%d offset:%d' % (v(dst[1] + 2, 2), ha[1], off + 1024), tag),
                ds('ds_read_b128 %s, v%d offset:%d' % (v(dst[2], 4), fa[1], off), tag)]
    PB = [[80 + 4 * k for k in range(6)], [108 + 4 * k for k in range(6)], [80 + 4 * k for k in range(6)]]
    def reads_F(qt): return preads(PB[qt][:3], PFULL[:2], PHALF[:2], qt, 'p%da' % qt) + preads(PB[qt][3:], PFULL[2:], PHALF[2:], qt, 'p%db' % qt)
    run(reads_W(0, 0))
    for p in range(8):
        i = p >> 1
        if i == 0: ex0, ex1 = (padr[:5], padr[5:10]) if p == 0 else (padr[10:], ['v_add_u32 v%d, %d, v%d' % (250 + t, L_P, WA + t) for t in range(4)])
        else:
            cv = cvt_W(i - 1)
            ex0, ex1 = (cv[:6], cv[6:12]) if p % 2 == 0 else (cv[12:18], cv[18:])
        step(mfma(HACC[i], 0, p % 2 == 0, True), reads_W(p, 1), extra=ex0, xstart=4 if p % 2 == 0 else 0, waits=wW(p, 0))
        step(mfma(HACC[i], 1, False, True), reads_W(p + 1, 0) if p < 7 else reads_F(0), extra=ex1, xstart=1, waits=wW(p, 1), pre=xb('w%d' % p))
        stC('s%d' % p if p < 7 else 'VW end', 2 if p < 7 else 1)
    RACC = [[244, 248, 252, 104], [32, 36, 40, 44], [244, 248, 252, 104]]
    PK = [76, 12]; OP = [[108, 112, 116], [120, 124, 48], [52, 56, 60]]
    def fm(qt, t, k): return MF % (v(RACC[qt][t], 4), v([C, B][k // 3] + 12 * t + 4 * (k % 3), 4), v(PB[qt][k], 4), v(RACC[qt][t], 4) if k else '0')
    def store_F(qt, h):
        l_ = 'L_own%d%d' % (qt, h)
        ownw = '\ns_cmp_lg_u32 s48, %d\ns_cbranch_scc1 %s\nds_write_b128 v27, %s offset:%d\n%s:' % (h, l_, v(PK[h], 4), 1024 * qt, l_) if o['own'] else ''
        return cvt(PK[h], RACC[qt][2 * h]) + cvt(PK[h] + 2, RACC[qt][2 * h + 1]) + \
               ['buffer_store_dwordx4 %s, v25, s[%d:%d], s%d offen sc1\ns_add_u32 s%d, s%d, 8192' % (v(PK[h], 4), SWS, SWS + 3, 56 + h, 56 + h, 56 + h) + ownw]
    def flag(reg, off): return FOP + ' v29, v%d, s[%d:%d], 0 offen offset:%d sc1' % (reg, SWS, SWS + 3, off)
    m = [fm(0, t, k) for k in range(6) for t in range(4)]
    c3 = cvt_W(3)
    c3 = [c3[6 * t + j] for t in range(4) for j in (4, 5)] + [c3[6 * t + j] for t in range(4) for j in range(4)]
    step(m[:19], reads_F(1), extra=c3, xstart=3, waits={0: ['p0a'], 11: ['p0b']})
    step(m[19:], [])
    stC('R0', 2)
    m = [fm(1, t, k) for t in range(4) for k in range(6)]
    step(m[:17], reads_F(2), extra=store_F(0, 0) + store_F(0, 1), xstart=3, waits={0: ['p1a'], 3: ['p1b']})
    step(m[17:], [], extra=store_F(1, 0))
    stC('R1', 2)
    xo = o['xo']
    m = [fm(2, t, k) for t in range(4) for k in range(6)]
    step(m[:xo], [], extra=store_F(1, 1), xstart=4, waits={0: ['p2a'], 3: ['p2b']})
    seq = rdO(0) + rdO(1); k1 = min(14, 24 - xo)
    step(m[xo:], seq[:k1], extra=store_F(2, 0), xstart=max(0, 18 - xo), pre=xb('O'))
    stC('R2', 2)
    op = [x_ for qt in range(3) for x_ in preads(OP[qt], POF, POH, qt, 'po')]
    f0 = 's_waitcnt vmcnt(3)\n' + flag(28, 0)
    f1 = 's_waitcnt vmcnt(3)\n' + flag(28, 128)
    step(mfma_O[:12], seq[k1:] + rdO(2) + rdO(3), extra=store_F(2, 1) + ([flag(28, 256)] if 'c' in o['hack'] else []), xstart=4, waits={0: ['os0'], 6: ['os1']}, pre=[f0] if o['ef'] >= 1 else [])
    step(mfma_O[12:], op, waits={0: ['os2'], 6: ['os3']}, extra=[f1] if o['ef'] >= 2 else [], xstart=o['e0'])
    stC('O', 2)
    def fo(k, first): return [MF % (v(SP + 4 * qt, 4), v(VWO + 4 * k, 4), v(OP[qt][k], 4), '0' if first else v(SP + 4 * qt, 4)) for qt in range(3)]
    run(cvt_O[:6])
    step(fo(0, True), [], extra=cvt_O[6:], waits={0: ['po']})
    run(fo(2, False) + fo(1, False))
    if o['ef'] == 0: a('s_waitcnt vmcnt(4)'); a(flag(28, 0))
    if o['ef'] < 2: a('s_waitcnt vmcnt(3)'); a(flag(28, 128))
    if o['e2']: a('s_waitcnt vmcnt(1)'); a(flag(28, 256))
    if 'r' in o['hack']: a('s_mov_b64 exec, 0x1c'); a(flag(30, 256)); a('s_mov_b64 exec, -1\ns_cmp_lg_u32 s21, 3\ns_cbranch_scc1 L_hr\ns_sleep 60\nL_hr:')
    for qt in range(3):
        run(cvt(VWO + 2 * qt, SP + 4 * qt) + ['buffer_store_dwordx2 %s, v26, s[%d:%d], s58 offen sc1\ns_add_u32 s58, s58, 8192' % (v(VWO + 2 * qt, 2), SWS, SWS + 3)])
    stC('final end')
    if o['sent']:
        assert o['rep'] == 1 and o['atom']
        a('s_mov_b64 exec, 0x1c'); a(flag(30, 256 + (8 if 'r' in o['hack'] else 0))); a('s_mov_b64 exec, -1')
    if o['own']: a(W0)
    if o['xe'] == 'E': a('s_barrier')
    if not o['e2'] and 'c' not in o['hack']: a('s_waitcnt vmcnt(%d)' % ((5 if o['ef'] == 0 else 4) + o['sent'])); a(flag(28, 256))
    if o['xe'] == 'H': a('s_barrier')
    if 'b' not in o['hack']: a('s_waitcnt vmcnt(%d)' % (o['sent'] + (0 if o['e2'] or 'c' in o['hack'] else 1)))
    a('s_mov_b64 exec, 0x1c1c'); a(flag(30, 256 + 64 * o['sent'])); a('s_mov_b64 exec, -1')
    if o['xe'] == 'G': a('s_barrier')
    stC('flags sent')
    stC.flush(0)
    a('s_endpgm')
    a('L_help:')
    a('s_sub_u32 s18, s20, 5\ns_sub_u32 s52, s20, 1')
    a('v_lshlrev_b32 v25, 4, v0\nv_lshlrev_b32 v26, 3, v0')
    a('v_mov_b32 v12, 0\nv_mov_b32 v13, 0\nv_mov_b32 v14, 0\nv_mov_b32 v15, 0\nv_mov_b32 v29, 1\nv_mov_b32 v28, 0x7ff00000\nv_mov_b32 v30, v28')
    a(W0)
    srd(SWS, 14, 'ws')
    if o['sent'] and o['clr'] == 'start': clears(False, 40, 44)
    a('s_cmp_eq_u32 s20, 7\ns_cbranch_scc1 L_h2')
    a('s_cmp_eq_u32 s20, 5\ns_cbranch_scc1 L_h0')
    a('s_cmp_ge_u32 s2, 32\ns_cbranch_scc1 L_h0')
    a('s_lshl_b32 s3, s2, 12')
    assert G_FL == 0
    for j in range(4): a('buffer_store_dwordx4 v[12:15], v25, s[%d:%d], s3 offen offset:%d sc1' % (SWS, SWS + 3, 1024 * j))
    a('s_lshl_b32 s3, s2, 2\nv_mov_b32 v16, s3\ns_waitcnt vmcnt(0)')
    a('s_mov_b64 exec, 1\nglobal_store_dword v16, v29, s[12:13] sc1\ns_mov_b64 exec, -1')
    a('L_h0:')
    unit_setup()
    for c in range(9 + o['b8a']):
        a('s_barrier')
        if c == 4: run(k_reads())
    a('s_branch L_unit')
    a('L_h2:')
    if o['codepf']:
        a('s_getpc_b64 s[66:67]\nL_pc:\ns_sub_u32 s66, s66, L_pc-%s\ns_subb_u32 s67, s67, 0' % KN)
        a('s_lshr_b32 s3, s2, 3\ns_lshl_b32 s3, s3, 7\nv_lshlrev_b32 v7, 12, v0\nv_add_u32 v7, s3, v7')
        a('v_cmp_gt_u32 vcc, L_codeend-%s, v7\ns_and_saveexec_b64 s[64:65], vcc' % KN)
        a('global_load_dword v31, v7, s[66:67]')
        a('s_mov_b64 exec, s[64:65]')
    def tlb_touch():
        a('s_lshl_b32 s3, s2, 7\nv_lshlrev_b32 v7, 21, v0\nv_add_u32 v7, s3, v7\nv_add_u32 v8, 0x1f0000, v7')
        a('s_mov_b64 exec, 0x7f\nglobal_load_dword v32, v8, s[14:15]')
        if o['tlb'] in (1, 3):
            a('s_mov_b64 exec, 7\nglobal_load_dword v33, v7, s[8:9]')
            a('s_mov_b64 exec, 3\nglobal_load_dword v34, v7, s[4:5]\nglobal_load_dword v35, v7, s[6:7]')
        a('s_mov_b64 exec, 1\nglobal_load_dword v36, v7, s[10:11]\ns_mov_b64 exec, -1')
    if o['tlb'] in (1, 2): tlb_touch()
    hs = 's_load_dwordx16 s[84:99], s[12:13], 0%s\ns_load_dwordx16 s[28:43], s[12:13], 64%s'
    for c in range(10 + o['b8a']):
        a('s_barrier')
        if c == o['hsbar']: a(hs % ('', ''))
        if c == o['oddpf']:
            a('s_lshl_b32 s3, s21, 5\ns_lshr_b32 s17, s2, 3\ns_add_u32 s3, s3, s17\ns_mul_i32 s3, s3, %d\ns_add_u32 s3, s3, 1024' % (16 * 1152))
            a('v_mul_u32_u24 v7, 1152, v1\nv_add_u32 v7, s3, v7\ns_mov_b64 exec, 0xffff\nglobal_load_dword v37, v7, s[8:9]\ns_mov_b64 exec, -1')
        if c == 0 and o['tlb'] == 3: tlb_touch()
        if c == 8 and o['tlb'] == 4: tlb_touch()
    a('s_mov_b32 s54, %d\nL_hs:\ns_waitcnt lgkmcnt(0)' % SPIN)
    and16(84); and16(28); a('s_and_b32 s84, s84, s28')
    a('s_cbranch_scc1 L_hsok\ns_sub_u32 s54, s54, 1\ns_cbranch_scc1 L_hsok'); a(hs % (' glc', ' glc')); a('s_branch L_hs\nL_hsok:')
    a('s_barrier')
    a('L_help2:')
    run(xb('w0'))
    a('s_mul_i32 s17, s18, 3072')
    srd(SOUT, 10, 'out')
    a('s_lshl_b32 s3, s2, 9\ns_lshl_b32 s53, s18, 7\ns_add_u32 s62, s3, s53\ns_add_u32 s66, s14, s62\ns_addc_u32 s67, s15, 0')
    a('s_and_b32 s3, s2, 0xe7\ns_lshl_b32 s3, s3, 9\ns_add_u32 s53, s53, s3\n' + ('' if o['atom'] else 's_lshl_b32 s3, s22, 2\ns_add_u32 s53, s53, s3\n') + 'v_lshlrev_b32 v21, 12, v0')
    a('s_mul_i32 s55, s2, 3\ns_add_u32 s55, s55, s18\ns_lshl_b32 s55, s55, 13\ns_add_u32 s55, s55, %d\ns_add_u32 s56, s55, 4096' % G_PM)
    a('s_lshl_b32 s59, s23, 1\ns_lshr_b32 s3, s21, 2\ns_add_u32 s59, s59, s3\ns_mul_i32 s59, s59, 3\ns_add_u32 s59, s59, s18\ns_mul_i32 s59, s59, %d' % (16 * 1152))
    a('s_lshl_b32 s3, s22, 8\ns_add_u32 s59, s59, s3\ns_and_b32 s3, s21, 3\ns_lshl_b32 s3, s3, 6\ns_add_u32 s59, s59, s3')
    def pfetch(d):
        a('s_add_u32 m0, s17, %d\ns_xor_b32 s58, s2, %d\ns_mul_i32 s58, s58, 9216\ns_add_u32 s58, s58, s17\ns_add_u32 s58, s58, %d' % (L_P + 9216 * (3 - d), d << 3, G_P))
        for j in range(3):
            if 'e' not in o['hack'] and 'x' not in o['hack']: a('buffer_load_dwordx4 v25, s[%d:%d], s58 offen offset:%d sc1 lds' % (SWS, SWS + 3, 1024 * j))
    xs = [x_ for x_ in XN[2:-1] if x_ != 'w0']
    k = 0
    while True:
        nm = xs[k]; k += 1
        run(xb(nm))
        if nm == o['ack']:
            a('s_mov_b64 exec, 15' + ('\ns_bitset0_b64 exec, s22' if o['noself'] else '') + '\n' + FOP + ' v29, v21, s[%d:%d], s53 offen sc1\ns_mov_b64 exec, -1' % (SWS, SWS + 3))
            stH('P flag sent')
        if o['ownp'] and nm == o['ownat']: pfetch(0)
        if o['sent'] and nm == o['clr']: clears()
        if nm == o['poll0']: break
    assert xs.index(o['ack']) < k and ALLN.index(xs[k]) >= ALLN.index('w4') and k < len(xs) - 1
    a('s_mov_b32 s54, %d\ns_mov_b32 s52, %d' % (SPIN, len(xs) - 1 - k))
    a('L_pp:\n' + ('s_load_dword s84' if o['atom'] else 's_load_dwordx4 s[84:87]') + ', s[66:67], 0 glc')
    a('s_cmp_eq_u32 s52, 0\ns_cbranch_scc1 L_pp1\ns_barrier\ns_sub_u32 s52, s52, 1\nL_pp1:')
    a('s_sub_u32 s54, s54, 1\ns_cbranch_scc1 L_ppok\ns_waitcnt lgkmcnt(0)')
    a(('' if o['atom'] else 's_add_u32 s84, s84, s85\ns_add_u32 s86, s86, s87\ns_add_u32 s84, s84, s86\n') + 's_cmp_%s_u32 s84, %d\ns_cbranch_scc0 L_pp\nL_ppok:' % ('le' if 'a' in o['hack'] else 'eq', 4 - o['noself']))
    stH('P flags ok')
    for d in range(o['ownp'], 4): pfetch(d)
    if o['sent'] and o['clr'] == 'p': clears()
    a('L_pb:\ns_cmp_eq_u32 s52, 0\ns_cbranch_scc1 L_pbd\ns_barrier\ns_sub_u32 s52, s52, 1\ns_branch L_pb\nL_pbd:')
    a('s_waitcnt vmcnt(%d)' % (2 if o['sent'] and o['clr'] == 'p' else 0))
    stH('P landed')
    a('s_barrier')
    if o['sent'] and o['clr'] == 'w7': clears()
    a('s_waitcnt vmcnt(0)\ns_barrier')
    if 'f' in o['hack']: a('s_endpgm')
    a('s_mov_b32 s54, %d' % SPIN)
    a('s_lshl_b32 s3, s18, 10\ns_add_u32 s3, s3, %d\nv_add_u32 v27, s3, v25' % L_F)
    reduce('mp', 8, 4, MOFF, 25, 's59', stH)
    if stamps:
        a('s_waitcnt vmcnt(0)'); stH('end'); stH.flush(7)
    a('L_end:\ns_endpgm\nL_codeend:')
    a(kernel_desc(KN, 256, 256))
    a.lines = hazard.pad(a.lines, False)
    return a.text()
if __name__ == '__main__':
    import json
    name = sys.argv[1] if len(sys.argv) > 1 else 'p8_v9'
    opt = json.loads(sys.argv[2]) if len(sys.argv) > 2 else None
    open(name + '.s', 'w').write(gen(0, opt))
    open(name + '_st.s', 'w').write(gen(1, opt))
    open(name + '_st2.s', 'w').write(gen(2, opt))
    open(name + '_st3.s', 'w').write(gen(3, opt))
    open(name + '_st4.s', 'w').write(gen(4, opt))
```

```python
import sys, math, struct
from asmlib import *
import hazard
from gen_f16 import Cnt, interleave, f2i, v

L_W = 0; L_X0 = 49152; XOFF = [0, 12288, 49152]; L_K = 73728; L_Q = 49152; L_P = 73728; L_F = 110592; L_V = 114688
G_FL = 0x0
G_P = 0x40000
G_PM = 0x400000
G_PO = 0xC00000
SX, SWQ, SK, SV, SWO, SWS, SOUT = 24, 28, 32, 36, 40, 44, 48
SPIN = 1 << 16
MF = 'v_mfma_f32_16x16x32_bf16 %s, %s, %s, %s'

def gen(stamps=0, opt=None):
    o = dict(order='qqqKqqqqqq', win=24, codepf=True, rot='g3', pk=True, lprio=0, afterB8=1, afterBQ=4, ack='w1', poll0='w3', cprio=0, prog=False, x4=True, xo=12, ef=2, xe='G', nt={}, split=1, uprio=0, early_flag=True, outsc='', first_half=False, hsbar=4, poll='s', psleep=0, tlb=0, remap=0, oddpf=7, rot2=1, lateat=3, own=1, b8a=0, tm=1, q64=2, stlb=0, hack='', atom=1, rep=1, wsw=1, ownp=1, atune=0, oe=0, hsbar_=0, ownat='w3', e0=8, e1='end', m0o=1, rsl=6, qs=5, fine0=1, wqfirst=0, skip=['w0', 'w5'], noself=1)
    if opt: o.update(opt)
    a = Asm()
    a('; @launch grid=(256,1,1) block=(512,1,1) lds=163840')
    a(HEAD); a(kernel_begin(KN))
    def run(seq):
        for x in seq:
            if callable(x): x()
            else: a(x)
    class St:
        def __init__(s, base, n, r0): s.base = base; s.n = n; s.k = 0; s.r0 = r0
        def __call__(s, name='x', lvl=1):
            if ((stamps >= lvl and lvl < 2) or stamps == lvl) and (stamps != 5 or name in ('start', 'final end')):
                assert s.k < s.n, name
                a('; stamp %d %s' % (s.base + s.k, name))
                a('s_memrealtime s[%d:%d]' % (s.r0 + 2 * s.k, s.r0 + 1 + 2 * s.k)); s.k += 1
        def flush(s, wave):
            if stamps and s.k:
                l_ = a.label('L_nst')
                a('s_cmp_lg_u32 s20, %d\ns_cbranch_scc1 %s' % (wave, l_))
                a('s_waitcnt lgkmcnt(0)\nv_mov_b32 v31, 0\ns_lshl_b32 s3, s2, 9\ns_add_u32 s3, s3, %d' % (STAMP_OFF + 8 * s.base))
                for i in range(s.k):
                    a('v_mov_b32 v254, s%d\nv_mov_b32 v255, s%d' % (s.r0 + 2 * i, s.r0 + 1 + 2 * i))
                    a('buffer_store_dwordx2 v[254:255], v31, s[%d:%d], s3 offen offset:%d' % (SWS, SWS + 3, 8 * i))
                a(l_ + ':')
    stC = St(0, 21, 60); stL = St(24, 17, 68); stH = St(44, 6, 32)
    W0 = 's_waitcnt lgkmcnt(0)'
    FOP = 'buffer_atomic_add' if o['atom'] else 'buffer_store_dword'
    MOFF = (4 if o['rep'] > 1 else 64) if o['atom'] else 32
    OOFF = 0
    assert o['rep'] in (1, 2) and (o['atom'] or o['rep'] == 1)
    stC('start')
    a('s_cmp_ge_u32 s2, 256\ns_cbranch_scc1 L_end')
    a('s_load_dwordx2 s[%d:%d], s[0:1], %d' % (SX, SX + 1, SLOT['x']))
    a('s_load_dwordx2 s[%d:%d], s[0:1], %d' % (SWQ, SWQ + 1, SLOT['wq']))
    a('s_load_dwordx4 s[4:7], s[0:1], %d' % SLOT['k'])
    a('s_load_dwordx8 s[8:15], s[0:1], %d' % SLOT['wo'])
    if o['remap'] == 1: a('s_lshr_b32 s3, s2, 2\ns_and_b32 s3, s3, 0x18\ns_xor_b32 s2, s2, s3')
    if o['remap'] == 2: a('s_lshr_b32 s3, s2, 3\ns_and_b32 s3, s3, 0x18\ns_lshl_b32 s21, s2, 2\ns_and_b32 s21, s21, 0xe0\ns_and_b32 s2, s2, 7\ns_or_b32 s2, s2, s3\ns_or_b32 s2, s2, s21')
    if o['remap'] == 3: a('s_xor_b32 s2, s2, 0x18')
    a('v_lshrrev_b32 v1, 6, v0\nv_and_b32 v0, 63, v0\nv_readfirstlane_b32 s20, v1')
    if o['wsw']: a('s_xor_b32 s20, s20, 4')
    a('s_and_b32 s21, s2, 7\ns_bfe_u32 s22, s2, 0x20003\ns_lshr_b32 s23, s2, 5')
    a('v_and_b32 v1, 15, v0\nv_lshrrev_b32 v2, 4, v0')
    def srd(r, src, n):
        if src is not None: a('s_mov_b32 s%d, s%d\ns_mov_b32 s%d, s%d' % (r, src, r + 1, src + 1))
        a('s_mov_b32 s%d, %d\ns_mov_b32 s%d, 0x20000' % (r + 2, SIZES[n], r + 3))
    H0 = 's_and_b32 s16, s22, 2\ns_add_u32 s16, s16, s22\ns_xor_b32 s16, s16, s23'
    if o['rot2'] == 1: H0 = 's_and_b32 s16, s22, 2\ns_xor_b32 s16, s16, s23\ns_and_b32 s16, s16, 3\ns_lshl_b32 s16, s16, 1'
    if o['rot2'] == 2: H0 = 's_and_b32 s16, s22, 2\ns_lshl_b32 s16, s16, 1\ns_xor_b32 s16, s16, s23'
    if o['rot2'] == 3: H0 = 's_and_b32 s16, s23, 3\ns_lshl_b32 s16, s16, 1\ns_and_b32 s3, s22, 2\ns_add_u32 s3, s3, s22\ns_xor_b32 s16, s16, s3'
    a('s_cmp_lt_u32 s20, 4\ns_cbranch_scc1 L_comp')
    a('s_cmp_gt_u32 s20, 4\ns_cbranch_scc1 L_help')
    def gpoll(name, nw, off):
        sl = ('s_sleep %d\n' % o['psleep']) if o['psleep'] else ''
        if o['rep'] == 2:
            a(W0 + '\ns_mov_b64 s[84:85], 0\ns_load_dword s85, s[66:67], %d glc\ns_sleep %d' % (off + 64, o['rsl']))
            a('L_%s:' % name)
            for r_ in range(2):
                a('s_load_dword s%d, s[66:67], %d glc\ns_waitcnt lgkmcnt(1)\ns_max_u32 s30, s84, s85\ns_cmp_ge_u32 s30, %d\ns_cbranch_scc1 L_%sok' % (84 + r_, off + 64 * r_, nw, name))
            a('s_sub_u32 s54, s54, 1\ns_cbranch_scc0 L_%s\nL_%sok:' % (name, name))
        elif o['atom']:
            a('L_%s:\n%ss_load_dword s84, s[66:67], %d glc\ns_sub_u32 s54, s54, 1\ns_cbranch_scc1 L_%sok\ns_waitcnt lgkmcnt(0)' % (name, sl, off, name))
            a('s_cmp_lt_u32 s84, %d\ns_cbranch_scc1 L_%s\nL_%sok:' % (nw, name, name))
        elif o['poll'] == 'p':
            a(W0)
            for i in range(0, nw, 2): a('s_mov_b64 s[%d:%d], 0' % (84 + i, 85 + i))
            a('L_%s:\ns_load_dwordx%d s[84:%d], s[66:67], %d glc\n%ss_sub_u32 s54, s54, 1\ns_cbranch_scc1 L_%sok' % (name, nw, 83 + nw, off, sl, name))
            a('s_and_b64 s[30:31], s[84:85], s[86:87]')
            for i in range(4, nw, 2): a('s_and_b64 s[30:31], s[30:31], s[%d:%d]' % (84 + i, 85 + i))
            a('s_and_b32 s30, s30, s31\ns_cbranch_scc0 L_%s\nL_%sok:' % (name, name))
        elif o['poll'] == 's':
            a('L_%s:\n%ss_load_dwordx%d s[84:%d], s[66:67], %d glc\ns_sub_u32 s54, s54, 1\ns_cbranch_scc1 L_%sok\ns_waitcnt lgkmcnt(0)' % (name, sl, nw, 83 + nw, off, name))
            k = nw
            while k > 2:
                k //= 2
                for i in range(0, k, 2): a('s_and_b64 s[%d:%d], s[%d:%d], s[%d:%d]' % (84 + i, 85 + i, 84 + i, 85 + i, 84 + k + i, 85 + k + i))
            a('s_and_b32 s84, s84, s85\ns_cbranch_scc0 L_%s\nL_%sok:' % (name, name))
        else:
            a('v_and_b32 v19, %d, v0\nv_lshlrev_b32 v19, 2, v19' % (nw - 1))
            a('L_%s:\n%sbuffer_load_dword v18, v19, s[%d:%d], s62 offen offset:%d sc1\ns_sub_u32 s54, s54, 1\ns_cbranch_scc1 L_%sok\ns_waitcnt vmcnt(0)' % (name, sl, SWS, SWS + 3, off, name))
            a('v_cmp_ne_u32 vcc, 1, v18\ns_cbranch_vccnz L_%s\nL_%sok:' % (name, name))
    vm = Cnt(a, 'vmcnt', 63)
    XV, WV, OV, KV, DV, VV = 8, 12, 16, 20, 24, 28
    if o['lprio']: a('s_setprio %d' % o['lprio'])
    srd(SX, None, 'x'); srd(SWQ, None, 'wq')
    a('v_lshrrev_b32 v3, 3, v0\nv_and_b32 v4, 7, v0')
    def quad(base, step):
        a('v_xor_b32 v7, 64, v%d\nv_add_u32 v%d, %d, v7' % (base, base + 1, step))
        a('v_add_u32 v%d, %d, v%d\nv_add_u32 v%d, %d, v%d' % (base + 2, 2 * step, base, base + 3, 2 * step, base + 1))
    a('v_mul_u32_u24 v5, 1152, v3\nv_xor_b32 v32, v4, v2\nv_lshl_add_u32 v%d, v32, 4, v5' % XV)
    quad(XV, 8 * 1152 - 1024)
    a('v_lshlrev_b32 v6, 1, v2\nv_xor_b32 v6, v6, v1\nv_lshlrev_b32 v6, 4, v6')
    a('v_lshl_add_u32 v%d, v2, 13, v6' % WV)
    a('v_add_u32 v%d, %d, v%d' % (WV + 1, 4 * 8192 - 1024, WV))
    a('v_xor_b32 v7, 128, v%d\nv_add_u32 v%d, %d, v7\nv_add_u32 v%d, %d, v7' % (WV, WV + 2, 2 * (4 * 8192 - 1024), WV + 3, 3 * (4 * 8192 - 1024)))
    if o['rot'] == 'g3':
        a('s_add_u32 s17, s22, s23\ns_mul_i32 s3, s17, 43\ns_lshr_b32 s3, s3, 7\ns_mul_i32 s3, s3, 3\ns_sub_u32 s17, s17, s3\ns_mul_i32 s17, s17, 3')
    elif o['rot'] == 'g4':
        a('s_add_u32 s17, s22, s23\ns_and_b32 s17, s17, 3\ns_mul_i32 s17, s17, 9\ns_lshr_b32 s17, s17, 2')
    elif o['rot'] == 'g2':
        a('s_add_u32 s17, s22, s23\ns_and_b32 s17, s17, 1\ns_mul_i32 s17, s17, 5')
    elif o['rot'] == 'g9':
        a('s_lshl_b32 s17, s22, 1\ns_add_u32 s17, s17, s23\ns_cmp_ge_u32 s17, 9\ns_cselect_b32 s3, 9, 0\ns_sub_u32 s17, s17, s3')
    else: a('s_mov_b32 s17, 0')
    a('s_mul_i32 s52, s23, 110592')
    a('s_lshl_b32 s53, s21, 10\ns_lshl_b32 s3, s22, 8\ns_add_u32 s53, s53, s3')
    a('s_waitcnt lgkmcnt(0)')
    stL('L kernarg')
    if o['stlb'] >= 1:
        a('s_lshl_b32 s57, s17, 19\ns_add_u32 s57, s57, s53\ns_load_dword s58, s[%d:%d], s57' % (SWQ, SWQ + 1))
    if o['stlb'] >= 2:
        a('s_mov_b32 s57, 0x200000\ns_mov_b32 s59, 0x400000')
        for base in (SWQ, 8, 4, 6): a('s_load_dword s58, s[%d:%d], 0\ns_load_dword s58, s[%d:%d], s57' % (base, base + 1, base, base + 1))
        for base in (SWQ, 8): a('s_load_dword s58, s[%d:%d], s59' % (base, base + 1))
    def group(vreg, n, srd_, lds, tag, adv=None, dyn=None):
        seq = [('s_add_u32 m0, %s, %d' % (dyn, lds) if dyn else 's_mov_b32 m0, %d' % lds) + ('\ns_add_u32 s57, s57, %s' % adv if adv else '')]
        for j in range(n):
            def f(j=j):
                if len(vm.seq) >= 60:
                    a('s_waitcnt vmcnt(44)'); vm.seq = vm.seq[-44:]
                a('buffer_load_dwordx4 v%d, s[%d:%d], s57 offen offset:%d %s lds' % (vreg + j, srd_, srd_ + 3, 1024 * j, o['nt'].get({SX: 'x', SWQ: 'q', SK: 'k', SV: 'v', SWO: 'o'}[srd_] + tag[-1], o['nt'].get({SX: 'x', SWQ: 'q', SK: 'k', SV: 'v', SWO: 'o'}[srd_], '')))); vm.issue(tag)
            seq.append(f)
        return seq
    def item_q(c):
        st = c % 3; tag = 'n%d' % c
        m0o = o['m0o'] and c >= o['lateat']
        sx = ['s_lshl_b32 s57, s17, 7\ns_add_u32 s57, s57, s52']
        for t in range(3): sx += group(40 + 4 * t if m0o and t else XV, 4, SX, L_X0 + XOFF[st] + 4096 * t, tag, 32 * 1152 if t and not m0o else None)
        sw = ['s_lshl_b32 s57, s17, 19\ns_add_u32 s57, s57, s53']
        for t in range(4): sw += group(52 + 4 * t if m0o and t else WV, 4, SWQ, L_W + 16384 * st + 4096 * t, tag + ('b' if c == 8 and t >= 2 and o['b8a'] else ''), 16 * 8192 if t and not m0o else None)
        seq = sw + sx if o['wqfirst'] else sx + sw
        seq += ['s_add_u32 s17, s17, 1\ns_cmp_eq_u32 s17, 9\ns_cselect_b32 s17, 0, s17']
        return seq
    def item_k():
        seq = ['s_lshr_b32 s3, s22, 1\ns_add_u32 s57, s54, s3\ns_mul_i32 s57, s57, 12288']
        for t in range(6): seq += group(KV, 4, SK, L_K + 4096 * t, 'k', None if t == 0 else (4096 if t != 3 else 16 * 12288 - 8192))
        return seq
    WSLOT = {'w0': 0, 'w1': 1, 'w2': 2, 'w3': 4.5, 'w4': 3, 'w5': 0, 'w6': 1, 'w7': 2, 'o0': 3, 'o1': 0}
    assert L_P == 4.5 * 16384
    NEED = {'w3': 1, 'w4': 2, 'w5': 3, 'w6': 5, 'w7': 6}
    L_O1 = L_P
    STAGES = ['w0', 'w1', 'o0', 'o1', 'w2', 'w3', 'w4', 'w5', 'w6', 'w7']
    def item_v(vp):
        seq = ['s_lshr_b32 s3, s16, 2\ns_xor_b32 s3, s3, %d\ns_add_u32 s57, ' % (vp >> 1) + ('s63' if 'd' in o['hack'] else 's54') + ', s3\ns_mul_i32 s57, s57, 12288\ns_xor_b32 s3, s16, %d\ns_and_b32 s3, s3, 1\ns_lshl_b32 s3, s3, 7\ns_add_u32 s57, s57, s3' % (vp & 1)]
        for b in range(2):
            seq += group(VV, 4, SV, L_V + 12288 * vp + 6144 * b, 'v%d' % vp, 16 * 12288 - 8192 if b else None)
            seq += group(VV, 2, SV, L_V + 12288 * vp + 6144 * b + 4096, 'v%d' % vp, 8192)
        return seq
    def item_w(p):
        lds = int(L_W + 16384 * WSLOT['w%d' % p])
        seq = ['s_xor_b32 s3, s16, %d\ns_mul_i32 s57, s3, %d\ns_add_u32 s57, s57, s60' % (p, 64 * 1152)]
        for t in range(4): seq += group(68 + 4 * t if o['m0o'] and t else OV, 4, SWO, lds + 4096 * t, 'w%d' % p, 16 * 1152 if t and not o['m0o'] else None)
        return seq
    def item_o(e):
        lds = L_W + 16384 * WSLOT['o%d' % e]; seq = []
        for hf in range(2):
            seq += ['s_xor_b32 s3, s16, %d\ns_mul_i32 s57, s3, %d\ns_add_u32 s57, s57, s62' % (2 * e + hf, 64 * 1152)]
            for t in range(2): seq += group(DV, 4, SWO, lds + 8192 * hf + 4096 * t, 'o%d' % e, 32 * 1152 if t else None)
        return seq
    def item(nm):
        seq = {'v': item_v, 'w': item_w, 'o': item_o}[nm[0]](int(nm[1]))
        cut = 9 if nm[0] == 'v' else 11
        if nm[2:] == 'a': return seq[:cut] + ['s_mov_b32 s61, s57']
        if nm[2:] == 'b': return ['s_mov_b32 s57, s61'] + seq[cut:]
        return seq
    def late_setup():
        srd(SK, 4, 'k'); srd(SV, 6, 'v'); srd(SWO, 8, 'wo'); srd(SWS, 14, 'ws')
        if 'd' in o['hack']: srd(SV, SX, 'x'); srd(SWO, SX, 'x')
        if 'k' in o['hack']: srd(SK, SX, 'x')
        a('v_mul_u32_u24 v7, 1152, v2\nv_add_u32 v%d, v7, v6\nv_add_u32 v%d, %d, v%d' % (OV, OV + 1, 4 * 1152 - 1024, OV))
        a('v_xor_b32 v6, 128, v6\nv_add_u32 v7, v7, v6\nv_add_u32 v%d, %d, v7\nv_add_u32 v%d, %d, v7' % (OV + 2, 2 * (4 * 1152 - 1024), OV + 3, 3 * (4 * 1152 - 1024)))
        a('v_xor_b32 v6, v1, v2\nv_lshlrev_b32 v6, 4, v6\nv_lshl_add_u32 v%d, v2, 8, v6' % KV)
        for j in range(1, 4): a('v_xor_b32 v%d, %d, v%d' % (KV + j, 64 * j, KV))
        a('v_and_b32 v6, 1, v2\nv_lshlrev_b32 v6, 1, v6\nv_xor_b32 v6, v6, v4\nv_lshl_add_u32 v%d, v6, 4, v5' % DV)
        quad(DV, 8 * 1152 - 1024)
        a('v_lshlrev_b32 v6, 8, v3\nv_lshl_add_u32 v%d, v32, 4, v6' % VV)
        quad(VV, 8 * 256 - 1024)
        if o['m0o']:
            for base, src, n, st_ in ((40, XV, 3, 32 * 1152), (52, WV, 4, 16 * 8192), (68, OV, 4, 16 * 1152)):
                for t in range(1, n):
                    a('s_mov_b32 s3, %d' % (t * st_))
                    for j in range(4): a('v_add_u32 v%d, s3, v%d' % (base + 4 * t + j, src + j))
        a(H0)
        a('s_lshl_b32 s54, s23, 5\ns_lshl_b32 s3, s21, 1\ns_add_u32 s54, s54, s3')
        if 'd' in o['hack']: a('s_and_b32 s63, s23, 1\ns_lshl_b32 s63, s63, 5')
        a(('s_mov_b32 s60, 0 ; %d' if 'd' in o['hack'] else 's_mul_i32 s60, s21, %d') % (512 * 1152))
        a('s_add_u32 s62, s60, 1024\ns_lshl_b32 s3, s22, 8\ns_add_u32 s60, s60, s3')
    nq = 0; nbar = 0; since = {}
    def bar():
        nonlocal nbar
        vm.wait('n%d' % nbar)
        if nbar in (1, 2, 3, 8): stL('L at B%d' % nbar, 2)
        if nbar < 4: stL('L at B%d' % nbar, 3)
        a('s_barrier'); nbar += 1
    for t in o['order']:
        if t == 'q':
            while nbar < nq - 1 and nq >= 3: bar()
            seq = item_q(nq)
            if o['first_half'] and nq in (1, 2) and nbar == nq - 1:
                run(seq[:16]); bar(); run(seq[16:])
            else: run(seq)
            sz = 28; nq += 1
            if nq <= 2: stL('L issued q%d' % (nq - 1), 3)
            if nq == o['lateat']: late_setup()
        elif t == 'K': run(item_k()); sz = 24
        elif t == 'V': run(item_v(0)); sz = 12
        for c in list(since): since[c] += sz
        if t == 'q': since[nq - 1] = 0
        while nbar < nq and since[nbar] >= o['win']: bar()
    while nbar < 8: bar()
    pre8 = o.get('pre8') or (['w0'] if 'V' in o['order'] else ['v0', 'w0'])
    seq = [x_ for it in pre8 for x_ in item(it)]
    if o['b8a']:
        run(seq[:-10]); bar(); run(seq[-10:]); vm.wait('n8b'); a('s_barrier')
    else:
        run(seq); bar()
    XB = [('BQ', []), ('BP', ['v0', 'w0']), ('w0', ['v1', 'w1']), ('w1', ['w2']), ('w2', ['w3']), ('w3', ['v2', 'w4']),
          ('w4', ['v3', 'w5']), ('w5', ['w6']), ('w6', ['w7']), ('w7', []), ('O', ['o0', 'o1'])]
    for sk in o['skip']:
        i_ = [x_[0] for x_ in XB].index(sk)
        XB[i_ - 1] = (XB[i_ - 1][0], XB[i_ - 1][1] + XB[i_][1]); del XB[i_]
    XN = [x_[0] for x_ in XB]
    plan = o.get('plan') or {'B8': ['v1', 'w1'], 'BQ': ['w2', 'w3', 'v2'], 'BP': ['w4', 'v3'], 'w1': ['w5'], 'w2': ['w6'], 'w3': ['w7'], 'w6': ['o0'], 'w7': ['o1']}
    FREEAT = {'w1': 'B8', 'w2': 'BQ', 'w3': 'BQ', 'w4': 'BP', 'w5': 'w1', 'w6': 'w2', 'w7': 'w3', 'o0': 'w5', 'o1': 'w6'}
    ALLN = ['B8', 'BQ', 'BP'] + ['w%d' % i_ for i_ in range(8)] + ['O']
    names = ['B8'] + [x_[0] for x_ in XB]
    issued = set(pre8) | ({'v0'} if 'V' in o['order'] else set())
    last = 'B8'
    for nm, need in XB:
        for it in plan.get(last, []):
            assert it[0] == 'v' or ALLN.index(FREEAT[it[:2]]) <= ALLN.index(last), (it, last)
            run(item(it))
            if it[2:] != 'a': issued.add(it[:2])
        assert all(x_ in issued for x_ in need), (nm, need)
        vm.wait(need)
        stL('L at ' + nm, 2)
        a('s_barrier'); last = nm
    assert len(issued) == 14
    stL('L done')
    stL.flush(4)
    if 'f' in o['hack']: a('s_endpgm')
    if o['stlb']: a(W0)
    srd(SOUT, 10, 'out')
    a('s_lshl_b32 s52, s21, 1\ns_lshr_b32 s3, s22, 1\ns_add_u32 s52, s52, s3')
    if stamps == 4: a('s_min_u32 s52, s52, 11\ns_lshr_b32 s3, s52, 1\ns_and_b32 s75, s52, 1\ns_lshl_b32 s75, s75, 4\ns_or_b32 s75, s75, s3\ns_and_b32 s3, s2, 0xe8\ns_or_b32 s75, s75, s3')
    a('s_cmp_ge_u32 s52, 12\ns_cbranch_scc1 L_end')
    a('s_lshl_b32 s3, %s, 9\ns_add_u32 s62, s3, %d\ns_add_u32 s66, s14, s62\ns_addc_u32 s67, s15, 0' % ('s75' if stamps == 4 else 's2', G_FL + 384))
    a('s_mov_b32 s54, %d' % SPIN)
    a('s_lshl_b32 s3, s23, 1\ns_and_b32 s53, s22, 1\ns_add_u32 s53, s53, s3')
    a('s_mul_i32 s55, s53, 12\ns_add_u32 s55, s55, s52\ns_lshl_b32 s55, s55, 13\ns_add_u32 s55, s55, %d\ns_add_u32 s56, s55, 4096' % G_PO)
    a('s_mul_i32 s58, s52, 43\ns_lshr_b32 s58, s58, 7\ns_mul_i32 s3, s58, 3\ns_sub_u32 s3, s52, s3')
    a('s_mul_i32 s57, s53, 3\ns_add_u32 s57, s57, s3\ns_mul_i32 s57, s57, %d\ns_lshl_b32 s58, s58, 5\ns_add_u32 s57, s57, s58\ns_add_u32 s57, s57, 1024' % (16 * 1152))
    a('v_lshlrev_b32 v6, 3, v0')
    def and16(b):
        for i in range(0, 16, 4): a('s_and_b64 s[%d:%d], s[%d:%d], s[%d:%d]' % (b + i, b + 1 + i, b + i, b + 1 + i, b + 2 + i, b + 3 + i))
        a('s_and_b64 s[%d:%d], s[%d:%d], s[%d:%d]\ns_and_b64 s[%d:%d], s[%d:%d], s[%d:%d]\ns_and_b64 s[%d:%d], s[%d:%d], s[%d:%d]\ns_and_b32 s%d, s%d, s%d' % (
            b, b + 1, b, b + 1, b + 4, b + 5, b + 8, b + 9, b + 8, b + 9, b + 12, b + 13, b, b + 1, b, b + 1, b + 8, b + 9, b, b, b + 1))
    def reduce(name, nsrc, w, off, vaddr, outs, st=None):
        per = nsrc // 2; sz = 256 * w
        def ld(j): return 'buffer_load_dwordx%d %s, v%d, s[%d:%d], s%d offen offset:%d sc1' % (w, v(32 + w * j, w), vaddr, SWS, SWS + 3, 55 + j // per, sz * (j % per))
        if o['x4'] and w == 4: a('v_mul_u32_u24 v3, 1152, v1\nv_lshl_add_u32 v3, v2, 4, v3')
        else: a('v_mul_u32_u24 v3, 1152, v1\nv_lshl_add_u32 v3, v2, 3, v3')
        a('s_mov_b32 s28, 0x00003f80\ns_mov_b32 s29, 0x3f800000')
        if o['prog']:
            a('s_mov_b32 s63, 0')
            a('L_%s:\ns_load_dwordx%d s[84:%d], s[66:67], %d glc\ns_sub_u32 s54, s54, 1\ns_cselect_b32 s30, -1, 0\ns_waitcnt lgkmcnt(0)' % (name, nsrc, 83 + nsrc, off))
            k = nsrc; sh = 1
            while k > 1:
                for i in range(0, nsrc, 2 * sh):
                    if sh <= 4: a('s_lshl%d_add_u32 s%d, s%d, s%d' % (sh, 84 + i, 84 + i + sh, 84 + i))
                    else: a('s_lshl_b32 s%d, s%d, %d\ns_or_b32 s%d, s%d, s%d' % (84 + i + sh, 84 + i + sh, sh, 84 + i, 84 + i, 84 + i + sh))
                k //= 2; sh *= 2
            a('s_or_b32 s84, s84, s30\ns_and_b32 s84, s84, %d\ns_andn2_b32 s85, s84, s63\ns_cbranch_scc0 L_%s\ns_or_b32 s63, s63, s84' % ((1 << nsrc) - 1, name))
            for j in range(nsrc):
                a('s_bitcmp1_b32 s85, %d\ns_cbranch_scc0 L_%s_%d\n%s\nL_%s_%d:' % (j, name, j, ld(j), name, j))
            a('s_cmp_lg_u32 s63, %d\ns_cbranch_scc1 L_%s' % ((1 << nsrc) - 1, name))
            if st: st('flags ok')
            a('s_waitcnt vmcnt(0)')
        else:
            own = o['own'] and w == 4
            oe = own and o['oe'] and o['xe'] in ('E', 'G', 'H') and o['atom']
            if o['xe']: a('s_barrier')
            if oe: a('ds_read_b128 v[32:35], v27')
            gpoll(name, nsrc - (1 if oe else 0), off)
            if stamps == 4: a('s_memrealtime s[68:69]')
            if st: st('flags ok')
            for j in range(nsrc):
                if j or not own: a(ld(j))
            if own and not oe: a('ds_read_b128 v[32:35], v27')
        for j in range(nsrc):
            if not o['prog'] and not (oe and j == 0): a(W0 if own and j == 0 else 's_waitcnt vmcnt(%d)' % (nsrc - 1 - j))
            for t in range(w):
                src = 32 + w * j + t
                if j == 0: a('v_lshlrev_b32 v%d, 16, v%d\nv_and_b32 v%d, 0xffff0000, v%d' % (8 + 2 * t, src, 9 + 2 * t, src))
                elif o.get('dot'): a('v_dot2_f32_bf16 v%d, v%d, s28, v%d\nv_dot2_f32_bf16 v%d, v%d, s29, v%d' % (8 + 2 * t, src, 8 + 2 * t, 9 + 2 * t, src, 9 + 2 * t))
                else: a('v_lshlrev_b32 v16, 16, v%d\nv_and_b32 v17, 0xffff0000, v%d\nv_pk_add_f32 v[%d:%d], v[%d:%d], v[16:17]' % (src, src, 8 + 2 * t, 9 + 2 * t, 8 + 2 * t, 9 + 2 * t))
        if stamps == 4: a('s_memrealtime s[70:71]')
        for t in range(w): a('v_cvt_pk_bf16_f32 v%d, v%d, v%d' % (8 + t, 8 + 2 * t, 9 + 2 * t))
        if w == 4 and o['x4']:
            a('v_permlane32_swap_b32 v8, v10\nv_permlane32_swap_b32 v9, v11\nv_permlane16_swap_b32 v8, v10\nv_permlane16_swap_b32 v9, v11')
            a('buffer_store_dwordx4 v[8:11], v3, s[%d:%d], %s offen %s' % (SOUT, SOUT + 3, outs, o['outsc']))
        else:
            for t in range(w // 2): a('buffer_store_dwordx2 v[%d:%d], v3, s[%d:%d], %s offen offset:%d %s' % (8 + 2 * t, 9 + 2 * t, SOUT, SOUT + 3, outs, 32 * t, o['outsc']))
        if stamps >= 4:
            a('s_waitcnt vmcnt(0)\ns_memrealtime s[72:73]\ns_waitcnt lgkmcnt(0)\nv_mov_b32 v31, 0\ns_lshl_b32 s3, s2, 9\ns_mul_i32 s74, s20, 24\ns_add_u32 s3, s3, s74\ns_add_u32 s3, s3, %d' % (STAMP_OFF + 8 * 50 - 96))
            for i in range(3) if stamps == 4 else [2]:
                a('v_mov_b32 v254, s%d\nv_mov_b32 v255, s%d' % (68 + 2 * i, 69 + 2 * i))
                a('buffer_store_dwordx2 v[254:255], v31, s[%d:%d], s3 offen offset:%d' % (SWS, SWS + 3, 8 * i))
    if stamps == 4:
        for w_, nm in enumerate(['odd', 'r0', 'r1', 'r2']):
            for i, x_ in enumerate(['flags', 'summed', 'end']): a('; stamp %d %s %s' % (50 + 3 * w_ + i, nm, x_))
    reduce('op', 16, 2, 0, 6, 's57')
    a('s_endpgm')
    a('L_comp:')
    lg = Cnt(a, 'lgkmcnt', 15)
    stC('C entry', 3)
    XA, WA, VA, OVA, OA, QA, FRA, FUA, FV, FC, PFA = 10, 12, 16, 18, 20, 21, 22, 23, 24, 27, 31
    A = 32; F = [80, 108]; B = 136; C = 184; VWO = 232; SP = 244
    KF = B; QF = 80; S = 96; P = SP; KA = 184; UA = 254; QT = 192
    a('v_bfe_u32 v3, v0, 2, 2\nv_and_b32 v4, 3, v0')
    a('s_lshr_b32 s18, s20, 1\ns_and_b32 s17, s20, 1')
    a(H0)
    a('v_lshrrev_b32 v7, 1, v1\nv_xor_b32 v7, v7, v2\nv_lshlrev_b32 v7, 4, v7\nv_lshl_add_u32 v5, v1, 7, v7\nv_xor_b32 v6, 64, v5')
    a('s_mul_i32 s3, s18, 6144\ns_add_u32 s3, s3, %d' % L_X0)
    a('v_add_u32 v%d, s3, v5\nv_add_u32 v%d, s3, v6' % (XA, XA + 1))
    a('s_add_u32 s3, s3, %d\nv_add_u32 v%d, s3, v5\nv_add_u32 v%d, s3, v6' % (L_V - L_X0, VA, VA + 1))
    a('s_and_b32 s3, s22, 1\ns_mul_i32 s3, s3, 6144\ns_add_u32 s3, s3, %d' % L_V)
    a('v_add_u32 v%d, s3, v5\nv_add_u32 v%d, s3, v6' % (OVA, OVA + 1))
    a('v_and_b32 v7, 1, v2\nv_lshl_add_u32 v7, v7, 2, v3\ns_lshl_b32 s3, s17, 2\nv_xor_b32 v7, s3, v7')
    a('v_lshl_add_u32 v5, v2, 3, v3\nv_lshlrev_b32 v8, 8, v5\nv_lshl_add_u32 v8, v4, 3, v8')
    assert L_W == 0
    for t in range(4): a('v_xor_b32 v9, %d, v7\nv_lshl_add_u32 v%d, v9, 5, v8' % (t, WA + t))
    a('v_and_b32 v7, 1, v2\nv_lshrrev_b32 v8, 1, v3\nv_lshl_add_u32 v7, v7, 1, v8\nv_xor_b32 v7, s20, v7')
    a('v_lshlrev_b32 v8, 7, v5\nv_lshl_add_u32 v8, v4, 3, v8\nv_lshl_add_u32 v%d, v7, 5, v8' % OA)
    a('s_mul_i32 s3, s18, 12288\ns_lshl_b32 s19, s17, 11\ns_add_u32 s3, s3, s19\ns_add_u32 s3, s3, %d' % L_Q)
    a('v_lshlrev_b32 v25, 4, v0\nv_lshlrev_b32 v26, 3, v0\nv_add_u32 v%d, s3, v%d' % (QA, 26 if o['q64'] else 25))
    a('s_and_b32 s59, s2, 0xf8\ns_lshl_b32 s48, s20, 1\ns_add_u32 s59, s59, s48\ns_mul_i32 s56, s59, 24576\ns_add_u32 s56, s56, %d\ns_add_u32 s57, s56, 24576' % G_PM)
    a('s_xor_b32 s48, s48, s21\ns_lshl_b32 s3, s48, 10\ns_add_u32 s56, s56, s3\ns_xor_b32 s3, s3, 1024\ns_add_u32 s57, s57, s3')
    if o['own']:
        a('s_cmp_eq_u32 s48, 0\ns_cselect_b32 s56, 0x7ff00000, s56\ns_cmp_eq_u32 s48, 1\ns_cselect_b32 s57, 0x7ff00000, s57\nv_add_u32 v27, %d, v25' % L_F)
    a('s_lshl_b32 s3, s23, 1\ns_and_b32 s54, s22, 1\ns_add_u32 s3, s3, s54\ns_mul_i32 s3, s3, 12\ns_mul_i32 s54, s20, 3\ns_add_u32 s3, s3, s54\ns_lshl_b32 s58, s3, 13')
    a('s_lshl_b32 s3, s21, 1\ns_lshr_b32 s55, s22, 1\ns_add_u32 s55, s55, s3\ns_lshl_b32 s3, s55, 9\ns_add_u32 s58, s58, s3\ns_add_u32 s58, s58, %d' % G_PO)
    a('v_and_b32 v5, 7, v0\nv_lshrrev_b32 v6, 3, v0')
    a('v_add_u32 v7, s59, v5\nv_lshlrev_b32 v7, 9, v7\n' + ('s_mov_b32 s3, %d' % (G_FL + MOFF) if o['atom'] else 's_lshl_b32 s3, s21, 2\ns_add_u32 s3, s3, %d' % (G_FL + MOFF)) + '\nv_add_u32 v7, s3, v7')
    a('s_sub_u32 s54, s54, 2\nv_add_u32 v8, s54, v5\nv_lshrrev_b32 v9, 1, v8\nv_and_b32 v8, 1, v8\nv_lshl_add_u32 v8, v8, 4, v9\ns_and_b32 s3, s2, 0xe8\nv_add_u32 v8, s3, v8\nv_lshlrev_b32 v8, 9, v8')
    a(('s_mov_b32 s3, %d' if o['atom'] else 's_lshl_b32 s3, s55, 2\ns_add_u32 s3, s3, %d') % (G_FL + 128 + OOFF) + '\nv_add_u32 v8, s3, v8\nv_mov_b32 v9, 0x7ff00000')
    a('v_lshl_add_u32 v7, v6, 6, v7\nv_lshl_add_u32 v8, v6, 6, v8\nv_cmp_gt_u32 vcc, %d, v6\nv_cndmask_b32 v5, 7, v5, vcc' % o['rep'])
    if o['own'] and o['oe'] and o['xe'] in ('E', 'G', 'H') and o['atom']: a('v_cmp_ne_u32 vcc, s48, v5\nv_cndmask_b32 v7, v9, v7, vcc')
    a('v_cmp_gt_u32 vcc, 5, v5\nv_cndmask_b32 v8, v9, v8, vcc\nv_cmp_gt_u32 vcc, 2, v5\nv_cndmask_b32 v30, v8, v7, vcc\nv_cndmask_b32 v28, v9, v7, vcc\nv_mov_b32 v29, 1')
    if 'g' in o['hack']: a('s_mov_b32 s56, 0x7ff00000\ns_mov_b32 s57, s56\ns_mov_b32 s58, s56')
    a('s_mov_b32 s52, s20')
    def unit_setup():
        a('s_cmp_ge_u32 s52, 3\ns_cselect_b32 s3, 12288, 0\ns_add_u32 s3, s3, %d' % L_K)
        a('v_lshrrev_b32 v7, 1, v2\nv_xor_b32 v7, v1, v7\nv_lshlrev_b32 v7, 4, v7\nv_lshl_add_u32 v7, v1, 8, v7\nv_and_b32 v8, 1, v2\nv_lshl_add_u32 v7, v8, 3, v7')
        for j in range(8): a('v_xor_b32 v8, %d, v7\nv_add_u32 v%d, s3, v8' % (32 * j, KA + j))
        a('s_lshl_b32 s3, s52, 12\ns_add_u32 s3, s3, %d\nv_add_u32 v%d, s3, v%d' % (L_Q, UA, 26 if o['q64'] else 25))
        a('s_mov_b32 s50, 0x%x\ns_mov_b32 s51, s50' % f2i(128 ** -0.5 * math.log2(math.e)))
        a('s_mul_i32 s3, s52, 1536\ns_mul_i32 s49, s2, 9216\ns_add_u32 s49, s49, s3\ns_add_u32 s49, s49, %d' % G_P)
    def k_reads(): return ['ds_read_b64 %s, v%d offset:%d' % (v(KF + 16 * kt + 2 * j, 2), KA + j, 4096 * kt) for j in range(8) for kt in range(3)]
    unit_setup()
    a(W0)
    srd(SWS, 14, 'ws')
    def wreads(st, off, wa=WA): return ['ds_read_b64_tr_b16 %s, v%d offset:%d' % (v(st + 4 * t + 2 * hh, 2), wa + t, off + 1024 * hh) for t in range(4) for hh in range(2)]
    def reads_A(n, ks, st=None):
        st = st or F[ks]
        return ['ds_read_b128 %s, v%d offset:%d' % (v(st + 16 + 4 * q, 4), XA + ks, XOFF[n % 3] + 2048 * q) for q in range(3)] + wreads(st, 16384 * (n % 3) + 8192 * ks)
    ORD = [(t, q if t % 2 == 0 else 2 - q) for t in range(4) for q in range(3)]
    def mfma(acc, ks, first, swap, od=None):
        out = []
        for t, q in od or ORD:
            d = v(acc + 4 * (3 * t + q), 4); x = v(F[ks] + 4 * t, 4); y = v(F[ks] + 16 + 4 * q, 4)
            if swap: x, y = y, x
            out.append(MF % (d, x, y, '0' if first else d))
        return out
    def cvt(d, s_): return ['v_cvt_pk_bf16_f32 v%d, v%d, v%d' % (d, s_, s_ + 1), 'v_cvt_pk_bf16_f32 v%d, v%d, v%d' % (d + 1, s_ + 2, s_ + 3)]
    def ds(txt, tag):
        def f(): a(txt); lg.issue(tag)
        return f
    def step(m, dsops, extra=(), waits=None, pre=(), xstart=0, dstart=0):
        n = len(m); per = [[] for _ in range(n)]
        for i, x_ in enumerate(pre): per[i].append(x_)
        nd = n - dstart
        for i, x_ in enumerate(dsops): per[dstart + (i if len(dsops) <= nd else i * nd // len(dsops))].append(x_)
        nx = n - xstart
        for i, x_ in enumerate(extra): per[xstart + (i * nx // len(extra))].append(x_)
        for i in range(n):
            if waits and i in waits: lg.wait(waits[i])
            a(m[i]); run(per[i])
    stC('C at B0', 3)
    a('s_barrier')
    stC('B0')
    def tA(n, ks): return [ds(x_, 'a%d%d%s' % (n, ks, 'lo' if i < 7 else 'hi')) for i, x_ in enumerate(reads_A(n, ks))]
    if o['atune']:
        bg = o['atune']
        run(tA(0, 0))
        for n in range(7):
            kr = [ds(x_, 'k') for x_ in k_reads()[6 * (n - 3):6 * (n - 2)]] if 3 <= n < 7 else []
            m = mfma(A, 0, n == 0, False)
            step(m[:10], tA(n, 1), waits={0: 'a%d0lo' % n, 6: 'a%d0hi' % n}); step(m[10:], [])
            m = mfma(A, 1, False, False)
            step(m[:bg], [], waits={0: 'a%d1lo' % n})
            lg.wait_all(); a('s_barrier')
            r = tA(n + 1, 0)
            run(r[:1]); step(m[bg:], r[1:] + kr)
        lg.seq = []
    else: run(reads_A(0, 0))
    for n in range(7 if o['atune'] else 0, 9):
        if n == 7 and o['tm']:
            assert not o['b8a']
            F2 = 204; QT = F[1]
            a(W0)
            run(interleave(mfma(A, 0, False, False), reads_A(7, 1), 0, 2))
            a(W0); a('s_barrier'); stC('B8')
            r0, r1 = reads_A(8, 0), reads_A(8, 1, F2)
            rr = []
            for idx in ([0], [3, 4], [5, 6], [1], [2], [7, 8], [9, 10]):
                rr += [r0[i] for i in idx] + [r1[i] for i in idx]
            run(interleave(mfma(A, 1, False, False), rr, 0, 2))
            stC('end 7,1', 3)
            m = []; qw = []
            for i, (tp, q) in enumerate([(tp, q) for tp in range(2) for q in range(3)]):
                for u in range(2):
                    t = 2 * tp + u; d = v(A + 4 * (3 * t + q), 4)
                    for st in (F[0], F2): m.append(MF % (d, v(st + 4 * t, 4), v(st + 16 + 4 * q, 4), d))
                    qw += cvt(QT + 4 * i + 2 * u, A + 4 * (3 * t + q))
                    if o['q64'] and 'q' not in o['hack']: qw[-1] += '\nds_write_b64 v%d, %s offset:%d' % (QA, v(QT + 4 * i + 2 * u, 2), q * 4096 + tp * 1024 + u * 512)
                if not o['q64']: qw[-1] += '\nds_write_b128 v%d, %s offset:%d' % (QA, v(QT + 4 * i, 4), q * 4096 + tp * 1024)
            m[0] = 's_waitcnt lgkmcnt(12)\n' + m[0]; m[4] = 's_waitcnt lgkmcnt(8)\n' + m[4]; m[8] = ('s_waitcnt lgkmcnt(%d)' % (1 if o['q64'] and o['qs'] <= 6 and 'q' not in o['hack'] else 0)) + '\n' + m[8]
            run(interleave(m, qw, o['qs'], 1))
            stC('Q issued', 3)
            if stamps == 3: a(W0); stC('Q done', 3)
            break
        if n == 8: stC('end 7,1', 3)
        a(W0)
        run(interleave(mfma(A, 0, n == 0, False), (['s_barrier'] if n == 8 and o['b8a'] else []) + reads_A(n, 1), 0, 2))
        if n < 8:
            a(W0)
            a('s_barrier')
            if n == 7: stC('B8')
            run(interleave(mfma(A, 1, False, False), reads_A(n + 1, 0) + (k_reads()[8 * (n - 4):8 * (n - 3)] if 4 <= n < 7 else []), 0, 2))
        else:
            stC('end 8,0', 3)
            a(W0)
            od = [(2 * tp + u, q) for tp in range(2) for q in range(3) for u in range(2)]
            qw = []
            for i, (t, q) in enumerate(od):
                qw += cvt(QT + 2 * i, A + 4 * (3 * t + q))
                if t & 1: qw[-1] += '\nds_write_b128 v%d, %s offset:%d' % (QA, v(QT + 2 * i - 2, 4), q * 4096 + (t >> 1) * 1024)
            run(interleave(mfma(A, 1, False, False, od), qw, 6, 2))
            stC('Q issued', 3)
            if stamps == 3: a(W0); stC('Q done', 3)
    if o['uprio']: a('s_setprio %d' % o['uprio'])
    a('L_unit:')
    a(W0)
    a('s_barrier')
    stC('BQ')
    for kk in range(4):
        if o['q64'] == 1: a('ds_read2st64_b64 %s, v%d offset0:%d offset1:%d' % (v(QF + 4 * kk, 4), UA, 2 * kk, 2 * kk + 1))
        elif o['q64'] == 2: a('ds_read_b64 %s, v%d offset:%d\nds_read_b64 %s, v%d offset:%d' % (v(QF + 4 * kk, 2), UA, 1024 * kk, v(QF + 4 * kk + 2, 2), UA, 1024 * kk + 512))
        else: a('ds_read_b128 %s, v%d offset:%d' % (v(QF + 4 * kk, 4), UA, 1024 * kk))
    for kk in range(4):
        a('s_waitcnt lgkmcnt(%d)' % ((3 - kk) * (2 if o['q64'] == 2 else 1)))
        for kt in range(3): a(MF % (v(S + 4 * kt, 4), v(KF + 16 * kt + 4 * kk, 4), v(QF + 4 * kk, 4), v(S + 4 * kt, 4) if kk else '0'))
    if 's' in o['hack']: a('s_branch L_hs_skip')
    if 'h' in o['hack']: a('s_cmp_ge_u32 s20, 4\ns_cbranch_scc1 L_hs_skip')
    x, y = 6, 7
    a('v_max3_f32 v6, v%d, v%d, v%d\nv_max3_f32 v7, v%d, v%d, v%d' % (S, S + 1, S + 2, S + 3, S + 4, S + 5))
    a('v_max3_f32 v6, v6, v%d, v%d\nv_max3_f32 v7, v7, v%d, v%d\nv_max3_f32 v6, v6, v%d, v%d' % (S + 6, S + 7, S + 8, S + 9, S + 10, S + 11))
    def xl(op, first):
        a(first)
        a('v_permlane16_swap_b32 v6, v7\n%s v8, v6, v7\n%s v7, v6, v7\nv_permlane32_swap_b32 v8, v7\n%s v6, v8, v7' % (op, op, op))
    xl('v_max_f32', 'v_max_f32 v6, v6, v7\nv_mov_b32 v7, v6')
    a('v_mul_f32 v6, s50, v6')
    if o['pk']:
        for t in range(0, 12, 2): a('v_pk_fma_f32 v[%d:%d], v[%d:%d], s[50:51], v[6:7] op_sel_hi:[1,1,0] neg_lo:[0,0,1] neg_hi:[0,0,1]' % (S + t, S + t + 1, S + t, S + t + 1))
    else:
        for t in range(12): a('v_fma_f32 v%d, v%d, s50, -v6' % (S + t, S + t))
    for t in range(12): a('v_exp_f32 v%d, v%d' % (S + t, S + t))
    if o['pk']:
        a('v_pk_add_f32 v[6:7], v[%d:%d], v[%d:%d]\nv_pk_add_f32 v[4:5], v[%d:%d], v[%d:%d]' % (S, S + 1, S + 2, S + 3, S + 4, S + 5, S + 6, S + 7))
        a('v_pk_add_f32 v[6:7], v[6:7], v[%d:%d]\nv_pk_add_f32 v[4:5], v[4:5], v[%d:%d]\nv_pk_add_f32 v[4:5], v[4:5], v[6:7]' % (S + 8, S + 9, S + 10, S + 11))
    else:
        a('v_add_f32 v4, v%d, v%d\nv_add_f32 v5, v%d, v%d' % (S, S + 1, S + 2, S + 3))
        for t in range(4, 12, 2): a('v_add_f32 v4, v4, v%d\nv_add_f32 v5, v5, v%d' % (S + t, S + t + 1))
    xl('v_add_f32', 'v_add_f32 v6, v4, v5\nv_add_f32 v7, v4, v5')
    a('v_rcp_f32 v6, v6')
    if o['pk']:
        for t in range(0, 12, 2): a('v_pk_mul_f32 v[%d:%d], v[%d:%d], v[6:7] op_sel_hi:[1,0]' % (S + t, S + t + 1, S + t, S + t + 1))
    else:
        for t in range(12): a('v_mul_f32 v%d, v%d, v6' % (S + t, S + t))
    for t in range(6): a('v_cvt_pk_bf16_f32 v%d, v%d, v%d' % (P + t, S + 2 * t, S + 2 * t + 1))
    a('L_hs_skip:')
    if 'e' not in o['hack'] and 'y' not in o['hack']:
        a('buffer_store_dwordx4 %s, v25, s[%d:%d], s49 offen sc1' % (v(P, 4), SWS, SWS + 3))
        a('buffer_store_dwordx2 %s, v26, s[%d:%d], s49 offen offset:1024 sc1' % (v(P + 4, 2), SWS, SWS + 3))
    stC('C at BP')
    a('s_barrier')
    a('s_cmp_ge_u32 s20, 4\ns_cbranch_scc1 L_help2')
    if o['cprio'] or o['uprio']: a('s_setprio %d' % o['cprio'])
    stC('BP')
    def reads_W(p, ks):
        vp = (p >> 2) * 2 + (p & 1); tg = 'w%d%d' % (p, ks)
        r = ['ds_read_b128 %s, v%d offset:%d' % (v(F[ks] + 16 + 4 * q, 4), VA + ks, 12288 * vp + 2048 * q) for q in range(3)] + (wreads(F[ks], 16384 * WSLOT['w%d' % p] + 8192 * ks) if p != 3 else wreads(F[ks], 8192 * ks, 250))
        if (p, ks) == (0, 0) and o['fine0']:
            r = [r[0], r[3], r[4], r[1], r[2]] + r[5:]
            return [ds(x_, 'f%d' % i) for i, x_ in enumerate(r)]
        return [ds(x_, tg + ('lo' if i < 7 else 'hi')) for i, x_ in enumerate(r)]
    def wW(p, ks, more=()): return {0: 'f2', 1: 'f3', 2: 'f4', 3: 'f6', 6: 'f8', 9: 'f10'} if (p, ks) == (0, 0) and o['fine0'] else {0: ['w%d%dlo' % (p, ks)] + list(more), 6: ['w%d%dhi' % (p, ks)]}
    def vwpos(base, i, kt): return base + ([0, 2, 4][kt] if i % 2 == 0 else [8, 10, 6][kt])
    HACC = [B, A, B, A]; HDST = [C, C, B, B]
    def cvt_W(i): return [x_ for t in range(4) for kt in range(3) for x_ in cvt(vwpos(HDST[i] + 12 * t, i, kt), HACC[i] + 4 * (3 * t + kt))]
    def xb(nm): return [('s_waitcnt vmcnt(0)\n' if nm == o['ack'] and 'w' not in o['hack'] else '') + 's_barrier'] if nm in XN else []
    def ins(lst, i, x_): return lst[:i] + [x_] + lst[i:]
    OS = [[80, 84, 88, 92, 96], [48, 52, 56, 60, 64], [108, 112, 116, 120, 124], [100, 104, 128, 132, 68]]; OACC = [[232, 236, 240], [244, 248, 252]]
    def rdO(kq):
        tg = 'os%d' % kq
        return [ds('ds_read_b128 %s, v%d offset:%d' % (v(OS[kq][kt], 4), OVA + (kq & 1), 12288 * (kq >> 1) + 2048 * kt), tg) for kt in range(3)] + \
               [ds('ds_read_b64_tr_b16 %s, v%d offset:%d' % (v(OS[kq][3 + e] + 2 * hh, 2), OA, 16384 * WSLOT['o%d' % e] + 4096 * kq + 512 * hh), tg) for e in range(2) for hh in range(2)]
    mfma_O = [MF % (v(OACC[e][kt], 4), v(OS[kq][kt], 4), v(OS[kq][3 + e], 4), v(OACC[e][kt], 4) if kq else '0') for kq in range(4) for e in range(2) for kt in range(3)]
    cvt_O = [x_ for e in range(2) for kt in range(3) for x_ in cvt(vwpos(VWO, e, kt), OACC[e][kt])]
    PFULL = [10, 11, 22, 23]; PHALF = [4, 5, 6, 7]; POF = [24, 21]; POH = [8, 9]
    padr = []
    for i in range(4):
        padr.append('s_xor_b32 s3, s53, %d\ns_mul_i32 s3, s3, 9216\ns_add_u32 s3, s3, s55' % i)
        padr.append('v_add_u32 v%d, s3, v25' % PFULL[i]); padr.append('v_add_u32 v%d, s3, v26' % PHALF[i])
        if i < 2:
            padr.append('s_add_u32 s3, s3, s54\nv_add_u32 v%d, s3, v25' % POF[i]); padr.append('v_add_u32 v%d, s3, v26' % POH[i])
    a('s_mul_i32 s55, s18, 4608\ns_and_b32 s54, s22, 1\ns_mul_i32 s54, s54, 4608\ns_sub_u32 s54, s54, s55\ns_add_u32 s55, s55, %d\ns_lshr_b32 s53, s16, 1\ns_xor_b32 s53, s53, s22\ns_xor_b32 s53, s53, 3' % L_P)
    def preads(dst, fa, ha, qt, tag):
        off = 1536 * qt
        return [ds('ds_read_b128 %s, v%d offset:%d' % (v(dst[0], 4), fa[0], off), tag),
                ds('ds_read_b64 %s, v%d offset:%d' % (v(dst[1], 2), ha[0], off + 1024), tag),
                ds('ds_read_b64 %s, v%d offset:%d' % (v(dst[1] + 2, 2), ha[1], off + 1024), tag),
                ds('ds_read_b128 %s, v%d offset:%d' % (v(dst[2], 4), fa[1], off), tag)]
    PB = [[80 + 4 * k for k in range(6)], [108 + 4 * k for k in range(6)], [80, 84, 88, 92, 96, 72]]
    def reads_F(qt): return preads(PB[qt][:3], PFULL[:2], PHALF[:2], qt, 'p%da' % qt) + preads(PB[qt][3:], PFULL[2:], PHALF[2:], qt, 'p%db' % qt)
    run(reads_W(0, 0))
    for p in range(8):
        i = p >> 1
        if i == 0: ex0, ex1 = (padr[:5], padr[5:10]) if p == 0 else (padr[10:], ['v_add_u32 v%d, %d, v%d' % (250 + t, L_P, WA + t) for t in range(4)])
        else:
            cv = cvt_W(i - 1)
            ex0, ex1 = (cv[:6], cv[6:12]) if p % 2 == 0 else (cv[12:18], cv[18:])
        step(mfma(HACC[i], 0, p % 2 == 0, True), reads_W(p, 1), extra=ex0, xstart=4 if p % 2 == 0 else 0, waits=wW(p, 0))
        step(mfma(HACC[i], 1, False, True), reads_W(p + 1, 0) if p < 7 else reads_F(0), extra=ex1, xstart=1, waits=wW(p, 1), pre=xb('w%d' % p))
        stC('s%d' % p if p < 7 else 'VW end', 2 if p < 7 else 1)
    RACC = [[244, 248, 252, 104], [32, 36, 40, 44], [32, 36, 40, 44]]
    PK = [76, 12]; OP = [[48, 52, 56], [60, 64, 108], [112, 116, 120]]
    def fm(qt, t, k): return MF % (v(RACC[qt][t], 4), v([C, B][k // 3] + 12 * t + 4 * (k % 3), 4), v(PB[qt][k], 4), v(RACC[qt][t], 4) if k else '0')
    def store_F(qt, h):
        l_ = 'L_own%d%d' % (qt, h)
        ownw = '\ns_cmp_lg_u32 s48, %d\ns_cbranch_scc1 %s\nds_write_b128 v27, %s offset:%d\n%s:' % (h, l_, v(PK[h], 4), 1024 * qt, l_) if o['own'] else ''
        return cvt(PK[h], RACC[qt][2 * h]) + cvt(PK[h] + 2, RACC[qt][2 * h + 1]) + \
               ['buffer_store_dwordx4 %s, v25, s[%d:%d], s%d offen sc1\ns_add_u32 s%d, s%d, 8192' % (v(PK[h], 4), SWS, SWS + 3, 56 + h, 56 + h, 56 + h) + ownw]
    def flag(reg, off): return FOP + ' v29, v%d, s[%d:%d], 0 offen offset:%d sc1' % (reg, SWS, SWS + 3, off)
    m = [fm(0, t, k) for k in range(6) for t in range(4)]
    c3 = cvt_W(3)
    c3 = [c3[6 * t + j] for t in range(4) for j in (4, 5)] + [c3[6 * t + j] for t in range(4) for j in range(4)]
    step(m[:19], reads_F(1), extra=c3, xstart=3, waits={0: ['p0a'], 11: ['p0b']})
    step(m[19:], [])
    stC('R0', 2)
    xo = o['xo']
    m = [fm(1, t, k) for t in range(4) for k in range(6)]
    step(m[:xo], [], extra=store_F(0, 0) + store_F(0, 1), xstart=3, waits={0: ['p1a'], 3: ['p1b']})
    seq = rdO(0) + rdO(1); k1 = min(14, 24 - xo)
    step(m[xo:], seq[:k1], extra=store_F(1, 0), xstart=max(0, 18 - xo), pre=xb('O'))
    stC('R1', 2)
    ef0 = ['s_waitcnt vmcnt(2)\n' + flag(28, 0)] if o['ef'] >= 1 else []
    step(mfma_O[:15], seq[k1:] + rdO(2) + rdO(3), extra=store_F(1, 1), xstart=4, waits={0: ['os0'], 6: ['os1'], 12: ['os2']})
    step(mfma_O[15:], reads_F(2), waits={3: ['os3']}, extra=ef0, xstart=o['e0'])
    if o['xe'] == 'O': a('s_barrier')
    stC('O', 2)
    m = [fm(2, t, k) for t in range(4) for k in range(6)]
    op = [x_ for qt in range(3) for x_ in preads(OP[qt], POF, POH, qt, 'po%d' % qt)]
    step(m[:12], op, extra=cvt_O, xstart=2, waits={0: ['p2a'], 3: ['p2b']})
    mo = [MF % (v(SP + 4 * qt, 4), v(VWO + 4 * k, 4), v(OP[qt][k], 4), v(SP + 4 * qt, 4) if k else '0') for qt in range(3) for k in range(3)]
    step(mo, [], extra=store_F(2, 0), xstart=3, waits={0: ['po1'], 6: ['po2']}, pre=['s_waitcnt vmcnt(1)\n' + flag(28, 128)] if o['e1'] == 'fo' else [])
    oddst = []
    for qt in range(3):
        oddst += cvt(VWO + 2 * qt, SP + 4 * qt) + ['buffer_store_dwordx2 %s, v26, s[%d:%d], s58 offen sc1\ns_add_u32 s58, s58, 8192' % (v(VWO + 2 * qt, 2), SWS, SWS + 3)]
    step(m[12:], [], extra=oddst, xstart=1, pre=(['s_waitcnt vmcnt(2)\n' + flag(28, 128)] if o['e1'] == 'r2b' else []) + (['s_barrier'] if o['xe'] == 'F' else []))
    assert o['e1'] == 'end' or o['ef'] == 2
    if o['ef'] >= 2 and o['e1'] == 'end': a('s_waitcnt vmcnt(5)'); a(flag(28, 128))
    run(store_F(2, 1))
    stC('final end')
    if o['own']: a(W0)
    if o['xe'] == 'E': a('s_barrier')
    if o['ef'] == 0: a('s_waitcnt vmcnt(7)'); a(flag(28, 0))
    if o['ef'] < 2: a('s_waitcnt vmcnt(6)'); a(flag(28, 128))
    if 'b' in o['hack']:
        a(flag(30, 256))
    elif o.get('split'):
        a('s_waitcnt vmcnt(%d)' % [3, 2, 2 if o['e1'] == 'end' else 1][o['ef']]); a('s_mov_b64 exec, 0x1d1d'); a(flag(30, 256))
        if o['xe'] == 'H': a('s_barrier')
        a('s_waitcnt vmcnt(%d)' % [3, 2, 1][o['ef']]); a('s_mov_b64 exec, 0x0202'); a(flag(30, 256)); a('s_mov_b64 exec, -1')
    else:
        a('s_waitcnt vmcnt(%d)' % [2, 1, 0][o['ef']]); a(flag(30, 256))
    if o['xe'] == 'G': a('s_barrier')
    stC('flags sent')
    stC.flush(0)
    a('s_endpgm')
    a('L_help:')
    a('s_sub_u32 s18, s20, 5\ns_sub_u32 s52, s20, 1')
    a('v_lshlrev_b32 v25, 4, v0\nv_lshlrev_b32 v26, 3, v0')
    a('v_mov_b32 v12, 0\nv_mov_b32 v13, 0\nv_mov_b32 v14, 0\nv_mov_b32 v15, 0\nv_mov_b32 v29, 1\nv_mov_b32 v28, 0x7ff00000\nv_mov_b32 v30, v28')
    a(W0)
    srd(SWS, 14, 'ws')
    a('s_cmp_eq_u32 s20, 7\ns_cbranch_scc1 L_h2')
    a('s_cmp_eq_u32 s20, 5\ns_cbranch_scc1 L_h0')
    a('s_cmp_ge_u32 s2, 32\ns_cbranch_scc1 L_h0')
    a('s_lshl_b32 s3, s2, 12')
    assert G_FL == 0
    for j in range(4): a('buffer_store_dwordx4 v[12:15], v25, s[%d:%d], s3 offen offset:%d sc1' % (SWS, SWS + 3, 1024 * j))
    a('s_lshl_b32 s3, s2, 2\nv_mov_b32 v16, s3\ns_waitcnt vmcnt(0)')
    a('s_mov_b64 exec, 1\nglobal_store_dword v16, v29, s[12:13] sc1\ns_mov_b64 exec, -1')
    a('L_h0:')
    unit_setup()
    for c in range(9 + o['b8a']):
        a('s_barrier')
        if c == 4: run(k_reads())
    a('s_branch L_unit')
    a('L_h2:')
    if o['codepf']:
        a('s_getpc_b64 s[66:67]\nL_pc:\ns_sub_u32 s66, s66, L_pc-%s\ns_subb_u32 s67, s67, 0' % KN)
        a('s_lshr_b32 s3, s2, 3\ns_lshl_b32 s3, s3, 7\nv_lshlrev_b32 v7, 12, v0\nv_add_u32 v7, s3, v7')
        a('v_cmp_gt_u32 vcc, L_codeend-%s, v7\ns_and_saveexec_b64 s[64:65], vcc' % KN)
        a('global_load_dword v31, v7, s[66:67]')
        a('s_mov_b64 exec, s[64:65]')
    def tlb_touch():
        a('s_lshl_b32 s3, s2, 7\nv_lshlrev_b32 v7, 21, v0\nv_add_u32 v7, s3, v7\nv_add_u32 v8, 0x1f0000, v7')
        a('s_mov_b64 exec, 0x7f\nglobal_load_dword v32, v8, s[14:15]')
        if o['tlb'] in (1, 3):
            a('s_mov_b64 exec, 7\nglobal_load_dword v33, v7, s[8:9]')
            a('s_mov_b64 exec, 3\nglobal_load_dword v34, v7, s[4:5]\nglobal_load_dword v35, v7, s[6:7]')
        a('s_mov_b64 exec, 1\nglobal_load_dword v36, v7, s[10:11]\ns_mov_b64 exec, -1')
    if o['tlb'] in (1, 2): tlb_touch()
    hs = 's_load_dwordx16 s[84:99], s[12:13], 0%s\ns_load_dwordx16 s[28:43], s[12:13], 64%s'
    for c in range(10 + o['b8a']):
        a('s_barrier')
        if c == o['hsbar']: a(hs % ('', ''))
        if c == o['oddpf']:
            a('s_lshl_b32 s3, s21, 5\ns_lshr_b32 s17, s2, 3\ns_add_u32 s3, s3, s17\ns_mul_i32 s3, s3, %d\ns_add_u32 s3, s3, 1024' % (16 * 1152))
            a('v_mul_u32_u24 v7, 1152, v1\nv_add_u32 v7, s3, v7\ns_mov_b64 exec, 0xffff\nglobal_load_dword v37, v7, s[8:9]\ns_mov_b64 exec, -1')
        if c == 0 and o['tlb'] == 3: tlb_touch()
        if c == 8 and o['tlb'] == 4: tlb_touch()
    a('s_mov_b32 s54, %d\nL_hs:\ns_waitcnt lgkmcnt(0)' % SPIN)
    and16(84); and16(28); a('s_and_b32 s84, s84, s28')
    a('s_cbranch_scc1 L_hsok\ns_sub_u32 s54, s54, 1\ns_cbranch_scc1 L_hsok'); a(hs % (' glc', ' glc')); a('s_branch L_hs\nL_hsok:')
    a('s_barrier')
    a('L_help2:')
    run(xb('w0'))
    a('s_mul_i32 s17, s18, 3072')
    srd(SOUT, 10, 'out')
    a('s_lshl_b32 s3, s2, 9\ns_lshl_b32 s53, s18, 7\ns_add_u32 s62, s3, s53\ns_add_u32 s66, s14, s62\ns_addc_u32 s67, s15, 0')
    a('s_and_b32 s3, s2, 0xe7\ns_lshl_b32 s3, s3, 9\ns_add_u32 s53, s53, s3\n' + ('' if o['atom'] else 's_lshl_b32 s3, s22, 2\ns_add_u32 s53, s53, s3\n') + 'v_lshlrev_b32 v21, 12, v0')
    a('s_mul_i32 s55, s2, 3\ns_add_u32 s55, s55, s18\ns_lshl_b32 s55, s55, 13\ns_add_u32 s55, s55, %d\ns_add_u32 s56, s55, 4096' % G_PM)
    a('s_lshl_b32 s59, s23, 1\ns_lshr_b32 s3, s21, 2\ns_add_u32 s59, s59, s3\ns_mul_i32 s59, s59, 3\ns_add_u32 s59, s59, s18\ns_mul_i32 s59, s59, %d' % (16 * 1152))
    a('s_lshl_b32 s3, s22, 8\ns_add_u32 s59, s59, s3\ns_and_b32 s3, s21, 3\ns_lshl_b32 s3, s3, 6\ns_add_u32 s59, s59, s3')
    def pfetch(d):
        a('s_add_u32 m0, s17, %d\ns_xor_b32 s58, s2, %d\ns_mul_i32 s58, s58, 9216\ns_add_u32 s58, s58, s17\ns_add_u32 s58, s58, %d' % (L_P + 9216 * (3 - d), d << 3, G_P))
        for j in range(3):
            if 'e' not in o['hack'] and 'x' not in o['hack']: a('buffer_load_dwordx4 v25, s[%d:%d], s58 offen offset:%d sc1 lds' % (SWS, SWS + 3, 1024 * j))
    xs = [x_ for x_ in XN[2:-1] if x_ != 'w0']
    k = 0
    while True:
        nm = xs[k]; k += 1
        run(xb(nm))
        if nm == o['ack']:
            a('s_mov_b64 exec, 15' + ('\ns_bitset0_b64 exec, s22' if o['noself'] else '') + '\n' + FOP + ' v29, v21, s[%d:%d], s53 offen sc1\ns_mov_b64 exec, -1' % (SWS, SWS + 3))
            stH('P flag sent')
        if o['ownp'] and nm == o['ownat']: pfetch(0)
        if nm == o['poll0']: break
    assert xs.index(o['ack']) < k and ALLN.index(xs[k]) >= ALLN.index('w4') and k < len(xs) - 1
    a('s_mov_b32 s54, %d\ns_mov_b32 s52, %d' % (SPIN, len(xs) - 1 - k))
    a('L_pp:\n' + ('s_load_dword s84' if o['atom'] else 's_load_dwordx4 s[84:87]') + ', s[66:67], 0 glc')
    a('s_cmp_eq_u32 s52, 0\ns_cbranch_scc1 L_pp1\ns_barrier\ns_sub_u32 s52, s52, 1\nL_pp1:')
    a('s_sub_u32 s54, s54, 1\ns_cbranch_scc1 L_ppok\ns_waitcnt lgkmcnt(0)')
    a(('' if o['atom'] else 's_add_u32 s84, s84, s85\ns_add_u32 s86, s86, s87\ns_add_u32 s84, s84, s86\n') + 's_cmp_%s_u32 s84, %d\ns_cbranch_scc0 L_pp\nL_ppok:' % ('le' if 'a' in o['hack'] else 'eq', 4 - o['noself']))
    stH('P flags ok')
    for d in range(o['ownp'], 4): pfetch(d)
    a('L_pb:\ns_cmp_eq_u32 s52, 0\ns_cbranch_scc1 L_pbd\ns_barrier\ns_sub_u32 s52, s52, 1\ns_branch L_pb\nL_pbd:')
    a('s_waitcnt vmcnt(0)')
    stH('P landed')
    a('s_barrier\ns_barrier')
    if 'f' in o['hack']: a('s_endpgm')
    a('s_mov_b32 s54, %d' % SPIN)
    a('s_lshl_b32 s3, s18, 10\ns_add_u32 s3, s3, %d\nv_add_u32 v27, s3, v25' % L_F)
    reduce('mp', 8, 4, MOFF, 25, 's59', stH)
    if stamps:
        a('s_waitcnt vmcnt(0)'); stH('end'); stH.flush(7)
    a('L_end:\ns_endpgm\nL_codeend:')
    a(kernel_desc(KN, 256, 256))
    a.lines = hazard.pad(a.lines, False)
    return a.text()
if __name__ == '__main__':
    import json
    name = sys.argv[1] if len(sys.argv) > 1 else 'p8_v8'
    opt = json.loads(sys.argv[2]) if len(sys.argv) > 2 else None
    open(name + '.s', 'w').write(gen(0, opt))
    open(name + '_st.s', 'w').write(gen(1, opt))
    open(name + '_st2.s', 'w').write(gen(2, opt))
    open(name + '_st3.s', 'w').write(gen(3, opt))
    open(name + '_st4.s', 'w').write(gen(4, opt))
```

```python
import sys, math, struct
from asmlib import *
import hazard
from gen_f16 import Cnt, interleave, f2i, v

L_W = 0; L_X0 = 49152; XOFF = [0, 12288, 49152]; L_K = 73728; L_Q = 49152; L_P = 73728; L_F = 110592; L_V = 114688
G_FL = 0x0
G_P = 0x40000
G_PM = 0x400000
G_PO = 0xC00000
SX, SWQ, SK, SV, SWO, SWS, SOUT = 24, 28, 32, 36, 40, 44, 48
SPIN = 1 << 16
MF = 'v_mfma_f32_16x16x32_bf16 %s, %s, %s, %s'

HEADER = """; Kernarg layout (64 bytes, pointers only, base s[0:1]):
;
; Hand-offs: data is stored write-through (sc1); after the stores are acknowledged the producer bumps a counter of the consumer
;   (device-scope atomic); the consumer polls it and then loads with sc1.  Counters are zeroed inside the launch by workgroups 0..31,
;   which report through debug.  The last, small hand-off is signalled before the acknowledgement: its slots are first filled with
;   a NaN marker in this launch, and a consumer that still sees a NaN waits for the acknowledged counter and reads again.
;   Nothing depends on workgroup placement except speed; every poll loop is bounded.
;            | 110592 own partial chunk | 114688 V (4x12K).  Tiles are XOR-swizzled on the global side of the DMA."""

def gen(stamps=0, opt=None):
    o = dict(order='qqqKqqqqqq', win=24, codepf=True, rot='g3', pk=True, lprio=0, afterB8=1, afterBQ=4, ack='w1', poll0='w3', cprio=0, prog=False, x4=True, xo=12, ef=2, xe='H', sent=1, clr='w7', e2=0, nt={}, split=1, uprio=0, early_flag=True, outsc='', first_half=False, hsbar=4, poll='s', psleep=0, tlb=0, remap=0, oddpf=7, rot2=1, lateat=3, own=1, ownx=1, tramp=[16], far=0, alt=0, klate=0, padL=0, padC=0, padH=0, b8a=0, tm=1, q64=2, stlb=0, hack='', atom=1, rep=1, wsw=1, ownp=1, atune=0, oe=0, hsbar_=0, ownat='w3', e0=4, e1='end', m0o=1, rsl=6, qs=5, fine0=1, wqfirst=0, skip=['w0', 'w5'], noself=1)
    if opt: o.update(opt)
    if o['klate']: o['order'] = 'q' * 9; o['q64'] = 3; o.setdefault('pre8', ['k0'])
    a = Asm()
    a(HEADER)
    a('; @launch grid=(256,1,1) block=(512,1,1) lds=163840')
    a(HEAD); a(kernel_begin(KN))
    def run(seq):
        for x in seq:
            if callable(x): x()
            else: a(x)
    class St:
        def __init__(s, base, n, r0): s.base = base; s.n = n; s.k = 0; s.r0 = r0
        def __call__(s, name='x', lvl=1):
            if ((stamps >= lvl and lvl < 2) or stamps == lvl) and (stamps != 5 or name in ('start', 'final end')):
                assert s.k < s.n, name
                a('; stamp %d %s' % (s.base + s.k, name))
                a('s_memrealtime s[%d:%d]' % (s.r0 + 2 * s.k, s.r0 + 1 + 2 * s.k)); s.k += 1
        def flush(s, wave):
            if stamps and s.k:
                l_ = a.label('L_nst')
                a('s_cmp_lg_u32 s20, %d\ns_cbranch_scc1 %s' % (wave, l_))
                a('s_waitcnt lgkmcnt(0)\nv_mov_b32 v31, 0\ns_lshl_b32 s3, s2, 9\ns_add_u32 s3, s3, %d' % (STAMP_OFF + 8 * s.base))
                for i in range(s.k):
                    a('v_mov_b32 v254, s%d\nv_mov_b32 v255, s%d' % (s.r0 + 2 * i, s.r0 + 1 + 2 * i))
                    a('buffer_store_dwordx2 v[254:255], v31, s[%d:%d], s3 offen offset:%d' % (SWS, SWS + 3, 8 * i))
                a(l_ + ':')
    stC = St(0, 21, 60); stL = St(24, 17, 68); stH = St(44, 6, 32)
    W0 = 's_waitcnt lgkmcnt(0)'
    def PC(p): return (p & 4) | ((p & 1) << 1) | ((p >> 1) & 1) if o['alt'] else p
    FOP = 'buffer_atomic_add' if o['atom'] else 'buffer_store_dword'
    MOFF = (4 if o['rep'] > 1 else 64) if o['atom'] else 32
    OOFF = 0
    assert o['rep'] in (1, 2) and (o['atom'] or o['rep'] == 1)
    stC('start')
    a('s_cmp_ge_u32 s2, 256\ns_cbranch_scc1 L_end')
    a('s_load_dwordx2 s[%d:%d], s[0:1], %d' % (SX, SX + 1, SLOT['x']))
    a('s_load_dwordx2 s[%d:%d], s[0:1], %d' % (SWQ, SWQ + 1, SLOT['wq']))
    a('s_load_dwordx4 s[4:7], s[0:1], %d' % SLOT['k'])
    a('s_load_dwordx8 s[8:15], s[0:1], %d' % SLOT['wo'])
    if o['remap'] == 1: a('s_lshr_b32 s3, s2, 2\ns_and_b32 s3, s3, 0x18\ns_xor_b32 s2, s2, s3')
    if o['remap'] == 2: a('s_lshr_b32 s3, s2, 3\ns_and_b32 s3, s3, 0x18\ns_lshl_b32 s21, s2, 2\ns_and_b32 s21, s21, 0xe0\ns_and_b32 s2, s2, 7\ns_or_b32 s2, s2, s3\ns_or_b32 s2, s2, s21')
    if o['remap'] == 3: a('s_xor_b32 s2, s2, 0x18')
    a('v_lshrrev_b32 v1, 6, v0\nv_and_b32 v0, 63, v0\nv_readfirstlane_b32 s20, v1')
    if o['wsw']: a('s_xor_b32 s20, s20, 4')
    a('s_and_b32 s21, s2, 7\ns_bfe_u32 s22, s2, 0x20003\ns_lshr_b32 s23, s2, 5')
    a('v_and_b32 v1, 15, v0\nv_lshrrev_b32 v2, 4, v0')
    def srd(r, src, n):
        if src is not None: a('s_mov_b32 s%d, s%d\ns_mov_b32 s%d, s%d' % (r, src, r + 1, src + 1))
        a('s_mov_b32 s%d, %d\ns_mov_b32 s%d, 0x20000' % (r + 2, SIZES[n], r + 3))
    H0 = 's_and_b32 s16, s22, 2\ns_add_u32 s16, s16, s22\ns_xor_b32 s16, s16, s23'
    if o['rot2'] == 1: H0 = 's_and_b32 s16, s22, 2\ns_xor_b32 s16, s16, s23\ns_and_b32 s16, s16, 3\ns_lshl_b32 s16, s16, 1'
    if o['rot2'] == 2: H0 = 's_and_b32 s16, s22, 2\ns_lshl_b32 s16, s16, 1\ns_xor_b32 s16, s16, s23'
    if o['rot2'] == 3: H0 = 's_and_b32 s16, s23, 3\ns_lshl_b32 s16, s16, 1\ns_and_b32 s3, s22, 2\ns_add_u32 s3, s3, s22\ns_xor_b32 s16, s16, s3'
    if o['rot2'] == 4: H0 = 's_lshr_b32 s16, s22, 1\ns_xor_b32 s16, s16, s23\ns_and_b32 s16, s16, 1\ns_lshl_b32 s16, s16, 2'
    if o['alt'] == 1: H0 = 's_xor_b32 s16, s22, s23\ns_and_b32 s3, s16, 2\ns_and_b32 s16, s16, 3\ns_add_u32 s16, s16, s3'
    if o['alt'] == 2: H0 = 's_and_b32 s16, s22, 2\ns_xor_b32 s16, s16, s23\ns_and_b32 s3, s16, 2\ns_and_b32 s16, s16, 3\ns_add_u32 s16, s16, s3'
    for i_ in range(len(o['tramp'])): a('s_cmp_eq_u32 s20, %d\ns_cbranch_scc1 L_tr%d' % (i_, i_))
    a('s_cmp_lt_u32 s20, 4\ns_cbranch_scc1 L_comp')
    a('s_cmp_gt_u32 s20, 4\ns_cbranch_scc1 L_help')
    def gpoll(name, nw, off):
        sl = ('s_sleep %d\n' % o['psleep']) if o['psleep'] else ''
        if o['rep'] == 2:
            a(W0 + '\ns_mov_b64 s[84:85], 0\ns_load_dword s85, s[66:67], %d glc\ns_sleep %d' % (off + 64, o['rsl']))
            a('L_%s:' % name)
            for r_ in range(2):
                a('s_load_dword s%d, s[66:67], %d glc\ns_waitcnt lgkmcnt(1)\ns_max_u32 s30, s84, s85\ns_cmp_ge_u32 s30, %d\ns_cbranch_scc1 L_%sok' % (84 + r_, off + 64 * r_, nw, name))
            a('s_sub_u32 s54, s54, 1\ns_cbranch_scc0 L_%s\nL_%sok:' % (name, name))
        elif o['atom']:
            a('L_%s:\n%ss_load_dword s84, s[66:67], %d glc\ns_sub_u32 s54, s54, 1\ns_cbranch_scc1 L_%sok\ns_waitcnt lgkmcnt(0)' % (name, sl, off, name))
            a('s_cmp_lt_u32 s84, %d\ns_cbranch_scc1 L_%s\nL_%sok:' % (nw, name, name))
        elif o['poll'] == 'p':
            a(W0)
            for i in range(0, nw, 2): a('s_mov_b64 s[%d:%d], 0' % (84 + i, 85 + i))
            a('L_%s:\ns_load_dwordx%d s[84:%d], s[66:67], %d glc\n%ss_sub_u32 s54, s54, 1\ns_cbranch_scc1 L_%sok' % (name, nw, 83 + nw, off, sl, name))
            a('s_and_b64 s[30:31], s[84:85], s[86:87]')
            for i in range(4, nw, 2): a('s_and_b64 s[30:31], s[30:31], s[%d:%d]' % (84 + i, 85 + i))
            a('s_and_b32 s30, s30, s31\ns_cbranch_scc0 L_%s\nL_%sok:' % (name, name))
        elif o['poll'] == 's':
            a('L_%s:\n%ss_load_dwordx%d s[84:%d], s[66:67], %d glc\ns_sub_u32 s54, s54, 1\ns_cbranch_scc1 L_%sok\ns_waitcnt lgkmcnt(0)' % (name, sl, nw, 83 + nw, off, name))
            k = nw
            while k > 2:
                k //= 2
                for i in range(0, k, 2): a('s_and_b64 s[%d:%d], s[%d:%d], s[%d:%d]' % (84 + i, 85 + i, 84 + i, 85 + i, 84 + k + i, 85 + k + i))
            a('s_and_b32 s84, s84, s85\ns_cbranch_scc0 L_%s\nL_%sok:' % (name, name))
        else:
            a('v_and_b32 v19, %d, v0\nv_lshlrev_b32 v19, 2, v19' % (nw - 1))
            a('L_%s:\n%sbuffer_load_dword v18, v19, s[%d:%d], s62 offen offset:%d sc1\ns_sub_u32 s54, s54, 1\ns_cbranch_scc1 L_%sok\ns_waitcnt vmcnt(0)' % (name, sl, SWS, SWS + 3, off, name))
            a('v_cmp_ne_u32 vcc, 1, v18\ns_cbranch_vccnz L_%s\nL_%sok:' % (name, name))
    def clears(all12=False, va=4, vd=12):
        a('s_lshl_b32 s3, s23, 1\ns_and_b32 s58, s22, 1\ns_add_u32 s3, s3, s58\ns_mul_i32 s3, s3, 3\n' + ('' if all12 else 's_add_u32 s3, s3, s18\n') + 's_lshl_b32 s58, s3, 15')
        a('s_lshl_b32 s3, s21, 1\ns_lshr_b32 s59, s22, 1\ns_add_u32 s3, s3, s59\ns_lshl_b32 s3, s3, 9\ns_add_u32 s58, s58, s3\ns_add_u32 s58, s58, %d' % G_PO) if all12 else \
        a('s_lshl_b32 s3, s21, 1\ns_lshr_b32 s57, s22, 1\ns_add_u32 s3, s3, s57\ns_lshl_b32 s3, s3, 9\ns_add_u32 s58, s58, s3\ns_add_u32 s58, s58, %d' % G_PO)
        a('v_and_b32 v%d, 31, v0\nv_lshrrev_b32 v%d, 5, v0\nv_lshlrev_b32 v%d, 4, v%d\nv_lshl_add_u32 v%d, v%d, 13, v%d' % (va, va + 1, va, va, va, va + 1, va))
        for i in range(4): a('v_mov_b32 v%d, -1' % (vd + i))
        for i in range(6 if all12 else 2):
            if i: a('s_add_u32 s58, s58, 16384')
            a('buffer_store_dwordx4 v[%d:%d], v%d, s[%d:%d], s58 offen sc1' % (vd, vd + 3, va, SWS, SWS + 3))
            if all12: vm.issue('clr')
    a('; ==== loader: 9 chunks of x | wq (K rotated start), K, then V and wo pieces; one barrier per consumed stage')
    vm = Cnt(a, 'vmcnt', 63)
    XV, WV, OV, KV, DV, VV = 8, 12, 16, 20, 24, 28
    if o['lprio']: a('s_setprio %d' % o['lprio'])
    srd(SX, None, 'x'); srd(SWQ, None, 'wq')
    a('v_lshrrev_b32 v3, 3, v0\nv_and_b32 v4, 7, v0')
    def quad(base, step):
        a('v_xor_b32 v7, 64, v%d\nv_add_u32 v%d, %d, v7' % (base, base + 1, step))
        a('v_add_u32 v%d, %d, v%d\nv_add_u32 v%d, %d, v%d' % (base + 2, 2 * step, base, base + 3, 2 * step, base + 1))
    a('v_mul_u32_u24 v5, 1152, v3\nv_xor_b32 v32, v4, v2\nv_lshl_add_u32 v%d, v32, 4, v5' % XV)
    quad(XV, 8 * 1152 - 1024)
    a('v_lshlrev_b32 v6, 1, v2\nv_xor_b32 v6, v6, v1\nv_lshlrev_b32 v6, 4, v6')
    a('v_lshl_add_u32 v%d, v2, 13, v6' % WV)
    a('v_add_u32 v%d, %d, v%d' % (WV + 1, 4 * 8192 - 1024, WV))
    a('v_xor_b32 v7, 128, v%d\nv_add_u32 v%d, %d, v7\nv_add_u32 v%d, %d, v7' % (WV, WV + 2, 2 * (4 * 8192 - 1024), WV + 3, 3 * (4 * 8192 - 1024)))
    if o['rot'] == 'g3':
        a('s_add_u32 s17, s22, s23\ns_mul_i32 s3, s17, 43\ns_lshr_b32 s3, s3, 7\ns_mul_i32 s3, s3, 3\ns_sub_u32 s17, s17, s3\ns_mul_i32 s17, s17, 3')
    elif o['rot'] == 'g4':
        a('s_add_u32 s17, s22, s23\ns_and_b32 s17, s17, 3\ns_mul_i32 s17, s17, 9\ns_lshr_b32 s17, s17, 2')
    elif o['rot'] == 'g2':
        a('s_add_u32 s17, s22, s23\ns_and_b32 s17, s17, 1\ns_mul_i32 s17, s17, 5')
    elif o['rot'] == 'g9':
        a('s_lshl_b32 s17, s22, 1\ns_add_u32 s17, s17, s23\ns_cmp_ge_u32 s17, 9\ns_cselect_b32 s3, 9, 0\ns_sub_u32 s17, s17, s3')
    else: a('s_mov_b32 s17, 0')
    a('s_mul_i32 s52, s23, 110592')
    a('s_lshl_b32 s53, s21, 10\ns_lshl_b32 s3, s22, 8\ns_add_u32 s53, s53, s3')
    a('s_waitcnt lgkmcnt(0)')
    stL('L kernarg')
    if o['stlb'] >= 1:
        a('s_lshl_b32 s57, s17, 19\ns_add_u32 s57, s57, s53\ns_load_dword s58, s[%d:%d], s57' % (SWQ, SWQ + 1))
    if o['stlb'] >= 2:
        a('s_mov_b32 s57, 0x200000\ns_mov_b32 s59, 0x400000')
        for base in (SWQ, 8, 4, 6): a('s_load_dword s58, s[%d:%d], 0\ns_load_dword s58, s[%d:%d], s57' % (base, base + 1, base, base + 1))
        for base in (SWQ, 8): a('s_load_dword s58, s[%d:%d], s59' % (base, base + 1))
    ndma = [0]
    def group(vreg, n, srd_, lds, tag, adv=None, dyn=None):
        seq = [('s_add_u32 m0, %s, %d' % (dyn, lds) if dyn else 's_mov_b32 m0, %d' % lds) + ('\ns_add_u32 s57, s57, %s' % adv if adv else '')]
        for j in range(n):
            def f(j=j):
                ndma[0] += 1
                if ndma[0] - 1 in o['tramp']:
                    i_ = o['tramp'].index(ndma[0] - 1)
                    a('s_branch L_ov%d\nL_tr%d:\ns_branch L_comp\nL_ov%d:' % (i_, i_, i_))
                if len(vm.seq) >= 60:
                    a('s_waitcnt vmcnt(44)'); vm.seq = vm.seq[-44:]
                a('buffer_load_dwordx4 v%d, s[%d:%d], s57 offen offset:%d %s lds' % (vreg + j, srd_, srd_ + 3, 1024 * j, o['nt'].get({SX: 'x', SWQ: 'q', SK: 'k', SV: 'v', SWO: 'o'}[srd_] + tag[-1], o['nt'].get({SX: 'x', SWQ: 'q', SK: 'k', SV: 'v', SWO: 'o'}[srd_], '')))); vm.issue(tag)
            seq.append(f)
        return seq
    def item_q(c):
        st = c % 3; tag = 'n%d' % c
        m0o = o['m0o'] and c >= o['lateat']
        sx = ['s_lshl_b32 s57, s17, 7\ns_add_u32 s57, s57, s52']
        for t in range(3): sx += group(40 + 4 * t if m0o and t else XV, 4, SX, L_X0 + XOFF[st] + 4096 * t, tag, 32 * 1152 if t and not m0o else None)
        sw = ['s_lshl_b32 s57, s17, 19\ns_add_u32 s57, s57, s53']
        for t in range(4): sw += group(52 + 4 * t if m0o and t else WV, 4, SWQ, L_W + 16384 * st + 4096 * t, tag + ('b' if c == 8 and t >= 2 and o['b8a'] else ''), 16 * 8192 if t and not m0o else None)
        seq = sw + sx if o['wqfirst'] else sx + sw
        seq += ['s_add_u32 s17, s17, 1\ns_cmp_eq_u32 s17, 9\ns_cselect_b32 s17, 0, s17']
        return seq
    def item_k():
        seq = ['s_lshr_b32 s3, s22, 1\ns_add_u32 s57, s54, s3\ns_mul_i32 s57, s57, 12288']
        for t in range(6): seq += group(KV, 4, SK, L_K + 4096 * t, 'k0', None if t == 0 else (4096 if t != 3 else 16 * 12288 - 8192))
        return seq
    WSLOT = {'w0': 0, 'w1': 1, 'w2': 2, 'w3': 4.5, 'w4': 3, 'w5': 0, 'w6': 1, 'w7': 2, 'o0': 3, 'o1': 0}
    assert L_P == 4.5 * 16384
    NEED = {'w3': 1, 'w4': 2, 'w5': 3, 'w6': 5, 'w7': 6}
    L_O1 = L_P
    STAGES = ['w0', 'w1', 'o0', 'o1', 'w2', 'w3', 'w4', 'w5', 'w6', 'w7']
    def item_v(vp):
        seq = ['s_lshr_b32 s3, s16, 2\ns_xor_b32 s3, s3, %d\ns_add_u32 s57, ' % (vp >> 1) + ('s63' if 'd' in o['hack'] else 's54') + ', s3\ns_mul_i32 s57, s57, 12288\ns_xor_b32 s3, s16, %d\ns_and_b32 s3, s3, 1\ns_lshl_b32 s3, s3, 7\ns_add_u32 s57, s57, s3' % (vp & 1)]
        for b in range(2):
            seq += group(VV, 4, SV, L_V + 12288 * vp + 6144 * b, 'v%d' % vp, 16 * 12288 - 8192 if b else None)
            seq += group(VV, 2, SV, L_V + 12288 * vp + 6144 * b + 4096, 'v%d' % vp, 8192)
        return seq
    def item_w(p):
        lds = int(L_W + 16384 * WSLOT['w%d' % p])
        seq = ['s_xor_b32 s3, s16, %d\ns_mul_i32 s57, s3, %d\ns_add_u32 s57, s57, s60' % (PC(p), 64 * 1152)]
        for t in range(4): seq += group(68 + 4 * t if o['m0o'] and t else OV, 4, SWO, lds + 4096 * t, 'w%d' % p, 16 * 1152 if t and not o['m0o'] else None)
        return seq
    def item_o(e):
        lds = L_W + 16384 * WSLOT['o%d' % e]; seq = []
        for hf in range(2):
            seq += ['s_xor_b32 s3, s16, %d\ns_mul_i32 s57, s3, %d\ns_add_u32 s57, s57, s62' % (2 * e + hf, 64 * 1152)]
            for t in range(2): seq += group(DV, 4, SWO, lds + 8192 * hf + 4096 * t, 'o%d' % e, 32 * 1152 if t else None)
        return seq
    def item(nm):
        seq = {'v': item_v, 'w': item_w, 'o': item_o, 'k': lambda _: item_k()}[nm[0]](int(nm[1]))
        cut = 9 if nm[0] == 'v' else 11
        if nm[2:] == 'a': return seq[:cut] + ['s_mov_b32 s61, s57']
        if nm[2:] == 'b': return ['s_mov_b32 s57, s61'] + seq[cut:]
        return seq
    def late_setup():
        srd(SK, 4, 'k'); srd(SV, 6, 'v'); srd(SWO, 8, 'wo'); srd(SWS, 14, 'ws')
        if 'd' in o['hack']: srd(SV, SX, 'x'); srd(SWO, SX, 'x')
        if 'k' in o['hack']: srd(SK, SX, 'x')
        a('v_mul_u32_u24 v7, 1152, v2\nv_add_u32 v%d, v7, v6\nv_add_u32 v%d, %d, v%d' % (OV, OV + 1, 4 * 1152 - 1024, OV))
        a('v_xor_b32 v6, 128, v6\nv_add_u32 v7, v7, v6\nv_add_u32 v%d, %d, v7\nv_add_u32 v%d, %d, v7' % (OV + 2, 2 * (4 * 1152 - 1024), OV + 3, 3 * (4 * 1152 - 1024)))
        a('v_xor_b32 v6, v1, v2\nv_lshlrev_b32 v6, 4, v6\nv_lshl_add_u32 v%d, v2, 8, v6' % KV)
        for j in range(1, 4): a('v_xor_b32 v%d, %d, v%d' % (KV + j, 64 * j, KV))
        a('v_and_b32 v6, 1, v2\nv_lshlrev_b32 v6, 1, v6\nv_xor_b32 v6, v6, v4\nv_lshl_add_u32 v%d, v6, 4, v5' % DV)
        quad(DV, 8 * 1152 - 1024)
        a('v_lshlrev_b32 v6, 8, v3\nv_lshl_add_u32 v%d, v32, 4, v6' % VV)
        quad(VV, 8 * 256 - 1024)
        if o['m0o']:
            for base, src, n, st_ in ((40, XV, 3, 32 * 1152), (52, WV, 4, 16 * 8192), (68, OV, 4, 16 * 1152)):
                for t in range(1, n):
                    a('s_mov_b32 s3, %d' % (t * st_))
                    for j in range(4): a('v_add_u32 v%d, s3, v%d' % (base + 4 * t + j, src + j))
        a(H0)
        a('s_lshl_b32 s54, s23, 5\ns_lshl_b32 s3, s21, 1\ns_add_u32 s54, s54, s3')
        if 'd' in o['hack']: a('s_and_b32 s63, s23, 1\ns_lshl_b32 s63, s63, 5')
        a(('s_mov_b32 s60, 0 ; %d' if 'd' in o['hack'] else 's_mul_i32 s60, s21, %d') % (512 * 1152))
        a('s_add_u32 s62, s60, 1024\ns_lshl_b32 s3, s22, 8\ns_add_u32 s60, s60, s3')
    nq = 0; nbar = 0; since = {}
    def bar():
        nonlocal nbar
        vm.wait('n%d' % nbar)
        if nbar in (1, 2, 3, 8): stL('L at B%d' % nbar, 2)
        if nbar < 4: stL('L at B%d' % nbar, 3)
        a('s_barrier'); nbar += 1
    for t in o['order']:
        if t == 'q':
            while nbar < nq - 1 and nq >= 3: bar()
            seq = item_q(nq)
            if o['first_half'] and nq in (1, 2) and nbar == nq - 1:
                run(seq[:16]); bar(); run(seq[16:])
            else: run(seq)
            sz = 28; nq += 1
            if nq <= 2: stL('L issued q%d' % (nq - 1), 3)
            if o['sent'] and o['clr'] == 'L%d' % nq: srd(SWS, 14, 'ws'); clears(True, 90, 92)
            if nq == o['lateat']: late_setup()
        elif t == 'K': run(item_k()); sz = 24
        elif t == 'V': run(item_v(0)); sz = 12
        elif t == 'W': run(item_v(1)); sz = 12
        for c in list(since): since[c] += sz
        if t == 'q': since[nq - 1] = 0
        while nbar < nq and since[nbar] >= o['win']: bar()
    while nbar < 8: bar()
    pre8 = o.get('pre8') or (['w0'] if 'V' in o['order'] else ['v0', 'w0'])
    seq = [x_ for it in pre8 for x_ in item(it)]
    if o['b8a']:
        run(seq[:-10]); bar(); run(seq[-10:]); vm.wait('n8b'); a('s_barrier')
    else:
        run(seq); bar()
    XB = [('BQ', []), ('BP', ['v0', 'w0']), ('w0', ['v1', 'w1']), ('w1', ['w2']), ('w2', ['w3']), ('w3', ['v2', 'w4']),
          ('w4', ['v3', 'w5']), ('w5', ['w6']), ('w6', ['w7']), ('w7', []), ('O', ['o0', 'o1'])]
    if o['alt']:
        XB = [('BQ', []), ('BP', ['v0', 'w0']), ('w0', ['w1']), ('w1', ['v1', 'w2']), ('w2', ['w3']), ('w3', ['v2', 'w4']),
              ('w4', ['w5']), ('w5', ['v3', 'w6']), ('w6', ['w7']), ('w7', []), ('O', ['o0', 'o1'])]
    if o['klate']: XB[0] = ('BQ', ['k0'])
    for sk in o['skip']:
        i_ = [x_[0] for x_ in XB].index(sk)
        XB[i_ - 1] = (XB[i_ - 1][0], XB[i_ - 1][1] + XB[i_][1]); del XB[i_]
    XN = [x_[0] for x_ in XB]
    plan = o.get('plan') or {'B8': ['v1', 'w1'], 'BQ': ['w2', 'w3', 'v2'], 'BP': ['w4', 'v3'], 'w1': ['w5'], 'w2': ['w6'], 'w3': ['w7'], 'w6': ['o0'], 'w7': ['o1']}
    FREEAT = {'w0': 'B8', 'w1': 'B8', 'w2': 'BQ', 'w3': 'BP' if o['klate'] else 'BQ', 'w4': 'BP', 'w5': 'w1', 'w6': 'w2', 'w7': 'w3', 'o0': 'w5', 'o1': 'w6'}
    ALLN = ['B8', 'BQ', 'BP'] + ['w%d' % i_ for i_ in range(8)] + ['O']
    names = ['B8'] + [x_[0] for x_ in XB]
    issued = set(pre8) | ({'v0'} if 'V' in o['order'] else set()) | ({'v1'} if 'W' in o['order'] else set())
    last = 'B8'
    for nm, need in XB:
        for it in plan.get(last, []):
            assert it[0] == 'v' or ALLN.index(FREEAT[it[:2]]) <= ALLN.index(last), (it, last)
            run(item(it))
            if it[2:] != 'a': issued.add(it[:2])
        assert all(x_ in issued for x_ in need), (nm, need)
        vm.wait(need)
        stL('L at ' + nm, 2)
        a('s_barrier'); last = nm
    assert len(issued) == 14 + o['klate']
    stL('L done')
    stL.flush(4)
    if o['padL']: a('s_branch L_padl\n.fill %d, 4, 0xbf800000\nL_padl:' % o['padL'])
    if 'f' in o['hack']: a('s_endpgm')
    if o['stlb']: a(W0)
    srd(SOUT, 10, 'out')
    a('s_lshl_b32 s52, s21, 1\ns_lshr_b32 s3, s22, 1\ns_add_u32 s52, s52, s3')
    if stamps == 4: a('s_min_u32 s52, s52, 11\ns_lshr_b32 s3, s52, 1\ns_and_b32 s75, s52, 1\ns_lshl_b32 s75, s75, 4\ns_or_b32 s75, s75, s3\ns_and_b32 s3, s2, 0xe8\ns_or_b32 s75, s75, s3')
    a('s_cmp_ge_u32 s52, 12\ns_cbranch_scc1 L_end')
    a('s_lshl_b32 s3, %s, 9\ns_add_u32 s62, s3, %d\ns_add_u32 s66, s14, s62\ns_addc_u32 s67, s15, 0' % ('s75' if stamps == 4 else 's2', G_FL + 384))
    a('s_mov_b32 s54, %d' % SPIN)
    a('s_lshl_b32 s3, s23, 1\ns_and_b32 s53, s22, 1\ns_add_u32 s53, s53, s3')
    a('s_mul_i32 s55, s53, 12\ns_add_u32 s55, s55, s52\ns_lshl_b32 s55, s55, 13\ns_add_u32 s55, s55, %d\ns_add_u32 s56, s55, 4096' % G_PO)
    a('s_mul_i32 s58, s52, 43\ns_lshr_b32 s58, s58, 7\ns_mul_i32 s3, s58, 3\ns_sub_u32 s3, s52, s3')
    a('s_mul_i32 s57, s53, 3\ns_add_u32 s57, s57, s3\ns_mul_i32 s57, s57, %d\ns_lshl_b32 s58, s58, 5\ns_add_u32 s57, s57, s58\ns_add_u32 s57, s57, 1024' % (16 * 1152))
    a('v_lshlrev_b32 v6, 3, v0')
    def and16(b):
        for i in range(0, 16, 4): a('s_and_b64 s[%d:%d], s[%d:%d], s[%d:%d]' % (b + i, b + 1 + i, b + i, b + 1 + i, b + 2 + i, b + 3 + i))
        a('s_and_b64 s[%d:%d], s[%d:%d], s[%d:%d]\ns_and_b64 s[%d:%d], s[%d:%d], s[%d:%d]\ns_and_b64 s[%d:%d], s[%d:%d], s[%d:%d]\ns_and_b32 s%d, s%d, s%d' % (
            b, b + 1, b, b + 1, b + 4, b + 5, b + 8, b + 9, b + 8, b + 9, b + 12, b + 13, b, b + 1, b, b + 1, b + 8, b + 9, b, b, b + 1))
    def reduce(name, nsrc, w, off, vaddr, outs, st=None):
        per = nsrc // 2; sz = 256 * w
        def ld(j): return 'buffer_load_dwordx%d %s, v%d, s[%d:%d], s%d offen offset:%d sc1' % (w, v(32 + w * j, w), vaddr, SWS, SWS + 3, 55 + j // per, sz * (j % per))
        if o['x4'] and w == 4: a('v_mul_u32_u24 v3, 1152, v1\nv_lshl_add_u32 v3, v2, 4, v3')
        else: a('v_mul_u32_u24 v3, 1152, v1\nv_lshl_add_u32 v3, v2, 3, v3')
        if o.get('dot'): a('s_mov_b32 s28, 0x00003f80\ns_mov_b32 s29, 0x3f800000')
        a('s_mov_b32 s29, 0xffff0000')
        if o['prog']:
            a('s_mov_b32 s63, 0')
            a('L_%s:\ns_load_dwordx%d s[84:%d], s[66:67], %d glc\ns_sub_u32 s54, s54, 1\ns_cselect_b32 s30, -1, 0\ns_waitcnt lgkmcnt(0)' % (name, nsrc, 83 + nsrc, off))
            k = nsrc; sh = 1
            while k > 1:
                for i in range(0, nsrc, 2 * sh):
                    if sh <= 4: a('s_lshl%d_add_u32 s%d, s%d, s%d' % (sh, 84 + i, 84 + i + sh, 84 + i))
                    else: a('s_lshl_b32 s%d, s%d, %d\ns_or_b32 s%d, s%d, s%d' % (84 + i + sh, 84 + i + sh, sh, 84 + i, 84 + i, 84 + i + sh))
                k //= 2; sh *= 2
            a('s_or_b32 s84, s84, s30\ns_and_b32 s84, s84, %d\ns_andn2_b32 s85, s84, s63\ns_cbranch_scc0 L_%s\ns_or_b32 s63, s63, s84' % ((1 << nsrc) - 1, name))
            for j in range(nsrc):
                a('s_bitcmp1_b32 s85, %d\ns_cbranch_scc0 L_%s_%d\n%s\nL_%s_%d:' % (j, name, j, ld(j), name, j))
            a('s_cmp_lg_u32 s63, %d\ns_cbranch_scc1 L_%s' % ((1 << nsrc) - 1, name))
            if st: st('flags ok')
            a('s_waitcnt vmcnt(0)')
        else:
            own = o['own'] and w == 4
            oe = own and o['oe'] and o['xe'] in ('E', 'G', 'H') and o['atom']
            if o['far']: a('s_branch L_far_%s\n.fill 300, 4, 0xbf800000\n.p2align 6\nL_far_%s:' % (name, name))
            if o['xe']: a('s_barrier')
            if oe: a('ds_read_b128 v[32:35], v27')
            gpoll(name, nsrc - (1 if oe else 0), off)
            if stamps == 4: a('s_memrealtime s[68:69]')
            if st: st('flags ok')
            if o['sent'] and w == 2: a('s_mov_b32 s63, 0\nL_again:')
            for j in range(nsrc):
                if j or not own: a(ld(j))
            if own and not oe: a('ds_read_b128 v[32:35], v27')
        for j in range(nsrc):
            if not o['prog'] and not (oe and j == 0): a(W0 if own and j == 0 else 's_waitcnt vmcnt(%d)' % (nsrc - 1 - j))
            for t in range(w):
                src = 32 + w * j + t
                if j == 0: a('v_lshlrev_b32 v%d, 16, v%d\nv_and_b32 v%d, s29, v%d' % (8 + 2 * t, src, 9 + 2 * t, src))
                elif o.get('dot'): a('v_dot2_f32_bf16 v%d, v%d, s28, v%d\nv_dot2_f32_bf16 v%d, v%d, s29, v%d' % (8 + 2 * t, src, 8 + 2 * t, 9 + 2 * t, src, 9 + 2 * t))
                else: a('v_lshlrev_b32 v16, 16, v%d\nv_and_b32 v17, s29, v%d\nv_pk_add_f32 v[%d:%d], v[%d:%d], v[16:17]' % (src, src, 8 + 2 * t, 9 + 2 * t, 8 + 2 * t, 9 + 2 * t))
        if o['sent'] and w == 2: a('v_cmp_u_f32 vcc, v8, v10\ns_cbranch_vccnz L_retry\nL_accept:')
        if stamps == 4: a('s_memrealtime s[70:71]')
        for t in range(w): a('v_cvt_pk_bf16_f32 v%d, v%d, v%d' % (8 + t, 8 + 2 * t, 9 + 2 * t))
        if w == 4 and o['x4']:
            a('v_permlane32_swap_b32 v8, v10\nv_permlane32_swap_b32 v9, v11\nv_permlane16_swap_b32 v8, v10\nv_permlane16_swap_b32 v9, v11')
            a('buffer_store_dwordx4 v[8:11], v3, s[%d:%d], %s offen %s' % (SOUT, SOUT + 3, outs, o['outsc']))
        else:
            for t in range(w // 2): a('buffer_store_dwordx2 v[%d:%d], v3, s[%d:%d], %s offen offset:%d %s' % (8 + 2 * t, 9 + 2 * t, SOUT, SOUT + 3, outs, 32 * t, o['outsc']))
        if stamps >= 4:
            a('s_waitcnt vmcnt(0)\ns_memrealtime s[72:73]\ns_waitcnt lgkmcnt(0)\nv_mov_b32 v31, 0\ns_lshl_b32 s3, s2, 9\ns_mul_i32 s74, s20, 24\ns_add_u32 s3, s3, s74\ns_add_u32 s3, s3, %d' % (STAMP_OFF + 8 * 50 - 96))
            for i in range(3) if stamps == 4 else [2]:
                a('v_mov_b32 v254, s%d\nv_mov_b32 v255, s%d' % (68 + 2 * i, 69 + 2 * i))
                a('buffer_store_dwordx2 v[254:255], v31, s[%d:%d], s3 offen offset:%d' % (SWS, SWS + 3, 8 * i))
    if stamps == 4:
        for w_, nm in enumerate(['odd', 'r0', 'r1', 'r2']):
            for i, x_ in enumerate(['flags', 'summed', 'end']): a('; stamp %d %s %s' % (50 + 3 * w_ + i, nm, x_))
    reduce('op', 16, 2, 0, 6, 's57')
    a('s_endpgm')
    if o['sent']:
        a('L_retry:\ns_cmp_lg_u32 s63, 0\ns_cbranch_scc1 L_accept\ns_mov_b32 s63, 1\ns_mov_b32 s54, %d' % SPIN)
        if stamps == 5: a('v_mov_b32 v20, 160\nv_mov_b32 v21, 1\ns_mov_b64 exec, 1\nglobal_atomic_add v20, v21, s[12:13] sc1\ns_mov_b64 exec, -1')
        gpoll('oq', 16, 64)
        a('s_branch L_again')
    if o['padC']: a('.fill %d, 4, 0xbf800000' % o['padC'])
    a('L_comp:')
    lg = Cnt(a, 'lgkmcnt', 15)
    stC('C entry', 3)
    XA, WA, VA, OVA, OA, QA, FRA, FUA, FV, FC, PFA = 10, 12, 16, 18, 20, 21, 22, 23, 24, 27, 31
    A = 32; F = [80, 108]; B = 136; C = 184; VWO = 232; SP = 244
    KF = B; QF = 80; S = 96; P = SP; KA = 184; UA = 254; QT = 192
    a('v_bfe_u32 v3, v0, 2, 2\nv_and_b32 v4, 3, v0')
    a('s_lshr_b32 s18, s20, 1\ns_and_b32 s17, s20, 1')
    a(H0)
    a('v_lshrrev_b32 v7, 1, v1\nv_xor_b32 v7, v7, v2\nv_lshlrev_b32 v7, 4, v7\nv_lshl_add_u32 v5, v1, 7, v7\nv_xor_b32 v6, 64, v5')
    a('s_mul_i32 s3, s18, 6144\ns_add_u32 s3, s3, %d' % L_X0)
    a('v_add_u32 v%d, s3, v5\nv_add_u32 v%d, s3, v6' % (XA, XA + 1))
    a('s_add_u32 s3, s3, %d\nv_add_u32 v%d, s3, v5\nv_add_u32 v%d, s3, v6' % (L_V - L_X0, VA, VA + 1))
    a('s_and_b32 s3, s22, 1\ns_mul_i32 s3, s3, 6144\ns_add_u32 s3, s3, %d' % L_V)
    a('v_add_u32 v%d, s3, v5\nv_add_u32 v%d, s3, v6' % (OVA, OVA + 1))
    a('v_and_b32 v7, 1, v2\nv_lshl_add_u32 v7, v7, 2, v3\ns_lshl_b32 s3, s17, 2\nv_xor_b32 v7, s3, v7')
    a('v_lshl_add_u32 v5, v2, 3, v3\nv_lshlrev_b32 v8, 8, v5\nv_lshl_add_u32 v8, v4, 3, v8')
    assert L_W == 0
    for t in range(4): a('v_xor_b32 v9, %d, v7\nv_lshl_add_u32 v%d, v9, 5, v8' % (t, WA + t))
    a('v_and_b32 v7, 1, v2\nv_lshrrev_b32 v8, 1, v3\nv_lshl_add_u32 v7, v7, 1, v8\nv_xor_b32 v7, s20, v7')
    a('v_lshlrev_b32 v8, 7, v5\nv_lshl_add_u32 v8, v4, 3, v8\nv_lshl_add_u32 v%d, v7, 5, v8' % OA)
    a('s_mul_i32 s3, s18, 12288\ns_lshl_b32 s19, s17, 11\ns_add_u32 s3, s3, s19\ns_add_u32 s3, s3, %d' % L_Q)
    a('v_lshlrev_b32 v25, 4, v0\nv_lshlrev_b32 v26, 3, v0\nv_add_u32 v%d, s3, v%d' % (QA, 26 if o['q64'] else 25))
    if o['q64'] == 3: a('v_lshrrev_b32 v7, 1, v2\nv_lshl_add_u32 v7, v7, 4, v1\nv_lshlrev_b32 v7, 4, v7\nv_and_b32 v8, 1, v2\nv_lshl_add_u32 v7, v8, 3, v7\nv_add_u32 v%d, s3, v7' % QA)
    a('s_and_b32 s59, s2, 0xf8\ns_lshl_b32 s48, s20, 1\ns_add_u32 s59, s59, s48\ns_mul_i32 s56, s59, 24576\ns_add_u32 s56, s56, %d\ns_add_u32 s57, s56, 24576' % G_PM)
    a('s_xor_b32 s48, s48, s21\ns_lshl_b32 s3, s48, 10\ns_add_u32 s56, s56, s3\ns_xor_b32 s3, s3, 1024\ns_add_u32 s57, s57, s3')
    if o['own']:
        a('s_cmp_eq_u32 s48, 0\ns_cselect_b32 s56, 0x7ff00000, s56\ns_cselect_b64 s[30:31], -1, 0\ns_cmp_eq_u32 s48, 1\ns_cselect_b32 s57, 0x7ff00000, s57\ns_cselect_b64 s[32:33], -1, 0\nv_add_u32 v27, %d, v25' % L_F)
    a('s_lshl_b32 s3, s23, 1\ns_and_b32 s54, s22, 1\ns_add_u32 s3, s3, s54\ns_mul_i32 s3, s3, 12\ns_mul_i32 s54, s20, 3\ns_add_u32 s3, s3, s54\ns_lshl_b32 s58, s3, 13')
    a('s_lshl_b32 s3, s21, 1\ns_lshr_b32 s55, s22, 1\ns_add_u32 s55, s55, s3\ns_lshl_b32 s3, s55, 9\ns_add_u32 s58, s58, s3\ns_add_u32 s58, s58, %d' % G_PO)
    a('v_and_b32 v5, 7, v0\nv_lshrrev_b32 v6, 3, v0')
    a('v_add_u32 v7, s59, v5\nv_lshlrev_b32 v7, 9, v7\n' + ('s_mov_b32 s3, %d' % (G_FL + MOFF) if o['atom'] else 's_lshl_b32 s3, s21, 2\ns_add_u32 s3, s3, %d' % (G_FL + MOFF)) + '\nv_add_u32 v7, s3, v7')
    a('s_sub_u32 s54, s54, 2\nv_add_u32 v8, s54, v5\nv_lshrrev_b32 v9, 1, v8\nv_and_b32 v8, 1, v8\nv_lshl_add_u32 v8, v8, 4, v9\ns_and_b32 s3, s2, 0xe8\nv_add_u32 v8, s3, v8\nv_lshlrev_b32 v8, 9, v8')
    a(('s_mov_b32 s3, %d' if o['atom'] else 's_lshl_b32 s3, s55, 2\ns_add_u32 s3, s3, %d') % (G_FL + 128 + OOFF) + '\nv_add_u32 v8, s3, v8\nv_mov_b32 v9, 0x7ff00000')
    a('v_lshl_add_u32 v7, v6, 6, v7\nv_lshl_add_u32 v8, v6, 6, v8\nv_cmp_gt_u32 vcc, %d, v6\nv_cndmask_b32 v5, 7, v5, vcc' % o['rep'])
    if o['own'] and o['oe'] and o['xe'] in ('E', 'G', 'H') and o['atom']: a('v_cmp_ne_u32 vcc, s48, v5\nv_cndmask_b32 v7, v9, v7, vcc')
    a('v_cmp_gt_u32 vcc, 5, v5\nv_cndmask_b32 v8, v9, v8, vcc\nv_cmp_gt_u32 vcc, 2, v5\nv_cndmask_b32 v30, v8, v7, vcc\nv_cndmask_b32 v28, v9, v7, vcc\nv_mov_b32 v29, 1')
    if 'g' in o['hack']: a('s_mov_b32 s56, 0x7ff00000\ns_mov_b32 s57, s56\ns_mov_b32 s58, s56')
    a('s_mov_b32 s52, s20')
    def unit_setup():
        a('s_cmp_ge_u32 s52, 3\ns_cselect_b32 s3, 12288, 0\ns_add_u32 s3, s3, %d' % L_K)
        if o['q64'] == 3:
            a('v_xor_b32 v7, v1, v2\nv_lshlrev_b32 v7, 4, v7\nv_lshl_add_u32 v7, v1, 8, v7')
            for kk in range(4): a('v_xor_b32 v8, %d, v7\nv_add_u32 v%d, s3, v8' % (64 * kk, KA + kk))
        else:
            a('v_lshrrev_b32 v7, 1, v2\nv_xor_b32 v7, v1, v7\nv_lshlrev_b32 v7, 4, v7\nv_lshl_add_u32 v7, v1, 8, v7\nv_and_b32 v8, 1, v2\nv_lshl_add_u32 v7, v8, 3, v7')
            for j in range(8): a('v_xor_b32 v8, %d, v7\nv_add_u32 v%d, s3, v8' % (32 * j, KA + j))
        a('s_lshl_b32 s3, s52, 12\ns_add_u32 s3, s3, %d\nv_add_u32 v%d, s3, v%d' % (L_Q, UA, 26 if o['q64'] in (1, 2) else 25))
        a('s_mov_b32 s50, 0x%x\ns_mov_b32 s51, s50' % f2i(128 ** -0.5 * math.log2(math.e)))
        a('s_mul_i32 s3, s52, 1536\ns_mul_i32 s49, s2, 9216\ns_add_u32 s49, s49, s3\ns_add_u32 s49, s49, %d' % G_P)
    def k_reads(late=False):
        if o['klate'] and not late: return []
        if o['q64'] == 3: return ['ds_read_b128 %s, v%d offset:%d' % (v(KF + 16 * kt + 4 * kk, 4), KA + kk, 4096 * kt) for kk in range(4) for kt in range(3)]
        return ['ds_read_b64 %s, v%d offset:%d' % (v(KF + 16 * kt + 2 * j, 2), KA + j, 4096 * kt) for j in range(8) for kt in range(3)]
    unit_setup()
    a(W0)
    srd(SWS, 14, 'ws')
    def wreads(st, off, wa=WA): return ['ds_read_b64_tr_b16 %s, v%d offset:%d' % (v(st + 4 * t + 2 * hh, 2), wa + t, off + 1024 * hh) for t in range(4) for hh in range(2)]
    def reads_A(n, ks, st=None):
        st = st or F[ks]
        return ['ds_read_b128 %s, v%d offset:%d' % (v(st + 16 + 4 * q, 4), XA + ks, XOFF[n % 3] + 2048 * q) for q in range(3)] + wreads(st, 16384 * (n % 3) + 8192 * ks)
    ORD = [(t, q if t % 2 == 0 else 2 - q) for t in range(4) for q in range(3)]
    def mfma(acc, ks, first, swap, od=None):
        out = []
        for t, q in od or ORD:
            d = v(acc + 4 * (3 * t + q), 4); x = v(F[ks] + 4 * t, 4); y = v(F[ks] + 16 + 4 * q, 4)
            if swap: x, y = y, x
            out.append(MF % (d, x, y, '0' if first else d))
        return out
    def cvt(d, s_): return ['v_cvt_pk_bf16_f32 v%d, v%d, v%d' % (d, s_, s_ + 1), 'v_cvt_pk_bf16_f32 v%d, v%d, v%d' % (d + 1, s_ + 2, s_ + 3)]
    def ds(txt, tag):
        def f(): a(txt); lg.issue(tag)
        return f
    def step(m, dsops, extra=(), waits=None, pre=(), xstart=0, dstart=0):
        n = len(m); per = [[] for _ in range(n)]
        for i, x_ in enumerate(pre): per[i].append(x_)
        nd = n - dstart
        for i, x_ in enumerate(dsops): per[dstart + (i if len(dsops) <= nd else i * nd // len(dsops))].append(x_)
        nx = n - xstart
        for i, x_ in enumerate(extra): per[xstart + (i * nx // len(extra))].append(x_)
        for i in range(n):
            if waits and i in waits: lg.wait(waits[i])
            a(m[i]); run(per[i])
    stC('C at B0', 3)
    a('s_barrier')
    stC('B0')
    def tA(n, ks): return [ds(x_, 'a%d%d%s' % (n, ks, 'lo' if i < 7 else 'hi')) for i, x_ in enumerate(reads_A(n, ks))]
    if o['atune']:
        bg = o['atune']
        run(tA(0, 0))
        for n in range(7):
            kr = [ds(x_, 'k') for x_ in k_reads()[6 * (n - 3):6 * (n - 2)]] if 3 <= n < 7 else []
            m = mfma(A, 0, n == 0, False)
            step(m[:10], tA(n, 1), waits={0: 'a%d0lo' % n, 6: 'a%d0hi' % n}); step(m[10:], [])
            m = mfma(A, 1, False, False)
            step(m[:bg], [], waits={0: 'a%d1lo' % n})
            lg.wait_all(); a('s_barrier')
            r = tA(n + 1, 0)
            run(r[:1]); step(m[bg:], r[1:] + kr)
        lg.seq = []
    else: run(reads_A(0, 0))
    for n in range(7 if o['atune'] else 0, 9):
        if n == 7 and o['tm']:
            assert not o['b8a']
            F2 = 204; QT = F[1]
            a(W0)
            run(interleave(mfma(A, 0, False, False), reads_A(7, 1), 0, 2))
            a(W0); a('s_barrier'); stC('B8')
            r0, r1 = reads_A(8, 0), reads_A(8, 1, F2)
            rr = []
            for idx in ([0], [3, 4], [5, 6], [1], [2], [7, 8], [9, 10]):
                rr += [r0[i] for i in idx] + [r1[i] for i in idx]
            run(interleave(mfma(A, 1, False, False), rr, 0, 2))
            stC('end 7,1', 3)
            m = []; qw = []
            for i, (tp, q) in enumerate([(tp, q) for tp in range(2) for q in range(3)]):
                for u in range(2):
                    t = 2 * tp + u; d = v(A + 4 * (3 * t + q), 4)
                    for st in (F[0], F2): m.append(MF % (d, v(st + 4 * t, 4), v(st + 16 + 4 * q, 4), d))
                    qw += cvt(QT + 4 * i + 2 * u, A + 4 * (3 * t + q))
                    if o['q64'] and 'q' not in o['hack']: qw[-1] += '\nds_write_b64 v%d, %s offset:%d' % (QA, v(QT + 4 * i + 2 * u, 2), q * 4096 + tp * 1024 + u * 512)
                if not o['q64']: qw[-1] += '\nds_write_b128 v%d, %s offset:%d' % (QA, v(QT + 4 * i, 4), q * 4096 + tp * 1024)
            m[0] = 's_waitcnt lgkmcnt(12)\n' + m[0]; m[4] = 's_waitcnt lgkmcnt(8)\n' + m[4]; m[8] = ('s_waitcnt lgkmcnt(%d)' % (1 if o['q64'] and o['qs'] <= 6 and 'q' not in o['hack'] else 0)) + '\n' + m[8]
            run(interleave(m, qw, o['qs'], 1))
            stC('Q issued', 3)
            if stamps == 3: a(W0); stC('Q done', 3)
            break
        if n == 8: stC('end 7,1', 3)
        a(W0)
        run(interleave(mfma(A, 0, n == 0, False), (['s_barrier'] if n == 8 and o['b8a'] else []) + reads_A(n, 1), 0, 2))
        if n < 8:
            a(W0)
            a('s_barrier')
            if n == 7: stC('B8')
            run(interleave(mfma(A, 1, False, False), reads_A(n + 1, 0) + (k_reads()[8 * (n - 4):8 * (n - 3)] if 4 <= n < 7 else []), 0, 2))
        else:
            stC('end 8,0', 3)
            a(W0)
            od = [(2 * tp + u, q) for tp in range(2) for q in range(3) for u in range(2)]
            qw = []
            for i, (t, q) in enumerate(od):
                qw += cvt(QT + 2 * i, A + 4 * (3 * t + q))
                if t & 1: qw[-1] += '\nds_write_b128 v%d, %s offset:%d' % (QA, v(QT + 2 * i - 2, 4), q * 4096 + (t >> 1) * 1024)
            run(interleave(mfma(A, 1, False, False, od), qw, 6, 2))
            stC('Q issued', 3)
            if stamps == 3: a(W0); stC('Q done', 3)
    if o['uprio']: a('s_setprio %d' % o['uprio'])
    a('L_unit:')
    a(W0)
    a('s_barrier')
    stC('BQ')
    for kk in range(4):
        if o['klate']: run(k_reads(True)[3 * kk:3 * kk + 3])
        if o['q64'] == 1: a('ds_read2st64_b64 %s, v%d offset0:%d offset1:%d' % (v(QF + 4 * kk, 4), UA, 2 * kk, 2 * kk + 1))
        elif o['q64'] == 2: a('ds_read_b64 %s, v%d offset:%d\nds_read_b64 %s, v%d offset:%d' % (v(QF + 4 * kk, 2), UA, 1024 * kk, v(QF + 4 * kk + 2, 2), UA, 1024 * kk + 512))
        else: a('ds_read_b128 %s, v%d offset:%d' % (v(QF + 4 * kk, 4), UA, 1024 * kk))
    for kk in range(4):
        a('s_waitcnt lgkmcnt(%d)' % ((3 - kk) * (4 if o['klate'] else 2 if o['q64'] == 2 else 1)))
        for kt in range(3): a(MF % (v(S + 4 * kt, 4), v(KF + 16 * kt + 4 * kk, 4), v(QF + 4 * kk, 4), v(S + 4 * kt, 4) if kk else '0'))
    if 's' in o['hack']: a('s_branch L_hs_skip')
    if 'h' in o['hack']: a('s_cmp_ge_u32 s20, 4\ns_cbranch_scc1 L_hs_skip')
    x, y = 6, 7
    a('v_max3_f32 v6, v%d, v%d, v%d\nv_max3_f32 v7, v%d, v%d, v%d' % (S, S + 1, S + 2, S + 3, S + 4, S + 5))
    a('v_max3_f32 v6, v6, v%d, v%d\nv_max3_f32 v7, v7, v%d, v%d\nv_max3_f32 v6, v6, v%d, v%d' % (S + 6, S + 7, S + 8, S + 9, S + 10, S + 11))
    def xl(op, first):
        a(first)
        a('v_permlane16_swap_b32 v6, v7\n%s v8, v6, v7\n%s v7, v6, v7\nv_permlane32_swap_b32 v8, v7\n%s v6, v8, v7' % (op, op, op))
    xl('v_max_f32', 'v_max_f32 v6, v6, v7\nv_mov_b32 v7, v6')
    a('v_mul_f32 v6, s50, v6')
    if o['pk']:
        for t in range(0, 12, 2): a('v_pk_fma_f32 v[%d:%d], v[%d:%d], s[50:51], v[6:7] op_sel_hi:[1,1,0] neg_lo:[0,0,1] neg_hi:[0,0,1]' % (S + t, S + t + 1, S + t, S + t + 1))
    else:
        for t in range(12): a('v_fma_f32 v%d, v%d, s50, -v6' % (S + t, S + t))
    for t in range(12): a('v_exp_f32 v%d, v%d' % (S + t, S + t))
    if o['pk']:
        a('v_pk_add_f32 v[6:7], v[%d:%d], v[%d:%d]\nv_pk_add_f32 v[4:5], v[%d:%d], v[%d:%d]' % (S, S + 1, S + 2, S + 3, S + 4, S + 5, S + 6, S + 7))
        a('v_pk_add_f32 v[6:7], v[6:7], v[%d:%d]\nv_pk_add_f32 v[4:5], v[4:5], v[%d:%d]\nv_pk_add_f32 v[4:5], v[4:5], v[6:7]' % (S + 8, S + 9, S + 10, S + 11))
    else:
        a('v_add_f32 v4, v%d, v%d\nv_add_f32 v5, v%d, v%d' % (S, S + 1, S + 2, S + 3))
        for t in range(4, 12, 2): a('v_add_f32 v4, v4, v%d\nv_add_f32 v5, v5, v%d' % (S + t, S + t + 1))
    xl('v_add_f32', 'v_add_f32 v6, v4, v5\nv_add_f32 v7, v4, v5')
    a('v_rcp_f32 v6, v6')
    if o['pk']:
        for t in range(0, 12, 2): a('v_pk_mul_f32 v[%d:%d], v[%d:%d], v[6:7] op_sel_hi:[1,0]' % (S + t, S + t + 1, S + t, S + t + 1))
    else:
        for t in range(12): a('v_mul_f32 v%d, v%d, v6' % (S + t, S + t))
    for t in range(6): a('v_cvt_pk_bf16_f32 v%d, v%d, v%d' % (P + t, S + 2 * t, S + 2 * t + 1))
    if o['hack']: a('L_hs_skip:')
    if 'e' not in o['hack'] and 'y' not in o['hack']:
        a('buffer_store_dwordx4 %s, v25, s[%d:%d], s49 offen sc1' % (v(P, 4), SWS, SWS + 3))
        a('buffer_store_dwordx2 %s, v26, s[%d:%d], s49 offen offset:1024 sc1' % (v(P + 4, 2), SWS, SWS + 3))
    stC('C at BP')
    a('s_barrier')
    a('s_cmp_ge_u32 s20, 4\ns_cbranch_scc1 L_help2')
    if o['cprio'] or o['uprio']: a('s_setprio %d' % o['cprio'])
    stC('BP')
    def reads_W(p, ks):
        vp = (p >> 2) * 2 + (PC(p) & 1); tg = 'w%d%d' % (p, ks)
        r = ['ds_read_b128 %s, v%d offset:%d' % (v(F[ks] + 16 + 4 * q, 4), VA + ks, 12288 * vp + 2048 * q) for q in range(3)] + (wreads(F[ks], 16384 * WSLOT['w%d' % p] + 8192 * ks) if p != 3 else wreads(F[ks], 8192 * ks, 250))
        if (p, ks) == (0, 0) and o['fine0']:
            r = [r[0], r[3], r[4], r[1], r[2]] + r[5:]
            return [ds(x_, 'f%d' % i) for i, x_ in enumerate(r)]
        return [ds(x_, tg + ('lo' if i < 7 else 'hi')) for i, x_ in enumerate(r) if i >= 3 or not (o['alt'] and p & 1)]
    def wW(p, ks, more=()): return {0: 'f2', 1: 'f3', 2: 'f4', 3: 'f6', 6: 'f8', 9: 'f10'} if (p, ks) == (0, 0) and o['fine0'] else {0: ['w%d%dlo' % (p, ks)] + list(more), 6: ['w%d%dhi' % (p, ks)]}
    def vwpos(base, i, kt): return base + ([0, 2, 4][kt] if i % 2 == 0 else [8, 10, 6][kt])
    HACC = [B, A, B, A]; HDST = [C, C, B, B]
    def cvt_W(i): return [x_ for t in range(4) for kt in range(3) for x_ in cvt(vwpos(HDST[i] + 12 * t, i, kt), HACC[i] + 4 * (3 * t + kt))]
    def xb(nm): return [('s_waitcnt vmcnt(0)\n' if nm == o['ack'] and 'w' not in o['hack'] else '') + 's_barrier'] if nm in XN else []
    def ins(lst, i, x_): return lst[:i] + [x_] + lst[i:]
    OS = [[108, 112, 116, 120, 124], [48, 52, 56, 60, 64], [80, 84, 88, 92, 96], [100, 128, 132, 68, 72]]; OACC = [[232, 236, 240], [32, 36, 40]]
    def rdO(kq):
        tg = 'os%d' % kq
        return [ds('ds_read_b128 %s, v%d offset:%d' % (v(OS[kq][kt], 4), OVA + (kq & 1), 12288 * (kq >> 1) + 2048 * kt), tg) for kt in range(3)] + \
               [ds('ds_read_b64_tr_b16 %s, v%d offset:%d' % (v(OS[kq][3 + e] + 2 * hh, 2), OA, 16384 * WSLOT['o%d' % e] + 4096 * kq + 512 * hh), tg) for e in range(2) for hh in range(2)]
    mfma_O = [MF % (v(OACC[e][kt], 4), v(OS[kq][kt], 4), v(OS[kq][3 + e], 4), v(OACC[e][kt], 4) if kq else '0') for kq in range(4) for e in range(2) for kt in range(3)]
    cvt_O = [x_ for e in range(2) for kt in range(3) for x_ in cvt(vwpos(VWO, e, kt), OACC[e][kt])]
    PFULL = [10, 11, 22, 23]; PHALF = [4, 5, 6, 7]; POF = [24, 21]; POH = [8, 9]
    padr = []
    for i in range(4):
        padr.append('s_xor_b32 s3, s53, %d\ns_mul_i32 s3, s3, 9216\ns_add_u32 s3, s3, s55' % i)
        padr.append('v_add_u32 v%d, s3, v25' % PFULL[i]); padr.append('v_add_u32 v%d, s3, v26' % PHALF[i])
        if i < 2:
            padr.append('s_add_u32 s3, s3, s54\nv_add_u32 v%d, s3, v25' % POF[i]); padr.append('v_add_u32 v%d, s3, v26' % POH[i])
    a('s_mul_i32 s55, s18, 4608\ns_and_b32 s54, s22, 1\ns_mul_i32 s54, s54, 4608\ns_sub_u32 s54, s54, s55\ns_add_u32 s55, s55, %d\ns_lshr_b32 s53, s16, 1\ns_xor_b32 s53, s53, s22\ns_xor_b32 s53, s53, 3' % L_P)
    def preads(dst, fa, ha, qt, tag):
        off = 1536 * qt
        return [ds('ds_read_b128 %s, v%d offset:%d' % (v(dst[0], 4), fa[0], off), tag),
                ds('ds_read_b64 %s, v%d offset:%d' % (v(dst[1], 2), ha[0], off + 1024), tag),
                ds('ds_read_b64 %s, v%d offset:%d' % (v(dst[1] + 2, 2), ha[1], off + 1024), tag),
                ds('ds_read_b128 %s, v%d offset:%d' % (v(dst[2], 4), fa[1], off), tag)]
    PB = [[80 + 4 * k for k in range(6)], [108 + 4 * k for k in range(6)], [80 + 4 * k for k in range(6)]]
    def reads_F(qt): return preads(PB[qt][:3], PFULL[:2], PHALF[:2], qt, 'p%da' % qt) + preads(PB[qt][3:], PFULL[2:], PHALF[2:], qt, 'p%db' % qt)
    run(reads_W(0, 0))
    for p in range(8):
        i = PC(p) >> 1; first = PC(p) & 1 == 0
        if p < 2: ex0, ex1 = (padr[:5], padr[5:10]) if p == 0 else (padr[10:], ['v_add_u32 v%d, %d, v%d' % (250 + t, L_P, WA + t) for t in range(4)])
        elif o['alt']:
            cv = cvt_W({3: 0, 4: 1, 7: 2}[p]) if p in (3, 4, 7) else []
            k_ = 12 if p != 4 else 10
            ex0, ex1 = cv[:k_], cv[k_:]
        else:
            cv = cvt_W(i - 1)
            ex0, ex1 = (cv[:6], cv[6:12]) if p % 2 == 0 else (cv[12:18], cv[18:])
        step(mfma(HACC[i], 0, first, True), reads_W(p, 1), extra=ex0, xstart=(4 if p % 2 == 0 else 0) if not o['alt'] else 1, waits=wW(p, 0))
        step(mfma(HACC[i], 1, False, True), reads_W(p + 1, 0) if p < 7 else reads_F(0), extra=ex1, xstart=1, waits=wW(p, 1), pre=xb('w%d' % p))
        stC('s%d' % p if p < 7 else 'VW end', 2 if p < 7 else 1)
    RACC = [[244, 248, 252, 104], [32, 36, 40, 44], [244, 248, 252, 104]]
    PK = [76, 12]; OP = [[108, 112, 116], [120, 124, 48], [52, 56, 60]]
    def fm(qt, t, k): return MF % (v(RACC[qt][t], 4), v([C, B][k // 3] + 12 * t + 4 * (k % 3), 4), v(PB[qt][k], 4), v(RACC[qt][t], 4) if k else '0')
    def store_F(qt, h):
        l_ = 'L_own%d%d' % (qt, h)
        ownw = '\ns_cmp_lg_u32 s48, %d\ns_cbranch_scc1 %s\nds_write_b128 v27, %s offset:%d\n%s:' % (h, l_, v(PK[h], 4), 1024 * qt, l_) if o['own'] else ''
        if o['own'] and o['ownx']: ownw = '\ns_mov_b64 exec, s[%d:%d]\nds_write_b128 v27, %s offset:%d\ns_mov_b64 exec, -1' % (30 + 2 * h, 31 + 2 * h, v(PK[h], 4), 1024 * qt)
        return cvt(PK[h], RACC[qt][2 * h]) + cvt(PK[h] + 2, RACC[qt][2 * h + 1]) + \
               ['buffer_store_dwordx4 %s, v25, s[%d:%d], s%d offen sc1\ns_add_u32 s%d, s%d, 8192' % (v(PK[h], 4), SWS, SWS + 3, 56 + h, 56 + h, 56 + h) + ownw]
    def flag(reg, off): return FOP + ' v29, v%d, s[%d:%d], 0 offen offset:%d sc1' % (reg, SWS, SWS + 3, off)
    m = [fm(0, t, k) for k in range(6) for t in range(4)]
    c3 = cvt_W(3)
    c3 = [c3[6 * t + j] for t in range(4) for j in (4, 5)] + [c3[6 * t + j] for t in range(4) for j in range(4)]
    step(m[:19], reads_F(1), extra=c3, xstart=3, waits={0: ['p0a'], 11: ['p0b']})
    step(m[19:], [])
    stC('R0', 2)
    m = [fm(1, t, k) for t in range(4) for k in range(6)]
    step(m[:17], reads_F(2), extra=store_F(0, 0) + store_F(0, 1), xstart=3, waits={0: ['p1a'], 3: ['p1b']})
    step(m[17:], [], extra=store_F(1, 0))
    stC('R1', 2)
    xo = o['xo']
    m = [fm(2, t, k) for t in range(4) for k in range(6)]
    step(m[:xo], [], extra=store_F(1, 1), xstart=4, waits={0: ['p2a'], 3: ['p2b']})
    seq = rdO(0) + rdO(1); k1 = min(14, 24 - xo)
    step(m[xo:], seq[:k1], extra=store_F(2, 0), xstart=max(0, 18 - xo), pre=xb('O'))
    stC('R2', 2)
    op = [x_ for qt in range(3) for x_ in preads(OP[qt], POF, POH, qt, 'po')]
    f0 = 's_waitcnt vmcnt(3)\n' + flag(28, 0)
    f1 = 's_waitcnt vmcnt(3)\n' + flag(28, 128)
    step(mfma_O[:12], seq[k1:] + rdO(2) + rdO(3), extra=store_F(2, 1) + ([flag(28, 256)] if 'c' in o['hack'] else []), xstart=4, waits={0: ['os0'], 6: ['os1']}, pre=[f0] if o['ef'] >= 1 else [])
    step(mfma_O[12:], op, waits={0: ['os2'], 6: ['os3']}, extra=[f1] if o['ef'] >= 2 else [], xstart=o['e0'])
    stC('O', 2)
    def fo(k, first): return [MF % (v(SP + 4 * qt, 4), v(VWO + 4 * k, 4), v(OP[qt][k], 4), '0' if first else v(SP + 4 * qt, 4)) for qt in range(3)]
    run(cvt_O[:6])
    step(fo(0, True), [], extra=cvt_O[6:], waits={0: ['po']})
    run(fo(2, False) + fo(1, False))
    if o['ef'] == 0: a('s_waitcnt vmcnt(4)'); a(flag(28, 0))
    if o['ef'] < 2: a('s_waitcnt vmcnt(3)'); a(flag(28, 128))
    if o['e2']: a('s_waitcnt vmcnt(1)'); a(flag(28, 256))
    if 'r' in o['hack']: a('s_mov_b64 exec, 0x1c'); a(flag(30, 256)); a('s_mov_b64 exec, -1\ns_cmp_lg_u32 s21, 3\ns_cbranch_scc1 L_hr\ns_sleep 60\nL_hr:')
    for qt in range(3):
        run(cvt(VWO + 2 * qt, SP + 4 * qt) + ['buffer_store_dwordx2 %s, v26, s[%d:%d], s58 offen sc1\ns_add_u32 s58, s58, 8192' % (v(VWO + 2 * qt, 2), SWS, SWS + 3)])
    stC('final end')
    if o['sent']:
        assert o['rep'] == 1 and o['atom']
        a('s_mov_b64 exec, 0x1c'); a(flag(30, 256 + (8 if 'r' in o['hack'] else 0))); a('s_mov_b64 exec, -1')
    if o['own']: a(W0)
    if o['xe'] == 'E': a('s_barrier')
    if not o['e2'] and 'c' not in o['hack']: a('s_waitcnt vmcnt(%d)' % ((5 if o['ef'] == 0 else 4) + o['sent'])); a(flag(28, 256))
    if o['xe'] == 'H': a('s_barrier')
    if 'b' not in o['hack']: a('s_waitcnt vmcnt(%d)' % (o['sent'] + (0 if o['e2'] or 'c' in o['hack'] else 1)))
    a('s_mov_b64 exec, 0x1c1c'); a(flag(30, 256 + 64 * o['sent'])); a('s_mov_b64 exec, -1')
    if o['xe'] == 'G': a('s_barrier')
    stC('flags sent')
    stC.flush(0)
    a('s_endpgm')
    a('; ==== helpers')
    if o['padH']: a('.fill %d, 4, 0xbf800000' % o['padH'])
    a('L_help:')
    a('s_sub_u32 s18, s20, 5\ns_sub_u32 s52, s20, 1')
    a('v_lshlrev_b32 v25, 4, v0\nv_lshlrev_b32 v26, 3, v0')
    a('v_mov_b32 v12, 0\nv_mov_b32 v13, 0\nv_mov_b32 v14, 0\nv_mov_b32 v15, 0\nv_mov_b32 v29, 1\nv_mov_b32 v28, 0x7ff00000\nv_mov_b32 v30, v28')
    a(W0)
    srd(SWS, 14, 'ws')
    if o['sent'] and o['clr'] == 'start': clears(False, 40, 44)
    a('s_cmp_eq_u32 s20, 7\ns_cbranch_scc1 L_h2')
    a('s_cmp_eq_u32 s20, 5\ns_cbranch_scc1 L_h0')
    a('s_cmp_ge_u32 s2, 32\ns_cbranch_scc1 L_h0')
    a('s_lshl_b32 s3, s2, 12')
    assert G_FL == 0
    for j in range(4): a('buffer_store_dwordx4 v[12:15], v25, s[%d:%d], s3 offen offset:%d sc1' % (SWS, SWS + 3, 1024 * j))
    a('s_lshl_b32 s3, s2, 2\nv_mov_b32 v16, s3\ns_waitcnt vmcnt(0)')
    a('s_mov_b64 exec, 1\nglobal_store_dword v16, v29, s[12:13] sc1\ns_mov_b64 exec, -1')
    a('L_h0:')
    unit_setup()
    for c in range(9 + o['b8a']):
        a('s_barrier')
        if c == 4: run(k_reads())
    a('s_branch L_unit')
    a('L_h2:')
    if o['codepf']:
        a('s_getpc_b64 s[66:67]\nL_pc:\ns_sub_u32 s66, s66, L_pc-%s\ns_subb_u32 s67, s67, 0' % KN)
        a('s_lshr_b32 s3, s2, 3\ns_lshl_b32 s3, s3, 7\nv_lshlrev_b32 v7, 12, v0\nv_add_u32 v7, s3, v7')
        a('v_cmp_gt_u32 vcc, L_codeend-%s, v7\ns_and_saveexec_b64 s[64:65], vcc' % KN)
        a('global_load_dword v31, v7, s[66:67]')
        a('s_mov_b64 exec, s[64:65]')
    def tlb_touch():
        a('s_lshl_b32 s3, s2, 7\nv_lshlrev_b32 v7, 21, v0\nv_add_u32 v7, s3, v7\nv_add_u32 v8, 0x1f0000, v7')
        a('s_mov_b64 exec, 0x7f\nglobal_load_dword v32, v8, s[14:15]')
        if o['tlb'] in (1, 3):
            a('s_mov_b64 exec, 7\nglobal_load_dword v33, v7, s[8:9]')
            a('s_mov_b64 exec, 3\nglobal_load_dword v34, v7, s[4:5]\nglobal_load_dword v35, v7, s[6:7]')
        a('s_mov_b64 exec, 1\nglobal_load_dword v36, v7, s[10:11]\ns_mov_b64 exec, -1')
    if o['tlb'] in (1, 2): tlb_touch()
    hs = 's_load_dwordx16 s[84:99], s[12:13], 0%s\ns_load_dwordx16 s[28:43], s[12:13], 64%s'
    for c in range(10 + o['b8a']):
        a('s_barrier')
        if c == o['hsbar']: a(hs % ('', ''))
        if c == o['oddpf']:
            a('s_lshl_b32 s3, s21, 5\ns_lshr_b32 s17, s2, 3\ns_add_u32 s3, s3, s17\ns_mul_i32 s3, s3, %d\ns_add_u32 s3, s3, 1024' % (16 * 1152))
            a('v_mul_u32_u24 v7, 1152, v1\nv_add_u32 v7, s3, v7\ns_mov_b64 exec, 0xffff\nglobal_load_dword v37, v7, s[8:9]\ns_mov_b64 exec, -1')
        if c == 0 and o['tlb'] == 3: tlb_touch()
        if c == 8 and o['tlb'] == 4: tlb_touch()
    a('s_mov_b32 s54, %d\nL_hs:\ns_waitcnt lgkmcnt(0)' % SPIN)
    and16(84); and16(28); a('s_and_b32 s84, s84, s28')
    a('s_cbranch_scc1 L_hsok\ns_sub_u32 s54, s54, 1\ns_cbranch_scc1 L_hsok'); a(hs % (' glc', ' glc')); a('s_branch L_hs\nL_hsok:')
    a('s_barrier')
    a('L_help2:')
    run(xb('w0'))
    a('s_mul_i32 s17, s18, 3072')
    srd(SOUT, 10, 'out')
    a('s_lshl_b32 s3, s2, 9\ns_lshl_b32 s53, s18, 7\ns_add_u32 s62, s3, s53\ns_add_u32 s66, s14, s62\ns_addc_u32 s67, s15, 0')
    a('s_and_b32 s3, s2, 0xe7\ns_lshl_b32 s3, s3, 9\ns_add_u32 s53, s53, s3\n' + ('' if o['atom'] else 's_lshl_b32 s3, s22, 2\ns_add_u32 s53, s53, s3\n') + 'v_lshlrev_b32 v21, 12, v0')
    a('s_mul_i32 s55, s2, 3\ns_add_u32 s55, s55, s18\ns_lshl_b32 s55, s55, 13\ns_add_u32 s55, s55, %d\ns_add_u32 s56, s55, 4096' % G_PM)
    a('s_lshl_b32 s59, s23, 1\ns_lshr_b32 s3, s21, 2\ns_add_u32 s59, s59, s3\ns_mul_i32 s59, s59, 3\ns_add_u32 s59, s59, s18\ns_mul_i32 s59, s59, %d' % (16 * 1152))
    a('s_lshl_b32 s3, s22, 8\ns_add_u32 s59, s59, s3\ns_and_b32 s3, s21, 3\ns_lshl_b32 s3, s3, 6\ns_add_u32 s59, s59, s3')
    def pfetch(d):
        a('s_add_u32 m0, s17, %d\ns_xor_b32 s58, s2, %d\ns_mul_i32 s58, s58, 9216\ns_add_u32 s58, s58, s17\ns_add_u32 s58, s58, %d' % (L_P + 9216 * (3 - d), d << 3, G_P))
        for j in range(3):
            if 'e' not in o['hack'] and 'x' not in o['hack']: a('buffer_load_dwordx4 v25, s[%d:%d], s58 offen offset:%d sc1 lds' % (SWS, SWS + 3, 1024 * j))
    xs = [x_ for x_ in XN[2:-1] if x_ != 'w0']
    k = 0
    while True:
        nm = xs[k]; k += 1
        run(xb(nm))
        if nm == o['ack']:
            a('s_mov_b64 exec, 15' + ('\ns_bitset0_b64 exec, s22' if o['noself'] else '') + '\n' + FOP + ' v29, v21, s[%d:%d], s53 offen sc1\ns_mov_b64 exec, -1' % (SWS, SWS + 3))
            stH('P flag sent')
        if o['ownp'] and nm == o['ownat']: pfetch(0)
        if o['sent'] and nm == o['clr']: clears()
        if nm == o['poll0']: break
    assert xs.index(o['ack']) < k and ALLN.index(xs[k]) >= ALLN.index('w4') and k < len(xs) - 1
    a('s_mov_b32 s54, %d\ns_mov_b32 s52, %d' % (SPIN, len(xs) - 1 - k))
    a('L_pp:\n' + ('s_load_dword s84' if o['atom'] else 's_load_dwordx4 s[84:87]') + ', s[66:67], 0 glc')
    a('s_cmp_eq_u32 s52, 0\ns_cbranch_scc1 L_pp1\ns_barrier\ns_sub_u32 s52, s52, 1\nL_pp1:')
    a('s_sub_u32 s54, s54, 1\ns_cbranch_scc1 L_ppok\ns_waitcnt lgkmcnt(0)')
    a(('' if o['atom'] else 's_add_u32 s84, s84, s85\ns_add_u32 s86, s86, s87\ns_add_u32 s84, s84, s86\n') + 's_cmp_%s_u32 s84, %d\ns_cbranch_scc0 L_pp\nL_ppok:' % ('le' if 'a' in o['hack'] else 'eq', 4 - o['noself']))
    stH('P flags ok')
    for d in range(o['ownp'], 4): pfetch(d)
    if o['sent'] and o['clr'] == 'p': clears()
    a('L_pb:\ns_cmp_eq_u32 s52, 0\ns_cbranch_scc1 L_pbd\ns_barrier\ns_sub_u32 s52, s52, 1\ns_branch L_pb\nL_pbd:')
    a('s_waitcnt vmcnt(%d)' % (2 if o['sent'] and o['clr'] == 'p' else 0))
    stH('P landed')
    a('s_barrier')
    if o['sent'] and o['clr'] == 'w7': clears()
    a('s_waitcnt vmcnt(0)\ns_barrier')
    if 'f' in o['hack']: a('s_endpgm')
    a('s_mov_b32 s54, %d' % SPIN)
    a('s_lshl_b32 s3, s18, 10\ns_add_u32 s3, s3, %d\nv_add_u32 v27, s3, v25' % L_F)
    reduce('mp', 8, 4, MOFF, 25, 's59', stH)
    if stamps:
        a('s_waitcnt vmcnt(0)'); stH('end'); stH.flush(7)
    a('L_end:\ns_endpgm\nL_codeend:')
    a(kernel_desc(KN, 256, 256))
    a.lines = hazard.pad(a.lines, False)
    return a.text()
if __name__ == '__main__':
    import json
    name = sys.argv[1] if len(sys.argv) > 1 else 'p8_v9'
    opt = json.loads(sys.argv[2]) if len(sys.argv) > 2 else None
    open(name + '.s', 'w').write(gen(0, opt))
    open(name + '_st.s', 'w').write(gen(1, opt))
    open(name + '_st2.s', 'w').write(gen(2, opt))
    open(name + '_st3.s', 'w').write(gen(3, opt))
    open(name + '_st4.s', 'w').write(gen(4, opt))
```

```python
import sys, math, struct
from asmlib import *
import hazard
from gen_f16 import Cnt, interleave, f2i, v

L_W = 0; L_X0 = 49152; XOFF = [0, 12288, 49152]; L_K = 73728; L_Q = 49152; L_P = 73728; L_F = 110592; L_V = 114688
G_FL = 0x0
G_P = 0x40000
G_PM = 0x400000
G_PO = 0xC00000
SX, SWQ, SK, SV, SWO, SWS, SOUT = 24, 28, 32, 36, 40, 44, 48
SPIN = 1 << 16
MF = 'v_mfma_f32_16x16x32_bf16 %s, %s, %s, %s'

HEADER = """; Kernarg layout (64 bytes, pointers only, base s[0:1]):
;
; Hand-offs: data is stored write-through (sc1); after the stores are acknowledged the producer bumps a counter of the consumer
;   (device-scope atomic); the consumer polls it and then loads with sc1.  Counters are zeroed inside the launch by workgroups 0..31,
;   which report through debug.  The last, small hand-off is signalled before the acknowledgement: its slots are first filled with
;   a NaN marker in this launch, and a consumer that still sees a NaN waits for the acknowledged counter and reads again.
;   Nothing depends on workgroup placement except speed; every poll loop is bounded.
;            | 110592 own partial chunk | 114688 V (4x12K).  Tiles are XOR-swizzled on the global side of the DMA."""

def gen(stamps=0, opt=None):
    o = dict(order='qqqKqqqqqq', win=24, codepf=True, rot='g3', pk=True, lprio=0, afterB8=1, afterBQ=4, ack='w1', poll0='w3', cprio=0, prog=False, x4=True, xo=12, ef=2, xe='H', sent=1, clr='w7', e2=0, nt={}, split=1, uprio=0, early_flag=True, outsc='', first_half=False, hsbar=4, poll='s', psleep=0, tlb=0, remap=0, oddpf=7, rot2=1, lateat=3, own=1, ownx=1, tramp=[11], far=0, alt=0, klate=0, bm=0, cpfL=1, acc=1, warm=0, wstep=960, wat=[-1, 0, 1], padL=0, padC=0, padH=0, b8a=0, tm=1, q64=2, stlb=0, hack='', atom=1, rep=1, wsw=1, ownp=1, atune=0, oe=0, hsbar_=0, ownat='w3', e0=4, e1='end', m0o=1, rsl=6, qs=5, fine0=1, wqfirst=0, skip=['w0', 'w5'], noself=1)
    if opt: o.update(opt)
    if o['klate']: o['order'] = 'q' * 9; o['q64'] = 3; o.setdefault('pre8', ['k0'])
    a = Asm()
    a(HEADER)
    a('; @launch grid=(256,1,1) block=(512,1,1) lds=163840')
    a(HEAD); a(kernel_begin(KN))
    def run(seq):
        for x in seq:
            if callable(x): x()
            else: a(x)
    class St:
        def __init__(s, base, n, r0): s.base = base; s.n = n; s.k = 0; s.r0 = r0
        def __call__(s, name='x', lvl=1):
            if ((stamps >= lvl and lvl < 2) or stamps == lvl) and (stamps != 5 or name in ('start', 'final end')):
                assert s.k < s.n, name
                a('; stamp %d %s' % (s.base + s.k, name))
                a('s_memrealtime s[%d:%d]' % (s.r0 + 2 * s.k, s.r0 + 1 + 2 * s.k)); s.k += 1
        def flush(s, wave):
            if stamps and s.k:
                l_ = a.label('L_nst')
                a('s_cmp_lg_u32 s20, %d\ns_cbranch_scc1 %s' % (wave, l_))
                a('s_waitcnt lgkmcnt(0)\nv_mov_b32 v31, 0\ns_lshl_b32 s3, s2, 9\ns_add_u32 s3, s3, %d' % (STAMP_OFF + 8 * s.base))
                for i in range(s.k):
                    a('v_mov_b32 v254, s%d\nv_mov_b32 v255, s%d' % (s.r0 + 2 * i, s.r0 + 1 + 2 * i))
                    a('buffer_store_dwordx2 v[254:255], v31, s[%d:%d], s3 offen offset:%d' % (SWS, SWS + 3, 8 * i))
                a(l_ + ':')
    stC = St(0, 21, 60); stL = St(24, 17, 68); stH = St(44, 6, 32)
    W0 = 's_waitcnt lgkmcnt(0)'
    def PC(p): return (p & 4) | ((p & 1) << 1) | ((p >> 1) & 1) if o['alt'] else p
    FOP = 'buffer_atomic_add' if o['atom'] else 'buffer_store_dword'
    MOFF = (4 if o['rep'] > 1 else 64) if o['atom'] else 32
    OOFF = 0
    assert o['rep'] in (1, 2) and (o['atom'] or o['rep'] == 1)
    stC('start')
    a('s_cmp_ge_u32 s2, 256\ns_cbranch_scc1 L_end')
    a('s_load_dwordx2 s[%d:%d], s[0:1], %d' % (SX, SX + 1, SLOT['x']))
    a('s_load_dwordx2 s[%d:%d], s[0:1], %d' % (SWQ, SWQ + 1, SLOT['wq']))
    a('s_load_dwordx4 s[4:7], s[0:1], %d' % SLOT['k'])
    a('s_load_dwordx8 s[8:15], s[0:1], %d' % SLOT['wo'])
    if o['remap'] == 1: a('s_lshr_b32 s3, s2, 2\ns_and_b32 s3, s3, 0x18\ns_xor_b32 s2, s2, s3')
    if o['remap'] == 2: a('s_lshr_b32 s3, s2, 3\ns_and_b32 s3, s3, 0x18\ns_lshl_b32 s21, s2, 2\ns_and_b32 s21, s21, 0xe0\ns_and_b32 s2, s2, 7\ns_or_b32 s2, s2, s3\ns_or_b32 s2, s2, s21')
    if o['remap'] == 3: a('s_xor_b32 s2, s2, 0x18')
    a('v_lshrrev_b32 v1, 6, v0\nv_and_b32 v0, 63, v0\nv_readfirstlane_b32 s20, v1')
    if o['wsw']: a('s_xor_b32 s20, s20, 4')
    a('s_and_b32 s21, s2, 7\ns_bfe_u32 s22, s2, 0x20003\ns_lshr_b32 s23, s2, 5')
    a('v_and_b32 v1, 15, v0\nv_lshrrev_b32 v2, 4, v0')
    def srd(r, src, n):
        if src is not None: a('s_mov_b32 s%d, s%d\ns_mov_b32 s%d, s%d' % (r, src, r + 1, src + 1))
        a('s_mov_b32 s%d, %d\ns_mov_b32 s%d, 0x20000' % (r + 2, SIZES[n], r + 3))
    H0 = 's_and_b32 s16, s22, 2\ns_add_u32 s16, s16, s22\ns_xor_b32 s16, s16, s23'
    if o['rot2'] == 1: H0 = 's_and_b32 s16, s22, 2\ns_xor_b32 s16, s16, s23\ns_and_b32 s16, s16, 3\ns_lshl_b32 s16, s16, 1'
    if o['rot2'] == 2: H0 = 's_and_b32 s16, s22, 2\ns_lshl_b32 s16, s16, 1\ns_xor_b32 s16, s16, s23'
    if o['rot2'] == 3: H0 = 's_and_b32 s16, s23, 3\ns_lshl_b32 s16, s16, 1\ns_and_b32 s3, s22, 2\ns_add_u32 s3, s3, s22\ns_xor_b32 s16, s16, s3'
    if o['rot2'] == 4: H0 = 's_lshr_b32 s16, s22, 1\ns_xor_b32 s16, s16, s23\ns_and_b32 s16, s16, 1\ns_lshl_b32 s16, s16, 2'
    if o['alt'] == 1: H0 = 's_xor_b32 s16, s22, s23\ns_and_b32 s3, s16, 2\ns_and_b32 s16, s16, 3\ns_add_u32 s16, s16, s3'
    if o['alt'] == 2: H0 = 's_and_b32 s16, s22, 2\ns_xor_b32 s16, s16, s23\ns_and_b32 s3, s16, 2\ns_and_b32 s16, s16, 3\ns_add_u32 s16, s16, s3'
    for i_ in range(len(o['tramp'])): a('s_cmp_eq_u32 s20, %d\ns_cbranch_scc1 L_tr%d' % (i_, i_))
    a('s_cmp_lt_u32 s20, 4\ns_cbranch_scc1 L_comp')
    a('s_cmp_gt_u32 s20, 4\ns_cbranch_scc1 L_help')
    def gpoll(name, nw, off):
        sl = ('s_sleep %d\n' % o['psleep']) if o['psleep'] else ''
        if o['rep'] == 2:
            a(W0 + '\ns_mov_b64 s[84:85], 0\ns_load_dword s85, s[66:67], %d glc\ns_sleep %d' % (off + 64, o['rsl']))
            a('L_%s:' % name)
            for r_ in range(2):
                a('s_load_dword s%d, s[66:67], %d glc\ns_waitcnt lgkmcnt(1)\ns_max_u32 s30, s84, s85\ns_cmp_ge_u32 s30, %d\ns_cbranch_scc1 L_%sok' % (84 + r_, off + 64 * r_, nw, name))
            a('s_sub_u32 s54, s54, 1\ns_cbranch_scc0 L_%s\nL_%sok:' % (name, name))
        elif o['atom']:
            a('L_%s:\n%ss_load_dword s84, s[66:67], %d glc\ns_sub_u32 s54, s54, 1\ns_cbranch_scc1 L_%sok\ns_waitcnt lgkmcnt(0)' % (name, sl, off, name))
            a('s_cmp_lt_u32 s84, %d\ns_cbranch_scc1 L_%s\nL_%sok:' % (nw, name, name))
        elif o['poll'] == 'p':
            a(W0)
            for i in range(0, nw, 2): a('s_mov_b64 s[%d:%d], 0' % (84 + i, 85 + i))
            a('L_%s:\ns_load_dwordx%d s[84:%d], s[66:67], %d glc\n%ss_sub_u32 s54, s54, 1\ns_cbranch_scc1 L_%sok' % (name, nw, 83 + nw, off, sl, name))
            a('s_and_b64 s[30:31], s[84:85], s[86:87]')
            for i in range(4, nw, 2): a('s_and_b64 s[30:31], s[30:31], s[%d:%d]' % (84 + i, 85 + i))
            a('s_and_b32 s30, s30, s31\ns_cbranch_scc0 L_%s\nL_%sok:' % (name, name))
        elif o['poll'] == 's':
            a('L_%s:\n%ss_load_dwordx%d s[84:%d], s[66:67], %d glc\ns_sub_u32 s54, s54, 1\ns_cbranch_scc1 L_%sok\ns_waitcnt lgkmcnt(0)' % (name, sl, nw, 83 + nw, off, name))
            k = nw
            while k > 2:
                k //= 2
                for i in range(0, k, 2): a('s_and_b64 s[%d:%d], s[%d:%d], s[%d:%d]' % (84 + i, 85 + i, 84 + i, 85 + i, 84 + k + i, 85 + k + i))
            a('s_and_b32 s84, s84, s85\ns_cbranch_scc0 L_%s\nL_%sok:' % (name, name))
        else:
            a('v_and_b32 v19, %d, v0\nv_lshlrev_b32 v19, 2, v19' % (nw - 1))
            a('L_%s:\n%sbuffer_load_dword v18, v19, s[%d:%d], s62 offen offset:%d sc1\ns_sub_u32 s54, s54, 1\ns_cbranch_scc1 L_%sok\ns_waitcnt vmcnt(0)' % (name, sl, SWS, SWS + 3, off, name))
            a('v_cmp_ne_u32 vcc, 1, v18\ns_cbranch_vccnz L_%s\nL_%sok:' % (name, name))
    def code_prefetch():
        if o['codepf']:
            a('s_getpc_b64 s[66:67]\nL_pc:\ns_sub_u32 s66, s66, L_pc-%s\ns_subb_u32 s67, s67, 0' % KN)
            a('s_lshr_b32 s3, s2, 3\ns_lshl_b32 s3, s3, 7\nv_lshlrev_b32 v100, 12, v0\nv_add_u32 v100, s3, v100')
            a('v_mov_b32 v103, s67\nv_add_co_u32 v102, vcc, s66, v100\nv_addc_co_u32 v103, vcc, 0, v103, vcc')
            a('v_cmp_gt_u32 vcc, L_codeend-%s, v100\ns_and_saveexec_b64 s[64:65], vcc' % KN)
            a('global_load_dword v101, v[102:103], off')
            a('s_mov_b64 exec, s[64:65]')
    def clears(all12=False, va=4, vd=12):
        a('s_lshl_b32 s3, s23, 1\ns_and_b32 s58, s22, 1\ns_add_u32 s3, s3, s58\ns_mul_i32 s3, s3, 3\n' + ('' if all12 else 's_add_u32 s3, s3, s18\n') + 's_lshl_b32 s58, s3, 15')
        a('s_lshl_b32 s3, s21, 1\ns_lshr_b32 s59, s22, 1\ns_add_u32 s3, s3, s59\ns_lshl_b32 s3, s3, 9\ns_add_u32 s58, s58, s3\ns_add_u32 s58, s58, %d' % G_PO) if all12 else \
        a('s_lshl_b32 s3, s21, 1\ns_lshr_b32 s57, s22, 1\ns_add_u32 s3, s3, s57\ns_lshl_b32 s3, s3, 9\ns_add_u32 s58, s58, s3\ns_add_u32 s58, s58, %d' % G_PO)
        a('v_and_b32 v%d, 31, v0\nv_lshrrev_b32 v%d, 5, v0\nv_lshlrev_b32 v%d, 4, v%d\nv_lshl_add_u32 v%d, v%d, 13, v%d' % (va, va + 1, va, va, va, va + 1, va))
        for i in range(4): a('v_mov_b32 v%d, -1' % (vd + i))
        for i in range(6 if all12 else 2):
            if i: a('s_add_u32 s58, s58, 16384')
            a('buffer_store_dwordx4 v[%d:%d], v%d, s[%d:%d], s58 offen sc1' % (vd, vd + 3, va, SWS, SWS + 3))
            if all12: vm.issue('clr')
    a('; ==== loader: 9 chunks of x | wq (K rotated start), K, then V and wo pieces; one barrier per consumed stage')
    vm = Cnt(a, 'vmcnt', 63)
    XV, WV, OV, KV, DV, VV = 8, 12, 16, 20, 24, 28
    if o['lprio']: a('s_setprio %d' % o['lprio'])
    if o['cpfL']: code_prefetch()
    srd(SX, None, 'x'); srd(SWQ, None, 'wq')
    a('v_lshrrev_b32 v3, 3, v0\nv_and_b32 v4, 7, v0')
    def quad(base, step):
        a('v_xor_b32 v7, 64, v%d\nv_add_u32 v%d, %d, v7' % (base, base + 1, step))
        a('v_add_u32 v%d, %d, v%d\nv_add_u32 v%d, %d, v%d' % (base + 2, 2 * step, base, base + 3, 2 * step, base + 1))
    a('v_mul_u32_u24 v5, 1152, v3\nv_xor_b32 v32, v4, v2\nv_lshl_add_u32 v%d, v32, 4, v5' % XV)
    quad(XV, 8 * 1152 - 1024)
    a('v_lshlrev_b32 v6, 1, v2\nv_xor_b32 v6, v6, v1\nv_lshlrev_b32 v6, 4, v6')
    a('v_lshl_add_u32 v%d, v2, 13, v6' % WV)
    a('v_add_u32 v%d, %d, v%d' % (WV + 1, 4 * 8192 - 1024, WV))
    a('v_xor_b32 v7, 128, v%d\nv_add_u32 v%d, %d, v7\nv_add_u32 v%d, %d, v7' % (WV, WV + 2, 2 * (4 * 8192 - 1024), WV + 3, 3 * (4 * 8192 - 1024)))
    if o['rot'] == 'g3':
        a('s_add_u32 s17, s22, s23\ns_mul_i32 s3, s17, 43\ns_lshr_b32 s3, s3, 7\ns_mul_i32 s3, s3, 3\ns_sub_u32 s17, s17, s3\ns_mul_i32 s17, s17, 3')
    elif o['rot'] == 'g4':
        a('s_add_u32 s17, s22, s23\ns_and_b32 s17, s17, 3\ns_mul_i32 s17, s17, 9\ns_lshr_b32 s17, s17, 2')
    elif o['rot'] == 'g2':
        a('s_add_u32 s17, s22, s23\ns_and_b32 s17, s17, 1\ns_mul_i32 s17, s17, 5')
    elif o['rot'] == 'g9':
        a('s_lshl_b32 s17, s22, 1\ns_add_u32 s17, s17, s23\ns_cmp_ge_u32 s17, 9\ns_cselect_b32 s3, 9, 0\ns_sub_u32 s17, s17, s3')
    else: a('s_mov_b32 s17, 0')
    a('s_mul_i32 s52, s23, 110592')
    a('s_lshl_b32 s53, s21, 10\ns_lshl_b32 s3, s22, 8\ns_add_u32 s53, s53, s3')
    a('s_waitcnt lgkmcnt(0)')
    stL('L kernarg')
    if o['stlb'] >= 1:
        a('s_lshl_b32 s57, s17, 19\ns_add_u32 s57, s57, s53\ns_load_dword s58, s[%d:%d], s57' % (SWQ, SWQ + 1))
    if o['stlb'] >= 2:
        a('s_mov_b32 s57, 0x200000\ns_mov_b32 s59, 0x400000')
        for base in (SWQ, 8, 4, 6): a('s_load_dword s58, s[%d:%d], 0\ns_load_dword s58, s[%d:%d], s57' % (base, base + 1, base, base + 1))
        for base in (SWQ, 8): a('s_load_dword s58, s[%d:%d], s59' % (base, base + 1))
    ndma = [0]
    def group(vreg, n, srd_, lds, tag, adv=None, dyn=None):
        seq = [('s_add_u32 m0, %s, %d' % (dyn, lds) if dyn else 's_mov_b32 m0, %d' % lds) + ('\ns_add_u32 s57, s57, %s' % adv if adv else '')]
        for j in range(n):
            def f(j=j):
                ndma[0] += 1
                if ndma[0] - 1 in o['tramp']:
                    i_ = o['tramp'].index(ndma[0] - 1)
                    a('s_branch L_ov%d\nL_tr%d:\ns_branch L_comp\nL_ov%d:' % (i_, i_, i_))
                if len(vm.seq) >= 60:
                    a('s_waitcnt vmcnt(44)'); vm.seq = vm.seq[-44:]
                a('buffer_load_dwordx4 v%d, s[%d:%d], s57 offen offset:%d %s lds' % (vreg + j, srd_, srd_ + 3, 1024 * j, o['nt'].get({SX: 'x', SWQ: 'q', SK: 'k', SV: 'v', SWO: 'o'}[srd_] + tag[-1], o['nt'].get({SX: 'x', SWQ: 'q', SK: 'k', SV: 'v', SWO: 'o'}[srd_], '')))); vm.issue(tag)
            seq.append(f)
        return seq
    def item_q(c):
        st = c % 3; tag = 'n%d' % c
        m0o = o['m0o'] and c >= o['lateat']
        sx = ['s_lshl_b32 s57, s17, 7\ns_add_u32 s57, s57, s52']
        for t in range(3): sx += group(40 + 4 * t if m0o and t else XV, 4, SX, L_X0 + XOFF[st] + 4096 * t, tag, 32 * 1152 if t and not m0o else None)
        sw = ['s_lshl_b32 s57, s17, 19\ns_add_u32 s57, s57, s53']
        for t in range(4): sw += group(52 + 4 * t if m0o and t else WV, 4, SWQ, L_W + 16384 * st + 4096 * t, tag + ('b' if c == 8 and t >= 2 and o['b8a'] else ''), 16 * 8192 if t and not m0o else None)
        seq = sw + sx if o['wqfirst'] else sx + sw
        seq += ['s_add_u32 s17, s17, 1\ns_cmp_eq_u32 s17, 9\ns_cselect_b32 s17, 0, s17']
        return seq
    def item_k():
        seq = ['s_lshr_b32 s3, s22, 1\ns_add_u32 s57, s54, s3\ns_mul_i32 s57, s57, 12288']
        for t in range(6): seq += group(KV, 4, SK, L_K + 4096 * t, 'k0', None if t == 0 else (4096 if t != 3 else 16 * 12288 - 8192))
        return seq
    WSLOT = {'w0': 0, 'w1': 1, 'w2': 2, 'w3': 4.5, 'w4': 3, 'w5': 0, 'w6': 1, 'w7': 2, 'o0': 3, 'o1': 0}
    assert L_P == 4.5 * 16384
    NEED = {'w3': 1, 'w4': 2, 'w5': 3, 'w6': 5, 'w7': 6}
    L_O1 = L_P
    STAGES = ['w0', 'w1', 'o0', 'o1', 'w2', 'w3', 'w4', 'w5', 'w6', 'w7']
    def item_v(vp):
        seq = ['s_lshr_b32 s3, s16, 2\ns_xor_b32 s3, s3, %d\ns_add_u32 s57, ' % (vp >> 1) + ('s63' if 'd' in o['hack'] else 's54') + ', s3\ns_mul_i32 s57, s57, 12288\ns_xor_b32 s3, s16, %d\ns_and_b32 s3, s3, 1\ns_lshl_b32 s3, s3, 7\ns_add_u32 s57, s57, s3' % (vp & 1)]
        for b in range(2):
            seq += group(VV, 4, SV, L_V + 12288 * vp + 6144 * b, 'v%d' % vp, 16 * 12288 - 8192 if b else None)
            seq += group(VV, 2, SV, L_V + 12288 * vp + 6144 * b + 4096, 'v%d' % vp, 8192)
        return seq
    def item_w(p):
        lds = int(L_W + 16384 * WSLOT['w%d' % p])
        seq = ['s_xor_b32 s3, s16, %d\ns_mul_i32 s57, s3, %d\ns_add_u32 s57, s57, s60' % (PC(p), 64 * 1152)]
        for t in range(4): seq += group(68 + 4 * t if o['m0o'] and t else OV, 4, SWO, lds + 4096 * t, 'w%d' % p, 16 * 1152 if t and not o['m0o'] else None)
        return seq
    def item_o(e):
        lds = L_W + 16384 * WSLOT['o%d' % e]; seq = []
        for hf in range(2):
            seq += ['s_xor_b32 s3, s16, %d\ns_mul_i32 s57, s3, %d\ns_add_u32 s57, s57, s62' % (2 * e + hf, 64 * 1152)]
            for t in range(2): seq += group(DV, 4, SWO, lds + 8192 * hf + 4096 * t, 'o%d' % e, 32 * 1152 if t else None)
        return seq
    def item(nm):
        seq = {'v': item_v, 'w': item_w, 'o': item_o, 'k': lambda _: item_k()}[nm[0]](int(nm[1]))
        cut = 9 if nm[0] == 'v' else 11
        if nm[2:] == 'a': return seq[:cut] + ['s_mov_b32 s61, s57']
        if nm[2:] == 'b': return ['s_mov_b32 s57, s61'] + seq[cut:]
        return seq
    def late_setup():
        srd(SK, 4, 'k'); srd(SV, 6, 'v'); srd(SWO, 8, 'wo'); srd(SWS, 14, 'ws')
        if 'd' in o['hack']: srd(SV, SX, 'x'); srd(SWO, SX, 'x')
        if 'k' in o['hack']: srd(SK, SX, 'x')
        a('v_mul_u32_u24 v7, 1152, v2\nv_add_u32 v%d, v7, v6\nv_add_u32 v%d, %d, v%d' % (OV, OV + 1, 4 * 1152 - 1024, OV))
        a('v_xor_b32 v6, 128, v6\nv_add_u32 v7, v7, v6\nv_add_u32 v%d, %d, v7\nv_add_u32 v%d, %d, v7' % (OV + 2, 2 * (4 * 1152 - 1024), OV + 3, 3 * (4 * 1152 - 1024)))
        a('v_xor_b32 v6, v1, v2\nv_lshlrev_b32 v6, 4, v6\nv_lshl_add_u32 v%d, v2, 8, v6' % KV)
        for j in range(1, 4): a('v_xor_b32 v%d, %d, v%d' % (KV + j, 64 * j, KV))
        a('v_and_b32 v6, 1, v2\nv_lshlrev_b32 v6, 1, v6\nv_xor_b32 v6, v6, v4\nv_lshl_add_u32 v%d, v6, 4, v5' % DV)
        quad(DV, 8 * 1152 - 1024)
        a('v_lshlrev_b32 v6, 8, v3\nv_lshl_add_u32 v%d, v32, 4, v6' % VV)
        quad(VV, 8 * 256 - 1024)
        if o['m0o']:
            for base, src, n, st_ in ((40, XV, 3, 32 * 1152), (52, WV, 4, 16 * 8192), (68, OV, 4, 16 * 1152)):
                for t in range(1, n):
                    a('s_mov_b32 s3, %d' % (t * st_))
                    for j in range(4): a('v_add_u32 v%d, s3, v%d' % (base + 4 * t + j, src + j))
        a(H0)
        a('s_lshl_b32 s54, s23, 5\ns_lshl_b32 s3, s21, 1\ns_add_u32 s54, s54, s3')
        if 'd' in o['hack']: a('s_and_b32 s63, s23, 1\ns_lshl_b32 s63, s63, 5')
        a(('s_mov_b32 s60, 0 ; %d' if 'd' in o['hack'] else 's_mul_i32 s60, s21, %d') % (512 * 1152))
        a('s_add_u32 s62, s60, 1024\ns_lshl_b32 s3, s22, 8\ns_add_u32 s60, s60, s3')
    nq = 0; nbar = 0; since = {}
    def bar():
        nonlocal nbar
        vm.wait('n%d' % nbar)
        if nbar in (1, 2, 3, 8): stL('L at B%d' % nbar, 2)
        if nbar < 4: stL('L at B%d' % nbar, 3)
        a('s_barrier'); nbar += 1
    for t in o['order']:
        if t == 'q':
            while nbar < nq - 1 and nq >= 3: bar()
            seq = item_q(nq)
            if o['first_half'] and nq in (1, 2) and nbar == nq - 1:
                run(seq[:16]); bar(); run(seq[16:])
            else: run(seq)
            sz = 28; nq += 1
            if nq <= 2: stL('L issued q%d' % (nq - 1), 3)
            if o['sent'] and o['clr'] == 'L%d' % nq: srd(SWS, 14, 'ws'); clears(True, 90, 92)
            if nq == o['lateat']: late_setup()
        elif t == 'K': run(item_k()); sz = 24
        elif t == 'V': run(item_v(0)); sz = 12
        elif t == 'W': run(item_v(1)); sz = 12
        for c in list(since): since[c] += sz
        if t == 'q': since[nq - 1] = 0
        while nbar < nq and since[nbar] >= o['win']: bar()
    while nbar < 8: bar()
    pre8 = o.get('pre8') or (['w0'] if 'V' in o['order'] else ['v0', 'w0'])
    seq = [x_ for it in pre8 for x_ in item(it)]
    if o['b8a']:
        run(seq[:-10]); bar(); run(seq[-10:]); vm.wait('n8b'); a('s_barrier')
    else:
        run(seq); bar()
    XB = [('BQ', []), ('BP', ['v0', 'w0']), ('w0', ['v1', 'w1']), ('w1', ['w2']), ('w2', ['w3']), ('w3', ['v2', 'w4']),
          ('w4', ['v3', 'w5']), ('w5', ['w6']), ('w6', ['w7']), ('w7', []), ('O', ['o0', 'o1'])]
    if o['alt']:
        XB = [('BQ', []), ('BP', ['v0', 'w0']), ('w0', ['w1']), ('w1', ['v1', 'w2']), ('w2', ['w3']), ('w3', ['v2', 'w4']),
              ('w4', ['w5']), ('w5', ['v3', 'w6']), ('w6', ['w7']), ('w7', []), ('O', ['o0', 'o1'])]
    if o['klate']: XB[0] = ('BQ', ['k0'])
    for sk in o['skip']:
        i_ = [x_[0] for x_ in XB].index(sk)
        XB[i_ - 1] = (XB[i_ - 1][0], XB[i_ - 1][1] + XB[i_][1]); del XB[i_]
    XN = [x_[0] for x_ in XB]
    plan = o.get('plan') or {'B8': ['v1', 'w1'], 'BQ': ['w2', 'w3', 'v2'], 'BP': ['w4', 'v3'], 'w1': ['w5'], 'w2': ['w6'], 'w3': ['w7'], 'w6': ['o0'], 'w7': ['o1']}
    FREEAT = {'w0': 'B8', 'w1': 'B8', 'w2': 'BQ', 'w3': 'BP' if o['klate'] else 'BQ', 'w4': 'BP', 'w5': 'w1', 'w6': 'w2', 'w7': 'w3', 'o0': 'w5', 'o1': 'w6'}
    ALLN = ['B8', 'BQ', 'BP'] + ['w%d' % i_ for i_ in range(8)] + ['O']
    names = ['B8'] + [x_[0] for x_ in XB]
    issued = set(pre8) | ({'v0'} if 'V' in o['order'] else set()) | ({'v1'} if 'W' in o['order'] else set())
    last = 'B8'
    for nm, need in XB:
        for it in plan.get(last, []):
            assert it[0] == 'v' or ALLN.index(FREEAT[it[:2]]) <= ALLN.index(last), (it, last)
            run(item(it))
            if it[2:] != 'a': issued.add(it[:2])
        assert all(x_ in issued for x_ in need), (nm, need)
        vm.wait(need)
        stL('L at ' + nm, 2)
        a('s_barrier'); last = nm
    assert len(issued) == 14 + o['klate']
    stL('L done')
    stL.flush(4)
    if o['padL']: a('s_branch L_padl\n.fill %d, 4, 0xbf800000\nL_padl:' % o['padL'])
    if 'f' in o['hack']: a('s_endpgm')
    if o['stlb']: a(W0)
    srd(SOUT, 10, 'out')
    a('s_lshl_b32 s52, s21, 1\ns_lshr_b32 s3, s22, 1\ns_add_u32 s52, s52, s3')
    if stamps == 4: a('s_min_u32 s52, s52, 11\ns_lshr_b32 s3, s52, 1\ns_and_b32 s75, s52, 1\ns_lshl_b32 s75, s75, 4\ns_or_b32 s75, s75, s3\ns_and_b32 s3, s2, 0xe8\ns_or_b32 s75, s75, s3')
    a('s_cmp_ge_u32 s52, 12\ns_cbranch_scc1 L_end')
    a('s_lshl_b32 s3, %s, 9\ns_add_u32 s62, s3, %d\ns_add_u32 s66, s14, s62\ns_addc_u32 s67, s15, 0' % ('s75' if stamps == 4 else 's2', G_FL + 384))
    a('s_mov_b32 s54, %d' % SPIN)
    a('s_lshl_b32 s3, s23, 1\ns_and_b32 s53, s22, 1\ns_add_u32 s53, s53, s3')
    a('s_mul_i32 s55, s53, 12\ns_add_u32 s55, s55, s52\ns_lshl_b32 s55, s55, 13\ns_add_u32 s55, s55, %d\ns_add_u32 s56, s55, 4096' % G_PO)
    a('s_mul_i32 s58, s52, 43\ns_lshr_b32 s58, s58, 7\ns_mul_i32 s3, s58, 3\ns_sub_u32 s3, s52, s3')
    a('s_mul_i32 s57, s53, 3\ns_add_u32 s57, s57, s3\ns_mul_i32 s57, s57, %d\ns_lshl_b32 s58, s58, 5\ns_add_u32 s57, s57, s58\ns_add_u32 s57, s57, 1024' % (16 * 1152))
    a('v_lshlrev_b32 v6, 3, v0')
    def and16(b):
        for i in range(0, 16, 4): a('s_and_b64 s[%d:%d], s[%d:%d], s[%d:%d]' % (b + i, b + 1 + i, b + i, b + 1 + i, b + 2 + i, b + 3 + i))
        a('s_and_b64 s[%d:%d], s[%d:%d], s[%d:%d]\ns_and_b64 s[%d:%d], s[%d:%d], s[%d:%d]\ns_and_b64 s[%d:%d], s[%d:%d], s[%d:%d]\ns_and_b32 s%d, s%d, s%d' % (
            b, b + 1, b, b + 1, b + 4, b + 5, b + 8, b + 9, b + 8, b + 9, b + 12, b + 13, b, b + 1, b, b + 1, b + 8, b + 9, b, b, b + 1))
    def reduce(name, nsrc, w, off, vaddr, outs, st=None):
        per = nsrc // 2; sz = 256 * w
        def ld(j): return 'buffer_load_dwordx%d %s, v%d, s[%d:%d], s%d offen offset:%d sc1' % (w, v(32 + w * j, w), vaddr, SWS, SWS + 3, 55 + j // per, sz * (j % per))
        if o['x4'] and w == 4: a('v_mul_u32_u24 v3, 1152, v1\nv_lshl_add_u32 v3, v2, 4, v3')
        else: a('v_mul_u32_u24 v3, 1152, v1\nv_lshl_add_u32 v3, v2, 3, v3')
        if o.get('dot'): a('s_mov_b32 s28, 0x00003f80\ns_mov_b32 s29, 0x3f800000')
        a('s_mov_b32 s29, 0xffff0000')
        if o['acc'] == 2: a('s_mov_b32 s28, 0x00003f80\ns_mov_b32 s31, 0x3f800000')
        if o['prog']:
            a('s_mov_b32 s63, 0')
            a('L_%s:\ns_load_dwordx%d s[84:%d], s[66:67], %d glc\ns_sub_u32 s54, s54, 1\ns_cselect_b32 s30, -1, 0\ns_waitcnt lgkmcnt(0)' % (name, nsrc, 83 + nsrc, off))
            k = nsrc; sh = 1
            while k > 1:
                for i in range(0, nsrc, 2 * sh):
                    if sh <= 4: a('s_lshl%d_add_u32 s%d, s%d, s%d' % (sh, 84 + i, 84 + i + sh, 84 + i))
                    else: a('s_lshl_b32 s%d, s%d, %d\ns_or_b32 s%d, s%d, s%d' % (84 + i + sh, 84 + i + sh, sh, 84 + i, 84 + i, 84 + i + sh))
                k //= 2; sh *= 2
            a('s_or_b32 s84, s84, s30\ns_and_b32 s84, s84, %d\ns_andn2_b32 s85, s84, s63\ns_cbranch_scc0 L_%s\ns_or_b32 s63, s63, s84' % ((1 << nsrc) - 1, name))
            for j in range(nsrc):
                a('s_bitcmp1_b32 s85, %d\ns_cbranch_scc0 L_%s_%d\n%s\nL_%s_%d:' % (j, name, j, ld(j), name, j))
            a('s_cmp_lg_u32 s63, %d\ns_cbranch_scc1 L_%s' % ((1 << nsrc) - 1, name))
            if st: st('flags ok')
            a('s_waitcnt vmcnt(0)')
        else:
            own = o['own'] and w == 4
            oe = own and o['oe'] and o['xe'] in ('E', 'G', 'H') and o['atom']
            if o['far']: a('s_branch L_far_%s\n.fill 300, 4, 0xbf800000\n.p2align 6\nL_far_%s:' % (name, name))
            a(';WARM_ON')
            if o['xe']: a('s_barrier')
            if oe: a('ds_read_b128 v[32:35], v27')
            pm = o['bm'] >= (2 if w == 2 else 1) and o['bm'] != 3 or o['bm'] == 3 and w == 2
            full = (1 << nsrc) - 1
            if pm:
                a('s_mov_b32 s64, 0')
                a('L_%s:\ns_load_dword s84, s[66:67], %d glc\ns_sub_u32 s54, s54, 1\ns_cselect_b32 s30, %d, 0\ns_waitcnt lgkmcnt(0)' % (name, off, full))
                a('s_or_b32 s84, s84, s30\ns_andn2_b32 s85, s84, s64\ns_cbranch_scc0 L_%s\ns_mov_b32 s64, s84' % name)
                for j in range(nsrc):
                    a('s_bitcmp1_b32 s85, %d\ns_cbranch_scc0 L_%s_%d\n%s\nL_%s_%d:' % (j, name, j, 'ds_read_b128 v[32:35], v27' if own and j == 0 else ld(j), name, j))
                a('s_cmp_lg_u32 s64, %d\ns_cbranch_scc1 L_%s\ns_waitcnt vmcnt(0)' % (full, name))
                if o['sent'] and w == 2: a('s_mov_b32 s63, 0\ns_branch L_sum')
            else: gpoll(name, full if o['bm'] else nsrc - (1 if oe else 0), off)
            if stamps == 4: a('s_memrealtime s[68:69]')
            if st: st('flags ok')
            if o['sent'] and w == 2: a('s_mov_b32 s63, 0\nL_again:')
            if not pm or w == 2:
                for j in range(nsrc):
                    if j or not own: a(ld(j))
                if own and not oe: a('ds_read_b128 v[32:35], v27')
            if pm and w == 2: a('L_sum:')
        for j in range(nsrc):
            if not o['prog'] and not (oe and j == 0): a(W0 if own and j == 0 else 's_waitcnt vmcnt(%d)' % (nsrc - 1 - j))
            if o['acc'] == 1:
                b_ = 32 + w * j; tmp = 16 + 4 * (j & 1)
                for t in range(w): a('v_lshlrev_b32 v%d, 16, v%d' % ((tmp if j else 8) + t, b_ + t))
                for t in range(w): a('v_and_b32 v%d, s29, v%d' % ((b_ if j else 12) + t, b_ + t))
                if j:
                    for t in range(0, w, 2): a('v_pk_add_f32 v[%d:%d], v[%d:%d], v[%d:%d]' % (8 + t, 9 + t, 8 + t, 9 + t, tmp + t, tmp + t + 1))
                    for t in range(0, w, 2): a('v_pk_add_f32 v[%d:%d], v[%d:%d], v[%d:%d]' % (12 + t, 13 + t, 12 + t, 13 + t, b_ + t, b_ + t + 1))
                continue
            if o['acc'] == 2:
                b_ = 32 + w * j
                for t in range(w): a('v_dot2_f32_bf16 v%d, v%d, s28, %s' % (8 + t, b_ + t, 'v%d' % (8 + t) if j else '0'))
                for t in range(w): a('v_dot2_f32_bf16 v%d, v%d, s31, %s' % (12 + t, b_ + t, 'v%d' % (12 + t) if j else '0'))
                if j == nsrc - 1: a('s_nop 2')
                continue
            for t in range(w):
                src = 32 + w * j + t
                if j == 0: a('v_lshlrev_b32 v%d, 16, v%d\nv_and_b32 v%d, s29, v%d' % (8 + 2 * t, src, 9 + 2 * t, src))
                elif o.get('dot'): a('v_dot2_f32_bf16 v%d, v%d, s28, v%d\nv_dot2_f32_bf16 v%d, v%d, s29, v%d' % (8 + 2 * t, src, 8 + 2 * t, 9 + 2 * t, src, 9 + 2 * t))
                else: a('v_lshlrev_b32 v16, 16, v%d\nv_and_b32 v17, s29, v%d\nv_pk_add_f32 v[%d:%d], v[%d:%d], v[16:17]' % (src, src, 8 + 2 * t, 9 + 2 * t, 8 + 2 * t, 9 + 2 * t))
        if o['sent'] and w == 2: a('v_cmp_u_f32 vcc, v8, v%d\n' % (9 if o['acc'] else 10) + 's_cbranch_vccnz L_retry\nL_accept:')
        if stamps == 4: a('s_memrealtime s[70:71]')
        for t in range(w): a('v_cvt_pk_bf16_f32 v%d, v%d, v%d' % ((8 + t, 8 + t, 12 + t) if o['acc'] else (8 + t, 8 + 2 * t, 9 + 2 * t)))
        if w == 4 and o['x4']:
            a('v_permlane32_swap_b32 v8, v10\nv_permlane32_swap_b32 v9, v11\nv_permlane16_swap_b32 v8, v10\nv_permlane16_swap_b32 v9, v11')
            a('buffer_store_dwordx4 v[8:11], v3, s[%d:%d], %s offen %s' % (SOUT, SOUT + 3, outs, o['outsc']))
        else:
            for t in range(w // 2): a('buffer_store_dwordx2 v[%d:%d], v3, s[%d:%d], %s offen offset:%d %s' % (8 + 2 * t, 9 + 2 * t, SOUT, SOUT + 3, outs, 32 * t, o['outsc']))
        a(';WARM_OFF')
        if stamps >= 4:
            a('s_waitcnt vmcnt(0)\ns_memrealtime s[72:73]\ns_waitcnt lgkmcnt(0)\nv_mov_b32 v31, 0\ns_lshl_b32 s3, s2, 9\ns_mul_i32 s74, s20, 24\ns_add_u32 s3, s3, s74\ns_add_u32 s3, s3, %d' % (STAMP_OFF + 8 * 50 - 96))
            for i in range(3) if stamps == 4 else [2]:
                a('v_mov_b32 v254, s%d\nv_mov_b32 v255, s%d' % (68 + 2 * i, 69 + 2 * i))
                a('buffer_store_dwordx2 v[254:255], v31, s[%d:%d], s3 offen offset:%d' % (SWS, SWS + 3, 8 * i))
    if stamps == 4:
        for w_, nm in enumerate(['odd', 'r0', 'r1', 'r2']):
            for i, x_ in enumerate(['flags', 'summed', 'end']): a('; stamp %d %s %s' % (50 + 3 * w_ + i, nm, x_))
    reduce('op', 16, 2, 0, 6, 's57')
    a('s_endpgm')
    if o['sent']:
        a('L_retry:\ns_cmp_lg_u32 s63, 0\ns_cbranch_scc1 L_accept\ns_mov_b32 s63, 1\ns_mov_b32 s54, %d' % SPIN)
        if stamps == 5: a('v_mov_b32 v20, 160\nv_mov_b32 v21, 1\ns_mov_b64 exec, 1\nglobal_atomic_add v20, v21, s[12:13] sc1\ns_mov_b64 exec, -1')
        gpoll('oq', 0xffff if o['bm'] else 16, 64)
        a('s_branch L_again')
    if o['padC']: a('.fill %d, 4, 0xbf800000' % o['padC'])
    a('L_comp:')
    lg = Cnt(a, 'lgkmcnt', 15)
    stC('C entry', 3)
    XA, WA, VA, OVA, OA, QA, FRA, FUA, FV, FC, PFA = 10, 12, 16, 18, 20, 21, 22, 23, 24, 27, 31
    A = 32; F = [80, 108]; B = 136; C = 184; VWO = 232; SP = 244
    KF = B; QF = 80; S = 96; P = SP; KA = 184; UA = 254; QT = 192
    a('v_bfe_u32 v3, v0, 2, 2\nv_and_b32 v4, 3, v0')
    a('s_lshr_b32 s18, s20, 1\ns_and_b32 s17, s20, 1')
    a(H0)
    a('v_lshrrev_b32 v7, 1, v1\nv_xor_b32 v7, v7, v2\nv_lshlrev_b32 v7, 4, v7\nv_lshl_add_u32 v5, v1, 7, v7\nv_xor_b32 v6, 64, v5')
    a('s_mul_i32 s3, s18, 6144\ns_add_u32 s3, s3, %d' % L_X0)
    a('v_add_u32 v%d, s3, v5\nv_add_u32 v%d, s3, v6' % (XA, XA + 1))
    a('s_add_u32 s3, s3, %d\nv_add_u32 v%d, s3, v5\nv_add_u32 v%d, s3, v6' % (L_V - L_X0, VA, VA + 1))
    a('s_and_b32 s3, s22, 1\ns_mul_i32 s3, s3, 6144\ns_add_u32 s3, s3, %d' % L_V)
    a('v_add_u32 v%d, s3, v5\nv_add_u32 v%d, s3, v6' % (OVA, OVA + 1))
    a('v_and_b32 v7, 1, v2\nv_lshl_add_u32 v7, v7, 2, v3\ns_lshl_b32 s3, s17, 2\nv_xor_b32 v7, s3, v7')
    a('v_lshl_add_u32 v5, v2, 3, v3\nv_lshlrev_b32 v8, 8, v5\nv_lshl_add_u32 v8, v4, 3, v8')
    assert L_W == 0
    for t in range(4): a('v_xor_b32 v9, %d, v7\nv_lshl_add_u32 v%d, v9, 5, v8' % (t, WA + t))
    a('v_and_b32 v7, 1, v2\nv_lshrrev_b32 v8, 1, v3\nv_lshl_add_u32 v7, v7, 1, v8\nv_xor_b32 v7, s20, v7')
    a('v_lshlrev_b32 v8, 7, v5\nv_lshl_add_u32 v8, v4, 3, v8\nv_lshl_add_u32 v%d, v7, 5, v8' % OA)
    a('s_mul_i32 s3, s18, 12288\ns_lshl_b32 s19, s17, 11\ns_add_u32 s3, s3, s19\ns_add_u32 s3, s3, %d' % L_Q)
    a('v_lshlrev_b32 v25, 4, v0\nv_lshlrev_b32 v26, 3, v0\nv_add_u32 v%d, s3, v%d' % (QA, 26 if o['q64'] else 25))
    if o['q64'] == 3: a('v_lshrrev_b32 v7, 1, v2\nv_lshl_add_u32 v7, v7, 4, v1\nv_lshlrev_b32 v7, 4, v7\nv_and_b32 v8, 1, v2\nv_lshl_add_u32 v7, v8, 3, v7\nv_add_u32 v%d, s3, v7' % QA)
    a('s_and_b32 s59, s2, 0xf8\ns_lshl_b32 s48, s20, 1\ns_add_u32 s59, s59, s48\ns_mul_i32 s56, s59, 24576\ns_add_u32 s56, s56, %d\ns_add_u32 s57, s56, 24576' % G_PM)
    a('s_xor_b32 s48, s48, s21\ns_lshl_b32 s3, s48, 10\ns_add_u32 s56, s56, s3\ns_xor_b32 s3, s3, 1024\ns_add_u32 s57, s57, s3')
    if o['own']:
        a('s_cmp_eq_u32 s48, 0\ns_cselect_b32 s56, 0x7ff00000, s56\ns_cselect_b64 s[30:31], -1, 0\ns_cmp_eq_u32 s48, 1\ns_cselect_b32 s57, 0x7ff00000, s57\ns_cselect_b64 s[32:33], -1, 0\nv_add_u32 v27, %d, v25' % L_F)
    a('s_lshl_b32 s3, s23, 1\ns_and_b32 s54, s22, 1\ns_add_u32 s3, s3, s54\ns_mul_i32 s3, s3, 12\ns_mul_i32 s54, s20, 3\ns_add_u32 s3, s3, s54\ns_lshl_b32 s58, s3, 13')
    a('s_lshl_b32 s3, s21, 1\ns_lshr_b32 s55, s22, 1\ns_add_u32 s55, s55, s3\ns_lshl_b32 s3, s55, 9\ns_add_u32 s58, s58, s3\ns_add_u32 s58, s58, %d' % G_PO)
    a('v_and_b32 v5, 7, v0\nv_lshrrev_b32 v6, 3, v0')
    a('v_add_u32 v7, s59, v5\nv_lshlrev_b32 v7, 9, v7\n' + ('s_mov_b32 s3, %d' % (G_FL + MOFF) if o['atom'] else 's_lshl_b32 s3, s21, 2\ns_add_u32 s3, s3, %d' % (G_FL + MOFF)) + '\nv_add_u32 v7, s3, v7')
    a('s_sub_u32 s54, s54, 2\nv_add_u32 v8, s54, v5\nv_lshrrev_b32 v9, 1, v8\nv_and_b32 v8, 1, v8\nv_lshl_add_u32 v8, v8, 4, v9\ns_and_b32 s3, s2, 0xe8\nv_add_u32 v8, s3, v8\nv_lshlrev_b32 v8, 9, v8')
    a(('s_mov_b32 s3, %d' if o['atom'] else 's_lshl_b32 s3, s55, 2\ns_add_u32 s3, s3, %d') % (G_FL + 128 + OOFF) + '\nv_add_u32 v8, s3, v8\nv_mov_b32 v9, 0x7ff00000')
    a('v_lshl_add_u32 v7, v6, 6, v7\nv_lshl_add_u32 v8, v6, 6, v8\nv_cmp_gt_u32 vcc, %d, v6\nv_cndmask_b32 v5, 7, v5, vcc' % o['rep'])
    if o['own'] and o['oe'] and o['xe'] in ('E', 'G', 'H') and o['atom']: a('v_cmp_ne_u32 vcc, s48, v5\nv_cndmask_b32 v7, v9, v7, vcc')
    a('v_cmp_gt_u32 vcc, 5, v5\nv_cndmask_b32 v8, v9, v8, vcc\nv_cmp_gt_u32 vcc, 2, v5\nv_cndmask_b32 v30, v8, v7, vcc\nv_cndmask_b32 v28, v9, v7, vcc\nv_mov_b32 v29, 1')
    if o['bm']: a('v_xor_b32 v7, s48, v5\nv_mov_b32 v8, s55\nv_cndmask_b32 v7, v8, v7, vcc\nv_lshlrev_b32 v29, v7, v29')
    if 'g' in o['hack']: a('s_mov_b32 s56, 0x7ff00000\ns_mov_b32 s57, s56\ns_mov_b32 s58, s56')
    a('s_mov_b32 s52, s20')
    def unit_setup():
        a('s_cmp_ge_u32 s52, 3\ns_cselect_b32 s3, 12288, 0\ns_add_u32 s3, s3, %d' % L_K)
        if o['q64'] == 3:
            a('v_xor_b32 v7, v1, v2\nv_lshlrev_b32 v7, 4, v7\nv_lshl_add_u32 v7, v1, 8, v7')
            for kk in range(4): a('v_xor_b32 v8, %d, v7\nv_add_u32 v%d, s3, v8' % (64 * kk, KA + kk))
        else:
            a('v_lshrrev_b32 v7, 1, v2\nv_xor_b32 v7, v1, v7\nv_lshlrev_b32 v7, 4, v7\nv_lshl_add_u32 v7, v1, 8, v7\nv_and_b32 v8, 1, v2\nv_lshl_add_u32 v7, v8, 3, v7')
            for j in range(8): a('v_xor_b32 v8, %d, v7\nv_add_u32 v%d, s3, v8' % (32 * j, KA + j))
        a('s_lshl_b32 s3, s52, 12\ns_add_u32 s3, s3, %d\nv_add_u32 v%d, s3, v%d' % (L_Q, UA, 26 if o['q64'] in (1, 2) else 25))
        a('s_mov_b32 s50, 0x%x\ns_mov_b32 s51, s50' % f2i(128 ** -0.5 * math.log2(math.e)))
        a('s_mul_i32 s3, s52, 1536\ns_mul_i32 s49, s2, 9216\ns_add_u32 s49, s49, s3\ns_add_u32 s49, s49, %d' % G_P)
    def k_reads(late=False):
        if o['klate'] and not late: return []
        if o['q64'] == 3: return ['ds_read_b128 %s, v%d offset:%d' % (v(KF + 16 * kt + 4 * kk, 4), KA + kk, 4096 * kt) for kk in range(4) for kt in range(3)]
        return ['ds_read_b64 %s, v%d offset:%d' % (v(KF + 16 * kt + 2 * j, 2), KA + j, 4096 * kt) for j in range(8) for kt in range(3)]
    unit_setup()
    a(W0)
    srd(SWS, 14, 'ws')
    def wreads(st, off, wa=WA): return ['ds_read_b64_tr_b16 %s, v%d offset:%d' % (v(st + 4 * t + 2 * hh, 2), wa + t, off + 1024 * hh) for t in range(4) for hh in range(2)]
    def reads_A(n, ks, st=None):
        st = st or F[ks]
        return ['ds_read_b128 %s, v%d offset:%d' % (v(st + 16 + 4 * q, 4), XA + ks, XOFF[n % 3] + 2048 * q) for q in range(3)] + wreads(st, 16384 * (n % 3) + 8192 * ks)
    ORD = [(t, q if t % 2 == 0 else 2 - q) for t in range(4) for q in range(3)]
    def mfma(acc, ks, first, swap, od=None):
        out = []
        for t, q in od or ORD:
            d = v(acc + 4 * (3 * t + q), 4); x = v(F[ks] + 4 * t, 4); y = v(F[ks] + 16 + 4 * q, 4)
            if swap: x, y = y, x
            out.append(MF % (d, x, y, '0' if first else d))
        return out
    def cvt(d, s_): return ['v_cvt_pk_bf16_f32 v%d, v%d, v%d' % (d, s_, s_ + 1), 'v_cvt_pk_bf16_f32 v%d, v%d, v%d' % (d + 1, s_ + 2, s_ + 3)]
    def ds(txt, tag):
        def f(): a(txt); lg.issue(tag)
        return f
    def step(m, dsops, extra=(), waits=None, pre=(), xstart=0, dstart=0):
        n = len(m); per = [[] for _ in range(n)]
        for i, x_ in enumerate(pre): per[i].append(x_)
        nd = n - dstart
        for i, x_ in enumerate(dsops): per[dstart + (i if len(dsops) <= nd else i * nd // len(dsops))].append(x_)
        nx = n - xstart
        for i, x_ in enumerate(extra): per[xstart + (i * nx // len(extra))].append(x_)
        for i in range(n):
            if waits and i in waits: lg.wait(waits[i])
            a(m[i]); run(per[i])
    stC('C at B0', 3)
    a('s_barrier')
    stC('B0')
    def tA(n, ks): return [ds(x_, 'a%d%d%s' % (n, ks, 'lo' if i < 7 else 'hi')) for i, x_ in enumerate(reads_A(n, ks))]
    if o['atune']:
        bg = o['atune']
        run(tA(0, 0))
        for n in range(7):
            kr = [ds(x_, 'k') for x_ in k_reads()[6 * (n - 3):6 * (n - 2)]] if 3 <= n < 7 else []
            m = mfma(A, 0, n == 0, False)
            step(m[:10], tA(n, 1), waits={0: 'a%d0lo' % n, 6: 'a%d0hi' % n}); step(m[10:], [])
            m = mfma(A, 1, False, False)
            step(m[:bg], [], waits={0: 'a%d1lo' % n})
            lg.wait_all(); a('s_barrier')
            r = tA(n + 1, 0)
            run(r[:1]); step(m[bg:], r[1:] + kr)
        lg.seq = []
    else: run(reads_A(0, 0))
    for n in range(7 if o['atune'] else 0, 9):
        if n == 7 and o['tm']:
            assert not o['b8a']
            F2 = 204; QT = F[1]
            a(W0)
            run(interleave(mfma(A, 0, False, False), reads_A(7, 1), 0, 2))
            a(W0); a('s_barrier'); stC('B8')
            a(';WARM_ON')
            r0, r1 = reads_A(8, 0), reads_A(8, 1, F2)
            rr = []
            for idx in ([0], [3, 4], [5, 6], [1], [2], [7, 8], [9, 10]):
                rr += [r0[i] for i in idx] + [r1[i] for i in idx]
            run(interleave(mfma(A, 1, False, False), rr, 0, 2))
            stC('end 7,1', 3)
            m = []; qw = []
            for i, (tp, q) in enumerate([(tp, q) for tp in range(2) for q in range(3)]):
                for u in range(2):
                    t = 2 * tp + u; d = v(A + 4 * (3 * t + q), 4)
                    for st in (F[0], F2): m.append(MF % (d, v(st + 4 * t, 4), v(st + 16 + 4 * q, 4), d))
                    qw += cvt(QT + 4 * i + 2 * u, A + 4 * (3 * t + q))
                    if o['q64'] and 'q' not in o['hack']: qw[-1] += '\nds_write_b64 v%d, %s offset:%d' % (QA, v(QT + 4 * i + 2 * u, 2), q * 4096 + tp * 1024 + u * 512)
                if not o['q64']: qw[-1] += '\nds_write_b128 v%d, %s offset:%d' % (QA, v(QT + 4 * i, 4), q * 4096 + tp * 1024)
            m[0] = 's_waitcnt lgkmcnt(12)\n' + m[0]; m[4] = 's_waitcnt lgkmcnt(8)\n' + m[4]; m[8] = ('s_waitcnt lgkmcnt(%d)' % (1 if o['q64'] and o['qs'] <= 6 and 'q' not in o['hack'] else 0)) + '\n' + m[8]
            run(interleave(m, qw, o['qs'], 1))
            stC('Q issued', 3)
            if stamps == 3: a(W0); stC('Q done', 3)
            break
        if n == 8: stC('end 7,1', 3)
        a(W0)
        run(interleave(mfma(A, 0, n == 0, False), (['s_barrier'] if n == 8 and o['b8a'] else []) + reads_A(n, 1), 0, 2))
        if n < 8:
            a(W0)
            a('s_barrier')
            if n == 7: stC('B8')
            run(interleave(mfma(A, 1, False, False), reads_A(n + 1, 0) + (k_reads()[8 * (n - 4):8 * (n - 3)] if 4 <= n < 7 else []), 0, 2))
        else:
            stC('end 8,0', 3)
            a(W0)
            od = [(2 * tp + u, q) for tp in range(2) for q in range(3) for u in range(2)]
            qw = []
            for i, (t, q) in enumerate(od):
                qw += cvt(QT + 2 * i, A + 4 * (3 * t + q))
                if t & 1: qw[-1] += '\nds_write_b128 v%d, %s offset:%d' % (QA, v(QT + 2 * i - 2, 4), q * 4096 + (t >> 1) * 1024)
            run(interleave(mfma(A, 1, False, False, od), qw, 6, 2))
            stC('Q issued', 3)
            if stamps == 3: a(W0); stC('Q done', 3)
    if o['uprio']: a('s_setprio %d' % o['uprio'])
    a('L_unit:')
    a(W0)
    a('s_barrier')
    stC('BQ')
    for kk in range(4):
        if o['klate']: run(k_reads(True)[3 * kk:3 * kk + 3])
        if o['q64'] == 1: a('ds_read2st64_b64 %s, v%d offset0:%d offset1:%d' % (v(QF + 4 * kk, 4), UA, 2 * kk, 2 * kk + 1))
        elif o['q64'] == 2: a('ds_read_b64 %s, v%d offset:%d\nds_read_b64 %s, v%d offset:%d' % (v(QF + 4 * kk, 2), UA, 1024 * kk, v(QF + 4 * kk + 2, 2), UA, 1024 * kk + 512))
        else: a('ds_read_b128 %s, v%d offset:%d' % (v(QF + 4 * kk, 4), UA, 1024 * kk))
    for kk in range(4):
        a('s_waitcnt lgkmcnt(%d)' % ((3 - kk) * (4 if o['klate'] else 2 if o['q64'] == 2 else 1)))
        for kt in range(3): a(MF % (v(S + 4 * kt, 4), v(KF + 16 * kt + 4 * kk, 4), v(QF + 4 * kk, 4), v(S + 4 * kt, 4) if kk else '0'))
    if 's' in o['hack']: a('s_branch L_hs_skip')
    if 'h' in o['hack']: a('s_cmp_ge_u32 s20, 4\ns_cbranch_scc1 L_hs_skip')
    x, y = 6, 7
    a('v_max3_f32 v6, v%d, v%d, v%d\nv_max3_f32 v7, v%d, v%d, v%d' % (S, S + 1, S + 2, S + 3, S + 4, S + 5))
    a('v_max3_f32 v6, v6, v%d, v%d\nv_max3_f32 v7, v7, v%d, v%d\nv_max3_f32 v6, v6, v%d, v%d' % (S + 6, S + 7, S + 8, S + 9, S + 10, S + 11))
    def xl(op, first):
        a(first)
        a('v_permlane16_swap_b32 v6, v7\n%s v8, v6, v7\n%s v7, v6, v7\nv_permlane32_swap_b32 v8, v7\n%s v6, v8, v7' % (op, op, op))
    xl('v_max_f32', 'v_max_f32 v6, v6, v7\nv_mov_b32 v7, v6')
    a('v_mul_f32 v6, s50, v6')
    if o['pk']:
        for t in range(0, 12, 2): a('v_pk_fma_f32 v[%d:%d], v[%d:%d], s[50:51], v[6:7] op_sel_hi:[1,1,0] neg_lo:[0,0,1] neg_hi:[0,0,1]' % (S + t, S + t + 1, S + t, S + t + 1))
    else:
        for t in range(12): a('v_fma_f32 v%d, v%d, s50, -v6' % (S + t, S + t))
    for t in range(12): a('v_exp_f32 v%d, v%d' % (S + t, S + t))
    if o['pk']:
        a('v_pk_add_f32 v[6:7], v[%d:%d], v[%d:%d]\nv_pk_add_f32 v[4:5], v[%d:%d], v[%d:%d]' % (S, S + 1, S + 2, S + 3, S + 4, S + 5, S + 6, S + 7))
        a('v_pk_add_f32 v[6:7], v[6:7], v[%d:%d]\nv_pk_add_f32 v[4:5], v[4:5], v[%d:%d]\nv_pk_add_f32 v[4:5], v[4:5], v[6:7]' % (S + 8, S + 9, S + 10, S + 11))
    else:
        a('v_add_f32 v4, v%d, v%d\nv_add_f32 v5, v%d, v%d' % (S, S + 1, S + 2, S + 3))
        for t in range(4, 12, 2): a('v_add_f32 v4, v4, v%d\nv_add_f32 v5, v5, v%d' % (S + t, S + t + 1))
    xl('v_add_f32', 'v_add_f32 v6, v4, v5\nv_add_f32 v7, v4, v5')
    a('v_rcp_f32 v6, v6')
    if o['pk']:
        for t in range(0, 12, 2): a('v_pk_mul_f32 v[%d:%d], v[%d:%d], v[6:7] op_sel_hi:[1,0]' % (S + t, S + t + 1, S + t, S + t + 1))
    else:
        for t in range(12): a('v_mul_f32 v%d, v%d, v6' % (S + t, S + t))
    for t in range(6): a('v_cvt_pk_bf16_f32 v%d, v%d, v%d' % (P + t, S + 2 * t, S + 2 * t + 1))
    if o['hack']: a('L_hs_skip:')
    if 'e' not in o['hack'] and 'y' not in o['hack']:
        a('buffer_store_dwordx4 %s, v25, s[%d:%d], s49 offen sc1' % (v(P, 4), SWS, SWS + 3))
        a('buffer_store_dwordx2 %s, v26, s[%d:%d], s49 offen offset:1024 sc1' % (v(P + 4, 2), SWS, SWS + 3))
    stC('C at BP')
    a('s_barrier')
    a('s_cmp_ge_u32 s20, 4\ns_cbranch_scc1 L_help2')
    if o['cprio'] or o['uprio']: a('s_setprio %d' % o['cprio'])
    stC('BP')
    def reads_W(p, ks):
        vp = (p >> 2) * 2 + (PC(p) & 1); tg = 'w%d%d' % (p, ks)
        r = ['ds_read_b128 %s, v%d offset:%d' % (v(F[ks] + 16 + 4 * q, 4), VA + ks, 12288 * vp + 2048 * q) for q in range(3)] + (wreads(F[ks], 16384 * WSLOT['w%d' % p] + 8192 * ks) if p != 3 else wreads(F[ks], 8192 * ks, 250))
        if (p, ks) == (0, 0) and o['fine0']:
            r = [r[0], r[3], r[4], r[1], r[2]] + r[5:]
            return [ds(x_, 'f%d' % i) for i, x_ in enumerate(r)]
        return [ds(x_, tg + ('lo' if i < 7 else 'hi')) for i, x_ in enumerate(r) if i >= 3 or not (o['alt'] and p & 1)]
    def wW(p, ks, more=()): return {0: 'f2', 1: 'f3', 2: 'f4', 3: 'f6', 6: 'f8', 9: 'f10'} if (p, ks) == (0, 0) and o['fine0'] else {0: ['w%d%dlo' % (p, ks)] + list(more), 6: ['w%d%dhi' % (p, ks)]}
    def vwpos(base, i, kt): return base + ([0, 2, 4][kt] if i % 2 == 0 else [8, 10, 6][kt])
    HACC = [B, A, B, A]; HDST = [C, C, B, B]
    def cvt_W(i): return [x_ for t in range(4) for kt in range(3) for x_ in cvt(vwpos(HDST[i] + 12 * t, i, kt), HACC[i] + 4 * (3 * t + kt))]
    def xb(nm): return [('s_waitcnt vmcnt(0)\n' if nm == o['ack'] and 'w' not in o['hack'] else '') + 's_barrier'] if nm in XN else []
    def ins(lst, i, x_): return lst[:i] + [x_] + lst[i:]
    OS = [[108, 112, 116, 120, 124], [48, 52, 56, 60, 64], [80, 84, 88, 92, 96], [100, 128, 132, 68, 72]]; OACC = [[232, 236, 240], [32, 36, 40]]
    def rdO(kq):
        tg = 'os%d' % kq
        return [ds('ds_read_b128 %s, v%d offset:%d' % (v(OS[kq][kt], 4), OVA + (kq & 1), 12288 * (kq >> 1) + 2048 * kt), tg) for kt in range(3)] + \
               [ds('ds_read_b64_tr_b16 %s, v%d offset:%d' % (v(OS[kq][3 + e] + 2 * hh, 2), OA, 16384 * WSLOT['o%d' % e] + 4096 * kq + 512 * hh), tg) for e in range(2) for hh in range(2)]
    mfma_O = [MF % (v(OACC[e][kt], 4), v(OS[kq][kt], 4), v(OS[kq][3 + e], 4), v(OACC[e][kt], 4) if kq else '0') for kq in range(4) for e in range(2) for kt in range(3)]
    cvt_O = [x_ for e in range(2) for kt in range(3) for x_ in cvt(vwpos(VWO, e, kt), OACC[e][kt])]
    PFULL = [10, 11, 22, 23]; PHALF = [4, 5, 6, 7]; POF = [24, 21]; POH = [8, 9]
    padr = []
    for i in range(4):
        padr.append('s_xor_b32 s3, s53, %d\ns_mul_i32 s3, s3, 9216\ns_add_u32 s3, s3, s55' % i)
        padr.append('v_add_u32 v%d, s3, v25' % PFULL[i]); padr.append('v_add_u32 v%d, s3, v26' % PHALF[i])
        if i < 2:
            padr.append('s_add_u32 s3, s3, s54\nv_add_u32 v%d, s3, v25' % POF[i]); padr.append('v_add_u32 v%d, s3, v26' % POH[i])
    a('s_mul_i32 s55, s18, 4608\ns_and_b32 s54, s22, 1\ns_mul_i32 s54, s54, 4608\ns_sub_u32 s54, s54, s55\ns_add_u32 s55, s55, %d\ns_lshr_b32 s53, s16, 1\ns_xor_b32 s53, s53, s22\ns_xor_b32 s53, s53, 3' % L_P)
    def preads(dst, fa, ha, qt, tag):
        off = 1536 * qt
        return [ds('ds_read_b128 %s, v%d offset:%d' % (v(dst[0], 4), fa[0], off), tag),
                ds('ds_read_b64 %s, v%d offset:%d' % (v(dst[1], 2), ha[0], off + 1024), tag),
                ds('ds_read_b64 %s, v%d offset:%d' % (v(dst[1] + 2, 2), ha[1], off + 1024), tag),
                ds('ds_read_b128 %s, v%d offset:%d' % (v(dst[2], 4), fa[1], off), tag)]
    PB = [[80 + 4 * k for k in range(6)], [108 + 4 * k for k in range(6)], [80 + 4 * k for k in range(6)]]
    def reads_F(qt): return preads(PB[qt][:3], PFULL[:2], PHALF[:2], qt, 'p%da' % qt) + preads(PB[qt][3:], PFULL[2:], PHALF[2:], qt, 'p%db' % qt)
    run(reads_W(0, 0))
    for p in range(8):
        i = PC(p) >> 1; first = PC(p) & 1 == 0
        if p < 2: ex0, ex1 = (padr[:5], padr[5:10]) if p == 0 else (padr[10:], ['v_add_u32 v%d, %d, v%d' % (250 + t, L_P, WA + t) for t in range(4)])
        elif o['alt']:
            cv = cvt_W({3: 0, 4: 1, 7: 2}[p]) if p in (3, 4, 7) else []
            k_ = 12 if p != 4 else 10
            ex0, ex1 = cv[:k_], cv[k_:]
        else:
            cv = cvt_W(i - 1)
            ex0, ex1 = (cv[:6], cv[6:12]) if p % 2 == 0 else (cv[12:18], cv[18:])
        step(mfma(HACC[i], 0, first, True), reads_W(p, 1), extra=ex0, xstart=(4 if p % 2 == 0 else 0) if not o['alt'] else 1, waits=wW(p, 0))
        step(mfma(HACC[i], 1, False, True), reads_W(p + 1, 0) if p < 7 else reads_F(0), extra=ex1, xstart=1, waits=wW(p, 1), pre=xb('w%d' % p))
        stC('s%d' % p if p < 7 else 'VW end', 2 if p < 7 else 1)
    RACC = [[244, 248, 252, 104], [32, 36, 40, 44], [244, 248, 252, 104]]
    PK = [76, 12]; OP = [[108, 112, 116], [120, 124, 48], [52, 56, 60]]
    def fm(qt, t, k): return MF % (v(RACC[qt][t], 4), v([C, B][k // 3] + 12 * t + 4 * (k % 3), 4), v(PB[qt][k], 4), v(RACC[qt][t], 4) if k else '0')
    def store_F(qt, h):
        l_ = 'L_own%d%d' % (qt, h)
        ownw = '\ns_cmp_lg_u32 s48, %d\ns_cbranch_scc1 %s\nds_write_b128 v27, %s offset:%d\n%s:' % (h, l_, v(PK[h], 4), 1024 * qt, l_) if o['own'] else ''
        if o['own'] and o['ownx']: ownw = '\ns_mov_b64 exec, s[%d:%d]\nds_write_b128 v27, %s offset:%d\ns_mov_b64 exec, -1' % (30 + 2 * h, 31 + 2 * h, v(PK[h], 4), 1024 * qt)
        return cvt(PK[h], RACC[qt][2 * h]) + cvt(PK[h] + 2, RACC[qt][2 * h + 1]) + \
               ['buffer_store_dwordx4 %s, v25, s[%d:%d], s%d offen sc1\ns_add_u32 s%d, s%d, 8192' % (v(PK[h], 4), SWS, SWS + 3, 56 + h, 56 + h, 56 + h) + ownw]
    def flag(reg, off): return FOP + ' v29, v%d, s[%d:%d], 0 offen offset:%d sc1' % (reg, SWS, SWS + 3, off)
    m = [fm(0, t, k) for k in range(6) for t in range(4)]
    c3 = cvt_W(3)
    c3 = [c3[6 * t + j] for t in range(4) for j in (4, 5)] + [c3[6 * t + j] for t in range(4) for j in range(4)]
    step(m[:19], reads_F(1), extra=c3, xstart=3, waits={0: ['p0a'], 11: ['p0b']})
    step(m[19:], [])
    stC('R0', 2)
    m = [fm(1, t, k) for t in range(4) for k in range(6)]
    step(m[:17], reads_F(2), extra=store_F(0, 0) + store_F(0, 1), xstart=3, waits={0: ['p1a'], 3: ['p1b']})
    step(m[17:], [], extra=store_F(1, 0))
    stC('R1', 2)
    xo = o['xo']
    m = [fm(2, t, k) for t in range(4) for k in range(6)]
    step(m[:xo], [], extra=store_F(1, 1), xstart=4, waits={0: ['p2a'], 3: ['p2b']})
    seq = rdO(0) + rdO(1); k1 = min(14, 24 - xo)
    step(m[xo:], seq[:k1], extra=store_F(2, 0), xstart=max(0, 18 - xo), pre=xb('O'))
    stC('R2', 2)
    op = [x_ for qt in range(3) for x_ in preads(OP[qt], POF, POH, qt, 'po')]
    f0 = 's_waitcnt vmcnt(3)\n' + flag(28, 0)
    f1 = 's_waitcnt vmcnt(3)\n' + flag(28, 128)
    step(mfma_O[:12], seq[k1:] + rdO(2) + rdO(3), extra=store_F(2, 1) + ([flag(28, 256)] if 'c' in o['hack'] else []), xstart=4, waits={0: ['os0'], 6: ['os1']}, pre=[f0] if o['ef'] >= 1 else [])
    step(mfma_O[12:], op, waits={0: ['os2'], 6: ['os3']}, extra=[f1] if o['ef'] >= 2 else [], xstart=o['e0'])
    stC('O', 2)
    def fo(k, first): return [MF % (v(SP + 4 * qt, 4), v(VWO + 4 * k, 4), v(OP[qt][k], 4), '0' if first else v(SP + 4 * qt, 4)) for qt in range(3)]
    run(cvt_O[:6])
    step(fo(0, True), [], extra=cvt_O[6:], waits={0: ['po']})
    run(fo(2, False) + fo(1, False))
    if o['ef'] == 0: a('s_waitcnt vmcnt(4)'); a(flag(28, 0))
    if o['ef'] < 2: a('s_waitcnt vmcnt(3)'); a(flag(28, 128))
    if o['e2']: a('s_waitcnt vmcnt(1)'); a(flag(28, 256))
    if 'r' in o['hack']: a('s_mov_b64 exec, 0x1c'); a(flag(30, 256)); a('s_mov_b64 exec, -1\ns_cmp_lg_u32 s21, 3\ns_cbranch_scc1 L_hr\ns_sleep 60\nL_hr:')
    for qt in range(3):
        run(cvt(VWO + 2 * qt, SP + 4 * qt) + ['buffer_store_dwordx2 %s, v26, s[%d:%d], s58 offen sc1\ns_add_u32 s58, s58, 8192' % (v(VWO + 2 * qt, 2), SWS, SWS + 3)])
    stC('final end')
    if o['sent']:
        assert o['rep'] == 1 and o['atom']
        a('s_mov_b64 exec, 0x1c'); a(flag(30, 256 + (8 if 'r' in o['hack'] else 0))); a('s_mov_b64 exec, -1')
    if o['own']: a(W0)
    if o['xe'] == 'E': a('s_barrier')
    if not o['e2'] and 'c' not in o['hack']: a('s_waitcnt vmcnt(%d)' % ((5 if o['ef'] == 0 else 4) + o['sent'])); a(flag(28, 256))
    if o['xe'] == 'H': a('s_barrier')
    if 'b' not in o['hack']: a('s_waitcnt vmcnt(%d)' % (o['sent'] + (0 if o['e2'] or 'c' in o['hack'] else 1)))
    a('s_mov_b64 exec, 0x1c1c'); a(flag(30, 256 + 64 * o['sent'])); a('s_mov_b64 exec, -1')
    if o['xe'] == 'G': a('s_barrier')
    stC('flags sent')
    a(';WARM_OFF')
    stC.flush(0)
    a('s_endpgm')
    a('; ==== helpers')
    if o['padH']: a('.fill %d, 4, 0xbf800000' % o['padH'])
    a('L_help:')
    a('s_sub_u32 s18, s20, 5\ns_sub_u32 s52, s20, 1')
    a('v_lshlrev_b32 v25, 4, v0\nv_lshlrev_b32 v26, 3, v0')
    a('v_mov_b32 v12, 0\nv_mov_b32 v13, 0\nv_mov_b32 v14, 0\nv_mov_b32 v15, 0\nv_mov_b32 v29, 1\nv_mov_b32 v28, 0x7ff00000\nv_mov_b32 v30, v28')
    a(W0)
    srd(SWS, 14, 'ws')
    if o['sent'] and o['clr'] == 'start': clears(False, 40, 44)
    def warm_run(at):
        if o['warm']:
            for c_, x_ in enumerate(o['wat']):
                if x_ == at: a('s_mov_b64 exec, 0\ns_branch L_wchain%d\nL_wret%d:\ns_mov_b64 exec, -1' % (c_, c_))
    a('s_cmp_eq_u32 s20, 7\ns_cbranch_scc1 L_h2')
    a('s_cmp_eq_u32 s20, 5\ns_cbranch_scc1 L_h0')
    a('s_cmp_ge_u32 s2, 32\ns_cbranch_scc1 L_h0')
    a('s_lshl_b32 s3, s2, 12')
    assert G_FL == 0
    for j in range(4): a('buffer_store_dwordx4 v[12:15], v25, s[%d:%d], s3 offen offset:%d sc1' % (SWS, SWS + 3, 1024 * j))
    a('s_lshl_b32 s3, s2, 2\nv_mov_b32 v16, s3\ns_waitcnt vmcnt(0)')
    a('s_mov_b64 exec, 1\nglobal_store_dword v16, v29, s[12:13] sc1\ns_mov_b64 exec, -1')
    a('L_h0:')
    unit_setup()
    for c in range(9 + o['b8a']):
        a('s_barrier')
        if c == 4: run(k_reads())
    a('s_branch L_unit')
    a('L_h2:')
    if not o['cpfL']: code_prefetch()
    def tlb_touch():
        a('s_lshl_b32 s3, s2, 7\nv_lshlrev_b32 v7, 21, v0\nv_add_u32 v7, s3, v7\nv_add_u32 v8, 0x1f0000, v7')
        a('s_mov_b64 exec, 0x7f\nglobal_load_dword v32, v8, s[14:15]')
        if o['tlb'] in (1, 3):
            a('s_mov_b64 exec, 7\nglobal_load_dword v33, v7, s[8:9]')
            a('s_mov_b64 exec, 3\nglobal_load_dword v34, v7, s[4:5]\nglobal_load_dword v35, v7, s[6:7]')
        a('s_mov_b64 exec, 1\nglobal_load_dword v36, v7, s[10:11]\ns_mov_b64 exec, -1')
    if o['tlb'] in (1, 2): tlb_touch()
    hs = 's_load_dwordx16 s[84:99], s[12:13], 0%s\ns_load_dwordx16 s[28:43], s[12:13], 64%s'
    warm_run(-1)
    for c in range(10 + o['b8a']):
        a('s_barrier')
        warm_run(c)
        if c == o['hsbar']: a(hs % ('', ''))
        if c == o['oddpf']:
            a('s_lshl_b32 s3, s21, 5\ns_lshr_b32 s17, s2, 3\ns_add_u32 s3, s3, s17\ns_mul_i32 s3, s3, %d\ns_add_u32 s3, s3, 1024' % (16 * 1152))
            a('v_mul_u32_u24 v7, 1152, v1\nv_add_u32 v7, s3, v7\ns_mov_b64 exec, 0xffff\nglobal_load_dword v37, v7, s[8:9]\ns_mov_b64 exec, -1')
        if c == 0 and o['tlb'] == 3: tlb_touch()
        if c == 8 and o['tlb'] == 4: tlb_touch()
    a('s_mov_b32 s54, %d\nL_hs:\ns_waitcnt lgkmcnt(0)' % SPIN)
    and16(84); and16(28); a('s_and_b32 s84, s84, s28')
    a('s_cbranch_scc1 L_hsok\ns_sub_u32 s54, s54, 1\ns_cbranch_scc1 L_hsok'); a(hs % (' glc', ' glc')); a('s_branch L_hs\nL_hsok:')
    a('s_barrier')
    a('L_help2:')
    run(xb('w0'))
    a('s_mul_i32 s17, s18, 3072')
    srd(SOUT, 10, 'out')
    a('s_lshl_b32 s3, s2, 9\ns_lshl_b32 s53, s18, 7\ns_add_u32 s62, s3, s53\ns_add_u32 s66, s14, s62\ns_addc_u32 s67, s15, 0')
    a('s_and_b32 s3, s2, 0xe7\ns_lshl_b32 s3, s3, 9\ns_add_u32 s53, s53, s3\n' + ('' if o['atom'] else 's_lshl_b32 s3, s22, 2\ns_add_u32 s53, s53, s3\n') + 'v_lshlrev_b32 v21, 12, v0')
    a('s_mul_i32 s55, s2, 3\ns_add_u32 s55, s55, s18\ns_lshl_b32 s55, s55, 13\ns_add_u32 s55, s55, %d\ns_add_u32 s56, s55, 4096' % G_PM)
    a('s_lshl_b32 s59, s23, 1\ns_lshr_b32 s3, s21, 2\ns_add_u32 s59, s59, s3\ns_mul_i32 s59, s59, 3\ns_add_u32 s59, s59, s18\ns_mul_i32 s59, s59, %d' % (16 * 1152))
    a('s_lshl_b32 s3, s22, 8\ns_add_u32 s59, s59, s3\ns_and_b32 s3, s21, 3\ns_lshl_b32 s3, s3, 6\ns_add_u32 s59, s59, s3')
    def pfetch(d):
        a('s_add_u32 m0, s17, %d\ns_xor_b32 s58, s2, %d\ns_mul_i32 s58, s58, 9216\ns_add_u32 s58, s58, s17\ns_add_u32 s58, s58, %d' % (L_P + 9216 * (3 - d), d << 3, G_P))
        for j in range(3):
            if 'e' not in o['hack'] and 'x' not in o['hack']: a('buffer_load_dwordx4 v25, s[%d:%d], s58 offen offset:%d sc1 lds' % (SWS, SWS + 3, 1024 * j))
    xs = [x_ for x_ in XN[2:-1] if x_ != 'w0']
    k = 0
    while True:
        nm = xs[k]; k += 1
        run(xb(nm))
        if nm == o['ack']:
            a('s_mov_b64 exec, 15' + ('\ns_bitset0_b64 exec, s22' if o['noself'] else '') + '\n' + FOP + ' v29, v21, s[%d:%d], s53 offen sc1\ns_mov_b64 exec, -1' % (SWS, SWS + 3))
            stH('P flag sent')
        if o['ownp'] and nm == o['ownat']: pfetch(0)
        if o['sent'] and nm == o['clr']: clears()
        if nm == o['poll0']: break
    assert xs.index(o['ack']) < k and ALLN.index(xs[k]) >= ALLN.index('w4') and k < len(xs) - 1
    a('s_mov_b32 s54, %d\ns_mov_b32 s52, %d' % (SPIN, len(xs) - 1 - k))
    a('L_pp:\n' + ('s_load_dword s84' if o['atom'] else 's_load_dwordx4 s[84:87]') + ', s[66:67], 0 glc')
    a('s_cmp_eq_u32 s52, 0\ns_cbranch_scc1 L_pp1\ns_barrier\ns_sub_u32 s52, s52, 1\nL_pp1:')
    a('s_sub_u32 s54, s54, 1\ns_cbranch_scc1 L_ppok\ns_waitcnt lgkmcnt(0)')
    a(('' if o['atom'] else 's_add_u32 s84, s84, s85\ns_add_u32 s86, s86, s87\ns_add_u32 s84, s84, s86\n') + 's_cmp_%s_u32 s84, %d\ns_cbranch_scc0 L_pp\nL_ppok:' % ('le' if 'a' in o['hack'] else 'eq', 4 - o['noself']))
    stH('P flags ok')
    for d in range(o['ownp'], 4): pfetch(d)
    if o['sent'] and o['clr'] == 'p': clears()
    a('L_pb:\ns_cmp_eq_u32 s52, 0\ns_cbranch_scc1 L_pbd\ns_barrier\ns_sub_u32 s52, s52, 1\ns_branch L_pb\nL_pbd:')
    a('s_waitcnt vmcnt(%d)' % (2 if o['sent'] and o['clr'] == 'p' else 0))
    stH('P landed')
    a('s_barrier')
    if o['sent'] and o['clr'] == 'w7': clears()
    a('s_waitcnt vmcnt(0)\ns_barrier')
    if 'f' in o['hack']: a('s_endpgm')
    a('s_mov_b32 s54, %d' % SPIN)
    a('s_lshl_b32 s3, s18, 10\ns_add_u32 s3, s3, %d\nv_add_u32 v27, s3, v25' % L_F)
    reduce('mp', 8, 4, MOFF, 25, 's59', stH)
    if stamps:
        a('s_waitcnt vmcnt(0)'); stH('end'); stH.flush(7)
    a('L_end:\ns_endpgm\nL_codeend:')
    a(kernel_desc(KN, 256, 256))
    if o['warm']:
        def size(l):
            t = l.split(';')[0].strip()
            if not t or t.endswith(':') or t.startswith('.'): return 0
            return 8 if t.startswith(('v_mfma', 'ds_', 'buffer_', 'global_', 'v_cvt_pk', 'v_pk_', 'v_max3', 's_load')) else 4.6
        out = []; on = False; acc = 0; pads = []
        for l in a.lines:
            if l == ';WARM_ON': on = True; acc = 1e9; continue
            if l == ';WARM_OFF': on = False; continue
            if on and acc >= o['wstep'] and size(l) and not l.startswith(('ds_write', 's_mov_b64 exec', 'buffer_atomic', 's_cbranch', 's_cselect', 's_addc')):
                pads.append(len(out)); out.append(None); acc = 4
            out.append(l); acc += size(l)
        n = len(pads); NC = len(o['wat']); per = -(-n // NC)
        order = list(range(n - 1, -1, -1))
        for j, k in enumerate(order):
            last = (j + 1) % per == 0 or j + 1 == n
            out[pads[k]] = 'L_wp%d:\ns_cbranch_execz %s' % (k, 'L_wret%d' % (j // per) if last else 'L_wp%d' % order[j + 1])
        txt = '\n'.join(out)
        for c_ in range(NC): txt = txt.replace('L_wchain%d' % c_, 'L_wp%d' % order[c_ * per] if c_ * per < n else 'L_wret%d' % c_)
        a.lines = txt.split('\n')
    else: a.lines = [l for l in a.lines if not l.startswith(';WARM')]
    a.lines = hazard.pad(a.lines, False)
    return a.text()
if __name__ == '__main__':
    import json
    name = sys.argv[1] if len(sys.argv) > 1 else 'p8_v9'
    opt = json.loads(sys.argv[2]) if len(sys.argv) > 2 else None
    open(name + '.s', 'w').write(gen(0, opt))
    open(name + '_st.s', 'w').write(gen(1, opt))
    open(name + '_st2.s', 'w').write(gen(2, opt))
    open(name + '_st3.s', 'w').write(gen(3, opt))
    open(name + '_st4.s', 'w').write(gen(4, opt))
```

```python
import sys, math, struct
from asmlib import *
import hazard
from gen_f16 import Cnt, interleave, f2i, v

L_W = 0; L_X0 = 49152; XOFF = [0, 12288, 49152]; L_K = 73728; L_Q = 49152; L_P = 73728; L_F = 110592; L_V = 114688
G_FL = 0x0
G_P = 0x40000
G_PM = 0x400000
G_PO = 0xD00000
SX, SWQ, SK, SV, SWO, SWS, SOUT = 24, 28, 32, 36, 40, 44, 48
SPIN = 1 << 16
MF = 'v_mfma_f32_16x16x32_bf16 %s, %s, %s, %s'

HEADER = """; Kernarg layout (64 bytes, pointers only, base s[0:1]):
;
; Hand-offs: data is stored write-through (sc1); after the stores are acknowledged the producer bumps a counter of the consumer
;   (device-scope atomic); the consumer polls it and then loads with sc1.  Counters are zeroed inside the launch by workgroups 0..31,
;   which report through debug.  The last, small hand-off is signalled before the acknowledgement: its slots are first filled with
;   a NaN marker in this launch, and a consumer that still sees a NaN waits for the acknowledged counter and reads again.
;   Nothing depends on workgroup placement except speed; every poll loop is bounded.
;            | 110592 own partial chunk | 114688 V (4x12K).  Tiles are XOR-swizzled on the global side of the DMA."""

def gen(stamps=0, opt=None):
    o = dict(order='qqqKqqqqqq', win=24, codepf=True, rot='g3', pk=True, lprio=0, afterB8=1, afterBQ=4, ack='w1', poll0='w3', cprio=0, prog=False, x4=True, xo=12, ef=2, xe='H', sent=1, clr='w7', e2=0, nt={}, split=1, uprio=0, early_flag=True, outsc='', first_half=False, hsbar=4, poll='s', psleep=0, tlb=0, remap=0, oddpf=8, rot2=1, lateat=3, own=1, ownx=1, tramp=[], far=0, alt=2, klate=1, pds=0, own3=2, MQ=7168, MO=21504, OT=8192, kvmap=9, bm=0, cpfL=1, acc=1, warm=0, wstep=960, wat=[-1, 0, 1], padL=0, padC=0, padH=0, b8a=0, tm=1, q64=2, stlb=0, hack='', atom=1, rep=1, wsw=1, ownp=1, atune=0, oe=0, hsbar_=0, ownat='w3', e0=8, e1='end', m0o=1, rsl=6, qs=5, fine0=1, wqfirst=0, skip=['w0'], noself=1)
    if opt: o.update(opt)
    if o['klate']: o['order'] = 'q' * 9; o['q64'] = 3; o.setdefault('pre8', ['k0'])
    a = Asm()
    a(HEADER)
    a('; @launch grid=(256,1,1) block=(512,1,1) lds=163840')
    a(HEAD); a(kernel_begin(KN))
    def run(seq):
        for x in seq:
            if callable(x): x()
            else: a(x)
    class St:
        def __init__(s, base, n, r0): s.base = base; s.n = n; s.k = 0; s.r0 = r0
        def __call__(s, name='x', lvl=1):
            if ((stamps >= lvl and lvl < 2) or stamps == lvl) and (stamps != 5 or name in ('start', 'final end')):
                assert s.k < s.n, name
                a('; stamp %d %s' % (s.base + s.k, name))
                a('s_memrealtime s[%d:%d]' % (s.r0 + 2 * s.k, s.r0 + 1 + 2 * s.k)); s.k += 1
        def flush(s, wave):
            if stamps and s.k:
                l_ = a.label('L_nst')
                a('s_cmp_lg_u32 s20, %d\ns_cbranch_scc1 %s' % (wave, l_))
                a('s_waitcnt lgkmcnt(0)\nv_mov_b32 v31, 0\ns_lshl_b32 s3, s2, 9\ns_add_u32 s3, s3, %d' % (STAMP_OFF + 8 * s.base))
                for i in range(s.k):
                    a('v_mov_b32 v254, s%d\nv_mov_b32 v255, s%d' % (s.r0 + 2 * i, s.r0 + 1 + 2 * i))
                    a('buffer_store_dwordx2 v[254:255], v31, s[%d:%d], s3 offen offset:%d' % (SWS, SWS + 3, 8 * i))
                a(l_ + ':')
    stC = St(0, 21, 60); stL = St(24, 17, 68); stH = St(44, 6, 32)
    W0 = 's_waitcnt lgkmcnt(0)'
    KL = o['kvmap'] - 9; KJ = 1 << KL
    def kvbase(dst):
        src = 's21'
        if KL == 0: return 's_lshl_b32 %s, s21, 1' % dst
        if KL == 3: return 's_mov_b32 %s, s21' % dst
        return 's_and_b32 %s, s21, %d\ns_add_u32 %s, %s, s21' % (dst, 7 & ~(KJ - 1), dst, dst)
    def PC(p): return (p & 4) | ((p & 1) << 1) | ((p >> 1) & 1) if o['alt'] else p
    FOP = 'buffer_atomic_add' if o['atom'] else 'buffer_store_dword'
    MOFF = (4 if o['rep'] > 1 else 64) if o['atom'] else 32
    OOFF = 0
    assert o['rep'] in (1, 2) and (o['atom'] or o['rep'] == 1)
    stC('start')
    a('s_cmp_ge_u32 s2, 256\ns_cbranch_scc1 L_end')
    a('s_load_dwordx2 s[%d:%d], s[0:1], %d' % (SX, SX + 1, SLOT['x']))
    a('s_load_dwordx2 s[%d:%d], s[0:1], %d' % (SWQ, SWQ + 1, SLOT['wq']))
    a('s_load_dwordx4 s[4:7], s[0:1], %d' % SLOT['k'])
    a('s_load_dwordx8 s[8:15], s[0:1], %d' % SLOT['wo'])
    if o['remap'] == 1: a('s_lshr_b32 s3, s2, 2\ns_and_b32 s3, s3, 0x18\ns_xor_b32 s2, s2, s3')
    if o['remap'] == 2: a('s_lshr_b32 s3, s2, 3\ns_and_b32 s3, s3, 0x18\ns_lshl_b32 s21, s2, 2\ns_and_b32 s21, s21, 0xe0\ns_and_b32 s2, s2, 7\ns_or_b32 s2, s2, s3\ns_or_b32 s2, s2, s21')
    if o['remap'] == 3: a('s_xor_b32 s2, s2, 0x18')
    if o['remap'] == 4: a('s_bfe_u32 s3, s2, 0x10002\ns_and_b32 s21, s2, 3\ns_lshl1_add_u32 s3, s21, s3\ns_and_b32 s2, s2, 0xf8\ns_or_b32 s2, s2, s3')
    if o['remap'] == 5: a('s_xor_b32 s2, s2, 1')
    a('v_lshrrev_b32 v1, 6, v0\nv_and_b32 v0, 63, v0\nv_readfirstlane_b32 s20, v1')
    if o['wsw']: a('s_xor_b32 s20, s20, 4')
    a('s_and_b32 s21, s2, 7\ns_bfe_u32 s22, s2, 0x20003\ns_lshr_b32 s23, s2, 5')
    a('v_and_b32 v1, 15, v0\nv_lshrrev_b32 v2, 4, v0')
    def srd(r, src, n):
        if src is not None: a('s_mov_b32 s%d, s%d\ns_mov_b32 s%d, s%d' % (r, src, r + 1, src + 1))
        a('s_mov_b32 s%d, %d\ns_mov_b32 s%d, 0x20000' % (r + 2, SIZES[n], r + 3))
    H0 = 's_and_b32 s16, s22, 2\ns_add_u32 s16, s16, s22\ns_xor_b32 s16, s16, s23'
    if o['rot2'] == 1: H0 = 's_and_b32 s16, s22, 2\ns_xor_b32 s16, s16, s23\ns_and_b32 s16, s16, 3\ns_lshl_b32 s16, s16, 1'
    if o['rot2'] == 2: H0 = 's_and_b32 s16, s22, 2\ns_lshl_b32 s16, s16, 1\ns_xor_b32 s16, s16, s23'
    if o['rot2'] == 3: H0 = 's_and_b32 s16, s23, 3\ns_lshl_b32 s16, s16, 1\ns_and_b32 s3, s22, 2\ns_add_u32 s3, s3, s22\ns_xor_b32 s16, s16, s3'
    if o['rot2'] == 4: H0 = 's_lshr_b32 s16, s22, 1\ns_xor_b32 s16, s16, s23\ns_and_b32 s16, s16, 1\ns_lshl_b32 s16, s16, 2'
    if o['alt'] == 1: H0 = 's_xor_b32 s16, s22, s23\ns_and_b32 s3, s16, 2\ns_and_b32 s16, s16, 3\ns_add_u32 s16, s16, s3'
    if o['alt'] == 2: H0 = 's_and_b32 s16, s22, 2\ns_xor_b32 s16, s16, s23\ns_and_b32 s3, s16, 2\ns_and_b32 s16, s16, 3\ns_add_u32 s16, s16, s3'
    for i_ in range(len(o['tramp'])): a('s_cmp_eq_u32 s20, %d\ns_cbranch_scc1 L_tr%d' % (i_, i_))
    a('s_cmp_lt_u32 s20, 4\ns_cbranch_scc1 L_comp')
    a('s_cmp_gt_u32 s20, 4\ns_cbranch_scc1 L_help')
    def gpoll(name, nw, off):
        sl = ('s_sleep %d\n' % o['psleep']) if o['psleep'] else ''
        if o['rep'] == 2:
            a(W0 + '\ns_mov_b64 s[84:85], 0\ns_load_dword s85, s[66:67], %d glc\ns_sleep %d' % (off + 64, o['rsl']))
            a('L_%s:' % name)
            for r_ in range(2):
                a('s_load_dword s%d, s[66:67], %d glc\ns_waitcnt lgkmcnt(1)\ns_max_u32 s30, s84, s85\ns_cmp_ge_u32 s30, %d\ns_cbranch_scc1 L_%sok' % (84 + r_, off + 64 * r_, nw, name))
            a('s_sub_u32 s54, s54, 1\ns_cbranch_scc0 L_%s\nL_%sok:' % (name, name))
        elif o['atom']:
            a('L_%s:\n%ss_load_dword s84, s[66:67], %d glc\ns_sub_u32 s54, s54, 1\ns_cbranch_scc1 L_%sok\ns_waitcnt lgkmcnt(0)' % (name, sl, off, name))
            a('s_cmp_lt_u32 s84, %d\ns_cbranch_scc1 L_%s\nL_%sok:' % (nw, name, name))
        elif o['poll'] == 'p':
            a(W0)
            for i in range(0, nw, 2): a('s_mov_b64 s[%d:%d], 0' % (84 + i, 85 + i))
            a('L_%s:\ns_load_dwordx%d s[84:%d], s[66:67], %d glc\n%ss_sub_u32 s54, s54, 1\ns_cbranch_scc1 L_%sok' % (name, nw, 83 + nw, off, sl, name))
            a('s_and_b64 s[30:31], s[84:85], s[86:87]')
            for i in range(4, nw, 2): a('s_and_b64 s[30:31], s[30:31], s[%d:%d]' % (84 + i, 85 + i))
            a('s_and_b32 s30, s30, s31\ns_cbranch_scc0 L_%s\nL_%sok:' % (name, name))
        elif o['poll'] == 's':
            a('L_%s:\n%ss_load_dwordx%d s[84:%d], s[66:67], %d glc\ns_sub_u32 s54, s54, 1\ns_cbranch_scc1 L_%sok\ns_waitcnt lgkmcnt(0)' % (name, sl, nw, 83 + nw, off, name))
            k = nw
            while k > 2:
                k //= 2
                for i in range(0, k, 2): a('s_and_b64 s[%d:%d], s[%d:%d], s[%d:%d]' % (84 + i, 85 + i, 84 + i, 85 + i, 84 + k + i, 85 + k + i))
            a('s_and_b32 s84, s84, s85\ns_cbranch_scc0 L_%s\nL_%sok:' % (name, name))
        else:
            a('v_and_b32 v19, %d, v0\nv_lshlrev_b32 v19, 2, v19' % (nw - 1))
            a('L_%s:\n%sbuffer_load_dword v18, v19, s[%d:%d], s62 offen offset:%d sc1\ns_sub_u32 s54, s54, 1\ns_cbranch_scc1 L_%sok\ns_waitcnt vmcnt(0)' % (name, sl, SWS, SWS + 3, off, name))
            a('v_cmp_ne_u32 vcc, 1, v18\ns_cbranch_vccnz L_%s\nL_%sok:' % (name, name))
    def code_prefetch():
        if o['codepf']:
            a('s_getpc_b64 s[66:67]\nL_pc:\ns_sub_u32 s66, s66, L_pc-%s\ns_subb_u32 s67, s67, 0' % KN)
            a('s_lshr_b32 s3, s2, 3\ns_lshl_b32 s3, s3, 7\nv_lshlrev_b32 v100, 12, v0\nv_add_u32 v100, s3, v100')
            a('v_mov_b32 v103, s67\nv_add_co_u32 v102, vcc, s66, v100\nv_addc_co_u32 v103, vcc, 0, v103, vcc')
            a('v_cmp_gt_u32 vcc, L_codeend-%s, v100\ns_and_saveexec_b64 s[64:65], vcc' % KN)
            a('global_load_dword v101, v[102:103], off')
            a('s_mov_b64 exec, s[64:65]')
    def clears(all12=False, va=4, vd=12):
        a('s_lshl_b32 s3, s23, 1\ns_and_b32 s58, s22, 1\ns_add_u32 s3, s3, s58\ns_mul_i32 s3, s3, 3\n' + ('' if all12 else 's_add_u32 s3, s3, s18\n') + 's_mul_i32 s58, s3, %d' % (4 * o['OT']))
        a('s_lshl_b32 s3, s21, 1\ns_lshr_b32 s59, s22, 1\ns_add_u32 s3, s3, s59\ns_lshl_b32 s3, s3, 9\ns_add_u32 s58, s58, s3\ns_add_u32 s58, s58, %d' % G_PO) if all12 else \
        a('s_lshl_b32 s3, s21, 1\ns_lshr_b32 s57, s22, 1\ns_add_u32 s3, s3, s57\ns_lshl_b32 s3, s3, 9\ns_add_u32 s58, s58, s3\ns_add_u32 s58, s58, %d' % G_PO)
        a('v_and_b32 v%d, 31, v0\nv_lshrrev_b32 v%d, 5, v0\nv_mul_u32_u24 v%d, %d, v%d\nv_lshl_add_u32 v%d, v%d, 4, v%d' % (va, va + 1, va + 1, o['OT'], va + 1, va, va, va + 1))
        for i in range(4): a('v_mov_b32 v%d, -1' % (vd + i))
        for i in range(6 if all12 else 2):
            if i: a('s_add_u32 s58, s58, %d' % (2 * o['OT']))
            a('buffer_store_dwordx4 v[%d:%d], v%d, s[%d:%d], s58 offen sc1' % (vd, vd + 3, va, SWS, SWS + 3))
            if all12: vm.issue('clr')
    a('; ==== loader: 9 chunks of x | wq (K rotated start), K, then V and wo pieces; one barrier per consumed stage')
    vm = Cnt(a, 'vmcnt', 63)
    XV, WV, OV, KV, DV, VV = 8, 12, 16, 20, 24, 28
    if o['lprio']: a('s_setprio %d' % o['lprio'])
    if o['cpfL']: code_prefetch()
    srd(SX, None, 'x'); srd(SWQ, None, 'wq')
    a('v_lshrrev_b32 v3, 3, v0\nv_and_b32 v4, 7, v0')
    def quad(base, step):
        a('v_xor_b32 v7, 64, v%d\nv_add_u32 v%d, %d, v7' % (base, base + 1, step))
        a('v_add_u32 v%d, %d, v%d\nv_add_u32 v%d, %d, v%d' % (base + 2, 2 * step, base, base + 3, 2 * step, base + 1))
    a('v_mul_u32_u24 v5, 1152, v3\nv_xor_b32 v32, v4, v2\nv_lshl_add_u32 v%d, v32, 4, v5' % XV)
    quad(XV, 8 * 1152 - 1024)
    a('v_lshlrev_b32 v6, 1, v2\nv_xor_b32 v6, v6, v1\nv_lshlrev_b32 v6, 4, v6')
    a('v_lshl_add_u32 v%d, v2, 13, v6' % WV)
    a('v_add_u32 v%d, %d, v%d' % (WV + 1, 4 * 8192 - 1024, WV))
    a('v_xor_b32 v7, 128, v%d\nv_add_u32 v%d, %d, v7\nv_add_u32 v%d, %d, v7' % (WV, WV + 2, 2 * (4 * 8192 - 1024), WV + 3, 3 * (4 * 8192 - 1024)))
    if o['rot'] == 'g3':
        a('s_add_u32 s17, s22, s23\ns_mul_i32 s3, s17, 43\ns_lshr_b32 s3, s3, 7\ns_mul_i32 s3, s3, 3\ns_sub_u32 s17, s17, s3\ns_mul_i32 s17, s17, 3')
    elif o['rot'] in ('g3x', 'g3y', 'g3b'):
        a('s_add_u32 s17, s22, s23\ns_mul_i32 s3, s17, 43\ns_lshr_b32 s3, s3, 7\ns_mul_i32 s3, s3, 3\ns_sub_u32 s17, s17, s3\ns_mul_i32 s17, s17, 3')
        if o['rot'] == 'g3x': a('s_add_u32 s17, s17, s21')
        else: a('s_lshr_b32 s3, s21, %d\ns_add_u32 s17, s17, s3' % (2 if o['rot'] == 'g3y' else 1))
        a('s_cmp_ge_u32 s17, 9\ns_cselect_b32 s3, 9, 0\ns_sub_u32 s17, s17, s3')
    elif o['rot'] == 'g4':
        a('s_add_u32 s17, s22, s23\ns_and_b32 s17, s17, 3\ns_mul_i32 s17, s17, 9\ns_lshr_b32 s17, s17, 2')
    elif o['rot'] == 'g2':
        a('s_add_u32 s17, s22, s23\ns_and_b32 s17, s17, 1\ns_mul_i32 s17, s17, 5')
    elif o['rot'] == 'g9':
        a('s_lshl_b32 s17, s22, 1\ns_add_u32 s17, s17, s23\ns_cmp_ge_u32 s17, 9\ns_cselect_b32 s3, 9, 0\ns_sub_u32 s17, s17, s3')
    else: a('s_mov_b32 s17, 0')
    a('s_mul_i32 s52, s23, 110592')
    if 'm' in o['hack']: a('s_lshl_b32 s53, s21, 9\ns_and_b32 s3, s22, 2\ns_lshl_b32 s3, s3, 11\ns_add_u32 s53, s53, s3\ns_and_b32 s3, s22, 1\ns_lshl_b32 s3, s3, 8\ns_add_u32 s53, s53, s3')
    elif 'n' in o['hack']: a('s_lshl_b32 s53, s21, 8\ns_lshl_b32 s3, s22, 11\ns_add_u32 s53, s53, s3')
    elif 'p' in o['hack']: a('s_lshl_b32 s53, s21, 10\ns_xor_b32 s3, s22, 3\ns_lshl_b32 s3, s3, 8\ns_add_u32 s53, s53, s3')
    elif KL: a(kvbase('s53') + '\ns_lshl_b32 s53, s53, 9\ns_lshr_b32 s3, s22, 1\ns_lshl_b32 s3, s3, %d\ns_add_u32 s53, s53, s3\ns_and_b32 s3, s22, 1\ns_lshl_b32 s3, s3, 8\ns_add_u32 s53, s53, s3' % o['kvmap'])
    else: a('s_lshl_b32 s53, s21, 10\ns_lshl_b32 s3, s22, 8\ns_add_u32 s53, s53, s3')
    a('s_waitcnt lgkmcnt(0)')
    stL('L kernarg')
    if o['stlb'] >= 1:
        a('s_lshl_b32 s57, s17, 19\ns_add_u32 s57, s57, s53\ns_load_dword s58, s[%d:%d], s57' % (SWQ, SWQ + 1))
    if o['stlb'] >= 2:
        a('s_mov_b32 s57, 0x200000\ns_mov_b32 s59, 0x400000')
        for base in (SWQ, 8, 4, 6): a('s_load_dword s58, s[%d:%d], 0\ns_load_dword s58, s[%d:%d], s57' % (base, base + 1, base, base + 1))
        for base in (SWQ, 8): a('s_load_dword s58, s[%d:%d], s59' % (base, base + 1))
    ndma = [0]
    def group(vreg, n, srd_, lds, tag, adv=None, dyn=None):
        seq = [('s_add_u32 m0, %s, %d' % (dyn, lds) if dyn else 's_mov_b32 m0, %d' % lds) + ('\ns_add_u32 s57, s57, %s' % adv if adv else '')]
        for j in range(n):
            def f(j=j):
                ndma[0] += 1
                if ndma[0] - 1 in o['tramp']:
                    i_ = o['tramp'].index(ndma[0] - 1)
                    a('s_branch L_ov%d\nL_tr%d:\ns_branch L_comp\nL_ov%d:' % (i_, i_, i_))
                if len(vm.seq) >= 60:
                    a('s_waitcnt vmcnt(44)'); vm.seq = vm.seq[-44:]
                a('buffer_load_dwordx4 v%d, s[%d:%d], s57 offen offset:%d %s lds' % (vreg + j, srd_, srd_ + 3, 1024 * j, o['nt'].get({SX: 'x', SWQ: 'q', SK: 'k', SV: 'v', SWO: 'o'}[srd_] + tag[-1], o['nt'].get({SX: 'x', SWQ: 'q', SK: 'k', SV: 'v', SWO: 'o'}[srd_], '')))); vm.issue(tag)
            seq.append(f)
        return seq
    def item_q(c):
        st = c % 3; tag = 'n%d' % c
        m0o = o['m0o'] and c >= o['lateat']
        sx = ['s_lshl_b32 s57, s17, 7\ns_add_u32 s57, s57, s52']
        for t in range(3): sx += group(40 + 4 * t if m0o and t else XV, 4, SX, L_X0 + XOFF[st] + 4096 * t, tag, 32 * 1152 if t and not m0o else None)
        sw = ['s_lshl_b32 s57, s17, 19\ns_add_u32 s57, s57, s53']
        for t in range(4): sw += group(52 + 4 * t if m0o and t else WV, 4, SWQ, L_W + 16384 * st + 4096 * t, tag + ('b' if c == 8 and t >= 2 and o['b8a'] else ''), 16 * 8192 if t and not m0o else None)
        seq = sw + sx if o['wqfirst'] else sx + sw
        seq += ['s_add_u32 s17, s17, 1\ns_cmp_eq_u32 s17, 9\ns_cselect_b32 s17, 0, s17']
        return seq
    def item_k():
        seq = ['s_lshr_b32 s3, s22, 1\n' + ('s_lshl_b32 s3, s3, %d\n' % KL if KL else '') + 's_add_u32 s57, s54, s3\ns_mul_i32 s57, s57, 12288']
        for t in range(6): seq += group(KV, 4, SK, L_K + 4096 * t, 'k0', None if t == 0 else (4096 if t != 3 else 16 * 12288 - 8192))
        return seq
    WSLOT = {'w0': 0, 'w1': 1, 'w2': 2, 'w3': 4.5, 'w4': 3, 'w5': 0, 'w6': 1, 'w7': 2, 'o0': 3, 'o1': 0}
    assert L_P == 4.5 * 16384
    NEED = {'w3': 1, 'w4': 2, 'w5': 3, 'w6': 5, 'w7': 6}
    L_O1 = L_P
    STAGES = ['w0', 'w1', 'o0', 'o1', 'w2', 'w3', 'w4', 'w5', 'w6', 'w7']
    def item_v(vp):
        seq = ['s_lshr_b32 s3, s16, 2\ns_xor_b32 s3, s3, %d\n' % (vp >> 1) + ('s_lshl_b32 s3, s3, %d\n' % KL if KL else '') + 's_add_u32 s57, ' + ('s63' if 'd' in o['hack'] else 's54') + ', s3\ns_mul_i32 s57, s57, 12288\ns_xor_b32 s3, s16, %d\ns_and_b32 s3, s3, 1\ns_lshl_b32 s3, s3, 7\ns_add_u32 s57, s57, s3' % (vp & 1)]
        for b in range(2):
            seq += group(VV, 4, SV, L_V + 12288 * vp + 6144 * b, 'v%d' % vp, 16 * 12288 - 8192 if b else None)
            seq += group(VV, 2, SV, L_V + 12288 * vp + 6144 * b + 4096, 'v%d' % vp, 8192)
        return seq
    def item_w(p):
        lds = int(L_W + 16384 * WSLOT['w%d' % p])
        seq = ['s_xor_b32 s3, s16, %d\n' % PC(p) + ('s_and_b32 s57, s3, 4\ns_mul_i32 s57, s57, %d\ns_add_u32 s3, s3, s57\n' % (KJ - 1) if KL else '') + 's_mul_i32 s57, s3, %d\ns_add_u32 s57, s57, s60' % (64 * 1152)]
        for t in range(4): seq += group(68 + 4 * t if o['m0o'] and t else OV, 4, SWO, lds + 4096 * t, 'w%d' % p, 16 * 1152 if t and not o['m0o'] else None)
        return seq
    def item_o(e):
        lds = L_W + 16384 * WSLOT['o%d' % e]; seq = []
        for hf in range(2):
            seq += ['s_xor_b32 s3, s16, %d\n' % (2 * e + hf) + ('s_and_b32 s57, s3, 4\ns_mul_i32 s57, s57, %d\ns_add_u32 s3, s3, s57\n' % (KJ - 1) if KL else '') + 's_mul_i32 s57, s3, %d\ns_add_u32 s57, s57, s62' % (64 * 1152)]
            for t in range(2): seq += group(DV, 4, SWO, lds + 8192 * hf + 4096 * t, 'o%d' % e, 32 * 1152 if t else None)
        return seq
    def item(nm):
        seq = {'v': item_v, 'w': item_w, 'o': item_o, 'k': lambda _: item_k()}[nm[0]](int(nm[1]))
        cut = {'v': 9, 'k': 16}.get(nm[0], 11)
        if nm[2:] == 'a': return seq[:cut] + ['s_mov_b32 s61, s57']
        if nm[2:] == 'b': return ['s_mov_b32 s57, s61'] + seq[cut:]
        return seq
    def late_setup():
        srd(SK, 4, 'k'); srd(SV, 6, 'v'); srd(SWO, 8, 'wo'); srd(SWS, 14, 'ws')
        if 'd' in o['hack']: srd(SV, SX, 'x'); srd(SWO, SX, 'x')
        if 'k' in o['hack']: srd(SK, SX, 'x')
        a('v_mul_u32_u24 v7, 1152, v2\nv_add_u32 v%d, v7, v6\nv_add_u32 v%d, %d, v%d' % (OV, OV + 1, 4 * 1152 - 1024, OV))
        a('v_xor_b32 v6, 128, v6\nv_add_u32 v7, v7, v6\nv_add_u32 v%d, %d, v7\nv_add_u32 v%d, %d, v7' % (OV + 2, 2 * (4 * 1152 - 1024), OV + 3, 3 * (4 * 1152 - 1024)))
        a('v_xor_b32 v6, v1, v2\nv_lshlrev_b32 v6, 4, v6\nv_lshl_add_u32 v%d, v2, 8, v6' % KV)
        for j in range(1, 4): a('v_xor_b32 v%d, %d, v%d' % (KV + j, 64 * j, KV))
        a('v_and_b32 v6, 1, v2\nv_lshlrev_b32 v6, 1, v6\nv_xor_b32 v6, v6, v4\nv_lshl_add_u32 v%d, v6, 4, v5' % DV)
        quad(DV, 8 * 1152 - 1024)
        a('v_lshlrev_b32 v6, 8, v3\nv_lshl_add_u32 v%d, v32, 4, v6' % VV)
        quad(VV, 8 * 256 - 1024)
        if o['m0o']:
            for base, src, n, st_ in ((40, XV, 3, 32 * 1152), (52, WV, 4, 16 * 8192), (68, OV, 4, 16 * 1152)):
                for t in range(1, n):
                    a('s_mov_b32 s3, %d' % (t * st_))
                    for j in range(4): a('v_add_u32 v%d, s3, v%d' % (base + 4 * t + j, src + j))
        a(H0)
        a('s_lshl_b32 s54, s23, 5\n' + kvbase('s3') + '\ns_add_u32 s54, s54, s3')
        if 'd' in o['hack']: a('s_and_b32 s63, s23, 1\ns_lshl_b32 s63, s63, 5')
        a(('s_mov_b32 s60, 0 ; %d' if 'd' in o['hack'] else 's_mul_i32 s60, s3, %d') % (256 * 1152))
        a('s_add_u32 s62, s60, 1024\ns_lshl_b32 s3, s22, 8\ns_add_u32 s60, s60, s3')
    nq = 0; nbar = 0; since = {}
    def bar():
        nonlocal nbar
        vm.wait('n%d' % nbar)
        if nbar in (1, 2, 3, 8): stL('L at B%d' % nbar, 2)
        if nbar < 4: stL('L at B%d' % nbar, 3)
        a('s_barrier'); nbar += 1
    for t in o['order']:
        if t == 'q':
            while nbar < nq - 1 and nq >= 3: bar()
            seq = item_q(nq)
            if o['first_half'] and nq in (1, 2) and nbar == nq - 1:
                run(seq[:16]); bar(); run(seq[16:])
            else: run(seq)
            sz = 28; nq += 1
            if nq <= 2: stL('L issued q%d' % (nq - 1), 3)
            if o['sent'] and o['clr'] == 'L%d' % nq: srd(SWS, 14, 'ws'); clears(True, 90, 92)
            if nq == o['lateat']: late_setup()
        elif t == 'K': run(item_k()); sz = 24
        elif t == 'V': run(item_v(0)); sz = 12
        elif t == 'W': run(item_v(1)); sz = 12
        for c in list(since): since[c] += sz
        if t == 'q': since[nq - 1] = 0
        while nbar < nq and since[nbar] >= o['win']: bar()
    while nbar < 8: bar()
    pre8 = o['pre8'] if 'pre8' in o else (['w0'] if 'V' in o['order'] else ['v0', 'w0'])
    assert all(it[:2] in ('k0', 'v0', 'v1', 'v2', 'v3', 'w0') for it in pre8)
    seq = [x_ for it in pre8 for x_ in item(it)]
    if o['b8a']:
        run(seq[:-10]); bar(); run(seq[-10:]); vm.wait('n8b'); a('s_barrier')
    else:
        run(seq); bar()
    XB = [('BQ', []), ('BP', ['v0', 'w0']), ('w0', ['v1', 'w1']), ('w1', ['w2']), ('w2', ['w3']), ('w3', ['v2', 'w4']),
          ('w4', ['v3', 'w5']), ('w5', ['w6']), ('w6', ['w7']), ('w7', []), ('O', ['o0', 'o1'])]
    if o['alt']:
        XB = [('BQ', []), ('BP', ['v0', 'w0']), ('w0', ['w1']), ('w1', ['v1', 'w2']), ('w2', ['w3']), ('w3', ['v2', 'w4']),
              ('w4', ['w5']), ('w5', ['v3', 'w6']), ('w6', ['w7']), ('w7', []), ('O', ['o0', 'o1'])]
    if o['klate']: XB[0] = ('BQ', ['k0'])
    for sk in o['skip']:
        i_ = [x_[0] for x_ in XB].index(sk)
        XB[i_ - 1] = (XB[i_ - 1][0], XB[i_ - 1][1] + XB[i_][1]); del XB[i_]
    XN = [x_[0] for x_ in XB]
    plan = o.get('plan') or {'B8': ['v0', 'w0'], 'BQ': ['w1', 'v1', 'w2'], 'BP': ['w3', 'v2', 'w4'], 'w1': ['w5'], 'w2': ['v3', 'w6'], 'w3': ['w7'], 'w6': ['o0'], 'w7': ['o1']}
    FREEAT = {'w0': 'B8', 'w1': 'B8', 'w2': 'BQ', 'w3': 'BP' if o['klate'] else 'BQ', 'w4': 'BP', 'w5': 'w1', 'w6': 'w2', 'w7': 'w3', 'o0': 'w5', 'o1': 'w6'}
    ALLN = ['B8', 'BQ', 'BP'] + ['w%d' % i_ for i_ in range(8)] + ['O']
    names = ['B8'] + [x_[0] for x_ in XB]
    issued = set(x_[:2] for x_ in pre8 if x_[2:] != 'a') | ({'v0'} if 'V' in o['order'] else set()) | ({'v1'} if 'W' in o['order'] else set())
    last = 'B8'
    for nm, need in XB:
        for it in plan.get(last, []):
            assert it[0] in 'vk' or ALLN.index(FREEAT[it[:2]]) <= ALLN.index(last), (it, last)
            run(item(it))
            if it[2:] != 'a': issued.add(it[:2])
        assert all(x_ in issued for x_ in need), (nm, need)
        vm.wait(need)
        stL('L at ' + nm, 2)
        a('s_barrier'); last = nm
    assert len(issued) == 14 + o['klate']
    stL('L done')
    stL.flush(4)
    if o['padL']: a('s_branch L_padl\n.fill %d, 4, 0xbf800000\nL_padl:' % o['padL'])
    if 'f' in o['hack']: a('s_endpgm')
    if o['stlb']: a(W0)
    srd(SOUT, 10, 'out')
    a('s_lshl_b32 s52, s21, 1\ns_lshr_b32 s3, s22, 1\ns_add_u32 s52, s52, s3')
    if stamps == 4: a('s_min_u32 s52, s52, 11\ns_lshr_b32 s3, s52, 1\ns_and_b32 s75, s52, 1\ns_lshl_b32 s75, s75, 4\ns_or_b32 s75, s75, s3\ns_and_b32 s3, s2, 0xe8\ns_or_b32 s75, s75, s3')
    a('s_cmp_ge_u32 s52, 12\ns_cbranch_scc1 L_end')
    a('s_lshl_b32 s3, %s, 9\ns_add_u32 s62, s3, %d\ns_add_u32 s66, s14, s62\ns_addc_u32 s67, s15, 0' % ('s75' if stamps == 4 else 's2', G_FL + 384))
    a('s_mov_b32 s54, %d' % SPIN)
    a('s_lshl_b32 s3, s23, 1\ns_and_b32 s53, s22, 1\ns_add_u32 s53, s53, s3')
    a('s_mul_i32 s55, s53, 12\ns_add_u32 s55, s55, s52\ns_mul_i32 s55, s55, %d\ns_add_u32 s55, s55, %d\ns_add_u32 s56, s55, 4096' % (o['OT'], G_PO))
    a('s_mul_i32 s58, s52, 43\ns_lshr_b32 s58, s58, 7\ns_mul_i32 s3, s58, 3\ns_sub_u32 s3, s52, s3')
    a('s_mul_i32 s57, s53, 3\ns_add_u32 s57, s57, s3\ns_mul_i32 s57, s57, %d\ns_lshl_b32 s58, s58, 5\ns_add_u32 s57, s57, s58\ns_add_u32 s57, s57, 1024' % (16 * 1152))
    a('v_lshlrev_b32 v6, 3, v0')
    def and16(b):
        for i in range(0, 16, 4): a('s_and_b64 s[%d:%d], s[%d:%d], s[%d:%d]' % (b + i, b + 1 + i, b + i, b + 1 + i, b + 2 + i, b + 3 + i))
        a('s_and_b64 s[%d:%d], s[%d:%d], s[%d:%d]\ns_and_b64 s[%d:%d], s[%d:%d], s[%d:%d]\ns_and_b64 s[%d:%d], s[%d:%d], s[%d:%d]\ns_and_b32 s%d, s%d, s%d' % (
            b, b + 1, b, b + 1, b + 4, b + 5, b + 8, b + 9, b + 8, b + 9, b + 12, b + 13, b, b + 1, b, b + 1, b + 8, b + 9, b, b, b + 1))
    def reduce(name, nsrc, w, off, vaddr, outs, st=None):
        per = nsrc // 2; sz = 256 * w
        def ld(j): return 'buffer_load_dwordx%d %s, v%d, s[%d:%d], s%d offen offset:%d sc1' % (w, v(32 + w * j, w), vaddr, SWS, SWS + 3, 55 + j // per, sz * (j % per))
        if o['x4'] and w == 4: a('v_mul_u32_u24 v3, 1152, v1\nv_lshl_add_u32 v3, v2, 4, v3')
        else: a('v_mul_u32_u24 v3, 1152, v1\nv_lshl_add_u32 v3, v2, 3, v3')
        if o.get('dot'): a('s_mov_b32 s28, 0x00003f80\ns_mov_b32 s29, 0x3f800000')
        a('s_mov_b32 s29, 0xffff0000')
        if o['acc'] == 2: a('s_mov_b32 s28, 0x00003f80\ns_mov_b32 s31, 0x3f800000')
        if o['prog']:
            a('s_mov_b32 s63, 0')
            a('L_%s:\ns_load_dwordx%d s[84:%d], s[66:67], %d glc\ns_sub_u32 s54, s54, 1\ns_cselect_b32 s30, -1, 0\ns_waitcnt lgkmcnt(0)' % (name, nsrc, 83 + nsrc, off))
            k = nsrc; sh = 1
            while k > 1:
                for i in range(0, nsrc, 2 * sh):
                    if sh <= 4: a('s_lshl%d_add_u32 s%d, s%d, s%d' % (sh, 84 + i, 84 + i + sh, 84 + i))
                    else: a('s_lshl_b32 s%d, s%d, %d\ns_or_b32 s%d, s%d, s%d' % (84 + i + sh, 84 + i + sh, sh, 84 + i, 84 + i, 84 + i + sh))
                k //= 2; sh *= 2
            a('s_or_b32 s84, s84, s30\ns_and_b32 s84, s84, %d\ns_andn2_b32 s85, s84, s63\ns_cbranch_scc0 L_%s\ns_or_b32 s63, s63, s84' % ((1 << nsrc) - 1, name))
            for j in range(nsrc):
                a('s_bitcmp1_b32 s85, %d\ns_cbranch_scc0 L_%s_%d\n%s\nL_%s_%d:' % (j, name, j, ld(j), name, j))
            a('s_cmp_lg_u32 s63, %d\ns_cbranch_scc1 L_%s' % ((1 << nsrc) - 1, name))
            if st: st('flags ok')
            a('s_waitcnt vmcnt(0)')
        else:
            own = o['own'] and w == 4
            oe = own and o['oe'] and o['xe'] in ('E', 'G', 'H') and o['atom']
            if o['far']: a('s_branch L_far_%s\n.fill 300, 4, 0xbf800000\n.p2align 6\nL_far_%s:' % (name, name))
            a(';WARM_ON')
            if o['xe']: a('s_barrier')
            if oe: a('ds_read_b128 v[32:35], v27')
            pm = o['bm'] >= (2 if w == 2 else 1) and o['bm'] != 3 or o['bm'] == 3 and w == 2
            full = (1 << nsrc) - 1
            if pm:
                a('s_mov_b32 s64, 0')
                a('L_%s:\ns_load_dword s84, s[66:67], %d glc\ns_sub_u32 s54, s54, 1\ns_cselect_b32 s30, %d, 0\ns_waitcnt lgkmcnt(0)' % (name, off, full))
                a('s_or_b32 s84, s84, s30\ns_andn2_b32 s85, s84, s64\ns_cbranch_scc0 L_%s\ns_mov_b32 s64, s84' % name)
                for j in range(nsrc):
                    a('s_bitcmp1_b32 s85, %d\ns_cbranch_scc0 L_%s_%d\n%s\nL_%s_%d:' % (j, name, j, 'ds_read_b128 v[32:35], v27' if own and j == 0 else ld(j), name, j))
                a('s_cmp_lg_u32 s64, %d\ns_cbranch_scc1 L_%s\ns_waitcnt vmcnt(0)' % (full, name))
                if o['sent'] and w == 2: a('s_mov_b32 s63, 0\ns_branch L_sum')
            else: gpoll(name, full if o['bm'] else nsrc - (1 if oe else 0), off)
            if stamps == 4: a('s_memrealtime s[68:69]')
            if st: st('flags ok')
            if o['sent'] and w == 2: a('s_mov_b32 s63, 0\nL_again:')
            if not pm or w == 2:
                for j in range(nsrc):
                    if j or not own: a(ld(j))
                if own and not oe: a('ds_read_b128 v[32:35], v27')
            if pm and w == 2: a('L_sum:')
        for j in range(nsrc):
            if not o['prog'] and not (oe and j == 0): a(W0 if own and j == 0 else 's_waitcnt vmcnt(%d)' % (nsrc - 1 - j))
            if o['acc'] == 1:
                b_ = 32 + w * j; tmp = 16 + 4 * (j & 1)
                for t in range(w): a('v_lshlrev_b32 v%d, 16, v%d' % ((tmp if j else 8) + t, b_ + t))
                for t in range(w): a('v_and_b32 v%d, s29, v%d' % ((b_ if j else 12) + t, b_ + t))
                if j:
                    for t in range(0, w, 2): a('v_pk_add_f32 v[%d:%d], v[%d:%d], v[%d:%d]' % (8 + t, 9 + t, 8 + t, 9 + t, tmp + t, tmp + t + 1))
                    for t in range(0, w, 2): a('v_pk_add_f32 v[%d:%d], v[%d:%d], v[%d:%d]' % (12 + t, 13 + t, 12 + t, 13 + t, b_ + t, b_ + t + 1))
                continue
            if o['acc'] == 2:
                b_ = 32 + w * j
                for t in range(w): a('v_dot2_f32_bf16 v%d, v%d, s28, %s' % (8 + t, b_ + t, 'v%d' % (8 + t) if j else '0'))
                for t in range(w): a('v_dot2_f32_bf16 v%d, v%d, s31, %s' % (12 + t, b_ + t, 'v%d' % (12 + t) if j else '0'))
                if j == nsrc - 1: a('s_nop 2')
                continue
            for t in range(w):
                src = 32 + w * j + t
                if j == 0: a('v_lshlrev_b32 v%d, 16, v%d\nv_and_b32 v%d, s29, v%d' % (8 + 2 * t, src, 9 + 2 * t, src))
                elif o.get('dot'): a('v_dot2_f32_bf16 v%d, v%d, s28, v%d\nv_dot2_f32_bf16 v%d, v%d, s29, v%d' % (8 + 2 * t, src, 8 + 2 * t, 9 + 2 * t, src, 9 + 2 * t))
                else: a('v_lshlrev_b32 v16, 16, v%d\nv_and_b32 v17, s29, v%d\nv_pk_add_f32 v[%d:%d], v[%d:%d], v[16:17]' % (src, src, 8 + 2 * t, 9 + 2 * t, 8 + 2 * t, 9 + 2 * t))
        if o['sent'] and w == 2: a('v_cmp_u_f32 vcc, v8, v%d\n' % (9 if o['acc'] else 10) + 's_cbranch_vccnz L_retry\nL_accept:')
        if stamps == 4: a('s_memrealtime s[70:71]')
        for t in range(w): a('v_cvt_pk_bf16_f32 v%d, v%d, v%d' % ((8 + t, 8 + t, 12 + t) if o['acc'] else (8 + t, 8 + 2 * t, 9 + 2 * t)))
        if w == 4 and o['x4']:
            a('v_permlane32_swap_b32 v8, v10\nv_permlane32_swap_b32 v9, v11\nv_permlane16_swap_b32 v8, v10\nv_permlane16_swap_b32 v9, v11')
            a('buffer_store_dwordx4 v[8:11], v3, s[%d:%d], %s offen %s' % (SOUT, SOUT + 3, outs, o['outsc']))
        else:
            for t in range(w // 2): a('buffer_store_dwordx2 v[%d:%d], v3, s[%d:%d], %s offen offset:%d %s' % (8 + 2 * t, 9 + 2 * t, SOUT, SOUT + 3, outs, 32 * t, o['outsc']))
        a(';WARM_OFF')
        if stamps >= 4:
            a('s_waitcnt vmcnt(0)\ns_memrealtime s[72:73]\ns_waitcnt lgkmcnt(0)\nv_mov_b32 v31, 0\ns_lshl_b32 s3, s2, 9\ns_mul_i32 s74, s20, 24\ns_add_u32 s3, s3, s74\ns_add_u32 s3, s3, %d' % (STAMP_OFF + 8 * 50 - 96))
            for i in range(3) if stamps == 4 else [2]:
                a('v_mov_b32 v254, s%d\nv_mov_b32 v255, s%d' % (68 + 2 * i, 69 + 2 * i))
                a('buffer_store_dwordx2 v[254:255], v31, s[%d:%d], s3 offen offset:%d' % (SWS, SWS + 3, 8 * i))
    if stamps == 4:
        for w_, nm in enumerate(['odd', 'r0', 'r1', 'r2']):
            for i, x_ in enumerate(['flags', 'summed', 'end']): a('; stamp %d %s %s' % (50 + 3 * w_ + i, nm, x_))
    reduce('op', 16, 2, 0, 6, 's57')
    a('s_endpgm')
    if o['sent']:
        a('L_retry:\ns_cmp_lg_u32 s63, 0\ns_cbranch_scc1 L_accept\ns_mov_b32 s63, 1\ns_mov_b32 s54, %d' % SPIN)
        if stamps == 5: a('v_mov_b32 v20, 160\nv_mov_b32 v21, 1\ns_mov_b64 exec, 1\nglobal_atomic_add v20, v21, s[12:13] sc1\ns_mov_b64 exec, -1')
        gpoll('oq', 0xffff if o['bm'] else 16, 64)
        a('s_branch L_again')
    if o['padC']: a('.fill %d, 4, 0xbf800000' % o['padC'])
    a('L_comp:')
    lg = Cnt(a, 'lgkmcnt', 15)
    stC('C entry', 3)
    XA, WA, VA, OVA, OA, QA, FRA, FUA, FV, FC, PFA = 10, 12, 16, 18, 20, 21, 22, 23, 24, 27, 31
    A = 32; F = [80, 108]; B = 136; C = 184; VWO = 232; SP = 244
    KF = B; QF = 80; S = 96; P = SP; KA = 184; UA = 254; QT = 192
    a('v_bfe_u32 v3, v0, 2, 2\nv_and_b32 v4, 3, v0')
    a('s_lshr_b32 s18, s20, 1\ns_and_b32 s17, s20, 1')
    a(H0)
    a('v_lshrrev_b32 v7, 1, v1\nv_xor_b32 v7, v7, v2\nv_lshlrev_b32 v7, 4, v7\nv_lshl_add_u32 v5, v1, 7, v7\nv_xor_b32 v6, 64, v5')
    a('s_mul_i32 s3, s18, 6144\ns_add_u32 s3, s3, %d' % L_X0)
    a('v_add_u32 v%d, s3, v5\nv_add_u32 v%d, s3, v6' % (XA, XA + 1))
    a('s_add_u32 s3, s3, %d\nv_add_u32 v%d, s3, v5\nv_add_u32 v%d, s3, v6' % (L_V - L_X0, VA, VA + 1))
    a('s_and_b32 s3, s22, 1\ns_mul_i32 s3, s3, 6144\ns_add_u32 s3, s3, %d' % L_V)
    a('v_add_u32 v%d, s3, v5\nv_add_u32 v%d, s3, v6' % (OVA, OVA + 1))
    a('v_and_b32 v7, 1, v2\nv_lshl_add_u32 v7, v7, 2, v3\ns_lshl_b32 s3, s17, 2\nv_xor_b32 v7, s3, v7')
    a('v_lshl_add_u32 v5, v2, 3, v3\nv_lshlrev_b32 v8, 8, v5\nv_lshl_add_u32 v8, v4, 3, v8')
    assert L_W == 0
    for t in range(4): a('v_xor_b32 v9, %d, v7\nv_lshl_add_u32 v%d, v9, 5, v8' % (t, WA + t))
    a('v_and_b32 v7, 1, v2\nv_lshrrev_b32 v8, 1, v3\nv_lshl_add_u32 v7, v7, 1, v8\nv_xor_b32 v7, s20, v7')
    a('v_lshlrev_b32 v8, 7, v5\nv_lshl_add_u32 v8, v4, 3, v8\nv_lshl_add_u32 v%d, v7, 5, v8' % OA)
    a('s_mul_i32 s3, s18, 12288\ns_lshl_b32 s19, s17, 11\ns_add_u32 s3, s3, s19\ns_add_u32 s3, s3, %d' % L_Q)
    a('v_lshlrev_b32 v25, 4, v0\nv_lshlrev_b32 v26, 3, v0\nv_add_u32 v%d, s3, v%d' % (QA, 26 if o['q64'] else 25))
    if o['q64'] == 3: a('v_lshrrev_b32 v7, 1, v2\nv_lshl_add_u32 v7, v7, 4, v1\nv_lshlrev_b32 v7, 4, v7\nv_and_b32 v8, 1, v2\nv_lshl_add_u32 v7, v8, 3, v7\nv_add_u32 v%d, s3, v7' % QA)
    if o['own3']:
        assert o['own'] and not o['oe'] and not o['bm']
        a('s_and_b32 s59, s2, 0xf8\ns_lshl_b32 s48, s20, 1\ns_add_u32 s59, s59, s48\ns_and_b32 s3, s2, 1\ns_add_u32 s3, s3, s59\ns_mul_i32 s34, s3, %d\ns_xor_b32 s3, s3, 1\ns_mul_i32 s35, s3, %d' % (o['MO'], o['MO']))
        a('s_and_b32 s3, s21, 6\ns_xor_b32 s48, s48, s3\ns_lshl_b32 s3, s48, 10\ns_add_u32 s3, s3, %d\ns_add_u32 s34, s34, s3\ns_add_u32 s35, s35, s3\ns_add_u32 s35, s35, 1024' % G_PM)
        a('s_cmp_eq_u32 s48, 0\ns_cselect_b32 s34, 0x7ff00000, s34\ns_cselect_b64 s[30:31], -1, 0\nv_add_u32 v27, %d, v25' % L_F)
        for qt in (1, 2): a('s_add_u32 s%d, s34, %d\ns_add_u32 s%d, s35, %d' % (34 + 2 * qt, qt * o['MQ'], 35 + 2 * qt, qt * o['MQ']))
    else:
        a('s_and_b32 s59, s2, 0xf8\ns_lshl_b32 s48, s20, 1\ns_add_u32 s59, s59, s48\ns_mul_i32 s56, s59, %d\ns_add_u32 s56, s56, %d\ns_add_u32 s57, s56, %d' % (o['MO'], G_PM, o['MO']))
        a('s_xor_b32 s48, s48, s21\ns_lshl_b32 s3, s48, 10\ns_add_u32 s56, s56, s3\ns_xor_b32 s3, s3, 1024\ns_add_u32 s57, s57, s3')
        if o['own']:
            a('s_cmp_eq_u32 s48, 0\ns_cselect_b32 s56, 0x7ff00000, s56\ns_cselect_b64 s[30:31], -1, 0\ns_cmp_eq_u32 s48, 1\ns_cselect_b32 s57, 0x7ff00000, s57\ns_cselect_b64 s[32:33], -1, 0\nv_add_u32 v27, %d, v25' % L_F)
    a('s_lshl_b32 s3, s23, 1\ns_and_b32 s54, s22, 1\ns_add_u32 s3, s3, s54\ns_mul_i32 s3, s3, 12\ns_mul_i32 s54, s20, 3\ns_add_u32 s3, s3, s54\ns_mul_i32 s58, s3, %d' % o['OT'])
    a('s_lshl_b32 s3, s21, 1\ns_lshr_b32 s55, s22, 1\ns_add_u32 s55, s55, s3\ns_lshl_b32 s3, s55, 9\ns_add_u32 s58, s58, s3\ns_add_u32 s58, s58, %d' % G_PO)
    a('v_and_b32 v5, 7, v0\nv_lshrrev_b32 v6, 3, v0')
    a('v_add_u32 v7, s59, v5\nv_lshlrev_b32 v7, 9, v7\n' + ('s_mov_b32 s3, %d' % (G_FL + MOFF) if o['atom'] else 's_lshl_b32 s3, s21, 2\ns_add_u32 s3, s3, %d' % (G_FL + MOFF)) + '\nv_add_u32 v7, s3, v7')
    a('s_sub_u32 s54, s54, 2\nv_add_u32 v8, s54, v5\nv_lshrrev_b32 v9, 1, v8\nv_and_b32 v8, 1, v8\nv_lshl_add_u32 v8, v8, 4, v9\ns_and_b32 s3, s2, 0xe8\nv_add_u32 v8, s3, v8\nv_lshlrev_b32 v8, 9, v8')
    a(('s_mov_b32 s3, %d' if o['atom'] else 's_lshl_b32 s3, s55, 2\ns_add_u32 s3, s3, %d') % (G_FL + 128 + OOFF) + '\nv_add_u32 v8, s3, v8\nv_mov_b32 v9, 0x7ff00000')
    a('v_lshl_add_u32 v7, v6, 6, v7\nv_lshl_add_u32 v8, v6, 6, v8\nv_cmp_gt_u32 vcc, %d, v6\nv_cndmask_b32 v5, 7, v5, vcc' % o['rep'])
    if o['own'] and o['oe'] and o['xe'] in ('E', 'G', 'H') and o['atom']: a('v_cmp_ne_u32 vcc, s48, v5\nv_cndmask_b32 v7, v9, v7, vcc')
    a('v_cmp_gt_u32 vcc, 5, v5\nv_cndmask_b32 v8, v9, v8, vcc\nv_cmp_gt_u32 vcc, 2, v5\nv_cndmask_b32 v30, v8, v7, vcc\nv_cndmask_b32 v28, v9, v7, vcc\nv_mov_b32 v29, 1')
    if o['bm']: a('v_xor_b32 v7, s48, v5\nv_mov_b32 v8, s55\nv_cndmask_b32 v7, v8, v7, vcc\nv_lshlrev_b32 v29, v7, v29')
    if 'g' in o['hack']: a('s_mov_b32 s56, 0x7ff00000\ns_mov_b32 s57, s56\ns_mov_b32 s58, s56')
    a('s_mov_b32 s52, s20')
    def unit_setup():
        a('s_cmp_ge_u32 s52, 3\ns_cselect_b32 s3, 12288, 0\ns_add_u32 s3, s3, %d' % L_K)
        if o['q64'] == 3:
            a('v_xor_b32 v7, v1, v2\nv_lshlrev_b32 v7, 4, v7\nv_lshl_add_u32 v7, v1, 8, v7')
            for kk in range(4): a('v_xor_b32 v8, %d, v7\nv_add_u32 v%d, s3, v8' % (64 * kk, KA + kk))
        else:
            a('v_lshrrev_b32 v7, 1, v2\nv_xor_b32 v7, v1, v7\nv_lshlrev_b32 v7, 4, v7\nv_lshl_add_u32 v7, v1, 8, v7\nv_and_b32 v8, 1, v2\nv_lshl_add_u32 v7, v8, 3, v7')
            for j in range(8): a('v_xor_b32 v8, %d, v7\nv_add_u32 v%d, s3, v8' % (32 * j, KA + j))
        a('s_lshl_b32 s3, s52, 12\ns_add_u32 s3, s3, %d\nv_add_u32 v%d, s3, v%d' % (L_Q, UA, 26 if o['q64'] in (1, 2) else 25))
        a('s_mov_b32 s50, 0x%x\ns_mov_b32 s51, s50' % f2i(128 ** -0.5 * math.log2(math.e)))
        a('s_mul_i32 s3, s52, 1536\ns_mul_i32 s49, s2, 9216\ns_add_u32 s49, s49, s3\ns_add_u32 s49, s49, %d' % G_P)
        if o['pds']: a('s_add_u32 s3, s3, %d\nv_add_u32 v255, s3, v25\nv_add_u32 v31, s3, v26' % (L_P + 27648))
    def k_reads(late=False):
        if o['klate'] and not late: return []
        if o['q64'] == 3: return ['ds_read_b128 %s, v%d offset:%d' % (v(KF + 16 * kt + 4 * kk, 4), KA + kk, 4096 * kt) for kk in range(4) for kt in range(3)]
        return ['ds_read_b64 %s, v%d offset:%d' % (v(KF + 16 * kt + 2 * j, 2), KA + j, 4096 * kt) for j in range(8) for kt in range(3)]
    unit_setup()
    a(W0)
    srd(SWS, 14, 'ws')
    def wreads(st, off, wa=WA): return ['ds_read_b64_tr_b16 %s, v%d offset:%d' % (v(st + 4 * t + 2 * hh, 2), wa + t, off + 1024 * hh) for t in range(4) for hh in range(2)]
    def reads_A(n, ks, st=None):
        st = st or F[ks]
        return ['ds_read_b128 %s, v%d offset:%d' % (v(st + 16 + 4 * q, 4), XA + ks, XOFF[n % 3] + 2048 * q) for q in range(3)] + wreads(st, 16384 * (n % 3) + 8192 * ks)
    ORD = [(t, q if t % 2 == 0 else 2 - q) for t in range(4) for q in range(3)]
    def mfma(acc, ks, first, swap, od=None):
        out = []
        for t, q in od or ORD:
            d = v(acc + 4 * (3 * t + q), 4); x = v(F[ks] + 4 * t, 4); y = v(F[ks] + 16 + 4 * q, 4)
            if swap: x, y = y, x
            out.append(MF % (d, x, y, '0' if first else d))
        return out
    def cvt(d, s_): return ['v_cvt_pk_bf16_f32 v%d, v%d, v%d' % (d, s_, s_ + 1), 'v_cvt_pk_bf16_f32 v%d, v%d, v%d' % (d + 1, s_ + 2, s_ + 3)]
    def ds(txt, tag):
        def f(): a(txt); lg.issue(tag)
        return f
    def step(m, dsops, extra=(), waits=None, pre=(), xstart=0, dstart=0):
        n = len(m); per = [[] for _ in range(n)]
        for i, x_ in enumerate(pre): per[i].append(x_)
        nd = n - dstart
        for i, x_ in enumerate(dsops): per[dstart + (i if len(dsops) <= nd else i * nd // len(dsops))].append(x_)
        nx = n - xstart
        for i, x_ in enumerate(extra): per[xstart + (i * nx // len(extra))].append(x_)
        for i in range(n):
            if waits and i in waits: lg.wait(waits[i])
            a(m[i]); run(per[i])
    stC('C at B0', 3)
    a('s_barrier')
    stC('B0')
    def tA(n, ks): return [ds(x_, 'a%d%d%s' % (n, ks, 'lo' if i < 7 else 'hi')) for i, x_ in enumerate(reads_A(n, ks))]
    if o['atune']:
        bg = o['atune']
        run(tA(0, 0))
        for n in range(7):
            kr = [ds(x_, 'k') for x_ in k_reads()[6 * (n - 3):6 * (n - 2)]] if 3 <= n < 7 else []
            m = mfma(A, 0, n == 0, False)
            step(m[:10], tA(n, 1), waits={0: 'a%d0lo' % n, 6: 'a%d0hi' % n}); step(m[10:], [])
            m = mfma(A, 1, False, False)
            step(m[:bg], [], waits={0: 'a%d1lo' % n})
            lg.wait_all(); a('s_barrier')
            r = tA(n + 1, 0)
            run(r[:1]); step(m[bg:], r[1:] + kr)
        lg.seq = []
    else: run(reads_A(0, 0))
    for n in range(7 if o['atune'] else 0, 9):
        if n == 7 and o['tm']:
            assert not o['b8a']
            F2 = 204; QT = F[1]
            a(W0)
            run(interleave(mfma(A, 0, False, False), reads_A(7, 1), 0, 2))
            a(W0); a('s_barrier'); stC('B8')
            a(';WARM_ON')
            r0, r1 = reads_A(8, 0), reads_A(8, 1, F2)
            rr = []
            for idx in ([0], [3, 4], [5, 6], [1], [2], [7, 8], [9, 10]):
                rr += [r0[i] for i in idx] + [r1[i] for i in idx]
            run(interleave(mfma(A, 1, False, False), rr, 0, 2))
            stC('end 7,1', 3)
            m = []; qw = []
            for i, (tp, q) in enumerate([(tp, q) for tp in range(2) for q in range(3)]):
                for u in range(2):
                    t = 2 * tp + u; d = v(A + 4 * (3 * t + q), 4)
                    for st in (F[0], F2): m.append(MF % (d, v(st + 4 * t, 4), v(st + 16 + 4 * q, 4), d))
                    qw += cvt(QT + 4 * i + 2 * u, A + 4 * (3 * t + q))
                    if o['q64'] and 'q' not in o['hack']: qw[-1] += '\nds_write_b64 v%d, %s offset:%d' % (QA, v(QT + 4 * i + 2 * u, 2), q * 4096 + tp * 1024 + u * 512)
                if not o['q64']: qw[-1] += '\nds_write_b128 v%d, %s offset:%d' % (QA, v(QT + 4 * i, 4), q * 4096 + tp * 1024)
            m[0] = 's_waitcnt lgkmcnt(12)\n' + m[0]; m[4] = 's_waitcnt lgkmcnt(8)\n' + m[4]; m[8] = ('s_waitcnt lgkmcnt(%d)' % (1 if o['q64'] and o['qs'] <= 6 and 'q' not in o['hack'] else 0)) + '\n' + m[8]
            run(interleave(m, qw, o['qs'], 1))
            stC('Q issued', 3)
            if stamps == 3: a(W0); stC('Q done', 3)
            break
        if n == 8: stC('end 7,1', 3)
        a(W0)
        run(interleave(mfma(A, 0, n == 0, False), (['s_barrier'] if n == 8 and o['b8a'] else []) + reads_A(n, 1), 0, 2))
        if n < 8:
            a(W0)
            a('s_barrier')
            if n == 7: stC('B8')
            run(interleave(mfma(A, 1, False, False), reads_A(n + 1, 0) + (k_reads()[8 * (n - 4):8 * (n - 3)] if 4 <= n < 7 else []), 0, 2))
        else:
            stC('end 8,0', 3)
            a(W0)
            od = [(2 * tp + u, q) for tp in range(2) for q in range(3) for u in range(2)]
            qw = []
            for i, (t, q) in enumerate(od):
                qw += cvt(QT + 2 * i, A + 4 * (3 * t + q))
                if t & 1: qw[-1] += '\nds_write_b128 v%d, %s offset:%d' % (QA, v(QT + 2 * i - 2, 4), q * 4096 + (t >> 1) * 1024)
            run(interleave(mfma(A, 1, False, False, od), qw, 6, 2))
            stC('Q issued', 3)
            if stamps == 3: a(W0); stC('Q done', 3)
    if o['own3']:
        a('s_and_b32 s3, s21, 1\ns_lshl_b32 s3, s3, 6')
        for t in range(4): a('v_xor_b32 v%d, s3, v%d' % (WA + t, WA + t))
    if o['uprio']: a('s_setprio %d' % o['uprio'])
    a('L_unit:')
    a(W0)
    a('s_barrier')
    stC('BQ')
    for kk in range(4):
        if o['klate']: run(k_reads(True)[3 * kk:3 * kk + 3])
        if o['q64'] == 1: a('ds_read2st64_b64 %s, v%d offset0:%d offset1:%d' % (v(QF + 4 * kk, 4), UA, 2 * kk, 2 * kk + 1))
        elif o['q64'] == 2: a('ds_read_b64 %s, v%d offset:%d\nds_read_b64 %s, v%d offset:%d' % (v(QF + 4 * kk, 2), UA, 1024 * kk, v(QF + 4 * kk + 2, 2), UA, 1024 * kk + 512))
        else: a('ds_read_b128 %s, v%d offset:%d' % (v(QF + 4 * kk, 4), UA, 1024 * kk))
    for kk in range(4):
        a('s_waitcnt lgkmcnt(%d)' % ((3 - kk) * (4 if o['klate'] else 2 if o['q64'] == 2 else 1)))
        for kt in range(3): a(MF % (v(S + 4 * kt, 4), v(KF + 16 * kt + 4 * kk, 4), v(QF + 4 * kk, 4), v(S + 4 * kt, 4) if kk else '0'))
    if 's' in o['hack']: a('s_branch L_hs_skip')
    if 'h' in o['hack']: a('s_cmp_ge_u32 s20, 4\ns_cbranch_scc1 L_hs_skip')
    x, y = 6, 7
    a('v_max3_f32 v6, v%d, v%d, v%d\nv_max3_f32 v7, v%d, v%d, v%d' % (S, S + 1, S + 2, S + 3, S + 4, S + 5))
    a('v_max3_f32 v6, v6, v%d, v%d\nv_max3_f32 v7, v7, v%d, v%d\nv_max3_f32 v6, v6, v%d, v%d' % (S + 6, S + 7, S + 8, S + 9, S + 10, S + 11))
    def xl(op, first):
        a(first)
        a('v_permlane16_swap_b32 v6, v7\n%s v8, v6, v7\n%s v7, v6, v7\nv_permlane32_swap_b32 v8, v7\n%s v6, v8, v7' % (op, op, op))
    xl('v_max_f32', 'v_max_f32 v6, v6, v7\nv_mov_b32 v7, v6')
    a('v_mul_f32 v6, s50, v6')
    if o['pk']:
        for t in range(0, 12, 2): a('v_pk_fma_f32 v[%d:%d], v[%d:%d], s[50:51], v[6:7] op_sel_hi:[1,1,0] neg_lo:[0,0,1] neg_hi:[0,0,1]' % (S + t, S + t + 1, S + t, S + t + 1))
    else:
        for t in range(12): a('v_fma_f32 v%d, v%d, s50, -v6' % (S + t, S + t))
    for t in range(12): a('v_exp_f32 v%d, v%d' % (S + t, S + t))
    if o['pk']:
        a('v_pk_add_f32 v[6:7], v[%d:%d], v[%d:%d]\nv_pk_add_f32 v[4:5], v[%d:%d], v[%d:%d]' % (S, S + 1, S + 2, S + 3, S + 4, S + 5, S + 6, S + 7))
        a('v_pk_add_f32 v[6:7], v[6:7], v[%d:%d]\nv_pk_add_f32 v[4:5], v[4:5], v[%d:%d]\nv_pk_add_f32 v[4:5], v[4:5], v[6:7]' % (S + 8, S + 9, S + 10, S + 11))
    else:
        a('v_add_f32 v4, v%d, v%d\nv_add_f32 v5, v%d, v%d' % (S, S + 1, S + 2, S + 3))
        for t in range(4, 12, 2): a('v_add_f32 v4, v4, v%d\nv_add_f32 v5, v5, v%d' % (S + t, S + t + 1))
    xl('v_add_f32', 'v_add_f32 v6, v4, v5\nv_add_f32 v7, v4, v5')
    a('v_rcp_f32 v6, v6')
    if o['pk']:
        for t in range(0, 12, 2): a('v_pk_mul_f32 v[%d:%d], v[%d:%d], v[6:7] op_sel_hi:[1,0]' % (S + t, S + t + 1, S + t, S + t + 1))
    else:
        for t in range(12): a('v_mul_f32 v%d, v%d, v6' % (S + t, S + t))
    for t in range(6): a('v_cvt_pk_bf16_f32 v%d, v%d, v%d' % (P + t, S + 2 * t, S + 2 * t + 1))
    if o['hack']: a('L_hs_skip:')
    if 'e' not in o['hack'] and 'y' not in o['hack']:
        a('buffer_store_dwordx4 %s, v25, s[%d:%d], s49 offen sc1' % (v(P, 4), SWS, SWS + 3))
        a('buffer_store_dwordx2 %s, v26, s[%d:%d], s49 offen offset:1024 sc1' % (v(P + 4, 2), SWS, SWS + 3))
    if o['pds']: a('ds_write_b128 v255, %s\nds_write_b64 v31, %s offset:1024' % (v(P, 4), v(P + 4, 2)))
    stC('C at BP')
    a('s_barrier')
    a('s_cmp_ge_u32 s20, 4\ns_cbranch_scc1 L_help2')
    if o['cprio'] or o['uprio']: a('s_setprio %d' % o['cprio'])
    stC('BP')
    def reads_W(p, ks):
        vp = (p >> 2) * 2 + (PC(p) & 1); tg = 'w%d%d' % (p, ks)
        r = ['ds_read_b128 %s, v%d offset:%d' % (v(F[ks] + 16 + 4 * q, 4), VA + ks, 12288 * vp + 2048 * q) for q in range(3)] + (wreads(F[ks], 16384 * WSLOT['w%d' % p] + 8192 * ks) if p != 3 else wreads(F[ks], 8192 * ks, 250))
        if (p, ks) == (0, 0) and o['fine0']:
            r = [r[0], r[3], r[4], r[1], r[2]] + r[5:]
            return [ds(x_, 'f%d' % i) for i, x_ in enumerate(r)]
        return [ds(x_, tg + ('lo' if i < 7 else 'hi')) for i, x_ in enumerate(r) if i >= 3 or not (o['alt'] and p & 1)]
    def wW(p, ks, more=()): return {0: 'f2', 1: 'f3', 2: 'f4', 3: 'f6', 6: 'f8', 9: 'f10'} if (p, ks) == (0, 0) and o['fine0'] else {0: ['w%d%dlo' % (p, ks)] + list(more), 6: ['w%d%dhi' % (p, ks)]}
    def vwpos(base, i, kt): return base + ([0, 2, 4][kt] if i % 2 == 0 else [8, 10, 6][kt])
    HACC = [B, A, B, A]; HDST = [C, C, B, B]
    def cvt_W(i): return [x_ for t in range(4) for kt in range(3) for x_ in cvt(vwpos(HDST[i] + 12 * t, i, kt), HACC[i] + 4 * (3 * t + kt))]
    def xb(nm): return [('s_waitcnt vmcnt(0)\n' if nm == o['ack'] and 'w' not in o['hack'] else '') + 's_barrier'] if nm in XN else []
    def ins(lst, i, x_): return lst[:i] + [x_] + lst[i:]
    OS = [[108, 112, 116, 120, 124], [48, 52, 56, 60, 64], [80, 84, 88, 92, 96], [100, 128, 132, 68, 72]]; OACC = [[232, 236, 240], [32, 36, 40]]
    def rdO(kq):
        tg = 'os%d' % kq
        return [ds('ds_read_b128 %s, v%d offset:%d' % (v(OS[kq][kt], 4), OVA + (kq & 1), 12288 * (kq >> 1) + 2048 * kt), tg) for kt in range(3)] + \
               [ds('ds_read_b64_tr_b16 %s, v%d offset:%d' % (v(OS[kq][3 + e] + 2 * hh, 2), OA, 16384 * WSLOT['o%d' % e] + 4096 * kq + 512 * hh), tg) for e in range(2) for hh in range(2)]
    mfma_O = [MF % (v(OACC[e][kt], 4), v(OS[kq][kt], 4), v(OS[kq][3 + e], 4), v(OACC[e][kt], 4) if kq else '0') for kq in range(4) for e in range(2) for kt in range(3)]
    cvt_O = [x_ for e in range(2) for kt in range(3) for x_ in cvt(vwpos(VWO, e, kt), OACC[e][kt])]
    PFULL = [10, 11, 22, 23]; PHALF = [4, 5, 6, 7]; POF = [24, 21]; POH = [8, 9]
    padr = []
    for i in range(4):
        padr.append('s_xor_b32 s3, s53, %d\ns_mul_i32 s3, s3, 9216\ns_add_u32 s3, s3, s55' % i)
        padr.append('v_add_u32 v%d, s3, v25' % PFULL[i]); padr.append('v_add_u32 v%d, s3, v26' % PHALF[i])
        if i < 2:
            padr.append('s_add_u32 s3, s3, s54\nv_add_u32 v%d, s3, v25' % POF[i]); padr.append('v_add_u32 v%d, s3, v26' % POH[i])
    a('s_mul_i32 s55, s18, 4608\ns_and_b32 s54, s22, 1\ns_mul_i32 s54, s54, 4608\ns_sub_u32 s54, s54, s55\ns_add_u32 s55, s55, %d\ns_lshr_b32 s53, s16, 1\ns_xor_b32 s53, s53, s22\ns_xor_b32 s53, s53, 3' % L_P)
    def preads(dst, fa, ha, qt, tag):
        off = 1536 * qt
        return [ds('ds_read_b128 %s, v%d offset:%d' % (v(dst[0], 4), fa[0], off), tag),
                ds('ds_read_b64 %s, v%d offset:%d' % (v(dst[1], 2), ha[0], off + 1024), tag),
                ds('ds_read_b64 %s, v%d offset:%d' % (v(dst[1] + 2, 2), ha[1], off + 1024), tag),
                ds('ds_read_b128 %s, v%d offset:%d' % (v(dst[2], 4), fa[1], off), tag)]
    PB = [[80 + 4 * k for k in range(6)], [108 + 4 * k for k in range(6)], [80 + 4 * k for k in range(6)]]
    def reads_F(qt): return preads(PB[qt][:3], PFULL[:2], PHALF[:2], qt, 'p%da' % qt) + preads(PB[qt][3:], PFULL[2:], PHALF[2:], qt, 'p%db' % qt)
    run(reads_W(0, 0))
    for p in range(8):
        i = PC(p) >> 1; first = PC(p) & 1 == 0
        if p < 2: ex0, ex1 = (padr[:5], padr[5:10]) if p == 0 else (padr[10:], ['v_add_u32 v%d, %d, v%d' % (250 + t, L_P, WA + t) for t in range(4)])
        elif o['alt']:
            cv = cvt_W({3: 0, 4: 1, 7: 2}[p]) if p in (3, 4, 7) else []
            k_ = 12 if p != 4 else 10
            ex0, ex1 = cv[:k_], cv[k_:]
        else:
            cv = cvt_W(i - 1)
            ex0, ex1 = (cv[:6], cv[6:12]) if p % 2 == 0 else (cv[12:18], cv[18:])
        if 'E' in o['hack'] and p >= 6:
            st_ = lambda h: 'buffer_store_dwordx4 v[244:247], v25, s[%d:%d], s%d offen sc1\ns_add_u32 s%d, s%d, %d' % (SWS, SWS + 3, 56 + h, 56 + h, 56 + h, o['MQ'])
            if p == 6: ex1 = ex1 + [st_(0)]
            else: ex0 = ex0 + [st_(1)]; ex1 = ex1 + [st_(0)]
        step(mfma(HACC[i], 0, first, True), reads_W(p, 1), extra=ex0, xstart=(4 if p % 2 == 0 else 0) if not o['alt'] else 1, waits=wW(p, 0))
        step(mfma(HACC[i], 1, False, True), reads_W(p + 1, 0) if p < 7 else reads_F(0), extra=ex1, xstart=1, waits=wW(p, 1), pre=xb('w%d' % p))
        stC('s%d' % p if p < 7 else 'VW end', 2 if p < 7 else 1)
    RACC = [[244, 248, 252, 104], [32, 36, 40, 44], [244, 248, 252, 104]]
    PK = [76, 12]; OP = [[108, 112, 116], [120, 124, 48], [52, 56, 60]]
    def fm(qt, t, k): return MF % (v(RACC[qt][t], 4), v([C, B][k // 3] + 12 * t + 4 * (k % 3), 4), v(PB[qt][k], 4), v(RACC[qt][t], 4) if k else '0')
    def store_F(qt, h):
        if o['own3'] == 2:
            pk = [76, 32, 44][qt] if h == 0 else PK[1]
            return cvt(pk, RACC[qt][2 * h]) + cvt(pk + 2, RACC[qt][2 * h + 1]) + ['buffer_store_dwordx4 %s, v25, s[%d:%d], s%d offen sc1' % (v(pk, 4), SWS, SWS + 3, 34 + 2 * qt + h)]
        if o['own3']:
            return cvt(PK[h], RACC[qt][2 * h]) + cvt(PK[h] + 2, RACC[qt][2 * h + 1]) + \
                ['buffer_store_dwordx4 %s, v25, s[%d:%d], s%d offen sc1' % (v(PK[h], 4), SWS, SWS + 3, 34 + 2 * qt + h)] + \
                (['s_mov_b64 exec, s[30:31]\nds_write_b128 v27, %s offset:%d\ns_mov_b64 exec, -1' % (v(PK[h], 4), 1024 * qt)] if h == 0 else [])
        l_ = 'L_own%d%d' % (qt, h)
        ownw = '\ns_cmp_lg_u32 s48, %d\ns_cbranch_scc1 %s\nds_write_b128 v27, %s offset:%d\n%s:' % (h, l_, v(PK[h], 4), 1024 * qt, l_) if o['own'] else ''
        if o['own'] and o['ownx']: ownw = '\ns_mov_b64 exec, s[%d:%d]\nds_write_b128 v27, %s offset:%d\ns_mov_b64 exec, -1' % (30 + 2 * h, 31 + 2 * h, v(PK[h], 4), 1024 * qt)
        return cvt(PK[h], RACC[qt][2 * h]) + cvt(PK[h] + 2, RACC[qt][2 * h + 1]) + \
               ['buffer_store_dwordx4 %s, v25, s[%d:%d], s%d offen sc1\ns_add_u32 s%d, s%d, %d' % (v(PK[h], 4), SWS, SWS + 3, 56 + h, 56 + h, 56 + h, o['MQ']) + ownw]
    if 'N' in o['hack']:
        sG = store_F
        def store_F(qt, h): return sG(qt, h)[:4]
    if 'E' in o['hack']:
        sF = store_F
        def store_F(qt, h):
            r_ = sF(qt, h)
            if (qt, h) == (0, 1): return r_[:4] + ['s_waitcnt vmcnt(2)\n' + flag(28, 0)]
            if (qt, h) == (1, 1): return r_[:4] + ['s_waitcnt vmcnt(1)\n' + flag(28, 128)]
            return r_ if qt == 2 else r_[:4]
    def flag(reg, off): return FOP + ' v29, v%d, s[%d:%d], 0 offen offset:%d sc1' % (reg, SWS, SWS + 3, off)
    m = [fm(0, t, k) for k in range(6) for t in range(4)]
    c3 = cvt_W(3)
    c3 = [c3[6 * t + j] for t in range(4) for j in (4, 5)] + [c3[6 * t + j] for t in range(4) for j in range(4)]
    step(m[:19], reads_F(1), extra=c3, xstart=3, waits={0: ['p0a'], 11: ['p0b']})
    step(m[19:], [], extra=[st_(1)] if 'E' in o['hack'] else [])
    stC('R0', 2)
    m = [fm(1, t, k) for t in range(4) for k in range(6)]
    step(m[:17], reads_F(2), extra=store_F(0, 0) + store_F(0, 1), xstart=3, waits={0: ['p1a'], 3: ['p1b']})
    step(m[17:], [], extra=store_F(1, 0))
    stC('R1', 2)
    xo = o['xo']
    m = [fm(2, t, k) for t in range(4) for k in range(6)]
    step(m[:xo], [], extra=store_F(1, 1), xstart=4, waits={0: ['p2a'], 3: ['p2b']})
    seq = rdO(0) + rdO(1); k1 = min(14, 24 - xo)
    def ownw(qts): return 's_mov_b64 exec, s[30:31]\n' + '\n'.join('ds_write_b128 v27, %s offset:%d' % (v([76, 32, 44][q_], 4), 1024 * q_) for q_ in qts) + '\ns_mov_b64 exec, -1'
    step(m[xo:], seq[:k1], extra=store_F(2, 0) + ([ownw([1])] if o['own3'] == 2 else []), xstart=max(0, 18 - xo), pre=xb('O'))
    stC('R2', 2)
    op = [x_ for qt in range(3) for x_ in preads(OP[qt], POF, POH, qt, 'po')]
    f0 = 's_waitcnt vmcnt(3)\n' + flag(28, 0)
    f1 = 's_waitcnt vmcnt(3)\n' + flag(28, 128)
    step(mfma_O[:12], seq[k1:] + rdO(2) + rdO(3), extra=store_F(2, 1) + ([flag(28, 256)] if 'c' in o['hack'] else []), xstart=4, waits={0: ['os0'], 6: ['os1']}, pre=[f0] if o['ef'] >= 1 and 'E' not in o['hack'] else [])
    step(mfma_O[12:], op, waits={0: ['os2'], 6: ['os3']}, extra=[f1] if o['ef'] >= 2 and 'E' not in o['hack'] else [], xstart=o['e0'])
    stC('O', 2)
    def fo(k, first): return [MF % (v(SP + 4 * qt, 4), v(VWO + 4 * k, 4), v(OP[qt][k], 4), '0' if first else v(SP + 4 * qt, 4)) for qt in range(3)]
    run(cvt_O[:6])
    step(fo(0, True), [], extra=cvt_O[6:], waits={0: ['po']})
    run(fo(2, False) + fo(1, False))
    if o['ef'] == 0: a('s_waitcnt vmcnt(4)'); a(flag(28, 0))
    if o['ef'] < 2: a('s_waitcnt vmcnt(3)'); a(flag(28, 128))
    if o['e2']: a('s_waitcnt vmcnt(1)'); a(flag(28, 256))
    if 'r' in o['hack']: a('s_mov_b64 exec, 0x1c'); a(flag(30, 256)); a('s_mov_b64 exec, -1\ns_cmp_lg_u32 s21, 3\ns_cbranch_scc1 L_hr\ns_sleep 60\nL_hr:')
    for qt in range(3):
        run(cvt(VWO + 2 * qt, SP + 4 * qt) + ['buffer_store_dwordx2 %s, v26, s[%d:%d], s58 offen sc1\ns_add_u32 s58, s58, %d' % (v(VWO + 2 * qt, 2), SWS, SWS + 3, o['OT'])])
    stC('final end')
    if o['sent']:
        assert o['rep'] == 1 and o['atom']
        a('s_mov_b64 exec, 0x1c'); a(flag(30, 256 + (8 if 'r' in o['hack'] else 0))); a('s_mov_b64 exec, -1')
    if o['own3'] == 2:
        assert o['xe'] in ('E', 'G', 'H')
        a(ownw([0, 2]))
    if o['own'] and not (o['own3'] == 2 and o['xe'] == 'H'): a(W0)
    if o['xe'] == 'E': a('s_barrier')
    if not o['e2'] and 'c' not in o['hack']: a('s_waitcnt vmcnt(%d)' % ((5 if o['ef'] == 0 else 4) + o['sent'] - ('E' in o['hack']))); a(flag(28, 256))
    if o['xe'] == 'H': a((W0 + '\n' if o['own3'] == 2 else '') + 's_barrier')
    if 'b' not in o['hack']: a('s_waitcnt vmcnt(%d)' % (o['sent'] + (0 if o['e2'] or 'c' in o['hack'] else 1)))
    a('s_mov_b64 exec, 0x1c1c'); a(flag(30, 256 + 64 * o['sent'])); a('s_mov_b64 exec, -1')
    if o['xe'] == 'G': a('s_barrier')
    stC('flags sent')
    a(';WARM_OFF')
    stC.flush(0)
    a('s_endpgm')
    a('; ==== helpers')
    if o['padH']: a('.fill %d, 4, 0xbf800000' % o['padH'])
    a('L_help:')
    a('s_sub_u32 s18, s20, 5\ns_sub_u32 s52, s20, 1')
    a('v_lshlrev_b32 v25, 4, v0\nv_lshlrev_b32 v26, 3, v0')
    a('v_mov_b32 v12, 0\nv_mov_b32 v13, 0\nv_mov_b32 v14, 0\nv_mov_b32 v15, 0\nv_mov_b32 v29, 1\nv_mov_b32 v28, 0x7ff00000\nv_mov_b32 v30, v28')
    a(W0)
    srd(SWS, 14, 'ws')
    if o['sent'] and o['clr'] == 'start': clears(False, 40, 44)
    def warm_run(at):
        if o['warm']:
            for c_, x_ in enumerate(o['wat']):
                if x_ == at: a('s_mov_b64 exec, 0\ns_branch L_wchain%d\nL_wret%d:\ns_mov_b64 exec, -1' % (c_, c_))
    a('s_cmp_eq_u32 s20, 7\ns_cbranch_scc1 L_h2')
    a('s_cmp_eq_u32 s20, 5\ns_cbranch_scc1 L_h0')
    a('s_cmp_ge_u32 s2, 32\ns_cbranch_scc1 L_h0')
    a('s_lshl_b32 s3, s2, 12')
    assert G_FL == 0
    for j in range(4): a('buffer_store_dwordx4 v[12:15], v25, s[%d:%d], s3 offen offset:%d sc1' % (SWS, SWS + 3, 1024 * j))
    a('s_lshl_b32 s3, s2, 2\nv_mov_b32 v16, s3\ns_waitcnt vmcnt(0)')
    a('s_mov_b64 exec, 1\nglobal_store_dword v16, v29, s[12:13] sc1\ns_mov_b64 exec, -1')
    a('L_h0:')
    unit_setup()
    for c in range(9 + o['b8a']):
        a('s_barrier')
        if c == 4: run(k_reads())
    a('s_branch L_unit')
    a('L_h2:')
    if not o['cpfL']: code_prefetch()
    def tlb_touch():
        a('s_lshl_b32 s3, s2, 7\nv_lshlrev_b32 v7, 21, v0\nv_add_u32 v7, s3, v7\nv_add_u32 v8, 0x1f0000, v7')
        a('s_mov_b64 exec, 0x7f\nglobal_load_dword v32, v8, s[14:15]')
        if o['tlb'] in (1, 3):
            a('s_mov_b64 exec, 7\nglobal_load_dword v33, v7, s[8:9]')
            a('s_mov_b64 exec, 3\nglobal_load_dword v34, v7, s[4:5]\nglobal_load_dword v35, v7, s[6:7]')
        a('s_mov_b64 exec, 1\nglobal_load_dword v36, v7, s[10:11]\ns_mov_b64 exec, -1')
    if o['tlb'] in (1, 2): tlb_touch()
    hs = 's_load_dwordx16 s[84:99], s[12:13], 0%s\ns_load_dwordx16 s[28:43], s[12:13], 64%s'
    warm_run(-1)
    for c in range(10 + o['b8a']):
        a('s_barrier')
        warm_run(c)
        if c == o['hsbar']: a(hs % ('', ''))
        if c == o['oddpf']:
            a(kvbase('s3') + '\ns_lshr_b32 s17, s2, 7\ns_lshl_b32 s17, s17, %d\ns_add_u32 s3, s3, s17\ns_lshl_b32 s3, s3, 4\ns_bfe_u32 s17, s2, 0x40003\ns_add_u32 s3, s3, s17\ns_mul_i32 s3, s3, %d\ns_add_u32 s3, s3, 1024' % (KL, 16 * 1152))
            a('v_mul_u32_u24 v7, 1152, v1\nv_add_u32 v7, s3, v7\ns_mov_b64 exec, 0xffff\nglobal_load_dword v37, v7, s[8:9]\ns_mov_b64 exec, -1')
        if c == 0 and o['tlb'] == 3: tlb_touch()
        if c == 8 and o['tlb'] == 4: tlb_touch()
    a('s_mov_b32 s54, %d\nL_hs:\ns_waitcnt lgkmcnt(0)' % SPIN)
    and16(84); and16(28); a('s_and_b32 s84, s84, s28')
    a('s_cbranch_scc1 L_hsok\ns_sub_u32 s54, s54, 1\ns_cbranch_scc1 L_hsok'); a(hs % (' glc', ' glc')); a('s_branch L_hs\nL_hsok:')
    a('s_barrier')
    a('L_help2:')
    run(xb('w0'))
    a('s_mul_i32 s17, s18, 3072')
    srd(SOUT, 10, 'out')
    a('s_lshl_b32 s3, s2, 9\ns_lshl_b32 s53, s18, 7\ns_add_u32 s62, s3, s53\ns_add_u32 s66, s14, s62\ns_addc_u32 s67, s15, 0')
    a('s_and_b32 s3, s2, 0xe7\ns_lshl_b32 s3, s3, 9\ns_add_u32 s53, s53, s3\n' + ('' if o['atom'] else 's_lshl_b32 s3, s22, 2\ns_add_u32 s53, s53, s3\n') + 'v_lshlrev_b32 v21, 12, v0')
    a('s_mul_i32 s55, s2, %d\ns_mul_i32 s56, s18, %d\ns_add_u32 s55, s55, s56\ns_add_u32 s55, s55, %d\ns_add_u32 s56, s55, 4096' % (o['MO'], o['MQ'], G_PM))
    a('s_lshl_b32 s59, s23, 1\ns_lshr_b32 s3, s21, 2\ns_add_u32 s59, s59, s3\ns_mul_i32 s59, s59, 3\ns_add_u32 s59, s59, s18\ns_mul_i32 s59, s59, %d' % (16 * 1152))
    a('s_lshl_b32 s3, s22, 8\ns_add_u32 s59, s59, s3\ns_and_b32 s3, s21, 3\ns_lshl_b32 s3, s3, 6\ns_add_u32 s59, s59, s3')
    def pfetch(d):
        a('s_add_u32 m0, s17, %d\ns_xor_b32 s58, s2, %d\ns_mul_i32 s58, s58, 9216\ns_add_u32 s58, s58, s17\ns_add_u32 s58, s58, %d' % (L_P + 9216 * (3 - d), d << 3, G_P))
        for j in range(3):
            if 'e' not in o['hack'] and 'x' not in o['hack']: a('buffer_load_dwordx4 v25, s[%d:%d], s58 offen offset:%d sc1 lds' % (SWS, SWS + 3, 1024 * j))
    xs = [x_ for x_ in XN[2:-1] if x_ != 'w0']
    k = 0
    while True:
        nm = xs[k]; k += 1
        run(xb(nm))
        if nm == o['ack']:
            a('s_mov_b64 exec, 15' + ('\ns_bitset0_b64 exec, s22' if o['noself'] else '') + '\n' + FOP + ' v29, v21, s[%d:%d], s53 offen sc1\ns_mov_b64 exec, -1' % (SWS, SWS + 3))
            stH('P flag sent')
        if o['ownp'] and not o['pds'] and nm == o['ownat']: pfetch(0)
        if o['sent'] and nm == o['clr']: clears()
        if nm == o['poll0']: break
    assert xs.index(o['ack']) < k and ALLN.index(xs[k]) >= ALLN.index('w4') and k < len(xs) - 1
    a('s_mov_b32 s54, %d\ns_mov_b32 s52, %d' % (SPIN, len(xs) - 1 - k))
    a('L_pp:\n' + ('s_load_dword s84' if o['atom'] else 's_load_dwordx4 s[84:87]') + ', s[66:67], 0 glc')
    a('s_cmp_eq_u32 s52, 0\ns_cbranch_scc1 L_pp1\ns_barrier\ns_sub_u32 s52, s52, 1\nL_pp1:')
    a('s_sub_u32 s54, s54, 1\ns_cbranch_scc1 L_ppok\ns_waitcnt lgkmcnt(0)')
    a(('' if o['atom'] else 's_add_u32 s84, s84, s85\ns_add_u32 s86, s86, s87\ns_add_u32 s84, s84, s86\n') + 's_cmp_%s_u32 s84, %d\ns_cbranch_scc0 L_pp\nL_ppok:' % ('le' if 'a' in o['hack'] else 'eq', 4 - o['noself']))
    stH('P flags ok')
    for d in range(o['ownp'], 4): pfetch(d)
    if o['sent'] and o['clr'] == 'p': clears()
    a('L_pb:\ns_cmp_eq_u32 s52, 0\ns_cbranch_scc1 L_pbd\ns_barrier\ns_sub_u32 s52, s52, 1\ns_branch L_pb\nL_pbd:')
    a('s_waitcnt vmcnt(%d)' % (2 if o['sent'] and o['clr'] == 'p' else 0))
    stH('P landed')
    a('s_barrier')
    if o['sent'] and o['clr'] == 'w7' and 'Z' not in o['hack']: clears()
    a('s_waitcnt vmcnt(0)\ns_barrier')
    if 'f' in o['hack']: a('s_endpgm')
    a('s_mov_b32 s54, %d' % SPIN)
    a('s_lshl_b32 s3, s18, 10\ns_add_u32 s3, s3, %d\nv_add_u32 v27, s3, v25' % L_F)
    reduce('mp', 8, 4, MOFF, 25, 's59', stH)
    if stamps:
        a('s_waitcnt vmcnt(0)'); stH('end'); stH.flush(7)
    a('L_end:\ns_endpgm\nL_codeend:')
    a(kernel_desc(KN, 256, 256))
    if o['warm']:
        def size(l):
            t = l.split(';')[0].strip()
            if not t or t.endswith(':') or t.startswith('.'): return 0
            return 8 if t.startswith(('v_mfma', 'ds_', 'buffer_', 'global_', 'v_cvt_pk', 'v_pk_', 'v_max3', 's_load')) else 4.6
        out = []; on = False; acc = 0; pads = []
        for l in a.lines:
            if l == ';WARM_ON': on = True; acc = 1e9; continue
            if l == ';WARM_OFF': on = False; continue
            if on and acc >= o['wstep'] and size(l) and not l.startswith(('ds_write', 's_mov_b64 exec', 'buffer_atomic', 's_cbranch', 's_cselect', 's_addc')):
                pads.append(len(out)); out.append(None); acc = 4
            out.append(l); acc += size(l)
        n = len(pads); NC = len(o['wat']); per = -(-n // NC)
        order = list(range(n - 1, -1, -1))
        for j, k in enumerate(order):
            last = (j + 1) % per == 0 or j + 1 == n
            out[pads[k]] = 'L_wp%d:\ns_cbranch_execz %s' % (k, 'L_wret%d' % (j // per) if last else 'L_wp%d' % order[j + 1])
        txt = '\n'.join(out)
        for c_ in range(NC): txt = txt.replace('L_wchain%d' % c_, 'L_wp%d' % order[c_ * per] if c_ * per < n else 'L_wret%d' % c_)
        a.lines = txt.split('\n')
    else: a.lines = [l for l in a.lines if not l.startswith(';WARM')]
    a.lines = hazard.pad(a.lines, False)
    return a.text()
if __name__ == '__main__':
    import json
    name = sys.argv[1] if len(sys.argv) > 1 else 'p8_v10'
    opt = json.loads(sys.argv[2]) if len(sys.argv) > 2 else None
    open(name + '.s', 'w').write(gen(0, opt))
    open(name + '_st.s', 'w').write(gen(1, opt))
    open(name + '_st2.s', 'w').write(gen(2, opt))
    open(name + '_st3.s', 'w').write(gen(3, opt))
    open(name + '_st4.s', 'w').write(gen(4, opt))
```

```python
import sys, math, struct
from asmlib import *
import hazard
from gen_f16 import Cnt, interleave, f2i, v

L_W = 0; L_X0 = 49152; XOFF = [0, 12288, 49152]; L_K = 73728; L_Q = 49152; L_P = 73728; L_F = 159744; L_V = 110592
G_FL = 0x0
G_P = 0x40000
G_PM = 0x400000
G_PO = 0xD00000
SX, SWQ, SK, SV, SWO, SWS, SOUT = 24, 28, 32, 36, 40, 44, 48
SPIN = 1 << 16
MF = 'v_mfma_f32_16x16x32_bf16 %s, %s, %s, %s'

HEADER = """; Kernarg layout (64 bytes, pointers only, base s[0:1]):
;
; Hand-offs: data is stored write-through (sc1); after the stores are acknowledged the producer bumps a counter of the consumer
;   (device-scope atomic); the consumer polls it and then loads with sc1.  Counters are zeroed inside the launch by workgroups 0..31,
;   which report through debug.  The last, small hand-off is signalled before the acknowledgement: its slots are first filled with
;   a NaN marker in this launch, and a consumer that still sees a NaN waits for the acknowledged counter and reads again.
;   Nothing depends on workgroup placement except speed; every poll loop is bounded.
;            | 110592 V (4x12K) | 159744 own partial chunk (V part 3 + this area first hold a weight piece).  Tiles are XOR-swizzled on the global side of the DMA."""

def gen(stamps=0, opt=None):
    o = dict(order='qqqKqqqqqq', win=24, codepf=True, rot='g3', pk=True, lprio=0, afterB8=1, afterBQ=4, ack='w1', poll0='w3', cprio=0, prog=False, x4=True, xo=14, ef=2, xe='', sent=1, clr='w7', e2=0, nt={}, split=1, uprio=0, early_flag=True, outsc='sc1', oddsc=None, btr=0, opre=0, o64=1, ack1=1, first_half=False, hsbar=4, poll='s', psleep=0, tlb=0, remap=0, oddpf=8, rot2=1, lateat=3, own=1, ownx=1, tramp=[11], far=0, alt=3, klate=1, pds=1, own3=1, bs=0, vf=0, sat=0, dry=1, dryat=[0, 1], cpf2=-9, qseq='', f0at='O', MQ=7168, MO=21504, OT=8192, kvmap=9, bm=0, cpfL=1, acc=1, warm=0, wstep=960, wat=[-1, 0, 1], padL=0, padC=0, padH=0, b8a=0, tm=1, q64=2, stlb=0, hack='', atom=1, rep=1, wsw=1, ownp=1, atune=0, oe=0, hsbar_=0, ownat='w3', e0=10, e1='end', m0o=1, rsl=6, qs=5, fine0=1, wqfirst=0, skip=['w0'], noself=1)
    if opt: o.update(opt)
    if o['klate']: o['order'] = 'q' * 9; o['q64'] = 3; o.setdefault('pre8', ['k0'])
    a = Asm()
    a(HEADER)
    a('; @launch grid=(256,1,1) block=(512,1,1) lds=163840')
    a(HEAD); a(kernel_begin(KN))
    def run(seq):
        for x in seq:
            if callable(x): x()
            else: a(x)
    class St:
        def __init__(s, base, n, r0): s.base = base; s.n = n; s.k = 0; s.r0 = r0
        def __call__(s, name='x', lvl=1):
            if ((stamps >= lvl and lvl < 2) or stamps == lvl) and (stamps != 5 or name in ('start', 'final end')):
                assert s.k < s.n, name
                a('; stamp %d %s' % (s.base + s.k, name))
                a('s_memrealtime s[%d:%d]' % (s.r0 + 2 * s.k, s.r0 + 1 + 2 * s.k)); s.k += 1
        def flush(s, wave):
            if stamps and s.k:
                l_ = a.label('L_nst')
                a('s_cmp_lg_u32 s20, %d\ns_cbranch_scc1 %s' % (wave, l_))
                a('s_waitcnt lgkmcnt(0)\nv_mov_b32 v31, 0\ns_lshl_b32 s3, s2, 9\ns_add_u32 s3, s3, %d' % (STAMP_OFF + 8 * s.base))
                for i in range(s.k):
                    a('v_mov_b32 v254, s%d\nv_mov_b32 v255, s%d' % (s.r0 + 2 * i, s.r0 + 1 + 2 * i))
                    a('buffer_store_dwordx2 v[254:255], v31, s[%d:%d], s3 offen offset:%d' % (SWS, SWS + 3, 8 * i))
                a(l_ + ':')
    stC = St(0, 21, 60); stL = St(24, 17, 68); stH = St(44, 6, 32)
    W0 = 's_waitcnt lgkmcnt(0)'
    KL = o['kvmap'] - 9; KJ = 1 << KL
    def kvbase(dst):
        src = 's21'
        if KL == 0: return 's_lshl_b32 %s, s21, 1' % dst
        if KL == 3: return 's_mov_b32 %s, s21' % dst
        return 's_and_b32 %s, s21, %d\ns_add_u32 %s, %s, s21' % (dst, 7 & ~(KJ - 1), dst, dst)
    def PC(p): return (p & 4) | ((p & 1) << 1) | ((p >> 1) & 1) if o['alt'] else p
    FOP = 'buffer_atomic_add' if o['atom'] else 'buffer_store_dword'
    MOFF = (4 if o['rep'] > 1 else 64) if o['atom'] else 32
    OOFF = 0
    assert o['rep'] in (1, 2) and (o['atom'] or o['rep'] == 1)
    stC('start')
    a('s_cmp_ge_u32 s2, 256\ns_cbranch_scc1 L_end')
    a('s_load_dwordx2 s[%d:%d], s[0:1], %d' % (SX, SX + 1, SLOT['x']))
    a('s_load_dwordx2 s[%d:%d], s[0:1], %d' % (SWQ, SWQ + 1, SLOT['wq']))
    a('s_load_dwordx4 s[4:7], s[0:1], %d' % SLOT['k'])
    a('s_load_dwordx8 s[8:15], s[0:1], %d' % SLOT['wo'])
    if o['remap'] == 1: a('s_lshr_b32 s3, s2, 2\ns_and_b32 s3, s3, 0x18\ns_xor_b32 s2, s2, s3')
    if o['remap'] == 2: a('s_lshr_b32 s3, s2, 3\ns_and_b32 s3, s3, 0x18\ns_lshl_b32 s21, s2, 2\ns_and_b32 s21, s21, 0xe0\ns_and_b32 s2, s2, 7\ns_or_b32 s2, s2, s3\ns_or_b32 s2, s2, s21')
    if o['remap'] == 3: a('s_xor_b32 s2, s2, 0x18')
    if o['remap'] == 4: a('s_bfe_u32 s3, s2, 0x10002\ns_and_b32 s21, s2, 3\ns_lshl1_add_u32 s3, s21, s3\ns_and_b32 s2, s2, 0xf8\ns_or_b32 s2, s2, s3')
    if o['remap'] == 5: a('s_xor_b32 s2, s2, 1')
    a('v_lshrrev_b32 v1, 6, v0\nv_and_b32 v0, 63, v0\nv_readfirstlane_b32 s20, v1')
    if o['wsw']: a('s_xor_b32 s20, s20, 4')
    a('s_and_b32 s21, s2, 7\ns_bfe_u32 s22, s2, 0x20003\ns_lshr_b32 s23, s2, 5')
    a('v_and_b32 v1, 15, v0\nv_lshrrev_b32 v2, 4, v0')
    def srd(r, src, n):
        if src is not None: a('s_mov_b32 s%d, s%d\ns_mov_b32 s%d, s%d' % (r, src, r + 1, src + 1))
        a('s_mov_b32 s%d, %d\ns_mov_b32 s%d, 0x20000' % (r + 2, SIZES[n], r + 3))
    H0 = 's_and_b32 s16, s22, 2\ns_add_u32 s16, s16, s22\ns_xor_b32 s16, s16, s23'
    if o['rot2'] == 1: H0 = 's_and_b32 s16, s22, 2\ns_xor_b32 s16, s16, s23\ns_and_b32 s16, s16, 3\ns_lshl_b32 s16, s16, 1'
    if o['rot2'] == 2: H0 = 's_and_b32 s16, s22, 2\ns_lshl_b32 s16, s16, 1\ns_xor_b32 s16, s16, s23'
    if o['rot2'] == 3: H0 = 's_and_b32 s16, s23, 3\ns_lshl_b32 s16, s16, 1\ns_and_b32 s3, s22, 2\ns_add_u32 s3, s3, s22\ns_xor_b32 s16, s16, s3'
    if o['rot2'] == 4: H0 = 's_lshr_b32 s16, s22, 1\ns_xor_b32 s16, s16, s23\ns_and_b32 s16, s16, 1\ns_lshl_b32 s16, s16, 2'
    if o['alt'] == 1: H0 = 's_xor_b32 s16, s22, s23\ns_and_b32 s3, s16, 2\ns_and_b32 s16, s16, 3\ns_add_u32 s16, s16, s3'
    if o['alt'] == 2: H0 = 's_and_b32 s16, s22, 2\ns_xor_b32 s16, s16, s23\ns_and_b32 s3, s16, 2\ns_and_b32 s16, s16, 3\ns_add_u32 s16, s16, s3'
    if o['alt'] == 3: H0 = 's_and_b32 s16, s22, 1\ns_xor_b32 s16, s16, s23\ns_and_b32 s16, s16, 3'
    if o['alt'] == 4: H0 = 's_and_b32 s16, s22, 1\ns_xor_b32 s16, s16, s23\ns_and_b32 s16, s16, 3\ns_and_b32 s3, s22, 2\ns_lshl1_add_u32 s16, s3, s16'
    for i_ in range(len(o['tramp'])): a('s_cmp_eq_u32 s20, %d\ns_cbranch_scc1 L_tr%d' % (i_, i_))
    a('s_cmp_lt_u32 s20, 4\ns_cbranch_scc1 L_comp')
    a('s_cmp_gt_u32 s20, 4\ns_cbranch_scc1 L_help')
    def gpoll(name, nw, off):
        sl = ('s_sleep %d\n' % o['psleep']) if o['psleep'] else ''
        if o['rep'] == 2:
            a(W0 + '\ns_mov_b64 s[84:85], 0\ns_load_dword s85, s[66:67], %d glc\ns_sleep %d' % (off + 64, o['rsl']))
            a('L_%s:' % name)
            for r_ in range(2):
                a('s_load_dword s%d, s[66:67], %d glc\ns_waitcnt lgkmcnt(1)\ns_max_u32 s30, s84, s85\ns_cmp_ge_u32 s30, %d\ns_cbranch_scc1 L_%sok' % (84 + r_, off + 64 * r_, nw, name))
            a('s_sub_u32 s54, s54, 1\ns_cbranch_scc0 L_%s\nL_%sok:' % (name, name))
        elif o['atom']:
            a('L_%s:\n%ss_load_dword s84, s[66:67], %d glc\ns_sub_u32 s54, s54, 1\ns_cbranch_scc1 L_%sok\ns_waitcnt lgkmcnt(0)' % (name, sl, off, name))
            a('s_cmp_lt_u32 s84, %d\ns_cbranch_scc1 L_%s\nL_%sok:' % (nw, name, name))
        elif o['poll'] == 'p':
            a(W0)
            for i in range(0, nw, 2): a('s_mov_b64 s[%d:%d], 0' % (84 + i, 85 + i))
            a('L_%s:\ns_load_dwordx%d s[84:%d], s[66:67], %d glc\n%ss_sub_u32 s54, s54, 1\ns_cbranch_scc1 L_%sok' % (name, nw, 83 + nw, off, sl, name))
            a('s_and_b64 s[30:31], s[84:85], s[86:87]')
            for i in range(4, nw, 2): a('s_and_b64 s[30:31], s[30:31], s[%d:%d]' % (84 + i, 85 + i))
            a('s_and_b32 s30, s30, s31\ns_cbranch_scc0 L_%s\nL_%sok:' % (name, name))
        elif o['poll'] == 's':
            a('L_%s:\n%ss_load_dwordx%d s[84:%d], s[66:67], %d glc\ns_sub_u32 s54, s54, 1\ns_cbranch_scc1 L_%sok\ns_waitcnt lgkmcnt(0)' % (name, sl, nw, 83 + nw, off, name))
            k = nw
            while k > 2:
                k //= 2
                for i in range(0, k, 2): a('s_and_b64 s[%d:%d], s[%d:%d], s[%d:%d]' % (84 + i, 85 + i, 84 + i, 85 + i, 84 + k + i, 85 + k + i))
            a('s_and_b32 s84, s84, s85\ns_cbranch_scc0 L_%s\nL_%sok:' % (name, name))
        else:
            a('v_and_b32 v19, %d, v0\nv_lshlrev_b32 v19, 2, v19' % (nw - 1))
            a('L_%s:\n%sbuffer_load_dword v18, v19, s[%d:%d], s62 offen offset:%d sc1\ns_sub_u32 s54, s54, 1\ns_cbranch_scc1 L_%sok\ns_waitcnt vmcnt(0)' % (name, sl, SWS, SWS + 3, off, name))
            a('v_cmp_ne_u32 vcc, 1, v18\ns_cbranch_vccnz L_%s\nL_%sok:' % (name, name))
    def code_prefetch(lab='L_pc'):
        if o['codepf']:
            a('s_getpc_b64 s[66:67]\n%s:\ns_sub_u32 s66, s66, %s-%s\ns_subb_u32 s67, s67, 0' % (lab, lab, KN))
            a('s_lshr_b32 s3, s2, 3\ns_lshl_b32 s3, s3, 7\nv_lshlrev_b32 v100, 12, v0\nv_add_u32 v100, s3, v100')
            a('v_mov_b32 v103, s67\nv_add_co_u32 v102, vcc, s66, v100\nv_addc_co_u32 v103, vcc, 0, v103, vcc')
            a('v_cmp_gt_u32 vcc, L_codeend-%s, v100\ns_and_saveexec_b64 s[64:65], vcc' % KN)
            a('global_load_dword v101, v[102:103], off')
            a('s_mov_b64 exec, s[64:65]')
    def clears(all12=False, va=4, vd=12):
        a('s_lshl_b32 s3, s23, 1\ns_and_b32 s58, s22, 1\ns_add_u32 s3, s3, s58\ns_mul_i32 s3, s3, 3\n' + ('' if all12 else 's_add_u32 s3, s3, s18\n') + 's_mul_i32 s58, s3, %d' % (4 * o['OT']))
        a('s_lshl_b32 s3, s21, 1\ns_lshr_b32 s59, s22, 1\ns_add_u32 s3, s3, s59\ns_lshl_b32 s3, s3, 9\ns_add_u32 s58, s58, s3\ns_add_u32 s58, s58, %d' % G_PO) if all12 else \
        a('s_lshl_b32 s3, s21, 1\ns_lshr_b32 s57, s22, 1\ns_add_u32 s3, s3, s57\ns_lshl_b32 s3, s3, 9\ns_add_u32 s58, s58, s3\ns_add_u32 s58, s58, %d' % G_PO)
        a('v_and_b32 v%d, 31, v0\nv_lshrrev_b32 v%d, 5, v0\nv_mul_u32_u24 v%d, %d, v%d\nv_lshl_add_u32 v%d, v%d, 4, v%d' % (va, va + 1, va + 1, o['OT'], va + 1, va, va, va + 1))
        for i in range(4): a('v_mov_b32 v%d, -1' % (vd + i))
        for i in range(6 if all12 else 2):
            if i: a('s_add_u32 s58, s58, %d' % (2 * o['OT']))
            a('buffer_store_dwordx4 v[%d:%d], v%d, s[%d:%d], s58 offen sc1' % (vd, vd + 3, va, SWS, SWS + 3))
            if all12: vm.issue('clr')
    a('; ==== loader: pulls its share of this code into L2, streams 9 chunks of x | wq (rotated start), then K, V parts and wo pieces')
    vm = Cnt(a, 'vmcnt', 63)
    XV, WV, OV, KV, DV, VV = 8, 12, 16, 20, 24, 28
    if o['lprio']: a('s_setprio %d' % o['lprio'])
    if o['cpfL']: code_prefetch()
    srd(SX, None, 'x'); srd(SWQ, None, 'wq')
    a('v_lshrrev_b32 v3, 3, v0\nv_and_b32 v4, 7, v0')
    def quad(base, step):
        a('v_xor_b32 v7, 64, v%d\nv_add_u32 v%d, %d, v7' % (base, base + 1, step))
        a('v_add_u32 v%d, %d, v%d\nv_add_u32 v%d, %d, v%d' % (base + 2, 2 * step, base, base + 3, 2 * step, base + 1))
    a('v_mul_u32_u24 v5, 1152, v3\nv_xor_b32 v32, v4, v2\nv_lshl_add_u32 v%d, v32, 4, v5' % XV)
    quad(XV, 8 * 1152 - 1024)
    a('v_lshlrev_b32 v6, 1, v2\nv_xor_b32 v6, v6, v1\nv_lshlrev_b32 v6, 4, v6')
    a('v_lshl_add_u32 v%d, v2, 13, v6' % WV)
    a('v_add_u32 v%d, %d, v%d' % (WV + 1, 4 * 8192 - 1024, WV))
    a('v_xor_b32 v7, 128, v%d\nv_add_u32 v%d, %d, v7\nv_add_u32 v%d, %d, v7' % (WV, WV + 2, 2 * (4 * 8192 - 1024), WV + 3, 3 * (4 * 8192 - 1024)))
    if o['rot'] == 'g3':
        a('s_add_u32 s17, s22, s23\ns_mul_i32 s3, s17, 43\ns_lshr_b32 s3, s3, 7\ns_mul_i32 s3, s3, 3\ns_sub_u32 s17, s17, s3\ns_mul_i32 s17, s17, 3')
    elif o['rot'] in ('g3x', 'g3y', 'g3b'):
        a('s_add_u32 s17, s22, s23\ns_mul_i32 s3, s17, 43\ns_lshr_b32 s3, s3, 7\ns_mul_i32 s3, s3, 3\ns_sub_u32 s17, s17, s3\ns_mul_i32 s17, s17, 3')
        if o['rot'] == 'g3x': a('s_add_u32 s17, s17, s21')
        else: a('s_lshr_b32 s3, s21, %d\ns_add_u32 s17, s17, s3' % (2 if o['rot'] == 'g3y' else 1))
        a('s_cmp_ge_u32 s17, 9\ns_cselect_b32 s3, 9, 0\ns_sub_u32 s17, s17, s3')
    elif o['rot'] == 'g4':
        a('s_add_u32 s17, s22, s23\ns_and_b32 s17, s17, 3\ns_mul_i32 s17, s17, 9\ns_lshr_b32 s17, s17, 2')
    elif o['rot'] == 'g2':
        a('s_add_u32 s17, s22, s23\ns_and_b32 s17, s17, 1\ns_mul_i32 s17, s17, 5')
    elif o['rot'] == 'g9':
        a('s_lshl_b32 s17, s22, 1\ns_add_u32 s17, s17, s23\ns_cmp_ge_u32 s17, 9\ns_cselect_b32 s3, 9, 0\ns_sub_u32 s17, s17, s3')
    else: a('s_mov_b32 s17, 0')
    a('s_mul_i32 s52, s23, 110592')
    if 'm' in o['hack']: a('s_lshl_b32 s53, s21, 9\ns_and_b32 s3, s22, 2\ns_lshl_b32 s3, s3, 11\ns_add_u32 s53, s53, s3\ns_and_b32 s3, s22, 1\ns_lshl_b32 s3, s3, 8\ns_add_u32 s53, s53, s3')
    elif 'n' in o['hack']: a('s_lshl_b32 s53, s21, 8\ns_lshl_b32 s3, s22, 11\ns_add_u32 s53, s53, s3')
    elif 'p' in o['hack']: a('s_lshl_b32 s53, s21, 10\ns_xor_b32 s3, s22, 3\ns_lshl_b32 s3, s3, 8\ns_add_u32 s53, s53, s3')
    elif KL: a(kvbase('s53') + '\ns_lshl_b32 s53, s53, 9\ns_lshr_b32 s3, s22, 1\ns_lshl_b32 s3, s3, %d\ns_add_u32 s53, s53, s3\ns_and_b32 s3, s22, 1\ns_lshl_b32 s3, s3, 8\ns_add_u32 s53, s53, s3' % o['kvmap'])
    else: a('s_lshl_b32 s53, s21, 10\ns_lshl_b32 s3, s22, 8\ns_add_u32 s53, s53, s3')
    a('s_waitcnt lgkmcnt(0)')
    stL('L kernarg')
    if o['stlb'] >= 1:
        a('s_lshl_b32 s57, s17, 19\ns_add_u32 s57, s57, s53\ns_load_dword s58, s[%d:%d], s57' % (SWQ, SWQ + 1))
    if o['stlb'] >= 2:
        a('s_mov_b32 s57, 0x200000\ns_mov_b32 s59, 0x400000')
        for base in (SWQ, 8, 4, 6): a('s_load_dword s58, s[%d:%d], 0\ns_load_dword s58, s[%d:%d], s57' % (base, base + 1, base, base + 1))
        for base in (SWQ, 8): a('s_load_dword s58, s[%d:%d], s59' % (base, base + 1))
    ndma = [0]
    def group(vreg, n, srd_, lds, tag, adv=None, dyn=None):
        seq = [('s_add_u32 m0, %s, %d' % (dyn, lds) if dyn else 's_mov_b32 m0, %d' % lds) + ('\ns_add_u32 s57, s57, %s' % adv if adv else '')]
        for j in range(n):
            def f(j=j):
                ndma[0] += 1
                if ndma[0] - 1 in o['tramp']:
                    i_ = o['tramp'].index(ndma[0] - 1)
                    a('s_branch L_ov%d\nL_tr%d:\ns_branch L_comp\nL_ov%d:' % (i_, i_, i_))
                if len(vm.seq) >= 60:
                    a('s_waitcnt vmcnt(44)'); vm.seq = vm.seq[-44:]
                a('buffer_load_dwordx4 v%d, s[%d:%d], s57 offen offset:%d %s lds' % (vreg + j, srd_, srd_ + 3, 1024 * j, o['nt'].get({SX: 'x', SWQ: 'q', SK: 'k', SV: 'v', SWO: 'o'}[srd_] + tag[-1], o['nt'].get({SX: 'x', SWQ: 'q', SK: 'k', SV: 'v', SWO: 'o'}[srd_], '')))); vm.issue(tag)
            seq.append(f)
        return seq
    def item_q(c):
        st = c % 3; tag = 'n%d' % c
        m0o = o['m0o'] and c >= o['lateat']
        sx = ['s_lshl_b32 s57, s17, 7\ns_add_u32 s57, s57, s52']
        for t in range(3): sx += group(40 + 4 * t if m0o and t else XV, 4, SX, L_X0 + XOFF[st] + 4096 * t, tag, 32 * 1152 if t and not m0o else None)
        sw = ['s_lshl_b32 s57, s17, 19\ns_add_u32 s57, s57, s53']
        for t in range(4): sw += group(52 + 4 * t if m0o and t else WV, 4, SWQ, L_W + 16384 * st + 4096 * t, tag + ('b' if c == 8 and t >= 2 and o['b8a'] else ''), 16 * 8192 if t and not m0o else None)
        seq = sw + sx if o['wqfirst'] else sx + sw
        if o['qseq']:
            if c == 0: seq += ['s_mov_b32 s63, s17\ns_add_u32 s64, s17, 3\ns_cmp_eq_u32 s64, 9\ns_cselect_b32 s64, 0, s64\ns_add_u32 s65, s64, 3\ns_cmp_eq_u32 s65, 9\ns_cselect_b32 s65, 0, s65']
            if c < 8: seq += ['s_add_u32 s17, s%d, %s' % (63 + o['qseq'][:c + 1].count(o['qseq'][c + 1]), o['qseq'][c + 1])]
            assert o['qseq'][0] == '0' and sorted(o['qseq']) == sorted('012' * 3)
        else: seq += ['s_add_u32 s17, s17, 1\ns_cmp_eq_u32 s17, 9\ns_cselect_b32 s17, 0, s17']
        return seq
    def item_k():
        seq = ['s_lshr_b32 s3, s22, 1\n' + ('s_lshl_b32 s3, s3, %d\n' % KL if KL else '') + 's_add_u32 s57, s54, s3\ns_mul_i32 s57, s57, 12288']
        for t in range(6): seq += group(KV, 4, SK, L_K + 4096 * t, 'k0', None if t == 0 else (4096 if t != 3 else 16 * 12288 - 8192))
        return seq
    WSLOT = {'w0': 0, 'w1': 1, 'w2': 2, 'w3': 4.5, 'w4': 3, 'w5': 0, 'w6': 1, 'w7': 2, 'o0': 3, 'o1': 0}
    assert L_P == 4.5 * 16384
    SP2 = 3; BASE2 = L_P
    if o['vf']:
        WSLOT = {'w0': 9, 'w1': 0, 'w2': 1, 'w3': 2, 'w4': 3, 'w5': 0, 'w6': 1, 'w7': 2, 'o0': 3, 'o1': 0}
        SP2 = 0; BASE2 = L_V + 36864; assert BASE2 == 9 * 16384
        if o['vf'] == 2: WSLOT.update({'w4': 4.5, 'w5': 3, 'w6': 0, 'w7': 1, 'o0': 2, 'o1': 3})
    NEED = {'w3': 1, 'w4': 2, 'w5': 3, 'w6': 5, 'w7': 6}
    L_O1 = L_P
    STAGES = ['w0', 'w1', 'o0', 'o1', 'w2', 'w3', 'w4', 'w5', 'w6', 'w7']
    def item_v(vp):
        seq = ['s_lshr_b32 s3, s16, 2\ns_xor_b32 s3, s3, %d\n' % (vp >> 1) + ('s_lshl_b32 s3, s3, %d\n' % KL if KL else '') + 's_add_u32 s57, ' + ('s63' if 'd' in o['hack'] else 's54') + ', s3\ns_mul_i32 s57, s57, 12288\ns_xor_b32 s3, s16, %d\ns_and_b32 s3, s3, 1\ns_lshl_b32 s3, s3, 7\ns_add_u32 s57, s57, s3' % (vp & 1)]
        for b in range(2):
            seq += group(VV, 4, SV, L_V + 12288 * vp + 6144 * b, 'v%d' % vp, 16 * 12288 - 8192 if b else None)
            seq += group(VV, 2, SV, L_V + 12288 * vp + 6144 * b + 4096, 'v%d' % vp, 8192)
        return seq
    def item_w(p):
        lds = int(L_W + 16384 * WSLOT['w%d' % p])
        seq = ['s_xor_b32 s3, s16, %d\n' % PC(p) + ('s_and_b32 s57, s3, 4\ns_mul_i32 s57, s57, %d\ns_add_u32 s3, s3, s57\n' % (KJ - 1) if KL else '') + 's_mul_i32 s57, s3, %d\ns_add_u32 s57, s57, s60' % (64 * 1152)]
        for t in range(4): seq += group(68 + 4 * t if o['m0o'] and t else OV, 4, SWO, lds + 4096 * t, 'w%d' % p, 16 * 1152 if t and not o['m0o'] else None)
        return seq
    def item_o(e):
        lds = L_W + 16384 * WSLOT['o%d' % e]; seq = []
        for hf in range(2):
            seq += ['s_xor_b32 s3, %s, %d\n' % ('s59' if o['alt'] == 3 else 's16', 2 * e + hf) + ('s_and_b32 s57, s3, 4\ns_mul_i32 s57, s57, %d\ns_add_u32 s3, s3, s57\n' % (KJ - 1) if KL else '') + 's_mul_i32 s57, s3, %d\ns_add_u32 s57, s57, s62' % (64 * 1152)]
            for t in range(2): seq += group(DV, 4, SWO, lds + 8192 * hf + 4096 * t, 'o%d' % e, 32 * 1152 if t else None)
        return seq
    def item(nm):
        seq = {'v': item_v, 'w': item_w, 'o': item_o, 'k': lambda _: item_k()}[nm[0]](int(nm[1]))
        if nm[:2] in o.get('drop', []): return []
        cut = {'v': 9, 'k': 16}.get(nm[0], 11)
        if nm[2:] == 'a': return seq[:cut] + ['s_mov_b32 s61, s57']
        if nm[2:] == 'b': return ['s_mov_b32 s57, s61'] + seq[cut:]
        return seq
    def late_setup():
        srd(SK, 4, 'k'); srd(SV, 6, 'v'); srd(SWO, 8, 'wo'); srd(SWS, 14, 'ws')
        if 'd' in o['hack']: srd(SV, SX, 'x'); srd(SWO, SX, 'x')
        if 'k' in o['hack']: srd(SK, SX, 'x')
        a('v_mul_u32_u24 v7, 1152, v2\nv_add_u32 v%d, v7, v6\nv_add_u32 v%d, %d, v%d' % (OV, OV + 1, 4 * 1152 - 1024, OV))
        a('v_xor_b32 v6, 128, v6\nv_add_u32 v7, v7, v6\nv_add_u32 v%d, %d, v7\nv_add_u32 v%d, %d, v7' % (OV + 2, 2 * (4 * 1152 - 1024), OV + 3, 3 * (4 * 1152 - 1024)))
        a('v_xor_b32 v6, v1, v2\nv_lshlrev_b32 v6, 4, v6\nv_lshl_add_u32 v%d, v2, 8, v6' % KV)
        for j in range(1, 4): a('v_xor_b32 v%d, %d, v%d' % (KV + j, 64 * j, KV))
        a('v_and_b32 v6, 1, v2\nv_lshlrev_b32 v6, 1, v6\nv_xor_b32 v6, v6, v4\nv_lshl_add_u32 v%d, v6, 4, v5' % DV)
        quad(DV, 8 * 1152 - 1024)
        a('v_lshlrev_b32 v6, 8, v3\nv_lshl_add_u32 v%d, v32, 4, v6' % VV)
        quad(VV, 8 * 256 - 1024)
        if o['m0o']:
            for base, src, n, st_ in ((40, XV, 3, 32 * 1152), (52, WV, 4, 16 * 8192), (68, OV, 4, 16 * 1152)):
                for t in range(1, n):
                    a('s_mov_b32 s3, %d' % (t * st_))
                    for j in range(4): a('v_add_u32 v%d, s3, v%d' % (base + 4 * t + j, src + j))
        a(H0)
        if o['alt'] == 3: a('s_and_b32 s59, s22, 2\ns_lshl1_add_u32 s59, s59, s16')
        a('s_lshl_b32 s54, s23, 5\n' + kvbase('s3') + '\ns_add_u32 s54, s54, s3')
        if 'd' in o['hack']: a('s_and_b32 s63, s23, 1\ns_lshl_b32 s63, s63, 5')
        a(('s_mov_b32 s60, 0 ; %d' if 'd' in o['hack'] else 's_mul_i32 s60, s3, %d') % (256 * 1152))
        a('s_add_u32 s62, s60, 1024\ns_lshl_b32 s3, s22, 8\ns_add_u32 s60, s60, s3')
    nq = 0; nbar = 0; since = {}
    def bar():
        nonlocal nbar
        vm.wait('n%d' % nbar)
        if nbar in (1, 2, 3, 8): stL('L at B%d' % nbar, 2)
        if nbar < 4: stL('L at B%d' % nbar, 3)
        a('s_barrier'); nbar += 1
    for t in o['order']:
        if t == 'q':
            while nbar < nq - 1 and nq >= 3: bar()
            seq = item_q(nq)
            if 'q%d' % nq in o.get('drop', []): seq = seq[-1:]
            if o['first_half'] and nq in (1, 2) and nbar == nq - 1:
                run(seq[:16]); bar(); run(seq[16:])
            else: run(seq)
            sz = 28; nq += 1
            if nq <= 2: stL('L issued q%d' % (nq - 1), 3)
            if o['sent'] and o['clr'] == 'L%d' % nq: srd(SWS, 14, 'ws'); clears(True, 90, 92)
            if nq == o['lateat']: late_setup()
        elif t == 'K': run(item_k()); sz = 24
        elif t == 'V': run(item_v(0)); sz = 12
        elif t == 'W': run(item_v(1)); sz = 12
        for c in list(since): since[c] += sz
        if t == 'q': since[nq - 1] = 0
        while nbar < nq and since[nbar] >= o['win']: bar()
    while nbar < 8: bar()
    pre8 = o['pre8'] if 'pre8' in o else (['w0'] if 'V' in o['order'] else ['v0', 'w0'])
    assert all(it[:2] in (('k0', 'v0', 'v1', 'v2', 'w0', 'w1') if o['vf'] else ('k0', 'v0', 'v1', 'v2', 'v3', 'w0')) for it in pre8)
    seq = [x_ for it in pre8 for x_ in item(it)]
    if o['b8a']:
        run(seq[:-10]); bar(); run(seq[-10:]); vm.wait('n8b'); a('s_barrier')
    else:
        run(seq); bar()
    XB = [('BQ', []), ('BP', ['v0', 'w0']), ('w0', ['v1', 'w1']), ('w1', ['w2']), ('w2', ['w3']), ('w3', ['v2', 'w4']),
          ('w4', ['v3', 'w5']), ('w5', ['w6']), ('w6', ['w7']), ('w7', []), ('O', ['o0', 'o1'])]
    if o['alt']:
        XB = [('BQ', []), ('BP', ['v0', 'w0']), ('w0', ['w1']), ('w1', ['v1', 'w2']), ('w2', ['w3']), ('w3', ['v2', 'w4']),
              ('w4', ['w5']), ('w5', ['v3', 'w6']), ('w6', ['w7']), ('w7', []), ('O', ['o0', 'o1'])]
    if o['klate']: XB[0] = ('BQ', ['k0'])
    if o['bs']: XB.insert(1, ('BS', []))
    for sk in o['skip']:
        i_ = [x_[0] for x_ in XB].index(sk)
        XB[i_ - 1] = (XB[i_ - 1][0], XB[i_ - 1][1] + XB[i_][1]); del XB[i_]
    XN = [x_[0] for x_ in XB]
    plan = o.get('plan') or {'B8': ['v0', 'w0'], 'BQ': ['w1', 'v1', 'w2'], 'BP': ['w3', 'v2', 'w4'], 'w1': ['w5'], 'w2': ['v3', 'w6'], 'w3': ['w7'], 'w6': ['o0'], 'w7': ['o1']}
    if o['vf'] and not o.get('plan'): plan = {'B8': ['v0', 'w0'], 'BQ': ['w1', 'v1', 'w2', 'w3'], 'BP': ['v2', 'w4'], 'w1': ['v3'], 'w2': ['w5'], 'w3': ['w6'], 'w4': ['w7'], 'w6': ['o0'], 'w7': ['o1']}
    FREEAT = {'w0': 'B8', 'w1': 'B8', 'w2': 'BQ', 'w3': ('BS' if o['bs'] else 'BP') if o['klate'] else 'BQ', 'w4': 'BS' if o['bs'] else 'BP', 'w5': 'w1', 'w6': 'w2', 'w7': 'w3', 'o0': 'w5', 'o1': 'w6'}
    if o['vf']: FREEAT.update({'w2': 'B8', 'w3': 'BQ', 'w5': 'w2', 'w6': 'w3', 'w7': 'w4', 'v3': 'w1'})
    if o['vf'] == 2: FREEAT.update({'w5': 'BP', 'w6': 'w2', 'w7': 'w3', 'o0': 'w4', 'o1': 'w6'})
    ALLN = ['B8', 'BQ', 'BS', 'BP'] + ['w%d' % i_ for i_ in range(8)] + ['O']
    names = ['B8'] + [x_[0] for x_ in XB]
    issued = set(x_[:2] for x_ in pre8 if x_[2:] != 'a') | ({'v0'} if 'V' in o['order'] else set()) | ({'v1'} if 'W' in o['order'] else set())
    last = 'B8'
    for nm, need in XB:
        for it in plan.get(last, []):
            assert it[:2] not in FREEAT or ALLN.index(FREEAT[it[:2]]) <= ALLN.index(last), (it, last)
            run(item(it))
            if it[2:] != 'a': issued.add(it[:2])
        assert all(x_ in issued for x_ in need), (nm, need)
        vm.wait(need)
        stL('L at ' + nm, 2)
        a('s_barrier'); last = nm
    assert len(issued) == 14 + o['klate']
    stL('L done')
    stL.flush(4)
    if o['padL']: a('s_branch L_padl\n.fill %d, 4, 0xbf800000\nL_padl:' % o['padL'])
    if 'f' in o['hack']: a('s_endpgm')
    if o['stlb']: a(W0)
    srd(SOUT, 10, 'out')
    a('s_lshl_b32 s52, s21, 1\ns_lshr_b32 s3, s22, 1\ns_add_u32 s52, s52, s3')
    if stamps == 4: a('s_min_u32 s52, s52, 11\ns_lshr_b32 s3, s52, 1\ns_and_b32 s75, s52, 1\ns_lshl_b32 s75, s75, 4\ns_or_b32 s75, s75, s3\ns_and_b32 s3, s2, 0xe8\ns_or_b32 s75, s75, s3')
    a('s_cmp_ge_u32 s52, 12\ns_cbranch_scc1 L_end')
    a('s_lshl_b32 s3, %s, 9\ns_add_u32 s62, s3, %d\ns_add_u32 s66, s14, s62\ns_addc_u32 s67, s15, 0' % ('s75' if stamps == 4 else 's2', G_FL + 384))
    a('s_mov_b32 s54, %d' % SPIN)
    a('s_lshl_b32 s3, s23, 1\ns_and_b32 s53, s22, 1\ns_add_u32 s53, s53, s3')
    a('s_mul_i32 s55, s53, 12\ns_add_u32 s55, s55, s52\ns_mul_i32 s55, s55, %d\ns_add_u32 s55, s55, %d\ns_add_u32 s56, s55, 4096' % (o['OT'], G_PO))
    if o['o64']:
        a('s_cmp_ge_u32 s52, 6\ns_cselect_b32 s58, %d, 0\ns_mul_i32 s57, s53, 6\ns_add_u32 s57, s57, s52\ns_mul_i32 s57, s57, %d\ns_sub_u32 s57, s57, s58\ns_add_u32 s57, s57, 1024' % (48 * 1152 - 64, 8 * 1152))
    else:
        a('s_mul_i32 s58, s52, 43\ns_lshr_b32 s58, s58, 7\ns_mul_i32 s3, s58, 3\ns_sub_u32 s3, s52, s3')
        a('s_mul_i32 s57, s53, 3\ns_add_u32 s57, s57, s3\ns_mul_i32 s57, s57, %d\ns_lshl_b32 s58, s58, 5\ns_add_u32 s57, s57, s58\ns_add_u32 s57, s57, 1024' % (16 * 1152))
    a('v_lshlrev_b32 v6, 3, v0')
    def and16(b):
        for i in range(0, 16, 4): a('s_and_b64 s[%d:%d], s[%d:%d], s[%d:%d]' % (b + i, b + 1 + i, b + i, b + 1 + i, b + 2 + i, b + 3 + i))
        a('s_and_b64 s[%d:%d], s[%d:%d], s[%d:%d]\ns_and_b64 s[%d:%d], s[%d:%d], s[%d:%d]\ns_and_b64 s[%d:%d], s[%d:%d], s[%d:%d]\ns_and_b32 s%d, s%d, s%d' % (
            b, b + 1, b, b + 1, b + 4, b + 5, b + 8, b + 9, b + 8, b + 9, b + 12, b + 13, b, b + 1, b, b + 1, b + 8, b + 9, b, b, b + 1))
    def reduce(name, nsrc, w, off, vaddr, outs, st=None):
        per = nsrc // 2; sz = 256 * w
        def ld(j): return 'buffer_load_dwordx%d %s, v%d, s[%d:%d], s%d offen offset:%d sc1' % (w, v(32 + w * j, w), vaddr, SWS, SWS + 3, 55 + j // per, sz * (j % per))
        osc = o['outsc'] if w == 4 or o['oddsc'] is None else o['oddsc']
        bt = o['btr'] & (1 if w == 4 else 2)
        if bt and w == 4:
            a('v_lshrrev_b32 v4, 2, v0\nv_and_b32 v5, 3, v0\nv_mul_u32_u24 v3, 1152, v4\nv_lshl_add_u32 v3, v5, 4, v3\nv_lshl_add_u32 v24, v5, 4, v4\nv_lshlrev_b32 v24, 2, v24')
        elif bt:
            a('v_lshrrev_b32 v4, 2, v0\nv_and_b32 v5, 3, v0\nv_mul_u32_u24 v3, 1152, v4\nv_lshl_add_u32 v3, v5, 3, v3\nv_lshl_add_u32 v24, v5, 4, v4\nv_lshlrev_b32 v24, 2, v24')
        elif o['o64'] and w == 2: a('v_and_b32 v4, 7, v0\nv_lshrrev_b32 v5, 3, v0\nv_mul_u32_u24 v3, 1152, v4\nv_lshl_add_u32 v3, v5, 3, v3')
        elif 'U' in o['hack'] and w == 4: a('v_and_b32 v4, 7, v0\nv_lshrrev_b32 v5, 3, v0\nv_mul_u32_u24 v3, 1152, v4\nv_lshl_add_u32 v3, v5, 4, v3\ns_bitcmp1_b32 s59, 6\ns_cselect_b32 s3, %d, 0\ns_add_u32 s59, s59, s3' % (8 * 1152 - 64))
        elif 'W' in o['hack'] and w == 2: a('v_and_b32 v4, 7, v0\nv_lshrrev_b32 v5, 3, v0\nv_mul_u32_u24 v3, 1152, v4\nv_lshl_add_u32 v3, v5, 3, v3\ns_bitcmp1_b32 s57, 5\ns_cselect_b32 s3, %d, 0\ns_add_u32 s57, s57, s3' % (8 * 1152 - 32))
        elif 'V' in o['hack'] and w == 2: a('v_mov_b32 v3, 0x7ff00000')
        elif o['x4'] and w == 4: a('v_mul_u32_u24 v3, 1152, v1\nv_lshl_add_u32 v3, v2, 4, v3')
        else: a('v_mul_u32_u24 v3, 1152, v1\nv_lshl_add_u32 v3, v2, 3, v3')
        if o.get('dot'): a('s_mov_b32 s28, 0x00003f80\ns_mov_b32 s29, 0x3f800000')
        a('s_mov_b32 s29, 0xffff0000')
        if o['acc'] == 2: a('s_mov_b32 s28, 0x00003f80\ns_mov_b32 s31, 0x3f800000')
        if o['prog']:
            a('s_mov_b32 s63, 0')
            a('L_%s:\ns_load_dwordx%d s[84:%d], s[66:67], %d glc\ns_sub_u32 s54, s54, 1\ns_cselect_b32 s30, -1, 0\ns_waitcnt lgkmcnt(0)' % (name, nsrc, 83 + nsrc, off))
            k = nsrc; sh = 1
            while k > 1:
                for i in range(0, nsrc, 2 * sh):
                    if sh <= 4: a('s_lshl%d_add_u32 s%d, s%d, s%d' % (sh, 84 + i, 84 + i + sh, 84 + i))
                    else: a('s_lshl_b32 s%d, s%d, %d\ns_or_b32 s%d, s%d, s%d' % (84 + i + sh, 84 + i + sh, sh, 84 + i, 84 + i, 84 + i + sh))
                k //= 2; sh *= 2
            a('s_or_b32 s84, s84, s30\ns_and_b32 s84, s84, %d\ns_andn2_b32 s85, s84, s63\ns_cbranch_scc0 L_%s\ns_or_b32 s63, s63, s84' % ((1 << nsrc) - 1, name))
            for j in range(nsrc):
                a('s_bitcmp1_b32 s85, %d\ns_cbranch_scc0 L_%s_%d\n%s\nL_%s_%d:' % (j, name, j, ld(j), name, j))
            a('s_cmp_lg_u32 s63, %d\ns_cbranch_scc1 L_%s' % ((1 << nsrc) - 1, name))
            if st: st('flags ok')
            a('s_waitcnt vmcnt(0)')
        else:
            own = o['own'] and w == 4
            oe = own and o['oe'] and o['xe'] in ('E', 'G', 'H') and o['atom']
            if o['far']: a('s_branch L_far_%s\n.fill 300, 4, 0xbf800000\n.p2align 6\nL_far_%s:' % (name, name))
            if o['opre'] & (1 if w == 4 else 2): a('buffer_load_dword v22, v3, s[%d:%d], %s offen %s\ns_waitcnt vmcnt(0)' % (SOUT, SOUT + 3, outs, o.get('oprefl', '')))
            a(';WARM_ON')
            if o['xe']: a('s_barrier')
            if oe: a('ds_read_b128 v[32:35], v27')
            pm = o['bm'] >= (2 if w == 2 else 1) and o['bm'] != 3 or o['bm'] == 3 and w == 2
            full = (1 << nsrc) - 1
            if pm:
                a('s_mov_b32 s64, 0')
                a('L_%s:\ns_load_dword s84, s[66:67], %d glc\ns_sub_u32 s54, s54, 1\ns_cselect_b32 s30, %d, 0\ns_waitcnt lgkmcnt(0)' % (name, off, full))
                a('s_or_b32 s84, s84, s30\ns_andn2_b32 s85, s84, s64\ns_cbranch_scc0 L_%s\ns_mov_b32 s64, s84' % name)
                for j in range(nsrc):
                    a('s_bitcmp1_b32 s85, %d\ns_cbranch_scc0 L_%s_%d\n%s\nL_%s_%d:' % (j, name, j, 'ds_read_b128 v[32:35], v27' if own and j == 0 else ld(j), name, j))
                a('s_cmp_lg_u32 s64, %d\ns_cbranch_scc1 L_%s\ns_waitcnt vmcnt(0)' % (full, name))
                if o['sent'] and w == 2: a('s_mov_b32 s63, 0\ns_branch L_sum')
            else: gpoll(name, full if o['bm'] else (32 if w == 2 and o['o64'] else nsrc) - (1 if oe else 0), off)
            if stamps == 4: a('s_memrealtime s[68:69]')
            if st: st('flags ok')
            if o['sent'] and w == 2: a('s_mov_b32 s63, 0\nL_again:')
            if not pm or w == 2:
                for j in range(nsrc):
                    if j or not own: a(ld(j))
                if own and not oe: a('ds_read_b128 v[32:35], v27')
            if pm and w == 2: a('L_sum:')
            if o['dry']: a('L_dry_%s:' % name)
        for j in range(nsrc):
            if not o['prog'] and not (oe and j == 0): a(W0 if own and j == 0 else 's_waitcnt vmcnt(%d)' % (nsrc - 1 - j))
            if o['acc'] == 1:
                b_ = 32 + w * j; tmp = 16 + 4 * (j & 1)
                for t in range(w): a('v_lshlrev_b32 v%d, 16, v%d' % ((tmp if j else 8) + t, b_ + t))
                for t in range(w): a('v_and_b32 v%d, s29, v%d' % ((b_ if j else 12) + t, b_ + t))
                if j:
                    for t in range(0, w, 2): a('v_pk_add_f32 v[%d:%d], v[%d:%d], v[%d:%d]' % (8 + t, 9 + t, 8 + t, 9 + t, tmp + t, tmp + t + 1))
                    for t in range(0, w, 2): a('v_pk_add_f32 v[%d:%d], v[%d:%d], v[%d:%d]' % (12 + t, 13 + t, 12 + t, 13 + t, b_ + t, b_ + t + 1))
                continue
            if o['acc'] == 2:
                b_ = 32 + w * j
                for t in range(w): a('v_dot2_f32_bf16 v%d, v%d, s28, %s' % (8 + t, b_ + t, 'v%d' % (8 + t) if j else '0'))
                for t in range(w): a('v_dot2_f32_bf16 v%d, v%d, s31, %s' % (12 + t, b_ + t, 'v%d' % (12 + t) if j else '0'))
                if j == nsrc - 1: a('s_nop 2')
                continue
            for t in range(w):
                src = 32 + w * j + t
                if j == 0: a('v_lshlrev_b32 v%d, 16, v%d\nv_and_b32 v%d, s29, v%d' % (8 + 2 * t, src, 9 + 2 * t, src))
                elif o.get('dot'): a('v_dot2_f32_bf16 v%d, v%d, s28, v%d\nv_dot2_f32_bf16 v%d, v%d, s29, v%d' % (8 + 2 * t, src, 8 + 2 * t, 9 + 2 * t, src, 9 + 2 * t))
                else: a('v_lshlrev_b32 v16, 16, v%d\nv_and_b32 v17, s29, v%d\nv_pk_add_f32 v[%d:%d], v[%d:%d], v[16:17]' % (src, src, 8 + 2 * t, 9 + 2 * t, 8 + 2 * t, 9 + 2 * t))
        if o['sent'] and w == 2: a('v_cmp_u_f32 vcc, v8, v%d\n' % (9 if o['acc'] else 10) + 's_cbranch_vccnz L_retry\nL_accept:')
        if stamps == 4: a('s_memrealtime s[70:71]')
        for t in range(w): a('v_cvt_pk_bf16_f32 v%d, v%d, v%d' % ((8 + t, 8 + t, 12 + t) if o['acc'] else (8 + t, 8 + 2 * t, 9 + 2 * t)))
        if w == 4 and o['x4']:
            a('v_permlane32_swap_b32 v8, v10\nv_permlane32_swap_b32 v9, v11\nv_permlane16_swap_b32 v8, v10\nv_permlane16_swap_b32 v9, v11')
        if o['dry']: a('s_cbranch_execz L_dryret_%s' % name)
        if bt:
            for t in range(w): a('ds_bpermute_b32 v%d, v24, v%d' % (8 + t, 8 + t))
            a(W0)
        if w == 4 and o['x4']:
            a('buffer_store_dwordx4 v[8:11], v3, s[%d:%d], %s offen %s' % (SOUT, SOUT + 3, outs, osc))
        else:
            for t in range(w // 2): a('buffer_store_dwordx2 v[%d:%d], v3, s[%d:%d], %s offen offset:%d %s' % (8 + 2 * t, 9 + 2 * t, SOUT, SOUT + 3, outs, 32 * t, osc))
        a(';WARM_OFF')
        if stamps >= 4:
            a('s_waitcnt vmcnt(0)\ns_memrealtime s[72:73]\ns_waitcnt lgkmcnt(0)\nv_mov_b32 v31, 0\ns_lshl_b32 s3, s2, 9\ns_mul_i32 s74, s20, 24\ns_add_u32 s3, s3, s74\ns_add_u32 s3, s3, %d' % (STAMP_OFF + 8 * 50 - 96))
            for i in range(3) if stamps == 4 else [2]:
                a('v_mov_b32 v254, s%d\nv_mov_b32 v255, s%d' % (68 + 2 * i, 69 + 2 * i))
                a('buffer_store_dwordx2 v[254:255], v31, s[%d:%d], s3 offen offset:%d' % (SWS, SWS + 3, 8 * i))
    if stamps == 4:
        for w_, nm in enumerate(['odd', 'r0', 'r1', 'r2']):
            for i, x_ in enumerate(['flags', 'summed', 'end']): a('; stamp %d %s %s' % (50 + 3 * w_ + i, nm, x_))
    reduce('op', 16, 2, 0, 6, 's57')
    a('s_endpgm')
    if o['sent']:
        a('L_retry:\ns_cmp_lg_u32 s63, 0\ns_cbranch_scc1 L_accept\ns_mov_b32 s63, 1\ns_mov_b32 s54, %d' % SPIN)
        if stamps == 5: a('v_mov_b32 v20, 160\nv_mov_b32 v21, 1\ns_mov_b64 exec, 1\nglobal_atomic_add v20, v21, s[12:13] sc1\ns_mov_b64 exec, -1')
        if o['ack1'] and o['o64']:
            a('s_cmp_ge_u32 s52, 6\ns_cselect_b32 s3, 3, 0\ns_and_b32 s62, s2, 0xe8\ns_or_b32 s3, s3, s62\ns_lshl_b32 s3, s3, 9\ns_add_u32 s62, s3, %d\ns_add_u32 s66, s14, s62\ns_addc_u32 s67, s15, 0' % (G_FL + 384))
        gpoll('oq', 0xffff if o['bm'] else 32 if o['o64'] else 16, 64)
        a('s_branch L_again')
    if o['padC']: a('.fill %d, 4, 0xbf800000' % o['padC'])
    a('L_comp:')
    lg = Cnt(a, 'lgkmcnt', 15)
    stC('C entry', 3)
    XA, WA, VA, OVA, OA, QA, FRA, FUA, FV, FC, PFA = 10, 12, 16, 18, 20, 21, 22, 23, 24, 27, 31
    A = 32; F = [80, 108]; B = 136; C = 184; VWO = 232; SP = 244
    KF = B; QF = 80; S = 96; P = SP; KA = 184; UA = 254; QT = 192
    a('v_bfe_u32 v3, v0, 2, 2\nv_and_b32 v4, 3, v0')
    a('s_lshr_b32 s18, s20, 1\ns_and_b32 s17, s20, 1')
    a(H0)
    a('v_lshrrev_b32 v7, 1, v1\nv_xor_b32 v7, v7, v2\nv_lshlrev_b32 v7, 4, v7\nv_lshl_add_u32 v5, v1, 7, v7\nv_xor_b32 v6, 64, v5')
    a('s_mul_i32 s3, s18, 6144\ns_add_u32 s3, s3, %d' % L_X0)
    a('v_add_u32 v%d, s3, v5\nv_add_u32 v%d, s3, v6' % (XA, XA + 1))
    a('s_add_u32 s3, s3, %d\nv_add_u32 v%d, s3, v5\nv_add_u32 v%d, s3, v6' % (L_V - L_X0, VA, VA + 1))
    a('s_and_b32 s3, s22, 1\ns_mul_i32 s3, s3, 6144\ns_add_u32 s3, s3, %d' % L_V)
    if o['alt'] == 3: a('s_and_b32 s19, s22, 2\ns_mul_i32 s19, s19, 12288\ns_add_u32 s3, s3, s19')
    a('v_add_u32 v%d, s3, v5\nv_add_u32 v%d, s3, v6' % (OVA, OVA + 1))
    a('v_and_b32 v7, 1, v2\nv_lshl_add_u32 v7, v7, 2, v3\ns_lshl_b32 s3, s17, 2\nv_xor_b32 v7, s3, v7')
    a('v_lshl_add_u32 v5, v2, 3, v3\nv_lshlrev_b32 v8, 8, v5\nv_lshl_add_u32 v8, v4, 3, v8')
    assert L_W == 0
    for t in range(4): a('v_xor_b32 v9, %d, v7\nv_lshl_add_u32 v%d, v9, 5, v8' % (t, WA + t))
    a('v_and_b32 v7, 1, v2\nv_lshrrev_b32 v8, 1, v3\nv_lshl_add_u32 v7, v7, 1, v8\nv_xor_b32 v7, s20, v7')
    a('v_lshlrev_b32 v8, 7, v5\nv_lshl_add_u32 v8, v4, 3, v8\nv_lshl_add_u32 v%d, v7, 5, v8' % OA)
    a('s_mul_i32 s3, s18, 12288\ns_lshl_b32 s19, s17, 11\ns_add_u32 s3, s3, s19\ns_add_u32 s3, s3, %d' % L_Q)
    a('v_lshlrev_b32 v25, 4, v0\nv_lshlrev_b32 v26, 3, v0\nv_add_u32 v%d, s3, v%d' % (QA, 26 if o['q64'] else 25))
    if o['q64'] == 3: a('v_lshrrev_b32 v7, 1, v2\nv_lshl_add_u32 v7, v7, 4, v1\nv_lshlrev_b32 v7, 4, v7\nv_and_b32 v8, 1, v2\nv_lshl_add_u32 v7, v8, 3, v7\nv_add_u32 v%d, s3, v7' % QA)
    if o['own3']:
        assert o['own'] and not o['oe'] and not o['bm']
        a('s_and_b32 s59, s2, 0xf8\ns_lshl_b32 s48, s20, 1\ns_add_u32 s59, s59, s48\ns_and_b32 s3, s2, 1\ns_add_u32 s3, s3, s59\ns_mul_i32 s34, s3, %d\ns_xor_b32 s3, s3, 1\ns_mul_i32 s35, s3, %d' % (o['MO'], o['MO']))
        a('s_and_b32 s3, s21, 6\ns_xor_b32 s48, s48, s3\ns_lshl_b32 s3, s48, 10\ns_add_u32 s3, s3, %d\ns_add_u32 s34, s34, s3\ns_add_u32 s35, s35, s3\ns_add_u32 s35, s35, 1024' % G_PM)
        a('s_cmp_eq_u32 s48, 0\ns_cselect_b32 s34, 0x7ff00000, s34\ns_cselect_b64 s[30:31], -1, 0\nv_add_u32 v27, %d, v25' % L_F)
        for qt in (1, 2): a('s_add_u32 s%d, s34, %d\ns_add_u32 s%d, s35, %d' % (34 + 2 * qt, qt * o['MQ'], 35 + 2 * qt, qt * o['MQ']))
    else:
        a('s_and_b32 s59, s2, 0xf8\ns_lshl_b32 s48, s20, 1\ns_add_u32 s59, s59, s48\ns_mul_i32 s56, s59, %d\ns_add_u32 s56, s56, %d\ns_add_u32 s57, s56, %d' % (o['MO'], G_PM, o['MO']))
        a('s_xor_b32 s48, s48, s21\ns_lshl_b32 s3, s48, 10\ns_add_u32 s56, s56, s3\ns_xor_b32 s3, s3, 1024\ns_add_u32 s57, s57, s3')
        if o['own']:
            a('s_cmp_eq_u32 s48, 0\ns_cselect_b32 s56, 0x7ff00000, s56\ns_cselect_b64 s[30:31], -1, 0\ns_cmp_eq_u32 s48, 1\ns_cselect_b32 s57, 0x7ff00000, s57\ns_cselect_b64 s[32:33], -1, 0\nv_add_u32 v27, %d, v25' % L_F)
    a('s_lshl_b32 s3, s23, 1\ns_and_b32 s54, s22, 1\ns_add_u32 s3, s3, s54\ns_mul_i32 s3, s3, 12\n' + ('s_mul_i32 s54, s18, 6' if o['o64'] else 's_mul_i32 s54, s20, 3') + '\ns_add_u32 s3, s3, s54\ns_mul_i32 s58, s3, %d' % o['OT'])
    if o['o64']:
        assert not o['bm'] and not o['btr'] & 2
        a('s_lshl_b32 s3, s17, 8\ns_add_u32 s58, s58, s3')
    a('s_lshl_b32 s3, s21, 1\ns_lshr_b32 s55, s22, 1\ns_add_u32 s55, s55, s3\ns_lshl_b32 s3, s55, 9\ns_add_u32 s58, s58, s3\ns_add_u32 s58, s58, %d' % G_PO)
    a('v_and_b32 v5, 7, v0\nv_lshrrev_b32 v6, 3, v0')
    a('v_add_u32 v7, s59, v5\nv_lshlrev_b32 v7, 9, v7\n' + ('s_mov_b32 s3, %d' % (G_FL + MOFF) if o['atom'] else 's_lshl_b32 s3, s21, 2\ns_add_u32 s3, s3, %d' % (G_FL + MOFF)) + '\nv_add_u32 v7, s3, v7')
    a('s_sub_u32 s54, s54, 2\nv_add_u32 v8, s54, v5\nv_lshrrev_b32 v9, 1, v8\nv_and_b32 v8, 1, v8\nv_lshl_add_u32 v8, v8, 4, v9\ns_and_b32 s3, s2, 0xe8\nv_add_u32 v8, s3, v8\nv_lshlrev_b32 v8, 9, v8')
    a(('s_mov_b32 s3, %d' if o['atom'] else 's_lshl_b32 s3, s55, 2\ns_add_u32 s3, s3, %d') % (G_FL + 128 + OOFF) + '\nv_add_u32 v8, s3, v8\nv_mov_b32 v9, 0x7ff00000')
    a('v_lshl_add_u32 v7, v6, 6, v7\nv_lshl_add_u32 v8, v6, 6, v8\nv_cmp_gt_u32 vcc, %d, v6\nv_cndmask_b32 v5, 8, v5, vcc' % o['rep'])
    if o['own'] and o['oe'] and o['xe'] in ('E', 'G', 'H') and o['atom']: a('v_cmp_ne_u32 vcc, s48, v5\nv_cndmask_b32 v7, v9, v7, vcc')
    a('v_cmp_gt_u32 vcc, %d, v5\n' % (8 if o['o64'] else 5) + 'v_cndmask_b32 v8, v9, v8, vcc\nv_cmp_gt_u32 vcc, 2, v5\nv_cndmask_b32 v30, v8, v7, vcc\nv_cndmask_b32 v28, v9, v7, vcc\nv_mov_b32 v29, 1')
    if o['bm']: a('v_xor_b32 v7, s48, v5\nv_mov_b32 v8, s55\nv_cndmask_b32 v7, v8, v7, vcc\nv_lshlrev_b32 v29, v7, v29')
    if 'g' in o['hack']: a('s_mov_b32 s56, 0x7ff00000\ns_mov_b32 s57, s56\ns_mov_b32 s58, s56')
    if o['o64']: a('v_lshrrev_b32 v7, 3, v1\nv_mul_u32_u24 v7, %d, v7\nv_lshl_add_u32 v7, v2, 6, v7\nv_and_b32 v8, 7, v0\nv_lshl_add_u32 v3, v8, 3, v7' % o['OT'])
    a('s_mov_b32 s52, s20')
    def unit_setup():
        a('s_cmp_ge_u32 s52, 3\ns_cselect_b32 s3, 12288, 0\ns_add_u32 s3, s3, %d' % L_K)
        if o['q64'] == 3:
            a('v_xor_b32 v7, v1, v2\nv_lshlrev_b32 v7, 4, v7\nv_lshl_add_u32 v7, v1, 8, v7')
            for kk in range(4): a('v_xor_b32 v8, %d, v7\nv_add_u32 v%d, s3, v8' % (64 * kk, KA + kk))
        else:
            a('v_lshrrev_b32 v7, 1, v2\nv_xor_b32 v7, v1, v7\nv_lshlrev_b32 v7, 4, v7\nv_lshl_add_u32 v7, v1, 8, v7\nv_and_b32 v8, 1, v2\nv_lshl_add_u32 v7, v8, 3, v7')
            for j in range(8): a('v_xor_b32 v8, %d, v7\nv_add_u32 v%d, s3, v8' % (32 * j, KA + j))
        a('s_lshl_b32 s3, s52, 12\ns_add_u32 s3, s3, %d\nv_add_u32 v%d, s3, v%d' % (L_Q, UA, 26 if o['q64'] in (1, 2) else 25))
        a('s_mov_b32 s50, 0x%x\ns_mov_b32 s51, s50' % f2i(128 ** -0.5 * math.log2(math.e)))
        a('s_mul_i32 s3, s52, 1536\ns_mul_i32 s49, s2, 9216\ns_add_u32 s49, s49, s3\ns_add_u32 s49, s49, %d' % G_P)
        if o['pds']: a('s_add_u32 s3, s3, %d\nv_add_u32 v255, s3, v25\nv_add_u32 v31, s3, v26' % (L_P + 27648))
    def k_reads(late=False):
        if o['klate'] and not late: return []
        if o['q64'] == 3: return ['ds_read_b128 %s, v%d offset:%d' % (v(KF + 16 * kt + 4 * kk, 4), KA + kk, 4096 * kt) for kk in range(4) for kt in range(3)]
        return ['ds_read_b64 %s, v%d offset:%d' % (v(KF + 16 * kt + 2 * j, 2), KA + j, 4096 * kt) for j in range(8) for kt in range(3)]
    unit_setup()
    a(W0)
    srd(SWS, 14, 'ws')
    if o['sat'] & 1: a('s_lshl_b32 s3, s59, 9\ns_add_u32 s42, s3, %d\ns_add_u32 s43, s42, 512\ns_mov_b32 s40, 1' % (256 + MOFF))
    def wreads(st, off, wa=WA): return ['ds_read_b64_tr_b16 %s, v%d offset:%d' % (v(st + 4 * t + 2 * hh, 2), wa + t, off + 1024 * hh) for t in range(4) for hh in range(2)]
    def reads_A(n, ks, st=None):
        st = st or F[ks]
        return ['ds_read_b128 %s, v%d offset:%d' % (v(st + 16 + 4 * q, 4), XA + ks, XOFF[n % 3] + 2048 * q) for q in range(3)] + wreads(st, 16384 * (n % 3) + 8192 * ks)
    ORD = [(t, q if t % 2 == 0 else 2 - q) for t in range(4) for q in range(3)]
    def mfma(acc, ks, first, swap, od=None):
        out = []
        for t, q in od or ORD:
            d = v(acc + 4 * (3 * t + q), 4); x = v(F[ks] + 4 * t, 4); y = v(F[ks] + 16 + 4 * q, 4)
            if swap: x, y = y, x
            out.append(MF % (d, x, y, '0' if first else d))
        return out
    def cvt(d, s_): return ['v_cvt_pk_bf16_f32 v%d, v%d, v%d' % (d, s_, s_ + 1), 'v_cvt_pk_bf16_f32 v%d, v%d, v%d' % (d + 1, s_ + 2, s_ + 3)]
    def ds(txt, tag):
        def f(): a(txt); lg.issue(tag)
        return f
    def step(m, dsops, extra=(), waits=None, pre=(), xstart=0, dstart=0):
        n = len(m); per = [[] for _ in range(n)]
        for i, x_ in enumerate(pre): per[i].append(x_)
        nd = n - dstart
        for i, x_ in enumerate(dsops): per[dstart + (i if len(dsops) <= nd else i * nd // len(dsops))].append(x_)
        nx = n - xstart
        for i, x_ in enumerate(extra): per[xstart + (i * nx // len(extra))].append(x_)
        for i in range(n):
            if waits and i in waits: lg.wait(waits[i])
            a(m[i]); run(per[i])
    stC('C at B0', 3)
    a('s_barrier')
    stC('B0')
    def tA(n, ks): return [ds(x_, 'a%d%d%s' % (n, ks, 'lo' if i < 7 else 'hi')) for i, x_ in enumerate(reads_A(n, ks))]
    if o['atune']:
        bg = o['atune']
        run(tA(0, 0))
        for n in range(7):
            kr = [ds(x_, 'k') for x_ in k_reads()[6 * (n - 3):6 * (n - 2)]] if 3 <= n < 7 else []
            m = mfma(A, 0, n == 0, False)
            step(m[:10], tA(n, 1), waits={0: 'a%d0lo' % n, 6: 'a%d0hi' % n}); step(m[10:], [])
            m = mfma(A, 1, False, False)
            step(m[:bg], [], waits={0: 'a%d1lo' % n})
            lg.wait_all(); a('s_barrier')
            r = tA(n + 1, 0)
            run(r[:1]); step(m[bg:], r[1:] + kr)
        lg.seq = []
    else: run(reads_A(0, 0))
    for n in range(7 if o['atune'] else 0, 9):
        if n == 7 and o['tm']:
            assert not o['b8a']
            F2 = 204; QT = F[1]
            a(W0)
            run(interleave(mfma(A, 0, False, False), reads_A(7, 1), 0, 2))
            a(W0); a('s_barrier'); stC('B8')
            a(';WARM_ON')
            r0, r1 = reads_A(8, 0), reads_A(8, 1, F2)
            rr = []
            for idx in ([0], [3, 4], [5, 6], [1], [2], [7, 8], [9, 10]):
                rr += [r0[i] for i in idx] + [r1[i] for i in idx]
            run(interleave(mfma(A, 1, False, False), rr, 0, 2))
            stC('end 7,1', 3)
            m = []; qw = []
            for i, (tp, q) in enumerate([(tp, q) for tp in range(2) for q in range(3)]):
                for u in range(2):
                    t = 2 * tp + u; d = v(A + 4 * (3 * t + q), 4)
                    for st in (F[0], F2): m.append(MF % (d, v(st + 4 * t, 4), v(st + 16 + 4 * q, 4), d))
                    qw += cvt(QT + 4 * i + 2 * u, A + 4 * (3 * t + q))
                    if o['q64'] and 'q' not in o['hack']: qw[-1] += '\nds_write_b64 v%d, %s offset:%d' % (QA, v(QT + 4 * i + 2 * u, 2), q * 4096 + tp * 1024 + u * 512)
                if not o['q64']: qw[-1] += '\nds_write_b128 v%d, %s offset:%d' % (QA, v(QT + 4 * i, 4), q * 4096 + tp * 1024)
            m[0] = 's_waitcnt lgkmcnt(12)\n' + m[0]; m[4] = 's_waitcnt lgkmcnt(8)\n' + m[4]; m[8] = ('s_waitcnt lgkmcnt(%d)' % (1 if o['q64'] and o['qs'] <= 6 and 'q' not in o['hack'] else 0)) + '\n' + m[8]
            run(interleave(m, qw, o['qs'], 1))
            stC('Q issued', 3)
            if stamps == 3: a(W0); stC('Q done', 3)
            break
        if n == 8: stC('end 7,1', 3)
        a(W0)
        run(interleave(mfma(A, 0, n == 0, False), (['s_barrier'] if n == 8 and o['b8a'] else []) + reads_A(n, 1), 0, 2))
        if n < 8:
            a(W0)
            a('s_barrier')
            if n == 7: stC('B8')
            run(interleave(mfma(A, 1, False, False), reads_A(n + 1, 0) + (k_reads()[8 * (n - 4):8 * (n - 3)] if 4 <= n < 7 else []), 0, 2))
        else:
            stC('end 8,0', 3)
            a(W0)
            od = [(2 * tp + u, q) for tp in range(2) for q in range(3) for u in range(2)]
            qw = []
            for i, (t, q) in enumerate(od):
                qw += cvt(QT + 2 * i, A + 4 * (3 * t + q))
                if t & 1: qw[-1] += '\nds_write_b128 v%d, %s offset:%d' % (QA, v(QT + 2 * i - 2, 4), q * 4096 + (t >> 1) * 1024)
            run(interleave(mfma(A, 1, False, False, od), qw, 6, 2))
            stC('Q issued', 3)
            if stamps == 3: a(W0); stC('Q done', 3)
    if o['own3']:
        a('s_and_b32 s3, s21, 1\ns_lshl_b32 s3, s3, 6')
        for t in range(4): a('v_xor_b32 v%d, s3, v%d' % (WA + t, WA + t))
    if o['vf']:
        for t in range(4): a('v_add_u32 v%d, %d, v%d' % (250 + t, BASE2, WA + t))
    if o['uprio']: a('s_setprio %d' % o['uprio'])
    a('L_unit:')
    a(W0)
    a('s_barrier')
    stC('BQ')
    for kk in range(4):
        if o['klate']: run(k_reads(True)[3 * kk:3 * kk + 3])
        if o['q64'] == 1: a('ds_read2st64_b64 %s, v%d offset0:%d offset1:%d' % (v(QF + 4 * kk, 4), UA, 2 * kk, 2 * kk + 1))
        elif o['q64'] == 2: a('ds_read_b64 %s, v%d offset:%d\nds_read_b64 %s, v%d offset:%d' % (v(QF + 4 * kk, 2), UA, 1024 * kk, v(QF + 4 * kk + 2, 2), UA, 1024 * kk + 512))
        else: a('ds_read_b128 %s, v%d offset:%d' % (v(QF + 4 * kk, 4), UA, 1024 * kk))
    for kk in range(4):
        a('s_waitcnt lgkmcnt(%d)' % ((3 - kk) * (4 if o['klate'] else 2 if o['q64'] == 2 else 1)))
        for kt in range(3): a(MF % (v(S + 4 * kt, 4), v(KF + 16 * kt + 4 * kk, 4), v(QF + 4 * kk, 4), v(S + 4 * kt, 4) if kk else '0'))
    if o['bs']: a('s_barrier')
    if 's' in o['hack']: a('s_branch L_hs_skip')
    if 'h' in o['hack']: a('s_cmp_ge_u32 s20, 4\ns_cbranch_scc1 L_hs_skip')
    x, y = 6, 7
    a('v_max3_f32 v6, v%d, v%d, v%d\nv_max3_f32 v7, v%d, v%d, v%d' % (S, S + 1, S + 2, S + 3, S + 4, S + 5))
    a('v_max3_f32 v6, v6, v%d, v%d\nv_max3_f32 v7, v7, v%d, v%d\nv_max3_f32 v6, v6, v%d, v%d' % (S + 6, S + 7, S + 8, S + 9, S + 10, S + 11))
    def xl(op, first):
        a(first)
        a('v_permlane16_swap_b32 v6, v7\n%s v8, v6, v7\n%s v7, v6, v7\nv_permlane32_swap_b32 v8, v7\n%s v6, v8, v7' % (op, op, op))
    xl('v_max_f32', 'v_max_f32 v6, v6, v7\nv_mov_b32 v7, v6')
    a('v_mul_f32 v6, s50, v6')
    if o['pk']:
        for t in range(0, 12, 2): a('v_pk_fma_f32 v[%d:%d], v[%d:%d], s[50:51], v[6:7] op_sel_hi:[1,1,0] neg_lo:[0,0,1] neg_hi:[0,0,1]' % (S + t, S + t + 1, S + t, S + t + 1))
    else:
        for t in range(12): a('v_fma_f32 v%d, v%d, s50, -v6' % (S + t, S + t))
    for t in range(12): a('v_exp_f32 v%d, v%d' % (S + t, S + t))
    if o['pk']:
        a('v_pk_add_f32 v[6:7], v[%d:%d], v[%d:%d]\nv_pk_add_f32 v[4:5], v[%d:%d], v[%d:%d]' % (S, S + 1, S + 2, S + 3, S + 4, S + 5, S + 6, S + 7))
        a('v_pk_add_f32 v[6:7], v[6:7], v[%d:%d]\nv_pk_add_f32 v[4:5], v[4:5], v[%d:%d]\nv_pk_add_f32 v[4:5], v[4:5], v[6:7]' % (S + 8, S + 9, S + 10, S + 11))
    else:
        a('v_add_f32 v4, v%d, v%d\nv_add_f32 v5, v%d, v%d' % (S, S + 1, S + 2, S + 3))
        for t in range(4, 12, 2): a('v_add_f32 v4, v4, v%d\nv_add_f32 v5, v5, v%d' % (S + t, S + t + 1))
    xl('v_add_f32', 'v_add_f32 v6, v4, v5\nv_add_f32 v7, v4, v5')
    a('v_rcp_f32 v6, v6')
    if o['pk']:
        for t in range(0, 12, 2): a('v_pk_mul_f32 v[%d:%d], v[%d:%d], v[6:7] op_sel_hi:[1,0]' % (S + t, S + t + 1, S + t, S + t + 1))
    else:
        for t in range(12): a('v_mul_f32 v%d, v%d, v6' % (S + t, S + t))
    for t in range(6): a('v_cvt_pk_bf16_f32 v%d, v%d, v%d' % (P + t, S + 2 * t, S + 2 * t + 1))
    if o['hack']: a('L_hs_skip:')
    if 'e' not in o['hack'] and 'y' not in o['hack']:
        a('buffer_store_dwordx4 %s, v25, s[%d:%d], s49 offen sc1' % (v(P, 4), SWS, SWS + 3))
        a('buffer_store_dwordx2 %s, v26, s[%d:%d], s49 offen offset:1024 sc1' % (v(P + 4, 2), SWS, SWS + 3))
    if o['pds']: a('ds_write_b128 v255, %s\nds_write_b64 v31, %s offset:1024' % (v(P, 4), v(P + 4, 2)))
    stC('C at BP')
    a('s_barrier')
    a('s_cmp_ge_u32 s20, 4\ns_cbranch_scc1 L_help2')
    if o['cprio'] or o['uprio']: a('s_setprio %d' % o['cprio'])
    stC('BP')
    def reads_W(p, ks):
        vp = (p >> 2) * 2 + (PC(p) & 1); tg = 'w%d%d' % (p, ks)
        r = ['ds_read_b128 %s, v%d offset:%d' % (v(F[ks] + 16 + 4 * q, 4), VA + ks, 12288 * vp + 2048 * q) for q in range(3)] + (wreads(F[ks], 16384 * WSLOT['w%d' % p] + 8192 * ks) if WSLOT['w%d' % p] < 4 else wreads(F[ks], 8192 * ks, 250))
        if (p, ks) == (0, 0) and o['fine0']:
            r = [r[0], r[3], r[4], r[1], r[2]] + r[5:]
            return [ds(x_, 'f%d' % i) for i, x_ in enumerate(r)]
        return [ds(x_, tg + ('lo' if i < 7 else 'hi')) for i, x_ in enumerate(r) if i >= 3 or not (o['alt'] and p & 1)]
    def wW(p, ks, more=()): return {0: 'f2', 1: 'f3', 2: 'f4', 3: 'f6', 6: 'f8', 9: 'f10'} if (p, ks) == (0, 0) and o['fine0'] else {0: ['w%d%dlo' % (p, ks)] + list(more), 6: ['w%d%dhi' % (p, ks)]}
    def vwpos(base, i, kt): return base + ([0, 2, 4][kt] if i % 2 == 0 else [8, 10, 6][kt])
    HACC = [B, A, B, A]; HDST = [C, C, B, B]
    def cvt_W(i): return [x_ for t in range(4) for kt in range(3) for x_ in cvt(vwpos(HDST[i] + 12 * t, i, kt), HACC[i] + 4 * (3 * t + kt))]
    def xb(nm): return [('s_waitcnt vmcnt(0)\n' if nm == o['ack'] and 'w' not in o['hack'] else '') + 's_barrier'] if nm in XN else []
    def ins(lst, i, x_): return lst[:i] + [x_] + lst[i:]
    OS = [[108, 112, 116, 120, 124], [48, 52, 56, 60, 64], [80, 84, 88, 92, 96], [100, 128, 132, 68, 72]]; OACC = [[232, 236, 240], [32, 36, 40]]
    def rdO(kq):
        tg = 'os%d' % kq
        return [ds('ds_read_b128 %s, v%d offset:%d' % (v(OS[kq][kt], 4), OVA + (kq & 1), 12288 * (kq >> 1) + 2048 * kt), tg) for kt in range(3)] + \
               [ds('ds_read_b64_tr_b16 %s, v%d offset:%d' % (v(OS[kq][3 + e] + 2 * hh, 2), OA, 16384 * WSLOT['o%d' % e] + 4096 * kq + 512 * hh), tg) for e in range(2) for hh in range(2)]
    mfma_O = [MF % (v(OACC[e][kt], 4), v(OS[kq][kt], 4), v(OS[kq][3 + e], 4), v(OACC[e][kt], 4) if kq else '0') for kq in range(4) for e in range(2) for kt in range(3)]
    cvt_O = [x_ for e in range(2) for kt in range(3) for x_ in cvt(vwpos(VWO, e, kt), OACC[e][kt])]
    PFULL = [10, 11, 22, 23]; PHALF = [4, 5, 6, 7]; POF = [24, 21]; POH = [8, 9]
    padr = []
    for i in range(4):
        padr.append('s_xor_b32 s3, s53, %d\ns_mul_i32 s3, s3, 9216\ns_add_u32 s3, s3, s55' % i)
        padr.append('v_add_u32 v%d, s3, v25' % PFULL[i]); padr.append('v_add_u32 v%d, s3, v26' % PHALF[i])
        if i < 2:
            padr.append(('s_xor_b32 s3, s52, %d\ns_mul_i32 s3, s3, 9216\ns_add_u32 s3, s3, s55\n' % i if o['alt'] == 3 else '') + 's_add_u32 s3, s3, s54\nv_add_u32 v%d, s3, v25' % POF[i]); padr.append('v_add_u32 v%d, s3, v26' % POH[i])
    a('s_mul_i32 s55, s18, 4608\ns_and_b32 s54, s22, 1\ns_mul_i32 s54, s54, 4608\ns_sub_u32 s54, s54, s55\ns_add_u32 s55, s55, %d\ns_lshr_b32 s53, s16, 1\ns_xor_b32 s53, s53, s22\ns_xor_b32 s53, s53, 3' % L_P)
    if o['alt'] == 3: a('s_and_b32 s52, s22, 2\ns_xor_b32 s52, s52, s53')
    def preads(dst, fa, ha, qt, tag):
        off = 1536 * qt
        return [ds('ds_read_b128 %s, v%d offset:%d' % (v(dst[0], 4), fa[0], off), tag),
                ds('ds_read_b64 %s, v%d offset:%d' % (v(dst[1], 2), ha[0], off + 1024), tag),
                ds('ds_read_b64 %s, v%d offset:%d' % (v(dst[1] + 2, 2), ha[1], off + 1024), tag),
                ds('ds_read_b128 %s, v%d offset:%d' % (v(dst[2], 4), fa[1], off), tag)]
    PB = [[80 + 4 * k for k in range(6)], [108 + 4 * k for k in range(6)], [80 + 4 * k for k in range(6)]]
    def reads_F(qt): return preads(PB[qt][:3], PFULL[:2], PHALF[:2], qt, 'p%da' % qt) + preads(PB[qt][3:], PFULL[2:], PHALF[2:], qt, 'p%db' % qt)
    run(reads_W(0, 0))
    for p in range(8):
        i = PC(p) >> 1; first = PC(p) & 1 == 0
        if p < 2: ex0, ex1 = (padr[:5], padr[5:10]) if p == 0 else (padr[10:], [] if o['vf'] == 1 else ['v_add_u32 v%d, %d, v%d' % (250 + t, L_P, WA + t) for t in range(4)])
        elif o['alt']:
            cv = cvt_W({3: 0, 4: 1, 7: 2}[p]) if p in (3, 4, 7) else []
            k_ = 12 if p != 4 else 10
            ex0, ex1 = cv[:k_], cv[k_:]
        else:
            cv = cvt_W(i - 1)
            ex0, ex1 = (cv[:6], cv[6:12]) if p % 2 == 0 else (cv[12:18], cv[18:])
        if 'E' in o['hack'] and p >= 6:
            st_ = lambda h: 'buffer_store_dwordx4 v[244:247], v25, s[%d:%d], s%d offen sc1\ns_add_u32 s%d, s%d, %d' % (SWS, SWS + 3, 56 + h, 56 + h, 56 + h, o['MQ'])
            if p == 6: ex1 = ex1 + [st_(0)]
            else: ex0 = ex0 + [st_(1)]; ex1 = ex1 + [st_(0)]
        step(mfma(HACC[i], 0, first, True), reads_W(p, 1), extra=ex0, xstart=(4 if p % 2 == 0 else 0) if not o['alt'] else 1, waits=wW(p, 0))
        step(mfma(HACC[i], 1, False, True), reads_W(p + 1, 0) if p < 7 else reads_F(0), extra=ex1, xstart=1, waits=wW(p, 1), pre=xb('w%d' % p))
        stC('s%d' % p if p < 7 else 'VW end', 2 if p < 7 else 1)
    RACC = [[244, 248, 252, 104], [32, 36, 40, 44], [244, 248, 252, 104]]
    PK = [76, 12]; OP = [[108, 112, 116], [120, 124, 48], [52, 56, 60]]
    def fm(qt, t, k): return MF % (v(RACC[qt][t], 4), v([C, B][k // 3] + 12 * t + 4 * (k % 3), 4), v(PB[qt][k], 4), v(RACC[qt][t], 4) if k else '0')
    def store_F(qt, h):
        if o['own3'] == 2:
            pk = [76, 32, 44][qt] if h == 0 else PK[1]
            return cvt(pk, RACC[qt][2 * h]) + cvt(pk + 2, RACC[qt][2 * h + 1]) + ['buffer_store_dwordx4 %s, v25, s[%d:%d], s%d offen sc1' % (v(pk, 4), SWS, SWS + 3, 34 + 2 * qt + h)]
        if o['own3']:
            return cvt(PK[h], RACC[qt][2 * h]) + cvt(PK[h] + 2, RACC[qt][2 * h + 1]) + \
                ['buffer_store_dwordx4 %s, v25, s[%d:%d], s%d offen sc1' % (v(PK[h], 4), SWS, SWS + 3, 34 + 2 * qt + h)] + \
                (['s_mov_b64 exec, s[30:31]\nds_write_b128 v27, %s offset:%d\ns_mov_b64 exec, -1' % (v(PK[h], 4), 1024 * qt)] if h == 0 else [])
        l_ = 'L_own%d%d' % (qt, h)
        ownw = '\ns_cmp_lg_u32 s48, %d\ns_cbranch_scc1 %s\nds_write_b128 v27, %s offset:%d\n%s:' % (h, l_, v(PK[h], 4), 1024 * qt, l_) if o['own'] else ''
        if o['own'] and o['ownx']: ownw = '\ns_mov_b64 exec, s[%d:%d]\nds_write_b128 v27, %s offset:%d\ns_mov_b64 exec, -1' % (30 + 2 * h, 31 + 2 * h, v(PK[h], 4), 1024 * qt)
        return cvt(PK[h], RACC[qt][2 * h]) + cvt(PK[h] + 2, RACC[qt][2 * h + 1]) + \
               ['buffer_store_dwordx4 %s, v25, s[%d:%d], s%d offen sc1\ns_add_u32 s%d, s%d, %d' % (v(PK[h], 4), SWS, SWS + 3, 56 + h, 56 + h, 56 + h, o['MQ']) + ownw]
    def sflag(off): return 's_atomic_add s40, s[14:15], s42\ns_atomic_add s40, s[14:15], s43'
    if 'N' in o['hack']:
        sG = store_F
        def store_F(qt, h): return sG(qt, h)[:4]
    if 'E' in o['hack']:
        sF = store_F
        def store_F(qt, h):
            r_ = sF(qt, h)
            if (qt, h) == (0, 1): return r_[:4] + ['s_waitcnt vmcnt(2)\n' + flag(28, 0)]
            if (qt, h) == (1, 1): return r_[:4] + ['s_waitcnt vmcnt(1)\n' + flag(28, 128)]
            return r_ if qt == 2 else r_[:4]
    def flag(reg, off): return FOP + ' v29, v%d, s[%d:%d], 0 offen offset:%d sc1' % (reg, SWS, SWS + 3, off)
    m = [fm(0, t, k) for k in range(6) for t in range(4)]
    c3 = cvt_W(3)
    c3 = [c3[6 * t + j] for t in range(4) for j in (4, 5)] + [c3[6 * t + j] for t in range(4) for j in range(4)]
    step(m[:19], reads_F(1), extra=c3, xstart=3, waits={0: ['p0a'], 11: ['p0b']})
    step(m[19:], [], extra=[st_(1)] if 'E' in o['hack'] else [])
    stC('R0', 2)
    m = [fm(1, t, k) for t in range(4) for k in range(6)]
    step(m[:17], reads_F(2), extra=store_F(0, 0) + store_F(0, 1), xstart=3, waits={0: ['p1a'], 3: ['p1b']})
    step(m[17:], [], extra=store_F(1, 0))
    stC('R1', 2)
    xo = o['xo']
    m = [fm(2, t, k) for t in range(4) for k in range(6)]
    step(m[:xo], [], extra=store_F(1, 1), xstart=4, waits={0: ['p2a'], 3: ['p2b']})
    seq = rdO(0) + rdO(1); k1 = min(14, 24 - xo)
    def ownw(qts): return 's_mov_b64 exec, s[30:31]\n' + '\n'.join('ds_write_b128 v27, %s offset:%d' % (v([76, 32, 44][q_], 4), 1024 * q_) for q_ in qts) + '\ns_mov_b64 exec, -1'
    step(m[xo:], seq[:k1], extra=store_F(2, 0) + ([ownw([1])] if o['own3'] == 2 else []), xstart=max(0, 18 - xo), pre=xb('O') + (['s_waitcnt vmcnt(2)\n' + flag(28, 0)] if o['f0at'] == 'R2' else []))
    stC('R2', 2)
    op = [x_ for qt in range(3) for x_ in preads(OP[qt], POF, POH, qt, 'po')]
    f0 = 's_waitcnt vmcnt(3)\n' + flag(28, 0)
    f1 = 's_waitcnt vmcnt(3)\n' + flag(28, 128)
    step(mfma_O[:12], seq[k1:] + rdO(2) + rdO(3), extra=store_F(2, 1) + ([flag(28, 256)] if 'c' in o['hack'] else []), xstart=4, waits={0: ['os0'], 6: ['os1']}, pre=[f0] if o['ef'] >= 1 and 'E' not in o['hack'] and o['f0at'] == 'O' else [])
    step(mfma_O[12:], op, waits={0: ['os2'], 6: ['os3']}, extra=[f1] if o['ef'] >= 2 and 'E' not in o['hack'] else [], xstart=o['e0'])
    stC('O', 2)
    def fo(k, first): return [MF % (v(SP + 4 * qt, 4), v(VWO + 4 * k, 4), v(OP[qt][k], 4), '0' if first else v(SP + 4 * qt, 4)) for qt in range(3)]
    run(cvt_O[:6])
    step(fo(0, True), [], extra=cvt_O[6:], waits={0: ['po']})
    run(fo(2, False) + fo(1, False))
    if o['ef'] == 0: a('s_waitcnt vmcnt(4)'); a(flag(28, 0))
    if o['ef'] < 2: a('s_waitcnt vmcnt(3)'); a(flag(28, 128))
    if o['e2']: a('s_waitcnt vmcnt(1)'); a(flag(28, 256))
    if 'r' in o['hack']: a('s_mov_b64 exec, 0xfc'); a(flag(30, 256)); a('s_mov_b64 exec, -1\ns_cmp_lg_u32 s21, 3\ns_cbranch_scc1 L_hr\ns_sleep 60\nL_hr:')
    for qt in range(3):
        run(cvt(VWO + 2 * qt, SP + 4 * qt) + ['buffer_store_dwordx2 %s, v%d, s[%d:%d], s58 offen sc1\ns_add_u32 s58, s58, %d' % (v(VWO + 2 * qt, 2), 3 if o['o64'] else 26, SWS, SWS + 3, o['OT'] * (2 if o['o64'] else 1))])
    stC('final end')
    if o['sent']:
        assert o['rep'] == 1 and o['atom']
        a('s_mov_b64 exec, 0xfc'); a(flag(30, 256 + (8 if 'r' in o['hack'] else 0))); a('s_mov_b64 exec, -1')
    if o['own3'] == 2:
        assert o['xe'] in ('E', 'G', 'H')
        a(ownw([0, 2]))
    if o['own'] and not (o['own3'] == 2 and o['xe'] == 'H'): a(W0)
    if o['xe'] == 'E': a('s_barrier')
    if not o['e2'] and 'c' not in o['hack']: a('s_waitcnt vmcnt(%d)' % ((5 if o['ef'] == 0 else 4) + o['sent'] - ('E' in o['hack']))); a(sflag(256) if o['sat'] & 1 else flag(28, 256))
    if o['xe'] == 'H': a((W0 + '\n' if o['own3'] == 2 else '') + 's_barrier')
    if 'b' not in o['hack']: a('s_waitcnt vmcnt(%d)' % (o['sent'] + (0 if o['e2'] or 'c' in o['hack'] or o['sat'] & 1 else 1)))
    a('s_mov_b64 exec, %s' % ('4' if o['ack1'] and o['sent'] and o['o64'] else '0xfcfc')); a(flag(30, 256 + 64 * o['sent'])); a('s_mov_b64 exec, -1')
    if o['xe'] == 'G': a('s_barrier')
    stC('flags sent')
    a(';WARM_OFF')
    stC.flush(0)
    a('s_endpgm')
    a('; ==== helpers')
    if o['padH']: a('.fill %d, 4, 0xbf800000' % o['padH'])
    a('L_help:')
    a('s_sub_u32 s18, s20, 5\ns_sub_u32 s52, s20, 1')
    a('v_lshlrev_b32 v25, 4, v0\nv_lshlrev_b32 v26, 3, v0')
    a('v_mov_b32 v12, 0\nv_mov_b32 v13, 0\nv_mov_b32 v14, 0\nv_mov_b32 v15, 0\nv_mov_b32 v29, 1\nv_mov_b32 v28, 0x7ff00000\nv_mov_b32 v30, v28\nv_mov_b32 v3, v28')
    a(W0)
    srd(SWS, 14, 'ws')
    if o['sent'] and o['clr'] == 'start': clears(False, 40, 44)
    def dry_run(name):
        a('s_mov_b64 exec, 0\ns_branch L_dry_%s\nL_dryret_%s:\ns_mov_b64 exec, -1' % (name, name))
    def warm_run(at):
        if o['dry'] and at == o['dryat'][0]: dry_run('mp')
        if o['dry'] and at == o['dryat'][1]: dry_run('op')
        if o['warm']:
            for c_, x_ in enumerate(o['wat']):
                if x_ == at: a('s_mov_b64 exec, 0\ns_branch L_wchain%d\nL_wret%d:\ns_mov_b64 exec, -1' % (c_, c_))
    a('s_cmp_eq_u32 s20, 7\ns_cbranch_scc1 L_h2')
    a('s_cmp_eq_u32 s20, 5\ns_cbranch_scc1 L_h0')
    a('s_cmp_ge_u32 s2, 32\ns_cbranch_scc1 L_h0')
    a('s_lshl_b32 s3, s2, 12')
    assert G_FL == 0
    for j in range(4): a('buffer_store_dwordx4 v[12:15], v25, s[%d:%d], s3 offen offset:%d sc1' % (SWS, SWS + 3, 1024 * j))
    a('s_lshl_b32 s3, s2, 2\nv_mov_b32 v16, s3\ns_waitcnt vmcnt(0)')
    a('s_mov_b64 exec, 1\nglobal_store_dword v16, v29, s[12:13] sc1\ns_mov_b64 exec, -1')
    a('L_h0:')
    unit_setup()
    for c in range(9 + o['b8a']):
        a('s_barrier')
        if c == 4: run(k_reads())
    a('s_branch L_unit')
    a('L_h2:')
    if not o['cpfL']: code_prefetch()
    def odd_prefetch():
        a(kvbase('s3') + '\ns_lshr_b32 s17, s2, 7\ns_lshl_b32 s17, s17, %d\ns_add_u32 s3, s3, s17\ns_lshl_b32 s3, s3, 4\ns_bfe_u32 s17, s2, 0x40003\ns_add_u32 s3, s3, s17\ns_mul_i32 s3, s3, %d\ns_add_u32 s3, s3, 1024' % (KL, 16 * 1152))
        a('v_mul_u32_u24 v7, 1152, v1\nv_add_u32 v7, s3, v7\ns_mov_b64 exec, 0xffff\nglobal_load_dword v37, v7, s[8:9]\ns_mov_b64 exec, -1')
    def tlb_touch():
        a('s_lshl_b32 s3, s2, 7\nv_lshlrev_b32 v7, 21, v0\nv_add_u32 v7, s3, v7\nv_add_u32 v8, 0x1f0000, v7')
        a('s_mov_b64 exec, 0x7f\nglobal_load_dword v32, v8, s[14:15]')
        if o['tlb'] in (1, 3):
            a('s_mov_b64 exec, 7\nglobal_load_dword v33, v7, s[8:9]')
            a('s_mov_b64 exec, 3\nglobal_load_dword v34, v7, s[4:5]\nglobal_load_dword v35, v7, s[6:7]')
        a('s_mov_b64 exec, 1\nglobal_load_dword v36, v7, s[10:11]\ns_mov_b64 exec, -1')
    if o['tlb'] in (1, 2): tlb_touch()
    hs = 's_load_dwordx16 s[84:99], s[12:13], 0%s\ns_load_dwordx16 s[28:43], s[12:13], 64%s'
    warm_run(-1)
    for c in range(10 + o['b8a'] + o['bs']):
        a('s_barrier')
        warm_run(c)
        if c == o['hsbar']: a(hs % ('', ''))
        if c == o['oddpf']: odd_prefetch()
        if c == o['cpf2']: code_prefetch('L_pc2')
        if c == 0 and o['tlb'] == 3: tlb_touch()
        if c == 8 and o['tlb'] == 4: tlb_touch()
    a('s_mov_b32 s54, %d\nL_hs:\ns_waitcnt lgkmcnt(0)' % SPIN)
    and16(84); and16(28); a('s_and_b32 s84, s84, s28')
    a('s_cbranch_scc1 L_hsok\ns_sub_u32 s54, s54, 1\ns_cbranch_scc1 L_hsok'); a(hs % (' glc', ' glc')); a('s_branch L_hs\nL_hsok:')
    a('s_barrier')
    if o['oddpf'] == 11: odd_prefetch()
    if o['cpf2'] == 11: code_prefetch('L_pc2')
    a('L_help2:')
    run(xb('w0'))
    a('s_mul_i32 s17, s18, 3072')
    srd(SOUT, 10, 'out')
    a('s_lshl_b32 s3, s2, 9\ns_lshl_b32 s53, s18, 7\ns_add_u32 s62, s3, s53\ns_add_u32 s66, s14, s62\ns_addc_u32 s67, s15, 0')
    a('s_and_b32 s3, s2, 0xe7\ns_lshl_b32 s3, s3, 9\ns_add_u32 s53, s53, s3\n' + ('' if o['atom'] else 's_lshl_b32 s3, s22, 2\ns_add_u32 s53, s53, s3\n') + 'v_lshlrev_b32 v21, 12, v0')
    a('s_mul_i32 s55, s2, %d\ns_mul_i32 s56, s18, %d\ns_add_u32 s55, s55, s56\ns_add_u32 s55, s55, %d\ns_add_u32 s56, s55, 4096' % (o['MO'], o['MQ'], G_PM))
    a('s_lshl_b32 s59, s23, 1\ns_lshr_b32 s3, s21, 2\ns_add_u32 s59, s59, s3\ns_mul_i32 s59, s59, 3\ns_add_u32 s59, s59, s18\ns_mul_i32 s59, s59, %d' % (16 * 1152))
    a('s_lshl_b32 s3, s22, 8\ns_add_u32 s59, s59, s3\ns_and_b32 s3, s21, 3\ns_lshl_b32 s3, s3, 6\ns_add_u32 s59, s59, s3')
    def pfetch(d):
        a('s_add_u32 m0, s17, %d\ns_xor_b32 s58, s2, %d\ns_mul_i32 s58, s58, 9216\ns_add_u32 s58, s58, s17\ns_add_u32 s58, s58, %d' % (L_P + 9216 * (3 - d), d << 3, G_P))
        for j in range(3):
            if 'e' not in o['hack'] and 'x' not in o['hack']: a('buffer_load_dwordx4 v25, s[%d:%d], s58 offen offset:%d sc1 lds' % (SWS, SWS + 3, 1024 * j))
    xs = [x_ for x_ in XN[:-1] if x_[0] == 'w' and x_ != 'w0']
    k = 0
    while True:
        nm = xs[k]; k += 1
        run(xb(nm))
        if nm == o['ack']:
            if o['sat'] & 2:
                a('s_mov_b32 s40, 1')
                for d in (1, 2, 3): a('s_xor_b32 s3, s62, %d\ns_atomic_add s40, s[14:15], s3' % (d << 12))
            else:
                a('s_mov_b64 exec, 15' + ('\ns_bitset0_b64 exec, s22' if o['noself'] else '') + '\n' + FOP + ' v29, v21, s[%d:%d], s53 offen sc1\ns_mov_b64 exec, -1' % (SWS, SWS + 3))
            stH('P flag sent')
        if o['ownp'] and not o['pds'] and nm == o['ownat']: pfetch(0)
        if o['sent'] and nm == o['clr']: clears()
        if nm == o['poll0']: break
    assert xs.index(o['ack']) < k and (o['vf'] == 1 or ALLN.index(xs[k]) >= ALLN.index('w5' if o['vf'] else 'w4')) and k < len(xs) - 1
    a('s_mov_b32 s54, %d\ns_mov_b32 s52, %d' % (SPIN, len(xs) - 1 - k))
    a('L_pp:\n' + ('s_load_dword s84' if o['atom'] else 's_load_dwordx4 s[84:87]') + ', s[66:67], 0 glc')
    a('s_cmp_eq_u32 s52, 0\ns_cbranch_scc1 L_pp1\ns_barrier\ns_sub_u32 s52, s52, 1\nL_pp1:')
    a('s_sub_u32 s54, s54, 1\ns_cbranch_scc1 L_ppok\ns_waitcnt lgkmcnt(0)')
    a(('' if o['atom'] else 's_add_u32 s84, s84, s85\ns_add_u32 s86, s86, s87\ns_add_u32 s84, s84, s86\n') + 's_cmp_%s_u32 s84, %d\ns_cbranch_scc0 L_pp\nL_ppok:' % ('le' if 'a' in o['hack'] else 'eq', 4 - o['noself']))
    stH('P flags ok')
    for d in range(o['ownp'], 4): pfetch(d)
    if o['sent'] and o['clr'] == 'p': clears()
    a('L_pb:\ns_cmp_eq_u32 s52, 0\ns_cbranch_scc1 L_pbd\ns_barrier\ns_sub_u32 s52, s52, 1\ns_branch L_pb\nL_pbd:')
    a('s_waitcnt vmcnt(%d)' % (2 if o['sent'] and o['clr'] == 'p' else 0))
    stH('P landed')
    a('s_barrier')
    if o['sent'] and o['clr'] == 'w7' and 'Z' not in o['hack']: clears()
    a('s_waitcnt vmcnt(0)\ns_barrier')
    if 'f' in o['hack']: a('s_endpgm')
    a('s_mov_b32 s54, %d' % SPIN)
    a('s_lshl_b32 s3, s18, 10\ns_add_u32 s3, s3, %d\nv_add_u32 v27, s3, v25' % L_F)
    reduce('mp', 8, 4, MOFF, 25, 's59', stH)
    if stamps:
        a('s_waitcnt vmcnt(0)'); stH('end'); stH.flush(7)
    a('L_end:\ns_endpgm\nL_codeend:')
    a(kernel_desc(KN, 256, 256))
    if o['warm']:
        def size(l):
            t = l.split(';')[0].strip()
            if not t or t.endswith(':') or t.startswith('.'): return 0
            return 8 if t.startswith(('v_mfma', 'ds_', 'buffer_', 'global_', 'v_cvt_pk', 'v_pk_', 'v_max3', 's_load')) else 4.6
        out = []; on = False; acc = 0; pads = []
        for l in a.lines:
            if l == ';WARM_ON': on = True; acc = 1e9; continue
            if l == ';WARM_OFF': on = False; continue
            if on and acc >= o['wstep'] and size(l) and not l.startswith(('ds_write', 's_mov_b64 exec', 'buffer_atomic', 's_cbranch', 's_cselect', 's_addc')):
                pads.append(len(out)); out.append(None); acc = 4
            out.append(l); acc += size(l)
        n = len(pads); NC = len(o['wat']); per = -(-n // NC)
        order = list(range(n - 1, -1, -1))
        for j, k in enumerate(order):
            last = (j + 1) % per == 0 or j + 1 == n
            out[pads[k]] = 'L_wp%d:\ns_cbranch_execz %s' % (k, 'L_wret%d' % (j // per) if last else 'L_wp%d' % order[j + 1])
        txt = '\n'.join(out)
        for c_ in range(NC): txt = txt.replace('L_wchain%d' % c_, 'L_wp%d' % order[c_ * per] if c_ * per < n else 'L_wret%d' % c_)
        a.lines = txt.split('\n')
    else: a.lines = [l for l in a.lines if not l.startswith(';WARM')]
    a.lines = hazard.pad(a.lines, False)
    return a.text()
if __name__ == '__main__':
    import json
    name = sys.argv[1] if len(sys.argv) > 1 else 'p8_v11'
    opt = json.loads(sys.argv[2]) if len(sys.argv) > 2 else None
    open(name + '.s', 'w').write(gen(0, opt))
    open(name + '_st.s', 'w').write(gen(1, opt))
    open(name + '_st2.s', 'w').write(gen(2, opt))
    open(name + '_st3.s', 'w').write(gen(3, opt))
    open(name + '_st4.s', 'w').write(gen(4, opt))
```

```python
import sys, math, struct
from asmlib import *
import hazard
from gen_f16 import Cnt, interleave, f2i, v

L_W = 0; L_X0 = 49152; XOFF = [0, 12288, 49152]; L_K = 73728; L_Q = 49152; L_P = 73728; L_F = 159744; L_V = 110592
G_FL = 0x0
G_P = 0x40000
G_PM = 0x400000
G_PO = 0xD00000
SX, SWQ, SK, SV, SWO, SWS, SOUT = 24, 28, 32, 36, 40, 44, 48
SPIN = 1 << 16
MF = 'v_mfma_f32_16x16x32_bf16 %s, %s, %s, %s'

HEADER = """; Kernarg layout (64 bytes, pointers only, base s[0:1]):
;
; Hand-offs: data is stored write-through (sc1); after the stores are acknowledged the producer bumps a counter of the consumer
;   (device-scope atomic); the consumer polls it and then loads with sc1.  Counters are zeroed inside the launch by workgroups 0..31,
;   which report through debug.  The last, small hand-off is signalled before the acknowledgement: its slots are first filled with
;   a NaN marker in this launch, and a consumer that still sees a NaN waits for the acknowledged counter and reads again.
;   Nothing depends on workgroup placement except speed; every poll loop is bounded.
;            | 110592 V (4x12K) | 159744 own partial chunks.  Tiles are XOR-swizzled on the global side of the DMA."""

def gen(stamps=0, opt=None):
    o = dict(order='qqqKqqqqqq', win=24, codepf=True, rot='g3', pk=True, lprio=0, afterB8=1, afterBQ=4, ack='w1', poll0='w3', cprio=0, prog=False, x4=True, xo=14, ef=2, xe='', sent=1, clr='w7', e2=0, nt={}, split=1, uprio=0, early_flag=True, outsc='sc1', oddsc=None, btr=0, opre=0, o64=1, ack1=1, vdry=0, sub='', hoist=1, pre=0, lead=12, mimic=0, guard=[60, 44], leadk=1, lead0=2, vseg=['w2', 'w5'], first_half=False, hsbar=4, poll='s', psleep=0, tlb=0, remap=0, oddpf=8, rot2=1, lateat=3, own=1, ownx=1, tramp=[], far=0, alt=3, klate=1, pds=1, own3=1, bs=0, vf=0, sat=0, dry=1, dryat=[-1, 0], cpf2=-9, qseq='', f0at='O', MQ=7168, MO=21504, OT=8192, kvmap=9, bm=0, cpfL=1, acc=1, warm=0, wstep=960, wat=[-1, 0, 1], padL=0, padC=0, padH=0, b8a=0, tm=1, q64=2, stlb=0, hack='', atom=1, rep=1, wsw=1, ownp=1, atune=0, oe=0, hsbar_=0, ownat='w3', e0=8, e1='end', m0o=1, rsl=6, qs=5, fine0=1, wqfirst=0, skip=['w0'], noself=1)
    if opt: o.update(opt)
    if stamps in (2, 3): o['pre'] = 0
    if o['klate']: o['order'] = 'q' * 9; o['q64'] = 3; o.setdefault('pre8', ['k0'] if 'plan' in o else ['k0', 'v0'])
    a = Asm()
    a(HEADER)
    a('; @launch grid=(256,1,1) block=(512,1,1) lds=163840')
    a(HEAD); a(kernel_begin(KN))
    def run(seq):
        for x in seq:
            if callable(x): x()
            else: a(x)
    class St:
        def __init__(s, base, n, r0): s.base = base; s.n = n; s.k = 0; s.r0 = r0
        def __call__(s, name='x', lvl=1):
            if ((stamps >= lvl and lvl < 2) or stamps == lvl) and (stamps != 5 or name in ('start', 'final end')):
                assert s.k < s.n, name
                a('; stamp %d %s' % (s.base + s.k, name))
                a('s_memrealtime s[%d:%d]' % (s.r0 + 2 * s.k, s.r0 + 1 + 2 * s.k)); s.k += 1
        def flush(s, wave):
            if stamps and s.k:
                l_ = a.label('L_nst')
                a('s_cmp_lg_u32 s20, %d\ns_cbranch_scc1 %s' % (wave, l_))
                a('s_waitcnt lgkmcnt(0)\nv_mov_b32 v31, 0\ns_lshl_b32 s3, s2, 9\ns_add_u32 s3, s3, %d' % (STAMP_OFF + 8 * s.base))
                for i in range(s.k):
                    a('v_mov_b32 v254, s%d\nv_mov_b32 v255, s%d' % (s.r0 + 2 * i, s.r0 + 1 + 2 * i))
                    a('buffer_store_dwordx2 v[254:255], v31, s[%d:%d], s3 offen offset:%d' % (SWS, SWS + 3, 8 * i))
                a(l_ + ':')
    stC = St(0, 21, 60); stL = St(24, 17, 68); stH = St(44, 6, 32)
    W0 = 's_waitcnt lgkmcnt(0)'
    def XS(c): return [0, 12288, 49152, 24576][(c + 2) % 4] if o['lead'] else XOFF[c % 3]
    KL = o['kvmap'] - 9; KJ = 1 << KL
    def kvbase(dst):
        src = 's21'
        if KL == 0: return 's_lshl_b32 %s, s21, 1' % dst
        if KL == 3: return 's_mov_b32 %s, s21' % dst
        return 's_and_b32 %s, s21, %d\ns_add_u32 %s, %s, s21' % (dst, 7 & ~(KJ - 1), dst, dst)
    def PC(p): return (p & 4) | ((p & 1) << 1) | ((p >> 1) & 1) if o['alt'] else p
    FOP = 'buffer_atomic_add' if o['atom'] else 'buffer_store_dword'
    MOFF = (4 if o['rep'] > 1 else 64) if o['atom'] else 32
    OOFF = 0
    assert o['rep'] in (1, 2) and (o['atom'] or o['rep'] == 1)
    stC('start')
    a('s_cmp_ge_u32 s2, 256\ns_cbranch_scc1 L_end')
    a('s_load_dwordx2 s[%d:%d], s[0:1], %d' % (SX, SX + 1, SLOT['x']))
    a('s_load_dwordx2 s[%d:%d], s[0:1], %d' % (SWQ, SWQ + 1, SLOT['wq']))
    a('s_load_dwordx4 s[4:7], s[0:1], %d' % SLOT['k'])
    a('s_load_dwordx8 s[8:15], s[0:1], %d' % SLOT['wo'])
    if o['remap'] == 1: a('s_lshr_b32 s3, s2, 2\ns_and_b32 s3, s3, 0x18\ns_xor_b32 s2, s2, s3')
    if o['remap'] == 2: a('s_lshr_b32 s3, s2, 3\ns_and_b32 s3, s3, 0x18\ns_lshl_b32 s21, s2, 2\ns_and_b32 s21, s21, 0xe0\ns_and_b32 s2, s2, 7\ns_or_b32 s2, s2, s3\ns_or_b32 s2, s2, s21')
    if o['remap'] == 3: a('s_xor_b32 s2, s2, 0x18')
    if o['remap'] == 4: a('s_bfe_u32 s3, s2, 0x10002\ns_and_b32 s21, s2, 3\ns_lshl1_add_u32 s3, s21, s3\ns_and_b32 s2, s2, 0xf8\ns_or_b32 s2, s2, s3')
    if o['remap'] == 5: a('s_xor_b32 s2, s2, 1')
    a('v_lshrrev_b32 v1, 6, v0\nv_and_b32 v0, 63, v0\nv_readfirstlane_b32 s20, v1')
    if o['wsw']: a('s_xor_b32 s20, s20, 4')
    a('s_and_b32 s21, s2, 7\ns_bfe_u32 s22, s2, 0x20003\ns_lshr_b32 s23, s2, 5')
    a('v_and_b32 v1, 15, v0\nv_lshrrev_b32 v2, 4, v0')
    def srd(r, src, n):
        if src is not None: a('s_mov_b32 s%d, s%d\ns_mov_b32 s%d, s%d' % (r, src, r + 1, src + 1))
        a('s_mov_b32 s%d, %d\ns_mov_b32 s%d, 0x20000' % (r + 2, SIZES[n], r + 3))
    H0 = 's_and_b32 s16, s22, 2\ns_add_u32 s16, s16, s22\ns_xor_b32 s16, s16, s23'
    if o['rot2'] == 1: H0 = 's_and_b32 s16, s22, 2\ns_xor_b32 s16, s16, s23\ns_and_b32 s16, s16, 3\ns_lshl_b32 s16, s16, 1'
    if o['rot2'] == 2: H0 = 's_and_b32 s16, s22, 2\ns_lshl_b32 s16, s16, 1\ns_xor_b32 s16, s16, s23'
    if o['rot2'] == 3: H0 = 's_and_b32 s16, s23, 3\ns_lshl_b32 s16, s16, 1\ns_and_b32 s3, s22, 2\ns_add_u32 s3, s3, s22\ns_xor_b32 s16, s16, s3'
    if o['rot2'] == 4: H0 = 's_lshr_b32 s16, s22, 1\ns_xor_b32 s16, s16, s23\ns_and_b32 s16, s16, 1\ns_lshl_b32 s16, s16, 2'
    if o['alt'] == 1: H0 = 's_xor_b32 s16, s22, s23\ns_and_b32 s3, s16, 2\ns_and_b32 s16, s16, 3\ns_add_u32 s16, s16, s3'
    if o['alt'] == 2: H0 = 's_and_b32 s16, s22, 2\ns_xor_b32 s16, s16, s23\ns_and_b32 s3, s16, 2\ns_and_b32 s16, s16, 3\ns_add_u32 s16, s16, s3'
    if o['alt'] == 3: H0 = 's_and_b32 s16, s22, 1\ns_xor_b32 s16, s16, s23\ns_and_b32 s16, s16, 3'
    if o['alt'] == 4: H0 = 's_and_b32 s16, s22, 1\ns_xor_b32 s16, s16, s23\ns_and_b32 s16, s16, 3\ns_and_b32 s3, s22, 2\ns_lshl1_add_u32 s16, s3, s16'
    for i_ in range(len(o['tramp'])): a('s_cmp_eq_u32 s20, %d\ns_cbranch_scc1 L_tr%d' % (i_, i_))
    a('s_cmp_lt_u32 s20, 4\ns_cbranch_scc1 L_comp')
    a('s_cmp_gt_u32 s20, 4\ns_cbranch_scc1 L_help')
    def gpoll(name, nw, off):
        sl = ('s_sleep %d\n' % o['psleep']) if o['psleep'] else ''
        if o['rep'] == 2:
            a(W0 + '\ns_mov_b64 s[84:85], 0\ns_load_dword s85, s[66:67], %d glc\ns_sleep %d' % (off + 64, o['rsl']))
            a('L_%s:' % name)
            for r_ in range(2):
                a('s_load_dword s%d, s[66:67], %d glc\ns_waitcnt lgkmcnt(1)\ns_max_u32 s30, s84, s85\ns_cmp_ge_u32 s30, %d\ns_cbranch_scc1 L_%sok' % (84 + r_, off + 64 * r_, nw, name))
            a('s_sub_u32 s54, s54, 1\ns_cbranch_scc0 L_%s\nL_%sok:' % (name, name))
        elif o['atom']:
            a('L_%s:\n%ss_load_dword s84, s[66:67], %d glc\ns_sub_u32 s54, s54, 1\ns_cbranch_scc1 L_%sok\ns_waitcnt lgkmcnt(0)' % (name, sl, off, name))
            a('s_cmp_lt_u32 s84, %d\ns_cbranch_scc1 L_%s\nL_%sok:' % (nw, name, name))
        elif o['poll'] == 'p':
            a(W0)
            for i in range(0, nw, 2): a('s_mov_b64 s[%d:%d], 0' % (84 + i, 85 + i))
            a('L_%s:\ns_load_dwordx%d s[84:%d], s[66:67], %d glc\n%ss_sub_u32 s54, s54, 1\ns_cbranch_scc1 L_%sok' % (name, nw, 83 + nw, off, sl, name))
            a('s_and_b64 s[30:31], s[84:85], s[86:87]')
            for i in range(4, nw, 2): a('s_and_b64 s[30:31], s[30:31], s[%d:%d]' % (84 + i, 85 + i))
            a('s_and_b32 s30, s30, s31\ns_cbranch_scc0 L_%s\nL_%sok:' % (name, name))
        elif o['poll'] == 's':
            a('L_%s:\n%ss_load_dwordx%d s[84:%d], s[66:67], %d glc\ns_sub_u32 s54, s54, 1\ns_cbranch_scc1 L_%sok\ns_waitcnt lgkmcnt(0)' % (name, sl, nw, 83 + nw, off, name))
            k = nw
            while k > 2:
                k //= 2
                for i in range(0, k, 2): a('s_and_b64 s[%d:%d], s[%d:%d], s[%d:%d]' % (84 + i, 85 + i, 84 + i, 85 + i, 84 + k + i, 85 + k + i))
            a('s_and_b32 s84, s84, s85\ns_cbranch_scc0 L_%s\nL_%sok:' % (name, name))
        else:
            a('v_and_b32 v19, %d, v0\nv_lshlrev_b32 v19, 2, v19' % (nw - 1))
            a('L_%s:\n%sbuffer_load_dword v18, v19, s[%d:%d], s62 offen offset:%d sc1\ns_sub_u32 s54, s54, 1\ns_cbranch_scc1 L_%sok\ns_waitcnt vmcnt(0)' % (name, sl, SWS, SWS + 3, off, name))
            a('v_cmp_ne_u32 vcc, 1, v18\ns_cbranch_vccnz L_%s\nL_%sok:' % (name, name))
    def code_prefetch(lab='L_pc'):
        if o['codepf']:
            a('s_getpc_b64 s[66:67]\n%s:\ns_sub_u32 s66, s66, %s-%s\ns_subb_u32 s67, s67, 0' % (lab, lab, KN))
            a('s_lshr_b32 s3, s2, 3\ns_lshl_b32 s3, s3, 7\nv_lshlrev_b32 v100, 12, v0\nv_add_u32 v100, s3, v100')
            a('v_mov_b32 v103, s67\nv_add_co_u32 v102, vcc, s66, v100\nv_addc_co_u32 v103, vcc, 0, v103, vcc')
            a('v_cmp_gt_u32 vcc, L_codeend-%s, v100\ns_and_saveexec_b64 s[64:65], vcc' % KN)
            a('global_load_dword v101, v[102:103], off')
            a('s_mov_b64 exec, s[64:65]')
    def clears(all12=False, va=4, vd=12):
        a('s_lshl_b32 s3, s23, 1\ns_and_b32 s58, s22, 1\ns_add_u32 s3, s3, s58\ns_mul_i32 s3, s3, 3\n' + ('' if all12 else 's_add_u32 s3, s3, s18\n') + 's_mul_i32 s58, s3, %d' % (4 * o['OT']))
        a('s_lshl_b32 s3, s21, 1\ns_lshr_b32 s59, s22, 1\ns_add_u32 s3, s3, s59\ns_lshl_b32 s3, s3, 9\ns_add_u32 s58, s58, s3\ns_add_u32 s58, s58, %d' % G_PO) if all12 else \
        a('s_lshl_b32 s3, s21, 1\ns_lshr_b32 s57, s22, 1\ns_add_u32 s3, s3, s57\ns_lshl_b32 s3, s3, 9\ns_add_u32 s58, s58, s3\ns_add_u32 s58, s58, %d' % G_PO)
        a('v_and_b32 v%d, 31, v0\nv_lshrrev_b32 v%d, 5, v0\nv_mul_u32_u24 v%d, %d, v%d\nv_lshl_add_u32 v%d, v%d, 4, v%d' % (va, va + 1, va + 1, o['OT'], va + 1, va, va, va + 1))
        for i in range(4): a('v_mov_b32 v%d, -1' % (vd + i))
        for i in range(6 if all12 else 2):
            if i: a('s_add_u32 s58, s58, %d' % (2 * o['OT']))
            a('buffer_store_dwordx4 v[%d:%d], v%d, s[%d:%d], s58 offen sc1' % (vd, vd + 3, va, SWS, SWS + 3))
            if all12: vm.issue('clr')
    a('; ==== loader: pulls its share of this code into L2, streams 9 chunks of x | wq (rotated start), then K, V parts and wo pieces')
    vm = Cnt(a, 'vmcnt', 63)
    XV, WV, OV, KV, DV, VV = 8, 12, 16, 20, 24, 28
    if o['lprio']: a('s_setprio %d' % o['lprio'])
    if o['cpfL']: code_prefetch()
    srd(SX, None, 'x'); srd(SWQ, None, 'wq')
    a('v_lshrrev_b32 v3, 3, v0\nv_and_b32 v4, 7, v0')
    def quad(base, step):
        a('v_xor_b32 v7, 64, v%d\nv_add_u32 v%d, %d, v7' % (base, base + 1, step))
        a('v_add_u32 v%d, %d, v%d\nv_add_u32 v%d, %d, v%d' % (base + 2, 2 * step, base, base + 3, 2 * step, base + 1))
    a('v_mul_u32_u24 v5, 1152, v3\nv_xor_b32 v32, v4, v2\nv_lshl_add_u32 v%d, v32, 4, v5' % XV)
    quad(XV, 8 * 1152 - 1024)
    a('v_lshlrev_b32 v6, 1, v2\nv_xor_b32 v6, v6, v1\nv_lshlrev_b32 v6, 4, v6')
    a('v_lshl_add_u32 v%d, v2, 13, v6' % WV)
    a('v_add_u32 v%d, %d, v%d' % (WV + 1, 4 * 8192 - 1024, WV))
    a('v_xor_b32 v7, 128, v%d\nv_add_u32 v%d, %d, v7\nv_add_u32 v%d, %d, v7' % (WV, WV + 2, 2 * (4 * 8192 - 1024), WV + 3, 3 * (4 * 8192 - 1024)))
    if o['rot'] == 'g3':
        a('s_add_u32 s17, s22, s23\ns_mul_i32 s3, s17, 43\ns_lshr_b32 s3, s3, 7\ns_mul_i32 s3, s3, 3\ns_sub_u32 s17, s17, s3\ns_mul_i32 s17, s17, 3')
    elif o['rot'] in ('g3x', 'g3y', 'g3b'):
        a('s_add_u32 s17, s22, s23\ns_mul_i32 s3, s17, 43\ns_lshr_b32 s3, s3, 7\ns_mul_i32 s3, s3, 3\ns_sub_u32 s17, s17, s3\ns_mul_i32 s17, s17, 3')
        if o['rot'] == 'g3x': a('s_add_u32 s17, s17, s21')
        else: a('s_lshr_b32 s3, s21, %d\ns_add_u32 s17, s17, s3' % (2 if o['rot'] == 'g3y' else 1))
        a('s_cmp_ge_u32 s17, 9\ns_cselect_b32 s3, 9, 0\ns_sub_u32 s17, s17, s3')
    elif o['rot'] == 'g4':
        a('s_add_u32 s17, s22, s23\ns_and_b32 s17, s17, 3\ns_mul_i32 s17, s17, 9\ns_lshr_b32 s17, s17, 2')
    elif o['rot'] == 'g2':
        a('s_add_u32 s17, s22, s23\ns_and_b32 s17, s17, 1\ns_mul_i32 s17, s17, 5')
    elif o['rot'] == 'g9':
        a('s_lshl_b32 s17, s22, 1\ns_add_u32 s17, s17, s23\ns_cmp_ge_u32 s17, 9\ns_cselect_b32 s3, 9, 0\ns_sub_u32 s17, s17, s3')
    else: a('s_mov_b32 s17, 0')
    a('s_mul_i32 s52, s23, 110592')
    if 'm' in o['hack']: a('s_lshl_b32 s53, s21, 9\ns_and_b32 s3, s22, 2\ns_lshl_b32 s3, s3, 11\ns_add_u32 s53, s53, s3\ns_and_b32 s3, s22, 1\ns_lshl_b32 s3, s3, 8\ns_add_u32 s53, s53, s3')
    elif 'n' in o['hack']: a('s_lshl_b32 s53, s21, 8\ns_lshl_b32 s3, s22, 11\ns_add_u32 s53, s53, s3')
    elif 'p' in o['hack']: a('s_lshl_b32 s53, s21, 10\ns_xor_b32 s3, s22, 3\ns_lshl_b32 s3, s3, 8\ns_add_u32 s53, s53, s3')
    elif KL: a(kvbase('s53') + '\ns_lshl_b32 s53, s53, 9\ns_lshr_b32 s3, s22, 1\ns_lshl_b32 s3, s3, %d\ns_add_u32 s53, s53, s3\ns_and_b32 s3, s22, 1\ns_lshl_b32 s3, s3, 8\ns_add_u32 s53, s53, s3' % o['kvmap'])
    else: a('s_lshl_b32 s53, s21, 10\ns_lshl_b32 s3, s22, 8\ns_add_u32 s53, s53, s3')
    a('s_waitcnt lgkmcnt(0)')
    stL('L kernarg')
    if o['stlb'] >= 1:
        a('s_lshl_b32 s57, s17, 19\ns_add_u32 s57, s57, s53\ns_load_dword s58, s[%d:%d], s57' % (SWQ, SWQ + 1))
    if o['stlb'] >= 2:
        a('s_mov_b32 s57, 0x200000\ns_mov_b32 s59, 0x400000')
        for base in (SWQ, 8, 4, 6): a('s_load_dword s58, s[%d:%d], 0\ns_load_dword s58, s[%d:%d], s57' % (base, base + 1, base, base + 1))
        for base in (SWQ, 8): a('s_load_dword s58, s[%d:%d], s59' % (base, base + 1))
    ndma = [0]
    def group(vreg, n, srd_, lds, tag, adv=None, dyn=None, so='s57'):
        seq = [('s_add_u32 m0, %s, %d' % (dyn, lds) if dyn else 's_mov_b32 m0, %d' % lds) + ('\ns_add_u32 s57, s57, %s' % adv if adv else '')]
        for j in range(n):
            def f(j=j):
                ndma[0] += 1
                if ndma[0] - 1 in o['tramp']:
                    i_ = o['tramp'].index(ndma[0] - 1)
                    a('s_branch L_ov%d\nL_tr%d:\ns_branch L_comp\nL_ov%d:' % (i_, i_, i_))
                if len(vm.seq) >= o['guard'][0]:
                    a('s_waitcnt vmcnt(%d)' % o['guard'][1]); vm.seq = vm.seq[-o['guard'][1]:]
                a('buffer_load_dwordx4 v%d, s[%d:%d], %s offen offset:%d %s lds' % (vreg + j, srd_, srd_ + 3, so, 1024 * j, o['nt'].get({SX: 'x', SWQ: 'q', SK: 'k', SV: 'v', SWO: 'o'}[srd_] + tag[-1], o['nt'].get({SX: 'x', SWQ: 'q', SK: 'k', SV: 'v', SWO: 'o'}[srd_], '')))); vm.issue(tag)
            seq.append(f)
        return seq
    def g8(vreg, n, sb, lds, tag):
        seq = []
        for j in range(n):
            if j % 8 == 0: seq.append('s_mov_b32 m0, %d' % (lds + 1024 * j + 4096))
            def f(j=j):
                if len(vm.seq) >= o['guard'][0]:
                    a('s_waitcnt vmcnt(%d)' % o['guard'][1]); vm.seq = vm.seq[-o['guard'][1]:]
                a('global_load_lds_dwordx4 v%d, s[%d:%d] offset:%d' % (vreg + j, sb, sb + 1, 1024 * (j % 8) - 4096)); vm.issue(tag)
            seq.append(f)
        return seq
    subs = {}
    def call(name, groups, tag, setup):
        if name not in subs:
            t_ = ['L_sub_%s:' % name]
            for vreg, n, srd_, mb, mi, so, adv in groups:
                t_.append('s_add_u32 m0, %s, %d' % (mb, mi))
                if adv: t_.append('s_add_u32 %s, %s, %d' % (so, so, adv))
                for j in range(n): t_.append('buffer_load_dwordx4 v%d, s[%d:%d], %s offen offset:%d lds' % (vreg + j, srd_, srd_ + 3, so, 1024 * j))
            t_.append('s_setpc_b64 s[18:19]')
            subs[name] = '\n'.join(t_)
        n_ = sum(g_[1] for g_ in groups)
        def f():
            if len(vm.seq) + n_ > 62:
                a('s_waitcnt vmcnt(%d)' % (62 - n_)); vm.seq = vm.seq[-(62 - n_):]
            a('s_call_b64 s[18:19], L_sub_%s' % name)
            for _ in range(n_): vm.issue(tag)
        return [setup, f]
    def item_q(c):
        st = c % 3; tag = 'n%d' % c
        m0o = o['m0o'] and c >= o['lateat']
        sx = ['s_lshl_b32 s57, s17, 7\ns_add_u32 s57, s57, s52']
        for t in range(3): sx += group(40 + 4 * t if m0o and t else XV, 4, SX, L_X0 + XS(c) + 4096 * t, tag, 32 * 1152 if t and not m0o else None)
        sw = ['s_lshl_b32 s57, s17, 19\ns_add_u32 s57, s57, s53']
        for t in range(4): sw += group(52 + 4 * t if m0o and t else WV, 4, SWQ, L_W + 16384 * st + 4096 * t, tag + ('b' if c == 8 and t >= 2 and o['b8a'] else ''), 16 * 8192 if t and not m0o else None)
        seq = sw + sx if o['wqfirst'] else sx + sw
        if o['hoist'] >= 2 and m0o:
            seq = ['s_lshl_b32 s58, s17, 19\ns_add_u32 s58, s58, s53'] + sx
            for t in range(4): seq += group(52 + 4 * t if t else WV, 4, SWQ, L_W + 16384 * st + 4096 * t, tag, None, None, 's58')
        if o['pre'] == 1 and m0o:
            seq = []
            for t in range(3): seq += group(40 + 4 * t if t else XV, 4, SX, L_X0 + XS(c) + 4096 * t, tag, None, None, 's%d' % (72 + 2 * c))
            for t in range(4): seq += group(52 + 4 * t if t else WV, 4, SWQ, L_W + 16384 * st + 4096 * t, tag, None, None, 's%d' % (73 + 2 * c))
            return seq
        if o['pre'] == 2 and m0o:
            return g8(110, 12, 64 + 4 * c, L_X0 + XS(c), tag) + g8(122, 16, 66 + 4 * c, L_W + 16384 * st, tag)
        if 'q' in o['sub'] and m0o:
            seq = call('q', [(40 + 4 * t if t else XV, 4, SX, 's55', 4096 * t, 's57', 0) for t in range(3)] + [(52 + 4 * t if t else WV, 4, SWQ, 's56', 4096 * t, 's58', 0) for t in range(4)], tag,
                       's_lshl_b32 s57, s17, 7\ns_add_u32 s57, s57, s52\ns_lshl_b32 s58, s17, 19\ns_add_u32 s58, s58, s53\ns_mov_b32 s55, %d\ns_mov_b32 s56, %d' % (L_X0 + XS(c), L_W + 16384 * st))
        if o['qseq']:
            if c == 0: seq += ['s_mov_b32 s63, s17\ns_add_u32 s64, s17, 3\ns_cmp_eq_u32 s64, 9\ns_cselect_b32 s64, 0, s64\ns_add_u32 s65, s64, 3\ns_cmp_eq_u32 s65, 9\ns_cselect_b32 s65, 0, s65']
            if c < 8: seq += ['s_add_u32 s17, s%d, %s' % (63 + o['qseq'][:c + 1].count(o['qseq'][c + 1]), o['qseq'][c + 1])]
            assert o['qseq'][0] == '0' and sorted(o['qseq']) == sorted('012' * 3)
        else: seq += ['s_add_u32 s17, s17, 1\ns_cmp_eq_u32 s17, 9\ns_cselect_b32 s17, 0, s17']
        return seq
    def item_k():
        seq = ['s_lshr_b32 s3, s22, 1\n' + ('s_lshl_b32 s3, s3, %d\n' % KL if KL else '') + 's_add_u32 s57, s54, s3\ns_mul_i32 s57, s57, 12288']
        for t in range(6): seq += group(KV, 4, SK, L_K + 4096 * t, 'k0', None if t == 0 else (4096 if t != 3 else 16 * 12288 - 8192))
        return seq
    WSLOT = {'w0': 0, 'w1': 1, 'w2': 2, 'w3': 4.5, 'w4': 3, 'w5': 0, 'w6': 1, 'w7': 2, 'o0': 3, 'o1': 0}
    assert L_P == 4.5 * 16384
    SP2 = 3; BASE2 = L_P
    if o['vf']:
        WSLOT = {'w0': 9, 'w1': 0, 'w2': 1, 'w3': 2, 'w4': 3, 'w5': 0, 'w6': 1, 'w7': 2, 'o0': 3, 'o1': 0}
        SP2 = 0; BASE2 = L_V + 36864; assert BASE2 == 9 * 16384
        if o['vf'] == 2: WSLOT.update({'w4': 4.5, 'w5': 3, 'w6': 0, 'w7': 1, 'o0': 2, 'o1': 3})
    NEED = {'w3': 1, 'w4': 2, 'w5': 3, 'w6': 5, 'w7': 6}
    L_O1 = L_P
    STAGES = ['w0', 'w1', 'o0', 'o1', 'w2', 'w3', 'w4', 'w5', 'w6', 'w7']
    def item_v(vp):
        seq = ['s_lshr_b32 s3, s16, 2\ns_xor_b32 s3, s3, %d\n' % (vp >> 1) + ('s_lshl_b32 s3, s3, %d\n' % KL if KL else '') + 's_add_u32 s57, ' + ('s63' if 'd' in o['hack'] else 's54') + ', s3\ns_mul_i32 s57, s57, 12288\ns_xor_b32 s3, s16, %d\ns_and_b32 s3, s3, 1\ns_lshl_b32 s3, s3, 7\ns_add_u32 s57, s57, s3' % (vp & 1)]
        for b in range(2):
            seq += group(VV, 4, SV, L_V + 12288 * vp + 6144 * b, 'v%d' % vp, 16 * 12288 - 8192 if b else None)
            seq += group(VV, 2, SV, L_V + 12288 * vp + 6144 * b + 4096, 'v%d' % vp, 8192)
        if 'v' in o['sub']:
            seq = call('v', [(VV, 4, SV, 's55', 0, 's57', 0), (VV, 2, SV, 's55', 4096, 's57', 8192), (VV, 4, SV, 's55', 6144, 's57', 16 * 12288 - 8192), (VV, 2, SV, 's55', 10240, 's57', 8192)], 'v%d' % vp,
                       seq[0] + '\ns_mov_b32 s55, %d' % (L_V + 12288 * vp))
        return seq
    def item_w(p):
        lds = int(L_W + 16384 * WSLOT['w%d' % p])
        seq = ['s_xor_b32 s3, s16, %d\n' % PC(p) + ('s_and_b32 s57, s3, 4\ns_mul_i32 s57, s57, %d\ns_add_u32 s3, s3, s57\n' % (KJ - 1) if KL else '') + 's_mul_i32 s57, s3, %d\ns_add_u32 s57, s57, s60' % (64 * 1152)]
        for t in range(4): seq += group(68 + 4 * t if o['m0o'] and t else OV, 4, SWO, lds + 4096 * t, 'w%d' % p, 16 * 1152 if t and not o['m0o'] else None)
        if 'w' in o['sub']:
            assert o['m0o']
            seq = call('w', [(68 + 4 * t if t else OV, 4, SWO, 's55', 4096 * t, 's57', 0) for t in range(4)], 'w%d' % p, seq[0] + '\ns_mov_b32 s55, %d' % lds)
        return seq
    def item_o(e):
        lds = L_W + 16384 * WSLOT['o%d' % e]; seq = []
        for hf in range(2):
            seq += ['s_xor_b32 s3, %s, %d\n' % ('s59' if o['alt'] == 3 else 's16', 2 * e + hf) + ('s_and_b32 s57, s3, 4\ns_mul_i32 s57, s57, %d\ns_add_u32 s3, s3, s57\n' % (KJ - 1) if KL else '') + 's_mul_i32 s57, s3, %d\ns_add_u32 s57, s57, s62' % (64 * 1152)]
            for t in range(2): seq += group(DV, 4, SWO, lds + 8192 * hf + 4096 * t, 'o%d' % e, 32 * 1152 if t else None)
        return seq
    def item(nm):
        seq = {'v': item_v, 'w': item_w, 'o': item_o, 'k': lambda _: item_k()}[nm[0]](int(nm[1]))
        if nm[:2] in o.get('drop', []): return []
        assert not (nm[2:] and nm[0] in o['sub'])
        cut = {'v': 9, 'k': 16}.get(nm[0], 11)
        if nm[2:] == 'a': return seq[:cut] + ['s_mov_b32 s61, s57']
        if nm[2:] == 'b': return ['s_mov_b32 s57, s61'] + seq[cut:]
        return seq
    def late_setup():
        srd(SK, 4, 'k'); srd(SV, 6, 'v'); srd(SWO, 8, 'wo'); srd(SWS, 14, 'ws')
        if 'd' in o['hack']: srd(SV, SX, 'x'); srd(SWO, SX, 'x')
        if 'k' in o['hack']: srd(SK, SX, 'x')
        a('v_mul_u32_u24 v7, 1152, v2\nv_add_u32 v%d, v7, v6\nv_add_u32 v%d, %d, v%d' % (OV, OV + 1, 4 * 1152 - 1024, OV))
        a('v_xor_b32 v6, 128, v6\nv_add_u32 v7, v7, v6\nv_add_u32 v%d, %d, v7\nv_add_u32 v%d, %d, v7' % (OV + 2, 2 * (4 * 1152 - 1024), OV + 3, 3 * (4 * 1152 - 1024)))
        a('v_xor_b32 v6, v1, v2\nv_lshlrev_b32 v6, 4, v6\nv_lshl_add_u32 v%d, v2, 8, v6' % KV)
        for j in range(1, 4): a('v_xor_b32 v%d, %d, v%d' % (KV + j, 64 * j, KV))
        a('v_and_b32 v6, 1, v2\nv_lshlrev_b32 v6, 1, v6\nv_xor_b32 v6, v6, v4\nv_lshl_add_u32 v%d, v6, 4, v5' % DV)
        quad(DV, 8 * 1152 - 1024)
        a('v_lshlrev_b32 v6, 8, v3\nv_lshl_add_u32 v%d, v32, 4, v6' % VV)
        quad(VV, 8 * 256 - 1024)
        if o['m0o']:
            for base, src, n, st_ in ((40, XV, 3, 32 * 1152), (52, WV, 4, 16 * 8192), (68, OV, 4, 16 * 1152)):
                for t in range(1, n):
                    a('s_mov_b32 s3, %d' % (t * st_))
                    for j in range(4): a('v_add_u32 v%d, s3, v%d' % (base + 4 * t + j, src + j))
        if o['pre']:
            assert not o['qseq'] and o['lateat'] >= 3
            for c in range(o['lateat'], 9):
                if o['pre'] == 1: a('s_lshl_b32 s3, s17, 7\ns_add_u32 s%d, s3, s52\ns_lshl_b32 s3, s17, 19\ns_add_u32 s%d, s3, s53' % (72 + 2 * c, 73 + 2 * c))
                else:
                    a('s_lshl_b32 s3, s17, 7\ns_add_u32 s3, s3, s52\ns_add_u32 s%d, s%d, s3\ns_addc_u32 s%d, s%d, 0' % (64 + 4 * c, SX, 65 + 4 * c, SX + 1))
                    a('s_lshl_b32 s3, s17, 19\ns_add_u32 s3, s3, s53\ns_add_u32 s%d, s%d, s3\ns_addc_u32 s%d, s%d, 0' % (66 + 4 * c, SWQ, 67 + 4 * c, SWQ + 1))
                if c < 8: a('s_add_u32 s17, s17, 1\ns_cmp_eq_u32 s17, 9\ns_cselect_b32 s17, 0, s17')
        if o['pre'] == 2:
            for base, src, n, st_ in ((110, XV, 3, 32 * 1152), (122, WV, 4, 16 * 8192)):
                for t in range(n):
                    a('s_mov_b32 s3, %d' % (t * st_ + (4096 if t % 2 == 0 else 0)))
                    for j in range(4): a('v_add_u32 v%d, s3, v%d' % (base + 4 * t + j, src + j))
        a(H0)
        if o['alt'] == 3: a('s_and_b32 s59, s22, 2\ns_lshl1_add_u32 s59, s59, s16')
        a('s_lshl_b32 s54, s23, 5\n' + kvbase('s3') + '\ns_add_u32 s54, s54, s3')
        if 'd' in o['hack']: a('s_and_b32 s63, s23, 1\ns_lshl_b32 s63, s63, 5')
        a(('s_mov_b32 s60, 0 ; %d' if 'd' in o['hack'] else 's_mul_i32 s60, s3, %d') % (256 * 1152))
        a('s_add_u32 s62, s60, 1024\ns_lshl_b32 s3, s22, 8\ns_add_u32 s60, s60, s3')
    L0 = len(a.lines)
    nq = 0; nbar = 0; since = {}
    def bar():
        nonlocal nbar
        vm.wait('n%d' % nbar)
        if nbar in (1, 2, 3, 8): stL('L at B%d' % nbar, 2)
        if nbar < 4: stL('L at B%d' % nbar, 3)
        a('s_barrier'); nbar += 1
    kdone = 0
    if o['lead']:
        assert o['klate'] and not o['wqfirst'] and not o['sub']
        def split(seq, n):
            k = 0
            for i_, x_ in enumerate(seq):
                if callable(x_):
                    k += 1
                    if k == n: return seq[:i_ + 1], seq[i_ + 1:]
        run(item_q(0)); run(item_q(1))
        for c in range(2, 9):
            h_, r_ = split(item_q(c), o['lead']) if c >= o['lead0'] else ([], item_q(c))
            if 'q%d' % c in o.get('drop', []): h_, r_ = [], r_[-1:]
            run(h_); bar(); run(r_)
            if c + 1 == o['lateat']: late_setup()
        if o['leadk']: run(item('k0a')); kdone = 1
        bar()
    else:
        for t in o['order']:
            if t == 'q':
                while nbar < nq - 1 and nq >= 3: bar()
                seq = item_q(nq)
                if 'q%d' % nq in o.get('drop', []): seq = seq[-1:]
                if o['first_half'] and nq in (1, 2) and nbar == nq - 1:
                    run(seq[:16]); bar(); run(seq[16:])
                else: run(seq)
                sz = 28; nq += 1
                if nq <= 2: stL('L issued q%d' % (nq - 1), 3)
                if o['sent'] and o['clr'] == 'L%d' % nq: srd(SWS, 14, 'ws'); clears(True, 90, 92)
                if nq == o['lateat']: late_setup()
            elif t == 'K': run(item_k()); sz = 24
            elif t == 'V': run(item_v(0)); sz = 12
            elif t == 'W': run(item_v(1)); sz = 12
            for c in list(since): since[c] += sz
            if t == 'q': since[nq - 1] = 0
            while nbar < nq and since[nbar] >= o['win']: bar()
        while nbar < 8: bar()
    pre8 = o['pre8'] if 'pre8' in o else (['w0'] if 'V' in o['order'] else ['v0', 'w0'])
    assert all(it[:2] in (('k0', 'v0', 'v1', 'v2', 'w0', 'w1') if o['vf'] else ('k0', 'v0', 'v1', 'v2', 'v3', 'w0')) for it in pre8)
    seq = [x_ for it in pre8 for x_ in item('k0b' if kdone and it == 'k0' else it)]
    if o['b8a']:
        run(seq[:-10]); bar(); run(seq[-10:]); vm.wait('n8b'); a('s_barrier')
    else:
        run(seq); bar()
    XB = [('BQ', []), ('BP', ['v0', 'w0']), ('w0', ['v1', 'w1']), ('w1', ['w2']), ('w2', ['w3']), ('w3', ['v2', 'w4']),
          ('w4', ['v3', 'w5']), ('w5', ['w6']), ('w6', ['w7']), ('w7', []), ('O', ['o0', 'o1'])]
    if o['alt']:
        XB = [('BQ', []), ('BP', ['v0', 'w0']), ('w0', ['w1']), ('w1', ['v1', 'w2']), ('w2', ['w3']), ('w3', ['v2', 'w4']),
              ('w4', ['w5']), ('w5', ['v3', 'w6']), ('w6', ['w7']), ('w7', []), ('O', ['o0', 'o1'])]
    if o['klate']: XB[0] = ('BQ', ['k0'])
    if o['bs']: XB.insert(1, ('BS', []))
    for sk in o['skip']:
        i_ = [x_[0] for x_ in XB].index(sk)
        XB[i_ - 1] = (XB[i_ - 1][0], XB[i_ - 1][1] + XB[i_][1]); del XB[i_]
    XN = [x_[0] for x_ in XB]
    plan = o.get('plan') or {'B8': ['w0'], 'BQ': ['w1', 'v1', 'w2'], 'BP': ['w3', 'v2', 'w4'], 'w1': ['w5'], 'w2': ['v3', 'w6'], 'w3': ['w7'], 'w6': ['o0'], 'w7': ['o1']}
    if o['vf'] and not o.get('plan'): plan = {'B8': ['v0', 'w0'], 'BQ': ['w1', 'v1', 'w2', 'w3'], 'BP': ['v2', 'w4'], 'w1': ['v3'], 'w2': ['w5'], 'w3': ['w6'], 'w4': ['w7'], 'w6': ['o0'], 'w7': ['o1']}
    FREEAT = {'w0': 'B8', 'w1': 'B8', 'w2': 'BQ', 'w3': ('BS' if o['bs'] else 'BP') if o['klate'] else 'BQ', 'w4': 'BS' if o['bs'] else 'BP', 'w5': 'w1', 'w6': 'w2', 'w7': 'w3', 'o0': 'w5', 'o1': 'w6'}
    if o['vf']: FREEAT.update({'w2': 'B8', 'w3': 'BQ', 'w5': 'w2', 'w6': 'w3', 'w7': 'w4', 'v3': 'w1'})
    if o['vf'] == 2: FREEAT.update({'w5': 'BP', 'w6': 'w2', 'w7': 'w3', 'o0': 'w4', 'o1': 'w6'})
    ALLN = ['B8', 'BQ', 'BS', 'BP'] + ['w%d' % i_ for i_ in range(8)] + ['O']
    names = ['B8'] + [x_[0] for x_ in XB]
    issued = set(x_[:2] for x_ in pre8 if x_[2:] != 'a') | ({'v0'} if 'V' in o['order'] else set()) | ({'v1'} if 'W' in o['order'] else set())
    last = 'B8'
    for nm, need in XB:
        for it in plan.get(last, []):
            assert it[:2] not in FREEAT or ALLN.index(FREEAT[it[:2]]) <= ALLN.index(last), (it, last)
            run(item(it))
            if it[2:] != 'a': issued.add(it[:2])
        assert all(x_ in issued for x_ in need), (nm, need)
        vm.wait(need)
        stL('L at ' + nm, 2)
        a('s_barrier'); last = nm
    assert len(issued) == 14 + o['klate']
    if o['hoist']:
        L_ = a.lines; i = L0
        while i < len(L_):
            if L_[i] == 's_barrier':
                j = i + 1
                while j < len(L_) and L_[j].startswith(('s_lshl', 's_lshr', 's_add_u32', 's_mul_i32', 's_xor', 's_and', 's_mov_b32')): j += 1
                k = i
                while L_[k - 1].startswith(('s_waitcnt vmcnt', 's_memrealtime', '; stamp')): k -= 1
                L_[k:j] = L_[i + 1:j] + L_[k:i + 1]
                i = j
            else: i += 1
    stL('L done')
    stL.flush(4)
    if o['padL']: a('s_branch L_padl\n.fill %d, 4, 0xbf800000\nL_padl:' % o['padL'])
    if 'f' in o['hack']: a('s_endpgm')
    if o['stlb']: a(W0)
    srd(SOUT, 10, 'out')
    a('s_lshl_b32 s52, s21, 1\ns_lshr_b32 s3, s22, 1\ns_add_u32 s52, s52, s3')
    if stamps == 4: a('s_min_u32 s52, s52, 11\ns_lshr_b32 s3, s52, 1\ns_and_b32 s75, s52, 1\ns_lshl_b32 s75, s75, 4\ns_or_b32 s75, s75, s3\ns_and_b32 s3, s2, 0xe8\ns_or_b32 s75, s75, s3')
    a('s_cmp_ge_u32 s52, 12\ns_cbranch_scc1 L_end')
    a('s_lshl_b32 s3, %s, 9\ns_add_u32 s62, s3, %d\ns_add_u32 s66, s14, s62\ns_addc_u32 s67, s15, 0' % ('s75' if stamps == 4 else 's2', G_FL + 384))
    a('s_mov_b32 s54, %d' % SPIN)
    a('s_lshl_b32 s3, s23, 1\ns_and_b32 s53, s22, 1\ns_add_u32 s53, s53, s3')
    a('s_mul_i32 s55, s53, 12\ns_add_u32 s55, s55, s52\ns_mul_i32 s55, s55, %d\ns_add_u32 s55, s55, %d\ns_add_u32 s56, s55, 4096' % (o['OT'], G_PO))
    if o['o64']:
        a('s_cmp_ge_u32 s52, 6\ns_cselect_b32 s58, %d, 0\ns_mul_i32 s57, s53, 6\ns_add_u32 s57, s57, s52\ns_mul_i32 s57, s57, %d\ns_sub_u32 s57, s57, s58\ns_add_u32 s57, s57, 1024' % (48 * 1152 - 64, 8 * 1152))
    else:
        a('s_mul_i32 s58, s52, 43\ns_lshr_b32 s58, s58, 7\ns_mul_i32 s3, s58, 3\ns_sub_u32 s3, s52, s3')
        a('s_mul_i32 s57, s53, 3\ns_add_u32 s57, s57, s3\ns_mul_i32 s57, s57, %d\ns_lshl_b32 s58, s58, 5\ns_add_u32 s57, s57, s58\ns_add_u32 s57, s57, 1024' % (16 * 1152))
    a('v_lshlrev_b32 v6, 3, v0')
    def and16(b):
        for i in range(0, 16, 4): a('s_and_b64 s[%d:%d], s[%d:%d], s[%d:%d]' % (b + i, b + 1 + i, b + i, b + 1 + i, b + 2 + i, b + 3 + i))
        a('s_and_b64 s[%d:%d], s[%d:%d], s[%d:%d]\ns_and_b64 s[%d:%d], s[%d:%d], s[%d:%d]\ns_and_b64 s[%d:%d], s[%d:%d], s[%d:%d]\ns_and_b32 s%d, s%d, s%d' % (
            b, b + 1, b, b + 1, b + 4, b + 5, b + 8, b + 9, b + 8, b + 9, b + 12, b + 13, b, b + 1, b, b + 1, b + 8, b + 9, b, b, b + 1))
    def reduce(name, nsrc, w, off, vaddr, outs, st=None):
        per = nsrc // 2; sz = 256 * w
        def ld(j): return 'buffer_load_dwordx%d %s, v%d, s[%d:%d], s%d offen offset:%d sc1' % (w, v(32 + w * j, w), vaddr, SWS, SWS + 3, 55 + j // per, sz * (j % per))
        osc = o['outsc'] if w == 4 or o['oddsc'] is None else o['oddsc']
        bt = o['btr'] & (1 if w == 4 else 2)
        if bt and w == 4:
            a('v_lshrrev_b32 v4, 2, v0\nv_and_b32 v5, 3, v0\nv_mul_u32_u24 v3, 1152, v4\nv_lshl_add_u32 v3, v5, 4, v3\nv_lshl_add_u32 v24, v5, 4, v4\nv_lshlrev_b32 v24, 2, v24')
        elif bt:
            a('v_lshrrev_b32 v4, 2, v0\nv_and_b32 v5, 3, v0\nv_mul_u32_u24 v3, 1152, v4\nv_lshl_add_u32 v3, v5, 3, v3\nv_lshl_add_u32 v24, v5, 4, v4\nv_lshlrev_b32 v24, 2, v24')
        elif o['o64'] and w == 2 and 'V' not in o['hack']: a('v_and_b32 v4, 7, v0\nv_lshrrev_b32 v5, 3, v0\nv_mul_u32_u24 v3, 1152, v4\nv_lshl_add_u32 v3, v5, 3, v3')
        elif 'U' in o['hack'] and w == 4: a('v_and_b32 v4, 7, v0\nv_lshrrev_b32 v5, 3, v0\nv_mul_u32_u24 v3, 1152, v4\nv_lshl_add_u32 v3, v5, 4, v3\ns_bitcmp1_b32 s59, 6\ns_cselect_b32 s3, %d, 0\ns_add_u32 s59, s59, s3' % (8 * 1152 - 64))
        elif 'W' in o['hack'] and w == 2: a('v_and_b32 v4, 7, v0\nv_lshrrev_b32 v5, 3, v0\nv_mul_u32_u24 v3, 1152, v4\nv_lshl_add_u32 v3, v5, 3, v3\ns_bitcmp1_b32 s57, 5\ns_cselect_b32 s3, %d, 0\ns_add_u32 s57, s57, s3' % (8 * 1152 - 32))
        elif 'V' in o['hack'] and w == 2: a('v_mov_b32 v3, 0x7ff00000')
        elif o['x4'] and w == 4: a('v_mul_u32_u24 v3, 1152, v1\nv_lshl_add_u32 v3, v2, 4, v3')
        else: a('v_mul_u32_u24 v3, 1152, v1\nv_lshl_add_u32 v3, v2, 3, v3')
        if o.get('dot'): a('s_mov_b32 s28, 0x00003f80\ns_mov_b32 s29, 0x3f800000')
        a('s_mov_b32 s29, 0xffff0000')
        if o['acc'] == 2: a('s_mov_b32 s28, 0x00003f80\ns_mov_b32 s31, 0x3f800000')
        if o['prog']:
            a('s_mov_b32 s63, 0')
            a('L_%s:\ns_load_dwordx%d s[84:%d], s[66:67], %d glc\ns_sub_u32 s54, s54, 1\ns_cselect_b32 s30, -1, 0\ns_waitcnt lgkmcnt(0)' % (name, nsrc, 83 + nsrc, off))
            k = nsrc; sh = 1
            while k > 1:
                for i in range(0, nsrc, 2 * sh):
                    if sh <= 4: a('s_lshl%d_add_u32 s%d, s%d, s%d' % (sh, 84 + i, 84 + i + sh, 84 + i))
                    else: a('s_lshl_b32 s%d, s%d, %d\ns_or_b32 s%d, s%d, s%d' % (84 + i + sh, 84 + i + sh, sh, 84 + i, 84 + i, 84 + i + sh))
                k //= 2; sh *= 2
            a('s_or_b32 s84, s84, s30\ns_and_b32 s84, s84, %d\ns_andn2_b32 s85, s84, s63\ns_cbranch_scc0 L_%s\ns_or_b32 s63, s63, s84' % ((1 << nsrc) - 1, name))
            for j in range(nsrc):
                a('s_bitcmp1_b32 s85, %d\ns_cbranch_scc0 L_%s_%d\n%s\nL_%s_%d:' % (j, name, j, ld(j), name, j))
            a('s_cmp_lg_u32 s63, %d\ns_cbranch_scc1 L_%s' % ((1 << nsrc) - 1, name))
            if st: st('flags ok')
            a('s_waitcnt vmcnt(0)')
        else:
            own = o['own'] and w == 4
            oe = own and o['oe'] and o['xe'] in ('E', 'G', 'H') and o['atom']
            if o['far']: a('s_branch L_far_%s\n.fill 300, 4, 0xbf800000\n.p2align 6\nL_far_%s:' % (name, name))
            if o['opre'] & (1 if w == 4 else 2): a('buffer_load_dword v22, v3, s[%d:%d], %s offen %s\ns_waitcnt vmcnt(0)' % (SOUT, SOUT + 3, outs, o.get('oprefl', '')))
            a(';WARM_ON')
            if o['xe']: a('s_barrier')
            if oe: a('ds_read_b128 v[32:35], v27')
            pm = o['bm'] >= (2 if w == 2 else 1) and o['bm'] != 3 or o['bm'] == 3 and w == 2
            full = (1 << nsrc) - 1
            if pm:
                a('s_mov_b32 s64, 0')
                a('L_%s:\ns_load_dword s84, s[66:67], %d glc\ns_sub_u32 s54, s54, 1\ns_cselect_b32 s30, %d, 0\ns_waitcnt lgkmcnt(0)' % (name, off, full))
                a('s_or_b32 s84, s84, s30\ns_andn2_b32 s85, s84, s64\ns_cbranch_scc0 L_%s\ns_mov_b32 s64, s84' % name)
                for j in range(nsrc):
                    a('s_bitcmp1_b32 s85, %d\ns_cbranch_scc0 L_%s_%d\n%s\nL_%s_%d:' % (j, name, j, 'ds_read_b128 v[32:35], v27' if own and j == 0 else ld(j), name, j))
                a('s_cmp_lg_u32 s64, %d\ns_cbranch_scc1 L_%s\ns_waitcnt vmcnt(0)' % (full, name))
                if o['sent'] and w == 2: a('s_mov_b32 s63, 0\ns_branch L_sum')
            else: gpoll(name, full if o['bm'] else (32 if w == 2 and o['o64'] else nsrc) - (1 if oe else 0), off)
            if stamps == 4: a('s_memrealtime s[68:69]')
            if st: st('flags ok')
            if o['sent'] and w == 2: a('s_mov_b32 s63, 0\nL_again:')
            if not pm or w == 2:
                for j in range(nsrc):
                    if j or not own: a(ld(j))
                if own and not oe: a('ds_read_b128 v[32:35], v27')
            if pm and w == 2: a('L_sum:')
            if o['dry']: a('L_dry_%s:' % name)
        for j in range(nsrc):
            if not o['prog'] and not (oe and j == 0): a(W0 if own and j == 0 else 's_waitcnt vmcnt(%d)' % (nsrc - 1 - j))
            if o['acc'] == 1:
                b_ = 32 + w * j; tmp = 16 + 4 * (j & 1)
                for t in range(w): a('v_lshlrev_b32 v%d, 16, v%d' % ((tmp if j else 8) + t, b_ + t))
                for t in range(w): a('v_and_b32 v%d, s29, v%d' % ((b_ if j else 12) + t, b_ + t))
                if j:
                    for t in range(0, w, 2): a('v_pk_add_f32 v[%d:%d], v[%d:%d], v[%d:%d]' % (8 + t, 9 + t, 8 + t, 9 + t, tmp + t, tmp + t + 1))
                    for t in range(0, w, 2): a('v_pk_add_f32 v[%d:%d], v[%d:%d], v[%d:%d]' % (12 + t, 13 + t, 12 + t, 13 + t, b_ + t, b_ + t + 1))
                continue
            if o['acc'] == 2:
                b_ = 32 + w * j
                for t in range(w): a('v_dot2_f32_bf16 v%d, v%d, s28, %s' % (8 + t, b_ + t, 'v%d' % (8 + t) if j else '0'))
                for t in range(w): a('v_dot2_f32_bf16 v%d, v%d, s31, %s' % (12 + t, b_ + t, 'v%d' % (12 + t) if j else '0'))
                if j == nsrc - 1: a('s_nop 2')
                continue
            for t in range(w):
                src = 32 + w * j + t
                if j == 0: a('v_lshlrev_b32 v%d, 16, v%d\nv_and_b32 v%d, s29, v%d' % (8 + 2 * t, src, 9 + 2 * t, src))
                elif o.get('dot'): a('v_dot2_f32_bf16 v%d, v%d, s28, v%d\nv_dot2_f32_bf16 v%d, v%d, s29, v%d' % (8 + 2 * t, src, 8 + 2 * t, 9 + 2 * t, src, 9 + 2 * t))
                else: a('v_lshlrev_b32 v16, 16, v%d\nv_and_b32 v17, s29, v%d\nv_pk_add_f32 v[%d:%d], v[%d:%d], v[16:17]' % (src, src, 8 + 2 * t, 9 + 2 * t, 8 + 2 * t, 9 + 2 * t))
        if o['sent'] and w == 2: a('v_cmp_u_f32 vcc, v8, v%d\n' % (9 if o['acc'] else 10) + 's_cbranch_vccnz L_retry\nL_accept:')
        if stamps == 4: a('s_memrealtime s[70:71]')
        for t in range(w): a('v_cvt_pk_bf16_f32 v%d, v%d, v%d' % ((8 + t, 8 + t, 12 + t) if o['acc'] else (8 + t, 8 + 2 * t, 9 + 2 * t)))
        if w == 4 and o['x4']:
            a('v_permlane32_swap_b32 v8, v10\nv_permlane32_swap_b32 v9, v11\nv_permlane16_swap_b32 v8, v10\nv_permlane16_swap_b32 v9, v11')
        if o['dry']: a('s_cbranch_execz L_dryret_%s' % name)
        if bt:
            for t in range(w): a('ds_bpermute_b32 v%d, v24, v%d' % (8 + t, 8 + t))
            a(W0)
        if w == 4 and o['x4']:
            a('buffer_store_dwordx4 v[8:11], v3, s[%d:%d], %s offen %s' % (SOUT, SOUT + 3, outs, osc))
        else:
            for t in range(w // 2): a('buffer_store_dwordx2 v[%d:%d], v3, s[%d:%d], %s offen offset:%d %s' % (8 + 2 * t, 9 + 2 * t, SOUT, SOUT + 3, outs, 32 * t, osc))
        a(';WARM_OFF')
        if stamps >= 4:
            a('s_waitcnt vmcnt(0)\ns_memrealtime s[72:73]\ns_waitcnt lgkmcnt(0)\nv_mov_b32 v31, 0\ns_lshl_b32 s3, s2, 9\ns_mul_i32 s74, s20, 24\ns_add_u32 s3, s3, s74\ns_add_u32 s3, s3, %d' % (STAMP_OFF + 8 * 50 - 96))
            for i in range(3) if stamps == 4 else [2]:
                a('v_mov_b32 v254, s%d\nv_mov_b32 v255, s%d' % (68 + 2 * i, 69 + 2 * i))
                a('buffer_store_dwordx2 v[254:255], v31, s[%d:%d], s3 offen offset:%d' % (SWS, SWS + 3, 8 * i))
    if stamps == 4:
        for w_, nm in enumerate(['odd', 'r0', 'r1', 'r2']):
            for i, x_ in enumerate(['flags', 'summed', 'end']): a('; stamp %d %s %s' % (50 + 3 * w_ + i, nm, x_))
    reduce('op', 16, 2, 0, 6, 's57')
    a('s_endpgm')
    if o['sent']:
        a('L_retry:\ns_cmp_lg_u32 s63, 0\ns_cbranch_scc1 L_accept\ns_mov_b32 s63, 1\ns_mov_b32 s54, %d' % SPIN)
        if stamps == 5: a('v_mov_b32 v20, 160\nv_mov_b32 v21, 1\ns_mov_b64 exec, 1\nglobal_atomic_add v20, v21, s[12:13] sc1\ns_mov_b64 exec, -1')
        if o['ack1'] and o['o64']:
            a('s_cmp_ge_u32 s52, 6\ns_cselect_b32 s3, 3, 0\ns_and_b32 s62, s2, 0xe8\ns_or_b32 s3, s3, s62\ns_lshl_b32 s3, s3, 9\ns_add_u32 s62, s3, %d\ns_add_u32 s66, s14, s62\ns_addc_u32 s67, s15, 0' % (G_FL + 384))
        gpoll('oq', 0xffff if o['bm'] else 32 if o['o64'] else 16, 64)
        a('s_branch L_again')
    for t_ in subs.values(): a(t_)
    if o['padC']: a('.fill %d, 4, 0xbf800000' % o['padC'])
    a('L_comp:')
    lg = Cnt(a, 'lgkmcnt', 15)
    stC('C entry', 3)
    XA, WA, VA, OVA, OA, QA, FRA, FUA, FV, FC, PFA = 10, 12, 16, 18, 20, 21, 22, 23, 24, 27, 31
    A = 32; F = [80, 108]; B = 136; C = 184; VWO = 232; SP = 244
    KF = B; QF = 80; S = 96; P = SP; KA = 184; UA = 254; QT = 192
    a('v_bfe_u32 v3, v0, 2, 2\nv_and_b32 v4, 3, v0')
    a('s_lshr_b32 s18, s20, 1\ns_and_b32 s17, s20, 1')
    a(H0)
    a('v_lshrrev_b32 v7, 1, v1\nv_xor_b32 v7, v7, v2\nv_lshlrev_b32 v7, 4, v7\nv_lshl_add_u32 v5, v1, 7, v7\nv_xor_b32 v6, 64, v5')
    a('s_mul_i32 s3, s18, 6144\ns_add_u32 s3, s3, %d' % L_X0)
    a('v_add_u32 v%d, s3, v5\nv_add_u32 v%d, s3, v6' % (XA, XA + 1))
    a('s_add_u32 s3, s3, %d\nv_add_u32 v%d, s3, v5\nv_add_u32 v%d, s3, v6' % (L_V - L_X0, VA, VA + 1))
    a('s_and_b32 s3, s22, 1\ns_mul_i32 s3, s3, 6144\ns_add_u32 s3, s3, %d' % L_V)
    if o['alt'] == 3: a('s_and_b32 s19, s22, 2\ns_mul_i32 s19, s19, 12288\ns_add_u32 s3, s3, s19')
    a('v_add_u32 v%d, s3, v5\nv_add_u32 v%d, s3, v6' % (OVA, OVA + 1))
    a('v_and_b32 v7, 1, v2\nv_lshl_add_u32 v7, v7, 2, v3\ns_lshl_b32 s3, s17, 2\nv_xor_b32 v7, s3, v7')
    a('v_lshl_add_u32 v5, v2, 3, v3\nv_lshlrev_b32 v8, 8, v5\nv_lshl_add_u32 v8, v4, 3, v8')
    assert L_W == 0
    for t in range(4): a('v_xor_b32 v9, %d, v7\nv_lshl_add_u32 v%d, v9, 5, v8' % (t, WA + t))
    a('v_and_b32 v7, 1, v2\nv_lshrrev_b32 v8, 1, v3\nv_lshl_add_u32 v7, v7, 1, v8\nv_xor_b32 v7, s20, v7')
    a('v_lshlrev_b32 v8, 7, v5\nv_lshl_add_u32 v8, v4, 3, v8\nv_lshl_add_u32 v%d, v7, 5, v8' % OA)
    a('s_mul_i32 s3, s18, 12288\ns_lshl_b32 s19, s17, 11\ns_add_u32 s3, s3, s19\ns_add_u32 s3, s3, %d' % L_Q)
    a('v_lshlrev_b32 v25, 4, v0\nv_lshlrev_b32 v26, 3, v0\nv_add_u32 v%d, s3, v%d' % (QA, 26 if o['q64'] else 25))
    if o['q64'] == 3: a('v_lshrrev_b32 v7, 1, v2\nv_lshl_add_u32 v7, v7, 4, v1\nv_lshlrev_b32 v7, 4, v7\nv_and_b32 v8, 1, v2\nv_lshl_add_u32 v7, v8, 3, v7\nv_add_u32 v%d, s3, v7' % QA)
    if o['own3']:
        assert o['own'] and not o['oe'] and not o['bm']
        a('s_and_b32 s59, s2, 0xf8\ns_lshl_b32 s48, s20, 1\ns_add_u32 s59, s59, s48\ns_and_b32 s3, s2, 1\ns_add_u32 s3, s3, s59\ns_mul_i32 s34, s3, %d\ns_xor_b32 s3, s3, 1\ns_mul_i32 s35, s3, %d' % (o['MO'], o['MO']))
        a('s_and_b32 s3, s21, 6\ns_xor_b32 s48, s48, s3\ns_lshl_b32 s3, s48, 10\ns_add_u32 s3, s3, %d\ns_add_u32 s34, s34, s3\ns_add_u32 s35, s35, s3\ns_add_u32 s35, s35, 1024' % G_PM)
        a('s_cmp_eq_u32 s48, 0\ns_cselect_b32 s33, 0x7ff00000, 0\ns_cselect_b64 s[30:31], -1, 0\nv_add_u32 v27, %d, v25' % L_F)
        for qt in (1, 2): a('s_add_u32 s%d, s34, %d\ns_add_u32 s%d, s35, %d' % (34 + 2 * qt, qt * o['MQ'], 35 + 2 * qt, qt * o['MQ']))
    else:
        a('s_and_b32 s59, s2, 0xf8\ns_lshl_b32 s48, s20, 1\ns_add_u32 s59, s59, s48\ns_mul_i32 s56, s59, %d\ns_add_u32 s56, s56, %d\ns_add_u32 s57, s56, %d' % (o['MO'], G_PM, o['MO']))
        a('s_xor_b32 s48, s48, s21\ns_lshl_b32 s3, s48, 10\ns_add_u32 s56, s56, s3\ns_xor_b32 s3, s3, 1024\ns_add_u32 s57, s57, s3')
        if o['own']:
            a('s_cmp_eq_u32 s48, 0\ns_cselect_b32 s56, 0x7ff00000, s56\ns_cselect_b64 s[30:31], -1, 0\ns_cmp_eq_u32 s48, 1\ns_cselect_b32 s57, 0x7ff00000, s57\ns_cselect_b64 s[32:33], -1, 0\nv_add_u32 v27, %d, v25' % L_F)
    a('s_lshl_b32 s3, s23, 1\ns_and_b32 s54, s22, 1\ns_add_u32 s3, s3, s54\ns_mul_i32 s3, s3, 12\n' + ('s_mul_i32 s54, s18, 6' if o['o64'] else 's_mul_i32 s54, s20, 3') + '\ns_add_u32 s3, s3, s54\ns_mul_i32 s58, s3, %d' % o['OT'])
    if o['o64']:
        assert not o['bm'] and not o['btr'] & 2
        a('s_lshl_b32 s3, s17, 8\ns_add_u32 s58, s58, s3')
    a('s_lshl_b32 s3, s21, 1\ns_lshr_b32 s55, s22, 1\ns_add_u32 s55, s55, s3\ns_lshl_b32 s3, s55, 9\ns_add_u32 s58, s58, s3\ns_add_u32 s58, s58, %d' % G_PO)
    a('v_and_b32 v5, 7, v0\nv_lshrrev_b32 v6, 3, v0')
    a('v_add_u32 v7, s59, v5\nv_lshlrev_b32 v7, 9, v7\n' + ('s_mov_b32 s3, %d' % (G_FL + MOFF) if o['atom'] else 's_lshl_b32 s3, s21, 2\ns_add_u32 s3, s3, %d' % (G_FL + MOFF)) + '\nv_add_u32 v7, s3, v7')
    a('s_sub_u32 s54, s54, 2\nv_add_u32 v8, s54, v5\nv_lshrrev_b32 v9, 1, v8\nv_and_b32 v8, 1, v8\nv_lshl_add_u32 v8, v8, 4, v9\ns_and_b32 s3, s2, 0xe8\nv_add_u32 v8, s3, v8\nv_lshlrev_b32 v8, 9, v8')
    a(('s_mov_b32 s3, %d' if o['atom'] else 's_lshl_b32 s3, s55, 2\ns_add_u32 s3, s3, %d') % (G_FL + 128 + OOFF) + '\nv_add_u32 v8, s3, v8\nv_mov_b32 v9, 0x7ff00000')
    a('v_lshl_add_u32 v7, v6, 6, v7\nv_lshl_add_u32 v8, v6, 6, v8\nv_cmp_gt_u32 vcc, %d, v6\nv_cndmask_b32 v5, 8, v5, vcc' % o['rep'])
    if o['own'] and o['oe'] and o['xe'] in ('E', 'G', 'H') and o['atom']: a('v_cmp_ne_u32 vcc, s48, v5\nv_cndmask_b32 v7, v9, v7, vcc')
    a('v_cmp_gt_u32 vcc, %d, v5\n' % (8 if o['o64'] else 5) + 'v_cndmask_b32 v8, v9, v8, vcc\nv_cmp_gt_u32 vcc, 2, v5\nv_cndmask_b32 v30, v8, v7, vcc\nv_cndmask_b32 v28, v9, v7, vcc\nv_mov_b32 v29, 1')
    if o['bm']: a('v_xor_b32 v7, s48, v5\nv_mov_b32 v8, s55\nv_cndmask_b32 v7, v8, v7, vcc\nv_lshlrev_b32 v29, v7, v29')
    if 'g' in o['hack']: a('s_mov_b32 s58, 0x7ff00000\n' + '\n'.join('s_mov_b32 s%d, s58' % r_ for r_ in (34, 35, 36, 37, 38, 39, 56, 57)))
    if o['o64']: a('v_lshrrev_b32 v7, 3, v1\nv_mul_u32_u24 v7, %d, v7\nv_lshl_add_u32 v7, v2, 6, v7\nv_and_b32 v8, 7, v0\nv_lshl_add_u32 v3, v8, 3, v7' % o['OT'])
    a('s_mov_b32 s52, s20')
    def unit_setup():
        a('s_cmp_ge_u32 s52, 3\ns_cselect_b32 s3, 12288, 0\ns_add_u32 s3, s3, %d' % L_K)
        if o['q64'] == 3:
            a('v_xor_b32 v7, v1, v2\nv_lshlrev_b32 v7, 4, v7\nv_lshl_add_u32 v7, v1, 8, v7')
            for kk in range(4): a('v_xor_b32 v8, %d, v7\nv_add_u32 v%d, s3, v8' % (64 * kk, KA + kk))
        else:
            a('v_lshrrev_b32 v7, 1, v2\nv_xor_b32 v7, v1, v7\nv_lshlrev_b32 v7, 4, v7\nv_lshl_add_u32 v7, v1, 8, v7\nv_and_b32 v8, 1, v2\nv_lshl_add_u32 v7, v8, 3, v7')
            for j in range(8): a('v_xor_b32 v8, %d, v7\nv_add_u32 v%d, s3, v8' % (32 * j, KA + j))
        a('s_lshl_b32 s3, s52, 12\ns_add_u32 s3, s3, %d\nv_add_u32 v%d, s3, v%d' % (L_Q, UA, 26 if o['q64'] in (1, 2) else 25))
        a('s_mov_b32 s50, 0x%x\ns_mov_b32 s51, s50' % f2i((1 if o['mimic'] else 128 ** -0.5) * math.log2(math.e)))
        if o['mimic']: a('s_mov_b32 s26, 0x%x\ns_mov_b32 s27, s26\ns_mov_b32 s25, 0xffff0000' % f2i(128 ** -0.5))
        a('s_mul_i32 s3, s52, 1536\ns_mul_i32 s49, s2, 9216\ns_add_u32 s49, s49, s3\ns_add_u32 s49, s49, %d' % G_P)
        if o['pds']: a('s_add_u32 s3, s3, %d\nv_add_u32 v255, s3, v25\nv_add_u32 v31, s3, v26' % (L_P + 27648))
    def k_reads(late=False):
        if o['klate'] and not late: return []
        if o['q64'] == 3: return ['ds_read_b128 %s, v%d offset:%d' % (v(KF + 16 * kt + 4 * kk, 4), KA + kk, 4096 * kt) for kk in range(4) for kt in range(3)]
        return ['ds_read_b64 %s, v%d offset:%d' % (v(KF + 16 * kt + 2 * j, 2), KA + j, 4096 * kt) for j in range(8) for kt in range(3)]
    if o['mimic']: a(W0)
    unit_setup()
    if o['own3']: a('v_add_u32 v1, s33, v25')
    a(W0)
    srd(SWS, 14, 'ws')
    if o['sat'] & 1: a('s_lshl_b32 s3, s59, 9\ns_add_u32 s42, s3, %d\ns_add_u32 s43, s42, 512\ns_mov_b32 s40, 1' % (256 + MOFF))
    def wreads(st, off, wa=WA): return ['ds_read_b64_tr_b16 %s, v%d offset:%d' % (v(st + 4 * t + 2 * hh, 2), wa + t, off + 1024 * hh) for t in range(4) for hh in range(2)]
    def reads_A(n, ks, st=None):
        st = st or F[ks]
        return ['ds_read_b128 %s, v%d offset:%d' % (v(st + 16 + 4 * q, 4), XA + ks, XS(n) + 2048 * q) for q in range(3)] + wreads(st, 16384 * (n % 3) + 8192 * ks)
    ORD = [(t, q if t % 2 == 0 else 2 - q) for t in range(4) for q in range(3)]
    def mfma(acc, ks, first, swap, od=None):
        out = []
        for t, q in od or ORD:
            d = v(acc + 4 * (3 * t + q), 4); x = v(F[ks] + 4 * t, 4); y = v(F[ks] + 16 + 4 * q, 4)
            if swap: x, y = y, x
            out.append(MF % (d, x, y, '0' if first else d))
        return out
    def cvt(d, s_): return ['v_cvt_pk_bf16_f32 v%d, v%d, v%d' % (d, s_, s_ + 1), 'v_cvt_pk_bf16_f32 v%d, v%d, v%d' % (d + 1, s_ + 2, s_ + 3)]
    def ds(txt, tag):
        def f(): a(txt); lg.issue(tag)
        return f
    def step(m, dsops, extra=(), waits=None, pre=(), xstart=0, dstart=0):
        n = len(m); per = [[] for _ in range(n)]
        for i, x_ in enumerate(pre): per[i].append(x_)
        nd = n - dstart
        for i, x_ in enumerate(dsops): per[dstart + (i if len(dsops) <= nd else i * nd // len(dsops))].append(x_)
        nx = n - xstart
        for i, x_ in enumerate(extra): per[xstart + (i * nx // len(extra))].append(x_)
        for i in range(n):
            if waits and i in waits: lg.wait(waits[i])
            a(m[i]); run(per[i])
    stC('C at B0', 3)
    a('s_barrier')
    stC('B0')
    def tA(n, ks): return [ds(x_, 'a%d%d%s' % (n, ks, 'lo' if i < 7 else 'hi')) for i, x_ in enumerate(reads_A(n, ks))]
    if o['atune']:
        bg = o['atune']
        run(tA(0, 0))
        for n in range(7):
            kr = [ds(x_, 'k') for x_ in k_reads()[6 * (n - 3):6 * (n - 2)]] if 3 <= n < 7 else []
            m = mfma(A, 0, n == 0, False)
            step(m[:10], tA(n, 1), waits={0: 'a%d0lo' % n, 6: 'a%d0hi' % n}); step(m[10:], [])
            m = mfma(A, 1, False, False)
            step(m[:bg], [], waits={0: 'a%d1lo' % n})
            lg.wait_all(); a('s_barrier')
            r = tA(n + 1, 0)
            run(r[:1]); step(m[bg:], r[1:] + kr)
        lg.seq = []
    else: run(reads_A(0, 0))
    for n in range(7 if o['atune'] else 0, 9):
        if n == 7 and o['tm']:
            assert not o['b8a']
            F2 = 204; QT = F[1]
            a(W0)
            run(interleave(mfma(A, 0, False, False), reads_A(7, 1), 0, 2))
            a(W0); a('s_barrier'); stC('B8')
            a(';WARM_ON')
            r0, r1 = reads_A(8, 0), reads_A(8, 1, F2)
            rr = []
            for idx in ([0], [3, 4], [5, 6], [1], [2], [7, 8], [9, 10]):
                rr += [r0[i] for i in idx] + [r1[i] for i in idx]
            run(interleave(mfma(A, 1, False, False), rr, 0, 2))
            stC('end 7,1', 3)
            m = []; qw = []
            for i, (tp, q) in enumerate([(tp, q) for tp in range(2) for q in range(3)]):
                for u in range(2):
                    t = 2 * tp + u; d = v(A + 4 * (3 * t + q), 4)
                    for st in (F[0], F2): m.append(MF % (d, v(st + 4 * t, 4), v(st + 16 + 4 * q, 4), d))
                    qw += cvt(QT + 4 * i + 2 * u, A + 4 * (3 * t + q))
                    if o['q64'] and 'q' not in o['hack']: qw[-1] += '\nds_write_b64 v%d, %s offset:%d' % (QA, v(QT + 4 * i + 2 * u, 2), q * 4096 + tp * 1024 + u * 512)
                if not o['q64']: qw[-1] += '\nds_write_b128 v%d, %s offset:%d' % (QA, v(QT + 4 * i, 4), q * 4096 + tp * 1024)
            m[0] = 's_waitcnt lgkmcnt(12)\n' + m[0]; m[4] = 's_waitcnt lgkmcnt(8)\n' + m[4]; m[8] = ('s_waitcnt lgkmcnt(%d)' % (1 if o['q64'] and o['qs'] <= 6 and 'q' not in o['hack'] else 0)) + '\n' + m[8]
            run(interleave(m, qw, o['qs'], 1))
            stC('Q issued', 3)
            if stamps == 3: a(W0); stC('Q done', 3)
            break
        if n == 8: stC('end 7,1', 3)
        a(W0)
        run(interleave(mfma(A, 0, n == 0, False), (['s_barrier'] if n == 8 and o['b8a'] else []) + reads_A(n, 1), 0, 2))
        if n < 8:
            a(W0)
            a('s_barrier')
            if n == 7: stC('B8')
            run(interleave(mfma(A, 1, False, False), reads_A(n + 1, 0) + (k_reads()[8 * (n - 4):8 * (n - 3)] if 4 <= n < 7 else []), 0, 2))
        else:
            stC('end 8,0', 3)
            a(W0)
            od = [(2 * tp + u, q) for tp in range(2) for q in range(3) for u in range(2)]
            qw = []
            for i, (t, q) in enumerate(od):
                qw += cvt(QT + 2 * i, A + 4 * (3 * t + q))
                if t & 1: qw[-1] += '\nds_write_b128 v%d, %s offset:%d' % (QA, v(QT + 2 * i - 2, 4), q * 4096 + (t >> 1) * 1024)
            run(interleave(mfma(A, 1, False, False, od), qw, 6, 2))
            stC('Q issued', 3)
            if stamps == 3: a(W0); stC('Q done', 3)
    if o['own3']:
        a('s_and_b32 s3, s21, 1\ns_lshl_b32 s3, s3, 6')
        for t in range(4): a('v_xor_b32 v%d, s3, v%d' % (WA + t, WA + t))
    if o['vf']:
        for t in range(4): a('v_add_u32 v%d, %d, v%d' % (250 + t, BASE2, WA + t))
    if o['uprio']: a('s_setprio %d' % o['uprio'])
    a('L_unit:')
    a(W0)
    a('s_barrier')
    stC('BQ')
    for kk in range(4):
        if o['klate']: run(k_reads(True)[3 * kk:3 * kk + 3])
        if o['q64'] == 1: a('ds_read2st64_b64 %s, v%d offset0:%d offset1:%d' % (v(QF + 4 * kk, 4), UA, 2 * kk, 2 * kk + 1))
        elif o['q64'] == 2: a('ds_read_b64 %s, v%d offset:%d\nds_read_b64 %s, v%d offset:%d' % (v(QF + 4 * kk, 2), UA, 1024 * kk, v(QF + 4 * kk + 2, 2), UA, 1024 * kk + 512))
        else: a('ds_read_b128 %s, v%d offset:%d' % (v(QF + 4 * kk, 4), UA, 1024 * kk))
    for kk in range(4):
        a('s_waitcnt lgkmcnt(%d)' % ((3 - kk) * (4 if o['klate'] else 2 if o['q64'] == 2 else 1)))
        for kt in range(3): a(MF % (v(S + 4 * kt, 4), v(KF + 16 * kt + 4 * kk, 4), v(QF + 4 * kk, 4), v(S + 4 * kt, 4) if kk else '0'))
    if o['bs']: a('s_barrier')
    if 's' in o['hack']: a('s_branch L_hs_skip')
    if 'h' in o['hack']: a('s_cmp_ge_u32 s20, 4\ns_cbranch_scc1 L_hs_skip')
    if o['mimic']:
        for rnd in range(2):
            for t in range(6): a('v_cvt_pk_bf16_f32 v%d, v%d, v%d' % (S + 2 * t + 1, S + 2 * t, S + 2 * t + 1))
            for t in range(6): a('v_lshlrev_b32 v%d, 16, v%d' % (S + 2 * t, S + 2 * t + 1))
            for t in range(6): a('v_and_b32 v%d, s25, v%d' % (S + 2 * t + 1, S + 2 * t + 1))
            if rnd == 0:
                for t in range(0, 12, 2): a('v_pk_mul_f32 v[%d:%d], v[%d:%d], s[26:27]' % (S + t, S + t + 1, S + t, S + t + 1))
    x, y = 6, 7
    a('v_max3_f32 v6, v%d, v%d, v%d\nv_max3_f32 v7, v%d, v%d, v%d' % (S, S + 1, S + 2, S + 3, S + 4, S + 5))
    a('v_max3_f32 v6, v6, v%d, v%d\nv_max3_f32 v7, v7, v%d, v%d\nv_max3_f32 v6, v6, v%d, v%d' % (S + 6, S + 7, S + 8, S + 9, S + 10, S + 11))
    def xl(op, first):
        a(first)
        a('v_permlane16_swap_b32 v6, v7\n%s v8, v6, v7\n%s v7, v6, v7\nv_permlane32_swap_b32 v8, v7\n%s v6, v8, v7' % (op, op, op))
    xl('v_max_f32', 'v_max_f32 v6, v6, v7\nv_mov_b32 v7, v6')
    a('v_mul_f32 v6, s50, v6')
    if o['pk']:
        for t in range(0, 12, 2): a('v_pk_fma_f32 v[%d:%d], v[%d:%d], s[50:51], v[6:7] op_sel_hi:[1,1,0] neg_lo:[0,0,1] neg_hi:[0,0,1]' % (S + t, S + t + 1, S + t, S + t + 1))
    else:
        for t in range(12): a('v_fma_f32 v%d, v%d, s50, -v6' % (S + t, S + t))
    for t in range(12): a('v_exp_f32 v%d, v%d' % (S + t, S + t))
    if o['pk']:
        a('v_pk_add_f32 v[6:7], v[%d:%d], v[%d:%d]\nv_pk_add_f32 v[4:5], v[%d:%d], v[%d:%d]' % (S, S + 1, S + 2, S + 3, S + 4, S + 5, S + 6, S + 7))
        a('v_pk_add_f32 v[6:7], v[6:7], v[%d:%d]\nv_pk_add_f32 v[4:5], v[4:5], v[%d:%d]\nv_pk_add_f32 v[4:5], v[4:5], v[6:7]' % (S + 8, S + 9, S + 10, S + 11))
    else:
        a('v_add_f32 v4, v%d, v%d\nv_add_f32 v5, v%d, v%d' % (S, S + 1, S + 2, S + 3))
        for t in range(4, 12, 2): a('v_add_f32 v4, v4, v%d\nv_add_f32 v5, v5, v%d' % (S + t, S + t + 1))
    xl('v_add_f32', 'v_add_f32 v6, v4, v5\nv_add_f32 v7, v4, v5')
    a('v_rcp_f32 v6, v6')
    if o['pk']:
        for t in range(0, 12, 2): a('v_pk_mul_f32 v[%d:%d], v[%d:%d], v[6:7] op_sel_hi:[1,0]' % (S + t, S + t + 1, S + t, S + t + 1))
    else:
        for t in range(12): a('v_mul_f32 v%d, v%d, v6' % (S + t, S + t))
    for t in range(6): a('v_cvt_pk_bf16_f32 v%d, v%d, v%d' % (P + t, S + 2 * t, S + 2 * t + 1))
    if o['hack']: a('L_hs_skip:')
    if 'e' not in o['hack'] and 'y' not in o['hack']:
        a('buffer_store_dwordx4 %s, v25, s[%d:%d], s49 offen sc1' % (v(P, 4), SWS, SWS + 3))
        a('buffer_store_dwordx2 %s, v26, s[%d:%d], s49 offen offset:1024 sc1' % (v(P + 4, 2), SWS, SWS + 3))
    if o['pds']: a('ds_write_b128 v255, %s\nds_write_b64 v31, %s offset:1024' % (v(P, 4), v(P + 4, 2)))
    stC('C at BP')
    a('s_barrier')
    a('s_cmp_ge_u32 s20, 4\ns_cbranch_scc1 L_help2')
    if o['cprio'] or o['uprio']: a('s_setprio %d' % o['cprio'])
    stC('BP')
    def reads_W(p, ks):
        vp = (p >> 2) * 2 + (PC(p) & 1); tg = 'w%d%d' % (p, ks)
        r = ['ds_read_b128 %s, v%d offset:%d' % (v(F[ks] + 16 + 4 * q, 4), VA + ks, 12288 * vp + 2048 * q) for q in range(3)] + (wreads(F[ks], 16384 * WSLOT['w%d' % p] + 8192 * ks) if WSLOT['w%d' % p] < 4 else wreads(F[ks], 8192 * ks, 250))
        if (p, ks) == (0, 0) and o['fine0']:
            r = [r[0], r[3], r[4], r[1], r[2]] + r[5:]
            return [ds(x_, 'f%d' % i) for i, x_ in enumerate(r)]
        return [ds(x_, tg + ('lo' if i < 7 else 'hi')) for i, x_ in enumerate(r) if i >= 3 or not (o['alt'] and p & 1)]
    def wW(p, ks, more=()): return {0: 'f2', 1: 'f3', 2: 'f4', 3: 'f6', 6: 'f8', 9: 'f10'} if (p, ks) == (0, 0) and o['fine0'] else {0: ['w%d%dlo' % (p, ks)] + list(more), 6: ['w%d%dhi' % (p, ks)]}
    def vwpos(base, i, kt): return base + ([0, 2, 4][kt] if i % 2 == 0 else [8, 10, 6][kt])
    HACC = [B, A, B, A]; HDST = [C, C, B, B]
    def cvt_W(i): return [x_ for t in range(4) for kt in range(3) for x_ in cvt(vwpos(HDST[i] + 12 * t, i, kt), HACC[i] + 4 * (3 * t + kt))]
    def xb(nm): return [('s_waitcnt vmcnt(0)\n' if nm == o['ack'] and 'w' not in o['hack'] else '') + 's_barrier'] if nm in XN else []
    def xbc(nm):
        r_ = xb(nm)
        if r_ and o['vdry']: r_ = ['s_cbranch_execz %s\n%s\nL_xa_%s:' % ('L_vwret' if nm in o['vseg'] else 'L_xa_' + nm, r_[0], nm)]
        return r_
    def ins(lst, i, x_): return lst[:i] + [x_] + lst[i:]
    OS = [[108, 112, 116, 120, 124], [48, 52, 56, 60, 64], [80, 84, 88, 92, 96], [100, 128, 132, 68, 72]]; OACC = [[232, 236, 240], [32, 36, 40]]
    def rdO(kq):
        tg = 'os%d' % kq
        return [ds('ds_read_b128 %s, v%d offset:%d' % (v(OS[kq][kt], 4), OVA + (kq & 1), 12288 * (kq >> 1) + 2048 * kt), tg) for kt in range(3)] + \
               [ds('ds_read_b64_tr_b16 %s, v%d offset:%d' % (v(OS[kq][3 + e] + 2 * hh, 2), OA, 16384 * WSLOT['o%d' % e] + 4096 * kq + 512 * hh), tg) for e in range(2) for hh in range(2)]
    mfma_O = [MF % (v(OACC[e][kt], 4), v(OS[kq][kt], 4), v(OS[kq][3 + e], 4), v(OACC[e][kt], 4) if kq else '0') for kq in range(4) for e in range(2) for kt in range(3)]
    cvt_O = [x_ for e in range(2) for kt in range(3) for x_ in cvt(vwpos(VWO, e, kt), OACC[e][kt])]
    PFULL = [10, 11, 22, 23]; PHALF = [4, 5, 6, 7]; POF = [24, 21]; POH = [8, 9]
    padr = []
    for i in range(4):
        padr.append('s_xor_b32 s3, s53, %d\ns_mul_i32 s3, s3, 9216\ns_add_u32 s3, s3, s55' % i)
        padr.append('v_add_u32 v%d, s3, v25' % PFULL[i]); padr.append('v_add_u32 v%d, s3, v26' % PHALF[i])
        if i < 2:
            padr.append(('s_xor_b32 s3, s52, %d\ns_mul_i32 s3, s3, 9216\ns_add_u32 s3, s3, s55\n' % i if o['alt'] == 3 else '') + 's_add_u32 s3, s3, s54\nv_add_u32 v%d, s3, v25' % POF[i]); padr.append('v_add_u32 v%d, s3, v26' % POH[i])
    a('s_mul_i32 s55, s18, 4608\ns_and_b32 s54, s22, 1\ns_mul_i32 s54, s54, 4608\ns_sub_u32 s54, s54, s55\ns_add_u32 s55, s55, %d\ns_lshr_b32 s53, s16, 1\ns_xor_b32 s53, s53, s22\ns_xor_b32 s53, s53, 3' % L_P)
    if o['alt'] == 3: a('s_and_b32 s52, s22, 2\ns_xor_b32 s52, s52, s53')
    def preads(dst, fa, ha, qt, tag):
        off = 1536 * qt
        return [ds('ds_read_b128 %s, v%d offset:%d' % (v(dst[0], 4), fa[0], off), tag),
                ds('ds_read_b64 %s, v%d offset:%d' % (v(dst[1], 2), ha[0], off + 1024), tag),
                ds('ds_read_b64 %s, v%d offset:%d' % (v(dst[1] + 2, 2), ha[1], off + 1024), tag),
                ds('ds_read_b128 %s, v%d offset:%d' % (v(dst[2], 4), fa[1], off), tag)]
    PB = [[80 + 4 * k for k in range(6)], [108 + 4 * k for k in range(6)], [80 + 4 * k for k in range(6)]]
    def reads_F(qt): return preads(PB[qt][:3], PFULL[:2], PHALF[:2], qt, 'p%da' % qt) + preads(PB[qt][3:], PFULL[2:], PHALF[2:], qt, 'p%db' % qt)
    if o['vdry']: a('L_xa_BP:')
    run(reads_W(0, 0))
    for p in range(8):
        i = PC(p) >> 1; first = PC(p) & 1 == 0
        if p < 2: ex0, ex1 = (padr[:5], padr[5:10]) if p == 0 else (padr[10:], [] if o['vf'] == 1 else ['v_add_u32 v%d, %d, v%d' % (250 + t, L_P, WA + t) for t in range(4)])
        elif o['alt']:
            cv = cvt_W({3: 0, 4: 1, 7: 2}[p]) if p in (3, 4, 7) else []
            k_ = 12 if p != 4 else 10
            ex0, ex1 = cv[:k_], cv[k_:]
        else:
            cv = cvt_W(i - 1)
            ex0, ex1 = (cv[:6], cv[6:12]) if p % 2 == 0 else (cv[12:18], cv[18:])
        if 'E' in o['hack'] and p >= 6:
            st_ = lambda h: 'buffer_store_dwordx4 v[244:247], v25, s[%d:%d], s%d offen sc1\ns_add_u32 s%d, s%d, %d' % (SWS, SWS + 3, 56 + h, 56 + h, 56 + h, o['MQ'])
            if p == 6: ex1 = ex1 + [st_(0)]
            else: ex0 = ex0 + [st_(1)]; ex1 = ex1 + [st_(0)]
        step(mfma(HACC[i], 0, first, True), reads_W(p, 1), extra=ex0, xstart=(4 if p % 2 == 0 else 0) if not o['alt'] else 1, waits=wW(p, 0))
        step(mfma(HACC[i], 1, False, True), reads_W(p + 1, 0) if p < 7 else reads_F(0), extra=ex1, xstart=1, waits=wW(p, 1), pre=xbc('w%d' % p))
        stC('s%d' % p if p < 7 else 'VW end', 2 if p < 7 else 1)
    RACC = [[244, 248, 252, 104], [32, 36, 40, 44], [244, 248, 252, 104]]
    PK = [76, 12]; OP = [[108, 112, 116], [120, 124, 48], [52, 56, 60]]
    def fm(qt, t, k): return MF % (v(RACC[qt][t], 4), v([C, B][k // 3] + 12 * t + 4 * (k % 3), 4), v(PB[qt][k], 4), v(RACC[qt][t], 4) if k else '0')
    def store_F(qt, h):
        if o['own3'] == 2:
            pk = [76, 32, 44][qt] if h == 0 else PK[1]
            return cvt(pk, RACC[qt][2 * h]) + cvt(pk + 2, RACC[qt][2 * h + 1]) + ['buffer_store_dwordx4 %s, v%d, s[%d:%d], s%d offen sc1' % (v(pk, 4), 25 if h else 1, SWS, SWS + 3, 34 + 2 * qt + h)]
        if o['own3']:
            return cvt(PK[h], RACC[qt][2 * h]) + cvt(PK[h] + 2, RACC[qt][2 * h + 1]) + \
                ['buffer_store_dwordx4 %s, v%d, s[%d:%d], s%d offen sc1' % (v(PK[h], 4), 25 if h else 1, SWS, SWS + 3, 34 + 2 * qt + h)] + \
                (['s_mov_b64 exec, s[30:31]\nds_write_b128 v27, %s offset:%d\ns_mov_b64 exec, -1' % (v(PK[h], 4), 1024 * qt)] if h == 0 else [])
        l_ = 'L_own%d%d' % (qt, h)
        ownw = '\ns_cmp_lg_u32 s48, %d\ns_cbranch_scc1 %s\nds_write_b128 v27, %s offset:%d\n%s:' % (h, l_, v(PK[h], 4), 1024 * qt, l_) if o['own'] else ''
        if o['own'] and o['ownx']: ownw = '\ns_mov_b64 exec, s[%d:%d]\nds_write_b128 v27, %s offset:%d\ns_mov_b64 exec, -1' % (30 + 2 * h, 31 + 2 * h, v(PK[h], 4), 1024 * qt)
        return cvt(PK[h], RACC[qt][2 * h]) + cvt(PK[h] + 2, RACC[qt][2 * h + 1]) + \
               ['buffer_store_dwordx4 %s, v25, s[%d:%d], s%d offen sc1\ns_add_u32 s%d, s%d, %d' % (v(PK[h], 4), SWS, SWS + 3, 56 + h, 56 + h, 56 + h, o['MQ']) + ownw]
    def sflag(off): return 's_atomic_add s40, s[14:15], s42\ns_atomic_add s40, s[14:15], s43'
    if 'N' in o['hack']:
        sG = store_F
        def store_F(qt, h): return sG(qt, h)[:4]
    if 'E' in o['hack']:
        sF = store_F
        def store_F(qt, h):
            r_ = sF(qt, h)
            if (qt, h) == (0, 1): return r_[:4] + ['s_waitcnt vmcnt(2)\n' + flag(28, 0)]
            if (qt, h) == (1, 1): return r_[:4] + ['s_waitcnt vmcnt(1)\n' + flag(28, 128)]
            return r_ if qt == 2 else r_[:4]
    def flag(reg, off): return FOP + ' v29, v%d, s[%d:%d], 0 offen offset:%d sc1' % (reg, SWS, SWS + 3, off)
    m = [fm(0, t, k) for k in range(6) for t in range(4)]
    c3 = cvt_W(3)
    c3 = [c3[6 * t + j] for t in range(4) for j in (4, 5)] + [c3[6 * t + j] for t in range(4) for j in range(4)]
    step(m[:19], reads_F(1), extra=c3, xstart=3, waits={0: ['p0a'], 11: ['p0b']})
    step(m[19:], [], extra=[st_(1)] if 'E' in o['hack'] else [])
    if o['vdry']: a('s_cbranch_execz L_vwret')
    stC('R0', 2)
    m = [fm(1, t, k) for t in range(4) for k in range(6)]
    step(m[:17], reads_F(2), extra=store_F(0, 0) + store_F(0, 1), xstart=3, waits={0: ['p1a'], 3: ['p1b']})
    step(m[17:], [], extra=store_F(1, 0))
    stC('R1', 2)
    xo = o['xo']
    m = [fm(2, t, k) for t in range(4) for k in range(6)]
    step(m[:xo], [], extra=store_F(1, 1), xstart=4, waits={0: ['p2a'], 3: ['p2b']})
    seq = rdO(0) + rdO(1); k1 = min(14, 24 - xo)
    def ownw(qts): return 's_mov_b64 exec, s[30:31]\n' + '\n'.join('ds_write_b128 v27, %s offset:%d' % (v([76, 32, 44][q_], 4), 1024 * q_) for q_ in qts) + '\ns_mov_b64 exec, -1'
    step(m[xo:], seq[:k1], extra=store_F(2, 0) + ([ownw([1])] if o['own3'] == 2 else []), xstart=max(0, 18 - xo), pre=xb('O') + (['s_waitcnt vmcnt(2)\n' + flag(28, 0)] if o['f0at'] == 'R2' else []))
    stC('R2', 2)
    op = [x_ for qt in range(3) for x_ in preads(OP[qt], POF, POH, qt, 'po')]
    f0 = 's_waitcnt vmcnt(3)\n' + flag(28, 0)
    f1 = 's_waitcnt vmcnt(3)\n' + flag(28, 128)
    step(mfma_O[:12], seq[k1:] + rdO(2) + rdO(3), extra=store_F(2, 1) + ([flag(28, 256)] if 'c' in o['hack'] else []), xstart=4, waits={0: ['os0'], 6: ['os1']}, pre=[f0] if o['ef'] >= 1 and 'E' not in o['hack'] and o['f0at'] == 'O' else [])
    step(mfma_O[12:], op, waits={0: ['os2'], 6: ['os3']}, extra=[f1] if o['ef'] >= 2 and 'E' not in o['hack'] else [], xstart=o['e0'])
    stC('O', 2)
    def fo(k, first): return [MF % (v(SP + 4 * qt, 4), v(VWO + 4 * k, 4), v(OP[qt][k], 4), '0' if first else v(SP + 4 * qt, 4)) for qt in range(3)]
    run(cvt_O[:6])
    step(fo(0, True), [], extra=cvt_O[6:], waits={0: ['po']})
    run(fo(2, False) + fo(1, False))
    if o['ef'] == 0: a('s_waitcnt vmcnt(4)'); a(flag(28, 0))
    if o['ef'] < 2: a('s_waitcnt vmcnt(3)'); a(flag(28, 128))
    if o['e2']: a('s_waitcnt vmcnt(1)'); a(flag(28, 256))
    if 'r' in o['hack']: a('s_mov_b64 exec, 0xfc'); a(flag(30, 256)); a('s_mov_b64 exec, -1\ns_cmp_lg_u32 s21, 3\ns_cbranch_scc1 L_hr\ns_sleep 60\nL_hr:')
    for qt in range(3):
        run(cvt(VWO + 2 * qt, SP + 4 * qt) + ['buffer_store_dwordx2 %s, v%d, s[%d:%d], s58 offen sc1\ns_add_u32 s58, s58, %d' % (v(VWO + 2 * qt, 2), 3 if o['o64'] else 26, SWS, SWS + 3, o['OT'] * (2 if o['o64'] else 1))])
    stC('final end')
    if o['sent']:
        assert o['rep'] == 1 and o['atom']
        a('s_mov_b64 exec, 0xfc'); a(flag(30, 256 + (8 if 'r' in o['hack'] else 0))); a('s_mov_b64 exec, -1')
    if o['own3'] == 2:
        assert o['xe'] in ('E', 'G', 'H')
        a(ownw([0, 2]))
    if o['own'] and not (o['own3'] == 2 and o['xe'] == 'H'): a(W0)
    if o['xe'] == 'E': a('s_barrier')
    if not o['e2'] and 'c' not in o['hack']: a('s_waitcnt vmcnt(%d)' % ((5 if o['ef'] == 0 else 4) + o['sent'] - ('E' in o['hack']))); a(sflag(256) if o['sat'] & 1 else flag(28, 256))
    if o['xe'] == 'H': a((W0 + '\n' if o['own3'] == 2 else '') + 's_barrier')
    if 'b' not in o['hack']: a('s_waitcnt vmcnt(%d)' % (o['sent'] + (0 if o['e2'] or 'c' in o['hack'] or o['sat'] & 1 else 1)))
    a('s_mov_b64 exec, %s' % ('4' if o['ack1'] and o['sent'] and o['o64'] else '0xfcfc')); a(flag(30, 256 + 64 * o['sent'])); a('s_mov_b64 exec, -1')
    if o['xe'] == 'G': a('s_barrier')
    stC('flags sent')
    a(';WARM_OFF')
    stC.flush(0)
    a('s_endpgm')
    a('; ==== helpers')
    if o['padH']: a('.fill %d, 4, 0xbf800000' % o['padH'])
    a('L_help:')
    a('s_sub_u32 s18, s20, 5\ns_sub_u32 s52, s20, 1')
    a('v_lshlrev_b32 v25, 4, v0\nv_lshlrev_b32 v26, 3, v0')
    a('v_mov_b32 v12, 0\nv_mov_b32 v13, 0\nv_mov_b32 v14, 0\nv_mov_b32 v15, 0\nv_mov_b32 v29, 1\nv_mov_b32 v28, 0x7ff00000\nv_mov_b32 v30, v28\nv_mov_b32 v3, v28')
    a(W0)
    srd(SWS, 14, 'ws')
    if o['sent'] and o['clr'] == 'start': clears(False, 40, 44)
    def dry_run(name):
        a('s_mov_b64 exec, 0\ns_branch L_dry_%s\nL_dryret_%s:\ns_mov_b64 exec, -1' % (name, name))
    def warm_run(at):
        if o['dry'] and at == o['dryat'][0]: dry_run('mp')
        if o['dry'] and at == o['dryat'][1]: dry_run('op')
        if o['warm']:
            for c_, x_ in enumerate(o['wat']):
                if x_ == at: a('s_mov_b64 exec, 0\ns_branch L_wchain%d\nL_wret%d:\ns_mov_b64 exec, -1' % (c_, c_))
    if o['vdry']:
        a('s_cmp_lg_u32 s20, 6\ns_cbranch_scc1 L_nl\ns_cmp_ge_u32 s2, 32\ns_cbranch_scc1 L_nl\ns_lshl_b32 s3, s2, 12')
        for j in range(4): a('buffer_store_dwordx4 v[12:15], v25, s[%d:%d], s3 offen offset:%d sc1' % (SWS, SWS + 3, 1024 * j))
        a('L_nl:\ns_mov_b64 exec, 0\ns_cmp_eq_u32 s20, 5\ns_cbranch_scc1 L_xa_BP\ns_cmp_eq_u32 s20, 6\ns_cbranch_scc1 L_xa_%s\ns_branch L_xa_%s' % tuple(o['vseg']))
        a('L_vwret:\ns_mov_b64 exec, -1\ns_waitcnt lgkmcnt(0)\ns_nop 7')
        a('s_cmp_eq_u32 s20, 7\ns_cbranch_scc1 L_h2\ns_cmp_eq_u32 s20, 5\ns_cbranch_scc1 L_h0\ns_cmp_ge_u32 s2, 32\ns_cbranch_scc1 L_h0')
        a('s_lshl_b32 s3, s2, 2\nv_mov_b32 v16, s3\ns_waitcnt vmcnt(0)')
        a('s_mov_b64 exec, 1\nglobal_store_dword v16, v29, s[12:13] sc1\ns_mov_b64 exec, -1')
    else:
        a('s_cmp_eq_u32 s20, 7\ns_cbranch_scc1 L_h2')
        a('s_cmp_eq_u32 s20, 5\ns_cbranch_scc1 L_h0')
        a('s_cmp_ge_u32 s2, 32\ns_cbranch_scc1 L_h0')
        a('s_lshl_b32 s3, s2, 12')
        assert G_FL == 0
        for j in range(4): a('buffer_store_dwordx4 v[12:15], v25, s[%d:%d], s3 offen offset:%d sc1' % (SWS, SWS + 3, 1024 * j))
        a('s_lshl_b32 s3, s2, 2\nv_mov_b32 v16, s3\ns_waitcnt vmcnt(0)')
        a('s_mov_b64 exec, 1\nglobal_store_dword v16, v29, s[12:13] sc1\ns_mov_b64 exec, -1')
    a('L_h0:')
    unit_setup()
    for c in range(9 + o['b8a']):
        a('s_barrier')
        if c == 4: run(k_reads())
    a('s_branch L_unit')
    a('L_h2:')
    if not o['cpfL']: code_prefetch()
    def odd_prefetch():
        a(kvbase('s3') + '\ns_lshr_b32 s17, s2, 7\ns_lshl_b32 s17, s17, %d\ns_add_u32 s3, s3, s17\ns_lshl_b32 s3, s3, 4\ns_bfe_u32 s17, s2, 0x40003\ns_add_u32 s3, s3, s17\ns_mul_i32 s3, s3, %d\ns_add_u32 s3, s3, 1024' % (KL, 16 * 1152))
        a('v_mul_u32_u24 v7, 1152, v1\nv_add_u32 v7, s3, v7\ns_mov_b64 exec, 0xffff\nglobal_load_dword v37, v7, s[8:9]\ns_mov_b64 exec, -1')
    def tlb_touch():
        a('s_lshl_b32 s3, s2, 7\nv_lshlrev_b32 v7, 21, v0\nv_add_u32 v7, s3, v7\nv_add_u32 v8, 0x1f0000, v7')
        a('s_mov_b64 exec, 0x7f\nglobal_load_dword v32, v8, s[14:15]')
        if o['tlb'] in (1, 3):
            a('s_mov_b64 exec, 7\nglobal_load_dword v33, v7, s[8:9]')
            a('s_mov_b64 exec, 3\nglobal_load_dword v34, v7, s[4:5]\nglobal_load_dword v35, v7, s[6:7]')
        a('s_mov_b64 exec, 1\nglobal_load_dword v36, v7, s[10:11]\ns_mov_b64 exec, -1')
    if o['tlb'] in (1, 2): tlb_touch()
    hs = 's_load_dwordx16 s[84:99], s[12:13], 0%s\ns_load_dwordx16 s[28:43], s[12:13], 64%s'
    warm_run(-1)
    for c in range(10 + o['b8a'] + o['bs']):
        a('s_barrier')
        warm_run(c)
        if c == o['hsbar']: a(hs % ('', ''))
        if c == o['oddpf']: odd_prefetch()
        if c == o['cpf2']: code_prefetch('L_pc2')
        if c == 0 and o['tlb'] == 3: tlb_touch()
        if c == 8 and o['tlb'] == 4: tlb_touch()
    a('s_mov_b32 s54, %d\nL_hs:\ns_waitcnt lgkmcnt(0)' % SPIN)
    and16(84); and16(28); a('s_and_b32 s84, s84, s28')
    a('s_cbranch_scc1 L_hsok\ns_sub_u32 s54, s54, 1\ns_cbranch_scc1 L_hsok'); a(hs % (' glc', ' glc')); a('s_branch L_hs\nL_hsok:')
    a('s_barrier')
    if o['oddpf'] == 11: odd_prefetch()
    if o['cpf2'] == 11: code_prefetch('L_pc2')
    a('L_help2:')
    run(xb('w0'))
    a('s_mul_i32 s17, s18, 3072')
    srd(SOUT, 10, 'out')
    a('s_lshl_b32 s3, s2, 9\ns_lshl_b32 s53, s18, 7\ns_add_u32 s62, s3, s53\ns_add_u32 s66, s14, s62\ns_addc_u32 s67, s15, 0')
    a('s_and_b32 s3, s2, 0xe7\ns_lshl_b32 s3, s3, 9\ns_add_u32 s53, s53, s3\n' + ('' if o['atom'] else 's_lshl_b32 s3, s22, 2\ns_add_u32 s53, s53, s3\n') + 'v_lshlrev_b32 v21, 12, v0')
    a('s_mul_i32 s55, s2, %d\ns_mul_i32 s56, s18, %d\ns_add_u32 s55, s55, s56\ns_add_u32 s55, s55, %d\ns_add_u32 s56, s55, 4096' % (o['MO'], o['MQ'], G_PM))
    a('s_lshl_b32 s59, s23, 1\ns_lshr_b32 s3, s21, 2\ns_add_u32 s59, s59, s3\ns_mul_i32 s59, s59, 3\ns_add_u32 s59, s59, s18\ns_mul_i32 s59, s59, %d' % (16 * 1152))
    a('s_lshl_b32 s3, s22, 8\ns_add_u32 s59, s59, s3\ns_and_b32 s3, s21, 3\ns_lshl_b32 s3, s3, 6\ns_add_u32 s59, s59, s3')
    def pfetch(d):
        a('s_add_u32 m0, s17, %d\ns_xor_b32 s58, s2, %d\ns_mul_i32 s58, s58, 9216\ns_add_u32 s58, s58, s17\ns_add_u32 s58, s58, %d' % (L_P + 9216 * (3 - d), d << 3, G_P))
        for j in range(3):
            if 'e' not in o['hack'] and 'x' not in o['hack']: a('buffer_load_dwordx4 v25, s[%d:%d], s58 offen offset:%d sc1 lds' % (SWS, SWS + 3, 1024 * j))
    xs = [x_ for x_ in XN[:-1] if x_[0] == 'w' and x_ != 'w0']
    k = 0
    while True:
        nm = xs[k]; k += 1
        run(xb(nm))
        if nm == o['ack']:
            if o['sat'] & 2:
                a('s_mov_b32 s40, 1')
                for d in (1, 2, 3): a('s_xor_b32 s3, s62, %d\ns_atomic_add s40, s[14:15], s3' % (d << 12))
            else:
                a('s_mov_b64 exec, 15' + ('\ns_bitset0_b64 exec, s22' if o['noself'] else '') + '\n' + FOP + ' v29, v21, s[%d:%d], s53 offen sc1\ns_mov_b64 exec, -1' % (SWS, SWS + 3))
            stH('P flag sent')
        if o['ownp'] and not o['pds'] and nm == o['ownat']: pfetch(0)
        if o['sent'] and nm == o['clr']: clears()
        if nm == o['poll0']: break
    assert xs.index(o['ack']) < k and (o['vf'] == 1 or ALLN.index(xs[k]) >= ALLN.index('w5' if o['vf'] else 'w4')) and k < len(xs) - 1
    a('s_mov_b32 s54, %d\ns_mov_b32 s52, %d' % (SPIN, len(xs) - 1 - k))
    a('L_pp:\n' + ('s_load_dword s84' if o['atom'] else 's_load_dwordx4 s[84:87]') + ', s[66:67], 0 glc')
    a('s_cmp_eq_u32 s52, 0\ns_cbranch_scc1 L_pp1\ns_barrier\ns_sub_u32 s52, s52, 1\nL_pp1:')
    a('s_sub_u32 s54, s54, 1\ns_cbranch_scc1 L_ppok\ns_waitcnt lgkmcnt(0)')
    a(('' if o['atom'] else 's_add_u32 s84, s84, s85\ns_add_u32 s86, s86, s87\ns_add_u32 s84, s84, s86\n') + 's_cmp_%s_u32 s84, %d\ns_cbranch_scc0 L_pp\nL_ppok:' % ('le' if 'a' in o['hack'] else 'eq', 4 - o['noself']))
    stH('P flags ok')
    if 'S' in o['hack']:
        a('s_mul_i32 s19, s18, %d\nL_sg:\ns_cmp_eq_u32 s19, 0\ns_cbranch_scc1 L_sgd\ns_cmp_eq_u32 s52, 0\ns_cbranch_scc1 L_sgd\ns_barrier\ns_sub_u32 s52, s52, 1\ns_sub_u32 s19, s19, 1\ns_branch L_sg\nL_sgd:' % o.get('sk', 1))
    for d in range(o['ownp'], 4): pfetch(d)
    if o['sent'] and o['clr'] == 'p': clears()
    a('L_pb:\ns_cmp_eq_u32 s52, 0\ns_cbranch_scc1 L_pbd\ns_barrier\ns_sub_u32 s52, s52, 1\ns_branch L_pb\nL_pbd:')
    if 'S' in o['hack']: a('s_cmp_lg_u32 s18, 0\ns_cbranch_scc1 L_now')
    a('s_waitcnt vmcnt(%d)' % (2 if o['sent'] and o['clr'] == 'p' else 0))
    if 'S' in o['hack']: a('L_now:')
    stH('P landed')
    a('s_barrier')
    if o['sent'] and o['clr'] == 'w7' and 'Z' not in o['hack']: clears()
    a('s_waitcnt vmcnt(0)\ns_barrier')
    if 'f' in o['hack']: a('s_endpgm')
    a('s_mov_b32 s54, %d' % SPIN)
    a('s_lshl_b32 s3, s18, 10\ns_add_u32 s3, s3, %d\nv_add_u32 v27, s3, v25' % L_F)
    reduce('mp', 8, 4, MOFF, 25, 's59', stH)
    if stamps:
        a('s_waitcnt vmcnt(0)'); stH('end'); stH.flush(7)
    a('L_end:\ns_endpgm\nL_codeend:')
    a(kernel_desc(KN, 256, 256, o.get('nsgpr', 102)))
    if o['warm']:
        def size(l):
            t = l.split(';')[0].strip()
            if not t or t.endswith(':') or t.startswith('.'): return 0
            return 8 if t.startswith(('v_mfma', 'ds_', 'buffer_', 'global_', 'v_cvt_pk', 'v_pk_', 'v_max3', 's_load')) else 4.6
        out = []; on = False; acc = 0; pads = []
        for l in a.lines:
            if l == ';WARM_ON': on = True; acc = 1e9; continue
            if l == ';WARM_OFF': on = False; continue
            if on and acc >= o['wstep'] and size(l) and not l.startswith(('ds_write', 's_mov_b64 exec', 'buffer_atomic', 's_cbranch', 's_cselect', 's_addc')):
                pads.append(len(out)); out.append(None); acc = 4
            out.append(l); acc += size(l)
        n = len(pads); NC = len(o['wat']); per = -(-n // NC)
        order = list(range(n - 1, -1, -1))
        for j, k in enumerate(order):
            last = (j + 1) % per == 0 or j + 1 == n
            out[pads[k]] = 'L_wp%d:\ns_cbranch_execz %s' % (k, 'L_wret%d' % (j // per) if last else 'L_wp%d' % order[j + 1])
        txt = '\n'.join(out)
        for c_ in range(NC): txt = txt.replace('L_wchain%d' % c_, 'L_wp%d' % order[c_ * per] if c_ * per < n else 'L_wret%d' % c_)
        a.lines = txt.split('\n')
    else: a.lines = [l for l in a.lines if not l.startswith(';WARM')]
    a.lines = hazard.pad(a.lines, False)
    return a.text()
if __name__ == '__main__':
    import json
    name = sys.argv[1] if len(sys.argv) > 1 else 'p8_v11'
    opt = json.loads(sys.argv[2]) if len(sys.argv) > 2 else None
    open(name + '.s', 'w').write(gen(0, opt))
    open(name + '_st.s', 'w').write(gen(1, opt))
    open(name + '_st2.s', 'w').write(gen(2, opt))
    open(name + '_st3.s', 'w').write(gen(3, opt))
    open(name + '_st4.s', 'w').write(gen(4, opt))
```

```python
import sys, math, struct
from asmlib import *
import hazard
from gen_f16 import Cnt, interleave, f2i, v

L_W = 0; L_X0 = 49152; XOFF = [0, 12288, 49152]; L_K = 73728; L_Q = 49152; L_P = 73728; L_F = 159744; L_V = 110592
G_FL = 0x0
G_P = 0x40000
G_PM = 0x400000
G_PO = 0xD00000
SX, SWQ, SK, SV, SWO, SWS, SOUT = 24, 28, 32, 36, 40, 44, 48
SPIN = 1 << 16
MF = 'v_mfma_f32_16x16x32_bf16 %s, %s, %s, %s'

HEADER = """; Kernarg layout (64 bytes, pointers only, base s[0:1]):
;
; Hand-offs: data is stored write-through (sc1); after the stores are acknowledged the producer bumps a counter of the consumer
;   (device-scope atomic); the consumer polls it and then loads with sc1.  Counters are zeroed inside the launch by workgroups 0..31,
;   which report through a counter in debug.  The last, small hand-off is signalled before the acknowledgement: its slots are first filled with
;   a NaN marker in this launch, and a consumer that still sees a NaN waits for the acknowledged counter and reads again.
;   Nothing depends on workgroup placement except speed; every poll loop is bounded.
;            | 110592 V (4x12K) | 159744 own partial chunks.  Tiles are XOR-swizzled on the global side of the DMA."""

def gen(stamps=0, opt=None):
    o = dict(order='qqqKqqqqqq', win=24, codepf=True, rot='g3', pk=True, lprio=0, afterB8=1, afterBQ=4, ack='w1', poll0='w3', cprio=0, prog=False, x4=True, xo=14, ef=2, xe='', sent=1, clr='w7', e2=0, nt={}, split=1, uprio=0, early_flag=True, outsc='sc1', oddsc=None, btr=0, opre=0, o64=1, ack1=1, vdry=0, sub='', hoist=1, pre=0, lead=12, mimic=0, hs2=1, guard=[60, 44], leadk=1, lead0=2, vseg=['w2', 'w5'], first_half=False, hsbar=8, poll='s', psleep=0, tlb=0, remap=0, oddpf=8, rot2=1, lateat=3, own=1, ownx=1, tramp=[], far=0, alt=3, klate=1, pds=1, own3=1, bs=0, vf=0, sat=0, dry=1, dryat=[-1, 0], cpf2=-9, qseq='', f0at='O', MQ=7168, MO=21504, OT=8192, kvmap=9, bm=0, cpfL=1, acc=1, warm=0, wstep=960, wat=[-1, 0, 1], padL=0, padC=0, padH=0, b8a=0, tm=1, q64=2, stlb=0, hack='', atom=1, rep=1, wsw=1, ownp=1, atune=0, oe=0, hsbar_=0, ownat='w3', e0=8, e1='end', m0o=1, rsl=6, qs=5, fine0=1, wqfirst=0, skip=['w0'], noself=1)
    if opt: o.update(opt)
    if stamps in (2, 3): o['pre'] = 0
    if o['klate']: o['order'] = 'q' * 9; o['q64'] = 3; o.setdefault('pre8', ['k0'] if 'plan' in o else ['k0', 'v0'])
    a = Asm()
    a(HEADER)
    a('; @launch grid=(256,1,1) block=(512,1,1) lds=163840')
    a(HEAD); a(kernel_begin(KN))
    def run(seq):
        for x in seq:
            if callable(x): x()
            else: a(x)
    class St:
        def __init__(s, base, n, r0): s.base = base; s.n = n; s.k = 0; s.r0 = r0
        def __call__(s, name='x', lvl=1):
            if ((stamps >= lvl and lvl < 2) or stamps == lvl) and (stamps != 5 or name in ('start', 'final end')):
                assert s.k < s.n, name
                a('; stamp %d %s' % (s.base + s.k, name))
                a('s_memrealtime s[%d:%d]' % (s.r0 + 2 * s.k, s.r0 + 1 + 2 * s.k)); s.k += 1
        def flush(s, wave):
            if stamps and s.k:
                l_ = a.label('L_nst')
                a('s_cmp_lg_u32 s20, %d\ns_cbranch_scc1 %s' % (wave, l_))
                a('s_waitcnt lgkmcnt(0)\nv_mov_b32 v31, 0\ns_lshl_b32 s3, s2, 9\ns_add_u32 s3, s3, %d' % (STAMP_OFF + 8 * s.base))
                for i in range(s.k):
                    a('v_mov_b32 v254, s%d\nv_mov_b32 v255, s%d' % (s.r0 + 2 * i, s.r0 + 1 + 2 * i))
                    a('buffer_store_dwordx2 v[254:255], v31, s[%d:%d], s3 offen offset:%d' % (SWS, SWS + 3, 8 * i))
                a(l_ + ':')
    stC = St(0, 21, 60); stL = St(24, 17, 68); stH = St(44, 6, 32)
    W0 = 's_waitcnt lgkmcnt(0)'
    def XS(c): return [0, 12288, 49152, 24576][(c + 2) % 4] if o['lead'] else XOFF[c % 3]
    KL = o['kvmap'] - 9; KJ = 1 << KL
    def kvbase(dst):
        src = 's21'
        if KL == 0: return 's_lshl_b32 %s, s21, 1' % dst
        if KL == 3: return 's_mov_b32 %s, s21' % dst
        return 's_and_b32 %s, s21, %d\ns_add_u32 %s, %s, s21' % (dst, 7 & ~(KJ - 1), dst, dst)
    def PC(p): return (p & 4) | ((p & 1) << 1) | ((p >> 1) & 1) if o['alt'] else p
    FOP = 'buffer_atomic_add' if o['atom'] else 'buffer_store_dword'
    MOFF = (4 if o['rep'] > 1 else 64) if o['atom'] else 32
    OOFF = 0
    assert o['rep'] in (1, 2) and (o['atom'] or o['rep'] == 1)
    stC('start')
    a('s_cmp_ge_u32 s2, 256\ns_cbranch_scc1 L_end')
    a('s_load_dwordx2 s[%d:%d], s[0:1], %d' % (SX, SX + 1, SLOT['x']))
    a('s_load_dwordx2 s[%d:%d], s[0:1], %d' % (SWQ, SWQ + 1, SLOT['wq']))
    a('s_load_dwordx4 s[4:7], s[0:1], %d' % SLOT['k'])
    a('s_load_dwordx8 s[8:15], s[0:1], %d' % SLOT['wo'])
    if o['remap'] == 1: a('s_lshr_b32 s3, s2, 2\ns_and_b32 s3, s3, 0x18\ns_xor_b32 s2, s2, s3')
    if o['remap'] == 2: a('s_lshr_b32 s3, s2, 3\ns_and_b32 s3, s3, 0x18\ns_lshl_b32 s21, s2, 2\ns_and_b32 s21, s21, 0xe0\ns_and_b32 s2, s2, 7\ns_or_b32 s2, s2, s3\ns_or_b32 s2, s2, s21')
    if o['remap'] == 3: a('s_xor_b32 s2, s2, 0x18')
    if o['remap'] == 4: a('s_bfe_u32 s3, s2, 0x10002\ns_and_b32 s21, s2, 3\ns_lshl1_add_u32 s3, s21, s3\ns_and_b32 s2, s2, 0xf8\ns_or_b32 s2, s2, s3')
    if o['remap'] == 5: a('s_xor_b32 s2, s2, 1')
    a('v_lshrrev_b32 v1, 6, v0\nv_and_b32 v0, 63, v0\nv_readfirstlane_b32 s20, v1')
    if o['wsw']: a('s_xor_b32 s20, s20, 4')
    a('s_and_b32 s21, s2, 7\ns_bfe_u32 s22, s2, 0x20003\ns_lshr_b32 s23, s2, 5')
    a('v_and_b32 v1, 15, v0\nv_lshrrev_b32 v2, 4, v0')
    def srd(r, src, n):
        if src is not None: a('s_mov_b32 s%d, s%d\ns_mov_b32 s%d, s%d' % (r, src, r + 1, src + 1))
        a('s_mov_b32 s%d, %d\ns_mov_b32 s%d, 0x20000' % (r + 2, SIZES[n], r + 3))
    H0 = 's_and_b32 s16, s22, 2\ns_add_u32 s16, s16, s22\ns_xor_b32 s16, s16, s23'
    if o['rot2'] == 1: H0 = 's_and_b32 s16, s22, 2\ns_xor_b32 s16, s16, s23\ns_and_b32 s16, s16, 3\ns_lshl_b32 s16, s16, 1'
    if o['rot2'] == 2: H0 = 's_and_b32 s16, s22, 2\ns_lshl_b32 s16, s16, 1\ns_xor_b32 s16, s16, s23'
    if o['rot2'] == 3: H0 = 's_and_b32 s16, s23, 3\ns_lshl_b32 s16, s16, 1\ns_and_b32 s3, s22, 2\ns_add_u32 s3, s3, s22\ns_xor_b32 s16, s16, s3'
    if o['rot2'] == 4: H0 = 's_lshr_b32 s16, s22, 1\ns_xor_b32 s16, s16, s23\ns_and_b32 s16, s16, 1\ns_lshl_b32 s16, s16, 2'
    if o['alt'] == 1: H0 = 's_xor_b32 s16, s22, s23\ns_and_b32 s3, s16, 2\ns_and_b32 s16, s16, 3\ns_add_u32 s16, s16, s3'
    if o['alt'] == 2: H0 = 's_and_b32 s16, s22, 2\ns_xor_b32 s16, s16, s23\ns_and_b32 s3, s16, 2\ns_and_b32 s16, s16, 3\ns_add_u32 s16, s16, s3'
    if o['alt'] == 3: H0 = 's_and_b32 s16, s22, 1\ns_xor_b32 s16, s16, s23\ns_and_b32 s16, s16, 3'
    if o['alt'] == 4: H0 = 's_and_b32 s16, s22, 1\ns_xor_b32 s16, s16, s23\ns_and_b32 s16, s16, 3\ns_and_b32 s3, s22, 2\ns_lshl1_add_u32 s16, s3, s16'
    for i_ in range(len(o['tramp'])): a('s_cmp_eq_u32 s20, %d\ns_cbranch_scc1 L_tr%d' % (i_, i_))
    a('s_cmp_lt_u32 s20, 4\ns_cbranch_scc1 L_comp')
    a('s_cmp_gt_u32 s20, 4\ns_cbranch_scc1 L_help')
    def gpoll(name, nw, off):
        sl = ('s_sleep %d\n' % o['psleep']) if o['psleep'] else ''
        if o['rep'] == 2:
            a(W0 + '\ns_mov_b64 s[84:85], 0\ns_load_dword s85, s[66:67], %d glc\ns_sleep %d' % (off + 64, o['rsl']))
            a('L_%s:' % name)
            for r_ in range(2):
                a('s_load_dword s%d, s[66:67], %d glc\ns_waitcnt lgkmcnt(1)\ns_max_u32 s30, s84, s85\ns_cmp_ge_u32 s30, %d\ns_cbranch_scc1 L_%sok' % (84 + r_, off + 64 * r_, nw, name))
            a('s_sub_u32 s54, s54, 1\ns_cbranch_scc0 L_%s\nL_%sok:' % (name, name))
        elif o['atom']:
            a('L_%s:\n%ss_load_dword s84, s[66:67], %d glc\ns_sub_u32 s54, s54, 1\ns_cbranch_scc1 L_%sok\ns_waitcnt lgkmcnt(0)' % (name, sl, off, name))
            a('s_cmp_lt_u32 s84, %d\ns_cbranch_scc1 L_%s\nL_%sok:' % (nw, name, name))
        elif o['poll'] == 'p':
            a(W0)
            for i in range(0, nw, 2): a('s_mov_b64 s[%d:%d], 0' % (84 + i, 85 + i))
            a('L_%s:\ns_load_dwordx%d s[84:%d], s[66:67], %d glc\n%ss_sub_u32 s54, s54, 1\ns_cbranch_scc1 L_%sok' % (name, nw, 83 + nw, off, sl, name))
            a('s_and_b64 s[30:31], s[84:85], s[86:87]')
            for i in range(4, nw, 2): a('s_and_b64 s[30:31], s[30:31], s[%d:%d]' % (84 + i, 85 + i))
            a('s_and_b32 s30, s30, s31\ns_cbranch_scc0 L_%s\nL_%sok:' % (name, name))
        elif o['poll'] == 's':
            a('L_%s:\n%ss_load_dwordx%d s[84:%d], s[66:67], %d glc\ns_sub_u32 s54, s54, 1\ns_cbranch_scc1 L_%sok\ns_waitcnt lgkmcnt(0)' % (name, sl, nw, 83 + nw, off, name))
            k = nw
            while k > 2:
                k //= 2
                for i in range(0, k, 2): a('s_and_b64 s[%d:%d], s[%d:%d], s[%d:%d]' % (84 + i, 85 + i, 84 + i, 85 + i, 84 + k + i, 85 + k + i))
            a('s_and_b32 s84, s84, s85\ns_cbranch_scc0 L_%s\nL_%sok:' % (name, name))
        else:
            a('v_and_b32 v19, %d, v0\nv_lshlrev_b32 v19, 2, v19' % (nw - 1))
            a('L_%s:\n%sbuffer_load_dword v18, v19, s[%d:%d], s62 offen offset:%d sc1\ns_sub_u32 s54, s54, 1\ns_cbranch_scc1 L_%sok\ns_waitcnt vmcnt(0)' % (name, sl, SWS, SWS + 3, off, name))
            a('v_cmp_ne_u32 vcc, 1, v18\ns_cbranch_vccnz L_%s\nL_%sok:' % (name, name))
    def code_prefetch(lab='L_pc'):
        if o['codepf']:
            a('s_getpc_b64 s[66:67]\n%s:\ns_sub_u32 s66, s66, %s-%s\ns_subb_u32 s67, s67, 0' % (lab, lab, KN))
            a('s_lshr_b32 s3, s2, 3\ns_lshl_b32 s3, s3, 7\nv_lshlrev_b32 v100, 12, v0\nv_add_u32 v100, s3, v100')
            a('v_mov_b32 v103, s67\nv_add_co_u32 v102, vcc, s66, v100\nv_addc_co_u32 v103, vcc, 0, v103, vcc')
            a('v_cmp_gt_u32 vcc, L_codeend-%s, v100\ns_and_saveexec_b64 s[64:65], vcc' % KN)
            a('global_load_dword v101, v[102:103], off')
            a('s_mov_b64 exec, s[64:65]')
    def clears(all12=False, va=4, vd=12):
        a('s_lshl_b32 s3, s23, 1\ns_and_b32 s58, s22, 1\ns_add_u32 s3, s3, s58\ns_mul_i32 s3, s3, 3\n' + ('' if all12 else 's_add_u32 s3, s3, s18\n') + 's_mul_i32 s58, s3, %d' % (4 * o['OT']))
        a('s_lshl_b32 s3, s21, 1\ns_lshr_b32 s59, s22, 1\ns_add_u32 s3, s3, s59\ns_lshl_b32 s3, s3, 9\ns_add_u32 s58, s58, s3\ns_add_u32 s58, s58, %d' % G_PO) if all12 else \
        a('s_lshl_b32 s3, s21, 1\ns_lshr_b32 s57, s22, 1\ns_add_u32 s3, s3, s57\ns_lshl_b32 s3, s3, 9\ns_add_u32 s58, s58, s3\ns_add_u32 s58, s58, %d' % G_PO)
        a('v_and_b32 v%d, 31, v0\nv_lshrrev_b32 v%d, 5, v0\nv_mul_u32_u24 v%d, %d, v%d\nv_lshl_add_u32 v%d, v%d, 4, v%d' % (va, va + 1, va + 1, o['OT'], va + 1, va, va, va + 1))
        for i in range(4): a('v_mov_b32 v%d, -1' % (vd + i))
        for i in range(6 if all12 else 2):
            if i: a('s_add_u32 s58, s58, %d' % (2 * o['OT']))
            a('buffer_store_dwordx4 v[%d:%d], v%d, s[%d:%d], s58 offen sc1' % (vd, vd + 3, va, SWS, SWS + 3))
            if all12: vm.issue('clr')
    a('; ==== loader: pulls its share of this code into L2, streams 9 chunks of x | wq (rotated start), then K, V parts and wo pieces')
    vm = Cnt(a, 'vmcnt', 63)
    XV, WV, OV, KV, DV, VV = 8, 12, 16, 20, 24, 28
    if o['lprio']: a('s_setprio %d' % o['lprio'])
    if o['cpfL']: code_prefetch()
    srd(SX, None, 'x'); srd(SWQ, None, 'wq')
    a('v_lshrrev_b32 v3, 3, v0\nv_and_b32 v4, 7, v0')
    def quad(base, step):
        a('v_xor_b32 v7, 64, v%d\nv_add_u32 v%d, %d, v7' % (base, base + 1, step))
        a('v_add_u32 v%d, %d, v%d\nv_add_u32 v%d, %d, v%d' % (base + 2, 2 * step, base, base + 3, 2 * step, base + 1))
    a('v_mul_u32_u24 v5, 1152, v3\nv_xor_b32 v32, v4, v2\nv_lshl_add_u32 v%d, v32, 4, v5' % XV)
    quad(XV, 8 * 1152 - 1024)
    a('v_lshlrev_b32 v6, 1, v2\nv_xor_b32 v6, v6, v1\nv_lshlrev_b32 v6, 4, v6')
    a('v_lshl_add_u32 v%d, v2, 13, v6' % WV)
    a('v_add_u32 v%d, %d, v%d' % (WV + 1, 4 * 8192 - 1024, WV))
    a('v_xor_b32 v7, 128, v%d\nv_add_u32 v%d, %d, v7\nv_add_u32 v%d, %d, v7' % (WV, WV + 2, 2 * (4 * 8192 - 1024), WV + 3, 3 * (4 * 8192 - 1024)))
    if o['rot'] == 'g3':
        a('s_add_u32 s17, s22, s23\ns_mul_i32 s3, s17, 43\ns_lshr_b32 s3, s3, 7\ns_mul_i32 s3, s3, 3\ns_sub_u32 s17, s17, s3\ns_mul_i32 s17, s17, 3')
    elif o['rot'] in ('g3x', 'g3y', 'g3b'):
        a('s_add_u32 s17, s22, s23\ns_mul_i32 s3, s17, 43\ns_lshr_b32 s3, s3, 7\ns_mul_i32 s3, s3, 3\ns_sub_u32 s17, s17, s3\ns_mul_i32 s17, s17, 3')
        if o['rot'] == 'g3x': a('s_add_u32 s17, s17, s21')
        else: a('s_lshr_b32 s3, s21, %d\ns_add_u32 s17, s17, s3' % (2 if o['rot'] == 'g3y' else 1))
        a('s_cmp_ge_u32 s17, 9\ns_cselect_b32 s3, 9, 0\ns_sub_u32 s17, s17, s3')
    elif o['rot'] == 'g4':
        a('s_add_u32 s17, s22, s23\ns_and_b32 s17, s17, 3\ns_mul_i32 s17, s17, 9\ns_lshr_b32 s17, s17, 2')
    elif o['rot'] == 'g2':
        a('s_add_u32 s17, s22, s23\ns_and_b32 s17, s17, 1\ns_mul_i32 s17, s17, 5')
    elif o['rot'] == 'g9':
        a('s_lshl_b32 s17, s22, 1\ns_add_u32 s17, s17, s23\ns_cmp_ge_u32 s17, 9\ns_cselect_b32 s3, 9, 0\ns_sub_u32 s17, s17, s3')
    else: a('s_mov_b32 s17, 0')
    a('s_mul_i32 s52, s23, 110592')
    if 'm' in o['hack']: a('s_lshl_b32 s53, s21, 9\ns_and_b32 s3, s22, 2\ns_lshl_b32 s3, s3, 11\ns_add_u32 s53, s53, s3\ns_and_b32 s3, s22, 1\ns_lshl_b32 s3, s3, 8\ns_add_u32 s53, s53, s3')
    elif 'n' in o['hack']: a('s_lshl_b32 s53, s21, 8\ns_lshl_b32 s3, s22, 11\ns_add_u32 s53, s53, s3')
    elif 'p' in o['hack']: a('s_lshl_b32 s53, s21, 10\ns_xor_b32 s3, s22, 3\ns_lshl_b32 s3, s3, 8\ns_add_u32 s53, s53, s3')
    elif KL: a(kvbase('s53') + '\ns_lshl_b32 s53, s53, 9\ns_lshr_b32 s3, s22, 1\ns_lshl_b32 s3, s3, %d\ns_add_u32 s53, s53, s3\ns_and_b32 s3, s22, 1\ns_lshl_b32 s3, s3, 8\ns_add_u32 s53, s53, s3' % o['kvmap'])
    else: a('s_lshl_b32 s53, s21, 10\ns_lshl_b32 s3, s22, 8\ns_add_u32 s53, s53, s3')
    a('s_waitcnt lgkmcnt(0)')
    stL('L kernarg')
    if o['stlb'] >= 1:
        a('s_lshl_b32 s57, s17, 19\ns_add_u32 s57, s57, s53\ns_load_dword s58, s[%d:%d], s57' % (SWQ, SWQ + 1))
    if o['stlb'] >= 2:
        a('s_mov_b32 s57, 0x200000\ns_mov_b32 s59, 0x400000')
        for base in (SWQ, 8, 4, 6): a('s_load_dword s58, s[%d:%d], 0\ns_load_dword s58, s[%d:%d], s57' % (base, base + 1, base, base + 1))
        for base in (SWQ, 8): a('s_load_dword s58, s[%d:%d], s59' % (base, base + 1))
    ndma = [0]
    def group(vreg, n, srd_, lds, tag, adv=None, dyn=None, so='s57'):
        seq = [('s_add_u32 m0, %s, %d' % (dyn, lds) if dyn else 's_mov_b32 m0, %d' % lds) + ('\ns_add_u32 s57, s57, %s' % adv if adv else '')]
        for j in range(n):
            def f(j=j):
                ndma[0] += 1
                if ndma[0] - 1 in o['tramp']:
                    i_ = o['tramp'].index(ndma[0] - 1)
                    a('s_branch L_ov%d\nL_tr%d:\ns_branch L_comp\nL_ov%d:' % (i_, i_, i_))
                if len(vm.seq) >= o['guard'][0]:
                    a('s_waitcnt vmcnt(%d)' % o['guard'][1]); vm.seq = vm.seq[-o['guard'][1]:]
                a('buffer_load_dwordx4 v%d, s[%d:%d], %s offen offset:%d %s lds' % (vreg + j, srd_, srd_ + 3, so, 1024 * j, o['nt'].get({SX: 'x', SWQ: 'q', SK: 'k', SV: 'v', SWO: 'o'}[srd_] + tag[-1], o['nt'].get({SX: 'x', SWQ: 'q', SK: 'k', SV: 'v', SWO: 'o'}[srd_], '')))); vm.issue(tag)
            seq.append(f)
        return seq
    def g8(vreg, n, sb, lds, tag):
        seq = []
        for j in range(n):
            if j % 8 == 0: seq.append('s_mov_b32 m0, %d' % (lds + 1024 * j + 4096))
            def f(j=j):
                if len(vm.seq) >= o['guard'][0]:
                    a('s_waitcnt vmcnt(%d)' % o['guard'][1]); vm.seq = vm.seq[-o['guard'][1]:]
                a('global_load_lds_dwordx4 v%d, s[%d:%d] offset:%d' % (vreg + j, sb, sb + 1, 1024 * (j % 8) - 4096)); vm.issue(tag)
            seq.append(f)
        return seq
    subs = {}
    def call(name, groups, tag, setup):
        if name not in subs:
            t_ = ['L_sub_%s:' % name]
            for vreg, n, srd_, mb, mi, so, adv in groups:
                t_.append('s_add_u32 m0, %s, %d' % (mb, mi))
                if adv: t_.append('s_add_u32 %s, %s, %d' % (so, so, adv))
                for j in range(n): t_.append('buffer_load_dwordx4 v%d, s[%d:%d], %s offen offset:%d lds' % (vreg + j, srd_, srd_ + 3, so, 1024 * j))
            t_.append('s_setpc_b64 s[18:19]')
            subs[name] = '\n'.join(t_)
        n_ = sum(g_[1] for g_ in groups)
        def f():
            if len(vm.seq) + n_ > 62:
                a('s_waitcnt vmcnt(%d)' % (62 - n_)); vm.seq = vm.seq[-(62 - n_):]
            a('s_call_b64 s[18:19], L_sub_%s' % name)
            for _ in range(n_): vm.issue(tag)
        return [setup, f]
    def item_q(c):
        st = c % 3; tag = 'n%d' % c
        m0o = o['m0o'] and c >= o['lateat']
        sx = ['s_lshl_b32 s57, s17, 7\ns_add_u32 s57, s57, s52']
        for t in range(3): sx += group(40 + 4 * t if m0o and t else XV, 4, SX, L_X0 + XS(c) + 4096 * t, tag, 32 * 1152 if t and not m0o else None)
        sw = ['s_lshl_b32 s57, s17, 19\ns_add_u32 s57, s57, s53']
        for t in range(4): sw += group(52 + 4 * t if m0o and t else WV, 4, SWQ, L_W + 16384 * st + 4096 * t, tag + ('b' if c == 8 and t >= 2 and o['b8a'] else ''), 16 * 8192 if t and not m0o else None)
        seq = sw + sx if o['wqfirst'] else sx + sw
        if o['hoist'] >= 2 and m0o:
            seq = ['s_lshl_b32 s58, s17, 19\ns_add_u32 s58, s58, s53'] + sx
            for t in range(4): seq += group(52 + 4 * t if t else WV, 4, SWQ, L_W + 16384 * st + 4096 * t, tag, None, None, 's58')
        if o['pre'] == 1 and m0o:
            seq = []
            for t in range(3): seq += group(40 + 4 * t if t else XV, 4, SX, L_X0 + XS(c) + 4096 * t, tag, None, None, 's%d' % (72 + 2 * c))
            for t in range(4): seq += group(52 + 4 * t if t else WV, 4, SWQ, L_W + 16384 * st + 4096 * t, tag, None, None, 's%d' % (73 + 2 * c))
            return seq
        if o['pre'] == 2 and m0o:
            return g8(110, 12, 64 + 4 * c, L_X0 + XS(c), tag) + g8(122, 16, 66 + 4 * c, L_W + 16384 * st, tag)
        if 'q' in o['sub'] and m0o:
            seq = call('q', [(40 + 4 * t if t else XV, 4, SX, 's55', 4096 * t, 's57', 0) for t in range(3)] + [(52 + 4 * t if t else WV, 4, SWQ, 's56', 4096 * t, 's58', 0) for t in range(4)], tag,
                       's_lshl_b32 s57, s17, 7\ns_add_u32 s57, s57, s52\ns_lshl_b32 s58, s17, 19\ns_add_u32 s58, s58, s53\ns_mov_b32 s55, %d\ns_mov_b32 s56, %d' % (L_X0 + XS(c), L_W + 16384 * st))
        if o['qseq']:
            if c == 0: seq += ['s_mov_b32 s63, s17\ns_add_u32 s64, s17, 3\ns_cmp_eq_u32 s64, 9\ns_cselect_b32 s64, 0, s64\ns_add_u32 s65, s64, 3\ns_cmp_eq_u32 s65, 9\ns_cselect_b32 s65, 0, s65']
            if c < 8: seq += ['s_add_u32 s17, s%d, %s' % (63 + o['qseq'][:c + 1].count(o['qseq'][c + 1]), o['qseq'][c + 1])]
            assert o['qseq'][0] == '0' and sorted(o['qseq']) == sorted('012' * 3)
        else: seq += ['s_add_u32 s17, s17, 1\ns_cmp_eq_u32 s17, 9\ns_cselect_b32 s17, 0, s17']
        return seq
    def item_k():
        seq = ['s_lshr_b32 s3, s22, 1\n' + ('s_lshl_b32 s3, s3, %d\n' % KL if KL else '') + 's_add_u32 s57, s54, s3\ns_mul_i32 s57, s57, 12288']
        for t in range(6): seq += group(KV, 4, SK, L_K + 4096 * t, 'k0', None if t == 0 else (4096 if t != 3 else 16 * 12288 - 8192))
        return seq
    WSLOT = {'w0': 0, 'w1': 1, 'w2': 2, 'w3': 4.5, 'w4': 3, 'w5': 0, 'w6': 1, 'w7': 2, 'o0': 3, 'o1': 0}
    assert L_P == 4.5 * 16384
    SP2 = 3; BASE2 = L_P
    if o['vf']:
        WSLOT = {'w0': 9, 'w1': 0, 'w2': 1, 'w3': 2, 'w4': 3, 'w5': 0, 'w6': 1, 'w7': 2, 'o0': 3, 'o1': 0}
        SP2 = 0; BASE2 = L_V + 36864; assert BASE2 == 9 * 16384
        if o['vf'] == 2: WSLOT.update({'w4': 4.5, 'w5': 3, 'w6': 0, 'w7': 1, 'o0': 2, 'o1': 3})
    NEED = {'w3': 1, 'w4': 2, 'w5': 3, 'w6': 5, 'w7': 6}
    L_O1 = L_P
    STAGES = ['w0', 'w1', 'o0', 'o1', 'w2', 'w3', 'w4', 'w5', 'w6', 'w7']
    def item_v(vp):
        seq = ['s_lshr_b32 s3, s16, 2\ns_xor_b32 s3, s3, %d\n' % (vp >> 1) + ('s_lshl_b32 s3, s3, %d\n' % KL if KL else '') + 's_add_u32 s57, ' + ('s63' if 'd' in o['hack'] else 's54') + ', s3\ns_mul_i32 s57, s57, 12288\ns_xor_b32 s3, s16, %d\ns_and_b32 s3, s3, 1\ns_lshl_b32 s3, s3, 7\ns_add_u32 s57, s57, s3' % (vp & 1)]
        for b in range(2):
            seq += group(VV, 4, SV, L_V + 12288 * vp + 6144 * b, 'v%d' % vp, 16 * 12288 - 8192 if b else None)
            seq += group(VV, 2, SV, L_V + 12288 * vp + 6144 * b + 4096, 'v%d' % vp, 8192)
        if 'v' in o['sub']:
            seq = call('v', [(VV, 4, SV, 's55', 0, 's57', 0), (VV, 2, SV, 's55', 4096, 's57', 8192), (VV, 4, SV, 's55', 6144, 's57', 16 * 12288 - 8192), (VV, 2, SV, 's55', 10240, 's57', 8192)], 'v%d' % vp,
                       seq[0] + '\ns_mov_b32 s55, %d' % (L_V + 12288 * vp))
        return seq
    def item_w(p):
        lds = int(L_W + 16384 * WSLOT['w%d' % p])
        seq = ['s_xor_b32 s3, s16, %d\n' % PC(p) + ('s_and_b32 s57, s3, 4\ns_mul_i32 s57, s57, %d\ns_add_u32 s3, s3, s57\n' % (KJ - 1) if KL else '') + 's_mul_i32 s57, s3, %d\ns_add_u32 s57, s57, s60' % (64 * 1152)]
        for t in range(4): seq += group(68 + 4 * t if o['m0o'] and t else OV, 4, SWO, lds + 4096 * t, 'w%d' % p, 16 * 1152 if t and not o['m0o'] else None)
        if 'w' in o['sub']:
            assert o['m0o']
            seq = call('w', [(68 + 4 * t if t else OV, 4, SWO, 's55', 4096 * t, 's57', 0) for t in range(4)], 'w%d' % p, seq[0] + '\ns_mov_b32 s55, %d' % lds)
        return seq
    def item_o(e):
        lds = L_W + 16384 * WSLOT['o%d' % e]; seq = []
        for hf in range(2):
            seq += ['s_xor_b32 s3, %s, %d\n' % ('s59' if o['alt'] == 3 else 's16', 2 * e + hf) + ('s_and_b32 s57, s3, 4\ns_mul_i32 s57, s57, %d\ns_add_u32 s3, s3, s57\n' % (KJ - 1) if KL else '') + 's_mul_i32 s57, s3, %d\ns_add_u32 s57, s57, s62' % (64 * 1152)]
            for t in range(2): seq += group(DV, 4, SWO, lds + 8192 * hf + 4096 * t, 'o%d' % e, 32 * 1152 if t else None)
        return seq
    def item(nm):
        seq = {'v': item_v, 'w': item_w, 'o': item_o, 'k': lambda _: item_k()}[nm[0]](int(nm[1]))
        if nm[:2] in o.get('drop', []): return []
        assert not (nm[2:] and nm[0] in o['sub'])
        cut = {'v': 9, 'k': 16}.get(nm[0], 11)
        if nm[2:] == 'a': return seq[:cut] + ['s_mov_b32 s61, s57']
        if nm[2:] == 'b': return ['s_mov_b32 s57, s61'] + seq[cut:]
        return seq
    def late_setup():
        srd(SK, 4, 'k'); srd(SV, 6, 'v'); srd(SWO, 8, 'wo'); srd(SWS, 14, 'ws')
        if 'd' in o['hack']: srd(SV, SX, 'x'); srd(SWO, SX, 'x')
        if 'k' in o['hack']: srd(SK, SX, 'x')
        a('v_mul_u32_u24 v7, 1152, v2\nv_add_u32 v%d, v7, v6\nv_add_u32 v%d, %d, v%d' % (OV, OV + 1, 4 * 1152 - 1024, OV))
        a('v_xor_b32 v6, 128, v6\nv_add_u32 v7, v7, v6\nv_add_u32 v%d, %d, v7\nv_add_u32 v%d, %d, v7' % (OV + 2, 2 * (4 * 1152 - 1024), OV + 3, 3 * (4 * 1152 - 1024)))
        a('v_xor_b32 v6, v1, v2\nv_lshlrev_b32 v6, 4, v6\nv_lshl_add_u32 v%d, v2, 8, v6' % KV)
        for j in range(1, 4): a('v_xor_b32 v%d, %d, v%d' % (KV + j, 64 * j, KV))
        a('v_and_b32 v6, 1, v2\nv_lshlrev_b32 v6, 1, v6\nv_xor_b32 v6, v6, v4\nv_lshl_add_u32 v%d, v6, 4, v5' % DV)
        quad(DV, 8 * 1152 - 1024)
        a('v_lshlrev_b32 v6, 8, v3\nv_lshl_add_u32 v%d, v32, 4, v6' % VV)
        quad(VV, 8 * 256 - 1024)
        if o['m0o']:
            for base, src, n, st_ in ((40, XV, 3, 32 * 1152), (52, WV, 4, 16 * 8192), (68, OV, 4, 16 * 1152)):
                for t in range(1, n):
                    a('s_mov_b32 s3, %d' % (t * st_))
                    for j in range(4): a('v_add_u32 v%d, s3, v%d' % (base + 4 * t + j, src + j))
        if o['pre']:
            assert not o['qseq'] and o['lateat'] >= 3
            for c in range(o['lateat'], 9):
                if o['pre'] == 1: a('s_lshl_b32 s3, s17, 7\ns_add_u32 s%d, s3, s52\ns_lshl_b32 s3, s17, 19\ns_add_u32 s%d, s3, s53' % (72 + 2 * c, 73 + 2 * c))
                else:
                    a('s_lshl_b32 s3, s17, 7\ns_add_u32 s3, s3, s52\ns_add_u32 s%d, s%d, s3\ns_addc_u32 s%d, s%d, 0' % (64 + 4 * c, SX, 65 + 4 * c, SX + 1))
                    a('s_lshl_b32 s3, s17, 19\ns_add_u32 s3, s3, s53\ns_add_u32 s%d, s%d, s3\ns_addc_u32 s%d, s%d, 0' % (66 + 4 * c, SWQ, 67 + 4 * c, SWQ + 1))
                if c < 8: a('s_add_u32 s17, s17, 1\ns_cmp_eq_u32 s17, 9\ns_cselect_b32 s17, 0, s17')
        if o['pre'] == 2:
            for base, src, n, st_ in ((110, XV, 3, 32 * 1152), (122, WV, 4, 16 * 8192)):
                for t in range(n):
                    a('s_mov_b32 s3, %d' % (t * st_ + (4096 if t % 2 == 0 else 0)))
                    for j in range(4): a('v_add_u32 v%d, s3, v%d' % (base + 4 * t + j, src + j))
        a(H0)
        if o['alt'] == 3: a('s_and_b32 s59, s22, 2\ns_lshl1_add_u32 s59, s59, s16')
        a('s_lshl_b32 s54, s23, 5\n' + kvbase('s3') + '\ns_add_u32 s54, s54, s3')
        if 'd' in o['hack']: a('s_and_b32 s63, s23, 1\ns_lshl_b32 s63, s63, 5')
        a(('s_mov_b32 s60, 0 ; %d' if 'd' in o['hack'] else 's_mul_i32 s60, s3, %d') % (256 * 1152))
        a('s_add_u32 s62, s60, 1024\ns_lshl_b32 s3, s22, 8\ns_add_u32 s60, s60, s3')
    L0 = len(a.lines)
    nq = 0; nbar = 0; since = {}
    def bar():
        nonlocal nbar
        vm.wait('n%d' % nbar)
        if nbar in (1, 2, 3, 8): stL('L at B%d' % nbar, 2)
        if nbar < 4: stL('L at B%d' % nbar, 3)
        a('s_barrier'); nbar += 1
    kdone = 0
    if o['lead']:
        assert o['klate'] and not o['wqfirst'] and not o['sub']
        def split(seq, n):
            k = 0
            for i_, x_ in enumerate(seq):
                if callable(x_):
                    k += 1
                    if k == n: return seq[:i_ + 1], seq[i_ + 1:]
        run(item_q(0)); run(item_q(1))
        for c in range(2, 9):
            h_, r_ = split(item_q(c), o['lead']) if c >= o['lead0'] else ([], item_q(c))
            if 'q%d' % c in o.get('drop', []): h_, r_ = [], r_[-1:]
            run(h_); bar(); run(r_)
            if c + 1 == o['lateat']: late_setup()
        if o['leadk']: run(item('k0a')); kdone = 1
        bar()
    else:
        for t in o['order']:
            if t == 'q':
                while nbar < nq - 1 and nq >= 3: bar()
                seq = item_q(nq)
                if 'q%d' % nq in o.get('drop', []): seq = seq[-1:]
                if o['first_half'] and nq in (1, 2) and nbar == nq - 1:
                    run(seq[:16]); bar(); run(seq[16:])
                else: run(seq)
                sz = 28; nq += 1
                if nq <= 2: stL('L issued q%d' % (nq - 1), 3)
                if o['sent'] and o['clr'] == 'L%d' % nq: srd(SWS, 14, 'ws'); clears(True, 90, 92)
                if nq == o['lateat']: late_setup()
            elif t == 'K': run(item_k()); sz = 24
            elif t == 'V': run(item_v(0)); sz = 12
            elif t == 'W': run(item_v(1)); sz = 12
            for c in list(since): since[c] += sz
            if t == 'q': since[nq - 1] = 0
            while nbar < nq and since[nbar] >= o['win']: bar()
        while nbar < 8: bar()
    pre8 = o['pre8'] if 'pre8' in o else (['w0'] if 'V' in o['order'] else ['v0', 'w0'])
    assert all(it[:2] in (('k0', 'v0', 'v1', 'v2', 'w0', 'w1') if o['vf'] else ('k0', 'v0', 'v1', 'v2', 'v3', 'w0')) for it in pre8)
    seq = [x_ for it in pre8 for x_ in item('k0b' if kdone and it == 'k0' else it)]
    if o['b8a']:
        run(seq[:-10]); bar(); run(seq[-10:]); vm.wait('n8b'); a('s_barrier')
    else:
        run(seq); bar()
    XB = [('BQ', []), ('BP', ['v0', 'w0']), ('w0', ['v1', 'w1']), ('w1', ['w2']), ('w2', ['w3']), ('w3', ['v2', 'w4']),
          ('w4', ['v3', 'w5']), ('w5', ['w6']), ('w6', ['w7']), ('w7', []), ('O', ['o0', 'o1'])]
    if o['alt']:
        XB = [('BQ', []), ('BP', ['v0', 'w0']), ('w0', ['w1']), ('w1', ['v1', 'w2']), ('w2', ['w3']), ('w3', ['v2', 'w4']),
              ('w4', ['w5']), ('w5', ['v3', 'w6']), ('w6', ['w7']), ('w7', []), ('O', ['o0', 'o1'])]
    if o['klate']: XB[0] = ('BQ', ['k0'])
    if o['bs']: XB.insert(1, ('BS', []))
    for sk in o['skip']:
        i_ = [x_[0] for x_ in XB].index(sk)
        XB[i_ - 1] = (XB[i_ - 1][0], XB[i_ - 1][1] + XB[i_][1]); del XB[i_]
    XN = [x_[0] for x_ in XB]
    plan = o.get('plan') or {'B8': ['w0'], 'BQ': ['w1', 'v1', 'w2'], 'BP': ['w3', 'v2', 'w4'], 'w1': ['w5'], 'w2': ['v3', 'w6'], 'w3': ['w7'], 'w6': ['o0'], 'w7': ['o1']}
    if o['vf'] and not o.get('plan'): plan = {'B8': ['v0', 'w0'], 'BQ': ['w1', 'v1', 'w2', 'w3'], 'BP': ['v2', 'w4'], 'w1': ['v3'], 'w2': ['w5'], 'w3': ['w6'], 'w4': ['w7'], 'w6': ['o0'], 'w7': ['o1']}
    FREEAT = {'w0': 'B8', 'w1': 'B8', 'w2': 'BQ', 'w3': ('BS' if o['bs'] else 'BP') if o['klate'] else 'BQ', 'w4': 'BS' if o['bs'] else 'BP', 'w5': 'w1', 'w6': 'w2', 'w7': 'w3', 'o0': 'w5', 'o1': 'w6'}
    if o['vf']: FREEAT.update({'w2': 'B8', 'w3': 'BQ', 'w5': 'w2', 'w6': 'w3', 'w7': 'w4', 'v3': 'w1'})
    if o['vf'] == 2: FREEAT.update({'w5': 'BP', 'w6': 'w2', 'w7': 'w3', 'o0': 'w4', 'o1': 'w6'})
    ALLN = ['B8', 'BQ', 'BS', 'BP'] + ['w%d' % i_ for i_ in range(8)] + ['O']
    names = ['B8'] + [x_[0] for x_ in XB]
    issued = set(x_[:2] for x_ in pre8 if x_[2:] != 'a') | ({'v0'} if 'V' in o['order'] else set()) | ({'v1'} if 'W' in o['order'] else set())
    last = 'B8'
    for nm, need in XB:
        for it in plan.get(last, []):
            assert it[:2] not in FREEAT or ALLN.index(FREEAT[it[:2]]) <= ALLN.index(last), (it, last)
            run(item(it))
            if it[2:] != 'a': issued.add(it[:2])
        assert all(x_ in issued for x_ in need), (nm, need)
        vm.wait(need)
        stL('L at ' + nm, 2)
        a('s_barrier'); last = nm
    assert len(issued) == 14 + o['klate']
    if o['hoist']:
        L_ = a.lines; i = L0
        while i < len(L_):
            if L_[i] == 's_barrier':
                j = i + 1
                while j < len(L_) and L_[j].startswith(('s_lshl', 's_lshr', 's_add_u32', 's_mul_i32', 's_xor', 's_and', 's_mov_b32')): j += 1
                k = i
                while L_[k - 1].startswith(('s_waitcnt vmcnt', 's_memrealtime', '; stamp')): k -= 1
                L_[k:j] = L_[i + 1:j] + L_[k:i + 1]
                i = j
            else: i += 1
    stL('L done')
    stL.flush(4)
    if o['padL']: a('s_branch L_padl\n.fill %d, 4, 0xbf800000\nL_padl:' % o['padL'])
    if 'f' in o['hack']: a('s_endpgm')
    if o['stlb']: a(W0)
    srd(SOUT, 10, 'out')
    a('s_lshl_b32 s52, s21, 1\ns_lshr_b32 s3, s22, 1\ns_add_u32 s52, s52, s3')
    if stamps == 4: a('s_min_u32 s52, s52, 11\ns_lshr_b32 s3, s52, 1\ns_and_b32 s75, s52, 1\ns_lshl_b32 s75, s75, 4\ns_or_b32 s75, s75, s3\ns_and_b32 s3, s2, 0xe8\ns_or_b32 s75, s75, s3')
    a('s_cmp_ge_u32 s52, 12\ns_cbranch_scc1 L_end')
    a('s_lshl_b32 s3, %s, 9\ns_add_u32 s62, s3, %d\ns_add_u32 s66, s14, s62\ns_addc_u32 s67, s15, 0' % ('s75' if stamps == 4 else 's2', G_FL + 384))
    a('s_mov_b32 s54, %d' % SPIN)
    a('s_lshl_b32 s3, s23, 1\ns_and_b32 s53, s22, 1\ns_add_u32 s53, s53, s3')
    a('s_mul_i32 s55, s53, 12\ns_add_u32 s55, s55, s52\ns_mul_i32 s55, s55, %d\ns_add_u32 s55, s55, %d\ns_add_u32 s56, s55, 4096' % (o['OT'], G_PO))
    if o['o64']:
        a('s_cmp_ge_u32 s52, 6\ns_cselect_b32 s58, %d, 0\ns_mul_i32 s57, s53, 6\ns_add_u32 s57, s57, s52\ns_mul_i32 s57, s57, %d\ns_sub_u32 s57, s57, s58\ns_add_u32 s57, s57, 1024' % (48 * 1152 - 64, 8 * 1152))
    else:
        a('s_mul_i32 s58, s52, 43\ns_lshr_b32 s58, s58, 7\ns_mul_i32 s3, s58, 3\ns_sub_u32 s3, s52, s3')
        a('s_mul_i32 s57, s53, 3\ns_add_u32 s57, s57, s3\ns_mul_i32 s57, s57, %d\ns_lshl_b32 s58, s58, 5\ns_add_u32 s57, s57, s58\ns_add_u32 s57, s57, 1024' % (16 * 1152))
    a('v_lshlrev_b32 v6, 3, v0')
    def and16(b):
        for i in range(0, 16, 4): a('s_and_b64 s[%d:%d], s[%d:%d], s[%d:%d]' % (b + i, b + 1 + i, b + i, b + 1 + i, b + 2 + i, b + 3 + i))
        a('s_and_b64 s[%d:%d], s[%d:%d], s[%d:%d]\ns_and_b64 s[%d:%d], s[%d:%d], s[%d:%d]\ns_and_b64 s[%d:%d], s[%d:%d], s[%d:%d]\ns_and_b32 s%d, s%d, s%d' % (
            b, b + 1, b, b + 1, b + 4, b + 5, b + 8, b + 9, b + 8, b + 9, b + 12, b + 13, b, b + 1, b, b + 1, b + 8, b + 9, b, b, b + 1))
    def reduce(name, nsrc, w, off, vaddr, outs, st=None):
        per = nsrc // 2; sz = 256 * w
        def ld(j): return 'buffer_load_dwordx%d %s, v%d, s[%d:%d], s%d offen offset:%d sc1' % (w, v(32 + w * j, w), vaddr, SWS, SWS + 3, 55 + j // per, sz * (j % per))
        osc = o['outsc'] if w == 4 or o['oddsc'] is None else o['oddsc']
        bt = o['btr'] & (1 if w == 4 else 2)
        if bt and w == 4:
            a('v_lshrrev_b32 v4, 2, v0\nv_and_b32 v5, 3, v0\nv_mul_u32_u24 v3, 1152, v4\nv_lshl_add_u32 v3, v5, 4, v3\nv_lshl_add_u32 v24, v5, 4, v4\nv_lshlrev_b32 v24, 2, v24')
        elif bt:
            a('v_lshrrev_b32 v4, 2, v0\nv_and_b32 v5, 3, v0\nv_mul_u32_u24 v3, 1152, v4\nv_lshl_add_u32 v3, v5, 3, v3\nv_lshl_add_u32 v24, v5, 4, v4\nv_lshlrev_b32 v24, 2, v24')
        elif o['o64'] and w == 2 and 'V' not in o['hack']: a('v_and_b32 v4, 7, v0\nv_lshrrev_b32 v5, 3, v0\nv_mul_u32_u24 v3, 1152, v4\nv_lshl_add_u32 v3, v5, 3, v3')
        elif 'U' in o['hack'] and w == 4: a('v_and_b32 v4, 7, v0\nv_lshrrev_b32 v5, 3, v0\nv_mul_u32_u24 v3, 1152, v4\nv_lshl_add_u32 v3, v5, 4, v3\ns_bitcmp1_b32 s59, 6\ns_cselect_b32 s3, %d, 0\ns_add_u32 s59, s59, s3' % (8 * 1152 - 64))
        elif 'W' in o['hack'] and w == 2: a('v_and_b32 v4, 7, v0\nv_lshrrev_b32 v5, 3, v0\nv_mul_u32_u24 v3, 1152, v4\nv_lshl_add_u32 v3, v5, 3, v3\ns_bitcmp1_b32 s57, 5\ns_cselect_b32 s3, %d, 0\ns_add_u32 s57, s57, s3' % (8 * 1152 - 32))
        elif 'V' in o['hack'] and w == 2: a('v_mov_b32 v3, 0x7ff00000')
        elif o['x4'] and w == 4: a('v_mul_u32_u24 v3, 1152, v1\nv_lshl_add_u32 v3, v2, 4, v3')
        else: a('v_mul_u32_u24 v3, 1152, v1\nv_lshl_add_u32 v3, v2, 3, v3')
        if o.get('dot'): a('s_mov_b32 s28, 0x00003f80\ns_mov_b32 s29, 0x3f800000')
        a('s_mov_b32 s29, 0xffff0000')
        if o['acc'] == 2: a('s_mov_b32 s28, 0x00003f80\ns_mov_b32 s31, 0x3f800000')
        if o['prog']:
            a('s_mov_b32 s63, 0')
            a('L_%s:\ns_load_dwordx%d s[84:%d], s[66:67], %d glc\ns_sub_u32 s54, s54, 1\ns_cselect_b32 s30, -1, 0\ns_waitcnt lgkmcnt(0)' % (name, nsrc, 83 + nsrc, off))
            k = nsrc; sh = 1
            while k > 1:
                for i in range(0, nsrc, 2 * sh):
                    if sh <= 4: a('s_lshl%d_add_u32 s%d, s%d, s%d' % (sh, 84 + i, 84 + i + sh, 84 + i))
                    else: a('s_lshl_b32 s%d, s%d, %d\ns_or_b32 s%d, s%d, s%d' % (84 + i + sh, 84 + i + sh, sh, 84 + i, 84 + i, 84 + i + sh))
                k //= 2; sh *= 2
            a('s_or_b32 s84, s84, s30\ns_and_b32 s84, s84, %d\ns_andn2_b32 s85, s84, s63\ns_cbranch_scc0 L_%s\ns_or_b32 s63, s63, s84' % ((1 << nsrc) - 1, name))
            for j in range(nsrc):
                a('s_bitcmp1_b32 s85, %d\ns_cbranch_scc0 L_%s_%d\n%s\nL_%s_%d:' % (j, name, j, ld(j), name, j))
            a('s_cmp_lg_u32 s63, %d\ns_cbranch_scc1 L_%s' % ((1 << nsrc) - 1, name))
            if st: st('flags ok')
            a('s_waitcnt vmcnt(0)')
        else:
            own = o['own'] and w == 4
            oe = own and o['oe'] and o['xe'] in ('E', 'G', 'H') and o['atom']
            if o['far']: a('s_branch L_far_%s\n.fill 300, 4, 0xbf800000\n.p2align 6\nL_far_%s:' % (name, name))
            if o['opre'] & (1 if w == 4 else 2): a('buffer_load_dword v22, v3, s[%d:%d], %s offen %s\ns_waitcnt vmcnt(0)' % (SOUT, SOUT + 3, outs, o.get('oprefl', '')))
            a(';WARM_ON')
            if o['xe']: a('s_barrier')
            if oe: a('ds_read_b128 v[32:35], v27')
            pm = o['bm'] >= (2 if w == 2 else 1) and o['bm'] != 3 or o['bm'] == 3 and w == 2
            full = (1 << nsrc) - 1
            if pm:
                a('s_mov_b32 s64, 0')
                a('L_%s:\ns_load_dword s84, s[66:67], %d glc\ns_sub_u32 s54, s54, 1\ns_cselect_b32 s30, %d, 0\ns_waitcnt lgkmcnt(0)' % (name, off, full))
                a('s_or_b32 s84, s84, s30\ns_andn2_b32 s85, s84, s64\ns_cbranch_scc0 L_%s\ns_mov_b32 s64, s84' % name)
                for j in range(nsrc):
                    a('s_bitcmp1_b32 s85, %d\ns_cbranch_scc0 L_%s_%d\n%s\nL_%s_%d:' % (j, name, j, 'ds_read_b128 v[32:35], v27' if own and j == 0 else ld(j), name, j))
                a('s_cmp_lg_u32 s64, %d\ns_cbranch_scc1 L_%s\ns_waitcnt vmcnt(0)' % (full, name))
                if o['sent'] and w == 2: a('s_mov_b32 s63, 0\ns_branch L_sum')
            else: gpoll(name, full if o['bm'] else (32 if w == 2 and o['o64'] else nsrc) - (1 if oe else 0), off)
            if stamps == 4: a('s_memrealtime s[68:69]')
            if st: st('flags ok')
            if o['sent'] and w == 2: a('s_mov_b32 s63, 0\nL_again:')
            if not pm or w == 2:
                for j in range(nsrc):
                    if j or not own: a(ld(j))
                if own and not oe: a('ds_read_b128 v[32:35], v27')
            if pm and w == 2: a('L_sum:')
            if o['dry']: a('L_dry_%s:' % name)
        for j in range(nsrc):
            if not o['prog'] and not (oe and j == 0): a(W0 if own and j == 0 else 's_waitcnt vmcnt(%d)' % (nsrc - 1 - j))
            if o['acc'] == 1:
                b_ = 32 + w * j; tmp = 16 + 4 * (j & 1)
                for t in range(w): a('v_lshlrev_b32 v%d, 16, v%d' % ((tmp if j else 8) + t, b_ + t))
                for t in range(w): a('v_and_b32 v%d, s29, v%d' % ((b_ if j else 12) + t, b_ + t))
                if j:
                    for t in range(0, w, 2): a('v_pk_add_f32 v[%d:%d], v[%d:%d], v[%d:%d]' % (8 + t, 9 + t, 8 + t, 9 + t, tmp + t, tmp + t + 1))
                    for t in range(0, w, 2): a('v_pk_add_f32 v[%d:%d], v[%d:%d], v[%d:%d]' % (12 + t, 13 + t, 12 + t, 13 + t, b_ + t, b_ + t + 1))
                continue
            if o['acc'] == 2:
                b_ = 32 + w * j
                for t in range(w): a('v_dot2_f32_bf16 v%d, v%d, s28, %s' % (8 + t, b_ + t, 'v%d' % (8 + t) if j else '0'))
                for t in range(w): a('v_dot2_f32_bf16 v%d, v%d, s31, %s' % (12 + t, b_ + t, 'v%d' % (12 + t) if j else '0'))
                if j == nsrc - 1: a('s_nop 2')
                continue
            for t in range(w):
                src = 32 + w * j + t
                if j == 0: a('v_lshlrev_b32 v%d, 16, v%d\nv_and_b32 v%d, s29, v%d' % (8 + 2 * t, src, 9 + 2 * t, src))
                elif o.get('dot'): a('v_dot2_f32_bf16 v%d, v%d, s28, v%d\nv_dot2_f32_bf16 v%d, v%d, s29, v%d' % (8 + 2 * t, src, 8 + 2 * t, 9 + 2 * t, src, 9 + 2 * t))
                else: a('v_lshlrev_b32 v16, 16, v%d\nv_and_b32 v17, s29, v%d\nv_pk_add_f32 v[%d:%d], v[%d:%d], v[16:17]' % (src, src, 8 + 2 * t, 9 + 2 * t, 8 + 2 * t, 9 + 2 * t))
        if o['sent'] and w == 2: a('v_cmp_u_f32 vcc, v8, v%d\n' % (9 if o['acc'] else 10) + 's_cbranch_vccnz L_retry\nL_accept:')
        if stamps == 4: a('s_memrealtime s[70:71]')
        for t in range(w): a('v_cvt_pk_bf16_f32 v%d, v%d, v%d' % ((8 + t, 8 + t, 12 + t) if o['acc'] else (8 + t, 8 + 2 * t, 9 + 2 * t)))
        if w == 4 and o['x4']:
            a('v_permlane32_swap_b32 v8, v10\nv_permlane32_swap_b32 v9, v11\nv_permlane16_swap_b32 v8, v10\nv_permlane16_swap_b32 v9, v11')
        if o['dry']: a('s_cbranch_execz L_dryret_%s' % name)
        if bt:
            for t in range(w): a('ds_bpermute_b32 v%d, v24, v%d' % (8 + t, 8 + t))
            a(W0)
        if w == 4 and o['x4']:
            a('buffer_store_dwordx4 v[8:11], v3, s[%d:%d], %s offen %s' % (SOUT, SOUT + 3, outs, osc))
        else:
            for t in range(w // 2): a('buffer_store_dwordx2 v[%d:%d], v3, s[%d:%d], %s offen offset:%d %s' % (8 + 2 * t, 9 + 2 * t, SOUT, SOUT + 3, outs, 32 * t, osc))
        a(';WARM_OFF')
        if stamps >= 4:
            a('s_waitcnt vmcnt(0)\ns_memrealtime s[72:73]\ns_waitcnt lgkmcnt(0)\nv_mov_b32 v31, 0\ns_lshl_b32 s3, s2, 9\ns_mul_i32 s74, s20, 24\ns_add_u32 s3, s3, s74\ns_add_u32 s3, s3, %d' % (STAMP_OFF + 8 * 50 - 96))
            for i in range(3) if stamps == 4 else [2]:
                a('v_mov_b32 v254, s%d\nv_mov_b32 v255, s%d' % (68 + 2 * i, 69 + 2 * i))
                a('buffer_store_dwordx2 v[254:255], v31, s[%d:%d], s3 offen offset:%d' % (SWS, SWS + 3, 8 * i))
    if stamps == 4:
        for w_, nm in enumerate(['odd', 'r0', 'r1', 'r2']):
            for i, x_ in enumerate(['flags', 'summed', 'end']): a('; stamp %d %s %s' % (50 + 3 * w_ + i, nm, x_))
    reduce('op', 16, 2, 0, 6, 's57')
    a('s_endpgm')
    if o['sent']:
        a('L_retry:\ns_cmp_lg_u32 s63, 0\ns_cbranch_scc1 L_accept\ns_mov_b32 s63, 1\ns_mov_b32 s54, %d' % SPIN)
        if stamps == 5: a('v_mov_b32 v20, 160\nv_mov_b32 v21, 1\ns_mov_b64 exec, 1\nglobal_atomic_add v20, v21, s[12:13] sc1\ns_mov_b64 exec, -1')
        if o['ack1'] and o['o64']:
            a('s_cmp_ge_u32 s52, 6\ns_cselect_b32 s3, 3, 0\ns_and_b32 s62, s2, 0xe8\ns_or_b32 s3, s3, s62\ns_lshl_b32 s3, s3, 9\ns_add_u32 s62, s3, %d\ns_add_u32 s66, s14, s62\ns_addc_u32 s67, s15, 0' % (G_FL + 384))
        gpoll('oq', 0xffff if o['bm'] else 32 if o['o64'] else 16, 64)
        a('s_branch L_again')
    for t_ in subs.values(): a(t_)
    if o['padC']: a('.fill %d, 4, 0xbf800000' % o['padC'])
    a('L_comp:')
    lg = Cnt(a, 'lgkmcnt', 15)
    stC('C entry', 3)
    XA, WA, VA, OVA, OA, QA, FRA, FUA, FV, FC, PFA = 10, 12, 16, 18, 20, 21, 22, 23, 24, 27, 31
    A = 32; F = [80, 108]; B = 136; C = 184; VWO = 232; SP = 244
    KF = B; QF = 80; S = 96; P = SP; KA = 184; UA = 254; QT = 192
    a('v_bfe_u32 v3, v0, 2, 2\nv_and_b32 v4, 3, v0')
    a('s_lshr_b32 s18, s20, 1\ns_and_b32 s17, s20, 1')
    a(H0)
    a('v_lshrrev_b32 v7, 1, v1\nv_xor_b32 v7, v7, v2\nv_lshlrev_b32 v7, 4, v7\nv_lshl_add_u32 v5, v1, 7, v7\nv_xor_b32 v6, 64, v5')
    a('s_mul_i32 s3, s18, 6144\ns_add_u32 s3, s3, %d' % L_X0)
    a('v_add_u32 v%d, s3, v5\nv_add_u32 v%d, s3, v6' % (XA, XA + 1))
    a('s_add_u32 s3, s3, %d\nv_add_u32 v%d, s3, v5\nv_add_u32 v%d, s3, v6' % (L_V - L_X0, VA, VA + 1))
    a('s_and_b32 s3, s22, 1\ns_mul_i32 s3, s3, 6144\ns_add_u32 s3, s3, %d' % L_V)
    if o['alt'] == 3: a('s_and_b32 s19, s22, 2\ns_mul_i32 s19, s19, 12288\ns_add_u32 s3, s3, s19')
    a('v_add_u32 v%d, s3, v5\nv_add_u32 v%d, s3, v6' % (OVA, OVA + 1))
    a('v_and_b32 v7, 1, v2\nv_lshl_add_u32 v7, v7, 2, v3\ns_lshl_b32 s3, s17, 2\nv_xor_b32 v7, s3, v7')
    a('v_lshl_add_u32 v5, v2, 3, v3\nv_lshlrev_b32 v8, 8, v5\nv_lshl_add_u32 v8, v4, 3, v8')
    assert L_W == 0
    for t in range(4): a('v_xor_b32 v9, %d, v7\nv_lshl_add_u32 v%d, v9, 5, v8' % (t, WA + t))
    a('v_and_b32 v7, 1, v2\nv_lshrrev_b32 v8, 1, v3\nv_lshl_add_u32 v7, v7, 1, v8\nv_xor_b32 v7, s20, v7')
    a('v_lshlrev_b32 v8, 7, v5\nv_lshl_add_u32 v8, v4, 3, v8\nv_lshl_add_u32 v%d, v7, 5, v8' % OA)
    a('s_mul_i32 s3, s18, 12288\ns_lshl_b32 s19, s17, 11\ns_add_u32 s3, s3, s19\ns_add_u32 s3, s3, %d' % L_Q)
    a('v_lshlrev_b32 v25, 4, v0\nv_lshlrev_b32 v26, 3, v0\nv_add_u32 v%d, s3, v%d' % (QA, 26 if o['q64'] else 25))
    if o['q64'] == 3: a('v_lshrrev_b32 v7, 1, v2\nv_lshl_add_u32 v7, v7, 4, v1\nv_lshlrev_b32 v7, 4, v7\nv_and_b32 v8, 1, v2\nv_lshl_add_u32 v7, v8, 3, v7\nv_add_u32 v%d, s3, v7' % QA)
    if o['own3']:
        assert o['own'] and not o['oe'] and not o['bm']
        a('s_and_b32 s59, s2, 0xf8\ns_lshl_b32 s48, s20, 1\ns_add_u32 s59, s59, s48\ns_and_b32 s3, s2, 1\ns_add_u32 s3, s3, s59\ns_mul_i32 s34, s3, %d\ns_xor_b32 s3, s3, 1\ns_mul_i32 s35, s3, %d' % (o['MO'], o['MO']))
        a('s_and_b32 s3, s21, 6\ns_xor_b32 s48, s48, s3\ns_lshl_b32 s3, s48, 10\ns_add_u32 s3, s3, %d\ns_add_u32 s34, s34, s3\ns_add_u32 s35, s35, s3\ns_add_u32 s35, s35, 1024' % G_PM)
        a('s_cmp_eq_u32 s48, 0\ns_cselect_b32 s33, 0x7ff00000, 0\ns_cselect_b64 s[30:31], -1, 0\nv_add_u32 v27, %d, v25' % L_F)
        for qt in (1, 2): a('s_add_u32 s%d, s34, %d\ns_add_u32 s%d, s35, %d' % (34 + 2 * qt, qt * o['MQ'], 35 + 2 * qt, qt * o['MQ']))
    else:
        a('s_and_b32 s59, s2, 0xf8\ns_lshl_b32 s48, s20, 1\ns_add_u32 s59, s59, s48\ns_mul_i32 s56, s59, %d\ns_add_u32 s56, s56, %d\ns_add_u32 s57, s56, %d' % (o['MO'], G_PM, o['MO']))
        a('s_xor_b32 s48, s48, s21\ns_lshl_b32 s3, s48, 10\ns_add_u32 s56, s56, s3\ns_xor_b32 s3, s3, 1024\ns_add_u32 s57, s57, s3')
        if o['own']:
            a('s_cmp_eq_u32 s48, 0\ns_cselect_b32 s56, 0x7ff00000, s56\ns_cselect_b64 s[30:31], -1, 0\ns_cmp_eq_u32 s48, 1\ns_cselect_b32 s57, 0x7ff00000, s57\ns_cselect_b64 s[32:33], -1, 0\nv_add_u32 v27, %d, v25' % L_F)
    a('s_lshl_b32 s3, s23, 1\ns_and_b32 s54, s22, 1\ns_add_u32 s3, s3, s54\ns_mul_i32 s3, s3, 12\n' + ('s_mul_i32 s54, s18, 6' if o['o64'] else 's_mul_i32 s54, s20, 3') + '\ns_add_u32 s3, s3, s54\ns_mul_i32 s58, s3, %d' % o['OT'])
    if o['o64']:
        assert not o['bm'] and not o['btr'] & 2
        a('s_lshl_b32 s3, s17, 8\ns_add_u32 s58, s58, s3')
    a('s_lshl_b32 s3, s21, 1\ns_lshr_b32 s55, s22, 1\ns_add_u32 s55, s55, s3\ns_lshl_b32 s3, s55, 9\ns_add_u32 s58, s58, s3\ns_add_u32 s58, s58, %d' % G_PO)
    a('v_and_b32 v5, 7, v0\nv_lshrrev_b32 v6, 3, v0')
    a('v_add_u32 v7, s59, v5\nv_lshlrev_b32 v7, 9, v7\n' + ('s_mov_b32 s3, %d' % (G_FL + MOFF) if o['atom'] else 's_lshl_b32 s3, s21, 2\ns_add_u32 s3, s3, %d' % (G_FL + MOFF)) + '\nv_add_u32 v7, s3, v7')
    a('s_sub_u32 s54, s54, 2\nv_add_u32 v8, s54, v5\nv_lshrrev_b32 v9, 1, v8\nv_and_b32 v8, 1, v8\nv_lshl_add_u32 v8, v8, 4, v9\ns_and_b32 s3, s2, 0xe8\nv_add_u32 v8, s3, v8\nv_lshlrev_b32 v8, 9, v8')
    a(('s_mov_b32 s3, %d' if o['atom'] else 's_lshl_b32 s3, s55, 2\ns_add_u32 s3, s3, %d') % (G_FL + 128 + OOFF) + '\nv_add_u32 v8, s3, v8\nv_mov_b32 v9, 0x7ff00000')
    a('v_lshl_add_u32 v7, v6, 6, v7\nv_lshl_add_u32 v8, v6, 6, v8\nv_cmp_gt_u32 vcc, %d, v6\nv_cndmask_b32 v5, 8, v5, vcc' % o['rep'])
    if o['own'] and o['oe'] and o['xe'] in ('E', 'G', 'H') and o['atom']: a('v_cmp_ne_u32 vcc, s48, v5\nv_cndmask_b32 v7, v9, v7, vcc')
    a('v_cmp_gt_u32 vcc, %d, v5\n' % (8 if o['o64'] else 5) + 'v_cndmask_b32 v8, v9, v8, vcc\nv_cmp_gt_u32 vcc, 2, v5\nv_cndmask_b32 v30, v8, v7, vcc\nv_cndmask_b32 v28, v9, v7, vcc\nv_mov_b32 v29, 1')
    if o['bm']: a('v_xor_b32 v7, s48, v5\nv_mov_b32 v8, s55\nv_cndmask_b32 v7, v8, v7, vcc\nv_lshlrev_b32 v29, v7, v29')
    if 'g' in o['hack']: a('s_mov_b32 s58, 0x7ff00000\n' + '\n'.join('s_mov_b32 s%d, s58' % r_ for r_ in (34, 35, 36, 37, 38, 39, 56, 57)))
    if o['o64']: a('v_lshrrev_b32 v7, 3, v1\nv_mul_u32_u24 v7, %d, v7\nv_lshl_add_u32 v7, v2, 6, v7\nv_and_b32 v8, 7, v0\nv_lshl_add_u32 v3, v8, 3, v7' % o['OT'])
    a('s_mov_b32 s52, s20')
    def unit_setup():
        a('s_cmp_ge_u32 s52, 3\ns_cselect_b32 s3, 12288, 0\ns_add_u32 s3, s3, %d' % L_K)
        if o['q64'] == 3:
            a('v_xor_b32 v7, v1, v2\nv_lshlrev_b32 v7, 4, v7\nv_lshl_add_u32 v7, v1, 8, v7')
            for kk in range(4): a('v_xor_b32 v8, %d, v7\nv_add_u32 v%d, s3, v8' % (64 * kk, KA + kk))
        else:
            a('v_lshrrev_b32 v7, 1, v2\nv_xor_b32 v7, v1, v7\nv_lshlrev_b32 v7, 4, v7\nv_lshl_add_u32 v7, v1, 8, v7\nv_and_b32 v8, 1, v2\nv_lshl_add_u32 v7, v8, 3, v7')
            for j in range(8): a('v_xor_b32 v8, %d, v7\nv_add_u32 v%d, s3, v8' % (32 * j, KA + j))
        a('s_lshl_b32 s3, s52, 12\ns_add_u32 s3, s3, %d\nv_add_u32 v%d, s3, v%d' % (L_Q, UA, 26 if o['q64'] in (1, 2) else 25))
        a('s_mov_b32 s50, 0x%x\ns_mov_b32 s51, s50' % f2i((1 if o['mimic'] else 128 ** -0.5) * math.log2(math.e)))
        if o['mimic']: a('s_mov_b32 s26, 0x%x\ns_mov_b32 s27, s26\ns_mov_b32 s25, 0xffff0000' % f2i(128 ** -0.5))
        a('s_mul_i32 s3, s52, 1536\ns_mul_i32 s49, s2, 9216\ns_add_u32 s49, s49, s3\ns_add_u32 s49, s49, %d' % G_P)
        if o['pds']: a('s_add_u32 s3, s3, %d\nv_add_u32 v255, s3, v25\nv_add_u32 v31, s3, v26' % (L_P + 27648))
    def k_reads(late=False):
        if o['klate'] and not late: return []
        if o['q64'] == 3: return ['ds_read_b128 %s, v%d offset:%d' % (v(KF + 16 * kt + 4 * kk, 4), KA + kk, 4096 * kt) for kk in range(4) for kt in range(3)]
        return ['ds_read_b64 %s, v%d offset:%d' % (v(KF + 16 * kt + 2 * j, 2), KA + j, 4096 * kt) for j in range(8) for kt in range(3)]
    if o['mimic']: a(W0)
    unit_setup()
    if o['own3']: a('v_add_u32 v1, s33, v25')
    a(W0)
    srd(SWS, 14, 'ws')
    if o['sat'] & 1: a('s_lshl_b32 s3, s59, 9\ns_add_u32 s42, s3, %d\ns_add_u32 s43, s42, 512\ns_mov_b32 s40, 1' % (256 + MOFF))
    def wreads(st, off, wa=WA): return ['ds_read_b64_tr_b16 %s, v%d offset:%d' % (v(st + 4 * t + 2 * hh, 2), wa + t, off + 1024 * hh) for t in range(4) for hh in range(2)]
    def reads_A(n, ks, st=None):
        st = st or F[ks]
        return ['ds_read_b128 %s, v%d offset:%d' % (v(st + 16 + 4 * q, 4), XA + ks, XS(n) + 2048 * q) for q in range(3)] + wreads(st, 16384 * (n % 3) + 8192 * ks)
    ORD = [(t, q if t % 2 == 0 else 2 - q) for t in range(4) for q in range(3)]
    def mfma(acc, ks, first, swap, od=None):
        out = []
        for t, q in od or ORD:
            d = v(acc + 4 * (3 * t + q), 4); x = v(F[ks] + 4 * t, 4); y = v(F[ks] + 16 + 4 * q, 4)
            if swap: x, y = y, x
            out.append(MF % (d, x, y, '0' if first else d))
        return out
    def cvt(d, s_): return ['v_cvt_pk_bf16_f32 v%d, v%d, v%d' % (d, s_, s_ + 1), 'v_cvt_pk_bf16_f32 v%d, v%d, v%d' % (d + 1, s_ + 2, s_ + 3)]
    def ds(txt, tag):
        def f(): a(txt); lg.issue(tag)
        return f
    def step(m, dsops, extra=(), waits=None, pre=(), xstart=0, dstart=0):
        n = len(m); per = [[] for _ in range(n)]
        for i, x_ in enumerate(pre): per[i].append(x_)
        nd = n - dstart
        for i, x_ in enumerate(dsops): per[dstart + (i if len(dsops) <= nd else i * nd // len(dsops))].append(x_)
        nx = n - xstart
        for i, x_ in enumerate(extra): per[xstart + (i * nx // len(extra))].append(x_)
        for i in range(n):
            if waits and i in waits: lg.wait(waits[i])
            a(m[i]); run(per[i])
    stC('C at B0', 3)
    a('s_barrier')
    stC('B0')
    def tA(n, ks): return [ds(x_, 'a%d%d%s' % (n, ks, 'lo' if i < 7 else 'hi')) for i, x_ in enumerate(reads_A(n, ks))]
    if o['atune']:
        bg = o['atune']
        run(tA(0, 0))
        for n in range(7):
            kr = [ds(x_, 'k') for x_ in k_reads()[6 * (n - 3):6 * (n - 2)]] if 3 <= n < 7 else []
            m = mfma(A, 0, n == 0, False)
            step(m[:10], tA(n, 1), waits={0: 'a%d0lo' % n, 6: 'a%d0hi' % n}); step(m[10:], [])
            m = mfma(A, 1, False, False)
            step(m[:bg], [], waits={0: 'a%d1lo' % n})
            lg.wait_all(); a('s_barrier')
            r = tA(n + 1, 0)
            run(r[:1]); step(m[bg:], r[1:] + kr)
        lg.seq = []
    else: run(reads_A(0, 0))
    for n in range(7 if o['atune'] else 0, 9):
        if n == 7 and o['tm']:
            assert not o['b8a']
            F2 = 204; QT = F[1]
            a(W0)
            run(interleave(mfma(A, 0, False, False), reads_A(7, 1), 0, 2))
            a(W0); a('s_barrier'); stC('B8')
            a(';WARM_ON')
            r0, r1 = reads_A(8, 0), reads_A(8, 1, F2)
            rr = []
            for idx in ([0], [3, 4], [5, 6], [1], [2], [7, 8], [9, 10]):
                rr += [r0[i] for i in idx] + [r1[i] for i in idx]
            run(interleave(mfma(A, 1, False, False), rr, 0, 2))
            stC('end 7,1', 3)
            m = []; qw = []
            for i, (tp, q) in enumerate([(tp, q) for tp in range(2) for q in range(3)]):
                for u in range(2):
                    t = 2 * tp + u; d = v(A + 4 * (3 * t + q), 4)
                    for st in (F[0], F2): m.append(MF % (d, v(st + 4 * t, 4), v(st + 16 + 4 * q, 4), d))
                    qw += cvt(QT + 4 * i + 2 * u, A + 4 * (3 * t + q))
                    if o['q64'] and 'q' not in o['hack']: qw[-1] += '\nds_write_b64 v%d, %s offset:%d' % (QA, v(QT + 4 * i + 2 * u, 2), q * 4096 + tp * 1024 + u * 512)
                if not o['q64']: qw[-1] += '\nds_write_b128 v%d, %s offset:%d' % (QA, v(QT + 4 * i, 4), q * 4096 + tp * 1024)
            m[0] = 's_waitcnt lgkmcnt(12)\n' + m[0]; m[4] = 's_waitcnt lgkmcnt(8)\n' + m[4]; m[8] = ('s_waitcnt lgkmcnt(%d)' % (1 if o['q64'] and o['qs'] <= 6 and 'q' not in o['hack'] else 0)) + '\n' + m[8]
            run(interleave(m, qw, o['qs'], 1))
            stC('Q issued', 3)
            if stamps == 3: a(W0); stC('Q done', 3)
            break
        if n == 8: stC('end 7,1', 3)
        a(W0)
        run(interleave(mfma(A, 0, n == 0, False), (['s_barrier'] if n == 8 and o['b8a'] else []) + reads_A(n, 1), 0, 2))
        if n < 8:
            a(W0)
            a('s_barrier')
            if n == 7: stC('B8')
            run(interleave(mfma(A, 1, False, False), reads_A(n + 1, 0) + (k_reads()[8 * (n - 4):8 * (n - 3)] if 4 <= n < 7 else []), 0, 2))
        else:
            stC('end 8,0', 3)
            a(W0)
            od = [(2 * tp + u, q) for tp in range(2) for q in range(3) for u in range(2)]
            qw = []
            for i, (t, q) in enumerate(od):
                qw += cvt(QT + 2 * i, A + 4 * (3 * t + q))
                if t & 1: qw[-1] += '\nds_write_b128 v%d, %s offset:%d' % (QA, v(QT + 2 * i - 2, 4), q * 4096 + (t >> 1) * 1024)
            run(interleave(mfma(A, 1, False, False, od), qw, 6, 2))
            stC('Q issued', 3)
            if stamps == 3: a(W0); stC('Q done', 3)
    if o['own3']:
        a('s_and_b32 s3, s21, 1\ns_lshl_b32 s3, s3, 6')
        for t in range(4): a('v_xor_b32 v%d, s3, v%d' % (WA + t, WA + t))
    if o['vf']:
        for t in range(4): a('v_add_u32 v%d, %d, v%d' % (250 + t, BASE2, WA + t))
    if o['uprio']: a('s_setprio %d' % o['uprio'])
    a('L_unit:')
    a(W0)
    a('s_barrier')
    stC('BQ')
    for kk in range(4):
        if o['klate']: run(k_reads(True)[3 * kk:3 * kk + 3])
        if o['q64'] == 1: a('ds_read2st64_b64 %s, v%d offset0:%d offset1:%d' % (v(QF + 4 * kk, 4), UA, 2 * kk, 2 * kk + 1))
        elif o['q64'] == 2: a('ds_read_b64 %s, v%d offset:%d\nds_read_b64 %s, v%d offset:%d' % (v(QF + 4 * kk, 2), UA, 1024 * kk, v(QF + 4 * kk + 2, 2), UA, 1024 * kk + 512))
        else: a('ds_read_b128 %s, v%d offset:%d' % (v(QF + 4 * kk, 4), UA, 1024 * kk))
    for kk in range(4):
        a('s_waitcnt lgkmcnt(%d)' % ((3 - kk) * (4 if o['klate'] else 2 if o['q64'] == 2 else 1)))
        for kt in range(3): a(MF % (v(S + 4 * kt, 4), v(KF + 16 * kt + 4 * kk, 4), v(QF + 4 * kk, 4), v(S + 4 * kt, 4) if kk else '0'))
    if o['bs']: a('s_barrier')
    if 's' in o['hack']: a('s_branch L_hs_skip')
    if 'h' in o['hack']: a('s_cmp_ge_u32 s20, 4\ns_cbranch_scc1 L_hs_skip')
    if o['mimic']:
        for rnd in range(2):
            for t in range(6): a('v_cvt_pk_bf16_f32 v%d, v%d, v%d' % (S + 2 * t + 1, S + 2 * t, S + 2 * t + 1))
            for t in range(6): a('v_lshlrev_b32 v%d, 16, v%d' % (S + 2 * t, S + 2 * t + 1))
            for t in range(6): a('v_and_b32 v%d, s25, v%d' % (S + 2 * t + 1, S + 2 * t + 1))
            if rnd == 0:
                for t in range(0, 12, 2): a('v_pk_mul_f32 v[%d:%d], v[%d:%d], s[26:27]' % (S + t, S + t + 1, S + t, S + t + 1))
    x, y = 6, 7
    a('v_max3_f32 v6, v%d, v%d, v%d\nv_max3_f32 v7, v%d, v%d, v%d' % (S, S + 1, S + 2, S + 3, S + 4, S + 5))
    a('v_max3_f32 v6, v6, v%d, v%d\nv_max3_f32 v7, v7, v%d, v%d\nv_max3_f32 v6, v6, v%d, v%d' % (S + 6, S + 7, S + 8, S + 9, S + 10, S + 11))
    def xl(op, first):
        a(first)
        a('v_permlane16_swap_b32 v6, v7\n%s v8, v6, v7\n%s v7, v6, v7\nv_permlane32_swap_b32 v8, v7\n%s v6, v8, v7' % (op, op, op))
    xl('v_max_f32', 'v_max_f32 v6, v6, v7\nv_mov_b32 v7, v6')
    a('v_mul_f32 v6, s50, v6')
    if o['pk']:
        for t in range(0, 12, 2): a('v_pk_fma_f32 v[%d:%d], v[%d:%d], s[50:51], v[6:7] op_sel_hi:[1,1,0] neg_lo:[0,0,1] neg_hi:[0,0,1]' % (S + t, S + t + 1, S + t, S + t + 1))
    else:
        for t in range(12): a('v_fma_f32 v%d, v%d, s50, -v6' % (S + t, S + t))
    for t in range(12): a('v_exp_f32 v%d, v%d' % (S + t, S + t))
    if o['pk']:
        a('v_pk_add_f32 v[6:7], v[%d:%d], v[%d:%d]\nv_pk_add_f32 v[4:5], v[%d:%d], v[%d:%d]' % (S, S + 1, S + 2, S + 3, S + 4, S + 5, S + 6, S + 7))
        a('v_pk_add_f32 v[6:7], v[6:7], v[%d:%d]\nv_pk_add_f32 v[4:5], v[4:5], v[%d:%d]\nv_pk_add_f32 v[4:5], v[4:5], v[6:7]' % (S + 8, S + 9, S + 10, S + 11))
    else:
        a('v_add_f32 v4, v%d, v%d\nv_add_f32 v5, v%d, v%d' % (S, S + 1, S + 2, S + 3))
        for t in range(4, 12, 2): a('v_add_f32 v4, v4, v%d\nv_add_f32 v5, v5, v%d' % (S + t, S + t + 1))
    xl('v_add_f32', 'v_add_f32 v6, v4, v5\nv_add_f32 v7, v4, v5')
    a('v_rcp_f32 v6, v6')
    if o['pk']:
        for t in range(0, 12, 2): a('v_pk_mul_f32 v[%d:%d], v[%d:%d], v[6:7] op_sel_hi:[1,0]' % (S + t, S + t + 1, S + t, S + t + 1))
    else:
        for t in range(12): a('v_mul_f32 v%d, v%d, v6' % (S + t, S + t))
    for t in range(6): a('v_cvt_pk_bf16_f32 v%d, v%d, v%d' % (P + t, S + 2 * t, S + 2 * t + 1))
    if o['hack']: a('L_hs_skip:')
    if 'e' not in o['hack'] and 'y' not in o['hack']:
        a('buffer_store_dwordx4 %s, v25, s[%d:%d], s49 offen sc1' % (v(P, 4), SWS, SWS + 3))
        a('buffer_store_dwordx2 %s, v26, s[%d:%d], s49 offen offset:1024 sc1' % (v(P + 4, 2), SWS, SWS + 3))
    if o['pds']: a('ds_write_b128 v255, %s\nds_write_b64 v31, %s offset:1024' % (v(P, 4), v(P + 4, 2)))
    stC('C at BP')
    a('s_barrier')
    a('s_cmp_ge_u32 s20, 4\ns_cbranch_scc1 L_help2')
    if o['cprio'] or o['uprio']: a('s_setprio %d' % o['cprio'])
    stC('BP')
    def reads_W(p, ks):
        vp = (p >> 2) * 2 + (PC(p) & 1); tg = 'w%d%d' % (p, ks)
        r = ['ds_read_b128 %s, v%d offset:%d' % (v(F[ks] + 16 + 4 * q, 4), VA + ks, 12288 * vp + 2048 * q) for q in range(3)] + (wreads(F[ks], 16384 * WSLOT['w%d' % p] + 8192 * ks) if WSLOT['w%d' % p] < 4 else wreads(F[ks], 8192 * ks, 250))
        if (p, ks) == (0, 0) and o['fine0']:
            r = [r[0], r[3], r[4], r[1], r[2]] + r[5:]
            return [ds(x_, 'f%d' % i) for i, x_ in enumerate(r)]
        return [ds(x_, tg + ('lo' if i < 7 else 'hi')) for i, x_ in enumerate(r) if i >= 3 or not (o['alt'] and p & 1)]
    def wW(p, ks, more=()): return {0: 'f2', 1: 'f3', 2: 'f4', 3: 'f6', 6: 'f8', 9: 'f10'} if (p, ks) == (0, 0) and o['fine0'] else {0: ['w%d%dlo' % (p, ks)] + list(more), 6: ['w%d%dhi' % (p, ks)]}
    def vwpos(base, i, kt): return base + ([0, 2, 4][kt] if i % 2 == 0 else [8, 10, 6][kt])
    HACC = [B, A, B, A]; HDST = [C, C, B, B]
    def cvt_W(i): return [x_ for t in range(4) for kt in range(3) for x_ in cvt(vwpos(HDST[i] + 12 * t, i, kt), HACC[i] + 4 * (3 * t + kt))]
    def xb(nm): return [('s_waitcnt vmcnt(0)\n' if nm == o['ack'] and 'w' not in o['hack'] else '') + 's_barrier'] if nm in XN else []
    def xbc(nm):
        r_ = xb(nm)
        if r_ and o['vdry']: r_ = ['s_cbranch_execz %s\n%s\nL_xa_%s:' % ('L_vwret' if nm in o['vseg'] else 'L_xa_' + nm, r_[0], nm)]
        return r_
    def ins(lst, i, x_): return lst[:i] + [x_] + lst[i:]
    OS = [[108, 112, 116, 120, 124], [48, 52, 56, 60, 64], [80, 84, 88, 92, 96], [100, 128, 132, 68, 72]]; OACC = [[232, 236, 240], [32, 36, 40]]
    def rdO(kq):
        tg = 'os%d' % kq
        return [ds('ds_read_b128 %s, v%d offset:%d' % (v(OS[kq][kt], 4), OVA + (kq & 1), 12288 * (kq >> 1) + 2048 * kt), tg) for kt in range(3)] + \
               [ds('ds_read_b64_tr_b16 %s, v%d offset:%d' % (v(OS[kq][3 + e] + 2 * hh, 2), OA, 16384 * WSLOT['o%d' % e] + 4096 * kq + 512 * hh), tg) for e in range(2) for hh in range(2)]
    mfma_O = [MF % (v(OACC[e][kt], 4), v(OS[kq][kt], 4), v(OS[kq][3 + e], 4), v(OACC[e][kt], 4) if kq else '0') for kq in range(4) for e in range(2) for kt in range(3)]
    cvt_O = [x_ for e in range(2) for kt in range(3) for x_ in cvt(vwpos(VWO, e, kt), OACC[e][kt])]
    PFULL = [10, 11, 22, 23]; PHALF = [4, 5, 6, 7]; POF = [24, 21]; POH = [8, 9]
    padr = []
    for i in range(4):
        padr.append('s_xor_b32 s3, s53, %d\ns_mul_i32 s3, s3, 9216\ns_add_u32 s3, s3, s55' % i)
        padr.append('v_add_u32 v%d, s3, v25' % PFULL[i]); padr.append('v_add_u32 v%d, s3, v26' % PHALF[i])
        if i < 2:
            padr.append(('s_xor_b32 s3, s52, %d\ns_mul_i32 s3, s3, 9216\ns_add_u32 s3, s3, s55\n' % i if o['alt'] == 3 else '') + 's_add_u32 s3, s3, s54\nv_add_u32 v%d, s3, v25' % POF[i]); padr.append('v_add_u32 v%d, s3, v26' % POH[i])
    a('s_mul_i32 s55, s18, 4608\ns_and_b32 s54, s22, 1\ns_mul_i32 s54, s54, 4608\ns_sub_u32 s54, s54, s55\ns_add_u32 s55, s55, %d\ns_lshr_b32 s53, s16, 1\ns_xor_b32 s53, s53, s22\ns_xor_b32 s53, s53, 3' % L_P)
    if o['alt'] == 3: a('s_and_b32 s52, s22, 2\ns_xor_b32 s52, s52, s53')
    def preads(dst, fa, ha, qt, tag):
        off = 1536 * qt
        return [ds('ds_read_b128 %s, v%d offset:%d' % (v(dst[0], 4), fa[0], off), tag),
                ds('ds_read_b64 %s, v%d offset:%d' % (v(dst[1], 2), ha[0], off + 1024), tag),
                ds('ds_read_b64 %s, v%d offset:%d' % (v(dst[1] + 2, 2), ha[1], off + 1024), tag),
                ds('ds_read_b128 %s, v%d offset:%d' % (v(dst[2], 4), fa[1], off), tag)]
    PB = [[80 + 4 * k for k in range(6)], [108 + 4 * k for k in range(6)], [80 + 4 * k for k in range(6)]]
    def reads_F(qt): return preads(PB[qt][:3], PFULL[:2], PHALF[:2], qt, 'p%da' % qt) + preads(PB[qt][3:], PFULL[2:], PHALF[2:], qt, 'p%db' % qt)
    if o['vdry']: a('L_xa_BP:')
    run(reads_W(0, 0))
    for p in range(8):
        i = PC(p) >> 1; first = PC(p) & 1 == 0
        if p < 2: ex0, ex1 = (padr[:5], padr[5:10]) if p == 0 else (padr[10:], [] if o['vf'] == 1 else ['v_add_u32 v%d, %d, v%d' % (250 + t, L_P, WA + t) for t in range(4)])
        elif o['alt']:
            cv = cvt_W({3: 0, 4: 1, 7: 2}[p]) if p in (3, 4, 7) else []
            k_ = 12 if p != 4 else 10
            ex0, ex1 = cv[:k_], cv[k_:]
        else:
            cv = cvt_W(i - 1)
            ex0, ex1 = (cv[:6], cv[6:12]) if p % 2 == 0 else (cv[12:18], cv[18:])
        if 'E' in o['hack'] and p >= 6:
            st_ = lambda h: 'buffer_store_dwordx4 v[244:247], v25, s[%d:%d], s%d offen sc1\ns_add_u32 s%d, s%d, %d' % (SWS, SWS + 3, 56 + h, 56 + h, 56 + h, o['MQ'])
            if p == 6: ex1 = ex1 + [st_(0)]
            else: ex0 = ex0 + [st_(1)]; ex1 = ex1 + [st_(0)]
        step(mfma(HACC[i], 0, first, True), reads_W(p, 1), extra=ex0, xstart=(4 if p % 2 == 0 else 0) if not o['alt'] else 1, waits=wW(p, 0))
        step(mfma(HACC[i], 1, False, True), reads_W(p + 1, 0) if p < 7 else reads_F(0), extra=ex1, xstart=1, waits=wW(p, 1), pre=xbc('w%d' % p))
        stC('s%d' % p if p < 7 else 'VW end', 2 if p < 7 else 1)
    RACC = [[244, 248, 252, 104], [32, 36, 40, 44], [244, 248, 252, 104]]
    PK = [76, 12]; OP = [[108, 112, 116], [120, 124, 48], [52, 56, 60]]
    def fm(qt, t, k): return MF % (v(RACC[qt][t], 4), v([C, B][k // 3] + 12 * t + 4 * (k % 3), 4), v(PB[qt][k], 4), v(RACC[qt][t], 4) if k else '0')
    def store_F(qt, h):
        if o['own3'] == 2:
            pk = [76, 32, 44][qt] if h == 0 else PK[1]
            return cvt(pk, RACC[qt][2 * h]) + cvt(pk + 2, RACC[qt][2 * h + 1]) + ['buffer_store_dwordx4 %s, v%d, s[%d:%d], s%d offen sc1' % (v(pk, 4), 25 if h else 1, SWS, SWS + 3, 34 + 2 * qt + h)]
        if o['own3']:
            return cvt(PK[h], RACC[qt][2 * h]) + cvt(PK[h] + 2, RACC[qt][2 * h + 1]) + \
                ['buffer_store_dwordx4 %s, v%d, s[%d:%d], s%d offen sc1' % (v(PK[h], 4), 25 if h else 1, SWS, SWS + 3, 34 + 2 * qt + h)] + \
                (['s_mov_b64 exec, s[30:31]\nds_write_b128 v27, %s offset:%d\ns_mov_b64 exec, -1' % (v(PK[h], 4), 1024 * qt)] if h == 0 else [])
        l_ = 'L_own%d%d' % (qt, h)
        ownw = '\ns_cmp_lg_u32 s48, %d\ns_cbranch_scc1 %s\nds_write_b128 v27, %s offset:%d\n%s:' % (h, l_, v(PK[h], 4), 1024 * qt, l_) if o['own'] else ''
        if o['own'] and o['ownx']: ownw = '\ns_mov_b64 exec, s[%d:%d]\nds_write_b128 v27, %s offset:%d\ns_mov_b64 exec, -1' % (30 + 2 * h, 31 + 2 * h, v(PK[h], 4), 1024 * qt)
        return cvt(PK[h], RACC[qt][2 * h]) + cvt(PK[h] + 2, RACC[qt][2 * h + 1]) + \
               ['buffer_store_dwordx4 %s, v25, s[%d:%d], s%d offen sc1\ns_add_u32 s%d, s%d, %d' % (v(PK[h], 4), SWS, SWS + 3, 56 + h, 56 + h, 56 + h, o['MQ']) + ownw]
    def sflag(off): return 's_atomic_add s40, s[14:15], s42\ns_atomic_add s40, s[14:15], s43'
    if 'N' in o['hack']:
        sG = store_F
        def store_F(qt, h): return sG(qt, h)[:4]
    if 'E' in o['hack']:
        sF = store_F
        def store_F(qt, h):
            r_ = sF(qt, h)
            if (qt, h) == (0, 1): return r_[:4] + ['s_waitcnt vmcnt(2)\n' + flag(28, 0)]
            if (qt, h) == (1, 1): return r_[:4] + ['s_waitcnt vmcnt(1)\n' + flag(28, 128)]
            return r_ if qt == 2 else r_[:4]
    def flag(reg, off): return FOP + ' v29, v%d, s[%d:%d], 0 offen offset:%d sc1' % (reg, SWS, SWS + 3, off)
    m = [fm(0, t, k) for k in range(6) for t in range(4)]
    c3 = cvt_W(3)
    c3 = [c3[6 * t + j] for t in range(4) for j in (4, 5)] + [c3[6 * t + j] for t in range(4) for j in range(4)]
    step(m[:19], reads_F(1), extra=c3, xstart=3, waits={0: ['p0a'], 11: ['p0b']})
    step(m[19:], [], extra=[st_(1)] if 'E' in o['hack'] else [])
    if o['vdry']: a('s_cbranch_execz L_vwret')
    stC('R0', 2)
    m = [fm(1, t, k) for t in range(4) for k in range(6)]
    step(m[:17], reads_F(2), extra=store_F(0, 0) + store_F(0, 1), xstart=3, waits={0: ['p1a'], 3: ['p1b']})
    step(m[17:], [], extra=store_F(1, 0))
    stC('R1', 2)
    xo = o['xo']
    m = [fm(2, t, k) for t in range(4) for k in range(6)]
    step(m[:xo], [], extra=store_F(1, 1), xstart=4, waits={0: ['p2a'], 3: ['p2b']})
    seq = rdO(0) + rdO(1); k1 = min(14, 24 - xo)
    def ownw(qts): return 's_mov_b64 exec, s[30:31]\n' + '\n'.join('ds_write_b128 v27, %s offset:%d' % (v([76, 32, 44][q_], 4), 1024 * q_) for q_ in qts) + '\ns_mov_b64 exec, -1'
    step(m[xo:], seq[:k1], extra=store_F(2, 0) + ([ownw([1])] if o['own3'] == 2 else []), xstart=max(0, 18 - xo), pre=xb('O') + (['s_waitcnt vmcnt(2)\n' + flag(28, 0)] if o['f0at'] == 'R2' else []))
    stC('R2', 2)
    op = [x_ for qt in range(3) for x_ in preads(OP[qt], POF, POH, qt, 'po')]
    f0 = 's_waitcnt vmcnt(3)\n' + flag(28, 0)
    f1 = 's_waitcnt vmcnt(3)\n' + flag(28, 128)
    step(mfma_O[:12], seq[k1:] + rdO(2) + rdO(3), extra=store_F(2, 1) + ([flag(28, 256)] if 'c' in o['hack'] else []), xstart=4, waits={0: ['os0'], 6: ['os1']}, pre=[f0] if o['ef'] >= 1 and 'E' not in o['hack'] and o['f0at'] == 'O' else [])
    step(mfma_O[12:], op, waits={0: ['os2'], 6: ['os3']}, extra=[f1] if o['ef'] >= 2 and 'E' not in o['hack'] else [], xstart=o['e0'])
    stC('O', 2)
    def fo(k, first): return [MF % (v(SP + 4 * qt, 4), v(VWO + 4 * k, 4), v(OP[qt][k], 4), '0' if first else v(SP + 4 * qt, 4)) for qt in range(3)]
    run(cvt_O[:6])
    step(fo(0, True), [], extra=cvt_O[6:], waits={0: ['po']})
    run(fo(2, False) + fo(1, False))
    if o['ef'] == 0: a('s_waitcnt vmcnt(4)'); a(flag(28, 0))
    if o['ef'] < 2: a('s_waitcnt vmcnt(3)'); a(flag(28, 128))
    if o['e2']: a('s_waitcnt vmcnt(1)'); a(flag(28, 256))
    if 'r' in o['hack']: a('s_mov_b64 exec, 0xfc'); a(flag(30, 256)); a('s_mov_b64 exec, -1\ns_cmp_lg_u32 s21, 3\ns_cbranch_scc1 L_hr\ns_sleep 60\nL_hr:')
    for qt in range(3):
        run(cvt(VWO + 2 * qt, SP + 4 * qt) + ['buffer_store_dwordx2 %s, v%d, s[%d:%d], s58 offen sc1\ns_add_u32 s58, s58, %d' % (v(VWO + 2 * qt, 2), 3 if o['o64'] else 26, SWS, SWS + 3, o['OT'] * (2 if o['o64'] else 1))])
    stC('final end')
    if o['sent']:
        assert o['rep'] == 1 and o['atom']
        a('s_mov_b64 exec, 0xfc'); a(flag(30, 256 + (8 if 'r' in o['hack'] else 0))); a('s_mov_b64 exec, -1')
    if o['own3'] == 2:
        assert o['xe'] in ('E', 'G', 'H')
        a(ownw([0, 2]))
    if o['own'] and not (o['own3'] == 2 and o['xe'] == 'H'): a(W0)
    if o['xe'] == 'E': a('s_barrier')
    if not o['e2'] and 'c' not in o['hack']: a('s_waitcnt vmcnt(%d)' % ((5 if o['ef'] == 0 else 4) + o['sent'] - ('E' in o['hack']))); a(sflag(256) if o['sat'] & 1 else flag(28, 256))
    if o['xe'] == 'H': a((W0 + '\n' if o['own3'] == 2 else '') + 's_barrier')
    if 'b' not in o['hack']: a('s_waitcnt vmcnt(%d)' % (o['sent'] + (0 if o['e2'] or 'c' in o['hack'] or o['sat'] & 1 else 1)))
    a('s_mov_b64 exec, %s' % ('4' if o['ack1'] and o['sent'] and o['o64'] else '0xfcfc')); a(flag(30, 256 + 64 * o['sent'])); a('s_mov_b64 exec, -1')
    if o['xe'] == 'G': a('s_barrier')
    stC('flags sent')
    a(';WARM_OFF')
    stC.flush(0)
    a('s_endpgm')
    a('; ==== helpers')
    if o['padH']: a('.fill %d, 4, 0xbf800000' % o['padH'])
    a('L_help:')
    a('s_sub_u32 s18, s20, 5\ns_sub_u32 s52, s20, 1')
    a('v_lshlrev_b32 v25, 4, v0\nv_lshlrev_b32 v26, 3, v0')
    a('v_mov_b32 v12, 0\nv_mov_b32 v13, 0\nv_mov_b32 v14, 0\nv_mov_b32 v15, 0\nv_mov_b32 v29, 1\nv_mov_b32 v28, 0x7ff00000\nv_mov_b32 v30, v28\nv_mov_b32 v3, v28')
    a(W0)
    srd(SWS, 14, 'ws')
    if o['sent'] and o['clr'] == 'start': clears(False, 40, 44)
    def dry_run(name):
        a('s_mov_b64 exec, 0\ns_branch L_dry_%s\nL_dryret_%s:\ns_mov_b64 exec, -1' % (name, name))
    def warm_run(at):
        if o['dry'] and at == o['dryat'][0]: dry_run('mp')
        if o['dry'] and at == o['dryat'][1]: dry_run('op')
        if o['warm']:
            for c_, x_ in enumerate(o['wat']):
                if x_ == at: a('s_mov_b64 exec, 0\ns_branch L_wchain%d\nL_wret%d:\ns_mov_b64 exec, -1' % (c_, c_))
    if o['vdry']:
        a('s_cmp_lg_u32 s20, 6\ns_cbranch_scc1 L_nl\ns_cmp_ge_u32 s2, 32\ns_cbranch_scc1 L_nl\ns_lshl_b32 s3, s2, 12')
        for j in range(4): a('buffer_store_dwordx4 v[12:15], v25, s[%d:%d], s3 offen offset:%d sc1' % (SWS, SWS + 3, 1024 * j))
        a('L_nl:\ns_mov_b64 exec, 0\ns_cmp_eq_u32 s20, 5\ns_cbranch_scc1 L_xa_BP\ns_cmp_eq_u32 s20, 6\ns_cbranch_scc1 L_xa_%s\ns_branch L_xa_%s' % tuple(o['vseg']))
        a('L_vwret:\ns_mov_b64 exec, -1\ns_waitcnt lgkmcnt(0)\ns_nop 7')
        a('s_cmp_eq_u32 s20, 7\ns_cbranch_scc1 L_h2\ns_cmp_eq_u32 s20, 5\ns_cbranch_scc1 L_h0\ns_cmp_ge_u32 s2, 32\ns_cbranch_scc1 L_h0')
        if o['hs2']: a('s_waitcnt vmcnt(0)\ns_mov_b64 exec, 1\nglobal_atomic_add v12, v29, s[12:13] sc1\ns_mov_b64 exec, -1')
        else:
            a('s_lshl_b32 s3, s2, 2\nv_mov_b32 v16, s3\ns_waitcnt vmcnt(0)')
            a('s_mov_b64 exec, 1\nglobal_store_dword v16, v29, s[12:13] sc1\ns_mov_b64 exec, -1')
    else:
        a('s_cmp_eq_u32 s20, 7\ns_cbranch_scc1 L_h2')
        a('s_cmp_eq_u32 s20, 5\ns_cbranch_scc1 L_h0')
        a('s_cmp_ge_u32 s2, 32\ns_cbranch_scc1 L_h0')
        a('s_lshl_b32 s3, s2, 12')
        assert G_FL == 0
        for j in range(4): a('buffer_store_dwordx4 v[12:15], v25, s[%d:%d], s3 offen offset:%d sc1' % (SWS, SWS + 3, 1024 * j))
        if o['hs2']: a('s_waitcnt vmcnt(0)\ns_mov_b64 exec, 1\nglobal_atomic_add v12, v29, s[12:13] sc1\ns_mov_b64 exec, -1')
        else:
            a('s_lshl_b32 s3, s2, 2\nv_mov_b32 v16, s3\ns_waitcnt vmcnt(0)')
            a('s_mov_b64 exec, 1\nglobal_store_dword v16, v29, s[12:13] sc1\ns_mov_b64 exec, -1')
    a('L_h0:')
    unit_setup()
    for c in range(9 + o['b8a']):
        a('s_barrier')
        if c == 4: run(k_reads())
    a('s_branch L_unit')
    a('L_h2:')
    if not o['cpfL']: code_prefetch()
    def odd_prefetch():
        a(kvbase('s3') + '\ns_lshr_b32 s17, s2, 7\ns_lshl_b32 s17, s17, %d\ns_add_u32 s3, s3, s17\ns_lshl_b32 s3, s3, 4\ns_bfe_u32 s17, s2, 0x40003\ns_add_u32 s3, s3, s17\ns_mul_i32 s3, s3, %d\ns_add_u32 s3, s3, 1024' % (KL, 16 * 1152))
        a('v_mul_u32_u24 v7, 1152, v1\nv_add_u32 v7, s3, v7\ns_mov_b64 exec, 0xffff\nglobal_load_dword v37, v7, s[8:9]\ns_mov_b64 exec, -1')
    def tlb_touch():
        a('s_lshl_b32 s3, s2, 7\nv_lshlrev_b32 v7, 21, v0\nv_add_u32 v7, s3, v7\nv_add_u32 v8, 0x1f0000, v7')
        a('s_mov_b64 exec, 0x7f\nglobal_load_dword v32, v8, s[14:15]')
        if o['tlb'] in (1, 3):
            a('s_mov_b64 exec, 7\nglobal_load_dword v33, v7, s[8:9]')
            a('s_mov_b64 exec, 3\nglobal_load_dword v34, v7, s[4:5]\nglobal_load_dword v35, v7, s[6:7]')
        a('s_mov_b64 exec, 1\nglobal_load_dword v36, v7, s[10:11]\ns_mov_b64 exec, -1')
    if o['tlb'] in (1, 2): tlb_touch()
    hs = 's_load_dwordx16 s[84:99], s[12:13], 0%s\ns_load_dwordx16 s[28:43], s[12:13], 64%s'
    warm_run(-1)
    for c in range(10 + o['b8a'] + o['bs']):
        a('s_barrier')
        warm_run(c)
        if c == o['hsbar']: a('s_load_dword s84, s[12:13], 0' if o['hs2'] else hs % ('', ''))
        if c == o['oddpf']: odd_prefetch()
        if c == o['cpf2']: code_prefetch('L_pc2')
        if c == 0 and o['tlb'] == 3: tlb_touch()
        if c == 8 and o['tlb'] == 4: tlb_touch()
    if o['hs2']:
        a('s_waitcnt lgkmcnt(0)\ns_cmp_eq_u32 s84, 32\ns_cbranch_scc1 L_hsok\ns_mov_b32 s54, %d\nv_mov_b32 v12, 0' % SPIN)
        if 'C' in o['hack']: a('v_mov_b32 v20, 160\ns_mov_b64 exec, 1\nglobal_atomic_add v20, v29, s[12:13] sc1\ns_mov_b64 exec, -1')
        a('L_hs:\nglobal_load_dword v13, v12, s[12:13] sc1\ns_sub_u32 s54, s54, 1\ns_cbranch_scc1 L_hsok\ns_waitcnt vmcnt(0)\nv_cmp_ne_u32 vcc, 32, v13\ns_cbranch_vccnz L_hs\nL_hsok:')
    else:
        a('s_mov_b32 s54, %d\nL_hs:\ns_waitcnt lgkmcnt(0)' % SPIN)
        and16(84); and16(28); a('s_and_b32 s84, s84, s28')
        a('s_cbranch_scc1 L_hsok\ns_sub_u32 s54, s54, 1\ns_cbranch_scc1 L_hsok')
        if 'C' in o['hack']: a('v_mov_b32 v20, 160\ns_mov_b64 exec, 1\nglobal_atomic_add v20, v29, s[12:13] sc1\ns_mov_b64 exec, -1')
        a(hs % (' glc', ' glc')); a('s_branch L_hs\nL_hsok:')
    a('s_barrier')
    if o['oddpf'] == 11: odd_prefetch()
    if o['cpf2'] == 11: code_prefetch('L_pc2')
    a('L_help2:')
    run(xb('w0'))
    a('s_mul_i32 s17, s18, 3072')
    srd(SOUT, 10, 'out')
    a('s_lshl_b32 s3, s2, 9\ns_lshl_b32 s53, s18, 7\ns_add_u32 s62, s3, s53\ns_add_u32 s66, s14, s62\ns_addc_u32 s67, s15, 0')
    a('s_and_b32 s3, s2, 0xe7\ns_lshl_b32 s3, s3, 9\ns_add_u32 s53, s53, s3\n' + ('' if o['atom'] else 's_lshl_b32 s3, s22, 2\ns_add_u32 s53, s53, s3\n') + 'v_lshlrev_b32 v21, 12, v0')
    a('s_mul_i32 s55, s2, %d\ns_mul_i32 s56, s18, %d\ns_add_u32 s55, s55, s56\ns_add_u32 s55, s55, %d\ns_add_u32 s56, s55, 4096' % (o['MO'], o['MQ'], G_PM))
    a('s_lshl_b32 s59, s23, 1\ns_lshr_b32 s3, s21, 2\ns_add_u32 s59, s59, s3\ns_mul_i32 s59, s59, 3\ns_add_u32 s59, s59, s18\ns_mul_i32 s59, s59, %d' % (16 * 1152))
    a('s_lshl_b32 s3, s22, 8\ns_add_u32 s59, s59, s3\ns_and_b32 s3, s21, 3\ns_lshl_b32 s3, s3, 6\ns_add_u32 s59, s59, s3')
    def pfetch(d):
        a('s_add_u32 m0, s17, %d\ns_xor_b32 s58, s2, %d\ns_mul_i32 s58, s58, 9216\ns_add_u32 s58, s58, s17\ns_add_u32 s58, s58, %d' % (L_P + 9216 * (3 - d), d << 3, G_P))
        for j in range(3):
            if 'e' not in o['hack'] and 'x' not in o['hack']: a('buffer_load_dwordx4 v25, s[%d:%d], s58 offen offset:%d sc1 lds' % (SWS, SWS + 3, 1024 * j))
    xs = [x_ for x_ in XN[:-1] if x_[0] == 'w' and x_ != 'w0']
    k = 0
    while True:
        nm = xs[k]; k += 1
        run(xb(nm))
        if nm == o['ack']:
            if o['sat'] & 2:
                a('s_mov_b32 s40, 1')
                for d in (1, 2, 3): a('s_xor_b32 s3, s62, %d\ns_atomic_add s40, s[14:15], s3' % (d << 12))
            else:
                a('s_mov_b64 exec, 15' + ('\ns_bitset0_b64 exec, s22' if o['noself'] else '') + '\n' + FOP + ' v29, v21, s[%d:%d], s53 offen sc1\ns_mov_b64 exec, -1' % (SWS, SWS + 3))
            stH('P flag sent')
        if o['ownp'] and not o['pds'] and nm == o['ownat']: pfetch(0)
        if o['sent'] and nm == o['clr']: clears()
        if nm == o['poll0']: break
    assert xs.index(o['ack']) < k and (o['vf'] == 1 or ALLN.index(xs[k]) >= ALLN.index('w5' if o['vf'] else 'w4')) and k < len(xs) - 1
    a('s_mov_b32 s54, %d\ns_mov_b32 s52, %d' % (SPIN, len(xs) - 1 - k))
    a('L_pp:\n' + ('s_load_dword s84' if o['atom'] else 's_load_dwordx4 s[84:87]') + ', s[66:67], 0 glc')
    a('s_cmp_eq_u32 s52, 0\ns_cbranch_scc1 L_pp1\ns_barrier\ns_sub_u32 s52, s52, 1\nL_pp1:')
    a('s_sub_u32 s54, s54, 1\ns_cbranch_scc1 L_ppok\ns_waitcnt lgkmcnt(0)')
    a(('' if o['atom'] else 's_add_u32 s84, s84, s85\ns_add_u32 s86, s86, s87\ns_add_u32 s84, s84, s86\n') + 's_cmp_%s_u32 s84, %d\ns_cbranch_scc0 L_pp\nL_ppok:' % ('le' if 'a' in o['hack'] else 'eq', 4 - o['noself']))
    stH('P flags ok')
    if 'S' in o['hack']:
        a('s_mul_i32 s19, s18, %d\nL_sg:\ns_cmp_eq_u32 s19, 0\ns_cbranch_scc1 L_sgd\ns_cmp_eq_u32 s52, 0\ns_cbranch_scc1 L_sgd\ns_barrier\ns_sub_u32 s52, s52, 1\ns_sub_u32 s19, s19, 1\ns_branch L_sg\nL_sgd:' % o.get('sk', 1))
    for d in range(o['ownp'], 4): pfetch(d)
    if o['sent'] and o['clr'] == 'p': clears()
    a('L_pb:\ns_cmp_eq_u32 s52, 0\ns_cbranch_scc1 L_pbd\ns_barrier\ns_sub_u32 s52, s52, 1\ns_branch L_pb\nL_pbd:')
    if 'S' in o['hack']: a('s_cmp_lg_u32 s18, 0\ns_cbranch_scc1 L_now')
    a('s_waitcnt vmcnt(%d)' % (2 if o['sent'] and o['clr'] == 'p' else 0))
    if 'S' in o['hack']: a('L_now:')
    stH('P landed')
    a('s_barrier')
    if o['sent'] and o['clr'] == 'w7' and 'Z' not in o['hack']: clears()
    a('s_waitcnt vmcnt(0)\ns_barrier')
    if 'f' in o['hack']: a('s_endpgm')
    a('s_mov_b32 s54, %d' % SPIN)
    a('s_lshl_b32 s3, s18, 10\ns_add_u32 s3, s3, %d\nv_add_u32 v27, s3, v25' % L_F)
    reduce('mp', 8, 4, MOFF, 25, 's59', stH)
    if stamps:
        a('s_waitcnt vmcnt(0)'); stH('end'); stH.flush(7)
    a('L_end:\ns_endpgm\nL_codeend:')
    a(kernel_desc(KN, 256, 256, o.get('nsgpr', 102)))
    if o['warm']:
        def size(l):
            t = l.split(';')[0].strip()
            if not t or t.endswith(':') or t.startswith('.'): return 0
            return 8 if t.startswith(('v_mfma', 'ds_', 'buffer_', 'global_', 'v_cvt_pk', 'v_pk_', 'v_max3', 's_load')) else 4.6
        out = []; on = False; acc = 0; pads = []
        for l in a.lines:
            if l == ';WARM_ON': on = True; acc = 1e9; continue
            if l == ';WARM_OFF': on = False; continue
            if on and acc >= o['wstep'] and size(l) and not l.startswith(('ds_write', 's_mov_b64 exec', 'buffer_atomic', 's_cbranch', 's_cselect', 's_addc')):
                pads.append(len(out)); out.append(None); acc = 4
            out.append(l); acc += size(l)
        n = len(pads); NC = len(o['wat']); per = -(-n // NC)
        order = list(range(n - 1, -1, -1))
        for j, k in enumerate(order):
            last = (j + 1) % per == 0 or j + 1 == n
            out[pads[k]] = 'L_wp%d:\ns_cbranch_execz %s' % (k, 'L_wret%d' % (j // per) if last else 'L_wp%d' % order[j + 1])
        txt = '\n'.join(out)
        for c_ in range(NC): txt = txt.replace('L_wchain%d' % c_, 'L_wp%d' % order[c_ * per] if c_ * per < n else 'L_wret%d' % c_)
        a.lines = txt.split('\n')
    else: a.lines = [l for l in a.lines if not l.startswith(';WARM')]
    a.lines = hazard.pad(a.lines, False)
    return a.text()
if __name__ == '__main__':
    import json
    name = sys.argv[1] if len(sys.argv) > 1 else 'p8_v11'
    opt = json.loads(sys.argv[2]) if len(sys.argv) > 2 else None
    open(name + '.s', 'w').write(gen(0, opt))
    open(name + '_st.s', 'w').write(gen(1, opt))
    open(name + '_st2.s', 'w').write(gen(2, opt))
    open(name + '_st3.s', 'w').write(gen(3, opt))
    open(name + '_st4.s', 'w').write(gen(4, opt))
```

```python
import sys, math, struct
from asmlib import *
import hazard
from gen_f16 import Cnt, interleave, f2i, v

L_W = 0; L_X0 = 49152; XOFF = [0, 12288, 49152]; L_K = 73728; L_Q = 49152; L_P = 73728; L_F = 159744; L_V = 110592
G_FL = 0x0
G_P = 0x40000
G_PM = 0x400000
G_PO = 0xD00000
SX, SWQ, SK, SV, SWO, SWS, SOUT = 24, 28, 32, 36, 40, 44, 48
SPIN = 1 << 16
MF = 'v_mfma_f32_16x16x32_bf16 %s, %s, %s, %s'

HEADER = """; Kernarg layout (64 bytes, pointers only, base s[0:1]):
;
; Hand-offs: data is stored write-through (sc1); after the stores are acknowledged the producer bumps a counter of the consumer
;   (device-scope atomic); the consumer polls it and then loads with sc1.  Counters are zeroed inside the launch by workgroups 0..31,
;   which report through a counter in debug.  The last, small hand-off is signalled before the acknowledgement: its slots are first filled with
;   a NaN marker in this launch, and a consumer that still sees a NaN waits for the acknowledged counter and reads again.
;   Nothing depends on workgroup placement except speed; every poll loop is bounded.
;            | 110592 V (4x12K) | 159744 own partial chunks.  Tiles are XOR-swizzled on the global side of the DMA."""

def gen(stamps=0, opt=None):
    o = dict(order='qqqKqqqqqq', win=24, codepf=True, rot='g3', pk=True, lprio=0, afterB8=1, afterBQ=4, ack='w1', poll0='w3', cprio=0, prog=False, x4=True, xo=14, ef=2, xe='', sent=1, clr='w7', e2=0, nt={}, split=1, uprio=0, early_flag=True, outsc='sc1', oddsc=None, btr=0, opre=0, o64=1, ack1=1, vdry=0, sub='', hoist=1, pre=0, lead=12, mimic=0, hs2=1, guard=[60, 44], leadk=1, lead0=2, vseg=['w2', 'w5'], first_half=False, hsbar=8, poll='s', psleep=0, tlb=0, remap=0, oddpf=8, rot2=1, lateat=3, own=1, ownx=1, tramp=[], far=0, alt=3, klate=1, pds=1, own3=1, bs=0, vf=0, sat=0, dry=1, dryat=[-1, 0], cpf2=-9, qseq='', f0at='O', MQ=7168, MO=21504, OT=8192, kvmap=9, bm=0, cpfL=1, acc=1, warm=0, wstep=960, wat=[-1, 0, 1], padL=0, padC=0, padH=0, b8a=0, tm=1, q64=2, stlb=0, hack='', atom=1, rep=1, wsw=1, ownp=1, atune=0, oe=0, hsbar_=0, ownat='w3', e0=8, e1='end', m0o=1, rsl=6, qs=5, fine0=1, wqfirst=0, skip=['w0'], noself=1)
    if opt: o.update(opt)
    if stamps in (2, 3): o['pre'] = 0
    if o['klate']: o['order'] = 'q' * 9; o['q64'] = 3; o.setdefault('pre8', ['k0'] if 'plan' in o else ['k0', 'v0'])
    a = Asm()
    a(HEADER)
    a('; @launch grid=(256,1,1) block=(512,1,1) lds=163840')
    a(HEAD); a(kernel_begin(KN))
    def run(seq):
        for x in seq:
            if callable(x): x()
            else: a(x)
    class St:
        def __init__(s, base, n, r0): s.base = base; s.n = n; s.k = 0; s.r0 = r0
        def __call__(s, name='x', lvl=1):
            if ((stamps >= lvl and lvl < 2) or stamps == lvl) and (stamps != 5 or name in ('start', 'final end')):
                assert s.k < s.n, name
                a('; stamp %d %s' % (s.base + s.k, name))
                a('s_memrealtime s[%d:%d]' % (s.r0 + 2 * s.k, s.r0 + 1 + 2 * s.k)); s.k += 1
        def flush(s, wave):
            if stamps and s.k:
                l_ = a.label('L_nst')
                a('s_cmp_lg_u32 s20, %d\ns_cbranch_scc1 %s' % (wave, l_))
                a('s_waitcnt lgkmcnt(0)\nv_mov_b32 v31, 0\ns_lshl_b32 s3, s2, 9\ns_add_u32 s3, s3, %d' % (STAMP_OFF + 8 * s.base))
                for i in range(s.k):
                    a('v_mov_b32 v254, s%d\nv_mov_b32 v255, s%d' % (s.r0 + 2 * i, s.r0 + 1 + 2 * i))
                    a('buffer_store_dwordx2 v[254:255], v31, s[%d:%d], s3 offen offset:%d' % (SWS, SWS + 3, 8 * i))
                a(l_ + ':')
    stC = St(0, 21, 60); stL = St(24, 17, 68); stH = St(44, 6, 32)
    W0 = 's_waitcnt lgkmcnt(0)'
    def XS(c): return [0, 12288, 49152, 24576][(c + 2) % 4] if o['lead'] else XOFF[c % 3]
    KL = o['kvmap'] - 9; KJ = 1 << KL
    def kvbase(dst):
        src = 's21'
        if KL == 0: return 's_lshl_b32 %s, s21, 1' % dst
        if KL == 3: return 's_mov_b32 %s, s21' % dst
        return 's_and_b32 %s, s21, %d\ns_add_u32 %s, %s, s21' % (dst, 7 & ~(KJ - 1), dst, dst)
    def PC(p): return (p & 4) | ((p & 1) << 1) | ((p >> 1) & 1) if o['alt'] else p
    FOP = 'buffer_atomic_add' if o['atom'] else 'buffer_store_dword'
    MOFF = (4 if o['rep'] > 1 else 64) if o['atom'] else 32
    OOFF = 0
    assert o['rep'] in (1, 2) and (o['atom'] or o['rep'] == 1)
    stC('start')
    a('s_cmp_ge_u32 s2, 256\ns_cbranch_scc1 L_end')
    a('s_load_dwordx2 s[%d:%d], s[0:1], %d' % (SX, SX + 1, SLOT['x']))
    a('s_load_dwordx2 s[%d:%d], s[0:1], %d' % (SWQ, SWQ + 1, SLOT['wq']))
    a('s_load_dwordx4 s[4:7], s[0:1], %d' % SLOT['k'])
    a('s_load_dwordx8 s[8:15], s[0:1], %d' % SLOT['wo'])
    if o['remap'] == 1: a('s_lshr_b32 s3, s2, 2\ns_and_b32 s3, s3, 0x18\ns_xor_b32 s2, s2, s3')
    if o['remap'] == 2: a('s_lshr_b32 s3, s2, 3\ns_and_b32 s3, s3, 0x18\ns_lshl_b32 s21, s2, 2\ns_and_b32 s21, s21, 0xe0\ns_and_b32 s2, s2, 7\ns_or_b32 s2, s2, s3\ns_or_b32 s2, s2, s21')
    if o['remap'] == 3: a('s_xor_b32 s2, s2, 0x18')
    if o['remap'] == 4: a('s_bfe_u32 s3, s2, 0x10002\ns_and_b32 s21, s2, 3\ns_lshl1_add_u32 s3, s21, s3\ns_and_b32 s2, s2, 0xf8\ns_or_b32 s2, s2, s3')
    if o['remap'] == 5: a('s_xor_b32 s2, s2, 1')
    a('v_lshrrev_b32 v1, 6, v0\nv_and_b32 v0, 63, v0\nv_readfirstlane_b32 s20, v1')
    if o['wsw']: a('s_xor_b32 s20, s20, 4')
    a('s_and_b32 s21, s2, 7\ns_bfe_u32 s22, s2, 0x20003\ns_lshr_b32 s23, s2, 5')
    a('v_and_b32 v1, 15, v0\nv_lshrrev_b32 v2, 4, v0')
    def srd(r, src, n):
        if src is not None: a('s_mov_b32 s%d, s%d\ns_mov_b32 s%d, s%d' % (r, src, r + 1, src + 1))
        a('s_mov_b32 s%d, %d\ns_mov_b32 s%d, 0x20000' % (r + 2, SIZES[n], r + 3))
    H0 = 's_and_b32 s16, s22, 2\ns_add_u32 s16, s16, s22\ns_xor_b32 s16, s16, s23'
    if o['rot2'] == 1: H0 = 's_and_b32 s16, s22, 2\ns_xor_b32 s16, s16, s23\ns_and_b32 s16, s16, 3\ns_lshl_b32 s16, s16, 1'
    if o['rot2'] == 2: H0 = 's_and_b32 s16, s22, 2\ns_lshl_b32 s16, s16, 1\ns_xor_b32 s16, s16, s23'
    if o['rot2'] == 3: H0 = 's_and_b32 s16, s23, 3\ns_lshl_b32 s16, s16, 1\ns_and_b32 s3, s22, 2\ns_add_u32 s3, s3, s22\ns_xor_b32 s16, s16, s3'
    if o['rot2'] == 4: H0 = 's_lshr_b32 s16, s22, 1\ns_xor_b32 s16, s16, s23\ns_and_b32 s16, s16, 1\ns_lshl_b32 s16, s16, 2'
    if o['alt'] == 1: H0 = 's_xor_b32 s16, s22, s23\ns_and_b32 s3, s16, 2\ns_and_b32 s16, s16, 3\ns_add_u32 s16, s16, s3'
    if o['alt'] == 2: H0 = 's_and_b32 s16, s22, 2\ns_xor_b32 s16, s16, s23\ns_and_b32 s3, s16, 2\ns_and_b32 s16, s16, 3\ns_add_u32 s16, s16, s3'
    if o['alt'] == 3: H0 = 's_and_b32 s16, s22, 1\ns_xor_b32 s16, s16, s23\ns_and_b32 s16, s16, 3'
    if o['alt'] == 4: H0 = 's_and_b32 s16, s22, 1\ns_xor_b32 s16, s16, s23\ns_and_b32 s16, s16, 3\ns_and_b32 s3, s22, 2\ns_lshl1_add_u32 s16, s3, s16'
    for i_ in range(len(o['tramp'])): a('s_cmp_eq_u32 s20, %d\ns_cbranch_scc1 L_tr%d' % (i_, i_))
    a('s_cmp_lt_u32 s20, 4\ns_cbranch_scc1 L_comp')
    a('s_cmp_gt_u32 s20, 4\ns_cbranch_scc1 L_help')
    def gpoll(name, nw, off):
        sl = ('s_sleep %d\n' % o['psleep']) if o['psleep'] else ''
        if o['rep'] == 2:
            a(W0 + '\ns_mov_b64 s[84:85], 0\ns_load_dword s85, s[66:67], %d glc\ns_sleep %d' % (off + 64, o['rsl']))
            a('L_%s:' % name)
            for r_ in range(2):
                a('s_load_dword s%d, s[66:67], %d glc\ns_waitcnt lgkmcnt(1)\ns_max_u32 s30, s84, s85\ns_cmp_ge_u32 s30, %d\ns_cbranch_scc1 L_%sok' % (84 + r_, off + 64 * r_, nw, name))
            a('s_sub_u32 s54, s54, 1\ns_cbranch_scc0 L_%s\nL_%sok:' % (name, name))
        elif o['atom']:
            a('L_%s:\n%ss_load_dword s84, s[66:67], %d glc\ns_sub_u32 s54, s54, 1\ns_cbranch_scc1 L_%sok\ns_waitcnt lgkmcnt(0)' % (name, sl, off, name))
            a('s_cmp_lt_u32 s84, %d\ns_cbranch_scc1 L_%s\nL_%sok:' % (nw, name, name))
        elif o['poll'] == 'p':
            a(W0)
            for i in range(0, nw, 2): a('s_mov_b64 s[%d:%d], 0' % (84 + i, 85 + i))
            a('L_%s:\ns_load_dwordx%d s[84:%d], s[66:67], %d glc\n%ss_sub_u32 s54, s54, 1\ns_cbranch_scc1 L_%sok' % (name, nw, 83 + nw, off, sl, name))
            a('s_and_b64 s[30:31], s[84:85], s[86:87]')
            for i in range(4, nw, 2): a('s_and_b64 s[30:31], s[30:31], s[%d:%d]' % (84 + i, 85 + i))
            a('s_and_b32 s30, s30, s31\ns_cbranch_scc0 L_%s\nL_%sok:' % (name, name))
        elif o['poll'] == 's':
            a('L_%s:\n%ss_load_dwordx%d s[84:%d], s[66:67], %d glc\ns_sub_u32 s54, s54, 1\ns_cbranch_scc1 L_%sok\ns_waitcnt lgkmcnt(0)' % (name, sl, nw, 83 + nw, off, name))
            k = nw
            while k > 2:
                k //= 2
                for i in range(0, k, 2): a('s_and_b64 s[%d:%d], s[%d:%d], s[%d:%d]' % (84 + i, 85 + i, 84 + i, 85 + i, 84 + k + i, 85 + k + i))
            a('s_and_b32 s84, s84, s85\ns_cbranch_scc0 L_%s\nL_%sok:' % (name, name))
        else:
            a('v_and_b32 v19, %d, v0\nv_lshlrev_b32 v19, 2, v19' % (nw - 1))
            a('L_%s:\n%sbuffer_load_dword v18, v19, s[%d:%d], s62 offen offset:%d sc1\ns_sub_u32 s54, s54, 1\ns_cbranch_scc1 L_%sok\ns_waitcnt vmcnt(0)' % (name, sl, SWS, SWS + 3, off, name))
            a('v_cmp_ne_u32 vcc, 1, v18\ns_cbranch_vccnz L_%s\nL_%sok:' % (name, name))
    def code_prefetch(lab='L_pc'):
        if o['codepf']:
            a('s_getpc_b64 s[66:67]\n%s:\ns_sub_u32 s66, s66, %s-%s\ns_subb_u32 s67, s67, 0' % (lab, lab, KN))
            a('s_lshr_b32 s3, s2, 3\ns_lshl_b32 s3, s3, 7\nv_lshlrev_b32 v100, 12, v0\nv_add_u32 v100, s3, v100')
            a('v_mov_b32 v103, s67\nv_add_co_u32 v102, vcc, s66, v100\nv_addc_co_u32 v103, vcc, 0, v103, vcc')
            a('v_cmp_gt_u32 vcc, L_codeend-%s, v100\ns_and_saveexec_b64 s[64:65], vcc' % KN)
            a('global_load_dword v101, v[102:103], off')
            a('s_mov_b64 exec, s[64:65]')
    def clears(all12=False, va=4, vd=12):
        a('s_lshl_b32 s3, s23, 1\ns_and_b32 s58, s22, 1\ns_add_u32 s3, s3, s58\ns_mul_i32 s3, s3, 3\n' + ('' if all12 else 's_add_u32 s3, s3, s18\n') + 's_mul_i32 s58, s3, %d' % (4 * o['OT']))
        a('s_lshl_b32 s3, s21, 1\ns_lshr_b32 s59, s22, 1\ns_add_u32 s3, s3, s59\ns_lshl_b32 s3, s3, 9\ns_add_u32 s58, s58, s3\ns_add_u32 s58, s58, %d' % G_PO) if all12 else \
        a('s_lshl_b32 s3, s21, 1\ns_lshr_b32 s57, s22, 1\ns_add_u32 s3, s3, s57\ns_lshl_b32 s3, s3, 9\ns_add_u32 s58, s58, s3\ns_add_u32 s58, s58, %d' % G_PO)
        a('v_and_b32 v%d, 31, v0\nv_lshrrev_b32 v%d, 5, v0\nv_mul_u32_u24 v%d, %d, v%d\nv_lshl_add_u32 v%d, v%d, 4, v%d' % (va, va + 1, va + 1, o['OT'], va + 1, va, va, va + 1))
        for i in range(4): a('v_mov_b32 v%d, -1' % (vd + i))
        for i in range(6 if all12 else 2):
            if i: a('s_add_u32 s58, s58, %d' % (2 * o['OT']))
            a('buffer_store_dwordx4 v[%d:%d], v%d, s[%d:%d], s58 offen sc1' % (vd, vd + 3, va, SWS, SWS + 3))
            if all12: vm.issue('clr')
    a('; ==== loader: pulls its share of this code into L2, streams 9 chunks of x | wq (rotated start), then K, V parts and wo pieces')
    vm = Cnt(a, 'vmcnt', 63)
    XV, WV, OV, KV, DV, VV = 8, 12, 16, 20, 24, 28
    if o['lprio']: a('s_setprio %d' % o['lprio'])
    if o['cpfL']: code_prefetch()
    srd(SX, None, 'x'); srd(SWQ, None, 'wq')
    a('v_lshrrev_b32 v3, 3, v0\nv_and_b32 v4, 7, v0')
    def quad(base, step):
        a('v_xor_b32 v7, 64, v%d\nv_add_u32 v%d, %d, v7' % (base, base + 1, step))
        a('v_add_u32 v%d, %d, v%d\nv_add_u32 v%d, %d, v%d' % (base + 2, 2 * step, base, base + 3, 2 * step, base + 1))
    a('v_mul_u32_u24 v5, 1152, v3\nv_xor_b32 v32, v4, v2\nv_lshl_add_u32 v%d, v32, 4, v5' % XV)
    quad(XV, 8 * 1152 - 1024)
    a('v_lshlrev_b32 v6, 1, v2\nv_xor_b32 v6, v6, v1\nv_lshlrev_b32 v6, 4, v6')
    a('v_lshl_add_u32 v%d, v2, 13, v6' % WV)
    a('v_add_u32 v%d, %d, v%d' % (WV + 1, 4 * 8192 - 1024, WV))
    a('v_xor_b32 v7, 128, v%d\nv_add_u32 v%d, %d, v7\nv_add_u32 v%d, %d, v7' % (WV, WV + 2, 2 * (4 * 8192 - 1024), WV + 3, 3 * (4 * 8192 - 1024)))
    if o['rot'] == 'g3':
        a('s_add_u32 s17, s22, s23\ns_mul_i32 s3, s17, 43\ns_lshr_b32 s3, s3, 7\ns_mul_i32 s3, s3, 3\ns_sub_u32 s17, s17, s3\ns_mul_i32 s17, s17, 3')
    elif o['rot'] in ('g3x', 'g3y', 'g3b'):
        a('s_add_u32 s17, s22, s23\ns_mul_i32 s3, s17, 43\ns_lshr_b32 s3, s3, 7\ns_mul_i32 s3, s3, 3\ns_sub_u32 s17, s17, s3\ns_mul_i32 s17, s17, 3')
        if o['rot'] == 'g3x': a('s_add_u32 s17, s17, s21')
        else: a('s_lshr_b32 s3, s21, %d\ns_add_u32 s17, s17, s3' % (2 if o['rot'] == 'g3y' else 1))
        a('s_cmp_ge_u32 s17, 9\ns_cselect_b32 s3, 9, 0\ns_sub_u32 s17, s17, s3')
    elif o['rot'] == 'g4':
        a('s_add_u32 s17, s22, s23\ns_and_b32 s17, s17, 3\ns_mul_i32 s17, s17, 9\ns_lshr_b32 s17, s17, 2')
    elif o['rot'] == 'g2':
        a('s_add_u32 s17, s22, s23\ns_and_b32 s17, s17, 1\ns_mul_i32 s17, s17, 5')
    elif o['rot'] == 'g9':
        a('s_lshl_b32 s17, s22, 1\ns_add_u32 s17, s17, s23\ns_cmp_ge_u32 s17, 9\ns_cselect_b32 s3, 9, 0\ns_sub_u32 s17, s17, s3')
    else: a('s_mov_b32 s17, 0')
    a('s_mul_i32 s52, s23, 110592')
    if 'm' in o['hack']: a('s_lshl_b32 s53, s21, 9\ns_and_b32 s3, s22, 2\ns_lshl_b32 s3, s3, 11\ns_add_u32 s53, s53, s3\ns_and_b32 s3, s22, 1\ns_lshl_b32 s3, s3, 8\ns_add_u32 s53, s53, s3')
    elif 'n' in o['hack']: a('s_lshl_b32 s53, s21, 8\ns_lshl_b32 s3, s22, 11\ns_add_u32 s53, s53, s3')
    elif 'p' in o['hack']: a('s_lshl_b32 s53, s21, 10\ns_xor_b32 s3, s22, 3\ns_lshl_b32 s3, s3, 8\ns_add_u32 s53, s53, s3')
    elif KL: a(kvbase('s53') + '\ns_lshl_b32 s53, s53, 9\ns_lshr_b32 s3, s22, 1\ns_lshl_b32 s3, s3, %d\ns_add_u32 s53, s53, s3\ns_and_b32 s3, s22, 1\ns_lshl_b32 s3, s3, 8\ns_add_u32 s53, s53, s3' % o['kvmap'])
    else: a('s_lshl_b32 s53, s21, 10\ns_lshl_b32 s3, s22, 8\ns_add_u32 s53, s53, s3')
    a('s_waitcnt lgkmcnt(0)')
    stL('L kernarg')
    if o['stlb'] >= 1:
        a('s_lshl_b32 s57, s17, 19\ns_add_u32 s57, s57, s53\ns_load_dword s58, s[%d:%d], s57' % (SWQ, SWQ + 1))
    if o['stlb'] >= 2:
        a('s_mov_b32 s57, 0x200000\ns_mov_b32 s59, 0x400000')
        for base in (SWQ, 8, 4, 6): a('s_load_dword s58, s[%d:%d], 0\ns_load_dword s58, s[%d:%d], s57' % (base, base + 1, base, base + 1))
        for base in (SWQ, 8): a('s_load_dword s58, s[%d:%d], s59' % (base, base + 1))
    ndma = [0]
    def group(vreg, n, srd_, lds, tag, adv=None, dyn=None, so='s57'):
        seq = [('s_add_u32 m0, %s, %d' % (dyn, lds) if dyn else 's_mov_b32 m0, %d' % lds) + ('\ns_add_u32 s57, s57, %s' % adv if adv else '')]
        for j in range(n):
            def f(j=j):
                ndma[0] += 1
                if ndma[0] - 1 in o['tramp']:
                    i_ = o['tramp'].index(ndma[0] - 1)
                    a('s_branch L_ov%d\nL_tr%d:\ns_branch L_comp\nL_ov%d:' % (i_, i_, i_))
                if len(vm.seq) >= o['guard'][0]:
                    a('s_waitcnt vmcnt(%d)' % o['guard'][1]); vm.seq = vm.seq[-o['guard'][1]:]
                a('buffer_load_dwordx4 v%d, s[%d:%d], %s offen offset:%d %s lds' % (vreg + j, srd_, srd_ + 3, so, 1024 * j, o['nt'].get({SX: 'x', SWQ: 'q', SK: 'k', SV: 'v', SWO: 'o'}[srd_] + tag[-1], o['nt'].get({SX: 'x', SWQ: 'q', SK: 'k', SV: 'v', SWO: 'o'}[srd_], '')))); vm.issue(tag)
            seq.append(f)
        return seq
    def g8(vreg, n, sb, lds, tag):
        seq = []
        for j in range(n):
            if j % 8 == 0: seq.append('s_mov_b32 m0, %d' % (lds + 1024 * j + 4096))
            def f(j=j):
                if len(vm.seq) >= o['guard'][0]:
                    a('s_waitcnt vmcnt(%d)' % o['guard'][1]); vm.seq = vm.seq[-o['guard'][1]:]
                a('global_load_lds_dwordx4 v%d, s[%d:%d] offset:%d' % (vreg + j, sb, sb + 1, 1024 * (j % 8) - 4096)); vm.issue(tag)
            seq.append(f)
        return seq
    subs = {}
    def call(name, groups, tag, setup):
        if name not in subs:
            t_ = ['L_sub_%s:' % name]
            for vreg, n, srd_, mb, mi, so, adv in groups:
                t_.append('s_add_u32 m0, %s, %d' % (mb, mi))
                if adv: t_.append('s_add_u32 %s, %s, %d' % (so, so, adv))
                for j in range(n): t_.append('buffer_load_dwordx4 v%d, s[%d:%d], %s offen offset:%d lds' % (vreg + j, srd_, srd_ + 3, so, 1024 * j))
            t_.append('s_setpc_b64 s[18:19]')
            subs[name] = '\n'.join(t_)
        n_ = sum(g_[1] for g_ in groups)
        def f():
            if len(vm.seq) + n_ > 62:
                a('s_waitcnt vmcnt(%d)' % (62 - n_)); vm.seq = vm.seq[-(62 - n_):]
            a('s_call_b64 s[18:19], L_sub_%s' % name)
            for _ in range(n_): vm.issue(tag)
        return [setup, f]
    def item_q(c):
        st = c % 3; tag = 'n%d' % c
        m0o = o['m0o'] and c >= o['lateat']
        sx = ['s_lshl_b32 s57, s17, 7\ns_add_u32 s57, s57, s52']
        for t in range(3): sx += group(40 + 4 * t if m0o and t else XV, 4, SX, L_X0 + XS(c) + 4096 * t, tag, 32 * 1152 if t and not m0o else None)
        sw = ['s_lshl_b32 s57, s17, 19\ns_add_u32 s57, s57, s53']
        for t in range(4): sw += group(52 + 4 * t if m0o and t else WV, 4, SWQ, L_W + 16384 * st + 4096 * t, tag + ('b' if c == 8 and t >= 2 and o['b8a'] else ''), 16 * 8192 if t and not m0o else None)
        seq = sw + sx if o['wqfirst'] else sx + sw
        if o['hoist'] >= 2 and m0o:
            seq = ['s_lshl_b32 s58, s17, 19\ns_add_u32 s58, s58, s53'] + sx
            for t in range(4): seq += group(52 + 4 * t if t else WV, 4, SWQ, L_W + 16384 * st + 4096 * t, tag, None, None, 's58')
        if o['pre'] == 1 and m0o:
            seq = []
            for t in range(3): seq += group(40 + 4 * t if t else XV, 4, SX, L_X0 + XS(c) + 4096 * t, tag, None, None, 's%d' % (72 + 2 * c))
            for t in range(4): seq += group(52 + 4 * t if t else WV, 4, SWQ, L_W + 16384 * st + 4096 * t, tag, None, None, 's%d' % (73 + 2 * c))
            return seq
        if o['pre'] == 2 and m0o:
            return g8(110, 12, 64 + 4 * c, L_X0 + XS(c), tag) + g8(122, 16, 66 + 4 * c, L_W + 16384 * st, tag)
        if 'q' in o['sub'] and m0o:
            seq = call('q', [(40 + 4 * t if t else XV, 4, SX, 's55', 4096 * t, 's57', 0) for t in range(3)] + [(52 + 4 * t if t else WV, 4, SWQ, 's56', 4096 * t, 's58', 0) for t in range(4)], tag,
                       's_lshl_b32 s57, s17, 7\ns_add_u32 s57, s57, s52\ns_lshl_b32 s58, s17, 19\ns_add_u32 s58, s58, s53\ns_mov_b32 s55, %d\ns_mov_b32 s56, %d' % (L_X0 + XS(c), L_W + 16384 * st))
        if o['qseq']:
            if c == 0: seq += ['s_mov_b32 s63, s17\ns_add_u32 s64, s17, 3\ns_cmp_eq_u32 s64, 9\ns_cselect_b32 s64, 0, s64\ns_add_u32 s65, s64, 3\ns_cmp_eq_u32 s65, 9\ns_cselect_b32 s65, 0, s65']
            if c < 8: seq += ['s_add_u32 s17, s%d, %s' % (63 + o['qseq'][:c + 1].count(o['qseq'][c + 1]), o['qseq'][c + 1])]
            assert o['qseq'][0] == '0' and sorted(o['qseq']) == sorted('012' * 3)
        else: seq += ['s_add_u32 s17, s17, 1\ns_cmp_eq_u32 s17, 9\ns_cselect_b32 s17, 0, s17']
        return seq
    def item_k():
        seq = ['s_lshr_b32 s3, s22, 1\n' + ('s_lshl_b32 s3, s3, %d\n' % KL if KL else '') + 's_add_u32 s57, s54, s3\ns_mul_i32 s57, s57, 12288']
        for t in range(6): seq += group(KV, 4, SK, L_K + 4096 * t, 'k0', None if t == 0 else (4096 if t != 3 else 16 * 12288 - 8192))
        return seq
    WSLOT = {'w0': 0, 'w1': 1, 'w2': 2, 'w3': 4.5, 'w4': 3, 'w5': 0, 'w6': 1, 'w7': 2, 'o0': 3, 'o1': 0}
    assert L_P == 4.5 * 16384
    SP2 = 3; BASE2 = L_P
    if o['vf']:
        WSLOT = {'w0': 9, 'w1': 0, 'w2': 1, 'w3': 2, 'w4': 3, 'w5': 0, 'w6': 1, 'w7': 2, 'o0': 3, 'o1': 0}
        SP2 = 0; BASE2 = L_V + 36864; assert BASE2 == 9 * 16384
        if o['vf'] == 2: WSLOT.update({'w4': 4.5, 'w5': 3, 'w6': 0, 'w7': 1, 'o0': 2, 'o1': 3})
    NEED = {'w3': 1, 'w4': 2, 'w5': 3, 'w6': 5, 'w7': 6}
    L_O1 = L_P
    STAGES = ['w0', 'w1', 'o0', 'o1', 'w2', 'w3', 'w4', 'w5', 'w6', 'w7']
    def item_v(vp):
        seq = ['s_lshr_b32 s3, s16, 2\ns_xor_b32 s3, s3, %d\n' % (vp >> 1) + ('s_lshl_b32 s3, s3, %d\n' % KL if KL else '') + 's_add_u32 s57, ' + ('s63' if 'd' in o['hack'] else 's54') + ', s3\ns_mul_i32 s57, s57, 12288\ns_xor_b32 s3, s16, %d\ns_and_b32 s3, s3, 1\ns_lshl_b32 s3, s3, 7\ns_add_u32 s57, s57, s3' % (vp & 1)]
        for b in range(2):
            seq += group(VV, 4, SV, L_V + 12288 * vp + 6144 * b, 'v%d' % vp, 16 * 12288 - 8192 if b else None)
            seq += group(VV, 2, SV, L_V + 12288 * vp + 6144 * b + 4096, 'v%d' % vp, 8192)
        if 'v' in o['sub']:
            seq = call('v', [(VV, 4, SV, 's55', 0, 's57', 0), (VV, 2, SV, 's55', 4096, 's57', 8192), (VV, 4, SV, 's55', 6144, 's57', 16 * 12288 - 8192), (VV, 2, SV, 's55', 10240, 's57', 8192)], 'v%d' % vp,
                       seq[0] + '\ns_mov_b32 s55, %d' % (L_V + 12288 * vp))
        return seq
    def item_w(p):
        lds = int(L_W + 16384 * WSLOT['w%d' % p])
        seq = ['s_xor_b32 s3, s16, %d\n' % PC(p) + ('s_and_b32 s57, s3, 4\ns_mul_i32 s57, s57, %d\ns_add_u32 s3, s3, s57\n' % (KJ - 1) if KL else '') + 's_mul_i32 s57, s3, %d\ns_add_u32 s57, s57, s60' % (64 * 1152)]
        for t in range(4): seq += group(68 + 4 * t if o['m0o'] and t else OV, 4, SWO, lds + 4096 * t, 'w%d' % p, 16 * 1152 if t and not o['m0o'] else None)
        if 'w' in o['sub']:
            assert o['m0o']
            seq = call('w', [(68 + 4 * t if t else OV, 4, SWO, 's55', 4096 * t, 's57', 0) for t in range(4)], 'w%d' % p, seq[0] + '\ns_mov_b32 s55, %d' % lds)
        return seq
    def item_o(e):
        lds = L_W + 16384 * WSLOT['o%d' % e]; seq = []
        for hf in range(2):
            seq += ['s_xor_b32 s3, %s, %d\n' % ('s59' if o['alt'] == 3 else 's16', 2 * e + hf) + ('s_and_b32 s57, s3, 4\ns_mul_i32 s57, s57, %d\ns_add_u32 s3, s3, s57\n' % (KJ - 1) if KL else '') + 's_mul_i32 s57, s3, %d\ns_add_u32 s57, s57, s62' % (64 * 1152)]
            for t in range(2): seq += group(DV, 4, SWO, lds + 8192 * hf + 4096 * t, 'o%d' % e, 32 * 1152 if t else None)
        return seq
    def item(nm):
        seq = {'v': item_v, 'w': item_w, 'o': item_o, 'k': lambda _: item_k()}[nm[0]](int(nm[1]))
        if nm[:2] in o.get('drop', []): return []
        assert not (nm[2:] and nm[0] in o['sub'])
        cut = {'v': 9, 'k': 16}.get(nm[0], 11)
        if nm[2:] == 'a': return seq[:cut] + ['s_mov_b32 s61, s57']
        if nm[2:] == 'b': return ['s_mov_b32 s57, s61'] + seq[cut:]
        return seq
    def late_setup():
        srd(SK, 4, 'k'); srd(SV, 6, 'v'); srd(SWO, 8, 'wo'); srd(SWS, 14, 'ws')
        if 'd' in o['hack']: srd(SV, SX, 'x'); srd(SWO, SX, 'x')
        if 'k' in o['hack']: srd(SK, SX, 'x')
        a('v_mul_u32_u24 v7, 1152, v2\nv_add_u32 v%d, v7, v6\nv_add_u32 v%d, %d, v%d' % (OV, OV + 1, 4 * 1152 - 1024, OV))
        a('v_xor_b32 v6, 128, v6\nv_add_u32 v7, v7, v6\nv_add_u32 v%d, %d, v7\nv_add_u32 v%d, %d, v7' % (OV + 2, 2 * (4 * 1152 - 1024), OV + 3, 3 * (4 * 1152 - 1024)))
        a('v_xor_b32 v6, v1, v2\nv_lshlrev_b32 v6, 4, v6\nv_lshl_add_u32 v%d, v2, 8, v6' % KV)
        for j in range(1, 4): a('v_xor_b32 v%d, %d, v%d' % (KV + j, 64 * j, KV))
        a('v_and_b32 v6, 1, v2\nv_lshlrev_b32 v6, 1, v6\nv_xor_b32 v6, v6, v4\nv_lshl_add_u32 v%d, v6, 4, v5' % DV)
        quad(DV, 8 * 1152 - 1024)
        a('v_lshlrev_b32 v6, 8, v3\nv_lshl_add_u32 v%d, v32, 4, v6' % VV)
        quad(VV, 8 * 256 - 1024)
        if o['m0o']:
            for base, src, n, st_ in ((40, XV, 3, 32 * 1152), (52, WV, 4, 16 * 8192), (68, OV, 4, 16 * 1152)):
                for t in range(1, n):
                    a('s_mov_b32 s3, %d' % (t * st_))
                    for j in range(4): a('v_add_u32 v%d, s3, v%d' % (base + 4 * t + j, src + j))
        if o['pre']:
            assert not o['qseq'] and o['lateat'] >= 3
            for c in range(o['lateat'], 9):
                if o['pre'] == 1: a('s_lshl_b32 s3, s17, 7\ns_add_u32 s%d, s3, s52\ns_lshl_b32 s3, s17, 19\ns_add_u32 s%d, s3, s53' % (72 + 2 * c, 73 + 2 * c))
                else:
                    a('s_lshl_b32 s3, s17, 7\ns_add_u32 s3, s3, s52\ns_add_u32 s%d, s%d, s3\ns_addc_u32 s%d, s%d, 0' % (64 + 4 * c, SX, 65 + 4 * c, SX + 1))
                    a('s_lshl_b32 s3, s17, 19\ns_add_u32 s3, s3, s53\ns_add_u32 s%d, s%d, s3\ns_addc_u32 s%d, s%d, 0' % (66 + 4 * c, SWQ, 67 + 4 * c, SWQ + 1))
                if c < 8: a('s_add_u32 s17, s17, 1\ns_cmp_eq_u32 s17, 9\ns_cselect_b32 s17, 0, s17')
        if o['pre'] == 2:
            for base, src, n, st_ in ((110, XV, 3, 32 * 1152), (122, WV, 4, 16 * 8192)):
                for t in range(n):
                    a('s_mov_b32 s3, %d' % (t * st_ + (4096 if t % 2 == 0 else 0)))
                    for j in range(4): a('v_add_u32 v%d, s3, v%d' % (base + 4 * t + j, src + j))
        a(H0)
        if o['alt'] == 3: a('s_and_b32 s59, s22, 2\ns_lshl1_add_u32 s59, s59, s16')
        a('s_lshl_b32 s54, s23, 5\n' + kvbase('s3') + '\ns_add_u32 s54, s54, s3')
        if 'd' in o['hack']: a('s_and_b32 s63, s23, 1\ns_lshl_b32 s63, s63, 5')
        a(('s_mov_b32 s60, 0 ; %d' if 'd' in o['hack'] else 's_mul_i32 s60, s3, %d') % (256 * 1152))
        a('s_add_u32 s62, s60, 1024\ns_lshl_b32 s3, s22, 8\ns_add_u32 s60, s60, s3')
    L0 = len(a.lines)
    nq = 0; nbar = 0; since = {}
    def bar():
        nonlocal nbar
        vm.wait('n%d' % nbar)
        if nbar in (1, 2, 3, 8): stL('L at B%d' % nbar, 2)
        if nbar < 4: stL('L at B%d' % nbar, 3)
        a('s_barrier'); nbar += 1
    kdone = 0
    if o['lead']:
        assert o['klate'] and not o['wqfirst'] and not o['sub']
        def split(seq, n):
            k = 0
            for i_, x_ in enumerate(seq):
                if callable(x_):
                    k += 1
                    if k == n: return seq[:i_ + 1], seq[i_ + 1:]
        run(item_q(0)); run(item_q(1))
        for c in range(2, 9):
            h_, r_ = split(item_q(c), o['lead']) if c >= o['lead0'] else ([], item_q(c))
            if 'q%d' % c in o.get('drop', []): h_, r_ = [], r_[-1:]
            run(h_); bar(); run(r_)
            if c + 1 == o['lateat']: late_setup()
        if o['leadk']: run(item('k0a')); kdone = 1
        bar()
    else:
        for t in o['order']:
            if t == 'q':
                while nbar < nq - 1 and nq >= 3: bar()
                seq = item_q(nq)
                if 'q%d' % nq in o.get('drop', []): seq = seq[-1:]
                if o['first_half'] and nq in (1, 2) and nbar == nq - 1:
                    run(seq[:16]); bar(); run(seq[16:])
                else: run(seq)
                sz = 28; nq += 1
                if nq <= 2: stL('L issued q%d' % (nq - 1), 3)
                if o['sent'] and o['clr'] == 'L%d' % nq: srd(SWS, 14, 'ws'); clears(True, 90, 92)
                if nq == o['lateat']: late_setup()
            elif t == 'K': run(item_k()); sz = 24
            elif t == 'V': run(item_v(0)); sz = 12
            elif t == 'W': run(item_v(1)); sz = 12
            for c in list(since): since[c] += sz
            if t == 'q': since[nq - 1] = 0
            while nbar < nq and since[nbar] >= o['win']: bar()
        while nbar < 8: bar()
    pre8 = o['pre8'] if 'pre8' in o else (['w0'] if 'V' in o['order'] else ['v0', 'w0'])
    assert all(it[:2] in (('k0', 'v0', 'v1', 'v2', 'w0', 'w1') if o['vf'] else ('k0', 'v0', 'v1', 'v2', 'v3', 'w0')) for it in pre8)
    seq = [x_ for it in pre8 for x_ in item('k0b' if kdone and it == 'k0' else it)]
    if o['b8a']:
        run(seq[:-10]); bar(); run(seq[-10:]); vm.wait('n8b'); a('s_barrier')
    else:
        run(seq); bar()
    XB = [('BQ', []), ('BP', ['v0', 'w0']), ('w0', ['v1', 'w1']), ('w1', ['w2']), ('w2', ['w3']), ('w3', ['v2', 'w4']),
          ('w4', ['v3', 'w5']), ('w5', ['w6']), ('w6', ['w7']), ('w7', []), ('O', ['o0', 'o1'])]
    if o['alt']:
        XB = [('BQ', []), ('BP', ['v0', 'w0']), ('w0', ['w1']), ('w1', ['v1', 'w2']), ('w2', ['w3']), ('w3', ['v2', 'w4']),
              ('w4', ['w5']), ('w5', ['v3', 'w6']), ('w6', ['w7']), ('w7', []), ('O', ['o0', 'o1'])]
    if o['klate']: XB[0] = ('BQ', ['k0'])
    if o['bs']: XB.insert(1, ('BS', []))
    for sk in o['skip']:
        i_ = [x_[0] for x_ in XB].index(sk)
        XB[i_ - 1] = (XB[i_ - 1][0], XB[i_ - 1][1] + XB[i_][1]); del XB[i_]
    XN = [x_[0] for x_ in XB]
    plan = o.get('plan') or {'B8': ['w0'], 'BQ': ['w1', 'v1', 'w2'], 'BP': ['w3', 'v2', 'w4'], 'w1': ['w5'], 'w2': ['v3', 'w6'], 'w3': ['w7'], 'w6': ['o0'], 'w7': ['o1']}
    if o['vf'] and not o.get('plan'): plan = {'B8': ['v0', 'w0'], 'BQ': ['w1', 'v1', 'w2', 'w3'], 'BP': ['v2', 'w4'], 'w1': ['v3'], 'w2': ['w5'], 'w3': ['w6'], 'w4': ['w7'], 'w6': ['o0'], 'w7': ['o1']}
    FREEAT = {'w0': 'B8', 'w1': 'B8', 'w2': 'BQ', 'w3': ('BS' if o['bs'] else 'BP') if o['klate'] else 'BQ', 'w4': 'BS' if o['bs'] else 'BP', 'w5': 'w1', 'w6': 'w2', 'w7': 'w3', 'o0': 'w5', 'o1': 'w6'}
    if o['vf']: FREEAT.update({'w2': 'B8', 'w3': 'BQ', 'w5': 'w2', 'w6': 'w3', 'w7': 'w4', 'v3': 'w1'})
    if o['vf'] == 2: FREEAT.update({'w5': 'BP', 'w6': 'w2', 'w7': 'w3', 'o0': 'w4', 'o1': 'w6'})
    ALLN = ['B8', 'BQ', 'BS', 'BP'] + ['w%d' % i_ for i_ in range(8)] + ['O']
    names = ['B8'] + [x_[0] for x_ in XB]
    issued = set(x_[:2] for x_ in pre8 if x_[2:] != 'a') | ({'v0'} if 'V' in o['order'] else set()) | ({'v1'} if 'W' in o['order'] else set())
    last = 'B8'
    for nm, need in XB:
        for it in plan.get(last, []):
            assert it[:2] not in FREEAT or ALLN.index(FREEAT[it[:2]]) <= ALLN.index(last), (it, last)
            run(item(it))
            if it[2:] != 'a': issued.add(it[:2])
        assert all(x_ in issued for x_ in need), (nm, need)
        vm.wait(need)
        stL('L at ' + nm, 2)
        a('s_barrier'); last = nm
    assert len(issued) == 14 + o['klate']
    if o['hoist']:
        L_ = a.lines; i = L0
        while i < len(L_):
            if L_[i] == 's_barrier':
                j = i + 1
                while j < len(L_) and L_[j].startswith(('s_lshl', 's_lshr', 's_add_u32', 's_mul_i32', 's_xor', 's_and', 's_mov_b32')): j += 1
                k = i
                while L_[k - 1].startswith(('s_waitcnt vmcnt', 's_memrealtime', '; stamp')): k -= 1
                L_[k:j] = L_[i + 1:j] + L_[k:i + 1]
                i = j
            else: i += 1
    stL('L done')
    stL.flush(4)
    if o['padL']: a('s_branch L_padl\n.fill %d, 4, 0xbf800000\nL_padl:' % o['padL'])
    if 'f' in o['hack']: a('s_endpgm')
    if o['stlb']: a(W0)
    srd(SOUT, 10, 'out')
    a('s_lshl_b32 s52, s21, 1\ns_lshr_b32 s3, s22, 1\ns_add_u32 s52, s52, s3')
    if stamps == 4: a('s_min_u32 s52, s52, 11\ns_lshr_b32 s3, s52, 1\ns_and_b32 s75, s52, 1\ns_lshl_b32 s75, s75, 4\ns_or_b32 s75, s75, s3\ns_and_b32 s3, s2, 0xe8\ns_or_b32 s75, s75, s3')
    a('s_cmp_ge_u32 s52, 12\ns_cbranch_scc1 L_end')
    a('s_lshl_b32 s3, %s, 9\ns_add_u32 s62, s3, %d\ns_add_u32 s66, s14, s62\ns_addc_u32 s67, s15, 0' % ('s75' if stamps == 4 else 's2', G_FL + 384))
    a('s_mov_b32 s54, %d' % SPIN)
    a('s_lshl_b32 s3, s23, 1\ns_and_b32 s53, s22, 1\ns_add_u32 s53, s53, s3')
    a('s_mul_i32 s55, s53, 12\ns_add_u32 s55, s55, s52\ns_mul_i32 s55, s55, %d\ns_add_u32 s55, s55, %d\ns_add_u32 s56, s55, 4096' % (o['OT'], G_PO))
    if o['o64']:
        a('s_cmp_ge_u32 s52, 6\ns_cselect_b32 s58, %d, 0\ns_mul_i32 s57, s53, 6\ns_add_u32 s57, s57, s52\ns_mul_i32 s57, s57, %d\ns_sub_u32 s57, s57, s58\ns_add_u32 s57, s57, 1024' % (48 * 1152 - 64, 8 * 1152))
    else:
        a('s_mul_i32 s58, s52, 43\ns_lshr_b32 s58, s58, 7\ns_mul_i32 s3, s58, 3\ns_sub_u32 s3, s52, s3')
        a('s_mul_i32 s57, s53, 3\ns_add_u32 s57, s57, s3\ns_mul_i32 s57, s57, %d\ns_lshl_b32 s58, s58, 5\ns_add_u32 s57, s57, s58\ns_add_u32 s57, s57, 1024' % (16 * 1152))
    a('v_lshlrev_b32 v6, 3, v0')
    def and16(b):
        for i in range(0, 16, 4): a('s_and_b64 s[%d:%d], s[%d:%d], s[%d:%d]' % (b + i, b + 1 + i, b + i, b + 1 + i, b + 2 + i, b + 3 + i))
        a('s_and_b64 s[%d:%d], s[%d:%d], s[%d:%d]\ns_and_b64 s[%d:%d], s[%d:%d], s[%d:%d]\ns_and_b64 s[%d:%d], s[%d:%d], s[%d:%d]\ns_and_b32 s%d, s%d, s%d' % (
            b, b + 1, b, b + 1, b + 4, b + 5, b + 8, b + 9, b + 8, b + 9, b + 12, b + 13, b, b + 1, b, b + 1, b + 8, b + 9, b, b, b + 1))
    def reduce(name, nsrc, w, off, vaddr, outs, st=None):
        per = nsrc // 2; sz = 256 * w
        def ld(j): return 'buffer_load_dwordx%d %s, v%d, s[%d:%d], s%d offen offset:%d sc1' % (w, v(32 + w * j, w), vaddr, SWS, SWS + 3, 55 + j // per, sz * (j % per))
        osc = o['outsc'] if w == 4 or o['oddsc'] is None else o['oddsc']
        bt = o['btr'] & (1 if w == 4 else 2)
        if bt and w == 4:
            a('v_lshrrev_b32 v4, 2, v0\nv_and_b32 v5, 3, v0\nv_mul_u32_u24 v3, 1152, v4\nv_lshl_add_u32 v3, v5, 4, v3\nv_lshl_add_u32 v24, v5, 4, v4\nv_lshlrev_b32 v24, 2, v24')
        elif bt:
            a('v_lshrrev_b32 v4, 2, v0\nv_and_b32 v5, 3, v0\nv_mul_u32_u24 v3, 1152, v4\nv_lshl_add_u32 v3, v5, 3, v3\nv_lshl_add_u32 v24, v5, 4, v4\nv_lshlrev_b32 v24, 2, v24')
        elif o['o64'] and w == 2 and 'V' not in o['hack']: a('v_and_b32 v4, 7, v0\nv_lshrrev_b32 v5, 3, v0\nv_mul_u32_u24 v3, 1152, v4\nv_lshl_add_u32 v3, v5, 3, v3')
        elif 'U' in o['hack'] and w == 4: a('v_and_b32 v4, 7, v0\nv_lshrrev_b32 v5, 3, v0\nv_mul_u32_u24 v3, 1152, v4\nv_lshl_add_u32 v3, v5, 4, v3\ns_bitcmp1_b32 s59, 6\ns_cselect_b32 s3, %d, 0\ns_add_u32 s59, s59, s3' % (8 * 1152 - 64))
        elif 'W' in o['hack'] and w == 2: a('v_and_b32 v4, 7, v0\nv_lshrrev_b32 v5, 3, v0\nv_mul_u32_u24 v3, 1152, v4\nv_lshl_add_u32 v3, v5, 3, v3\ns_bitcmp1_b32 s57, 5\ns_cselect_b32 s3, %d, 0\ns_add_u32 s57, s57, s3' % (8 * 1152 - 32))
        elif 'V' in o['hack'] and w == 2: a('v_mov_b32 v3, 0x7ff00000')
        elif o['x4'] and w == 4: a('v_mul_u32_u24 v3, 1152, v1\nv_lshl_add_u32 v3, v2, 4, v3')
        else: a('v_mul_u32_u24 v3, 1152, v1\nv_lshl_add_u32 v3, v2, 3, v3')
        if o.get('dot'): a('s_mov_b32 s28, 0x00003f80\ns_mov_b32 s29, 0x3f800000')
        a('s_mov_b32 s29, 0xffff0000')
        if o['acc'] == 2: a('s_mov_b32 s28, 0x00003f80\ns_mov_b32 s31, 0x3f800000')
        if o['prog']:
            a('s_mov_b32 s63, 0')
            a('L_%s:\ns_load_dwordx%d s[84:%d], s[66:67], %d glc\ns_sub_u32 s54, s54, 1\ns_cselect_b32 s30, -1, 0\ns_waitcnt lgkmcnt(0)' % (name, nsrc, 83 + nsrc, off))
            k = nsrc; sh = 1
            while k > 1:
                for i in range(0, nsrc, 2 * sh):
                    if sh <= 4: a('s_lshl%d_add_u32 s%d, s%d, s%d' % (sh, 84 + i, 84 + i + sh, 84 + i))
                    else: a('s_lshl_b32 s%d, s%d, %d\ns_or_b32 s%d, s%d, s%d' % (84 + i + sh, 84 + i + sh, sh, 84 + i, 84 + i, 84 + i + sh))
                k //= 2; sh *= 2
            a('s_or_b32 s84, s84, s30\ns_and_b32 s84, s84, %d\ns_andn2_b32 s85, s84, s63\ns_cbranch_scc0 L_%s\ns_or_b32 s63, s63, s84' % ((1 << nsrc) - 1, name))
            for j in range(nsrc):
                a('s_bitcmp1_b32 s85, %d\ns_cbranch_scc0 L_%s_%d\n%s\nL_%s_%d:' % (j, name, j, ld(j), name, j))
            a('s_cmp_lg_u32 s63, %d\ns_cbranch_scc1 L_%s' % ((1 << nsrc) - 1, name))
            if st: st('flags ok')
            a('s_waitcnt vmcnt(0)')
        else:
            own = o['own'] and w == 4
            oe = own and o['oe'] and o['xe'] in ('E', 'G', 'H') and o['atom']
            if o['far']: a('s_branch L_far_%s\n.fill 300, 4, 0xbf800000\n.p2align 6\nL_far_%s:' % (name, name))
            if o['opre'] & (1 if w == 4 else 2): a('buffer_load_dword v22, v3, s[%d:%d], %s offen %s\ns_waitcnt vmcnt(0)' % (SOUT, SOUT + 3, outs, o.get('oprefl', '')))
            a(';WARM_ON')
            if o['xe']: a('s_barrier')
            if oe: a('ds_read_b128 v[32:35], v27')
            pm = o['bm'] >= (2 if w == 2 else 1) and o['bm'] != 3 or o['bm'] == 3 and w == 2
            full = (1 << nsrc) - 1
            if pm:
                a('s_mov_b32 s64, 0')
                a('L_%s:\ns_load_dword s84, s[66:67], %d glc\ns_sub_u32 s54, s54, 1\ns_cselect_b32 s30, %d, 0\ns_waitcnt lgkmcnt(0)' % (name, off, full))
                a('s_or_b32 s84, s84, s30\ns_andn2_b32 s85, s84, s64\ns_cbranch_scc0 L_%s\ns_mov_b32 s64, s84' % name)
                for j in range(nsrc):
                    a('s_bitcmp1_b32 s85, %d\ns_cbranch_scc0 L_%s_%d\n%s\nL_%s_%d:' % (j, name, j, 'ds_read_b128 v[32:35], v27' if own and j == 0 else ld(j), name, j))
                a('s_cmp_lg_u32 s64, %d\ns_cbranch_scc1 L_%s\ns_waitcnt vmcnt(0)' % (full, name))
                if o['sent'] and w == 2: a('s_mov_b32 s63, 0\ns_branch L_sum')
            else: gpoll(name, full if o['bm'] else (32 if w == 2 and o['o64'] else nsrc) - (1 if oe else 0), off)
            if stamps == 4: a('s_memrealtime s[68:69]')
            if st: st('flags ok')
            if o['sent'] and w == 2: a('s_mov_b32 s63, 0\nL_again:')
            if not pm or w == 2:
                for j in range(nsrc):
                    if j or not own: a(ld(j))
                if own and not oe: a('ds_read_b128 v[32:35], v27')
            if pm and w == 2: a('L_sum:')
            if o['dry']: a('L_dry_%s:' % name)
        for j in range(nsrc):
            if not o['prog'] and not (oe and j == 0): a(W0 if own and j == 0 else 's_waitcnt vmcnt(%d)' % (nsrc - 1 - j))
            if o['acc'] == 1:
                b_ = 32 + w * j; tmp = 16 + 4 * (j & 1)
                for t in range(w): a('v_lshlrev_b32 v%d, 16, v%d' % ((tmp if j else 8) + t, b_ + t))
                for t in range(w): a('v_and_b32 v%d, s29, v%d' % ((b_ if j else 12) + t, b_ + t))
                if j:
                    for t in range(0, w, 2): a('v_pk_add_f32 v[%d:%d], v[%d:%d], v[%d:%d]' % (8 + t, 9 + t, 8 + t, 9 + t, tmp + t, tmp + t + 1))
                    for t in range(0, w, 2): a('v_pk_add_f32 v[%d:%d], v[%d:%d], v[%d:%d]' % (12 + t, 13 + t, 12 + t, 13 + t, b_ + t, b_ + t + 1))
                continue
            if o['acc'] == 2:
                b_ = 32 + w * j
                for t in range(w): a('v_dot2_f32_bf16 v%d, v%d, s28, %s' % (8 + t, b_ + t, 'v%d' % (8 + t) if j else '0'))
                for t in range(w): a('v_dot2_f32_bf16 v%d, v%d, s31, %s' % (12 + t, b_ + t, 'v%d' % (12 + t) if j else '0'))
                if j == nsrc - 1: a('s_nop 2')
                continue
            for t in range(w):
                src = 32 + w * j + t
                if j == 0: a('v_lshlrev_b32 v%d, 16, v%d\nv_and_b32 v%d, s29, v%d' % (8 + 2 * t, src, 9 + 2 * t, src))
                elif o.get('dot'): a('v_dot2_f32_bf16 v%d, v%d, s28, v%d\nv_dot2_f32_bf16 v%d, v%d, s29, v%d' % (8 + 2 * t, src, 8 + 2 * t, 9 + 2 * t, src, 9 + 2 * t))
                else: a('v_lshlrev_b32 v16, 16, v%d\nv_and_b32 v17, s29, v%d\nv_pk_add_f32 v[%d:%d], v[%d:%d], v[16:17]' % (src, src, 8 + 2 * t, 9 + 2 * t, 8 + 2 * t, 9 + 2 * t))
        if o['sent'] and w == 2: a('v_cmp_u_f32 vcc, v8, v%d\n' % (9 if o['acc'] else 10) + 's_cbranch_vccnz L_retry\nL_accept:')
        if stamps == 4: a('s_memrealtime s[70:71]')
        for t in range(w): a('v_cvt_pk_bf16_f32 v%d, v%d, v%d' % ((8 + t, 8 + t, 12 + t) if o['acc'] else (8 + t, 8 + 2 * t, 9 + 2 * t)))
        if w == 4 and o['x4']:
            a('v_permlane32_swap_b32 v8, v10\nv_permlane32_swap_b32 v9, v11\nv_permlane16_swap_b32 v8, v10\nv_permlane16_swap_b32 v9, v11')
        if o['dry']: a('s_cbranch_execz L_dryret_%s' % name)
        if bt:
            for t in range(w): a('ds_bpermute_b32 v%d, v24, v%d' % (8 + t, 8 + t))
            a(W0)
        if w == 4 and o['x4']:
            a('buffer_store_dwordx4 v[8:11], v3, s[%d:%d], %s offen %s' % (SOUT, SOUT + 3, outs, osc))
        else:
            for t in range(w // 2): a('buffer_store_dwordx2 v[%d:%d], v3, s[%d:%d], %s offen offset:%d %s' % (8 + 2 * t, 9 + 2 * t, SOUT, SOUT + 3, outs, 32 * t, osc))
        a(';WARM_OFF')
        if stamps >= 4:
            a('s_waitcnt vmcnt(0)\ns_memrealtime s[72:73]\ns_waitcnt lgkmcnt(0)\nv_mov_b32 v31, 0\ns_lshl_b32 s3, s2, 9\ns_mul_i32 s74, s20, 24\ns_add_u32 s3, s3, s74\ns_add_u32 s3, s3, %d' % (STAMP_OFF + 8 * 50 - 96))
            for i in range(3) if stamps == 4 else [2]:
                a('v_mov_b32 v254, s%d\nv_mov_b32 v255, s%d' % (68 + 2 * i, 69 + 2 * i))
                a('buffer_store_dwordx2 v[254:255], v31, s[%d:%d], s3 offen offset:%d' % (SWS, SWS + 3, 8 * i))
    if stamps == 4:
        for w_, nm in enumerate(['odd', 'r0', 'r1', 'r2']):
            for i, x_ in enumerate(['flags', 'summed', 'end']): a('; stamp %d %s %s' % (50 + 3 * w_ + i, nm, x_))
    reduce('op', 16, 2, 0, 6, 's57')
    a('s_endpgm')
    if o['sent']:
        a('L_retry:\ns_cmp_lg_u32 s63, 0\ns_cbranch_scc1 L_accept\ns_mov_b32 s63, 1\ns_mov_b32 s54, %d' % SPIN)
        if stamps == 5: a('v_mov_b32 v20, 160\nv_mov_b32 v21, 1\ns_mov_b64 exec, 1\nglobal_atomic_add v20, v21, s[12:13] sc1\ns_mov_b64 exec, -1')
        if o['ack1'] and o['o64']:
            a('s_cmp_ge_u32 s52, 6\ns_cselect_b32 s3, 3, 0\ns_and_b32 s62, s2, 0xe8\ns_or_b32 s3, s3, s62\ns_lshl_b32 s3, s3, 9\ns_add_u32 s62, s3, %d\ns_add_u32 s66, s14, s62\ns_addc_u32 s67, s15, 0' % (G_FL + 384))
        gpoll('oq', 0xffff if o['bm'] else 32 if o['o64'] else 16, 64)
        a('s_branch L_again')
    for t_ in subs.values(): a(t_)
    if o['padC']: a('.fill %d, 4, 0xbf800000' % o['padC'])
    a('L_comp:')
    lg = Cnt(a, 'lgkmcnt', 15)
    stC('C entry', 3)
    XA, WA, VA, OVA, OA, QA, FRA, FUA, FV, FC, PFA = 10, 12, 16, 18, 20, 21, 22, 23, 24, 27, 31
    A = 32; F = [80, 108]; B = 136; C = 184; VWO = 232; SP = 244
    KF = B; QF = 80; S = 96; P = SP; KA = 184; UA = 254; QT = 192
    a('v_bfe_u32 v3, v0, 2, 2\nv_and_b32 v4, 3, v0')
    a('s_lshr_b32 s18, s20, 1\ns_and_b32 s17, s20, 1')
    a(H0)
    a('v_lshrrev_b32 v7, 1, v1\nv_xor_b32 v7, v7, v2\nv_lshlrev_b32 v7, 4, v7\nv_lshl_add_u32 v5, v1, 7, v7\nv_xor_b32 v6, 64, v5')
    a('s_mul_i32 s3, s18, 6144\ns_add_u32 s3, s3, %d' % L_X0)
    a('v_add_u32 v%d, s3, v5\nv_add_u32 v%d, s3, v6' % (XA, XA + 1))
    a('s_add_u32 s3, s3, %d\nv_add_u32 v%d, s3, v5\nv_add_u32 v%d, s3, v6' % (L_V - L_X0, VA, VA + 1))
    a('s_and_b32 s3, s22, 1\ns_mul_i32 s3, s3, 6144\ns_add_u32 s3, s3, %d' % L_V)
    if o['alt'] == 3: a('s_and_b32 s19, s22, 2\ns_mul_i32 s19, s19, 12288\ns_add_u32 s3, s3, s19')
    a('v_add_u32 v%d, s3, v5\nv_add_u32 v%d, s3, v6' % (OVA, OVA + 1))
    a('v_and_b32 v7, 1, v2\nv_lshl_add_u32 v7, v7, 2, v3\ns_lshl_b32 s3, s17, 2\nv_xor_b32 v7, s3, v7')
    a('v_lshl_add_u32 v5, v2, 3, v3\nv_lshlrev_b32 v8, 8, v5\nv_lshl_add_u32 v8, v4, 3, v8')
    assert L_W == 0
    for t in range(4): a('v_xor_b32 v9, %d, v7\nv_lshl_add_u32 v%d, v9, 5, v8' % (t, WA + t))
    a('v_and_b32 v7, 1, v2\nv_lshrrev_b32 v8, 1, v3\nv_lshl_add_u32 v7, v7, 1, v8\nv_xor_b32 v7, s20, v7')
    a('v_lshlrev_b32 v8, 7, v5\nv_lshl_add_u32 v8, v4, 3, v8\nv_lshl_add_u32 v%d, v7, 5, v8' % OA)
    a('s_mul_i32 s3, s18, 12288\ns_lshl_b32 s19, s17, 11\ns_add_u32 s3, s3, s19\ns_add_u32 s3, s3, %d' % L_Q)
    a('v_lshlrev_b32 v25, 4, v0\nv_lshlrev_b32 v26, 3, v0\nv_add_u32 v%d, s3, v%d' % (QA, 26 if o['q64'] else 25))
    if o['q64'] == 3: a('v_lshrrev_b32 v7, 1, v2\nv_lshl_add_u32 v7, v7, 4, v1\nv_lshlrev_b32 v7, 4, v7\nv_and_b32 v8, 1, v2\nv_lshl_add_u32 v7, v8, 3, v7\nv_add_u32 v%d, s3, v7' % QA)
    if o['own3']:
        assert o['own'] and not o['oe'] and not o['bm']
        a('s_and_b32 s59, s2, 0xf8\ns_lshl_b32 s48, s20, 1\ns_add_u32 s59, s59, s48\ns_and_b32 s3, s2, 1\ns_add_u32 s3, s3, s59\ns_mul_i32 s34, s3, %d\ns_xor_b32 s3, s3, 1\ns_mul_i32 s35, s3, %d' % (o['MO'], o['MO']))
        a('s_and_b32 s3, s21, 6\ns_xor_b32 s48, s48, s3\ns_lshl_b32 s3, s48, 10\ns_add_u32 s3, s3, %d\ns_add_u32 s34, s34, s3\ns_add_u32 s35, s35, s3\ns_add_u32 s35, s35, 1024' % G_PM)
        a('s_cmp_eq_u32 s48, 0\ns_cselect_b32 s33, 0x7ff00000, 0\ns_cselect_b64 s[30:31], -1, 0\nv_add_u32 v27, %d, v25' % L_F)
        for qt in (1, 2): a('s_add_u32 s%d, s34, %d\ns_add_u32 s%d, s35, %d' % (34 + 2 * qt, qt * o['MQ'], 35 + 2 * qt, qt * o['MQ']))
    else:
        a('s_and_b32 s59, s2, 0xf8\ns_lshl_b32 s48, s20, 1\ns_add_u32 s59, s59, s48\ns_mul_i32 s56, s59, %d\ns_add_u32 s56, s56, %d\ns_add_u32 s57, s56, %d' % (o['MO'], G_PM, o['MO']))
        a('s_xor_b32 s48, s48, s21\ns_lshl_b32 s3, s48, 10\ns_add_u32 s56, s56, s3\ns_xor_b32 s3, s3, 1024\ns_add_u32 s57, s57, s3')
        if o['own']:
            a('s_cmp_eq_u32 s48, 0\ns_cselect_b32 s56, 0x7ff00000, s56\ns_cselect_b64 s[30:31], -1, 0\ns_cmp_eq_u32 s48, 1\ns_cselect_b32 s57, 0x7ff00000, s57\ns_cselect_b64 s[32:33], -1, 0\nv_add_u32 v27, %d, v25' % L_F)
    a('s_lshl_b32 s3, s23, 1\ns_and_b32 s54, s22, 1\ns_add_u32 s3, s3, s54\ns_mul_i32 s3, s3, 12\n' + ('s_mul_i32 s54, s18, 6' if o['o64'] else 's_mul_i32 s54, s20, 3') + '\ns_add_u32 s3, s3, s54\ns_mul_i32 s58, s3, %d' % o['OT'])
    if o['o64']:
        assert not o['bm'] and not o['btr'] & 2
        a('s_lshl_b32 s3, s17, 8\ns_add_u32 s58, s58, s3')
    a('s_lshl_b32 s3, s21, 1\ns_lshr_b32 s55, s22, 1\ns_add_u32 s55, s55, s3\ns_lshl_b32 s3, s55, 9\ns_add_u32 s58, s58, s3\ns_add_u32 s58, s58, %d' % G_PO)
    a('v_and_b32 v5, 7, v0\nv_lshrrev_b32 v6, 3, v0')
    a('v_add_u32 v7, s59, v5\nv_lshlrev_b32 v7, 9, v7\n' + ('s_mov_b32 s3, %d' % (G_FL + MOFF) if o['atom'] else 's_lshl_b32 s3, s21, 2\ns_add_u32 s3, s3, %d' % (G_FL + MOFF)) + '\nv_add_u32 v7, s3, v7')
    a('s_sub_u32 s54, s54, 2\nv_add_u32 v8, s54, v5\nv_lshrrev_b32 v9, 1, v8\nv_and_b32 v8, 1, v8\nv_lshl_add_u32 v8, v8, 4, v9\ns_and_b32 s3, s2, 0xe8\nv_add_u32 v8, s3, v8\nv_lshlrev_b32 v8, 9, v8')
    a(('s_mov_b32 s3, %d' if o['atom'] else 's_lshl_b32 s3, s55, 2\ns_add_u32 s3, s3, %d') % (G_FL + 128 + OOFF) + '\nv_add_u32 v8, s3, v8\nv_mov_b32 v9, 0x7ff00000')
    a('v_lshl_add_u32 v7, v6, 6, v7\nv_lshl_add_u32 v8, v6, 6, v8\nv_cmp_gt_u32 vcc, %d, v6\nv_cndmask_b32 v5, 8, v5, vcc' % o['rep'])
    if o['own'] and o['oe'] and o['xe'] in ('E', 'G', 'H') and o['atom']: a('v_cmp_ne_u32 vcc, s48, v5\nv_cndmask_b32 v7, v9, v7, vcc')
    a('v_cmp_gt_u32 vcc, %d, v5\n' % (8 if o['o64'] else 5) + 'v_cndmask_b32 v8, v9, v8, vcc\nv_cmp_gt_u32 vcc, 2, v5\nv_cndmask_b32 v30, v8, v7, vcc\nv_cndmask_b32 v28, v9, v7, vcc\nv_mov_b32 v29, 1')
    if o['bm']: a('v_xor_b32 v7, s48, v5\nv_mov_b32 v8, s55\nv_cndmask_b32 v7, v8, v7, vcc\nv_lshlrev_b32 v29, v7, v29')
    if 'g' in o['hack']: a('s_mov_b32 s58, 0x7ff00000\n' + '\n'.join('s_mov_b32 s%d, s58' % r_ for r_ in (34, 35, 36, 37, 38, 39, 56, 57)))
    if o['o64']: a('v_lshrrev_b32 v7, 3, v1\nv_mul_u32_u24 v7, %d, v7\nv_lshl_add_u32 v7, v2, 6, v7\nv_and_b32 v8, 7, v0\nv_lshl_add_u32 v3, v8, 3, v7' % o['OT'])
    a('s_mov_b32 s52, s20')
    def unit_setup():
        a('s_cmp_ge_u32 s52, 3\ns_cselect_b32 s3, 12288, 0\ns_add_u32 s3, s3, %d' % L_K)
        if o['q64'] == 3:
            a('v_xor_b32 v7, v1, v2\nv_lshlrev_b32 v7, 4, v7\nv_lshl_add_u32 v7, v1, 8, v7')
            for kk in range(4): a('v_xor_b32 v8, %d, v7\nv_add_u32 v%d, s3, v8' % (64 * kk, KA + kk))
        else:
            a('v_lshrrev_b32 v7, 1, v2\nv_xor_b32 v7, v1, v7\nv_lshlrev_b32 v7, 4, v7\nv_lshl_add_u32 v7, v1, 8, v7\nv_and_b32 v8, 1, v2\nv_lshl_add_u32 v7, v8, 3, v7')
            for j in range(8): a('v_xor_b32 v8, %d, v7\nv_add_u32 v%d, s3, v8' % (32 * j, KA + j))
        a('s_lshl_b32 s3, s52, 12\ns_add_u32 s3, s3, %d\nv_add_u32 v%d, s3, v%d' % (L_Q, UA, 26 if o['q64'] in (1, 2) else 25))
        a('s_mov_b32 s50, 0x%x\ns_mov_b32 s51, s50' % f2i((1 if o['mimic'] else 128 ** -0.5) * math.log2(math.e)))
        if o['mimic']: a('s_mov_b32 s26, 0x%x\ns_mov_b32 s27, s26\ns_mov_b32 s25, 0xffff0000' % f2i(128 ** -0.5))
        a('s_mul_i32 s3, s52, 1536\ns_mul_i32 s49, s2, 9216\ns_add_u32 s49, s49, s3\ns_add_u32 s49, s49, %d' % G_P)
        if o['pds']: a('s_add_u32 s3, s3, %d\nv_add_u32 v255, s3, v25\nv_add_u32 v31, s3, v26' % (L_P + 27648))
    def k_reads(late=False):
        if o['klate'] and not late: return []
        if o['q64'] == 3: return ['ds_read_b128 %s, v%d offset:%d' % (v(KF + 16 * kt + 4 * kk, 4), KA + kk, 4096 * kt) for kk in range(4) for kt in range(3)]
        return ['ds_read_b64 %s, v%d offset:%d' % (v(KF + 16 * kt + 2 * j, 2), KA + j, 4096 * kt) for j in range(8) for kt in range(3)]
    if o['mimic']: a(W0)
    unit_setup()
    if o['own3']: a('v_add_u32 v1, s33, v25')
    a(W0)
    srd(SWS, 14, 'ws')
    if o['sat'] & 1: a('s_lshl_b32 s3, s59, 9\ns_add_u32 s42, s3, %d\ns_add_u32 s43, s42, 512\ns_mov_b32 s40, 1' % (256 + MOFF))
    def wreads(st, off, wa=WA): return ['ds_read_b64_tr_b16 %s, v%d offset:%d' % (v(st + 4 * t + 2 * hh, 2), wa + t, off + 1024 * hh) for t in range(4) for hh in range(2)]
    def reads_A(n, ks, st=None):
        st = st or F[ks]
        return ['ds_read_b128 %s, v%d offset:%d' % (v(st + 16 + 4 * q, 4), XA + ks, XS(n) + 2048 * q) for q in range(3)] + wreads(st, 16384 * (n % 3) + 8192 * ks)
    ORD = [(t, q if t % 2 == 0 else 2 - q) for t in range(4) for q in range(3)]
    def mfma(acc, ks, first, swap, od=None):
        out = []
        for t, q in od or ORD:
            d = v(acc + 4 * (3 * t + q), 4); x = v(F[ks] + 4 * t, 4); y = v(F[ks] + 16 + 4 * q, 4)
            if swap: x, y = y, x
            out.append(MF % (d, x, y, '0' if first else d))
        return out
    def cvt(d, s_): return ['v_cvt_pk_bf16_f32 v%d, v%d, v%d' % (d, s_, s_ + 1), 'v_cvt_pk_bf16_f32 v%d, v%d, v%d' % (d + 1, s_ + 2, s_ + 3)]
    def ds(txt, tag):
        def f(): a(txt); lg.issue(tag)
        return f
    def step(m, dsops, extra=(), waits=None, pre=(), xstart=0, dstart=0):
        n = len(m); per = [[] for _ in range(n)]
        for i, x_ in enumerate(pre): per[i].append(x_)
        nd = n - dstart
        for i, x_ in enumerate(dsops): per[dstart + (i if len(dsops) <= nd else i * nd // len(dsops))].append(x_)
        nx = n - xstart
        for i, x_ in enumerate(extra): per[xstart + (i * nx // len(extra))].append(x_)
        for i in range(n):
            if waits and i in waits: lg.wait(waits[i])
            a(m[i]); run(per[i])
    stC('C at B0', 3)
    a('s_barrier')
    stC('B0')
    def tA(n, ks): return [ds(x_, 'a%d%d%s' % (n, ks, 'lo' if i < 7 else 'hi')) for i, x_ in enumerate(reads_A(n, ks))]
    if o['atune']:
        bg = o['atune']
        run(tA(0, 0))
        for n in range(7):
            kr = [ds(x_, 'k') for x_ in k_reads()[6 * (n - 3):6 * (n - 2)]] if 3 <= n < 7 else []
            m = mfma(A, 0, n == 0, False)
            step(m[:10], tA(n, 1), waits={0: 'a%d0lo' % n, 6: 'a%d0hi' % n}); step(m[10:], [])
            m = mfma(A, 1, False, False)
            step(m[:bg], [], waits={0: 'a%d1lo' % n})
            lg.wait_all(); a('s_barrier')
            r = tA(n + 1, 0)
            run(r[:1]); step(m[bg:], r[1:] + kr)
        lg.seq = []
    else: run(reads_A(0, 0))
    for n in range(7 if o['atune'] else 0, 9):
        if n == 7 and o['tm']:
            assert not o['b8a']
            F2 = 204; QT = F[1]
            a(W0)
            run(interleave(mfma(A, 0, False, False), reads_A(7, 1), 0, 2))
            a(W0); a('s_barrier'); stC('B8')
            a(';WARM_ON')
            r0, r1 = reads_A(8, 0), reads_A(8, 1, F2)
            rr = []
            for idx in ([0], [3, 4], [5, 6], [1], [2], [7, 8], [9, 10]):
                rr += [r0[i] for i in idx] + [r1[i] for i in idx]
            run(interleave(mfma(A, 1, False, False), rr, 0, 2))
            stC('end 7,1', 3)
            m = []; qw = []
            for i, (tp, q) in enumerate([(tp, q) for tp in range(2) for q in range(3)]):
                for u in range(2):
                    t = 2 * tp + u; d = v(A + 4 * (3 * t + q), 4)
                    for st in (F[0], F2): m.append(MF % (d, v(st + 4 * t, 4), v(st + 16 + 4 * q, 4), d))
                    qw += cvt(QT + 4 * i + 2 * u, A + 4 * (3 * t + q))
                    if o['q64'] and 'q' not in o['hack']: qw[-1] += '\nds_write_b64 v%d, %s offset:%d' % (QA, v(QT + 4 * i + 2 * u, 2), q * 4096 + tp * 1024 + u * 512)
                if not o['q64']: qw[-1] += '\nds_write_b128 v%d, %s offset:%d' % (QA, v(QT + 4 * i, 4), q * 4096 + tp * 1024)
            m[0] = 's_waitcnt lgkmcnt(12)\n' + m[0]; m[4] = 's_waitcnt lgkmcnt(8)\n' + m[4]; m[8] = ('s_waitcnt lgkmcnt(%d)' % (1 if o['q64'] and o['qs'] <= 6 and 'q' not in o['hack'] else 0)) + '\n' + m[8]
            run(interleave(m, qw, o['qs'], 1))
            stC('Q issued', 3)
            if stamps == 3: a(W0); stC('Q done', 3)
            break
        if n == 8: stC('end 7,1', 3)
        a(W0)
        run(interleave(mfma(A, 0, n == 0, False), (['s_barrier'] if n == 8 and o['b8a'] else []) + reads_A(n, 1), 0, 2))
        if n < 8:
            a(W0)
            a('s_barrier')
            if n == 7: stC('B8')
            run(interleave(mfma(A, 1, False, False), reads_A(n + 1, 0) + (k_reads()[8 * (n - 4):8 * (n - 3)] if 4 <= n < 7 else []), 0, 2))
        else:
            stC('end 8,0', 3)
            a(W0)
            od = [(2 * tp + u, q) for tp in range(2) for q in range(3) for u in range(2)]
            qw = []
            for i, (t, q) in enumerate(od):
                qw += cvt(QT + 2 * i, A + 4 * (3 * t + q))
                if t & 1: qw[-1] += '\nds_write_b128 v%d, %s offset:%d' % (QA, v(QT + 2 * i - 2, 4), q * 4096 + (t >> 1) * 1024)
            run(interleave(mfma(A, 1, False, False, od), qw, 6, 2))
            stC('Q issued', 3)
            if stamps == 3: a(W0); stC('Q done', 3)
    if o['own3']:
        a('s_and_b32 s3, s21, 1\ns_lshl_b32 s3, s3, 6')
        for t in range(4): a('v_xor_b32 v%d, s3, v%d' % (WA + t, WA + t))
    if o['vf']:
        for t in range(4): a('v_add_u32 v%d, %d, v%d' % (250 + t, BASE2, WA + t))
    if o['uprio']: a('s_setprio %d' % o['uprio'])
    a('L_unit:')
    a(W0)
    a('s_barrier')
    stC('BQ')
    for kk in range(4):
        if o['klate']: run(k_reads(True)[3 * kk:3 * kk + 3])
        if o['q64'] == 1: a('ds_read2st64_b64 %s, v%d offset0:%d offset1:%d' % (v(QF + 4 * kk, 4), UA, 2 * kk, 2 * kk + 1))
        elif o['q64'] == 2: a('ds_read_b64 %s, v%d offset:%d\nds_read_b64 %s, v%d offset:%d' % (v(QF + 4 * kk, 2), UA, 1024 * kk, v(QF + 4 * kk + 2, 2), UA, 1024 * kk + 512))
        else: a('ds_read_b128 %s, v%d offset:%d' % (v(QF + 4 * kk, 4), UA, 1024 * kk))
    for kk in range(4):
        a('s_waitcnt lgkmcnt(%d)' % ((3 - kk) * (4 if o['klate'] else 2 if o['q64'] == 2 else 1)))
        for kt in range(3): a(MF % (v(S + 4 * kt, 4), v(KF + 16 * kt + 4 * kk, 4), v(QF + 4 * kk, 4), v(S + 4 * kt, 4) if kk else '0'))
    if o['bs']: a('s_barrier')
    if 's' in o['hack']: a('s_branch L_hs_skip')
    if 'h' in o['hack']: a('s_cmp_ge_u32 s20, 4\ns_cbranch_scc1 L_hs_skip')
    if o['mimic']:
        for rnd in range(2):
            for t in range(6): a('v_cvt_pk_bf16_f32 v%d, v%d, v%d' % (S + 2 * t + 1, S + 2 * t, S + 2 * t + 1))
            for t in range(6): a('v_lshlrev_b32 v%d, 16, v%d' % (S + 2 * t, S + 2 * t + 1))
            for t in range(6): a('v_and_b32 v%d, s25, v%d' % (S + 2 * t + 1, S + 2 * t + 1))
            if rnd == 0:
                for t in range(0, 12, 2): a('v_pk_mul_f32 v[%d:%d], v[%d:%d], s[26:27]' % (S + t, S + t + 1, S + t, S + t + 1))
    x, y = 6, 7
    a('v_max3_f32 v6, v%d, v%d, v%d\nv_max3_f32 v7, v%d, v%d, v%d' % (S, S + 1, S + 2, S + 3, S + 4, S + 5))
    a('v_max3_f32 v6, v6, v%d, v%d\nv_max3_f32 v7, v7, v%d, v%d\nv_max3_f32 v6, v6, v%d, v%d' % (S + 6, S + 7, S + 8, S + 9, S + 10, S + 11))
    def xl(op, first):
        a(first)
        a('v_permlane16_swap_b32 v6, v7\n%s v8, v6, v7\n%s v7, v6, v7\nv_permlane32_swap_b32 v8, v7\n%s v6, v8, v7' % (op, op, op))
    xl('v_max_f32', 'v_max_f32 v6, v6, v7\nv_mov_b32 v7, v6')
    a('v_mul_f32 v6, s50, v6')
    if o['pk']:
        for t in range(0, 12, 2): a('v_pk_fma_f32 v[%d:%d], v[%d:%d], s[50:51], v[6:7] op_sel_hi:[1,1,0] neg_lo:[0,0,1] neg_hi:[0,0,1]' % (S + t, S + t + 1, S + t, S + t + 1))
    else:
        for t in range(12): a('v_fma_f32 v%d, v%d, s50, -v6' % (S + t, S + t))
    for t in range(12): a('v_exp_f32 v%d, v%d' % (S + t, S + t))
    if o['pk']:
        a('v_pk_add_f32 v[6:7], v[%d:%d], v[%d:%d]\nv_pk_add_f32 v[4:5], v[%d:%d], v[%d:%d]' % (S, S + 1, S + 2, S + 3, S + 4, S + 5, S + 6, S + 7))
        a('v_pk_add_f32 v[6:7], v[6:7], v[%d:%d]\nv_pk_add_f32 v[4:5], v[4:5], v[%d:%d]\nv_pk_add_f32 v[4:5], v[4:5], v[6:7]' % (S + 8, S + 9, S + 10, S + 11))
    else:
        a('v_add_f32 v4, v%d, v%d\nv_add_f32 v5, v%d, v%d' % (S, S + 1, S + 2, S + 3))
        for t in range(4, 12, 2): a('v_add_f32 v4, v4, v%d\nv_add_f32 v5, v5, v%d' % (S + t, S + t + 1))
    xl('v_add_f32', 'v_add_f32 v6, v4, v5\nv_add_f32 v7, v4, v5')
    a('v_rcp_f32 v6, v6')
    if o['pk']:
        for t in range(0, 12, 2): a('v_pk_mul_f32 v[%d:%d], v[%d:%d], v[6:7] op_sel_hi:[1,0]' % (S + t, S + t + 1, S + t, S + t + 1))
    else:
        for t in range(12): a('v_mul_f32 v%d, v%d, v6' % (S + t, S + t))
    for t in range(6): a('v_cvt_pk_bf16_f32 v%d, v%d, v%d' % (P + t, S + 2 * t, S + 2 * t + 1))
    if o['hack']: a('L_hs_skip:')
    if 'e' not in o['hack'] and 'y' not in o['hack']:
        a('buffer_store_dwordx4 %s, v25, s[%d:%d], s49 offen sc1' % (v(P, 4), SWS, SWS + 3))
        a('buffer_store_dwordx2 %s, v26, s[%d:%d], s49 offen offset:1024 sc1' % (v(P + 4, 2), SWS, SWS + 3))
    if o['pds']: a('ds_write_b128 v255, %s\nds_write_b64 v31, %s offset:1024' % (v(P, 4), v(P + 4, 2)))
    stC('C at BP')
    a('s_barrier')
    a('s_cmp_ge_u32 s20, 4\ns_cbranch_scc1 L_help2')
    if o['cprio'] or o['uprio']: a('s_setprio %d' % o['cprio'])
    stC('BP')
    def reads_W(p, ks):
        vp = (p >> 2) * 2 + (PC(p) & 1); tg = 'w%d%d' % (p, ks)
        r = ['ds_read_b128 %s, v%d offset:%d' % (v(F[ks] + 16 + 4 * q, 4), VA + ks, 12288 * vp + 2048 * q) for q in range(3)] + (wreads(F[ks], 16384 * WSLOT['w%d' % p] + 8192 * ks) if WSLOT['w%d' % p] < 4 else wreads(F[ks], 8192 * ks, 250))
        if (p, ks) == (0, 0) and o['fine0']:
            r = [r[0], r[3], r[4], r[1], r[2]] + r[5:]
            return [ds(x_, 'f%d' % i) for i, x_ in enumerate(r)]
        return [ds(x_, tg + ('lo' if i < 7 else 'hi')) for i, x_ in enumerate(r) if i >= 3 or not (o['alt'] and p & 1)]
    def wW(p, ks, more=()): return {0: 'f2', 1: 'f3', 2: 'f4', 3: 'f6', 6: 'f8', 9: 'f10'} if (p, ks) == (0, 0) and o['fine0'] else {0: ['w%d%dlo' % (p, ks)] + list(more), 6: ['w%d%dhi' % (p, ks)]}
    def vwpos(base, i, kt): return base + ([0, 2, 4][kt] if i % 2 == 0 else [8, 10, 6][kt])
    HACC = [B, A, B, A]; HDST = [C, C, B, B]
    def cvt_W(i): return [x_ for t in range(4) for kt in range(3) for x_ in cvt(vwpos(HDST[i] + 12 * t, i, kt), HACC[i] + 4 * (3 * t + kt))]
    def xb(nm): return [('s_waitcnt vmcnt(0)\n' if nm == o['ack'] and 'w' not in o['hack'] else '') + 's_barrier'] if nm in XN else []
    def xbc(nm):
        r_ = xb(nm)
        if r_ and o['vdry']: r_ = ['s_cbranch_execz %s\n%s\nL_xa_%s:' % ('L_vwret' if nm in o['vseg'] else 'L_xa_' + nm, r_[0], nm)]
        return r_
    def ins(lst, i, x_): return lst[:i] + [x_] + lst[i:]
    OS = [[108, 112, 116, 120, 124], [48, 52, 56, 60, 64], [80, 84, 88, 92, 96], [100, 128, 132, 68, 72]]; OACC = [[232, 236, 240], [32, 36, 40]]
    def rdO(kq):
        tg = 'os%d' % kq
        return [ds('ds_read_b128 %s, v%d offset:%d' % (v(OS[kq][kt], 4), OVA + (kq & 1), 12288 * (kq >> 1) + 2048 * kt), tg) for kt in range(3)] + \
               [ds('ds_read_b64_tr_b16 %s, v%d offset:%d' % (v(OS[kq][3 + e] + 2 * hh, 2), OA, 16384 * WSLOT['o%d' % e] + 4096 * kq + 512 * hh), tg) for e in range(2) for hh in range(2)]
    mfma_O = [MF % (v(OACC[e][kt], 4), v(OS[kq][kt], 4), v(OS[kq][3 + e], 4), v(OACC[e][kt], 4) if kq else '0') for kq in range(4) for e in range(2) for kt in range(3)]
    cvt_O = [x_ for e in range(2) for kt in range(3) for x_ in cvt(vwpos(VWO, e, kt), OACC[e][kt])]
    PFULL = [10, 11, 22, 23]; PHALF = [4, 5, 6, 7]; POF = [24, 21]; POH = [8, 9]
    padr = []
    for i in range(4):
        padr.append('s_xor_b32 s3, s53, %d\ns_mul_i32 s3, s3, 9216\ns_add_u32 s3, s3, s55' % i)
        padr.append('v_add_u32 v%d, s3, v25' % PFULL[i]); padr.append('v_add_u32 v%d, s3, v26' % PHALF[i])
        if i < 2:
            padr.append(('s_xor_b32 s3, s52, %d\ns_mul_i32 s3, s3, 9216\ns_add_u32 s3, s3, s55\n' % i if o['alt'] == 3 else '') + 's_add_u32 s3, s3, s54\nv_add_u32 v%d, s3, v25' % POF[i]); padr.append('v_add_u32 v%d, s3, v26' % POH[i])
    a('s_mul_i32 s55, s18, 4608\ns_and_b32 s54, s22, 1\ns_mul_i32 s54, s54, 4608\ns_sub_u32 s54, s54, s55\ns_add_u32 s55, s55, %d\ns_lshr_b32 s53, s16, 1\ns_xor_b32 s53, s53, s22\ns_xor_b32 s53, s53, 3' % L_P)
    if o['alt'] == 3: a('s_and_b32 s52, s22, 2\ns_xor_b32 s52, s52, s53')
    def preads(dst, fa, ha, qt, tag):
        off = 1536 * qt
        return [ds('ds_read_b128 %s, v%d offset:%d' % (v(dst[0], 4), fa[0], off), tag),
                ds('ds_read_b64 %s, v%d offset:%d' % (v(dst[1], 2), ha[0], off + 1024), tag),
                ds('ds_read_b64 %s, v%d offset:%d' % (v(dst[1] + 2, 2), ha[1], off + 1024), tag),
                ds('ds_read_b128 %s, v%d offset:%d' % (v(dst[2], 4), fa[1], off), tag)]
    PB = [[80 + 4 * k for k in range(6)], [108 + 4 * k for k in range(6)], [80 + 4 * k for k in range(6)]]
    def reads_F(qt): return preads(PB[qt][:3], PFULL[:2], PHALF[:2], qt, 'p%da' % qt) + preads(PB[qt][3:], PFULL[2:], PHALF[2:], qt, 'p%db' % qt)
    if o['vdry']: a('L_xa_BP:')
    run(reads_W(0, 0))
    for p in range(8):
        i = PC(p) >> 1; first = PC(p) & 1 == 0
        if p < 2: ex0, ex1 = (padr[:5], padr[5:10]) if p == 0 else (padr[10:], [] if o['vf'] == 1 else ['v_add_u32 v%d, %d, v%d' % (250 + t, L_P, WA + t) for t in range(4)])
        elif o['alt']:
            cv = cvt_W({3: 0, 4: 1, 7: 2}[p]) if p in (3, 4, 7) else []
            k_ = 12 if p != 4 else 10
            ex0, ex1 = cv[:k_], cv[k_:]
        else:
            cv = cvt_W(i - 1)
            ex0, ex1 = (cv[:6], cv[6:12]) if p % 2 == 0 else (cv[12:18], cv[18:])
        if 'E' in o['hack'] and p >= 6:
            st_ = lambda h: 'buffer_store_dwordx4 v[244:247], v25, s[%d:%d], s%d offen sc1\ns_add_u32 s%d, s%d, %d' % (SWS, SWS + 3, 56 + h, 56 + h, 56 + h, o['MQ'])
            if p == 6: ex1 = ex1 + [st_(0)]
            else: ex0 = ex0 + [st_(1)]; ex1 = ex1 + [st_(0)]
        step(mfma(HACC[i], 0, first, True), reads_W(p, 1), extra=ex0, xstart=(4 if p % 2 == 0 else 0) if not o['alt'] else 1, waits=wW(p, 0))
        step(mfma(HACC[i], 1, False, True), reads_W(p + 1, 0) if p < 7 else reads_F(0), extra=ex1, xstart=1, waits=wW(p, 1), pre=xbc('w%d' % p))
        stC('s%d' % p if p < 7 else 'VW end', 2 if p < 7 else 1)
    RACC = [[244, 248, 252, 104], [32, 36, 40, 44], [244, 248, 252, 104]]
    PK = [76, 12]; OP = [[108, 112, 116], [120, 124, 48], [52, 56, 60]]
    def fm(qt, t, k): return MF % (v(RACC[qt][t], 4), v([C, B][k // 3] + 12 * t + 4 * (k % 3), 4), v(PB[qt][k], 4), v(RACC[qt][t], 4) if k else '0')
    def store_F(qt, h):
        if o['own3'] == 2:
            pk = [76, 32, 44][qt] if h == 0 else PK[1]
            return cvt(pk, RACC[qt][2 * h]) + cvt(pk + 2, RACC[qt][2 * h + 1]) + ['buffer_store_dwordx4 %s, v%d, s[%d:%d], s%d offen sc1' % (v(pk, 4), 25 if h else 1, SWS, SWS + 3, 34 + 2 * qt + h)]
        if o['own3']:
            return cvt(PK[h], RACC[qt][2 * h]) + cvt(PK[h] + 2, RACC[qt][2 * h + 1]) + \
                ['buffer_store_dwordx4 %s, v%d, s[%d:%d], s%d offen sc1' % (v(PK[h], 4), 25 if h else 1, SWS, SWS + 3, 34 + 2 * qt + h)] + \
                (['s_mov_b64 exec, s[30:31]\nds_write_b128 v27, %s offset:%d\ns_mov_b64 exec, -1' % (v(PK[h], 4), 1024 * qt)] if h == 0 else [])
        l_ = 'L_own%d%d' % (qt, h)
        ownw = '\ns_cmp_lg_u32 s48, %d\ns_cbranch_scc1 %s\nds_write_b128 v27, %s offset:%d\n%s:' % (h, l_, v(PK[h], 4), 1024 * qt, l_) if o['own'] else ''
        if o['own'] and o['ownx']: ownw = '\ns_mov_b64 exec, s[%d:%d]\nds_write_b128 v27, %s offset:%d\ns_mov_b64 exec, -1' % (30 + 2 * h, 31 + 2 * h, v(PK[h], 4), 1024 * qt)
        return cvt(PK[h], RACC[qt][2 * h]) + cvt(PK[h] + 2, RACC[qt][2 * h + 1]) + \
               ['buffer_store_dwordx4 %s, v25, s[%d:%d], s%d offen sc1\ns_add_u32 s%d, s%d, %d' % (v(PK[h], 4), SWS, SWS + 3, 56 + h, 56 + h, 56 + h, o['MQ']) + ownw]
    def sflag(off): return 's_atomic_add s40, s[14:15], s42\ns_atomic_add s40, s[14:15], s43'
    if 'N' in o['hack']:
        sG = store_F
        def store_F(qt, h): return sG(qt, h)[:4]
    if 'E' in o['hack']:
        sF = store_F
        def store_F(qt, h):
            r_ = sF(qt, h)
            if (qt, h) == (0, 1): return r_[:4] + ['s_waitcnt vmcnt(2)\n' + flag(28, 0)]
            if (qt, h) == (1, 1): return r_[:4] + ['s_waitcnt vmcnt(1)\n' + flag(28, 128)]
            return r_ if qt == 2 else r_[:4]
    def flag(reg, off): return FOP + ' v29, v%d, s[%d:%d], 0 offen offset:%d sc1' % (reg, SWS, SWS + 3, off)
    m = [fm(0, t, k) for k in range(6) for t in range(4)]
    c3 = cvt_W(3)
    c3 = [c3[6 * t + j] for t in range(4) for j in (4, 5)] + [c3[6 * t + j] for t in range(4) for j in range(4)]
    step(m[:19], reads_F(1), extra=c3, xstart=3, waits={0: ['p0a'], 11: ['p0b']})
    step(m[19:], [], extra=[st_(1)] if 'E' in o['hack'] else [])
    if o['vdry']: a('s_cbranch_execz L_vwret')
    stC('R0', 2)
    m = [fm(1, t, k) for t in range(4) for k in range(6)]
    step(m[:17], reads_F(2), extra=store_F(0, 0) + store_F(0, 1), xstart=3, waits={0: ['p1a'], 3: ['p1b']})
    step(m[17:], [], extra=store_F(1, 0))
    stC('R1', 2)
    xo = o['xo']
    m = [fm(2, t, k) for t in range(4) for k in range(6)]
    step(m[:xo], [], extra=store_F(1, 1), xstart=4, waits={0: ['p2a'], 3: ['p2b']})
    seq = rdO(0) + rdO(1); k1 = min(14, 24 - xo)
    def ownw(qts): return 's_mov_b64 exec, s[30:31]\n' + '\n'.join('ds_write_b128 v27, %s offset:%d' % (v([76, 32, 44][q_], 4), 1024 * q_) for q_ in qts) + '\ns_mov_b64 exec, -1'
    step(m[xo:], seq[:k1], extra=store_F(2, 0) + ([ownw([1])] if o['own3'] == 2 else []), xstart=max(0, 18 - xo), pre=xb('O') + (['s_waitcnt vmcnt(2)\n' + flag(28, 0)] if o['f0at'] == 'R2' else []))
    stC('R2', 2)
    op = [x_ for qt in range(3) for x_ in preads(OP[qt], POF, POH, qt, 'po')]
    f0 = 's_waitcnt vmcnt(3)\n' + flag(28, 0)
    f1 = 's_waitcnt vmcnt(3)\n' + flag(28, 128)
    step(mfma_O[:12], seq[k1:] + rdO(2) + rdO(3), extra=store_F(2, 1) + ([flag(28, 256)] if 'c' in o['hack'] else []), xstart=4, waits={0: ['os0'], 6: ['os1']}, pre=[f0] if o['ef'] >= 1 and 'E' not in o['hack'] and o['f0at'] == 'O' else [])
    step(mfma_O[12:], op, waits={0: ['os2'], 6: ['os3']}, extra=[f1] if o['ef'] >= 2 and 'E' not in o['hack'] else [], xstart=o['e0'])
    stC('O', 2)
    def fo(k, first): return [MF % (v(SP + 4 * qt, 4), v(VWO + 4 * k, 4), v(OP[qt][k], 4), '0' if first else v(SP + 4 * qt, 4)) for qt in range(3)]
    run(cvt_O[:6])
    step(fo(0, True), [], extra=cvt_O[6:], waits={0: ['po']})
    run(fo(2, False) + fo(1, False))
    if o['ef'] == 0: a('s_waitcnt vmcnt(4)'); a(flag(28, 0))
    if o['ef'] < 2: a('s_waitcnt vmcnt(3)'); a(flag(28, 128))
    if o['e2']: a('s_waitcnt vmcnt(1)'); a(flag(28, 256))
    if 'r' in o['hack']: a('s_mov_b64 exec, 0xfc'); a(flag(30, 256)); a('s_mov_b64 exec, -1\ns_cmp_lg_u32 s21, 3\ns_cbranch_scc1 L_hr\ns_sleep 60\nL_hr:')
    for qt in range(3):
        run(cvt(VWO + 2 * qt, SP + 4 * qt) + ['buffer_store_dwordx2 %s, v%d, s[%d:%d], s58 offen sc1\ns_add_u32 s58, s58, %d' % (v(VWO + 2 * qt, 2), 3 if o['o64'] else 26, SWS, SWS + 3, o['OT'] * (2 if o['o64'] else 1))])
    stC('final end')
    if o['sent']:
        assert o['rep'] == 1 and o['atom']
        a('s_mov_b64 exec, 0xfc'); a(flag(30, 256 + (8 if 'r' in o['hack'] else 0))); a('s_mov_b64 exec, -1')
    if o['own3'] == 2:
        assert o['xe'] in ('E', 'G', 'H')
        a(ownw([0, 2]))
    if o['own'] and not (o['own3'] == 2 and o['xe'] == 'H'): a(W0)
    if o['xe'] == 'E': a('s_barrier')
    if not o['e2'] and 'c' not in o['hack']: a('s_waitcnt vmcnt(%d)' % ((5 if o['ef'] == 0 else 4) + o['sent'] - ('E' in o['hack']))); a(sflag(256) if o['sat'] & 1 else flag(28, 256))
    if o['xe'] == 'H': a((W0 + '\n' if o['own3'] == 2 else '') + 's_barrier')
    if 'b' not in o['hack']: a('s_waitcnt vmcnt(%d)' % (o['sent'] + (0 if o['e2'] or 'c' in o['hack'] or o['sat'] & 1 else 1)))
    a('s_mov_b64 exec, %s' % ('4' if o['ack1'] and o['sent'] and o['o64'] else '0xfcfc')); a(flag(30, 256 + 64 * o['sent'])); a('s_mov_b64 exec, -1')
    if o['xe'] == 'G': a('s_barrier')
    stC('flags sent')
    a(';WARM_OFF')
    stC.flush(0)
    a('s_endpgm')
    a('; ==== helpers')
    if o['padH']: a('.fill %d, 4, 0xbf800000' % o['padH'])
    a('L_help:')
    a('s_sub_u32 s18, s20, 5\ns_sub_u32 s52, s20, 1')
    a('v_lshlrev_b32 v25, 4, v0\nv_lshlrev_b32 v26, 3, v0')
    a('v_mov_b32 v12, 0\nv_mov_b32 v13, 0\nv_mov_b32 v14, 0\nv_mov_b32 v15, 0\nv_mov_b32 v29, 1\nv_mov_b32 v28, 0x7ff00000\nv_mov_b32 v30, v28\nv_mov_b32 v3, v28')
    a(W0)
    srd(SWS, 14, 'ws')
    if o['sent'] and o['clr'] == 'start': clears(False, 40, 44)
    def dry_run(name):
        a('s_mov_b64 exec, 0\ns_branch L_dry_%s\nL_dryret_%s:\ns_mov_b64 exec, -1' % (name, name))
    def warm_run(at):
        if o['dry'] and at == o['dryat'][0]: dry_run('mp')
        if o['dry'] and at == o['dryat'][1]: dry_run('op')
        if o['warm']:
            for c_, x_ in enumerate(o['wat']):
                if x_ == at: a('s_mov_b64 exec, 0\ns_branch L_wchain%d\nL_wret%d:\ns_mov_b64 exec, -1' % (c_, c_))
    if o['vdry']:
        a('s_cmp_lg_u32 s20, 6\ns_cbranch_scc1 L_nl\ns_cmp_ge_u32 s2, 32\ns_cbranch_scc1 L_nl\ns_lshl_b32 s3, s2, 12')
        for j in range(4): a('buffer_store_dwordx4 v[12:15], v25, s[%d:%d], s3 offen offset:%d sc1' % (SWS, SWS + 3, 1024 * j))
        a('L_nl:\ns_mov_b64 exec, 0\ns_cmp_eq_u32 s20, 5\ns_cbranch_scc1 L_xa_BP\ns_cmp_eq_u32 s20, 6\ns_cbranch_scc1 L_xa_%s\ns_branch L_xa_%s' % tuple(o['vseg']))
        a('L_vwret:\ns_mov_b64 exec, -1\ns_waitcnt lgkmcnt(0)\ns_nop 7')
        a('s_cmp_eq_u32 s20, 7\ns_cbranch_scc1 L_h2\ns_cmp_eq_u32 s20, 5\ns_cbranch_scc1 L_h0\ns_cmp_ge_u32 s2, 32\ns_cbranch_scc1 L_h0')
        if o['hs2']: a('s_waitcnt vmcnt(0)\ns_mov_b64 exec, 1\nglobal_atomic_add v12, v29, s[12:13] sc1\ns_mov_b64 exec, -1')
        else:
            a('s_lshl_b32 s3, s2, 2\nv_mov_b32 v16, s3\ns_waitcnt vmcnt(0)')
            a('s_mov_b64 exec, 1\nglobal_store_dword v16, v29, s[12:13] sc1\ns_mov_b64 exec, -1')
    else:
        a('s_cmp_eq_u32 s20, 7\ns_cbranch_scc1 L_h2')
        a('s_cmp_eq_u32 s20, 5\ns_cbranch_scc1 L_h0')
        a('s_cmp_ge_u32 s2, 32\ns_cbranch_scc1 L_h0')
        a('s_lshl_b32 s3, s2, 12')
        assert G_FL == 0
        for j in range(4): a('buffer_store_dwordx4 v[12:15], v25, s[%d:%d], s3 offen offset:%d sc1' % (SWS, SWS + 3, 1024 * j))
        if o['hs2']: a('s_waitcnt vmcnt(0)\ns_mov_b64 exec, 1\nglobal_atomic_add v12, v29, s[12:13] sc1\ns_mov_b64 exec, -1')
        else:
            a('s_lshl_b32 s3, s2, 2\nv_mov_b32 v16, s3\ns_waitcnt vmcnt(0)')
            a('s_mov_b64 exec, 1\nglobal_store_dword v16, v29, s[12:13] sc1\ns_mov_b64 exec, -1')
    a('L_h0:')
    unit_setup()
    for c in range(9 + o['b8a']):
        a('s_barrier')
        if c == 4: run(k_reads())
    a('s_branch L_unit')
    a('L_h2:')
    if not o['cpfL']: code_prefetch()
    def odd_prefetch():
        a(kvbase('s3') + '\ns_lshr_b32 s17, s2, 7\ns_lshl_b32 s17, s17, %d\ns_add_u32 s3, s3, s17\ns_lshl_b32 s3, s3, 4\ns_bfe_u32 s17, s2, 0x40003\ns_add_u32 s3, s3, s17\ns_mul_i32 s3, s3, %d\ns_add_u32 s3, s3, 1024' % (KL, 16 * 1152))
        a('v_mul_u32_u24 v7, 1152, v1\nv_add_u32 v7, s3, v7\ns_mov_b64 exec, 0xffff\nglobal_load_dword v37, v7, s[8:9]\ns_mov_b64 exec, -1')
    def tlb_touch():
        a('s_lshl_b32 s3, s2, 7\nv_lshlrev_b32 v7, 21, v0\nv_add_u32 v7, s3, v7\nv_add_u32 v8, 0x1f0000, v7')
        a('s_mov_b64 exec, 0x7f\nglobal_load_dword v32, v8, s[14:15]')
        if o['tlb'] in (1, 3):
            a('s_mov_b64 exec, 7\nglobal_load_dword v33, v7, s[8:9]')
            a('s_mov_b64 exec, 3\nglobal_load_dword v34, v7, s[4:5]\nglobal_load_dword v35, v7, s[6:7]')
        a('s_mov_b64 exec, 1\nglobal_load_dword v36, v7, s[10:11]\ns_mov_b64 exec, -1')
    if o['tlb'] in (1, 2): tlb_touch()
    hs = 's_load_dwordx16 s[84:99], s[12:13], 0%s\ns_load_dwordx16 s[28:43], s[12:13], 64%s'
    warm_run(-1)
    for c in range(10 + o['b8a'] + o['bs']):
        a('s_barrier')
        warm_run(c)
        if c == o['hsbar']: a('s_load_dword s84, s[12:13], 0' if o['hs2'] else hs % ('', ''))
        if c == o['oddpf']: odd_prefetch()
        if c == o['cpf2']: code_prefetch('L_pc2')
        if c == 0 and o['tlb'] == 3: tlb_touch()
        if c == 8 and o['tlb'] == 4: tlb_touch()
    if o['hs2']:
        a('s_waitcnt lgkmcnt(0)\ns_cmp_ge_u32 s84, 32\ns_cbranch_scc1 L_hsok\ns_mov_b32 s54, %d\nv_mov_b32 v12, 0' % SPIN)
        if 'C' in o['hack']: a('v_mov_b32 v20, 160\ns_mov_b64 exec, 1\nglobal_atomic_add v20, v29, s[12:13] sc1\ns_mov_b64 exec, -1')
        a('L_hs:\nglobal_load_dword v13, v12, s[12:13] sc1\ns_sub_u32 s54, s54, 1\ns_cbranch_scc1 L_hsok\ns_waitcnt vmcnt(0)\nv_cmp_gt_u32 vcc, 32, v13\ns_cbranch_vccnz L_hs\nL_hsok:')
    else:
        a('s_mov_b32 s54, %d\nL_hs:\ns_waitcnt lgkmcnt(0)' % SPIN)
        and16(84); and16(28); a('s_and_b32 s84, s84, s28')
        a('s_cbranch_scc1 L_hsok\ns_sub_u32 s54, s54, 1\ns_cbranch_scc1 L_hsok')
        if 'C' in o['hack']: a('v_mov_b32 v20, 160\ns_mov_b64 exec, 1\nglobal_atomic_add v20, v29, s[12:13] sc1\ns_mov_b64 exec, -1')
        a(hs % (' glc', ' glc')); a('s_branch L_hs\nL_hsok:')
    a('s_barrier')
    if o['oddpf'] == 11: odd_prefetch()
    if o['cpf2'] == 11: code_prefetch('L_pc2')
    a('L_help2:')
    run(xb('w0'))
    a('s_mul_i32 s17, s18, 3072')
    srd(SOUT, 10, 'out')
    a('s_lshl_b32 s3, s2, 9\ns_lshl_b32 s53, s18, 7\ns_add_u32 s62, s3, s53\ns_add_u32 s66, s14, s62\ns_addc_u32 s67, s15, 0')
    a('s_and_b32 s3, s2, 0xe7\ns_lshl_b32 s3, s3, 9\ns_add_u32 s53, s53, s3\n' + ('' if o['atom'] else 's_lshl_b32 s3, s22, 2\ns_add_u32 s53, s53, s3\n') + 'v_lshlrev_b32 v21, 12, v0')
    a('s_mul_i32 s55, s2, %d\ns_mul_i32 s56, s18, %d\ns_add_u32 s55, s55, s56\ns_add_u32 s55, s55, %d\ns_add_u32 s56, s55, 4096' % (o['MO'], o['MQ'], G_PM))
    a('s_lshl_b32 s59, s23, 1\ns_lshr_b32 s3, s21, 2\ns_add_u32 s59, s59, s3\ns_mul_i32 s59, s59, 3\ns_add_u32 s59, s59, s18\ns_mul_i32 s59, s59, %d' % (16 * 1152))
    a('s_lshl_b32 s3, s22, 8\ns_add_u32 s59, s59, s3\ns_and_b32 s3, s21, 3\ns_lshl_b32 s3, s3, 6\ns_add_u32 s59, s59, s3')
    def pfetch(d):
        a('s_add_u32 m0, s17, %d\ns_xor_b32 s58, s2, %d\ns_mul_i32 s58, s58, 9216\ns_add_u32 s58, s58, s17\ns_add_u32 s58, s58, %d' % (L_P + 9216 * (3 - d), d << 3, G_P))
        for j in range(3):
            if 'e' not in o['hack'] and 'x' not in o['hack']: a('buffer_load_dwordx4 v25, s[%d:%d], s58 offen offset:%d sc1 lds' % (SWS, SWS + 3, 1024 * j))
    xs = [x_ for x_ in XN[:-1] if x_[0] == 'w' and x_ != 'w0']
    k = 0
    while True:
        nm = xs[k]; k += 1
        run(xb(nm))
        if nm == o['ack']:
            if o['sat'] & 2:
                a('s_mov_b32 s40, 1')
                for d in (1, 2, 3): a('s_xor_b32 s3, s62, %d\ns_atomic_add s40, s[14:15], s3' % (d << 12))
            else:
                a('s_mov_b64 exec, 15' + ('\ns_bitset0_b64 exec, s22' if o['noself'] else '') + '\n' + FOP + ' v29, v21, s[%d:%d], s53 offen sc1\ns_mov_b64 exec, -1' % (SWS, SWS + 3))
            stH('P flag sent')
        if o['ownp'] and not o['pds'] and nm == o['ownat']: pfetch(0)
        if o['sent'] and nm == o['clr']: clears()
        if nm == o['poll0']: break
    assert xs.index(o['ack']) < k and (o['vf'] == 1 or ALLN.index(xs[k]) >= ALLN.index('w5' if o['vf'] else 'w4')) and k < len(xs) - 1
    a('s_mov_b32 s54, %d\ns_mov_b32 s52, %d' % (SPIN, len(xs) - 1 - k))
    a('L_pp:\n' + ('s_load_dword s84' if o['atom'] else 's_load_dwordx4 s[84:87]') + ', s[66:67], 0 glc')
    a('s_cmp_eq_u32 s52, 0\ns_cbranch_scc1 L_pp1\ns_barrier\ns_sub_u32 s52, s52, 1\nL_pp1:')
    a('s_sub_u32 s54, s54, 1\ns_cbranch_scc1 L_ppok\ns_waitcnt lgkmcnt(0)')
    a(('' if o['atom'] else 's_add_u32 s84, s84, s85\ns_add_u32 s86, s86, s87\ns_add_u32 s84, s84, s86\n') + 's_cmp_%s_u32 s84, %d\ns_cbranch_scc0 L_pp\nL_ppok:' % ('le' if 'a' in o['hack'] else 'ge', 4 - o['noself']))
    stH('P flags ok')
    if 'S' in o['hack']:
        a('s_mul_i32 s19, s18, %d\nL_sg:\ns_cmp_eq_u32 s19, 0\ns_cbranch_scc1 L_sgd\ns_cmp_eq_u32 s52, 0\ns_cbranch_scc1 L_sgd\ns_barrier\ns_sub_u32 s52, s52, 1\ns_sub_u32 s19, s19, 1\ns_branch L_sg\nL_sgd:' % o.get('sk', 1))
    for d in range(o['ownp'], 4): pfetch(d)
    if o['sent'] and o['clr'] == 'p': clears()
    a('L_pb:\ns_cmp_eq_u32 s52, 0\ns_cbranch_scc1 L_pbd\ns_barrier\ns_sub_u32 s52, s52, 1\ns_branch L_pb\nL_pbd:')
    if 'S' in o['hack']: a('s_cmp_lg_u32 s18, 0\ns_cbranch_scc1 L_now')
    a('s_waitcnt vmcnt(%d)' % (2 if o['sent'] and o['clr'] == 'p' else 0))
    if 'S' in o['hack']: a('L_now:')
    stH('P landed')
    a('s_barrier')
    if o['sent'] and o['clr'] == 'w7' and 'Z' not in o['hack']: clears()
    a('s_waitcnt vmcnt(0)\ns_barrier')
    if 'f' in o['hack']: a('s_endpgm')
    a('s_mov_b32 s54, %d' % SPIN)
    a('s_lshl_b32 s3, s18, 10\ns_add_u32 s3, s3, %d\nv_add_u32 v27, s3, v25' % L_F)
    reduce('mp', 8, 4, MOFF, 25, 's59', stH)
    if stamps:
        a('s_waitcnt vmcnt(0)'); stH('end'); stH.flush(7)
    a('L_end:\ns_endpgm\nL_codeend:')
    a(kernel_desc(KN, 256, 256, o.get('nsgpr', 102)))
    if o['warm']:
        def size(l):
            t = l.split(';')[0].strip()
            if not t or t.endswith(':') or t.startswith('.'): return 0
            return 8 if t.startswith(('v_mfma', 'ds_', 'buffer_', 'global_', 'v_cvt_pk', 'v_pk_', 'v_max3', 's_load')) else 4.6
        out = []; on = False; acc = 0; pads = []
        for l in a.lines:
            if l == ';WARM_ON': on = True; acc = 1e9; continue
            if l == ';WARM_OFF': on = False; continue
            if on and acc >= o['wstep'] and size(l) and not l.startswith(('ds_write', 's_mov_b64 exec', 'buffer_atomic', 's_cbranch', 's_cselect', 's_addc')):
                pads.append(len(out)); out.append(None); acc = 4
            out.append(l); acc += size(l)
        n = len(pads); NC = len(o['wat']); per = -(-n // NC)
        order = list(range(n - 1, -1, -1))
        for j, k in enumerate(order):
            last = (j + 1) % per == 0 or j + 1 == n
            out[pads[k]] = 'L_wp%d:\ns_cbranch_execz %s' % (k, 'L_wret%d' % (j // per) if last else 'L_wp%d' % order[j + 1])
        txt = '\n'.join(out)
        for c_ in range(NC): txt = txt.replace('L_wchain%d' % c_, 'L_wp%d' % order[c_ * per] if c_ * per < n else 'L_wret%d' % c_)
        a.lines = txt.split('\n')
    else: a.lines = [l for l in a.lines if not l.startswith(';WARM')]
    a.lines = hazard.pad(a.lines, False)
    return a.text()
if __name__ == '__main__':
    import json
    name = sys.argv[1] if len(sys.argv) > 1 else 'p8_v11'
    opt = json.loads(sys.argv[2]) if len(sys.argv) > 2 else None
    open(name + '.s', 'w').write(gen(0, opt))
    open(name + '_st.s', 'w').write(gen(1, opt))
    open(name + '_st2.s', 'w').write(gen(2, opt))
    open(name + '_st3.s', 'w').write(gen(3, opt))
    open(name + '_st4.s', 'w').write(gen(4, opt))
```

```python
import sys, math, struct
from asmlib import *
import hazard
from gen_f16 import Cnt, interleave, f2i, v

L_W = 0; L_X0 = 49152; XOFF = [0, 12288, 49152]; L_K = 73728; L_Q = 49152; L_P = 73728; L_F = 159744; L_V = 110592
G_FL = 0x0
G_P = 0x40000
G_PM = 0x400000
G_PO = 0xD00000
SX, SWQ, SK, SV, SWO, SWS, SOUT = 24, 28, 32, 36, 40, 44, 48
SPIN = 1 << 16
MF = 'v_mfma_f32_16x16x32_bf16 %s, %s, %s, %s'

HEADER = """; Kernarg layout (64 bytes, pointers only, base s[0:1]):
;
; Hand-offs: data is stored write-through (sc1); after the stores are acknowledged the producer bumps a counter of the consumer
;   (device-scope atomic); the consumer polls it and then loads with sc1.  Counters are zeroed inside the launch by workgroups 0..31,
;   which report through a counter in debug.  The last, small hand-off is signalled before the acknowledgement: its slots are first filled with
;   a NaN marker in this launch, and a consumer that still sees a NaN waits for the acknowledged counter and reads again.
;   Nothing depends on workgroup placement except speed; every poll loop is bounded.
;            | 110592 V (4x12K) | 159744 own partial chunks.  Tiles are XOR-swizzled on the global side of the DMA."""

def gen(stamps=0, opt=None):
    o = dict(order='qqqKqqqqqq', win=24, codepf=True, rot='g3', pk=True, lprio=0, afterB8=1, afterBQ=4, ack='w1', poll0='w3', cprio=0, prog=False, x4=True, xo=14, ef=2, xe='', sent=1, clr='w7', e2=0, nt={}, split=1, uprio=0, early_flag=True, outsc='sc1', oddsc=None, btr=0, opre=0, o64=1, ack1=1, vdry=0, sub='', hoist=1, pre=0, lead=12, mimic=0, hs2=1, fo2=1, asap=0, repn=['op', 'mp'], ownlast=0, ocl=1, shc=1, ldr=[-1, -1], guard=[60, 44], leadk=1, lead0=2, vseg=['w2', 'w5'], first_half=False, hsbar=8, poll='s', psleep=0, tlb=0, remap=0, oddpf=8, rot2=1, lateat=3, own=1, ownx=1, tramp=[], far=0, alt=3, klate=1, pds=1, own3=1, bs=0, vf=0, sat=0, dry=1, dryat=[-1, 0], cpf2=-9, qseq='', f0at='O', MQ=7168, MO=21504, OT=8192, kvmap=9, bm=0, cpfL=1, acc=1, warm=0, wstep=960, wat=[-1, 0, 1], padL=0, padC=0, padH=0, b8a=0, tm=1, q64=2, stlb=0, hack='', atom=1, rep=1, wsw=1, ownp=1, atune=0, oe=0, hsbar_=0, ownat='w3', e0=8, e1='end', m0o=1, rsl=6, qs=5, fine0=1, wqfirst=0, skip=['w0'], noself=1)
    if opt: o.update(opt)
    if stamps in (2, 3): o['pre'] = 0
    if o['klate']: o['order'] = 'q' * 9; o['q64'] = 3; o.setdefault('pre8', ['k0'] if 'plan' in o else ['k0', 'v0'])
    a = Asm()
    a(HEADER)
    a('; @launch grid=(256,1,1) block=(512,1,1) lds=163840')
    a(HEAD); a(kernel_begin(KN))
    def run(seq):
        for x in seq:
            if callable(x): x()
            else: a(x)
    class St:
        def __init__(s, base, n, r0): s.base = base; s.n = n; s.k = 0; s.r0 = r0
        def __call__(s, name='x', lvl=1):
            if ((stamps >= lvl and lvl < 2) or stamps == lvl) and (stamps != 5 or name in ('start', 'final end')):
                assert s.k < s.n, name
                a('; stamp %d %s' % (s.base + s.k, name))
                a('s_memrealtime s[%d:%d]' % (s.r0 + 2 * s.k, s.r0 + 1 + 2 * s.k)); s.k += 1
        def flush(s, wave):
            if stamps and s.k:
                l_ = a.label('L_nst')
                a('s_cmp_lg_u32 s20, %d\ns_cbranch_scc1 %s' % (wave, l_))
                a('s_waitcnt lgkmcnt(0)\nv_mov_b32 v31, 0\ns_lshl_b32 s3, s2, 9\ns_add_u32 s3, s3, %d' % (STAMP_OFF + 8 * s.base))
                for i in range(s.k):
                    a('v_mov_b32 v254, s%d\nv_mov_b32 v255, s%d' % (s.r0 + 2 * i, s.r0 + 1 + 2 * i))
                    a('buffer_store_dwordx2 v[254:255], v31, s[%d:%d], s3 offen offset:%d' % (SWS, SWS + 3, 8 * i))
                a(l_ + ':')
    stC = St(0, 21, 60); stL = St(24, 17, 68); stH = St(44, 6, 32)
    W0 = 's_waitcnt lgkmcnt(0)'
    def XS(c): return [0, 12288, 49152, 24576][(c + 2) % 4] if o['lead'] else XOFF[c % 3]
    KL = o['kvmap'] - 9; KJ = 1 << KL
    def kvbase(dst):
        src = 's21'
        if KL == 0: return 's_lshl_b32 %s, s21, 1' % dst
        if KL == 3: return 's_mov_b32 %s, s21' % dst
        return 's_and_b32 %s, s21, %d\ns_add_u32 %s, %s, s21' % (dst, 7 & ~(KJ - 1), dst, dst)
    def PC(p): return (p & 4) | ((p & 1) << 1) | ((p >> 1) & 1) if o['alt'] else p
    FOP = 'buffer_atomic_add' if o['atom'] else 'buffer_store_dword'
    MOFF = (4 if o['rep'] > 1 else 64) if o['atom'] else 32
    OOFF = 4 if o['rep'] > 1 else 0
    assert o['rep'] in (1, 2) and (o['atom'] or o['rep'] == 1)
    stC('start')
    a('s_cmp_ge_u32 s2, 256\ns_cbranch_scc1 L_end')
    a('s_load_dwordx2 s[%d:%d], s[0:1], %d' % (SX, SX + 1, SLOT['x']))
    a('s_load_dwordx2 s[%d:%d], s[0:1], %d' % (SWQ, SWQ + 1, SLOT['wq']))
    a('s_load_dwordx4 s[4:7], s[0:1], %d' % SLOT['k'])
    a('s_load_dwordx8 s[8:15], s[0:1], %d' % SLOT['wo'])
    if o['remap'] == 1: a('s_lshr_b32 s3, s2, 2\ns_and_b32 s3, s3, 0x18\ns_xor_b32 s2, s2, s3')
    if o['remap'] == 2: a('s_lshr_b32 s3, s2, 3\ns_and_b32 s3, s3, 0x18\ns_lshl_b32 s21, s2, 2\ns_and_b32 s21, s21, 0xe0\ns_and_b32 s2, s2, 7\ns_or_b32 s2, s2, s3\ns_or_b32 s2, s2, s21')
    if o['remap'] == 3: a('s_xor_b32 s2, s2, 0x18')
    if o['remap'] == 4: a('s_bfe_u32 s3, s2, 0x10002\ns_and_b32 s21, s2, 3\ns_lshl1_add_u32 s3, s21, s3\ns_and_b32 s2, s2, 0xf8\ns_or_b32 s2, s2, s3')
    if o['remap'] == 5: a('s_xor_b32 s2, s2, 1')
    a('v_lshrrev_b32 v1, 6, v0\nv_and_b32 v0, 63, v0\nv_readfirstlane_b32 s20, v1')
    if o['wsw']: a('s_xor_b32 s20, s20, 4')
    a('s_and_b32 s21, s2, 7\ns_bfe_u32 s22, s2, 0x20003\ns_lshr_b32 s23, s2, 5')
    a('v_and_b32 v1, 15, v0\nv_lshrrev_b32 v2, 4, v0')
    def srd(r, src, n):
        if src is not None: a('s_mov_b32 s%d, s%d\ns_mov_b32 s%d, s%d' % (r, src, r + 1, src + 1))
        a('s_mov_b32 s%d, %d\ns_mov_b32 s%d, 0x20000' % (r + 2, SIZES[n], r + 3))
    H0 = 's_and_b32 s16, s22, 2\ns_add_u32 s16, s16, s22\ns_xor_b32 s16, s16, s23'
    if o['rot2'] == 1: H0 = 's_and_b32 s16, s22, 2\ns_xor_b32 s16, s16, s23\ns_and_b32 s16, s16, 3\ns_lshl_b32 s16, s16, 1'
    if o['rot2'] == 2: H0 = 's_and_b32 s16, s22, 2\ns_lshl_b32 s16, s16, 1\ns_xor_b32 s16, s16, s23'
    if o['rot2'] == 3: H0 = 's_and_b32 s16, s23, 3\ns_lshl_b32 s16, s16, 1\ns_and_b32 s3, s22, 2\ns_add_u32 s3, s3, s22\ns_xor_b32 s16, s16, s3'
    if o['rot2'] == 4: H0 = 's_lshr_b32 s16, s22, 1\ns_xor_b32 s16, s16, s23\ns_and_b32 s16, s16, 1\ns_lshl_b32 s16, s16, 2'
    if o['alt'] == 1: H0 = 's_xor_b32 s16, s22, s23\ns_and_b32 s3, s16, 2\ns_and_b32 s16, s16, 3\ns_add_u32 s16, s16, s3'
    if o['alt'] == 2: H0 = 's_and_b32 s16, s22, 2\ns_xor_b32 s16, s16, s23\ns_and_b32 s3, s16, 2\ns_and_b32 s16, s16, 3\ns_add_u32 s16, s16, s3'
    if o['alt'] == 3: H0 = 's_and_b32 s16, s22, 1\ns_xor_b32 s16, s16, s23\ns_and_b32 s16, s16, 3'
    if o['alt'] == 4: H0 = 's_and_b32 s16, s22, 1\ns_xor_b32 s16, s16, s23\ns_and_b32 s16, s16, 3\ns_and_b32 s3, s22, 2\ns_lshl1_add_u32 s16, s3, s16'
    for i_ in range(len(o['tramp'])): a('s_cmp_eq_u32 s20, %d\ns_cbranch_scc1 L_tr%d' % (i_, i_))
    a('s_cmp_lt_u32 s20, 4\ns_cbranch_scc1 L_comp')
    a('s_cmp_gt_u32 s20, 4\ns_cbranch_scc1 L_help')
    def gpoll(name, nw, off, single=False):
        sl = ('s_sleep %d\n' % o['psleep']) if o['psleep'] else ''
        if name == 'op' and o['ocl'] > 1:
            ls = [0, 3] if o['ocl'] == 2 else [0, 1, 2, 3]
            a('L_op:')
            for i, l_ in enumerate(ls): a('s_load_dword s%d, s[66:67], %d glc' % (84 + i, 128 * l_ + 8))
            a('s_sub_u32 s54, s54, 1\ns_cbranch_scc1 L_opok\ns_waitcnt lgkmcnt(0)')
            for i in range(1, len(ls)): a('s_add_u32 s84, s84, s%d' % (84 + i))
            a('s_cmp_lt_u32 s84, 32\ns_cbranch_scc1 L_op\nL_opok:')
        elif o['rep'] == 2 and not single and name in o['repn']:
            a(W0 + '\ns_mov_b64 s[84:85], 0\ns_load_dword s85, s[66:67], %d glc\ns_sleep %d' % (off + 64, o['rsl']))
            a('L_%s:' % name)
            for r_ in range(2):
                a('s_load_dword s%d, s[66:67], %d glc\ns_waitcnt lgkmcnt(1)\ns_max_u32 s30, s84, s85\ns_cmp_ge_u32 s30, %d\ns_cbranch_scc1 L_%sok' % (84 + r_, off + 64 * r_, nw, name))
            a('s_sub_u32 s54, s54, 1\ns_cbranch_scc0 L_%s\nL_%sok:' % (name, name))
        elif o['atom']:
            a('L_%s:\n%ss_load_dword s84, s[66:67], %d glc\ns_sub_u32 s54, s54, 1\ns_cbranch_scc1 L_%sok\ns_waitcnt lgkmcnt(0)' % (name, sl, off, name))
            a('s_cmp_lt_u32 s84, %d\ns_cbranch_scc1 L_%s\nL_%sok:' % (nw, name, name))
        elif o['poll'] == 'p':
            a(W0)
            for i in range(0, nw, 2): a('s_mov_b64 s[%d:%d], 0' % (84 + i, 85 + i))
            a('L_%s:\ns_load_dwordx%d s[84:%d], s[66:67], %d glc\n%ss_sub_u32 s54, s54, 1\ns_cbranch_scc1 L_%sok' % (name, nw, 83 + nw, off, sl, name))
            a('s_and_b64 s[30:31], s[84:85], s[86:87]')
            for i in range(4, nw, 2): a('s_and_b64 s[30:31], s[30:31], s[%d:%d]' % (84 + i, 85 + i))
            a('s_and_b32 s30, s30, s31\ns_cbranch_scc0 L_%s\nL_%sok:' % (name, name))
        elif o['poll'] == 's':
            a('L_%s:\n%ss_load_dwordx%d s[84:%d], s[66:67], %d glc\ns_sub_u32 s54, s54, 1\ns_cbranch_scc1 L_%sok\ns_waitcnt lgkmcnt(0)' % (name, sl, nw, 83 + nw, off, name))
            k = nw
            while k > 2:
                k //= 2
                for i in range(0, k, 2): a('s_and_b64 s[%d:%d], s[%d:%d], s[%d:%d]' % (84 + i, 85 + i, 84 + i, 85 + i, 84 + k + i, 85 + k + i))
            a('s_and_b32 s84, s84, s85\ns_cbranch_scc0 L_%s\nL_%sok:' % (name, name))
        else:
            a('v_and_b32 v19, %d, v0\nv_lshlrev_b32 v19, 2, v19' % (nw - 1))
            a('L_%s:\n%sbuffer_load_dword v18, v19, s[%d:%d], s62 offen offset:%d sc1\ns_sub_u32 s54, s54, 1\ns_cbranch_scc1 L_%sok\ns_waitcnt vmcnt(0)' % (name, sl, SWS, SWS + 3, off, name))
            a('v_cmp_ne_u32 vcc, 1, v18\ns_cbranch_vccnz L_%s\nL_%sok:' % (name, name))
    def code_prefetch(lab='L_pc'):
        if o['codepf']:
            a('s_getpc_b64 s[66:67]\n%s:\ns_sub_u32 s66, s66, %s-%s\ns_subb_u32 s67, s67, 0' % (lab, lab, KN))
            a('s_lshr_b32 s3, s2, 3\ns_lshl_b32 s3, s3, 7\nv_lshlrev_b32 v100, 12, v0\nv_add_u32 v100, s3, v100')
            a('v_mov_b32 v103, s67\nv_add_co_u32 v102, vcc, s66, v100\nv_addc_co_u32 v103, vcc, 0, v103, vcc')
            a('v_cmp_gt_u32 vcc, L_codeend-%s, v100\ns_and_saveexec_b64 s[64:65], vcc' % KN)
            a('global_load_dword v101, v[102:103], off')
            a('s_mov_b64 exec, s[64:65]')
    def clears(all12=False, va=4, vd=12):
        a('s_lshl_b32 s3, s23, 1\ns_and_b32 s58, s22, 1\ns_add_u32 s3, s3, s58\ns_mul_i32 s3, s3, 3\n' + ('' if all12 else 's_add_u32 s3, s3, s18\n') + 's_mul_i32 s58, s3, %d' % (4 * o['OT']))
        a('s_lshl_b32 s3, s21, 1\ns_lshr_b32 s59, s22, 1\ns_add_u32 s3, s3, s59\ns_lshl_b32 s3, s3, 9\ns_add_u32 s58, s58, s3\ns_add_u32 s58, s58, %d' % G_PO) if all12 else \
        a('s_lshl_b32 s3, s21, 1\ns_lshr_b32 s57, s22, 1\ns_add_u32 s3, s3, s57\ns_lshl_b32 s3, s3, 9\ns_add_u32 s58, s58, s3\ns_add_u32 s58, s58, %d' % G_PO)
        a('v_and_b32 v%d, 31, v0\nv_lshrrev_b32 v%d, 5, v0\nv_mul_u32_u24 v%d, %d, v%d\nv_lshl_add_u32 v%d, v%d, 4, v%d' % (va, va + 1, va + 1, o['OT'], va + 1, va, va, va + 1))
        if 'Y' in o['hack']: a('s_cmp_ge_u32 s21, 4\ns_cselect_b32 s58, 0x7ff00000, s58')
        for i in range(4): a('v_mov_b32 v%d, -1' % (vd + i))
        for i in range(6 if all12 else 2):
            if i: a('s_add_u32 s58, s58, %d' % (2 * o['OT']))
            a('buffer_store_dwordx4 v[%d:%d], v%d, s[%d:%d], s58 offen sc1' % (vd, vd + 3, va, SWS, SWS + 3))
            if all12: vm.issue('clr')
    a('; ==== loader: pulls its share of this code into L2, streams 9 chunks of x | wq (rotated start), then K, V parts and wo pieces')
    vm = Cnt(a, 'vmcnt', 63)
    XV, WV, OV, KV, DV, VV = 8, 12, 16, 20, 24, 28
    if o['lprio']: a('s_setprio %d' % o['lprio'])
    if o['cpfL']: code_prefetch()
    srd(SX, None, 'x'); srd(SWQ, None, 'wq')
    a('v_lshrrev_b32 v3, 3, v0\nv_and_b32 v4, 7, v0')
    def quad(base, step):
        a('v_xor_b32 v7, 64, v%d\nv_add_u32 v%d, %d, v7' % (base, base + 1, step))
        a('v_add_u32 v%d, %d, v%d\nv_add_u32 v%d, %d, v%d' % (base + 2, 2 * step, base, base + 3, 2 * step, base + 1))
    a('v_mul_u32_u24 v5, 1152, v3\nv_xor_b32 v32, v4, v2\nv_lshl_add_u32 v%d, v32, 4, v5' % XV)
    quad(XV, 8 * 1152 - 1024)
    a('v_lshlrev_b32 v6, 1, v2\nv_xor_b32 v6, v6, v1\nv_lshlrev_b32 v6, 4, v6')
    a('v_lshl_add_u32 v%d, v2, 13, v6' % WV)
    a('v_add_u32 v%d, %d, v%d' % (WV + 1, 4 * 8192 - 1024, WV))
    a('v_xor_b32 v7, 128, v%d\nv_add_u32 v%d, %d, v7\nv_add_u32 v%d, %d, v7' % (WV, WV + 2, 2 * (4 * 8192 - 1024), WV + 3, 3 * (4 * 8192 - 1024)))
    if o['rot'] == 'g3':
        a('s_add_u32 s17, s22, s23\ns_mul_i32 s3, s17, 43\ns_lshr_b32 s3, s3, 7\ns_mul_i32 s3, s3, 3\ns_sub_u32 s17, s17, s3\ns_mul_i32 s17, s17, 3')
    elif o['rot'] in ('g3x', 'g3y', 'g3b'):
        a('s_add_u32 s17, s22, s23\ns_mul_i32 s3, s17, 43\ns_lshr_b32 s3, s3, 7\ns_mul_i32 s3, s3, 3\ns_sub_u32 s17, s17, s3\ns_mul_i32 s17, s17, 3')
        if o['rot'] == 'g3x': a('s_add_u32 s17, s17, s21')
        else: a('s_lshr_b32 s3, s21, %d\ns_add_u32 s17, s17, s3' % (2 if o['rot'] == 'g3y' else 1))
        a('s_cmp_ge_u32 s17, 9\ns_cselect_b32 s3, 9, 0\ns_sub_u32 s17, s17, s3')
    elif o['rot'] == 'g4':
        a('s_add_u32 s17, s22, s23\ns_and_b32 s17, s17, 3\ns_mul_i32 s17, s17, 9\ns_lshr_b32 s17, s17, 2')
    elif o['rot'] == 'g2':
        a('s_add_u32 s17, s22, s23\ns_and_b32 s17, s17, 1\ns_mul_i32 s17, s17, 5')
    elif o['rot'] == 'g9':
        a('s_lshl_b32 s17, s22, 1\ns_add_u32 s17, s17, s23\ns_cmp_ge_u32 s17, 9\ns_cselect_b32 s3, 9, 0\ns_sub_u32 s17, s17, s3')
    else: a('s_mov_b32 s17, 0')
    a('s_mul_i32 s52, s23, 110592')
    if 'm' in o['hack']: a('s_lshl_b32 s53, s21, 9\ns_and_b32 s3, s22, 2\ns_lshl_b32 s3, s3, 11\ns_add_u32 s53, s53, s3\ns_and_b32 s3, s22, 1\ns_lshl_b32 s3, s3, 8\ns_add_u32 s53, s53, s3')
    elif 'n' in o['hack']: a('s_lshl_b32 s53, s21, 8\ns_lshl_b32 s3, s22, 11\ns_add_u32 s53, s53, s3')
    elif 'p' in o['hack']: a('s_lshl_b32 s53, s21, 10\ns_xor_b32 s3, s22, 3\ns_lshl_b32 s3, s3, 8\ns_add_u32 s53, s53, s3')
    elif KL: a(kvbase('s53') + '\ns_lshl_b32 s53, s53, 9\ns_lshr_b32 s3, s22, 1\ns_lshl_b32 s3, s3, %d\ns_add_u32 s53, s53, s3\ns_and_b32 s3, s22, 1\ns_lshl_b32 s3, s3, 8\ns_add_u32 s53, s53, s3' % o['kvmap'])
    else: a('s_lshl_b32 s53, s21, 10\ns_lshl_b32 s3, s22, 8\ns_add_u32 s53, s53, s3')
    a('s_waitcnt lgkmcnt(0)')
    stL('L kernarg')
    if o['stlb'] >= 1:
        a('s_lshl_b32 s57, s17, 19\ns_add_u32 s57, s57, s53\ns_load_dword s58, s[%d:%d], s57' % (SWQ, SWQ + 1))
    if o['stlb'] >= 2:
        a('s_mov_b32 s57, 0x200000\ns_mov_b32 s59, 0x400000')
        for base in (SWQ, 8, 4, 6): a('s_load_dword s58, s[%d:%d], 0\ns_load_dword s58, s[%d:%d], s57' % (base, base + 1, base, base + 1))
        for base in (SWQ, 8): a('s_load_dword s58, s[%d:%d], s59' % (base, base + 1))
    ndma = [0]
    def group(vreg, n, srd_, lds, tag, adv=None, dyn=None, so='s57'):
        seq = [('s_add_u32 m0, %s, %d' % (dyn, lds) if dyn else 's_mov_b32 m0, %d' % lds) + ('\ns_add_u32 s57, s57, %s' % adv if adv else '')]
        for j in range(n):
            def f(j=j):
                ndma[0] += 1
                if ndma[0] - 1 in o['tramp']:
                    i_ = o['tramp'].index(ndma[0] - 1)
                    a('s_branch L_ov%d\nL_tr%d:\ns_branch L_comp\nL_ov%d:' % (i_, i_, i_))
                if len(vm.seq) >= o['guard'][0]:
                    a('s_waitcnt vmcnt(%d)' % o['guard'][1]); vm.seq = vm.seq[-o['guard'][1]:]
                a('buffer_load_dwordx4 v%d, s[%d:%d], %s offen offset:%d %s lds' % (vreg + j, srd_, srd_ + 3, so, 1024 * j, o['nt'].get({SX: 'x', SWQ: 'q', SK: 'k', SV: 'v', SWO: 'o'}[srd_] + tag[-1], o['nt'].get({SX: 'x', SWQ: 'q', SK: 'k', SV: 'v', SWO: 'o'}[srd_], '')))); vm.issue(tag)
            seq.append(f)
        return seq
    def g8(vreg, n, sb, lds, tag):
        seq = []
        for j in range(n):
            if j % 8 == 0: seq.append('s_mov_b32 m0, %d' % (lds + 1024 * j + 4096))
            def f(j=j):
                if len(vm.seq) >= o['guard'][0]:
                    a('s_waitcnt vmcnt(%d)' % o['guard'][1]); vm.seq = vm.seq[-o['guard'][1]:]
                a('global_load_lds_dwordx4 v%d, s[%d:%d] offset:%d' % (vreg + j, sb, sb + 1, 1024 * (j % 8) - 4096)); vm.issue(tag)
            seq.append(f)
        return seq
    subs = {}
    def call(name, groups, tag, setup):
        if name not in subs:
            t_ = ['L_sub_%s:' % name]
            for vreg, n, srd_, mb, mi, so, adv in groups:
                t_.append('s_add_u32 m0, %s, %d' % (mb, mi))
                if adv: t_.append('s_add_u32 %s, %s, %d' % (so, so, adv))
                for j in range(n): t_.append('buffer_load_dwordx4 v%d, s[%d:%d], %s offen offset:%d lds' % (vreg + j, srd_, srd_ + 3, so, 1024 * j))
            t_.append('s_setpc_b64 s[18:19]')
            subs[name] = '\n'.join(t_)
        n_ = sum(g_[1] for g_ in groups)
        def f():
            if len(vm.seq) + n_ > 62:
                a('s_waitcnt vmcnt(%d)' % (62 - n_)); vm.seq = vm.seq[-(62 - n_):]
            a('s_call_b64 s[18:19], L_sub_%s' % name)
            for _ in range(n_): vm.issue(tag)
        return [setup, f]
    def item_q(c):
        st = c % 3; tag = 'n%d' % c
        m0o = o['m0o'] and c >= o['lateat']
        sx = ['s_lshl_b32 s57, s17, 7\ns_add_u32 s57, s57, s52']
        for t in range(3): sx += group(40 + 4 * t if m0o and t else XV, 4, SX, L_X0 + XS(c) + 4096 * t, tag, 32 * 1152 if t and not m0o else None)
        sw = ['s_lshl_b32 s57, s17, 19\ns_add_u32 s57, s57, s53']
        for t in range(4): sw += group(52 + 4 * t if m0o and t else WV, 4, SWQ, L_W + 16384 * st + 4096 * t, tag + ('b' if c == 8 and t >= 2 and o['b8a'] else ''), 16 * 8192 if t and not m0o else None)
        seq = sw + sx if o['wqfirst'] else sx + sw
        if o['hoist'] >= 2 and m0o:
            seq = ['s_lshl_b32 s58, s17, 19\ns_add_u32 s58, s58, s53'] + sx
            for t in range(4): seq += group(52 + 4 * t if t else WV, 4, SWQ, L_W + 16384 * st + 4096 * t, tag, None, None, 's58')
        if o['pre'] == 1 and m0o:
            seq = []
            for t in range(3): seq += group(40 + 4 * t if t else XV, 4, SX, L_X0 + XS(c) + 4096 * t, tag, None, None, 's%d' % (72 + 2 * c))
            for t in range(4): seq += group(52 + 4 * t if t else WV, 4, SWQ, L_W + 16384 * st + 4096 * t, tag, None, None, 's%d' % (73 + 2 * c))
            return seq
        if o['pre'] == 2 and m0o:
            return g8(110, 12, 64 + 4 * c, L_X0 + XS(c), tag) + g8(122, 16, 66 + 4 * c, L_W + 16384 * st, tag)
        if 'q' in o['sub'] and m0o:
            seq = call('q', [(40 + 4 * t if t else XV, 4, SX, 's55', 4096 * t, 's57', 0) for t in range(3)] + [(52 + 4 * t if t else WV, 4, SWQ, 's56', 4096 * t, 's58', 0) for t in range(4)], tag,
                       's_lshl_b32 s57, s17, 7\ns_add_u32 s57, s57, s52\ns_lshl_b32 s58, s17, 19\ns_add_u32 s58, s58, s53\ns_mov_b32 s55, %d\ns_mov_b32 s56, %d' % (L_X0 + XS(c), L_W + 16384 * st))
        if o['qseq']:
            if c == 0: seq += ['s_mov_b32 s63, s17\ns_add_u32 s64, s17, 3\ns_cmp_eq_u32 s64, 9\ns_cselect_b32 s64, 0, s64\ns_add_u32 s65, s64, 3\ns_cmp_eq_u32 s65, 9\ns_cselect_b32 s65, 0, s65']
            if c < 8: seq += ['s_add_u32 s17, s%d, %s' % (63 + o['qseq'][:c + 1].count(o['qseq'][c + 1]), o['qseq'][c + 1])]
            assert o['qseq'][0] == '0' and sorted(o['qseq']) == sorted('012' * 3)
        else: seq += ['s_add_u32 s17, s17, 1\ns_cmp_eq_u32 s17, 9\ns_cselect_b32 s17, 0, s17']
        return seq
    def item_k():
        seq = ['s_lshr_b32 s3, s22, 1\n' + ('s_lshl_b32 s3, s3, %d\n' % KL if KL else '') + 's_add_u32 s57, s54, s3\ns_mul_i32 s57, s57, 12288']
        for t in range(6): seq += group(KV, 4, SK, L_K + 4096 * t, 'k0', None if t == 0 else (4096 if t != 3 else 16 * 12288 - 8192))
        return seq
    WSLOT = {'w0': 0, 'w1': 1, 'w2': 2, 'w3': 4.5, 'w4': 3, 'w5': 0, 'w6': 1, 'w7': 2, 'o0': 3, 'o1': 0}
    assert L_P == 4.5 * 16384
    SP2 = 3; BASE2 = L_P
    if o['vf']:
        WSLOT = {'w0': 9, 'w1': 0, 'w2': 1, 'w3': 2, 'w4': 3, 'w5': 0, 'w6': 1, 'w7': 2, 'o0': 3, 'o1': 0}
        SP2 = 0; BASE2 = L_V + 36864; assert BASE2 == 9 * 16384
        if o['vf'] == 2: WSLOT.update({'w4': 4.5, 'w5': 3, 'w6': 0, 'w7': 1, 'o0': 2, 'o1': 3})
    NEED = {'w3': 1, 'w4': 2, 'w5': 3, 'w6': 5, 'w7': 6}
    L_O1 = L_P
    STAGES = ['w0', 'w1', 'o0', 'o1', 'w2', 'w3', 'w4', 'w5', 'w6', 'w7']
    def item_v(vp):
        seq = ['s_lshr_b32 s3, s16, 2\ns_xor_b32 s3, s3, %d\n' % (vp >> 1) + ('s_lshl_b32 s3, s3, %d\n' % KL if KL else '') + 's_add_u32 s57, ' + ('s63' if 'd' in o['hack'] else 's54') + ', s3\ns_mul_i32 s57, s57, 12288\ns_xor_b32 s3, s16, %d\ns_and_b32 s3, s3, 1\ns_lshl_b32 s3, s3, 7\ns_add_u32 s57, s57, s3' % (vp & 1)]
        for b in range(2):
            seq += group(VV, 4, SV, L_V + 12288 * vp + 6144 * b, 'v%d' % vp, 16 * 12288 - 8192 if b else None)
            seq += group(VV, 2, SV, L_V + 12288 * vp + 6144 * b + 4096, 'v%d' % vp, 8192)
        if 'v' in o['sub']:
            seq = call('v', [(VV, 4, SV, 's55', 0, 's57', 0), (VV, 2, SV, 's55', 4096, 's57', 8192), (VV, 4, SV, 's55', 6144, 's57', 16 * 12288 - 8192), (VV, 2, SV, 's55', 10240, 's57', 8192)], 'v%d' % vp,
                       seq[0] + '\ns_mov_b32 s55, %d' % (L_V + 12288 * vp))
        return seq
    def item_w(p):
        lds = int(L_W + 16384 * WSLOT['w%d' % p])
        seq = ['s_xor_b32 s3, s16, %d\n' % PC(p) + ('s_and_b32 s57, s3, 4\ns_mul_i32 s57, s57, %d\ns_add_u32 s3, s3, s57\n' % (KJ - 1) if KL else '') + 's_mul_i32 s57, s3, %d\ns_add_u32 s57, s57, s60' % (64 * 1152)]
        for t in range(4): seq += group(68 + 4 * t if o['m0o'] and t else OV, 4, SWO, lds + 4096 * t, 'w%d' % p, 16 * 1152 if t and not o['m0o'] else None)
        if 'w' in o['sub']:
            assert o['m0o']
            seq = call('w', [(68 + 4 * t if t else OV, 4, SWO, 's55', 4096 * t, 's57', 0) for t in range(4)], 'w%d' % p, seq[0] + '\ns_mov_b32 s55, %d' % lds)
        return seq
    def item_o(e):
        lds = L_W + 16384 * WSLOT['o%d' % e]; seq = []
        for hf in range(2):
            seq += ['s_xor_b32 s3, %s, %d\n' % ('s59' if o['alt'] == 3 else 's16', 2 * e + hf) + ('s_and_b32 s57, s3, 4\ns_mul_i32 s57, s57, %d\ns_add_u32 s3, s3, s57\n' % (KJ - 1) if KL else '') + 's_mul_i32 s57, s3, %d\ns_add_u32 s57, s57, s62' % (64 * 1152)]
            for t in range(2): seq += group(DV, 4, SWO, lds + 8192 * hf + 4096 * t, 'o%d' % e, 32 * 1152 if t else None)
        return seq
    def item(nm):
        seq = {'v': item_v, 'w': item_w, 'o': item_o, 'k': lambda _: item_k()}[nm[0]](int(nm[1]))
        if nm[:2] in o.get('drop', []): return []
        assert not (nm[2:] and nm[0] in o['sub'])
        cut = {'v': 9, 'k': 16}.get(nm[0], 11)
        if nm[2:] == 'a': return seq[:cut] + ['s_mov_b32 s61, s57']
        if nm[2:] == 'b': return ['s_mov_b32 s57, s61'] + seq[cut:]
        return seq
    def late_setup():
        srd(SK, 4, 'k'); srd(SV, 6, 'v'); srd(SWO, 8, 'wo'); srd(SWS, 14, 'ws')
        if 'd' in o['hack']: srd(SV, SX, 'x'); srd(SWO, SX, 'x')
        if 'k' in o['hack']: srd(SK, SX, 'x')
        a('v_mul_u32_u24 v7, 1152, v2\nv_add_u32 v%d, v7, v6\nv_add_u32 v%d, %d, v%d' % (OV, OV + 1, 4 * 1152 - 1024, OV))
        a('v_xor_b32 v6, 128, v6\nv_add_u32 v7, v7, v6\nv_add_u32 v%d, %d, v7\nv_add_u32 v%d, %d, v7' % (OV + 2, 2 * (4 * 1152 - 1024), OV + 3, 3 * (4 * 1152 - 1024)))
        a('v_xor_b32 v6, v1, v2\nv_lshlrev_b32 v6, 4, v6\nv_lshl_add_u32 v%d, v2, 8, v6' % KV)
        for j in range(1, 4): a('v_xor_b32 v%d, %d, v%d' % (KV + j, 64 * j, KV))
        a('v_and_b32 v6, 1, v2\nv_lshlrev_b32 v6, 1, v6\nv_xor_b32 v6, v6, v4\nv_lshl_add_u32 v%d, v6, 4, v5' % DV)
        quad(DV, 8 * 1152 - 1024)
        a('v_lshlrev_b32 v6, 8, v3\nv_lshl_add_u32 v%d, v32, 4, v6' % VV)
        quad(VV, 8 * 256 - 1024)
        if o['m0o']:
            for base, src, n, st_ in ((40, XV, 3, 32 * 1152), (52, WV, 4, 16 * 8192), (68, OV, 4, 16 * 1152)):
                for t in range(1, n):
                    a('s_mov_b32 s3, %d' % (t * st_))
                    for j in range(4): a('v_add_u32 v%d, s3, v%d' % (base + 4 * t + j, src + j))
        if o['pre']:
            assert not o['qseq'] and o['lateat'] >= 3
            for c in range(o['lateat'], 9):
                if o['pre'] == 1: a('s_lshl_b32 s3, s17, 7\ns_add_u32 s%d, s3, s52\ns_lshl_b32 s3, s17, 19\ns_add_u32 s%d, s3, s53' % (72 + 2 * c, 73 + 2 * c))
                else:
                    a('s_lshl_b32 s3, s17, 7\ns_add_u32 s3, s3, s52\ns_add_u32 s%d, s%d, s3\ns_addc_u32 s%d, s%d, 0' % (64 + 4 * c, SX, 65 + 4 * c, SX + 1))
                    a('s_lshl_b32 s3, s17, 19\ns_add_u32 s3, s3, s53\ns_add_u32 s%d, s%d, s3\ns_addc_u32 s%d, s%d, 0' % (66 + 4 * c, SWQ, 67 + 4 * c, SWQ + 1))
                if c < 8: a('s_add_u32 s17, s17, 1\ns_cmp_eq_u32 s17, 9\ns_cselect_b32 s17, 0, s17')
        if o['pre'] == 2:
            for base, src, n, st_ in ((110, XV, 3, 32 * 1152), (122, WV, 4, 16 * 8192)):
                for t in range(n):
                    a('s_mov_b32 s3, %d' % (t * st_ + (4096 if t % 2 == 0 else 0)))
                    for j in range(4): a('v_add_u32 v%d, s3, v%d' % (base + 4 * t + j, src + j))
        a(H0)
        if o['alt'] == 3: a('s_and_b32 s59, s22, 2\ns_lshl1_add_u32 s59, s59, s16')
        a('s_lshl_b32 s54, s23, 5\n' + kvbase('s3') + '\ns_add_u32 s54, s54, s3')
        if 'd' in o['hack']: a('s_and_b32 s63, s23, 1\ns_lshl_b32 s63, s63, 5')
        a(('s_mov_b32 s60, 0 ; %d' if 'd' in o['hack'] else 's_mul_i32 s60, s3, %d') % (256 * 1152))
        a('s_add_u32 s62, s60, 1024\ns_lshl_b32 s3, s22, 8\ns_add_u32 s60, s60, s3')
    L0 = len(a.lines)
    nq = 0; nbar = 0; since = {}
    def bar():
        nonlocal nbar
        vm.wait('n%d' % nbar)
        if nbar in (1, 2, 3, 8): stL('L at B%d' % nbar, 2)
        if nbar < 4: stL('L at B%d' % nbar, 3)
        a('s_barrier'); nbar += 1
    kdone = 0
    if o['lead']:
        assert o['klate'] and not o['wqfirst'] and not o['sub']
        def split(seq, n):
            k = 0
            for i_, x_ in enumerate(seq):
                if callable(x_):
                    k += 1
                    if k == n: return seq[:i_ + 1], seq[i_ + 1:]
        run(item_q(0)); run(item_q(1))
        for c in range(2, 9):
            h_, r_ = split(item_q(c), o['lead']) if c >= o['lead0'] else ([], item_q(c))
            if 'q%d' % c in o.get('drop', []): h_, r_ = [], r_[-1:]
            run(h_); bar(); run(r_)
            if c + 1 == o['lateat']: late_setup()
        if o['leadk']: run(item('k0a')); kdone = 1
        bar()
    else:
        for t in o['order']:
            if t == 'q':
                while nbar < nq - 1 and nq >= 3: bar()
                seq = item_q(nq)
                if 'q%d' % nq in o.get('drop', []): seq = seq[-1:]
                if o['first_half'] and nq in (1, 2) and nbar == nq - 1:
                    run(seq[:16]); bar(); run(seq[16:])
                else: run(seq)
                sz = 28; nq += 1
                if nq <= 2: stL('L issued q%d' % (nq - 1), 3)
                if o['sent'] and o['clr'] == 'L%d' % nq: srd(SWS, 14, 'ws'); clears(True, 90, 92)
                if nq == o['lateat']: late_setup()
            elif t == 'K': run(item_k()); sz = 24
            elif t == 'V': run(item_v(0)); sz = 12
            elif t == 'W': run(item_v(1)); sz = 12
            for c in list(since): since[c] += sz
            if t == 'q': since[nq - 1] = 0
            while nbar < nq and since[nbar] >= o['win']: bar()
        while nbar < 8: bar()
    pre8 = o['pre8'] if 'pre8' in o else (['w0'] if 'V' in o['order'] else ['v0', 'w0'])
    assert all(it[:2] in (('k0', 'v0', 'v1', 'v2', 'w0', 'w1') if o['vf'] else ('k0', 'v0', 'v1', 'v2', 'v3', 'w0')) for it in pre8)
    seq = [x_ for it in pre8 for x_ in item('k0b' if kdone and it == 'k0' else it)]
    if o['b8a']:
        run(seq[:-10]); bar(); run(seq[-10:]); vm.wait('n8b'); a('s_barrier')
    else:
        run(seq); bar()
    XB = [('BQ', []), ('BP', ['v0', 'w0']), ('w0', ['v1', 'w1']), ('w1', ['w2']), ('w2', ['w3']), ('w3', ['v2', 'w4']),
          ('w4', ['v3', 'w5']), ('w5', ['w6']), ('w6', ['w7']), ('w7', []), ('O', ['o0', 'o1'])]
    if o['alt']:
        XB = [('BQ', []), ('BP', ['v0', 'w0']), ('w0', ['w1']), ('w1', ['v1', 'w2']), ('w2', ['w3']), ('w3', ['v2', 'w4']),
              ('w4', ['w5']), ('w5', ['v3', 'w6']), ('w6', ['w7']), ('w7', []), ('O', ['o0', 'o1'])]
    if o['klate']: XB[0] = ('BQ', ['k0'])
    if o['bs']: XB.insert(1, ('BS', []))
    for sk in o['skip']:
        i_ = [x_[0] for x_ in XB].index(sk)
        XB[i_ - 1] = (XB[i_ - 1][0], XB[i_ - 1][1] + XB[i_][1]); del XB[i_]
    XN = [x_[0] for x_ in XB]
    plan = o.get('plan') or {'B8': ['w0'], 'BQ': ['w1', 'v1', 'w2'], 'BP': ['w3', 'v2', 'w4'], 'w1': ['w5'], 'w2': ['v3', 'w6'], 'w3': ['w7'], 'w6': ['o0'], 'w7': ['o1']}
    if o['vf'] and not o.get('plan'): plan = {'B8': ['v0', 'w0'], 'BQ': ['w1', 'v1', 'w2', 'w3'], 'BP': ['v2', 'w4'], 'w1': ['v3'], 'w2': ['w5'], 'w3': ['w6'], 'w4': ['w7'], 'w6': ['o0'], 'w7': ['o1']}
    FREEAT = {'w0': 'B8', 'w1': 'B8', 'w2': 'BQ', 'w3': ('BS' if o['bs'] else 'BP') if o['klate'] else 'BQ', 'w4': 'BS' if o['bs'] else 'BP', 'w5': 'w1', 'w6': 'w2', 'w7': 'w3', 'o0': 'w5', 'o1': 'w6'}
    if o['vf']: FREEAT.update({'w2': 'B8', 'w3': 'BQ', 'w5': 'w2', 'w6': 'w3', 'w7': 'w4', 'v3': 'w1'})
    if o['vf'] == 2: FREEAT.update({'w5': 'BP', 'w6': 'w2', 'w7': 'w3', 'o0': 'w4', 'o1': 'w6'})
    ALLN = ['B8', 'BQ', 'BS', 'BP'] + ['w%d' % i_ for i_ in range(8)] + ['O']
    names = ['B8'] + [x_[0] for x_ in XB]
    issued = set(x_[:2] for x_ in pre8 if x_[2:] != 'a') | ({'v0'} if 'V' in o['order'] else set()) | ({'v1'} if 'W' in o['order'] else set())
    last = 'B8'
    for nm, need in XB:
        for it in plan.get(last, []):
            assert it[:2] not in FREEAT or ALLN.index(FREEAT[it[:2]]) <= ALLN.index(last), (it, last)
            run(item(it))
            if it[2:] != 'a': issued.add(it[:2])
        assert all(x_ in issued for x_ in need), (nm, need)
        vm.wait(need)
        stL('L at ' + nm, 2)
        a('s_barrier'); last = nm
    assert len(issued) == 14 + o['klate']
    if o['hoist']:
        L_ = a.lines; i = L0
        while i < len(L_):
            if L_[i] == 's_barrier':
                j = i + 1
                while j < len(L_) and L_[j].startswith(('s_lshl', 's_lshr', 's_add_u32', 's_mul_i32', 's_xor', 's_and', 's_mov_b32')): j += 1
                k = i
                while L_[k - 1].startswith(('s_waitcnt vmcnt', 's_memrealtime', '; stamp')): k -= 1
                L_[k:j] = L_[i + 1:j] + L_[k:i + 1]
                i = j
            else: i += 1
    stL('L done')
    stL.flush(4)
    if o['padL']: a('s_branch L_padl\n.fill %d, 4, 0xbf800000\nL_padl:' % o['padL'])
    if 'f' in o['hack']: a('s_endpgm')
    if o['stlb']: a(W0)
    srd(SOUT, 10, 'out')
    a('s_lshl_b32 s52, s21, 1\ns_lshr_b32 s3, s22, 1\ns_add_u32 s52, s52, s3')
    if stamps == 4: a('s_min_u32 s52, s52, 11\ns_lshr_b32 s3, s52, 1\ns_and_b32 s75, s52, 1\ns_lshl_b32 s75, s75, 4\ns_or_b32 s75, s75, s3\ns_and_b32 s3, s2, 0xe8\ns_or_b32 s75, s75, s3')
    a('s_cmp_ge_u32 s52, 12\ns_cbranch_scc1 L_end')
    a('s_lshl_b32 s3, %s, 9\ns_add_u32 s62, s3, %d\ns_add_u32 s66, s14, s62\ns_addc_u32 s67, s15, 0' % ('s75' if stamps == 4 else 's2', G_FL + (0 if o['ocl'] > 1 else 384)))
    a('s_mov_b32 s54, %d' % SPIN)
    a('s_lshl_b32 s3, s23, 1\ns_and_b32 s53, s22, 1\ns_add_u32 s53, s53, s3')
    a('s_mul_i32 s55, s53, 12\ns_add_u32 s55, s55, s52\ns_mul_i32 s55, s55, %d\ns_add_u32 s55, s55, %d\ns_add_u32 s56, s55, 4096' % (o['OT'], G_PO))
    if o['o64']:
        a('s_cmp_ge_u32 s52, 6\ns_cselect_b32 s58, %d, 0\ns_mul_i32 s57, s53, 6\ns_add_u32 s57, s57, s52\ns_mul_i32 s57, s57, %d\ns_sub_u32 s57, s57, s58\ns_add_u32 s57, s57, 1024' % (48 * 1152 - 64, 8 * 1152))
    else:
        a('s_mul_i32 s58, s52, 43\ns_lshr_b32 s58, s58, 7\ns_mul_i32 s3, s58, 3\ns_sub_u32 s3, s52, s3')
        a('s_mul_i32 s57, s53, 3\ns_add_u32 s57, s57, s3\ns_mul_i32 s57, s57, %d\ns_lshl_b32 s58, s58, 5\ns_add_u32 s57, s57, s58\ns_add_u32 s57, s57, 1024' % (16 * 1152))
    a('v_lshlrev_b32 v6, 3, v0')
    def and16(b):
        for i in range(0, 16, 4): a('s_and_b64 s[%d:%d], s[%d:%d], s[%d:%d]' % (b + i, b + 1 + i, b + i, b + 1 + i, b + 2 + i, b + 3 + i))
        a('s_and_b64 s[%d:%d], s[%d:%d], s[%d:%d]\ns_and_b64 s[%d:%d], s[%d:%d], s[%d:%d]\ns_and_b64 s[%d:%d], s[%d:%d], s[%d:%d]\ns_and_b32 s%d, s%d, s%d' % (
            b, b + 1, b, b + 1, b + 4, b + 5, b + 8, b + 9, b + 8, b + 9, b + 12, b + 13, b, b + 1, b, b + 1, b + 8, b + 9, b, b, b + 1))
    def reduce(name, nsrc, w, off, vaddr, outs, st=None):
        per = nsrc // 2; sz = 256 * w
        def ld(j): return 'buffer_load_dwordx%d %s, v%d, s[%d:%d], s%d offen offset:%d sc1' % (w, v(32 + w * j, w), vaddr, SWS, SWS + 3, 55 + j // per, sz * (j % per))
        if ('R' in o['hack'] and w == 4) or ('O' in o['hack'] and w == 2): a('s_mov_b32 s56, 0x7ff00000')
        osc = o['outsc'] if w == 4 or o['oddsc'] is None else o['oddsc']
        bt = o['btr'] & (1 if w == 4 else 2)
        if bt and w == 4:
            a('v_lshrrev_b32 v4, 2, v0\nv_and_b32 v5, 3, v0\nv_mul_u32_u24 v3, 1152, v4\nv_lshl_add_u32 v3, v5, 4, v3\nv_lshl_add_u32 v24, v5, 4, v4\nv_lshlrev_b32 v24, 2, v24')
        elif bt:
            a('v_lshrrev_b32 v4, 2, v0\nv_and_b32 v5, 3, v0\nv_mul_u32_u24 v3, 1152, v4\nv_lshl_add_u32 v3, v5, 3, v3\nv_lshl_add_u32 v24, v5, 4, v4\nv_lshlrev_b32 v24, 2, v24')
        elif o['o64'] and w == 2 and 'V' not in o['hack']: a('v_and_b32 v4, 7, v0\nv_lshrrev_b32 v5, 3, v0\nv_mul_u32_u24 v3, 1152, v4\nv_lshl_add_u32 v3, v5, 3, v3')
        elif 'U' in o['hack'] and w == 4: a('v_and_b32 v4, 7, v0\nv_lshrrev_b32 v5, 3, v0\nv_mul_u32_u24 v3, 1152, v4\nv_lshl_add_u32 v3, v5, 4, v3\ns_bitcmp1_b32 s59, 6\ns_cselect_b32 s3, %d, 0\ns_add_u32 s59, s59, s3' % (8 * 1152 - 64))
        elif 'W' in o['hack'] and w == 2: a('v_and_b32 v4, 7, v0\nv_lshrrev_b32 v5, 3, v0\nv_mul_u32_u24 v3, 1152, v4\nv_lshl_add_u32 v3, v5, 3, v3\ns_bitcmp1_b32 s57, 5\ns_cselect_b32 s3, %d, 0\ns_add_u32 s57, s57, s3' % (8 * 1152 - 32))
        elif 'V' in o['hack'] and w == 2: a('v_mov_b32 v3, 0x7ff00000')
        elif o['x4'] and w == 4: a('v_mul_u32_u24 v3, 1152, v1\nv_lshl_add_u32 v3, v2, 4, v3')
        else: a('v_mul_u32_u24 v3, 1152, v1\nv_lshl_add_u32 v3, v2, 3, v3')
        if o.get('dot'): a('s_mov_b32 s28, 0x00003f80\ns_mov_b32 s29, 0x3f800000')
        a('s_mov_b32 s29, 0xffff0000')
        if o['acc'] == 2: a('s_mov_b32 s28, 0x00003f80\ns_mov_b32 s31, 0x3f800000')
        if o['prog']:
            a('s_mov_b32 s63, 0')
            a('L_%s:\ns_load_dwordx%d s[84:%d], s[66:67], %d glc\ns_sub_u32 s54, s54, 1\ns_cselect_b32 s30, -1, 0\ns_waitcnt lgkmcnt(0)' % (name, nsrc, 83 + nsrc, off))
            k = nsrc; sh = 1
            while k > 1:
                for i in range(0, nsrc, 2 * sh):
                    if sh <= 4: a('s_lshl%d_add_u32 s%d, s%d, s%d' % (sh, 84 + i, 84 + i + sh, 84 + i))
                    else: a('s_lshl_b32 s%d, s%d, %d\ns_or_b32 s%d, s%d, s%d' % (84 + i + sh, 84 + i + sh, sh, 84 + i, 84 + i, 84 + i + sh))
                k //= 2; sh *= 2
            a('s_or_b32 s84, s84, s30\ns_and_b32 s84, s84, %d\ns_andn2_b32 s85, s84, s63\ns_cbranch_scc0 L_%s\ns_or_b32 s63, s63, s84' % ((1 << nsrc) - 1, name))
            for j in range(nsrc):
                a('s_bitcmp1_b32 s85, %d\ns_cbranch_scc0 L_%s_%d\n%s\nL_%s_%d:' % (j, name, j, ld(j), name, j))
            a('s_cmp_lg_u32 s63, %d\ns_cbranch_scc1 L_%s' % ((1 << nsrc) - 1, name))
            if st: st('flags ok')
            a('s_waitcnt vmcnt(0)')
        else:
            own = o['own'] and w == 4
            oe = own and o['oe'] and o['xe'] in ('E', 'G', 'H') and o['atom']
            if o['far']: a('s_branch L_far_%s\n.fill 300, 4, 0xbf800000\n.p2align 6\nL_far_%s:' % (name, name))
            if o['opre'] & (1 if w == 4 else 2): a('buffer_load_dword v22, v3, s[%d:%d], %s offen %s\ns_waitcnt vmcnt(0)' % (SOUT, SOUT + 3, outs, o.get('oprefl', '')))
            a(';WARM_ON')
            if o['xe']: a('s_barrier')
            if oe: a('ds_read_b128 v[32:35], v27')
            pm = o['bm'] >= (2 if w == 2 else 1) and o['bm'] != 3 or o['bm'] == 3 and w == 2
            full = (1 << nsrc) - 1
            if pm:
                a('s_mov_b32 s64, 0')
                a('L_%s:\ns_load_dword s84, s[66:67], %d glc\ns_sub_u32 s54, s54, 1\ns_cselect_b32 s30, %d, 0\ns_waitcnt lgkmcnt(0)' % (name, off, full))
                a('s_or_b32 s84, s84, s30\ns_andn2_b32 s85, s84, s64\ns_cbranch_scc0 L_%s\ns_mov_b32 s64, s84' % name)
                for j in range(nsrc):
                    a('s_bitcmp1_b32 s85, %d\ns_cbranch_scc0 L_%s_%d\n%s\nL_%s_%d:' % (j, name, j, 'ds_read_b128 v[32:35], v27' if own and j == 0 else ld(j), name, j))
                a('s_cmp_lg_u32 s64, %d\ns_cbranch_scc1 L_%s\ns_waitcnt vmcnt(0)' % (full, name))
                if o['sent'] and w == 2: a('s_mov_b32 s63, 0\ns_branch L_sum')
            else: gpoll(name, full if o['bm'] else (32 if w == 2 and o['o64'] else nsrc) - (1 if oe else 0), off)
            if stamps == 4: a('s_memrealtime s[68:69]')
            if st: st('flags ok')
            if o['sent'] and w == 2: a('s_mov_b32 s63, 0\nL_again:')
            if not pm or w == 2:
                for j in range(nsrc):
                    if j or not own: a(ld(j))
                if own and not oe: a('ds_read_b128 v[32:35], v27')
            if pm and w == 2: a('L_sum:')
            if o['dry']: a('L_dry_%s:' % name)
        order = list(range(1, nsrc)) + [0] if own and o['ownlast'] else list(range(nsrc))
        for jj, j in enumerate(order):
            if not o['prog'] and not (oe and j == 0): a(W0 if own and j == 0 else 's_waitcnt vmcnt(%d)' % (nsrc - 1 - j))
            if o['acc'] == 1:
                b_ = 32 + w * j; tmp = 16 + 4 * (j & 1); j = jj
                for t in range(w): a('v_lshlrev_b32 v%d, 16, v%d' % ((tmp if j else 8) + t, b_ + t))
                for t in range(w): a('v_and_b32 v%d, s29, v%d' % ((b_ if j else 12) + t, b_ + t))
                if j:
                    for t in range(0, w, 2): a('v_pk_add_f32 v[%d:%d], v[%d:%d], v[%d:%d]' % (8 + t, 9 + t, 8 + t, 9 + t, tmp + t, tmp + t + 1))
                    for t in range(0, w, 2): a('v_pk_add_f32 v[%d:%d], v[%d:%d], v[%d:%d]' % (12 + t, 13 + t, 12 + t, 13 + t, b_ + t, b_ + t + 1))
                continue
            if o['acc'] == 2:
                b_ = 32 + w * j
                for t in range(w): a('v_dot2_f32_bf16 v%d, v%d, s28, %s' % (8 + t, b_ + t, 'v%d' % (8 + t) if j else '0'))
                for t in range(w): a('v_dot2_f32_bf16 v%d, v%d, s31, %s' % (12 + t, b_ + t, 'v%d' % (12 + t) if j else '0'))
                if j == nsrc - 1: a('s_nop 2')
                continue
            for t in range(w):
                src = 32 + w * j + t
                if j == 0: a('v_lshlrev_b32 v%d, 16, v%d\nv_and_b32 v%d, s29, v%d' % (8 + 2 * t, src, 9 + 2 * t, src))
                elif o.get('dot'): a('v_dot2_f32_bf16 v%d, v%d, s28, v%d\nv_dot2_f32_bf16 v%d, v%d, s29, v%d' % (8 + 2 * t, src, 8 + 2 * t, 9 + 2 * t, src, 9 + 2 * t))
                else: a('v_lshlrev_b32 v16, 16, v%d\nv_and_b32 v17, s29, v%d\nv_pk_add_f32 v[%d:%d], v[%d:%d], v[16:17]' % (src, src, 8 + 2 * t, 9 + 2 * t, 8 + 2 * t, 9 + 2 * t))
        if o['sent'] and w == 2: a('v_cmp_u_f32 vcc, v8, v%d\n' % (9 if o['acc'] else 10) + 's_cbranch_vccnz L_retry\nL_accept:')
        if stamps == 4: a('s_memrealtime s[70:71]')
        for t in range(w): a('v_cvt_pk_bf16_f32 v%d, v%d, v%d' % ((8 + t, 8 + t, 12 + t) if o['acc'] else (8 + t, 8 + 2 * t, 9 + 2 * t)))
        if w == 4 and o['x4']:
            a('v_permlane32_swap_b32 v8, v10\nv_permlane32_swap_b32 v9, v11\nv_permlane16_swap_b32 v8, v10\nv_permlane16_swap_b32 v9, v11')
        if o['dry']: a('s_cbranch_execz L_dryret_%s' % name)
        if bt:
            for t in range(w): a('ds_bpermute_b32 v%d, v24, v%d' % (8 + t, 8 + t))
            a(W0)
        if w == 4 and o['x4']:
            a('buffer_store_dwordx4 v[8:11], v3, s[%d:%d], %s offen %s' % (SOUT, SOUT + 3, outs, osc))
        else:
            for t in range(w // 2): a('buffer_store_dwordx2 v[%d:%d], v3, s[%d:%d], %s offen offset:%d %s' % (8 + 2 * t, 9 + 2 * t, SOUT, SOUT + 3, outs, 32 * t, osc))
        a(';WARM_OFF')
        if stamps >= 4:
            a('s_waitcnt vmcnt(0)\ns_memrealtime s[72:73]\ns_waitcnt lgkmcnt(0)\nv_mov_b32 v31, 0\ns_lshl_b32 s3, s2, 9\ns_mul_i32 s74, s20, 24\ns_add_u32 s3, s3, s74\ns_add_u32 s3, s3, %d' % (STAMP_OFF + 8 * 50 - 96))
            for i in range(3) if stamps == 4 else [2]:
                a('v_mov_b32 v254, s%d\nv_mov_b32 v255, s%d' % (68 + 2 * i, 69 + 2 * i))
                a('buffer_store_dwordx2 v[254:255], v31, s[%d:%d], s3 offen offset:%d' % (SWS, SWS + 3, 8 * i))
    if stamps == 4:
        for w_, nm in enumerate(['odd', 'r0', 'r1', 'r2']):
            for i, x_ in enumerate(['flags', 'summed', 'end']): a('; stamp %d %s %s' % (50 + 3 * w_ + i, nm, x_))
    if o['shc'] & 2: a('s_cmp_ge_u32 s52, 6\ns_cselect_b32 s3, 3, 0\ns_and_b32 s62, s2, 0xe8\ns_or_b32 s3, s3, s62\ns_lshl_b32 s3, s3, 9\ns_add_u32 s62, s3, %d\ns_add_u32 s66, s14, s62\ns_addc_u32 s67, s15, 0' % (G_FL + 384))
    if o['shc'] & 4: a('s_mul_i32 s3, s52, 43\ns_lshr_b32 s3, s3, 7\ns_mul_i32 s3, s3, 3\ns_and_b32 s62, s3, 1\ns_lshl_b32 s62, s62, 4\ns_lshr_b32 s3, s3, 1\ns_or_b32 s3, s3, s62\ns_and_b32 s62, s2, 0xe8\ns_or_b32 s3, s3, s62\ns_lshl_b32 s3, s3, 9\ns_add_u32 s62, s3, %d\ns_add_u32 s66, s14, s62\ns_addc_u32 s67, s15, 0' % (G_FL + 384))
    reduce('op', 16, 2, OOFF, 6, 's57')
    a('s_endpgm')
    if o['sent']:
        a('L_retry:\ns_cmp_lg_u32 s63, 0\ns_cbranch_scc1 L_accept\ns_mov_b32 s63, 1\ns_mov_b32 s54, %d' % SPIN)
        if stamps == 5: a('v_mov_b32 v20, 160\nv_mov_b32 v21, 1\ns_mov_b64 exec, 1\nglobal_atomic_add v20, v21, s[12:13] sc1\ns_mov_b64 exec, -1')
        if o['ack1'] and o['o64']:
            a('s_cmp_ge_u32 s52, 6\ns_cselect_b32 s3, %s\n' % ('7, 6' if o['ack1'] == 2 else '3, 0') + 's_and_b32 s62, s2, 0xe8\ns_or_b32 s3, s3, s62\ns_lshl_b32 s3, s3, 9\ns_add_u32 s62, s3, %d\ns_add_u32 s66, s14, s62\ns_addc_u32 s67, s15, 0' % (G_FL + 384))
        gpoll('oq', 0xffff if o['bm'] else 32 if o['o64'] else 16, 64, True)
        a('s_branch L_again')
    for t_ in subs.values(): a(t_)
    if o['padC']: a('.fill %d, 4, 0xbf800000' % o['padC'])
    a('L_comp:')
    lg = Cnt(a, 'lgkmcnt', 15)
    stC('C entry', 3)
    XA, WA, VA, OVA, OA, QA, FRA, FUA, FV, FC, PFA = 10, 12, 16, 18, 20, 21, 22, 23, 24, 27, 31
    A = 32; F = [80, 108]; B = 136; C = 184; VWO = 232; SP = 244
    KF = B; QF = 80; S = 96; P = SP; KA = 184; UA = 254; QT = 192
    a('v_bfe_u32 v3, v0, 2, 2\nv_and_b32 v4, 3, v0')
    a('s_lshr_b32 s18, s20, 1\ns_and_b32 s17, s20, 1')
    a(H0)
    a('v_lshrrev_b32 v7, 1, v1\nv_xor_b32 v7, v7, v2\nv_lshlrev_b32 v7, 4, v7\nv_lshl_add_u32 v5, v1, 7, v7\nv_xor_b32 v6, 64, v5')
    a('s_mul_i32 s3, s18, 6144\ns_add_u32 s3, s3, %d' % L_X0)
    a('v_add_u32 v%d, s3, v5\nv_add_u32 v%d, s3, v6' % (XA, XA + 1))
    a('s_add_u32 s3, s3, %d\nv_add_u32 v%d, s3, v5\nv_add_u32 v%d, s3, v6' % (L_V - L_X0, VA, VA + 1))
    a('s_and_b32 s3, s22, 1\ns_mul_i32 s3, s3, 6144\ns_add_u32 s3, s3, %d' % L_V)
    if o['alt'] == 3: a('s_and_b32 s19, s22, 2\ns_mul_i32 s19, s19, 12288\ns_add_u32 s3, s3, s19')
    a('v_add_u32 v%d, s3, v5\nv_add_u32 v%d, s3, v6' % (OVA, OVA + 1))
    a('v_and_b32 v7, 1, v2\nv_lshl_add_u32 v7, v7, 2, v3\ns_lshl_b32 s3, s17, 2\nv_xor_b32 v7, s3, v7')
    a('v_lshl_add_u32 v5, v2, 3, v3\nv_lshlrev_b32 v8, 8, v5\nv_lshl_add_u32 v8, v4, 3, v8')
    assert L_W == 0
    for t in range(4): a('v_xor_b32 v9, %d, v7\nv_lshl_add_u32 v%d, v9, 5, v8' % (t, WA + t))
    a('v_and_b32 v7, 1, v2\nv_lshrrev_b32 v8, 1, v3\nv_lshl_add_u32 v7, v7, 1, v8\nv_xor_b32 v7, s20, v7')
    a('v_lshlrev_b32 v8, 7, v5\nv_lshl_add_u32 v8, v4, 3, v8\nv_lshl_add_u32 v%d, v7, 5, v8' % OA)
    a('s_mul_i32 s3, s18, 12288\ns_lshl_b32 s19, s17, 11\ns_add_u32 s3, s3, s19\ns_add_u32 s3, s3, %d' % L_Q)
    a('v_lshlrev_b32 v25, 4, v0\nv_lshlrev_b32 v26, 3, v0\nv_add_u32 v%d, s3, v%d' % (QA, 26 if o['q64'] else 25))
    if o['q64'] == 3: a('v_lshrrev_b32 v7, 1, v2\nv_lshl_add_u32 v7, v7, 4, v1\nv_lshlrev_b32 v7, 4, v7\nv_and_b32 v8, 1, v2\nv_lshl_add_u32 v7, v8, 3, v7\nv_add_u32 v%d, s3, v7' % QA)
    if o['own3']:
        assert o['own'] and not o['oe'] and not o['bm']
        a('s_and_b32 s59, s2, 0xf8\ns_lshl_b32 s48, s20, 1\ns_add_u32 s59, s59, s48\ns_and_b32 s3, s2, 1\ns_add_u32 s3, s3, s59\ns_mul_i32 s34, s3, %d\ns_xor_b32 s3, s3, 1\ns_mul_i32 s35, s3, %d' % (o['MO'], o['MO']))
        a('s_and_b32 s3, s21, 6\ns_xor_b32 s48, s48, s3\ns_lshl_b32 s3, s48, 10\ns_add_u32 s3, s3, %d\ns_add_u32 s34, s34, s3\ns_add_u32 s35, s35, s3\ns_add_u32 s35, s35, 1024' % G_PM)
        a('s_cmp_eq_u32 s48, 0\ns_cselect_b32 s33, 0x7ff00000, 0\ns_cselect_b64 s[30:31], -1, 0\nv_add_u32 v27, %d, v25' % L_F)
        for qt in (1, 2): a('s_add_u32 s%d, s34, %d\ns_add_u32 s%d, s35, %d' % (34 + 2 * qt, qt * o['MQ'], 35 + 2 * qt, qt * o['MQ']))
    else:
        a('s_and_b32 s59, s2, 0xf8\ns_lshl_b32 s48, s20, 1\ns_add_u32 s59, s59, s48\ns_mul_i32 s56, s59, %d\ns_add_u32 s56, s56, %d\ns_add_u32 s57, s56, %d' % (o['MO'], G_PM, o['MO']))
        a('s_xor_b32 s48, s48, s21\ns_lshl_b32 s3, s48, 10\ns_add_u32 s56, s56, s3\ns_xor_b32 s3, s3, 1024\ns_add_u32 s57, s57, s3')
        if o['own']:
            a('s_cmp_eq_u32 s48, 0\ns_cselect_b32 s56, 0x7ff00000, s56\ns_cselect_b64 s[30:31], -1, 0\ns_cmp_eq_u32 s48, 1\ns_cselect_b32 s57, 0x7ff00000, s57\ns_cselect_b64 s[32:33], -1, 0\nv_add_u32 v27, %d, v25' % L_F)
    a('s_lshl_b32 s3, s23, 1\ns_and_b32 s54, s22, 1\ns_add_u32 s3, s3, s54\ns_mul_i32 s3, s3, 12\n' + ('s_mul_i32 s54, s18, 6' if o['o64'] else 's_mul_i32 s54, s20, 3') + '\ns_add_u32 s3, s3, s54\ns_mul_i32 s58, s3, %d' % o['OT'])
    if o['o64']:
        assert not o['bm'] and not o['btr'] & 2
        a('s_lshl_b32 s3, s17, 8\ns_add_u32 s58, s58, s3')
    a('s_lshl_b32 s3, s21, 1\ns_lshr_b32 s55, s22, 1\ns_add_u32 s55, s55, s3\ns_lshl_b32 s3, s55, 9\ns_add_u32 s58, s58, s3\ns_add_u32 s58, s58, %d' % G_PO)
    a('v_and_b32 v5, 7, v0\nv_lshrrev_b32 v6, 3, v0')
    a('v_add_u32 v7, s59, v5\nv_lshlrev_b32 v7, 9, v7\n' + ('s_mov_b32 s3, %d' % (G_FL + MOFF) if o['atom'] else 's_lshl_b32 s3, s21, 2\ns_add_u32 s3, s3, %d' % (G_FL + MOFF)) + '\nv_add_u32 v7, s3, v7')
    a('s_sub_u32 s54, s54, 2\nv_add_u32 v8, s54, v5\nv_lshrrev_b32 v9, 1, v8\nv_and_b32 v8, 1, v8\nv_lshl_add_u32 v8, v8, 4, v9\ns_and_b32 s3, s2, 0xe8\nv_add_u32 v8, s3, v8\nv_lshlrev_b32 v8, 9, v8')
    a(('s_mov_b32 s3, %d' if o['atom'] else 's_lshl_b32 s3, s55, 2\ns_add_u32 s3, s3, %d') % (G_FL + 128 + OOFF) + '\nv_add_u32 v8, s3, v8\nv_mov_b32 v9, 0x7ff00000')
    a('v_lshl_add_u32 v7, v6, 6, v7\nv_lshl_add_u32 v8, v6, 6, v8\nv_cmp_gt_u32 vcc, %d, v6\nv_cndmask_b32 v5, 8, v5, vcc' % o['rep'])
    if o['own'] and o['oe'] and o['xe'] in ('E', 'G', 'H') and o['atom']: a('v_cmp_ne_u32 vcc, s48, v5\nv_cndmask_b32 v7, v9, v7, vcc')
    a('v_cmp_gt_u32 vcc, %d, v5\n' % (8 if o['o64'] else 5) + 'v_cndmask_b32 v8, v9, v8, vcc\nv_cmp_gt_u32 vcc, 2, v5\nv_cndmask_b32 v30, v8, v7, vcc\nv_cndmask_b32 v28, v9, v7, vcc\nv_mov_b32 v29, 1')
    if o['shc'] & 1: a('v_cmp_gt_u32 vcc, 1, v5\nv_cndmask_b32 v28, v9, v7, vcc')
    if o['bm']: a('v_xor_b32 v7, s48, v5\nv_mov_b32 v8, s55\nv_cndmask_b32 v7, v8, v7, vcc\nv_lshlrev_b32 v29, v7, v29')
    if o['fo2']: a('s_add_u32 s56, s58, %d\ns_add_u32 s57, s58, %d' % (o['OT'] * (2 if o['o64'] else 1), o['OT'] * (4 if o['o64'] else 2)))
    if 'T' in o['hack']: a('s_mov_b32 s35, 0x7ff00000\ns_mov_b32 s37, s35\ns_mov_b32 s39, s35')
    if 'Y' in o['hack']: a('s_cmp_ge_u32 s21, 4\ns_cselect_b32 s58, 0x7ff00000, s58\ns_cselect_b32 s56, 0x7ff00000, s56\ns_cselect_b32 s57, 0x7ff00000, s57')
    if 'g' in o['hack']: a('s_mov_b32 s58, 0x7ff00000\n' + '\n'.join('s_mov_b32 s%d, s58' % r_ for r_ in (34, 35, 36, 37, 38, 39, 56, 57)))
    if o['o64']: a('v_lshrrev_b32 v7, 3, v1\nv_mul_u32_u24 v7, %d, v7\nv_lshl_add_u32 v7, v2, 6, v7\nv_and_b32 v8, 7, v0\nv_lshl_add_u32 v3, v8, 3, v7' % o['OT'])
    a('s_mov_b32 s52, s20')
    def unit_setup():
        a('s_cmp_ge_u32 s52, 3\ns_cselect_b32 s3, 12288, 0\ns_add_u32 s3, s3, %d' % L_K)
        if o['q64'] == 3:
            a('v_xor_b32 v7, v1, v2\nv_lshlrev_b32 v7, 4, v7\nv_lshl_add_u32 v7, v1, 8, v7')
            for kk in range(4): a('v_xor_b32 v8, %d, v7\nv_add_u32 v%d, s3, v8' % (64 * kk, KA + kk))
        else:
            a('v_lshrrev_b32 v7, 1, v2\nv_xor_b32 v7, v1, v7\nv_lshlrev_b32 v7, 4, v7\nv_lshl_add_u32 v7, v1, 8, v7\nv_and_b32 v8, 1, v2\nv_lshl_add_u32 v7, v8, 3, v7')
            for j in range(8): a('v_xor_b32 v8, %d, v7\nv_add_u32 v%d, s3, v8' % (32 * j, KA + j))
        a('s_lshl_b32 s3, s52, 12\ns_add_u32 s3, s3, %d\nv_add_u32 v%d, s3, v%d' % (L_Q, UA, 26 if o['q64'] in (1, 2) else 25))
        a('s_mov_b32 s50, 0x%x\ns_mov_b32 s51, s50' % f2i((1 if o['mimic'] else 128 ** -0.5) * math.log2(math.e)))
        if o['mimic']: a('s_mov_b32 s26, 0x%x\ns_mov_b32 s27, s26\ns_mov_b32 s25, 0xffff0000' % f2i(128 ** -0.5))
        a('s_mul_i32 s3, s52, 1536\ns_mul_i32 s49, s2, 9216\ns_add_u32 s49, s49, s3\ns_add_u32 s49, s49, %d' % G_P)
        if o['pds']: a('s_add_u32 s3, s3, %d\nv_add_u32 v255, s3, v25\nv_add_u32 v31, s3, v26' % (L_P + 27648))
    def k_reads(late=False):
        if o['klate'] and not late: return []
        if o['q64'] == 3: return ['ds_read_b128 %s, v%d offset:%d' % (v(KF + 16 * kt + 4 * kk, 4), KA + kk, 4096 * kt) for kk in range(4) for kt in range(3)]
        return ['ds_read_b64 %s, v%d offset:%d' % (v(KF + 16 * kt + 2 * j, 2), KA + j, 4096 * kt) for j in range(8) for kt in range(3)]
    if o['mimic']: a(W0)
    unit_setup()
    if o['ocl'] > 1:
        assert o['sent'] and o['o64'] and o['rep'] == 1
        if o['ocl'] == 2: a('s_mul_i32 s3, s17, 384')
        else: a('s_and_b32 s3, s22, 2\ns_add_u32 s3, s3, s17\ns_lshl_b32 s3, s3, 7')
        a('s_sub_u32 s3, s3, 120\nv_add_u32 v2, s3, v30')
    if o['ack1'] == 2: a('s_lshl_b32 s41, s18, 10\ns_sub_u32 s41, 3072, s41')
    if o['own3']: a('v_add_u32 v1, s33, v25')
    a(W0)
    srd(SWS, 14, 'ws')
    if o['sat'] & 1: a('s_lshl_b32 s3, s59, 9\ns_add_u32 s42, s3, %d\ns_add_u32 s43, s42, 512\ns_mov_b32 s40, 1' % (256 + MOFF))
    def wreads(st, off, wa=WA): return ['ds_read_b64_tr_b16 %s, v%d offset:%d' % (v(st + 4 * t + 2 * hh, 2), wa + t, off + 1024 * hh) for t in range(4) for hh in range(2)]
    def reads_A(n, ks, st=None):
        st = st or F[ks]
        return ['ds_read_b128 %s, v%d offset:%d' % (v(st + 16 + 4 * q, 4), XA + ks, XS(n) + 2048 * q) for q in range(3)] + wreads(st, 16384 * (n % 3) + 8192 * ks)
    ORD = [(t, q if t % 2 == 0 else 2 - q) for t in range(4) for q in range(3)]
    def mfma(acc, ks, first, swap, od=None):
        out = []
        for t, q in od or ORD:
            d = v(acc + 4 * (3 * t + q), 4); x = v(F[ks] + 4 * t, 4); y = v(F[ks] + 16 + 4 * q, 4)
            if swap: x, y = y, x
            out.append(MF % (d, x, y, '0' if first else d))
        return out
    def cvt(d, s_): return ['v_cvt_pk_bf16_f32 v%d, v%d, v%d' % (d, s_, s_ + 1), 'v_cvt_pk_bf16_f32 v%d, v%d, v%d' % (d + 1, s_ + 2, s_ + 3)]
    def ds(txt, tag):
        def f(): a(txt); lg.issue(tag)
        return f
    def step(m, dsops, extra=(), waits=None, pre=(), xstart=0, dstart=0, xper=0):
        n = len(m); per = [[] for _ in range(n)]
        for i, x_ in enumerate(pre): per[i].append(x_)
        nd = n - dstart
        for i, x_ in enumerate(dsops): per[dstart + (i if len(dsops) <= nd else i * nd // len(dsops))].append(x_)
        nx = n - xstart
        for i, x_ in enumerate(extra): per[min(n - 1, xstart + int(i / xper)) if xper else xstart + (i * nx // len(extra))].append(x_)
        for i in range(n):
            if waits and i in waits: lg.wait(waits[i])
            a(m[i]); run(per[i])
    stC('C at B0', 3)
    a('s_barrier')
    stC('B0')
    def tA(n, ks): return [ds(x_, 'a%d%d%s' % (n, ks, 'lo' if i < 7 else 'hi')) for i, x_ in enumerate(reads_A(n, ks))]
    if o['atune']:
        bg = o['atune']
        run(tA(0, 0))
        for n in range(7):
            kr = [ds(x_, 'k') for x_ in k_reads()[6 * (n - 3):6 * (n - 2)]] if 3 <= n < 7 else []
            m = mfma(A, 0, n == 0, False)
            step(m[:10], tA(n, 1), waits={0: 'a%d0lo' % n, 6: 'a%d0hi' % n}); step(m[10:], [])
            m = mfma(A, 1, False, False)
            step(m[:bg], [], waits={0: 'a%d1lo' % n})
            lg.wait_all(); a('s_barrier')
            r = tA(n + 1, 0)
            run(r[:1]); step(m[bg:], r[1:] + kr)
        lg.seq = []
    else: run(reads_A(0, 0))
    for n in range(7 if o['atune'] else 0, 9):
        if n == 7 and o['tm']:
            assert not o['b8a']
            F2 = 204; QT = F[1]
            a(W0)
            run(interleave(mfma(A, 0, False, False), reads_A(7, 1), 0, 2))
            a(W0); a('s_barrier'); stC('B8')
            a(';WARM_ON')
            r0, r1 = reads_A(8, 0), reads_A(8, 1, F2)
            rr = []
            for idx in ([0], [3, 4], [5, 6], [1], [2], [7, 8], [9, 10]):
                rr += [r0[i] for i in idx] + [r1[i] for i in idx]
            run(interleave(mfma(A, 1, False, False), rr, 0, 2))
            stC('end 7,1', 3)
            m = []; qw = []
            for i, (tp, q) in enumerate([(tp, q) for tp in range(2) for q in range(3)]):
                for u in range(2):
                    t = 2 * tp + u; d = v(A + 4 * (3 * t + q), 4)
                    for st in (F[0], F2): m.append(MF % (d, v(st + 4 * t, 4), v(st + 16 + 4 * q, 4), d))
                    qw += cvt(QT + 4 * i + 2 * u, A + 4 * (3 * t + q))
                    if o['q64'] and 'q' not in o['hack']: qw[-1] += '\nds_write_b64 v%d, %s offset:%d' % (QA, v(QT + 4 * i + 2 * u, 2), q * 4096 + tp * 1024 + u * 512)
                if not o['q64']: qw[-1] += '\nds_write_b128 v%d, %s offset:%d' % (QA, v(QT + 4 * i, 4), q * 4096 + tp * 1024)
            m[0] = 's_waitcnt lgkmcnt(12)\n' + m[0]; m[4] = 's_waitcnt lgkmcnt(8)\n' + m[4]; m[8] = ('s_waitcnt lgkmcnt(%d)' % (1 if o['q64'] and o['qs'] <= 6 and 'q' not in o['hack'] else 0)) + '\n' + m[8]
            run(interleave(m, qw, o['qs'], 1))
            stC('Q issued', 3)
            if stamps == 3: a(W0); stC('Q done', 3)
            break
        if n == 8: stC('end 7,1', 3)
        a(W0)
        run(interleave(mfma(A, 0, n == 0, False), (['s_barrier'] if n == 8 and o['b8a'] else []) + reads_A(n, 1), 0, 2))
        if n < 8:
            a(W0)
            a('s_barrier')
            if n == 7: stC('B8')
            run(interleave(mfma(A, 1, False, False), reads_A(n + 1, 0) + (k_reads()[8 * (n - 4):8 * (n - 3)] if 4 <= n < 7 else []), 0, 2))
        else:
            stC('end 8,0', 3)
            a(W0)
            od = [(2 * tp + u, q) for tp in range(2) for q in range(3) for u in range(2)]
            qw = []
            for i, (t, q) in enumerate(od):
                qw += cvt(QT + 2 * i, A + 4 * (3 * t + q))
                if t & 1: qw[-1] += '\nds_write_b128 v%d, %s offset:%d' % (QA, v(QT + 2 * i - 2, 4), q * 4096 + (t >> 1) * 1024)
            run(interleave(mfma(A, 1, False, False, od), qw, 6, 2))
            stC('Q issued', 3)
            if stamps == 3: a(W0); stC('Q done', 3)
    if o['own3']:
        a('s_and_b32 s3, s21, 1\ns_lshl_b32 s3, s3, 6')
        for t in range(4): a('v_xor_b32 v%d, s3, v%d' % (WA + t, WA + t))
    if o['vf']:
        for t in range(4): a('v_add_u32 v%d, %d, v%d' % (250 + t, BASE2, WA + t))
    if o['uprio']: a('s_setprio %d' % o['uprio'])
    a('L_unit:')
    a(W0)
    a('s_barrier')
    stC('BQ')
    for kk in range(4):
        if o['klate']: run(k_reads(True)[3 * kk:3 * kk + 3])
        if o['q64'] == 1: a('ds_read2st64_b64 %s, v%d offset0:%d offset1:%d' % (v(QF + 4 * kk, 4), UA, 2 * kk, 2 * kk + 1))
        elif o['q64'] == 2: a('ds_read_b64 %s, v%d offset:%d\nds_read_b64 %s, v%d offset:%d' % (v(QF + 4 * kk, 2), UA, 1024 * kk, v(QF + 4 * kk + 2, 2), UA, 1024 * kk + 512))
        else: a('ds_read_b128 %s, v%d offset:%d' % (v(QF + 4 * kk, 4), UA, 1024 * kk))
    for kk in range(4):
        a('s_waitcnt lgkmcnt(%d)' % ((3 - kk) * (4 if o['klate'] else 2 if o['q64'] == 2 else 1)))
        for kt in range(3): a(MF % (v(S + 4 * kt, 4), v(KF + 16 * kt + 4 * kk, 4), v(QF + 4 * kk, 4), v(S + 4 * kt, 4) if kk else '0'))
    if o['bs']: a('s_barrier')
    if 's' in o['hack']: a('s_branch L_hs_skip')
    if 'h' in o['hack']: a('s_cmp_ge_u32 s20, 4\ns_cbranch_scc1 L_hs_skip')
    if o['mimic']:
        for rnd in range(2):
            for t in range(6): a('v_cvt_pk_bf16_f32 v%d, v%d, v%d' % (S + 2 * t + 1, S + 2 * t, S + 2 * t + 1))
            for t in range(6): a('v_lshlrev_b32 v%d, 16, v%d' % (S + 2 * t, S + 2 * t + 1))
            for t in range(6): a('v_and_b32 v%d, s25, v%d' % (S + 2 * t + 1, S + 2 * t + 1))
            if rnd == 0:
                for t in range(0, 12, 2): a('v_pk_mul_f32 v[%d:%d], v[%d:%d], s[26:27]' % (S + t, S + t + 1, S + t, S + t + 1))
    x, y = 6, 7
    a('v_max3_f32 v6, v%d, v%d, v%d\nv_max3_f32 v7, v%d, v%d, v%d' % (S, S + 1, S + 2, S + 3, S + 4, S + 5))
    a('v_max3_f32 v6, v6, v%d, v%d\nv_max3_f32 v7, v7, v%d, v%d\nv_max3_f32 v6, v6, v%d, v%d' % (S + 6, S + 7, S + 8, S + 9, S + 10, S + 11))
    def xl(op, first):
        a(first)
        a('v_permlane16_swap_b32 v6, v7\n%s v8, v6, v7\n%s v7, v6, v7\nv_permlane32_swap_b32 v8, v7\n%s v6, v8, v7' % (op, op, op))
    xl('v_max_f32', 'v_max_f32 v6, v6, v7\nv_mov_b32 v7, v6')
    a('v_mul_f32 v6, s50, v6')
    if o['pk']:
        for t in range(0, 12, 2): a('v_pk_fma_f32 v[%d:%d], v[%d:%d], s[50:51], v[6:7] op_sel_hi:[1,1,0] neg_lo:[0,0,1] neg_hi:[0,0,1]' % (S + t, S + t + 1, S + t, S + t + 1))
    else:
        for t in range(12): a('v_fma_f32 v%d, v%d, s50, -v6' % (S + t, S + t))
    for t in range(12): a('v_exp_f32 v%d, v%d' % (S + t, S + t))
    if o['pk']:
        a('v_pk_add_f32 v[6:7], v[%d:%d], v[%d:%d]\nv_pk_add_f32 v[4:5], v[%d:%d], v[%d:%d]' % (S, S + 1, S + 2, S + 3, S + 4, S + 5, S + 6, S + 7))
        a('v_pk_add_f32 v[6:7], v[6:7], v[%d:%d]\nv_pk_add_f32 v[4:5], v[4:5], v[%d:%d]\nv_pk_add_f32 v[4:5], v[4:5], v[6:7]' % (S + 8, S + 9, S + 10, S + 11))
    else:
        a('v_add_f32 v4, v%d, v%d\nv_add_f32 v5, v%d, v%d' % (S, S + 1, S + 2, S + 3))
        for t in range(4, 12, 2): a('v_add_f32 v4, v4, v%d\nv_add_f32 v5, v5, v%d' % (S + t, S + t + 1))
    xl('v_add_f32', 'v_add_f32 v6, v4, v5\nv_add_f32 v7, v4, v5')
    a('v_rcp_f32 v6, v6')
    if o['pk']:
        for t in range(0, 12, 2): a('v_pk_mul_f32 v[%d:%d], v[%d:%d], v[6:7] op_sel_hi:[1,0]' % (S + t, S + t + 1, S + t, S + t + 1))
    else:
        for t in range(12): a('v_mul_f32 v%d, v%d, v6' % (S + t, S + t))
    for t in range(6): a('v_cvt_pk_bf16_f32 v%d, v%d, v%d' % (P + t, S + 2 * t, S + 2 * t + 1))
    if o['hack']: a('L_hs_skip:')
    if 'e' not in o['hack'] and 'y' not in o['hack']:
        a('buffer_store_dwordx4 %s, v25, s[%d:%d], s49 offen sc1' % (v(P, 4), SWS, SWS + 3))
        a('buffer_store_dwordx2 %s, v26, s[%d:%d], s49 offen offset:1024 sc1' % (v(P + 4, 2), SWS, SWS + 3))
    if o['pds']: a('ds_write_b128 v255, %s\nds_write_b64 v31, %s offset:1024' % (v(P, 4), v(P + 4, 2)))
    stC('C at BP')
    a('s_barrier')
    a('s_cmp_ge_u32 s20, 4\ns_cbranch_scc1 L_help2')
    if o['cprio'] or o['uprio']: a('s_setprio %d' % o['cprio'])
    stC('BP')
    a('; ---- V*Wo: 8 pieces of 64 rows x 128 columns, results kept in registers as bf16 operands')
    def reads_W(p, ks):
        vp = (p >> 2) * 2 + (PC(p) & 1); tg = 'w%d%d' % (p, ks)
        r = ['ds_read_b128 %s, v%d offset:%d' % (v(F[ks] + 16 + 4 * q, 4), VA + ks, 12288 * vp + 2048 * q) for q in range(3)] + (wreads(F[ks], 16384 * WSLOT['w%d' % p] + 8192 * ks) if WSLOT['w%d' % p] < 4 else wreads(F[ks], 8192 * ks, 250))
        if (p, ks) == (0, 0) and o['fine0']:
            r = [r[0], r[3], r[4], r[1], r[2]] + r[5:]
            return [ds(x_, 'f%d' % i) for i, x_ in enumerate(r)]
        return [ds(x_, tg + ('lo' if i < 7 else 'hi')) for i, x_ in enumerate(r) if i >= 3 or not (o['alt'] and p & 1)]
    def wW(p, ks, more=()): return {0: 'f2', 1: 'f3', 2: 'f4', 3: 'f6', 6: 'f8', 9: 'f10'} if (p, ks) == (0, 0) and o['fine0'] else {0: ['w%d%dlo' % (p, ks)] + list(more), 6: ['w%d%dhi' % (p, ks)]}
    def vwpos(base, i, kt): return base + ([0, 2, 4][kt] if i % 2 == 0 else [8, 10, 6][kt])
    HACC = [B, A, B, A]; HDST = [C, C, B, B]
    def cvt_W(i): return [x_ for t in range(4) for kt in range(3) for x_ in cvt(vwpos(HDST[i] + 12 * t, i, kt), HACC[i] + 4 * (3 * t + kt))]
    def xb(nm): return [('s_waitcnt vmcnt(0)\n' if nm == o['ack'] and 'w' not in o['hack'] else '') + 's_barrier'] if nm in XN else []
    def xbc(nm):
        r_ = xb(nm)
        if r_ and o['vdry']: r_ = ['s_cbranch_execz %s\n%s\nL_xa_%s:' % ('L_vwret' if nm in o['vseg'] else 'L_xa_' + nm, r_[0], nm)]
        return r_
    def ins(lst, i, x_): return lst[:i] + [x_] + lst[i:]
    OS = [[108, 112, 116, 120, 124], [48, 52, 56, 60, 64], [80, 84, 88, 92, 96], [100, 128, 132, 68, 72]]; OACC = [[232, 236, 240], [32, 36, 40]]
    def rdO(kq):
        tg = 'os%d' % kq
        return [ds('ds_read_b128 %s, v%d offset:%d' % (v(OS[kq][kt], 4), OVA + (kq & 1), 12288 * (kq >> 1) + 2048 * kt), tg) for kt in range(3)] + \
               [ds('ds_read_b64_tr_b16 %s, v%d offset:%d' % (v(OS[kq][3 + e] + 2 * hh, 2), OA, 16384 * WSLOT['o%d' % e] + 4096 * kq + 512 * hh), tg) for e in range(2) for hh in range(2)]
    mfma_O = [MF % (v(OACC[e][kt], 4), v(OS[kq][kt], 4), v(OS[kq][3 + e], 4), v(OACC[e][kt], 4) if kq else '0') for kq in range(4) for e in range(2) for kt in range(3)]
    cvt_O = [x_ for e in range(2) for kt in range(3) for x_ in cvt(vwpos(VWO, e, kt), OACC[e][kt])]
    PFULL = [10, 11, 22, 23]; PHALF = [4, 5, 6, 7]; POF = [24, 21]; POH = [8, 9]
    padr = []
    for i in range(4):
        padr.append('s_xor_b32 s3, s53, %d\ns_mul_i32 s3, s3, 9216\ns_add_u32 s3, s3, s55' % i)
        padr.append('v_add_u32 v%d, s3, v25' % PFULL[i]); padr.append('v_add_u32 v%d, s3, v26' % PHALF[i])
        if i < 2:
            padr.append(('s_xor_b32 s3, s52, %d\ns_mul_i32 s3, s3, 9216\ns_add_u32 s3, s3, s55\n' % i if o['alt'] == 3 else '') + 's_add_u32 s3, s3, s54\nv_add_u32 v%d, s3, v25' % POF[i]); padr.append('v_add_u32 v%d, s3, v26' % POH[i])
    a('s_mul_i32 s55, s18, 4608\ns_and_b32 s54, s22, 1\ns_mul_i32 s54, s54, 4608\ns_sub_u32 s54, s54, s55\ns_add_u32 s55, s55, %d\ns_lshr_b32 s53, s16, 1\ns_xor_b32 s53, s53, s22\ns_xor_b32 s53, s53, 3' % L_P)
    if o['alt'] == 3: a('s_and_b32 s52, s22, 2\ns_xor_b32 s52, s52, s53')
    def preads(dst, fa, ha, qt, tag):
        off = 1536 * qt
        return [ds('ds_read_b128 %s, v%d offset:%d' % (v(dst[0], 4), fa[0], off), tag),
                ds('ds_read_b64 %s, v%d offset:%d' % (v(dst[1], 2), ha[0], off + 1024), tag),
                ds('ds_read_b64 %s, v%d offset:%d' % (v(dst[1] + 2, 2), ha[1], off + 1024), tag),
                ds('ds_read_b128 %s, v%d offset:%d' % (v(dst[2], 4), fa[1], off), tag)]
    PB = [[80 + 4 * k for k in range(6)], [108 + 4 * k for k in range(6)], [80 + 4 * k for k in range(6)]]
    def reads_F(qt): return preads(PB[qt][:3], PFULL[:2], PHALF[:2], qt, 'p%da' % qt) + preads(PB[qt][3:], PFULL[2:], PHALF[2:], qt, 'p%db' % qt)
    if o['vdry']: a('L_xa_BP:')
    run(reads_W(0, 0))
    for p in range(8):
        i = PC(p) >> 1; first = PC(p) & 1 == 0
        if p < 2: ex0, ex1 = (padr[:5], padr[5:10]) if p == 0 else (padr[10:], [] if o['vf'] == 1 else ['v_add_u32 v%d, %d, v%d' % (250 + t, L_P, WA + t) for t in range(4)])
        elif o['alt']:
            cv = cvt_W({3: 0, 4: 1, 7: 2}[p]) if p in (3, 4, 7) else []
            k_ = 12 if p != 4 else 10
            ex0, ex1 = cv[:k_], cv[k_:]
        else:
            cv = cvt_W(i - 1)
            ex0, ex1 = (cv[:6], cv[6:12]) if p % 2 == 0 else (cv[12:18], cv[18:])
        if 'E' in o['hack'] and p >= 6:
            st_ = lambda h: 'buffer_store_dwordx4 v[244:247], v25, s[%d:%d], s%d offen sc1\ns_add_u32 s%d, s%d, %d' % (SWS, SWS + 3, 56 + h, 56 + h, 56 + h, o['MQ'])
            if p == 6: ex1 = ex1 + [st_(0)]
            else: ex0 = ex0 + [st_(1)]; ex1 = ex1 + [st_(0)]
        step(mfma(HACC[i], 0, first, True), reads_W(p, 1), extra=ex0, xstart=(4 if p % 2 == 0 else 0) if not o['alt'] else 1, waits=wW(p, 0))
        step(mfma(HACC[i], 1, False, True), reads_W(p + 1, 0) if p < 7 else reads_F(0), extra=ex1, xstart=1, waits=wW(p, 1), pre=xbc('w%d' % p))
        stC('s%d' % p if p < 7 else 'VW end', 2 if p < 7 else 1)
    RACC = [[244, 248, 252, 104], [32, 36, 40, 44], [244, 248, 252, 104]]
    PK = [76, 12]; OP = [[108, 112, 116], [120, 124, 48], [52, 56, 60]]
    def fm(qt, t, k): return MF % (v(RACC[qt][t], 4), v([C, B][k // 3] + 12 * t + 4 * (k % 3), 4), v(PB[qt][k], 4), v(RACC[qt][t], 4) if k else '0')
    def store_F(qt, h):
        if o['own3'] == 2:
            pk = [76, 32, 44][qt] if h == 0 else PK[1]
            return cvt(pk, RACC[qt][2 * h]) + cvt(pk + 2, RACC[qt][2 * h + 1]) + ['buffer_store_dwordx4 %s, v%d, s[%d:%d], s%d offen sc1' % (v(pk, 4), 25 if h else 1, SWS, SWS + 3, 34 + 2 * qt + h)]
        if o['own3']:
            return cvt(PK[h], RACC[qt][2 * h]) + cvt(PK[h] + 2, RACC[qt][2 * h + 1]) + \
                ['buffer_store_dwordx4 %s, v%d, s[%d:%d], s%d offen sc1' % (v(PK[h], 4), 25 if h else 1, SWS, SWS + 3, 34 + 2 * qt + h)] + \
                (['s_mov_b64 exec, s[30:31]\nds_write_b128 v27, %s offset:%d\ns_mov_b64 exec, -1' % (v(PK[h], 4), 1024 * qt)] if h == 0 else [])
        l_ = 'L_own%d%d' % (qt, h)
        ownw = '\ns_cmp_lg_u32 s48, %d\ns_cbranch_scc1 %s\nds_write_b128 v27, %s offset:%d\n%s:' % (h, l_, v(PK[h], 4), 1024 * qt, l_) if o['own'] else ''
        if o['own'] and o['ownx']: ownw = '\ns_mov_b64 exec, s[%d:%d]\nds_write_b128 v27, %s offset:%d\ns_mov_b64 exec, -1' % (30 + 2 * h, 31 + 2 * h, v(PK[h], 4), 1024 * qt)
        return cvt(PK[h], RACC[qt][2 * h]) + cvt(PK[h] + 2, RACC[qt][2 * h + 1]) + \
               ['buffer_store_dwordx4 %s, v25, s[%d:%d], s%d offen sc1\ns_add_u32 s%d, s%d, %d' % (v(PK[h], 4), SWS, SWS + 3, 56 + h, 56 + h, 56 + h, o['MQ']) + ownw]
    def oflag(d):
        if o['ocl'] == 1: return flag(30, 256 + d)
        return FOP + ' v29, v2, s[%d:%d], 0 offen offset:%d sc1' % (SWS, SWS + 3, d)
    def sflag(off): return 's_atomic_add s40, s[14:15], s42\ns_atomic_add s40, s[14:15], s43'
    if 'N' in o['hack']:
        sG = store_F
        def store_F(qt, h): return sG(qt, h)[:4]
    if 'E' in o['hack']:
        sF = store_F
        def store_F(qt, h):
            r_ = sF(qt, h)
            if (qt, h) == (0, 1): return r_[:4] + ['s_waitcnt vmcnt(2)\n' + flag(28, 0)]
            if (qt, h) == (1, 1): return r_[:4] + ['s_waitcnt vmcnt(1)\n' + flag(28, 128)]
            return r_ if qt == 2 else r_[:4]
    def flag(reg, off): return FOP + ' v29, v%d, s[%d:%d], 0 offen offset:%d sc1' % (reg, SWS, SWS + 3, off)
    m = [fm(0, t, k) for k in range(6) for t in range(4)]
    c3 = cvt_W(3)
    c3 = [c3[6 * t + j] for t in range(4) for j in (4, 5)] + [c3[6 * t + j] for t in range(4) for j in range(4)]
    step(m[:19], reads_F(1), extra=c3, xstart=3, waits={0: ['p0a'], 11: ['p0b']})
    step(m[19:], [], extra=[st_(1)] if 'E' in o['hack'] else [])
    if o['vdry']: a('s_cbranch_execz L_vwret')
    stC('R0', 2)
    m = [fm(1, t, k) for t in range(4) for k in range(6)]
    step(m[:17], reads_F(2), extra=store_F(0, 0) + store_F(0, 1), xstart=2 if o['asap'] & 2 else 3, xper=1 if o['asap'] & 2 else 0, waits={0: ['p1a'], 3: ['p1b']})
    step(m[17:], [], extra=store_F(1, 0), xper=2 if o['asap'] & 2 else 0)
    stC('R1', 2)
    xo = o['xo']
    m = [fm(2, t, k) for t in range(4) for k in range(6)]
    step(m[:xo], [], extra=store_F(1, 1), xstart=2 if o['asap'] & 4 else 4, xper=1 if o['asap'] & 4 else 0, waits={0: ['p2a'], 3: ['p2b']})
    seq = rdO(0) + rdO(1); k1 = min(14, 24 - xo)
    def ownw(qts): return 's_mov_b64 exec, s[30:31]\n' + '\n'.join('ds_write_b128 v27, %s offset:%d' % (v([76, 32, 44][q_], 4), 1024 * q_) for q_ in qts) + '\ns_mov_b64 exec, -1'
    step(m[xo:], seq[:k1], extra=store_F(2, 0) + ([ownw([1])] if o['own3'] == 2 else []), xstart=max(0, (16 if o['asap'] & 4 else 18) - xo), xper=1 if o['asap'] & 4 else 0, pre=xb('O') + (['s_waitcnt vmcnt(2)\n' + flag(28, 0)] if o['f0at'] == 'R2' else []))
    stC('R2', 2)
    op = [x_ for qt in range(3) for x_ in preads(OP[qt], POF, POH, qt, 'po')]
    f0 = 's_waitcnt vmcnt(3)\n' + flag(28, 0)
    f1 = 's_waitcnt vmcnt(3)\n' + flag(28, 128)
    step(mfma_O[:12], seq[k1:] + rdO(2) + rdO(3), extra=store_F(2, 1) + ([flag(28, 256)] if 'c' in o['hack'] else []), xstart=1 if o['asap'] & 1 else 4, xper=1 if o['asap'] & 1 else 0, waits={0: ['os0'], 6: ['os1']}, pre=[f0] if o['ef'] >= 1 and 'E' not in o['hack'] and o['f0at'] == 'O' else [])
    def fo(k, first): return [MF % (v(SP + 4 * qt, 4), v(VWO + 4 * k, 4), v(OP[qt][k], 4), '0' if first else v(SP + 4 * qt, 4)) for qt in range(3)]
    if o['fo2']:
        assert o['ef'] == 2 and not o['e2'] and o['own3'] and 'E' not in o['hack']
        mo = mfma_O[12:15] + mfma_O[18:21] + mfma_O[15:18] + mfma_O[21:24]
        step(mo[:8], op[:10], waits={0: ['os2'], 3: ['os3']}, extra=[f1], xstart=min(7, o['e0']))
        step(mo[8:], op[10:], extra=cvt_O[:6], xstart=1)
        stC('O', 2)
        lg.wait('po')
        f0_, f2_, f1_ = fo(0, True), fo(2, False), fo(1, False)
        def ost(qt): return cvt(VWO + 2 * qt, SP + 4 * qt) + ['buffer_store_dwordx2 %s, v%d, s[%d:%d], s%d offen sc1' % (v(VWO + 2 * qt, 2), 3 if o['o64'] else 26, SWS, SWS + 3, [58, 56, 57][qt])]
        step(f0_, [], extra=cvt_O[6:])
        run([f2_[0], f1_[0], f2_[1], f1_[1], f2_[2], f1_[2]])
        if 'r' in o['hack']: a('s_mov_b64 exec, 0xfc'); a(oflag(0)); a('s_mov_b64 exec, -1\ns_cmp_lg_u32 s21, 3\ns_cbranch_scc1 L_hr\ns_sleep 60\nL_hr:\ns_nop 7')
        run(ost(0) + ost(1) + ost(2))
    else:
        step(mfma_O[12:], op, waits={0: ['os2'], 6: ['os3']}, extra=[f1] if o['ef'] >= 2 and 'E' not in o['hack'] else [], xstart=o['e0'])
        stC('O', 2)
        def fo(k, first): return [MF % (v(SP + 4 * qt, 4), v(VWO + 4 * k, 4), v(OP[qt][k], 4), '0' if first else v(SP + 4 * qt, 4)) for qt in range(3)]
        run(cvt_O[:6])
        step(fo(0, True), [], extra=cvt_O[6:], waits={0: ['po']})
        run(fo(2, False) + fo(1, False))
        if o['ef'] == 0: a('s_waitcnt vmcnt(4)'); a(flag(28, 0))
        if o['ef'] < 2: a('s_waitcnt vmcnt(3)'); a(flag(28, 128))
        if o['e2']: a('s_waitcnt vmcnt(1)'); a(flag(28, 256))
        if 'r' in o['hack']: a('s_mov_b64 exec, 0xfc'); a(oflag(0)); a('s_mov_b64 exec, -1\ns_cmp_lg_u32 s21, 3\ns_cbranch_scc1 L_hr\ns_sleep 60\nL_hr:')
        for qt in range(3):
            run(cvt(VWO + 2 * qt, SP + 4 * qt) + ['buffer_store_dwordx2 %s, v%d, s[%d:%d], s58 offen sc1\ns_add_u32 s58, s58, %d' % (v(VWO + 2 * qt, 2), 3 if o['o64'] else 26, SWS, SWS + 3, o['OT'] * (2 if o['o64'] else 1))])
    stC('final end')
    if o['sent']:
        assert (o['rep'] == 1 or o['ack1']) and o['atom']
        a('s_mov_b64 exec, %s' % ('4' if o['shc'] & 2 else '0x24' if o['shc'] & 4 else '0xfcfc' if o['rep'] > 1 else '0xfc')); a(oflag(8 if 'r' in o['hack'] else 0)); a('s_mov_b64 exec, -1')
    if o['own3'] == 2:
        assert o['xe'] in ('E', 'G', 'H')
        a(ownw([0, 2]))
    if o['own'] and not (o['own3'] == 2 and o['xe'] == 'H'): a(W0)
    if o['xe'] == 'E': a('s_barrier')
    if not o['e2'] and 'c' not in o['hack']: a('s_waitcnt vmcnt(%d)' % ((5 if o['ef'] == 0 else 4) + o['sent'] - ('E' in o['hack']))); a(sflag(256) if o['sat'] & 1 else flag(28, 256))
    if o['xe'] == 'H': a((W0 + '\n' if o['own3'] == 2 else '') + 's_barrier')
    if 'b' not in o['hack']: a('s_waitcnt vmcnt(%d)' % (o['sent'] + (0 if o['e2'] or 'c' in o['hack'] or o['sat'] & 1 else 1)))
    a('s_mov_b64 exec, %s' % ('4' if o['ack1'] and o['sent'] and o['o64'] else '0xfcfc')); a(flag(30, 256 + (64 - OOFF) * o['sent']).replace(', 0 offen', ', s41 offen' if o['ack1'] == 2 and o['sent'] and o['o64'] else ', 0 offen')); a('s_mov_b64 exec, -1')
    if o['xe'] == 'G': a('s_barrier')
    stC('flags sent')
    a(';WARM_OFF')
    stC.flush(0)
    a('s_endpgm')
    a('; ==== helpers')
    if o['padH']: a('.fill %d, 4, 0xbf800000' % o['padH'])
    a('L_help:')
    a('s_sub_u32 s18, s20, 5\ns_sub_u32 s52, s20, 1')
    a('v_lshlrev_b32 v25, 4, v0\nv_lshlrev_b32 v26, 3, v0')
    a('v_mov_b32 v12, 0\nv_mov_b32 v13, 0\nv_mov_b32 v14, 0\nv_mov_b32 v15, 0\nv_mov_b32 v29, 1\nv_mov_b32 v28, 0x7ff00000\nv_mov_b32 v30, v28\nv_mov_b32 v3, v28')
    a(W0)
    srd(SWS, 14, 'ws')
    if o['sent'] and o['clr'] == 'start': clears(False, 40, 44)
    def dry_run(name):
        a('s_mov_b64 exec, 0\ns_branch L_dry_%s\nL_dryret_%s:\ns_mov_b64 exec, -1' % (name, name))
    def warm_run(at):
        if o['dry'] and at == o['dryat'][0]: dry_run('mp')
        if o['dry'] and at == o['dryat'][1]: dry_run('op')
        if o['warm']:
            for c_, x_ in enumerate(o['wat']):
                if x_ == at: a('s_mov_b64 exec, 0\ns_branch L_wchain%d\nL_wret%d:\ns_mov_b64 exec, -1' % (c_, c_))
    if o['vdry']:
        a('s_cmp_lg_u32 s20, 6\ns_cbranch_scc1 L_nl\ns_cmp_ge_u32 s2, 32\ns_cbranch_scc1 L_nl\ns_lshl_b32 s3, s2, 12')
        for j in range(4): a('buffer_store_dwordx4 v[12:15], v25, s[%d:%d], s3 offen offset:%d sc1' % (SWS, SWS + 3, 1024 * j))
        a('L_nl:\ns_mov_b64 exec, 0\ns_cmp_eq_u32 s20, 5\ns_cbranch_scc1 L_xa_BP\ns_cmp_eq_u32 s20, 6\ns_cbranch_scc1 L_xa_%s\ns_branch L_xa_%s' % tuple(o['vseg']))
        a('L_vwret:\ns_mov_b64 exec, -1\ns_waitcnt lgkmcnt(0)\ns_nop 7')
        a('s_cmp_eq_u32 s20, 7\ns_cbranch_scc1 L_h2\ns_cmp_eq_u32 s20, 5\ns_cbranch_scc1 L_h0\ns_cmp_ge_u32 s2, 32\ns_cbranch_scc1 L_h0')
        if o['hs2']: a('s_waitcnt vmcnt(0)\ns_mov_b64 exec, 1\nglobal_atomic_add v12, v29, s[12:13] sc1\ns_mov_b64 exec, -1')
        else:
            a('s_lshl_b32 s3, s2, 2\nv_mov_b32 v16, s3\ns_waitcnt vmcnt(0)')
            a('s_mov_b64 exec, 1\nglobal_store_dword v16, v29, s[12:13] sc1\ns_mov_b64 exec, -1')
    else:
        a('s_cmp_eq_u32 s20, 7\ns_cbranch_scc1 L_h2')
        if o['ldr'] == [-1, -1]:
            a('s_cmp_eq_u32 s20, 5\ns_cbranch_scc1 L_h0')
            a('s_cmp_ge_u32 s2, 32\ns_cbranch_scc1 L_h0')
            a('s_lshl_b32 s3, s2, 12')
            assert G_FL == 0
            for j in range(4): a('buffer_store_dwordx4 v[12:15], v25, s[%d:%d], s3 offen offset:%d sc1' % (SWS, SWS + 3, 1024 * j))
            if o['hs2']: a('s_waitcnt vmcnt(0)\ns_mov_b64 exec, 1\nglobal_atomic_add v12, v29, s[12:13] sc1\ns_mov_b64 exec, -1')
            else:
                a('s_lshl_b32 s3, s2, 2\nv_mov_b32 v16, s3\ns_waitcnt vmcnt(0)')
                a('s_mov_b64 exec, 1\nglobal_store_dword v16, v29, s[12:13] sc1\ns_mov_b64 exec, -1')
    def leader(at):
        if o['ldr'] == [-1, -1] or at not in o['ldr']: return
        l_ = a.label('L_nl')
        a('s_cmp_lg_u32 s19, 0\ns_cbranch_scc1 %s' % l_)
        if at == o['ldr'][0]:
            a('s_lshl_b32 s3, s2, 12')
            for j in range(4): a('buffer_store_dwordx4 v[12:15], v25, s[%d:%d], s3 offen offset:%d sc1' % (SWS, SWS + 3, 1024 * j))
        if at == o['ldr'][1]: a('s_waitcnt vmcnt(0)\ns_mov_b64 exec, 1\nglobal_atomic_add v12, v29, s[12:13] sc1\ns_mov_b64 exec, -1')
        a(l_ + ':')
    if o['ldr'] != [-1, -1]: a('s_xor_b32 s19, s20, 6\ns_or_b32 s19, s19, s23'); leader(-1)
    a('L_h0:')
    unit_setup()
    for c in range(9 + o['b8a']):
        a('s_barrier')
        leader(c)
        if c == 4: run(k_reads())
    a('s_branch L_unit')
    a('L_h2:')
    if not o['cpfL']: code_prefetch()
    def odd_prefetch():
        a(kvbase('s3') + '\ns_lshr_b32 s17, s2, 7\ns_lshl_b32 s17, s17, %d\ns_add_u32 s3, s3, s17\ns_lshl_b32 s3, s3, 4\ns_bfe_u32 s17, s2, 0x40003\ns_add_u32 s3, s3, s17\ns_mul_i32 s3, s3, %d\ns_add_u32 s3, s3, 1024' % (KL, 16 * 1152))
        a('v_mul_u32_u24 v7, 1152, v1\nv_add_u32 v7, s3, v7\ns_mov_b64 exec, 0xffff\nglobal_load_dword v37, v7, s[8:9]\ns_mov_b64 exec, -1')
    def tlb_touch():
        a('s_lshl_b32 s3, s2, 7\nv_lshlrev_b32 v7, 21, v0\nv_add_u32 v7, s3, v7\nv_add_u32 v8, 0x1f0000, v7')
        a('s_mov_b64 exec, 0x7f\nglobal_load_dword v32, v8, s[14:15]')
        if o['tlb'] in (1, 3):
            a('s_mov_b64 exec, 7\nglobal_load_dword v33, v7, s[8:9]')
            a('s_mov_b64 exec, 3\nglobal_load_dword v34, v7, s[4:5]\nglobal_load_dword v35, v7, s[6:7]')
        a('s_mov_b64 exec, 1\nglobal_load_dword v36, v7, s[10:11]\ns_mov_b64 exec, -1')
    if o['tlb'] in (1, 2): tlb_touch()
    hs = 's_load_dwordx16 s[84:99], s[12:13], 0%s\ns_load_dwordx16 s[28:43], s[12:13], 64%s'
    warm_run(-1)
    for c in range(10 + o['b8a'] + o['bs']):
        a('s_barrier')
        warm_run(c)
        if c == o['hsbar']: a('s_load_dword s84, s[12:13], 0' if o['hs2'] else hs % ('', ''))
        if c == o['oddpf']: odd_prefetch()
        if c == o['cpf2']: code_prefetch('L_pc2')
        if c == 0 and o['tlb'] == 3: tlb_touch()
        if c == 8 and o['tlb'] == 4: tlb_touch()
    if o['hs2']:
        a('s_waitcnt lgkmcnt(0)\ns_cmp_ge_u32 s84, 32\ns_cbranch_scc1 L_hsok\ns_mov_b32 s54, %d\nv_mov_b32 v12, 0' % SPIN)
        if 'C' in o['hack']: a('v_mov_b32 v20, 160\ns_mov_b64 exec, 1\nglobal_atomic_add v20, v29, s[12:13] sc1\ns_mov_b64 exec, -1')
        a('L_hs:\nglobal_load_dword v13, v12, s[12:13] sc1\ns_sub_u32 s54, s54, 1\ns_cbranch_scc1 L_hsok\ns_waitcnt vmcnt(0)\nv_cmp_gt_u32 vcc, 32, v13\ns_cbranch_vccnz L_hs\nL_hsok:')
    else:
        a('s_mov_b32 s54, %d\nL_hs:\ns_waitcnt lgkmcnt(0)' % SPIN)
        and16(84); and16(28); a('s_and_b32 s84, s84, s28')
        a('s_cbranch_scc1 L_hsok\ns_sub_u32 s54, s54, 1\ns_cbranch_scc1 L_hsok')
        if 'C' in o['hack']: a('v_mov_b32 v20, 160\ns_mov_b64 exec, 1\nglobal_atomic_add v20, v29, s[12:13] sc1\ns_mov_b64 exec, -1')
        a(hs % (' glc', ' glc')); a('s_branch L_hs\nL_hsok:')
    a('s_barrier')
    if o['oddpf'] == 11: odd_prefetch()
    if o['cpf2'] == 11: code_prefetch('L_pc2')
    a('L_help2:')
    run(xb('w0'))
    a('s_mul_i32 s17, s18, 3072')
    srd(SOUT, 10, 'out')
    a('s_lshl_b32 s3, s2, 9\ns_lshl_b32 s53, s18, 7\ns_add_u32 s62, s3, s53\ns_add_u32 s66, s14, s62\ns_addc_u32 s67, s15, 0')
    a('s_and_b32 s3, s2, 0xe7\ns_lshl_b32 s3, s3, 9\ns_add_u32 s53, s53, s3\n' + ('' if o['atom'] else 's_lshl_b32 s3, s22, 2\ns_add_u32 s53, s53, s3\n') + 'v_lshlrev_b32 v21, 12, v0')
    a('s_mul_i32 s55, s2, %d\ns_mul_i32 s56, s18, %d\ns_add_u32 s55, s55, s56\ns_add_u32 s55, s55, %d\ns_add_u32 s56, s55, 4096' % (o['MO'], o['MQ'], G_PM))
    a('s_lshl_b32 s59, s23, 1\ns_lshr_b32 s3, s21, 2\ns_add_u32 s59, s59, s3\ns_mul_i32 s59, s59, 3\ns_add_u32 s59, s59, s18\ns_mul_i32 s59, s59, %d' % (16 * 1152))
    a('s_lshl_b32 s3, s22, 8\ns_add_u32 s59, s59, s3\ns_and_b32 s3, s21, 3\ns_lshl_b32 s3, s3, 6\ns_add_u32 s59, s59, s3')
    def pfetch(d):
        a('s_add_u32 m0, s17, %d\ns_xor_b32 s58, s2, %d\ns_mul_i32 s58, s58, 9216\ns_add_u32 s58, s58, s17\ns_add_u32 s58, s58, %d' % (L_P + 9216 * (3 - d), d << 3, G_P))
        for j in range(3):
            if 'e' not in o['hack'] and 'x' not in o['hack']: a('buffer_load_dwordx4 v25, s[%d:%d], s58 offen offset:%d sc1 lds' % (SWS, SWS + 3, 1024 * j))
    xs = [x_ for x_ in XN[:-1] if x_[0] == 'w' and x_ != 'w0']
    k = 0
    while True:
        nm = xs[k]; k += 1
        run(xb(nm))
        if nm == o['ack']:
            if o['sat'] & 2:
                a('s_mov_b32 s40, 1')
                for d in (1, 2, 3): a('s_xor_b32 s3, s62, %d\ns_atomic_add s40, s[14:15], s3' % (d << 12))
            else:
                a('s_mov_b64 exec, 15' + ('\ns_bitset0_b64 exec, s22' if o['noself'] else '') + '\n' + FOP + ' v29, v21, s[%d:%d], s53 offen sc1\ns_mov_b64 exec, -1' % (SWS, SWS + 3))
            stH('P flag sent')
        if o['ownp'] and not o['pds'] and nm == o['ownat']: pfetch(0)
        if o['sent'] and nm == o['clr']: clears()
        if nm == o['poll0']: break
    assert xs.index(o['ack']) < k and (o['vf'] == 1 or ALLN.index(xs[k]) >= ALLN.index('w5' if o['vf'] else 'w4')) and k < len(xs) - 1
    a('s_mov_b32 s54, %d\ns_mov_b32 s52, %d' % (SPIN, len(xs) - 1 - k))
    a('L_pp:\n' + ('s_load_dword s84' if o['atom'] else 's_load_dwordx4 s[84:87]') + ', s[66:67], 0 glc')
    a('s_cmp_eq_u32 s52, 0\ns_cbranch_scc1 L_pp1\ns_barrier\ns_sub_u32 s52, s52, 1\nL_pp1:')
    a('s_sub_u32 s54, s54, 1\ns_cbranch_scc1 L_ppok\ns_waitcnt lgkmcnt(0)')
    a(('' if o['atom'] else 's_add_u32 s84, s84, s85\ns_add_u32 s86, s86, s87\ns_add_u32 s84, s84, s86\n') + 's_cmp_%s_u32 s84, %d\ns_cbranch_scc0 L_pp\nL_ppok:' % ('le' if 'a' in o['hack'] else 'ge', 4 - o['noself']))
    stH('P flags ok')
    if 'S' in o['hack']:
        a('s_mul_i32 s19, s18, %d\nL_sg:\ns_cmp_eq_u32 s19, 0\ns_cbranch_scc1 L_sgd\ns_cmp_eq_u32 s52, 0\ns_cbranch_scc1 L_sgd\ns_barrier\ns_sub_u32 s52, s52, 1\ns_sub_u32 s19, s19, 1\ns_branch L_sg\nL_sgd:' % o.get('sk', 1))
    for d in range(o['ownp'], 4): pfetch(d)
    if o['sent'] and o['clr'] == 'p': clears()
    a('L_pb:\ns_cmp_eq_u32 s52, 0\ns_cbranch_scc1 L_pbd\ns_barrier\ns_sub_u32 s52, s52, 1\ns_branch L_pb\nL_pbd:')
    if 'S' in o['hack']: a('s_cmp_lg_u32 s18, 0\ns_cbranch_scc1 L_now')
    a('s_waitcnt vmcnt(%d)' % (2 if o['sent'] and o['clr'] == 'p' else 0))
    if 'S' in o['hack']: a('L_now:')
    stH('P landed')
    a('s_barrier')
    if o['sent'] and o['clr'] == 'w7' and 'Z' not in o['hack']: clears()
    a('s_waitcnt vmcnt(0)\ns_barrier')
    if 'f' in o['hack']: a('s_endpgm')
    a('s_mov_b32 s54, %d' % SPIN)
    a('s_lshl_b32 s3, s18, 10\ns_add_u32 s3, s3, %d\nv_add_u32 v27, s3, v25' % L_F)
    if o['shc'] & 1: a('s_andn2_b32 s62, s62, 512\ns_add_u32 s66, s14, s62\ns_addc_u32 s67, s15, 0')
    reduce('mp', 8, 4, MOFF, 25, 's59', stH)
    if stamps:
        a('s_waitcnt vmcnt(0)'); stH('end'); stH.flush(7)
    a('L_end:\ns_endpgm\nL_codeend:')
    a(kernel_desc(KN, 256, 256, o.get('nsgpr', 102)))
    if o['warm']:
        def size(l):
            t = l.split(';')[0].strip()
            if not t or t.endswith(':') or t.startswith('.'): return 0
            return 8 if t.startswith(('v_mfma', 'ds_', 'buffer_', 'global_', 'v_cvt_pk', 'v_pk_', 'v_max3', 's_load')) else 4.6
        out = []; on = False; acc = 0; pads = []
        for l in a.lines:
            if l == ';WARM_ON': on = True; acc = 1e9; continue
            if l == ';WARM_OFF': on = False; continue
            if on and acc >= o['wstep'] and size(l) and not l.startswith(('ds_write', 's_mov_b64 exec', 'buffer_atomic', 's_cbranch', 's_cselect', 's_addc')):
                pads.append(len(out)); out.append(None); acc = 4
            out.append(l); acc += size(l)
        n = len(pads); NC = len(o['wat']); per = -(-n // NC)
        order = list(range(n - 1, -1, -1))
        for j, k in enumerate(order):
            last = (j + 1) % per == 0 or j + 1 == n
            out[pads[k]] = 'L_wp%d:\ns_cbranch_execz %s' % (k, 'L_wret%d' % (j // per) if last else 'L_wp%d' % order[j + 1])
        txt = '\n'.join(out)
        for c_ in range(NC): txt = txt.replace('L_wchain%d' % c_, 'L_wp%d' % order[c_ * per] if c_ * per < n else 'L_wret%d' % c_)
        a.lines = txt.split('\n')
    else: a.lines = [l for l in a.lines if not l.startswith(';WARM')]
    a.lines = hazard.pad(a.lines, False)
    return a.text()
if __name__ == '__main__':
    import json
    name = sys.argv[1] if len(sys.argv) > 1 else 'p8_v11'
    opt = json.loads(sys.argv[2]) if len(sys.argv) > 2 else None
    open(name + '.s', 'w').write(gen(0, opt))
    open(name + '_st.s', 'w').write(gen(1, opt))
    open(name + '_st2.s', 'w').write(gen(2, opt))
    open(name + '_st3.s', 'w').write(gen(3, opt))
    open(name + '_st4.s', 'w').write(gen(4, opt))
```

```python
import sys, math, struct
from asmlib import *
import hazard
from gen_f16 import Cnt, interleave, f2i, v

L_W = 0; L_X0 = 49152; XOFF = [0, 12288, 49152]; L_K = 73728; L_Q = 49152; L_P = 73728; L_F = 159744; L_V = 110592
G_FL = 0x0
G_P = 0x40000
G_PM = 0x400000
G_PO = 0xD00000
SX, SWQ, SK, SV, SWO, SWS, SOUT = 24, 28, 32, 36, 40, 44, 48
SPIN = 1 << 16
MF = 'v_mfma_f32_16x16x32_bf16 %s, %s, %s, %s'

HEADER = """; Kernarg layout (64 bytes, pointers only, base s[0:1]):
;
; Hand-offs: data is stored write-through (sc1); after the stores are acknowledged the producer bumps a counter of the consumer
;   (device-scope atomic); the consumer polls it and then loads with sc1.  Counters are zeroed inside the launch by workgroups 0..31,
;   which report through a counter in debug.  The last, small hand-off is signalled before the acknowledgement: its slots are first filled with
;   a NaN marker in this launch, and a consumer that still sees a NaN waits for the acknowledged counter and reads again.
;   Nothing depends on workgroup placement except speed; every poll loop is bounded.
;            | 110592 V (4x12K) | 159744 own partial chunks.  Tiles are XOR-swizzled on the global side of the DMA."""

def gen(stamps=0, opt=None):
    o = dict(order='qqqKqqqqqq', win=24, codepf=True, rot='g3', pk=True, lprio=0, afterB8=1, afterBQ=4, ack='w1', poll0='w3', cprio=0, prog=False, x4=True, xo=14, ef=2, xe='', sent=1, clr='w7', e2=0, nt={}, split=1, uprio=0, early_flag=True, outsc='sc1', oddsc=None, btr=0, opre=0, o64=1, ack1=1, vdry=0, sub='', hoist=1, pre=0, lead=12, mimic=0, hs2=1, fo2=1, asap=7, repn=['op', 'mp'], ownlast=0, ocl=1, shc=1, ox4=1, ldr=[-1, -1], guard=[60, 44], leadk=1, lead0=2, vseg=['w2', 'w5'], first_half=False, hsbar=8, poll='s', psleep=0, tlb=0, remap=0, oddpf=8, rot2=1, lateat=3, own=1, ownx=1, tramp=[], far=0, alt=3, klate=1, pds=1, own3=1, bs=0, vf=0, sat=0, dry=1, dryat=[-1, 0], cpf2=-9, qseq='', f0at='O', MQ=7168, MO=21504, OT=8192, kvmap=9, bm=0, cpfL=1, acc=1, warm=0, wstep=960, wat=[-1, 0, 1], padL=0, padC=0, padH=0, b8a=0, tm=1, q64=2, stlb=0, hack='', atom=1, rep=1, wsw=1, ownp=1, atune=0, oe=0, hsbar_=0, ownat='w3', e0=8, e1='end', m0o=1, rsl=6, qs=5, fine0=1, wqfirst=0, skip=['w0'], noself=1)
    if opt: o.update(opt)
    if stamps in (2, 3): o['pre'] = 0
    if o['klate']: o['order'] = 'q' * 9; o['q64'] = 3; o.setdefault('pre8', ['k0'] if 'plan' in o else ['k0', 'v0'])
    a = Asm()
    a(HEADER)
    a('; @launch grid=(256,1,1) block=(512,1,1) lds=163840')
    a(HEAD); a(kernel_begin(KN))
    def run(seq):
        for x in seq:
            if callable(x): x()
            else: a(x)
    class St:
        def __init__(s, base, n, r0): s.base = base; s.n = n; s.k = 0; s.r0 = r0
        def __call__(s, name='x', lvl=1):
            if ((stamps >= lvl and lvl < 2) or stamps == lvl) and (stamps != 5 or name in ('start', 'final end')):
                assert s.k < s.n, name
                a('; stamp %d %s' % (s.base + s.k, name))
                a('s_memrealtime s[%d:%d]' % (s.r0 + 2 * s.k, s.r0 + 1 + 2 * s.k)); s.k += 1
        def flush(s, wave):
            if stamps and s.k:
                l_ = a.label('L_nst')
                a('s_cmp_lg_u32 s20, %d\ns_cbranch_scc1 %s' % (wave, l_))
                a('s_waitcnt lgkmcnt(0)\nv_mov_b32 v31, 0\ns_lshl_b32 s3, s2, 9\ns_add_u32 s3, s3, %d' % (STAMP_OFF + 8 * s.base))
                for i in range(s.k):
                    a('v_mov_b32 v254, s%d\nv_mov_b32 v255, s%d' % (s.r0 + 2 * i, s.r0 + 1 + 2 * i))
                    a('buffer_store_dwordx2 v[254:255], v31, s[%d:%d], s3 offen offset:%d' % (SWS, SWS + 3, 8 * i))
                a(l_ + ':')
    stC = St(0, 21, 60); stL = St(24, 17, 68); stH = St(44, 6, 32)
    W0 = 's_waitcnt lgkmcnt(0)'
    def XS(c): return [0, 12288, 49152, 24576][(c + 2) % 4] if o['lead'] else XOFF[c % 3]
    KL = o['kvmap'] - 9; KJ = 1 << KL
    def kvbase(dst):
        src = 's21'
        if KL == 0: return 's_lshl_b32 %s, s21, 1' % dst
        if KL == 3: return 's_mov_b32 %s, s21' % dst
        return 's_and_b32 %s, s21, %d\ns_add_u32 %s, %s, s21' % (dst, 7 & ~(KJ - 1), dst, dst)
    def PC(p): return (p & 4) | ((p & 1) << 1) | ((p >> 1) & 1) if o['alt'] else p
    FOP = 'buffer_atomic_add' if o['atom'] else 'buffer_store_dword'
    MOFF = (4 if o['rep'] > 1 else 64) if o['atom'] else 32
    OOFF = 4 if o['rep'] > 1 else 0
    assert o['rep'] in (1, 2) and (o['atom'] or o['rep'] == 1)
    stC('start')
    a('s_cmp_ge_u32 s2, 256\ns_cbranch_scc1 L_end')
    a('s_load_dwordx2 s[%d:%d], s[0:1], %d' % (SX, SX + 1, SLOT['x']))
    a('s_load_dwordx2 s[%d:%d], s[0:1], %d' % (SWQ, SWQ + 1, SLOT['wq']))
    a('s_load_dwordx4 s[4:7], s[0:1], %d' % SLOT['k'])
    a('s_load_dwordx8 s[8:15], s[0:1], %d' % SLOT['wo'])
    if o['remap'] == 1: a('s_lshr_b32 s3, s2, 2\ns_and_b32 s3, s3, 0x18\ns_xor_b32 s2, s2, s3')
    if o['remap'] == 2: a('s_lshr_b32 s3, s2, 3\ns_and_b32 s3, s3, 0x18\ns_lshl_b32 s21, s2, 2\ns_and_b32 s21, s21, 0xe0\ns_and_b32 s2, s2, 7\ns_or_b32 s2, s2, s3\ns_or_b32 s2, s2, s21')
    if o['remap'] == 3: a('s_xor_b32 s2, s2, 0x18')
    if o['remap'] == 4: a('s_bfe_u32 s3, s2, 0x10002\ns_and_b32 s21, s2, 3\ns_lshl1_add_u32 s3, s21, s3\ns_and_b32 s2, s2, 0xf8\ns_or_b32 s2, s2, s3')
    if o['remap'] == 5: a('s_xor_b32 s2, s2, 1')
    a('v_lshrrev_b32 v1, 6, v0\nv_and_b32 v0, 63, v0\nv_readfirstlane_b32 s20, v1')
    if o['wsw']: a('s_xor_b32 s20, s20, 4')
    a('s_and_b32 s21, s2, 7\ns_bfe_u32 s22, s2, 0x20003\ns_lshr_b32 s23, s2, 5')
    a('v_and_b32 v1, 15, v0\nv_lshrrev_b32 v2, 4, v0')
    def srd(r, src, n):
        if src is not None: a('s_mov_b32 s%d, s%d\ns_mov_b32 s%d, s%d' % (r, src, r + 1, src + 1))
        a('s_mov_b32 s%d, %d\ns_mov_b32 s%d, 0x20000' % (r + 2, SIZES[n], r + 3))
    H0 = 's_and_b32 s16, s22, 2\ns_add_u32 s16, s16, s22\ns_xor_b32 s16, s16, s23'
    if o['rot2'] == 1: H0 = 's_and_b32 s16, s22, 2\ns_xor_b32 s16, s16, s23\ns_and_b32 s16, s16, 3\ns_lshl_b32 s16, s16, 1'
    if o['rot2'] == 2: H0 = 's_and_b32 s16, s22, 2\ns_lshl_b32 s16, s16, 1\ns_xor_b32 s16, s16, s23'
    if o['rot2'] == 3: H0 = 's_and_b32 s16, s23, 3\ns_lshl_b32 s16, s16, 1\ns_and_b32 s3, s22, 2\ns_add_u32 s3, s3, s22\ns_xor_b32 s16, s16, s3'
    if o['rot2'] == 4: H0 = 's_lshr_b32 s16, s22, 1\ns_xor_b32 s16, s16, s23\ns_and_b32 s16, s16, 1\ns_lshl_b32 s16, s16, 2'
    if o['alt'] == 1: H0 = 's_xor_b32 s16, s22, s23\ns_and_b32 s3, s16, 2\ns_and_b32 s16, s16, 3\ns_add_u32 s16, s16, s3'
    if o['alt'] == 2: H0 = 's_and_b32 s16, s22, 2\ns_xor_b32 s16, s16, s23\ns_and_b32 s3, s16, 2\ns_and_b32 s16, s16, 3\ns_add_u32 s16, s16, s3'
    if o['alt'] == 3: H0 = 's_and_b32 s16, s22, 1\ns_xor_b32 s16, s16, s23\ns_and_b32 s16, s16, 3'
    if o['alt'] == 4: H0 = 's_and_b32 s16, s22, 1\ns_xor_b32 s16, s16, s23\ns_and_b32 s16, s16, 3\ns_and_b32 s3, s22, 2\ns_lshl1_add_u32 s16, s3, s16'
    for i_ in range(len(o['tramp'])): a('s_cmp_eq_u32 s20, %d\ns_cbranch_scc1 L_tr%d' % (i_, i_))
    a('s_cmp_lt_u32 s20, 4\ns_cbranch_scc1 L_comp')
    a('s_cmp_gt_u32 s20, 4\ns_cbranch_scc1 L_help')
    def gpoll(name, nw, off, single=False):
        sl = ('s_sleep %d\n' % o['psleep']) if o['psleep'] else ''
        if name == 'op' and o['ocl'] > 1:
            ls = [0, 3] if o['ocl'] == 2 else [0, 1, 2, 3]
            a('L_op:')
            for i, l_ in enumerate(ls): a('s_load_dword s%d, s[66:67], %d glc' % (84 + i, 128 * l_ + 8))
            a('s_sub_u32 s54, s54, 1\ns_cbranch_scc1 L_opok\ns_waitcnt lgkmcnt(0)')
            for i in range(1, len(ls)): a('s_add_u32 s84, s84, s%d' % (84 + i))
            a('s_cmp_lt_u32 s84, 32\ns_cbranch_scc1 L_op\nL_opok:')
        elif o['rep'] == 2 and not single and name in o['repn']:
            a(W0 + '\ns_mov_b64 s[84:85], 0\ns_load_dword s85, s[66:67], %d glc\ns_sleep %d' % (off + 64, o['rsl']))
            a('L_%s:' % name)
            for r_ in range(2):
                a('s_load_dword s%d, s[66:67], %d glc\ns_waitcnt lgkmcnt(1)\ns_max_u32 s30, s84, s85\ns_cmp_ge_u32 s30, %d\ns_cbranch_scc1 L_%sok' % (84 + r_, off + 64 * r_, nw, name))
            a('s_sub_u32 s54, s54, 1\ns_cbranch_scc0 L_%s\nL_%sok:' % (name, name))
        elif o['atom']:
            a('L_%s:\n%ss_load_dword s84, s[66:67], %d glc\ns_sub_u32 s54, s54, 1\ns_cbranch_scc1 L_%sok\ns_waitcnt lgkmcnt(0)' % (name, sl, off, name))
            a('s_cmp_lt_u32 s84, %d\ns_cbranch_scc1 L_%s\nL_%sok:' % (nw, name, name))
        elif o['poll'] == 'p':
            a(W0)
            for i in range(0, nw, 2): a('s_mov_b64 s[%d:%d], 0' % (84 + i, 85 + i))
            a('L_%s:\ns_load_dwordx%d s[84:%d], s[66:67], %d glc\n%ss_sub_u32 s54, s54, 1\ns_cbranch_scc1 L_%sok' % (name, nw, 83 + nw, off, sl, name))
            a('s_and_b64 s[30:31], s[84:85], s[86:87]')
            for i in range(4, nw, 2): a('s_and_b64 s[30:31], s[30:31], s[%d:%d]' % (84 + i, 85 + i))
            a('s_and_b32 s30, s30, s31\ns_cbranch_scc0 L_%s\nL_%sok:' % (name, name))
        elif o['poll'] == 's':
            a('L_%s:\n%ss_load_dwordx%d s[84:%d], s[66:67], %d glc\ns_sub_u32 s54, s54, 1\ns_cbranch_scc1 L_%sok\ns_waitcnt lgkmcnt(0)' % (name, sl, nw, 83 + nw, off, name))
            k = nw
            while k > 2:
                k //= 2
                for i in range(0, k, 2): a('s_and_b64 s[%d:%d], s[%d:%d], s[%d:%d]' % (84 + i, 85 + i, 84 + i, 85 + i, 84 + k + i, 85 + k + i))
            a('s_and_b32 s84, s84, s85\ns_cbranch_scc0 L_%s\nL_%sok:' % (name, name))
        else:
            a('v_and_b32 v19, %d, v0\nv_lshlrev_b32 v19, 2, v19' % (nw - 1))
            a('L_%s:\n%sbuffer_load_dword v18, v19, s[%d:%d], s62 offen offset:%d sc1\ns_sub_u32 s54, s54, 1\ns_cbranch_scc1 L_%sok\ns_waitcnt vmcnt(0)' % (name, sl, SWS, SWS + 3, off, name))
            a('v_cmp_ne_u32 vcc, 1, v18\ns_cbranch_vccnz L_%s\nL_%sok:' % (name, name))
    def code_prefetch(lab='L_pc'):
        if o['codepf']:
            a('s_getpc_b64 s[66:67]\n%s:\ns_sub_u32 s66, s66, %s-%s\ns_subb_u32 s67, s67, 0' % (lab, lab, KN))
            a('s_lshr_b32 s3, s2, 3\ns_lshl_b32 s3, s3, 7\nv_lshlrev_b32 v100, 12, v0\nv_add_u32 v100, s3, v100')
            a('v_mov_b32 v103, s67\nv_add_co_u32 v102, vcc, s66, v100\nv_addc_co_u32 v103, vcc, 0, v103, vcc')
            a('v_cmp_gt_u32 vcc, L_codeend-%s, v100\ns_and_saveexec_b64 s[64:65], vcc' % KN)
            a('global_load_dword v101, v[102:103], off')
            a('s_mov_b64 exec, s[64:65]')
    def clears(all12=False, va=4, vd=12):
        a('s_lshl_b32 s3, s23, 1\ns_and_b32 s58, s22, 1\ns_add_u32 s3, s3, s58\ns_mul_i32 s3, s3, 3\n' + ('' if all12 else 's_add_u32 s3, s3, s18\n') + 's_mul_i32 s58, s3, %d' % (4 * o['OT']))
        a('s_lshl_b32 s3, s21, 1\ns_lshr_b32 s59, s22, 1\ns_add_u32 s3, s3, s59\ns_lshl_b32 s3, s3, 9\ns_add_u32 s58, s58, s3\ns_add_u32 s58, s58, %d' % G_PO) if all12 else \
        a('s_lshl_b32 s3, s21, 1\ns_lshr_b32 s57, s22, 1\ns_add_u32 s3, s3, s57\ns_lshl_b32 s3, s3, 9\ns_add_u32 s58, s58, s3\ns_add_u32 s58, s58, %d' % G_PO)
        a('v_and_b32 v%d, 31, v0\nv_lshrrev_b32 v%d, 5, v0\nv_mul_u32_u24 v%d, %d, v%d\nv_lshl_add_u32 v%d, v%d, 4, v%d' % (va, va + 1, va + 1, o['OT'], va + 1, va, va, va + 1))
        if 'Y' in o['hack']: a('s_cmp_ge_u32 s21, 4\ns_cselect_b32 s58, 0x7ff00000, s58')
        for i in range(4): a('v_mov_b32 v%d, -1' % (vd + i))
        for i in range(6 if all12 else 2):
            if i: a('s_add_u32 s58, s58, %d' % (2 * o['OT']))
            a('buffer_store_dwordx4 v[%d:%d], v%d, s[%d:%d], s58 offen sc1' % (vd, vd + 3, va, SWS, SWS + 3))
            if all12: vm.issue('clr')
    a('; ==== loader: pulls its share of this code into L2, streams 9 chunks of x | wq (rotated start), then K, V parts and wo pieces')
    vm = Cnt(a, 'vmcnt', 63)
    XV, WV, OV, KV, DV, VV = 8, 12, 16, 20, 24, 28
    if o['lprio']: a('s_setprio %d' % o['lprio'])
    if o['cpfL']: code_prefetch()
    srd(SX, None, 'x'); srd(SWQ, None, 'wq')
    a('v_lshrrev_b32 v3, 3, v0\nv_and_b32 v4, 7, v0')
    def quad(base, step):
        a('v_xor_b32 v7, 64, v%d\nv_add_u32 v%d, %d, v7' % (base, base + 1, step))
        a('v_add_u32 v%d, %d, v%d\nv_add_u32 v%d, %d, v%d' % (base + 2, 2 * step, base, base + 3, 2 * step, base + 1))
    a('v_mul_u32_u24 v5, 1152, v3\nv_xor_b32 v32, v4, v2\nv_lshl_add_u32 v%d, v32, 4, v5' % XV)
    quad(XV, 8 * 1152 - 1024)
    a('v_lshlrev_b32 v6, 1, v2\nv_xor_b32 v6, v6, v1\nv_lshlrev_b32 v6, 4, v6')
    a('v_lshl_add_u32 v%d, v2, 13, v6' % WV)
    a('v_add_u32 v%d, %d, v%d' % (WV + 1, 4 * 8192 - 1024, WV))
    a('v_xor_b32 v7, 128, v%d\nv_add_u32 v%d, %d, v7\nv_add_u32 v%d, %d, v7' % (WV, WV + 2, 2 * (4 * 8192 - 1024), WV + 3, 3 * (4 * 8192 - 1024)))
    if o['rot'] == 'g3':
        a('s_add_u32 s17, s22, s23\ns_mul_i32 s3, s17, 43\ns_lshr_b32 s3, s3, 7\ns_mul_i32 s3, s3, 3\ns_sub_u32 s17, s17, s3\ns_mul_i32 s17, s17, 3')
    elif o['rot'] in ('g3x', 'g3y', 'g3b'):
        a('s_add_u32 s17, s22, s23\ns_mul_i32 s3, s17, 43\ns_lshr_b32 s3, s3, 7\ns_mul_i32 s3, s3, 3\ns_sub_u32 s17, s17, s3\ns_mul_i32 s17, s17, 3')
        if o['rot'] == 'g3x': a('s_add_u32 s17, s17, s21')
        else: a('s_lshr_b32 s3, s21, %d\ns_add_u32 s17, s17, s3' % (2 if o['rot'] == 'g3y' else 1))
        a('s_cmp_ge_u32 s17, 9\ns_cselect_b32 s3, 9, 0\ns_sub_u32 s17, s17, s3')
    elif o['rot'] == 'g4':
        a('s_add_u32 s17, s22, s23\ns_and_b32 s17, s17, 3\ns_mul_i32 s17, s17, 9\ns_lshr_b32 s17, s17, 2')
    elif o['rot'] == 'g2':
        a('s_add_u32 s17, s22, s23\ns_and_b32 s17, s17, 1\ns_mul_i32 s17, s17, 5')
    elif o['rot'] == 'g9':
        a('s_lshl_b32 s17, s22, 1\ns_add_u32 s17, s17, s23\ns_cmp_ge_u32 s17, 9\ns_cselect_b32 s3, 9, 0\ns_sub_u32 s17, s17, s3')
    else: a('s_mov_b32 s17, 0')
    a('s_mul_i32 s52, s23, 110592')
    if 'm' in o['hack']: a('s_lshl_b32 s53, s21, 9\ns_and_b32 s3, s22, 2\ns_lshl_b32 s3, s3, 11\ns_add_u32 s53, s53, s3\ns_and_b32 s3, s22, 1\ns_lshl_b32 s3, s3, 8\ns_add_u32 s53, s53, s3')
    elif 'n' in o['hack']: a('s_lshl_b32 s53, s21, 8\ns_lshl_b32 s3, s22, 11\ns_add_u32 s53, s53, s3')
    elif 'p' in o['hack']: a('s_lshl_b32 s53, s21, 10\ns_xor_b32 s3, s22, 3\ns_lshl_b32 s3, s3, 8\ns_add_u32 s53, s53, s3')
    elif KL: a(kvbase('s53') + '\ns_lshl_b32 s53, s53, 9\ns_lshr_b32 s3, s22, 1\ns_lshl_b32 s3, s3, %d\ns_add_u32 s53, s53, s3\ns_and_b32 s3, s22, 1\ns_lshl_b32 s3, s3, 8\ns_add_u32 s53, s53, s3' % o['kvmap'])
    else: a('s_lshl_b32 s53, s21, 10\ns_lshl_b32 s3, s22, 8\ns_add_u32 s53, s53, s3')
    a('s_waitcnt lgkmcnt(0)')
    stL('L kernarg')
    if o['stlb'] >= 1:
        a('s_lshl_b32 s57, s17, 19\ns_add_u32 s57, s57, s53\ns_load_dword s58, s[%d:%d], s57' % (SWQ, SWQ + 1))
    if o['stlb'] >= 2:
        a('s_mov_b32 s57, 0x200000\ns_mov_b32 s59, 0x400000')
        for base in (SWQ, 8, 4, 6): a('s_load_dword s58, s[%d:%d], 0\ns_load_dword s58, s[%d:%d], s57' % (base, base + 1, base, base + 1))
        for base in (SWQ, 8): a('s_load_dword s58, s[%d:%d], s59' % (base, base + 1))
    ndma = [0]
    def group(vreg, n, srd_, lds, tag, adv=None, dyn=None, so='s57'):
        seq = [('s_add_u32 m0, %s, %d' % (dyn, lds) if dyn else 's_mov_b32 m0, %d' % lds) + ('\ns_add_u32 s57, s57, %s' % adv if adv else '')]
        for j in range(n):
            def f(j=j):
                ndma[0] += 1
                if ndma[0] - 1 in o['tramp']:
                    i_ = o['tramp'].index(ndma[0] - 1)
                    a('s_branch L_ov%d\nL_tr%d:\ns_branch L_comp\nL_ov%d:' % (i_, i_, i_))
                if len(vm.seq) >= o['guard'][0]:
                    a('s_waitcnt vmcnt(%d)' % o['guard'][1]); vm.seq = vm.seq[-o['guard'][1]:]
                a('buffer_load_dwordx4 v%d, s[%d:%d], %s offen offset:%d %s lds' % (vreg + j, srd_, srd_ + 3, so, 1024 * j, o['nt'].get({SX: 'x', SWQ: 'q', SK: 'k', SV: 'v', SWO: 'o'}[srd_] + tag[-1], o['nt'].get({SX: 'x', SWQ: 'q', SK: 'k', SV: 'v', SWO: 'o'}[srd_], '')))); vm.issue(tag)
            seq.append(f)
        return seq
    def g8(vreg, n, sb, lds, tag):
        seq = []
        for j in range(n):
            if j % 8 == 0: seq.append('s_mov_b32 m0, %d' % (lds + 1024 * j + 4096))
            def f(j=j):
                if len(vm.seq) >= o['guard'][0]:
                    a('s_waitcnt vmcnt(%d)' % o['guard'][1]); vm.seq = vm.seq[-o['guard'][1]:]
                a('global_load_lds_dwordx4 v%d, s[%d:%d] offset:%d' % (vreg + j, sb, sb + 1, 1024 * (j % 8) - 4096)); vm.issue(tag)
            seq.append(f)
        return seq
    subs = {}
    def call(name, groups, tag, setup):
        if name not in subs:
            t_ = ['L_sub_%s:' % name]
            for vreg, n, srd_, mb, mi, so, adv in groups:
                t_.append('s_add_u32 m0, %s, %d' % (mb, mi))
                if adv: t_.append('s_add_u32 %s, %s, %d' % (so, so, adv))
                for j in range(n): t_.append('buffer_load_dwordx4 v%d, s[%d:%d], %s offen offset:%d lds' % (vreg + j, srd_, srd_ + 3, so, 1024 * j))
            t_.append('s_setpc_b64 s[18:19]')
            subs[name] = '\n'.join(t_)
        n_ = sum(g_[1] for g_ in groups)
        def f():
            if len(vm.seq) + n_ > 62:
                a('s_waitcnt vmcnt(%d)' % (62 - n_)); vm.seq = vm.seq[-(62 - n_):]
            a('s_call_b64 s[18:19], L_sub_%s' % name)
            for _ in range(n_): vm.issue(tag)
        return [setup, f]
    def item_q(c):
        st = c % 3; tag = 'n%d' % c
        m0o = o['m0o'] and c >= o['lateat']
        sx = ['s_lshl_b32 s57, s17, 7\ns_add_u32 s57, s57, s52']
        for t in range(3): sx += group(40 + 4 * t if m0o and t else XV, 4, SX, L_X0 + XS(c) + 4096 * t, tag, 32 * 1152 if t and not m0o else None)
        sw = ['s_lshl_b32 s57, s17, 19\ns_add_u32 s57, s57, s53']
        for t in range(4): sw += group(52 + 4 * t if m0o and t else WV, 4, SWQ, L_W + 16384 * st + 4096 * t, tag + ('b' if c == 8 and t >= 2 and o['b8a'] else ''), 16 * 8192 if t and not m0o else None)
        seq = sw + sx if o['wqfirst'] else sx + sw
        if o['hoist'] >= 2 and m0o:
            seq = ['s_lshl_b32 s58, s17, 19\ns_add_u32 s58, s58, s53'] + sx
            for t in range(4): seq += group(52 + 4 * t if t else WV, 4, SWQ, L_W + 16384 * st + 4096 * t, tag, None, None, 's58')
        if o['pre'] == 1 and m0o:
            seq = []
            for t in range(3): seq += group(40 + 4 * t if t else XV, 4, SX, L_X0 + XS(c) + 4096 * t, tag, None, None, 's%d' % (72 + 2 * c))
            for t in range(4): seq += group(52 + 4 * t if t else WV, 4, SWQ, L_W + 16384 * st + 4096 * t, tag, None, None, 's%d' % (73 + 2 * c))
            return seq
        if o['pre'] == 2 and m0o:
            return g8(110, 12, 64 + 4 * c, L_X0 + XS(c), tag) + g8(122, 16, 66 + 4 * c, L_W + 16384 * st, tag)
        if 'q' in o['sub'] and m0o:
            seq = call('q', [(40 + 4 * t if t else XV, 4, SX, 's55', 4096 * t, 's57', 0) for t in range(3)] + [(52 + 4 * t if t else WV, 4, SWQ, 's56', 4096 * t, 's58', 0) for t in range(4)], tag,
                       's_lshl_b32 s57, s17, 7\ns_add_u32 s57, s57, s52\ns_lshl_b32 s58, s17, 19\ns_add_u32 s58, s58, s53\ns_mov_b32 s55, %d\ns_mov_b32 s56, %d' % (L_X0 + XS(c), L_W + 16384 * st))
        if o['qseq']:
            if c == 0: seq += ['s_mov_b32 s63, s17\ns_add_u32 s64, s17, 3\ns_cmp_eq_u32 s64, 9\ns_cselect_b32 s64, 0, s64\ns_add_u32 s65, s64, 3\ns_cmp_eq_u32 s65, 9\ns_cselect_b32 s65, 0, s65']
            if c < 8: seq += ['s_add_u32 s17, s%d, %s' % (63 + o['qseq'][:c + 1].count(o['qseq'][c + 1]), o['qseq'][c + 1])]
            assert o['qseq'][0] == '0' and sorted(o['qseq']) == sorted('012' * 3)
        else: seq += ['s_add_u32 s17, s17, 1\ns_cmp_eq_u32 s17, 9\ns_cselect_b32 s17, 0, s17']
        return seq
    def item_k():
        seq = ['s_lshr_b32 s3, s22, 1\n' + ('s_lshl_b32 s3, s3, %d\n' % KL if KL else '') + 's_add_u32 s57, s54, s3\ns_mul_i32 s57, s57, 12288']
        for t in range(6): seq += group(KV, 4, SK, L_K + 4096 * t, 'k0', None if t == 0 else (4096 if t != 3 else 16 * 12288 - 8192))
        return seq
    WSLOT = {'w0': 0, 'w1': 1, 'w2': 2, 'w3': 4.5, 'w4': 3, 'w5': 0, 'w6': 1, 'w7': 2, 'o0': 3, 'o1': 0}
    assert L_P == 4.5 * 16384
    SP2 = 3; BASE2 = L_P
    if o['vf']:
        WSLOT = {'w0': 9, 'w1': 0, 'w2': 1, 'w3': 2, 'w4': 3, 'w5': 0, 'w6': 1, 'w7': 2, 'o0': 3, 'o1': 0}
        SP2 = 0; BASE2 = L_V + 36864; assert BASE2 == 9 * 16384
        if o['vf'] == 2: WSLOT.update({'w4': 4.5, 'w5': 3, 'w6': 0, 'w7': 1, 'o0': 2, 'o1': 3})
    NEED = {'w3': 1, 'w4': 2, 'w5': 3, 'w6': 5, 'w7': 6}
    L_O1 = L_P
    STAGES = ['w0', 'w1', 'o0', 'o1', 'w2', 'w3', 'w4', 'w5', 'w6', 'w7']
    def item_v(vp):
        seq = ['s_lshr_b32 s3, s16, 2\ns_xor_b32 s3, s3, %d\n' % (vp >> 1) + ('s_lshl_b32 s3, s3, %d\n' % KL if KL else '') + 's_add_u32 s57, ' + ('s63' if 'd' in o['hack'] else 's54') + ', s3\ns_mul_i32 s57, s57, 12288\ns_xor_b32 s3, s16, %d\ns_and_b32 s3, s3, 1\ns_lshl_b32 s3, s3, 7\ns_add_u32 s57, s57, s3' % (vp & 1)]
        for b in range(2):
            seq += group(VV, 4, SV, L_V + 12288 * vp + 6144 * b, 'v%d' % vp, 16 * 12288 - 8192 if b else None)
            seq += group(VV, 2, SV, L_V + 12288 * vp + 6144 * b + 4096, 'v%d' % vp, 8192)
        if 'v' in o['sub']:
            seq = call('v', [(VV, 4, SV, 's55', 0, 's57', 0), (VV, 2, SV, 's55', 4096, 's57', 8192), (VV, 4, SV, 's55', 6144, 's57', 16 * 12288 - 8192), (VV, 2, SV, 's55', 10240, 's57', 8192)], 'v%d' % vp,
                       seq[0] + '\ns_mov_b32 s55, %d' % (L_V + 12288 * vp))
        return seq
    def item_w(p):
        lds = int(L_W + 16384 * WSLOT['w%d' % p])
        seq = ['s_xor_b32 s3, s16, %d\n' % PC(p) + ('s_and_b32 s57, s3, 4\ns_mul_i32 s57, s57, %d\ns_add_u32 s3, s3, s57\n' % (KJ - 1) if KL else '') + 's_mul_i32 s57, s3, %d\ns_add_u32 s57, s57, s60' % (64 * 1152)]
        for t in range(4): seq += group(68 + 4 * t if o['m0o'] and t else OV, 4, SWO, lds + 4096 * t, 'w%d' % p, 16 * 1152 if t and not o['m0o'] else None)
        if 'w' in o['sub']:
            assert o['m0o']
            seq = call('w', [(68 + 4 * t if t else OV, 4, SWO, 's55', 4096 * t, 's57', 0) for t in range(4)], 'w%d' % p, seq[0] + '\ns_mov_b32 s55, %d' % lds)
        return seq
    def item_o(e):
        lds = L_W + 16384 * WSLOT['o%d' % e]; seq = []
        for hf in range(2):
            seq += ['s_xor_b32 s3, %s, %d\n' % ('s59' if o['alt'] == 3 else 's16', 2 * e + hf) + ('s_and_b32 s57, s3, 4\ns_mul_i32 s57, s57, %d\ns_add_u32 s3, s3, s57\n' % (KJ - 1) if KL else '') + 's_mul_i32 s57, s3, %d\ns_add_u32 s57, s57, s62' % (64 * 1152)]
            for t in range(2): seq += group(DV, 4, SWO, lds + 8192 * hf + 4096 * t, 'o%d' % e, 32 * 1152 if t else None)
        return seq
    def item(nm):
        seq = {'v': item_v, 'w': item_w, 'o': item_o, 'k': lambda _: item_k()}[nm[0]](int(nm[1]))
        if nm[:2] in o.get('drop', []): return []
        assert not (nm[2:] and nm[0] in o['sub'])
        cut = {'v': 9, 'k': 16}.get(nm[0], 11)
        if nm[2:] == 'a': return seq[:cut] + ['s_mov_b32 s61, s57']
        if nm[2:] == 'b': return ['s_mov_b32 s57, s61'] + seq[cut:]
        return seq
    def late_setup():
        srd(SK, 4, 'k'); srd(SV, 6, 'v'); srd(SWO, 8, 'wo'); srd(SWS, 14, 'ws')
        if 'd' in o['hack']: srd(SV, SX, 'x'); srd(SWO, SX, 'x')
        if 'k' in o['hack']: srd(SK, SX, 'x')
        a('v_mul_u32_u24 v7, 1152, v2\nv_add_u32 v%d, v7, v6\nv_add_u32 v%d, %d, v%d' % (OV, OV + 1, 4 * 1152 - 1024, OV))
        a('v_xor_b32 v6, 128, v6\nv_add_u32 v7, v7, v6\nv_add_u32 v%d, %d, v7\nv_add_u32 v%d, %d, v7' % (OV + 2, 2 * (4 * 1152 - 1024), OV + 3, 3 * (4 * 1152 - 1024)))
        a('v_xor_b32 v6, v1, v2\nv_lshlrev_b32 v6, 4, v6\nv_lshl_add_u32 v%d, v2, 8, v6' % KV)
        for j in range(1, 4): a('v_xor_b32 v%d, %d, v%d' % (KV + j, 64 * j, KV))
        a('v_and_b32 v6, 1, v2\nv_lshlrev_b32 v6, 1, v6\nv_xor_b32 v6, v6, v4\nv_lshl_add_u32 v%d, v6, 4, v5' % DV)
        quad(DV, 8 * 1152 - 1024)
        a('v_lshlrev_b32 v6, 8, v3\nv_lshl_add_u32 v%d, v32, 4, v6' % VV)
        quad(VV, 8 * 256 - 1024)
        if o['m0o']:
            for base, src, n, st_ in ((40, XV, 3, 32 * 1152), (52, WV, 4, 16 * 8192), (68, OV, 4, 16 * 1152)):
                for t in range(1, n):
                    a('s_mov_b32 s3, %d' % (t * st_))
                    for j in range(4): a('v_add_u32 v%d, s3, v%d' % (base + 4 * t + j, src + j))
        if o['pre']:
            assert not o['qseq'] and o['lateat'] >= 3
            for c in range(o['lateat'], 9):
                if o['pre'] == 1: a('s_lshl_b32 s3, s17, 7\ns_add_u32 s%d, s3, s52\ns_lshl_b32 s3, s17, 19\ns_add_u32 s%d, s3, s53' % (72 + 2 * c, 73 + 2 * c))
                else:
                    a('s_lshl_b32 s3, s17, 7\ns_add_u32 s3, s3, s52\ns_add_u32 s%d, s%d, s3\ns_addc_u32 s%d, s%d, 0' % (64 + 4 * c, SX, 65 + 4 * c, SX + 1))
                    a('s_lshl_b32 s3, s17, 19\ns_add_u32 s3, s3, s53\ns_add_u32 s%d, s%d, s3\ns_addc_u32 s%d, s%d, 0' % (66 + 4 * c, SWQ, 67 + 4 * c, SWQ + 1))
                if c < 8: a('s_add_u32 s17, s17, 1\ns_cmp_eq_u32 s17, 9\ns_cselect_b32 s17, 0, s17')
        if o['pre'] == 2:
            for base, src, n, st_ in ((110, XV, 3, 32 * 1152), (122, WV, 4, 16 * 8192)):
                for t in range(n):
                    a('s_mov_b32 s3, %d' % (t * st_ + (4096 if t % 2 == 0 else 0)))
                    for j in range(4): a('v_add_u32 v%d, s3, v%d' % (base + 4 * t + j, src + j))
        a(H0)
        if o['alt'] == 3: a('s_and_b32 s59, s22, 2\ns_lshl1_add_u32 s59, s59, s16')
        a('s_lshl_b32 s54, s23, 5\n' + kvbase('s3') + '\ns_add_u32 s54, s54, s3')
        if 'd' in o['hack']: a('s_and_b32 s63, s23, 1\ns_lshl_b32 s63, s63, 5')
        a(('s_mov_b32 s60, 0 ; %d' if 'd' in o['hack'] else 's_mul_i32 s60, s3, %d') % (256 * 1152))
        a('s_add_u32 s62, s60, 1024\ns_lshl_b32 s3, s22, 8\ns_add_u32 s60, s60, s3')
    L0 = len(a.lines)
    nq = 0; nbar = 0; since = {}
    def bar():
        nonlocal nbar
        vm.wait('n%d' % nbar)
        if nbar in (1, 2, 3, 8): stL('L at B%d' % nbar, 2)
        if nbar < 4: stL('L at B%d' % nbar, 3)
        a('s_barrier'); nbar += 1
    kdone = 0
    if o['lead']:
        assert o['klate'] and not o['wqfirst'] and not o['sub']
        def split(seq, n):
            k = 0
            for i_, x_ in enumerate(seq):
                if callable(x_):
                    k += 1
                    if k == n: return seq[:i_ + 1], seq[i_ + 1:]
        run(item_q(0)); run(item_q(1))
        for c in range(2, 9):
            h_, r_ = split(item_q(c), o['lead']) if c >= o['lead0'] else ([], item_q(c))
            if 'q%d' % c in o.get('drop', []): h_, r_ = [], r_[-1:]
            run(h_); bar(); run(r_)
            if c + 1 == o['lateat']: late_setup()
        if o['leadk']: run(item('k0a')); kdone = 1
        bar()
    else:
        for t in o['order']:
            if t == 'q':
                while nbar < nq - 1 and nq >= 3: bar()
                seq = item_q(nq)
                if 'q%d' % nq in o.get('drop', []): seq = seq[-1:]
                if o['first_half'] and nq in (1, 2) and nbar == nq - 1:
                    run(seq[:16]); bar(); run(seq[16:])
                else: run(seq)
                sz = 28; nq += 1
                if nq <= 2: stL('L issued q%d' % (nq - 1), 3)
                if o['sent'] and o['clr'] == 'L%d' % nq: srd(SWS, 14, 'ws'); clears(True, 90, 92)
                if nq == o['lateat']: late_setup()
            elif t == 'K': run(item_k()); sz = 24
            elif t == 'V': run(item_v(0)); sz = 12
            elif t == 'W': run(item_v(1)); sz = 12
            for c in list(since): since[c] += sz
            if t == 'q': since[nq - 1] = 0
            while nbar < nq and since[nbar] >= o['win']: bar()
        while nbar < 8: bar()
    pre8 = o['pre8'] if 'pre8' in o else (['w0'] if 'V' in o['order'] else ['v0', 'w0'])
    assert all(it[:2] in (('k0', 'v0', 'v1', 'v2', 'w0', 'w1') if o['vf'] else ('k0', 'v0', 'v1', 'v2', 'v3', 'w0')) for it in pre8)
    seq = [x_ for it in pre8 for x_ in item('k0b' if kdone and it == 'k0' else it)]
    if o['b8a']:
        run(seq[:-10]); bar(); run(seq[-10:]); vm.wait('n8b'); a('s_barrier')
    else:
        run(seq); bar()
    XB = [('BQ', []), ('BP', ['v0', 'w0']), ('w0', ['v1', 'w1']), ('w1', ['w2']), ('w2', ['w3']), ('w3', ['v2', 'w4']),
          ('w4', ['v3', 'w5']), ('w5', ['w6']), ('w6', ['w7']), ('w7', []), ('O', ['o0', 'o1'])]
    if o['alt']:
        XB = [('BQ', []), ('BP', ['v0', 'w0']), ('w0', ['w1']), ('w1', ['v1', 'w2']), ('w2', ['w3']), ('w3', ['v2', 'w4']),
              ('w4', ['w5']), ('w5', ['v3', 'w6']), ('w6', ['w7']), ('w7', []), ('O', ['o0', 'o1'])]
    if o['klate']: XB[0] = ('BQ', ['k0'])
    if o['bs']: XB.insert(1, ('BS', []))
    for sk in o['skip']:
        i_ = [x_[0] for x_ in XB].index(sk)
        XB[i_ - 1] = (XB[i_ - 1][0], XB[i_ - 1][1] + XB[i_][1]); del XB[i_]
    XN = [x_[0] for x_ in XB]
    plan = o.get('plan') or {'B8': ['w0'], 'BQ': ['w1', 'v1', 'w2'], 'BP': ['w3', 'v2', 'w4'], 'w1': ['w5'], 'w2': ['v3', 'w6'], 'w3': ['w7'], 'w6': ['o0'], 'w7': ['o1']}
    if o['vf'] and not o.get('plan'): plan = {'B8': ['v0', 'w0'], 'BQ': ['w1', 'v1', 'w2', 'w3'], 'BP': ['v2', 'w4'], 'w1': ['v3'], 'w2': ['w5'], 'w3': ['w6'], 'w4': ['w7'], 'w6': ['o0'], 'w7': ['o1']}
    FREEAT = {'w0': 'B8', 'w1': 'B8', 'w2': 'BQ', 'w3': ('BS' if o['bs'] else 'BP') if o['klate'] else 'BQ', 'w4': 'BS' if o['bs'] else 'BP', 'w5': 'w1', 'w6': 'w2', 'w7': 'w3', 'o0': 'w5', 'o1': 'w6'}
    if o['vf']: FREEAT.update({'w2': 'B8', 'w3': 'BQ', 'w5': 'w2', 'w6': 'w3', 'w7': 'w4', 'v3': 'w1'})
    if o['vf'] == 2: FREEAT.update({'w5': 'BP', 'w6': 'w2', 'w7': 'w3', 'o0': 'w4', 'o1': 'w6'})
    ALLN = ['B8', 'BQ', 'BS', 'BP'] + ['w%d' % i_ for i_ in range(8)] + ['O']
    names = ['B8'] + [x_[0] for x_ in XB]
    issued = set(x_[:2] for x_ in pre8 if x_[2:] != 'a') | ({'v0'} if 'V' in o['order'] else set()) | ({'v1'} if 'W' in o['order'] else set())
    last = 'B8'
    for nm, need in XB:
        for it in plan.get(last, []):
            assert it[:2] not in FREEAT or ALLN.index(FREEAT[it[:2]]) <= ALLN.index(last), (it, last)
            run(item(it))
            if it[2:] != 'a': issued.add(it[:2])
        assert all(x_ in issued for x_ in need), (nm, need)
        vm.wait(need)
        stL('L at ' + nm, 2)
        a('s_barrier'); last = nm
    assert len(issued) == 14 + o['klate']
    if o['hoist']:
        L_ = a.lines; i = L0
        while i < len(L_):
            if L_[i] == 's_barrier':
                j = i + 1
                while j < len(L_) and L_[j].startswith(('s_lshl', 's_lshr', 's_add_u32', 's_mul_i32', 's_xor', 's_and', 's_mov_b32')): j += 1
                k = i
                while L_[k - 1].startswith(('s_waitcnt vmcnt', 's_memrealtime', '; stamp')): k -= 1
                L_[k:j] = L_[i + 1:j] + L_[k:i + 1]
                i = j
            else: i += 1
    stL('L done')
    stL.flush(4)
    if o['padL']: a('s_branch L_padl\n.fill %d, 4, 0xbf800000\nL_padl:' % o['padL'])
    if 'f' in o['hack']: a('s_endpgm')
    if o['stlb']: a(W0)
    srd(SOUT, 10, 'out')
    a('s_lshl_b32 s52, s21, 1\ns_lshr_b32 s3, s22, 1\ns_add_u32 s52, s52, s3')
    if stamps == 4: a('s_min_u32 s52, s52, 11\ns_lshr_b32 s3, s52, 1\ns_and_b32 s75, s52, 1\ns_lshl_b32 s75, s75, 4\ns_or_b32 s75, s75, s3\ns_and_b32 s3, s2, 0xe8\ns_or_b32 s75, s75, s3')
    a('s_cmp_ge_u32 s52, 12\ns_cbranch_scc1 L_end')
    a('s_lshl_b32 s3, %s, 9\ns_add_u32 s62, s3, %d\ns_add_u32 s66, s14, s62\ns_addc_u32 s67, s15, 0' % ('s75' if stamps == 4 else 's2', G_FL + (0 if o['ocl'] > 1 else 384)))
    a('s_mov_b32 s54, %d' % SPIN)
    a('s_lshl_b32 s3, s23, 1\ns_and_b32 s53, s22, 1\ns_add_u32 s53, s53, s3')
    a('s_mul_i32 s55, s53, 12\ns_add_u32 s55, s55, s52\ns_mul_i32 s55, s55, %d\ns_add_u32 s55, s55, %d\ns_add_u32 s56, s55, 4096' % (o['OT'], G_PO))
    if o['o64']:
        a('s_cmp_ge_u32 s52, 6\ns_cselect_b32 s58, %d, 0\ns_mul_i32 s57, s53, 6\ns_add_u32 s57, s57, s52\ns_mul_i32 s57, s57, %d\ns_sub_u32 s57, s57, s58\ns_add_u32 s57, s57, 1024' % (48 * 1152 - 64, 8 * 1152))
    else:
        a('s_mul_i32 s58, s52, 43\ns_lshr_b32 s58, s58, 7\ns_mul_i32 s3, s58, 3\ns_sub_u32 s3, s52, s3')
        a('s_mul_i32 s57, s53, 3\ns_add_u32 s57, s57, s3\ns_mul_i32 s57, s57, %d\ns_lshl_b32 s58, s58, 5\ns_add_u32 s57, s57, s58\ns_add_u32 s57, s57, 1024' % (16 * 1152))
    if not o['ox4']: a('v_lshlrev_b32 v6, 3, v0')
    def and16(b):
        for i in range(0, 16, 4): a('s_and_b64 s[%d:%d], s[%d:%d], s[%d:%d]' % (b + i, b + 1 + i, b + i, b + 1 + i, b + 2 + i, b + 3 + i))
        a('s_and_b64 s[%d:%d], s[%d:%d], s[%d:%d]\ns_and_b64 s[%d:%d], s[%d:%d], s[%d:%d]\ns_and_b64 s[%d:%d], s[%d:%d], s[%d:%d]\ns_and_b32 s%d, s%d, s%d' % (
            b, b + 1, b, b + 1, b + 4, b + 5, b + 8, b + 9, b + 8, b + 9, b + 12, b + 13, b, b + 1, b, b + 1, b + 8, b + 9, b, b, b + 1))
    def reduce(name, nsrc, w, off, vaddr, outs, st=None):
        ox = o['ox4'] and w == 2
        nl, lw = (8, 4) if ox else (nsrc, w)
        per = nl // 2; sz = 256 * lw
        def ld(j): return 'buffer_load_dwordx%d %s, v%d, s[%d:%d], s%d offen offset:%d sc1' % (lw, v(32 + lw * j, lw), vaddr, SWS, SWS + 3, 55 + j // per, sz * (j % per))
        if ox:
            assert o['o64'] and o['acc'] == 1 and not o['bm']
            a('v_lshlrev_b32 v%d, 4, v0' % vaddr)
        if ('R' in o['hack'] and w == 4) or ('O' in o['hack'] and w == 2): a('s_mov_b32 s56, 0x7ff00000')
        osc = o['outsc'] if w == 4 or o['oddsc'] is None else o['oddsc']
        bt = o['btr'] & (1 if w == 4 else 2)
        if bt and w == 4:
            a('v_lshrrev_b32 v4, 2, v0\nv_and_b32 v5, 3, v0\nv_mul_u32_u24 v3, 1152, v4\nv_lshl_add_u32 v3, v5, 4, v3\nv_lshl_add_u32 v24, v5, 4, v4\nv_lshlrev_b32 v24, 2, v24')
        elif bt:
            a('v_lshrrev_b32 v4, 2, v0\nv_and_b32 v5, 3, v0\nv_mul_u32_u24 v3, 1152, v4\nv_lshl_add_u32 v3, v5, 3, v3\nv_lshl_add_u32 v24, v5, 4, v4\nv_lshlrev_b32 v24, 2, v24')
        elif ox: a('v_and_b32 v4, 3, v0\nv_lshrrev_b32 v5, 5, v0\nv_lshl_add_u32 v4, v4, 1, v5\nv_bfe_u32 v5, v0, 2, 3\nv_mul_u32_u24 v3, 1152, v4\nv_lshl_add_u32 v3, v5, 3, v3')
        elif o['o64'] and w == 2 and 'V' not in o['hack']: a('v_and_b32 v4, 7, v0\nv_lshrrev_b32 v5, 3, v0\nv_mul_u32_u24 v3, 1152, v4\nv_lshl_add_u32 v3, v5, 3, v3')
        elif 'U' in o['hack'] and w == 4: a('v_and_b32 v4, 7, v0\nv_lshrrev_b32 v5, 3, v0\nv_mul_u32_u24 v3, 1152, v4\nv_lshl_add_u32 v3, v5, 4, v3\ns_bitcmp1_b32 s59, 6\ns_cselect_b32 s3, %d, 0\ns_add_u32 s59, s59, s3' % (8 * 1152 - 64))
        elif 'W' in o['hack'] and w == 2: a('v_and_b32 v4, 7, v0\nv_lshrrev_b32 v5, 3, v0\nv_mul_u32_u24 v3, 1152, v4\nv_lshl_add_u32 v3, v5, 3, v3\ns_bitcmp1_b32 s57, 5\ns_cselect_b32 s3, %d, 0\ns_add_u32 s57, s57, s3' % (8 * 1152 - 32))
        elif 'V' in o['hack'] and w == 2: a('v_mov_b32 v3, 0x7ff00000')
        elif o['x4'] and w == 4: a('v_mul_u32_u24 v3, 1152, v1\nv_lshl_add_u32 v3, v2, 4, v3')
        else: a('v_mul_u32_u24 v3, 1152, v1\nv_lshl_add_u32 v3, v2, 3, v3')
        if o.get('dot'): a('s_mov_b32 s28, 0x00003f80\ns_mov_b32 s29, 0x3f800000')
        a('s_mov_b32 s29, 0xffff0000')
        if o['acc'] == 2: a('s_mov_b32 s28, 0x00003f80\ns_mov_b32 s31, 0x3f800000')
        if o['prog']:
            a('s_mov_b32 s63, 0')
            a('L_%s:\ns_load_dwordx%d s[84:%d], s[66:67], %d glc\ns_sub_u32 s54, s54, 1\ns_cselect_b32 s30, -1, 0\ns_waitcnt lgkmcnt(0)' % (name, nsrc, 83 + nsrc, off))
            k = nsrc; sh = 1
            while k > 1:
                for i in range(0, nsrc, 2 * sh):
                    if sh <= 4: a('s_lshl%d_add_u32 s%d, s%d, s%d' % (sh, 84 + i, 84 + i + sh, 84 + i))
                    else: a('s_lshl_b32 s%d, s%d, %d\ns_or_b32 s%d, s%d, s%d' % (84 + i + sh, 84 + i + sh, sh, 84 + i, 84 + i, 84 + i + sh))
                k //= 2; sh *= 2
            a('s_or_b32 s84, s84, s30\ns_and_b32 s84, s84, %d\ns_andn2_b32 s85, s84, s63\ns_cbranch_scc0 L_%s\ns_or_b32 s63, s63, s84' % ((1 << nsrc) - 1, name))
            for j in range(nsrc):
                a('s_bitcmp1_b32 s85, %d\ns_cbranch_scc0 L_%s_%d\n%s\nL_%s_%d:' % (j, name, j, ld(j), name, j))
            a('s_cmp_lg_u32 s63, %d\ns_cbranch_scc1 L_%s' % ((1 << nsrc) - 1, name))
            if st: st('flags ok')
            a('s_waitcnt vmcnt(0)')
        else:
            own = o['own'] and w == 4
            oe = own and o['oe'] and o['xe'] in ('E', 'G', 'H') and o['atom']
            if o['far']: a('s_branch L_far_%s\n.fill 300, 4, 0xbf800000\n.p2align 6\nL_far_%s:' % (name, name))
            if o['opre'] & (1 if w == 4 else 2): a('buffer_load_dword v22, v3, s[%d:%d], %s offen %s\ns_waitcnt vmcnt(0)' % (SOUT, SOUT + 3, outs, o.get('oprefl', '')))
            a(';WARM_ON')
            if o['xe']: a('s_barrier')
            if oe: a('ds_read_b128 v[32:35], v27')
            pm = o['bm'] >= (2 if w == 2 else 1) and o['bm'] != 3 or o['bm'] == 3 and w == 2
            full = (1 << nsrc) - 1
            if pm:
                a('s_mov_b32 s64, 0')
                a('L_%s:\ns_load_dword s84, s[66:67], %d glc\ns_sub_u32 s54, s54, 1\ns_cselect_b32 s30, %d, 0\ns_waitcnt lgkmcnt(0)' % (name, off, full))
                a('s_or_b32 s84, s84, s30\ns_andn2_b32 s85, s84, s64\ns_cbranch_scc0 L_%s\ns_mov_b32 s64, s84' % name)
                for j in range(nsrc):
                    a('s_bitcmp1_b32 s85, %d\ns_cbranch_scc0 L_%s_%d\n%s\nL_%s_%d:' % (j, name, j, 'ds_read_b128 v[32:35], v27' if own and j == 0 else ld(j), name, j))
                a('s_cmp_lg_u32 s64, %d\ns_cbranch_scc1 L_%s\ns_waitcnt vmcnt(0)' % (full, name))
                if o['sent'] and w == 2: a('s_mov_b32 s63, 0\ns_branch L_sum')
            else: gpoll(name, full if o['bm'] else (32 if w == 2 and o['o64'] else nsrc) - (1 if oe else 0), off)
            if stamps == 4: a('s_memrealtime s[68:69]')
            if st: st('flags ok')
            if o['sent'] and w == 2: a('s_mov_b32 s63, 0\nL_again:')
            if not pm or w == 2:
                for j in range(nl):
                    if j or not own: a(ld(j))
                if own and not oe: a('ds_read_b128 v[32:35], v27')
            if pm and w == 2: a('L_sum:')
            if o['dry']: a('L_dry_%s:' % name)
        order = list(range(1, nsrc)) + [0] if own and o['ownlast'] else list(range(nl))
        for jj, j in enumerate(order):
            if not o['prog'] and not (oe and j == 0): a(W0 if own and j == 0 else 's_waitcnt vmcnt(%d)' % (nl - 1 - j))
            if o['acc'] == 1:
                b_ = 32 + lw * j; tmp = 16 + 4 * (j & 1); j = jj
                for t in range(lw): a('v_lshlrev_b32 v%d, 16, v%d' % ((tmp if j else 8) + t, b_ + t))
                for t in range(lw): a('v_and_b32 v%d, s29, v%d' % ((b_ if j else 12) + t, b_ + t))
                if j:
                    for t in range(0, lw, 2): a('v_pk_add_f32 v[%d:%d], v[%d:%d], v[%d:%d]' % (8 + t, 9 + t, 8 + t, 9 + t, tmp + t, tmp + t + 1))
                    for t in range(0, lw, 2): a('v_pk_add_f32 v[%d:%d], v[%d:%d], v[%d:%d]' % (12 + t, 13 + t, 12 + t, 13 + t, b_ + t, b_ + t + 1))
                continue
            if o['acc'] == 2:
                b_ = 32 + w * j
                for t in range(w): a('v_dot2_f32_bf16 v%d, v%d, s28, %s' % (8 + t, b_ + t, 'v%d' % (8 + t) if j else '0'))
                for t in range(w): a('v_dot2_f32_bf16 v%d, v%d, s31, %s' % (12 + t, b_ + t, 'v%d' % (12 + t) if j else '0'))
                if j == nsrc - 1: a('s_nop 2')
                continue
            for t in range(w):
                src = 32 + w * j + t
                if j == 0: a('v_lshlrev_b32 v%d, 16, v%d\nv_and_b32 v%d, s29, v%d' % (8 + 2 * t, src, 9 + 2 * t, src))
                elif o.get('dot'): a('v_dot2_f32_bf16 v%d, v%d, s28, v%d\nv_dot2_f32_bf16 v%d, v%d, s29, v%d' % (8 + 2 * t, src, 8 + 2 * t, 9 + 2 * t, src, 9 + 2 * t))
                else: a('v_lshlrev_b32 v16, 16, v%d\nv_and_b32 v17, s29, v%d\nv_pk_add_f32 v[%d:%d], v[%d:%d], v[16:17]' % (src, src, 8 + 2 * t, 9 + 2 * t, 8 + 2 * t, 9 + 2 * t))
        if ox: a('v_permlane32_swap_b32 v8, v10\nv_permlane32_swap_b32 v9, v11\nv_permlane32_swap_b32 v12, v14\nv_permlane32_swap_b32 v13, v15\nv_pk_add_f32 v[8:9], v[8:9], v[10:11]\nv_pk_add_f32 v[12:13], v[12:13], v[14:15]')
        if o['sent'] and w == 2: a('v_cmp_u_f32 vcc, v8, v%d\n' % (9 if o['acc'] else 10) + 's_cbranch_vccnz L_retry\nL_accept:')
        if stamps == 4: a('s_memrealtime s[70:71]')
        for t in range(w): a('v_cvt_pk_bf16_f32 v%d, v%d, v%d' % ((8 + t, 8 + t, 12 + t) if o['acc'] else (8 + t, 8 + 2 * t, 9 + 2 * t)))
        if w == 4 and o['x4']:
            a('v_permlane32_swap_b32 v8, v10\nv_permlane32_swap_b32 v9, v11\nv_permlane16_swap_b32 v8, v10\nv_permlane16_swap_b32 v9, v11')
        if o['dry']: a('s_cbranch_execz L_dryret_%s' % name)
        if bt:
            for t in range(w): a('ds_bpermute_b32 v%d, v24, v%d' % (8 + t, 8 + t))
            a(W0)
        if w == 4 and o['x4']:
            a('buffer_store_dwordx4 v[8:11], v3, s[%d:%d], %s offen %s' % (SOUT, SOUT + 3, outs, osc))
        else:
            for t in range(w // 2): a('buffer_store_dwordx2 v[%d:%d], v3, s[%d:%d], %s offen offset:%d %s' % (8 + 2 * t, 9 + 2 * t, SOUT, SOUT + 3, outs, 32 * t, osc))
        a(';WARM_OFF')
        if stamps >= 4:
            a('s_waitcnt vmcnt(0)\ns_memrealtime s[72:73]\ns_waitcnt lgkmcnt(0)\nv_mov_b32 v31, 0\ns_lshl_b32 s3, s2, 9\ns_mul_i32 s74, s20, 24\ns_add_u32 s3, s3, s74\ns_add_u32 s3, s3, %d' % (STAMP_OFF + 8 * 50 - 96))
            for i in range(3) if stamps == 4 else [2]:
                a('v_mov_b32 v254, s%d\nv_mov_b32 v255, s%d' % (68 + 2 * i, 69 + 2 * i))
                a('buffer_store_dwordx2 v[254:255], v31, s[%d:%d], s3 offen offset:%d' % (SWS, SWS + 3, 8 * i))
    if stamps == 4:
        for w_, nm in enumerate(['odd', 'r0', 'r1', 'r2']):
            for i, x_ in enumerate(['flags', 'summed', 'end']): a('; stamp %d %s %s' % (50 + 3 * w_ + i, nm, x_))
    if o['shc'] & 2: a('s_cmp_ge_u32 s52, 6\ns_cselect_b32 s3, 3, 0\ns_and_b32 s62, s2, 0xe8\ns_or_b32 s3, s3, s62\ns_lshl_b32 s3, s3, 9\ns_add_u32 s62, s3, %d\ns_add_u32 s66, s14, s62\ns_addc_u32 s67, s15, 0' % (G_FL + 384))
    if o['shc'] & 4: a('s_mul_i32 s3, s52, 43\ns_lshr_b32 s3, s3, 7\ns_mul_i32 s3, s3, 3\ns_and_b32 s62, s3, 1\ns_lshl_b32 s62, s62, 4\ns_lshr_b32 s3, s3, 1\ns_or_b32 s3, s3, s62\ns_and_b32 s62, s2, 0xe8\ns_or_b32 s3, s3, s62\ns_lshl_b32 s3, s3, 9\ns_add_u32 s62, s3, %d\ns_add_u32 s66, s14, s62\ns_addc_u32 s67, s15, 0' % (G_FL + 384))
    reduce('op', 16, 2, OOFF, 6, 's57')
    a('s_endpgm')
    if o['sent']:
        a('L_retry:\ns_cmp_lg_u32 s63, 0\ns_cbranch_scc1 L_accept\ns_mov_b32 s63, 1\ns_mov_b32 s54, %d' % SPIN)
        if stamps == 5: a('v_mov_b32 v20, 160\nv_mov_b32 v21, 1\ns_mov_b64 exec, 1\nglobal_atomic_add v20, v21, s[12:13] sc1\ns_mov_b64 exec, -1')
        if o['ack1'] and o['o64']:
            a('s_cmp_ge_u32 s52, 6\ns_cselect_b32 s3, %s\n' % ('7, 6' if o['ack1'] == 2 else '3, 0') + 's_and_b32 s62, s2, 0xe8\ns_or_b32 s3, s3, s62\ns_lshl_b32 s3, s3, 9\ns_add_u32 s62, s3, %d\ns_add_u32 s66, s14, s62\ns_addc_u32 s67, s15, 0' % (G_FL + 384))
        gpoll('oq', 0xffff if o['bm'] else 32 if o['o64'] else 16, 64, True)
        a('s_branch L_again')
    for t_ in subs.values(): a(t_)
    if o['padC']: a('.fill %d, 4, 0xbf800000' % o['padC'])
    a('L_comp:')
    lg = Cnt(a, 'lgkmcnt', 15)
    stC('C entry', 3)
    XA, WA, VA, OVA, OA, QA, FRA, FUA, FV, FC, PFA = 10, 12, 16, 18, 20, 21, 22, 23, 24, 27, 31
    A = 32; F = [80, 108]; B = 136; C = 184; VWO = 232; SP = 244
    KF = B; QF = 80; S = 96; P = SP; KA = 184; UA = 254; QT = 192
    a('v_bfe_u32 v3, v0, 2, 2\nv_and_b32 v4, 3, v0')
    a('s_lshr_b32 s18, s20, 1\ns_and_b32 s17, s20, 1')
    a(H0)
    a('v_lshrrev_b32 v7, 1, v1\nv_xor_b32 v7, v7, v2\nv_lshlrev_b32 v7, 4, v7\nv_lshl_add_u32 v5, v1, 7, v7\nv_xor_b32 v6, 64, v5')
    a('s_mul_i32 s3, s18, 6144\ns_add_u32 s3, s3, %d' % L_X0)
    a('v_add_u32 v%d, s3, v5\nv_add_u32 v%d, s3, v6' % (XA, XA + 1))
    a('s_add_u32 s3, s3, %d\nv_add_u32 v%d, s3, v5\nv_add_u32 v%d, s3, v6' % (L_V - L_X0, VA, VA + 1))
    a('s_and_b32 s3, s22, 1\ns_mul_i32 s3, s3, 6144\ns_add_u32 s3, s3, %d' % L_V)
    if o['alt'] == 3: a('s_and_b32 s19, s22, 2\ns_mul_i32 s19, s19, 12288\ns_add_u32 s3, s3, s19')
    a('v_add_u32 v%d, s3, v5\nv_add_u32 v%d, s3, v6' % (OVA, OVA + 1))
    a('v_and_b32 v7, 1, v2\nv_lshl_add_u32 v7, v7, 2, v3\ns_lshl_b32 s3, s17, 2\nv_xor_b32 v7, s3, v7')
    a('v_lshl_add_u32 v5, v2, 3, v3\nv_lshlrev_b32 v8, 8, v5\nv_lshl_add_u32 v8, v4, 3, v8')
    assert L_W == 0
    for t in range(4): a('v_xor_b32 v9, %d, v7\nv_lshl_add_u32 v%d, v9, 5, v8' % (t, WA + t))
    a('v_and_b32 v7, 1, v2\nv_lshrrev_b32 v8, 1, v3\nv_lshl_add_u32 v7, v7, 1, v8\nv_xor_b32 v7, s20, v7')
    a('v_lshlrev_b32 v8, 7, v5\nv_lshl_add_u32 v8, v4, 3, v8\nv_lshl_add_u32 v%d, v7, 5, v8' % OA)
    a('s_mul_i32 s3, s18, 12288\ns_lshl_b32 s19, s17, 11\ns_add_u32 s3, s3, s19\ns_add_u32 s3, s3, %d' % L_Q)
    a('v_lshlrev_b32 v25, 4, v0\nv_lshlrev_b32 v26, 3, v0\nv_add_u32 v%d, s3, v%d' % (QA, 26 if o['q64'] else 25))
    if o['q64'] == 3: a('v_lshrrev_b32 v7, 1, v2\nv_lshl_add_u32 v7, v7, 4, v1\nv_lshlrev_b32 v7, 4, v7\nv_and_b32 v8, 1, v2\nv_lshl_add_u32 v7, v8, 3, v7\nv_add_u32 v%d, s3, v7' % QA)
    if o['own3']:
        assert o['own'] and not o['oe'] and not o['bm']
        a('s_and_b32 s59, s2, 0xf8\ns_lshl_b32 s48, s20, 1\ns_add_u32 s59, s59, s48\ns_and_b32 s3, s2, 1\ns_add_u32 s3, s3, s59\ns_mul_i32 s34, s3, %d\ns_xor_b32 s3, s3, 1\ns_mul_i32 s35, s3, %d' % (o['MO'], o['MO']))
        a('s_and_b32 s3, s21, 6\ns_xor_b32 s48, s48, s3\ns_lshl_b32 s3, s48, 10\ns_add_u32 s3, s3, %d\ns_add_u32 s34, s34, s3\ns_add_u32 s35, s35, s3\ns_add_u32 s35, s35, 1024' % G_PM)
        a('s_cmp_eq_u32 s48, 0\ns_cselect_b32 s33, 0x7ff00000, 0\ns_cselect_b64 s[30:31], -1, 0\nv_add_u32 v27, %d, v25' % L_F)
        for qt in (1, 2): a('s_add_u32 s%d, s34, %d\ns_add_u32 s%d, s35, %d' % (34 + 2 * qt, qt * o['MQ'], 35 + 2 * qt, qt * o['MQ']))
    else:
        a('s_and_b32 s59, s2, 0xf8\ns_lshl_b32 s48, s20, 1\ns_add_u32 s59, s59, s48\ns_mul_i32 s56, s59, %d\ns_add_u32 s56, s56, %d\ns_add_u32 s57, s56, %d' % (o['MO'], G_PM, o['MO']))
        a('s_xor_b32 s48, s48, s21\ns_lshl_b32 s3, s48, 10\ns_add_u32 s56, s56, s3\ns_xor_b32 s3, s3, 1024\ns_add_u32 s57, s57, s3')
        if o['own']:
            a('s_cmp_eq_u32 s48, 0\ns_cselect_b32 s56, 0x7ff00000, s56\ns_cselect_b64 s[30:31], -1, 0\ns_cmp_eq_u32 s48, 1\ns_cselect_b32 s57, 0x7ff00000, s57\ns_cselect_b64 s[32:33], -1, 0\nv_add_u32 v27, %d, v25' % L_F)
    a('s_lshl_b32 s3, s23, 1\ns_and_b32 s54, s22, 1\ns_add_u32 s3, s3, s54\ns_mul_i32 s3, s3, 12\n' + ('s_mul_i32 s54, s18, 6' if o['o64'] else 's_mul_i32 s54, s20, 3') + '\ns_add_u32 s3, s3, s54\ns_mul_i32 s58, s3, %d' % o['OT'])
    if o['o64']:
        assert not o['bm'] and not o['btr'] & 2
        a('s_lshl_b32 s3, s17, 8\ns_add_u32 s58, s58, s3')
    a('s_lshl_b32 s3, s21, 1\ns_lshr_b32 s55, s22, 1\ns_add_u32 s55, s55, s3\ns_lshl_b32 s3, s55, 9\ns_add_u32 s58, s58, s3\ns_add_u32 s58, s58, %d' % G_PO)
    a('v_and_b32 v5, 7, v0\nv_lshrrev_b32 v6, 3, v0')
    a('v_add_u32 v7, s59, v5\nv_lshlrev_b32 v7, 9, v7\n' + ('s_mov_b32 s3, %d' % (G_FL + MOFF) if o['atom'] else 's_lshl_b32 s3, s21, 2\ns_add_u32 s3, s3, %d' % (G_FL + MOFF)) + '\nv_add_u32 v7, s3, v7')
    a('s_sub_u32 s54, s54, 2\nv_add_u32 v8, s54, v5\nv_lshrrev_b32 v9, 1, v8\nv_and_b32 v8, 1, v8\nv_lshl_add_u32 v8, v8, 4, v9\ns_and_b32 s3, s2, 0xe8\nv_add_u32 v8, s3, v8\nv_lshlrev_b32 v8, 9, v8')
    a(('s_mov_b32 s3, %d' if o['atom'] else 's_lshl_b32 s3, s55, 2\ns_add_u32 s3, s3, %d') % (G_FL + 128 + OOFF) + '\nv_add_u32 v8, s3, v8\nv_mov_b32 v9, 0x7ff00000')
    a('v_lshl_add_u32 v7, v6, 6, v7\nv_lshl_add_u32 v8, v6, 6, v8\nv_cmp_gt_u32 vcc, %d, v6\nv_cndmask_b32 v5, 8, v5, vcc' % o['rep'])
    if o['own'] and o['oe'] and o['xe'] in ('E', 'G', 'H') and o['atom']: a('v_cmp_ne_u32 vcc, s48, v5\nv_cndmask_b32 v7, v9, v7, vcc')
    a('v_cmp_gt_u32 vcc, %d, v5\n' % (8 if o['o64'] else 5) + 'v_cndmask_b32 v8, v9, v8, vcc\nv_cmp_gt_u32 vcc, 2, v5\nv_cndmask_b32 v30, v8, v7, vcc\nv_cndmask_b32 v28, v9, v7, vcc\nv_mov_b32 v29, 1')
    if o['shc'] & 1: a('v_cmp_gt_u32 vcc, 1, v5\nv_cndmask_b32 v28, v9, v7, vcc')
    if o['bm']: a('v_xor_b32 v7, s48, v5\nv_mov_b32 v8, s55\nv_cndmask_b32 v7, v8, v7, vcc\nv_lshlrev_b32 v29, v7, v29')
    if o['fo2']: a('s_add_u32 s56, s58, %d\ns_add_u32 s57, s58, %d' % (o['OT'] * (2 if o['o64'] else 1), o['OT'] * (4 if o['o64'] else 2)))
    if 'T' in o['hack']: a('s_mov_b32 s35, 0x7ff00000\ns_mov_b32 s37, s35\ns_mov_b32 s39, s35')
    if 'Y' in o['hack']: a('s_cmp_ge_u32 s21, 4\ns_cselect_b32 s58, 0x7ff00000, s58\ns_cselect_b32 s56, 0x7ff00000, s56\ns_cselect_b32 s57, 0x7ff00000, s57')
    if 'g' in o['hack']: a('s_mov_b32 s58, 0x7ff00000\n' + '\n'.join('s_mov_b32 s%d, s58' % r_ for r_ in (34, 35, 36, 37, 38, 39, 56, 57)))
    if o['o64']: a('v_lshrrev_b32 v7, 3, v1\nv_mul_u32_u24 v7, %d, v7\nv_lshl_add_u32 v7, v2, 6, v7\nv_and_b32 v8, 7, v0\nv_lshl_add_u32 v3, v8, 3, v7' % o['OT'])
    a('s_mov_b32 s52, s20')
    def unit_setup():
        a('s_cmp_ge_u32 s52, 3\ns_cselect_b32 s3, 12288, 0\ns_add_u32 s3, s3, %d' % L_K)
        if o['q64'] == 3:
            a('v_xor_b32 v7, v1, v2\nv_lshlrev_b32 v7, 4, v7\nv_lshl_add_u32 v7, v1, 8, v7')
            for kk in range(4): a('v_xor_b32 v8, %d, v7\nv_add_u32 v%d, s3, v8' % (64 * kk, KA + kk))
        else:
            a('v_lshrrev_b32 v7, 1, v2\nv_xor_b32 v7, v1, v7\nv_lshlrev_b32 v7, 4, v7\nv_lshl_add_u32 v7, v1, 8, v7\nv_and_b32 v8, 1, v2\nv_lshl_add_u32 v7, v8, 3, v7')
            for j in range(8): a('v_xor_b32 v8, %d, v7\nv_add_u32 v%d, s3, v8' % (32 * j, KA + j))
        a('s_lshl_b32 s3, s52, 12\ns_add_u32 s3, s3, %d\nv_add_u32 v%d, s3, v%d' % (L_Q, UA, 26 if o['q64'] in (1, 2) else 25))
        a('s_mov_b32 s50, 0x%x\ns_mov_b32 s51, s50' % f2i((1 if o['mimic'] else 128 ** -0.5) * math.log2(math.e)))
        if o['mimic']: a('s_mov_b32 s26, 0x%x\ns_mov_b32 s27, s26\ns_mov_b32 s25, 0xffff0000' % f2i(128 ** -0.5))
        a('s_mul_i32 s3, s52, 1536\ns_mul_i32 s49, s2, 9216\ns_add_u32 s49, s49, s3\ns_add_u32 s49, s49, %d' % G_P)
        if o['pds']: a('s_add_u32 s3, s3, %d\nv_add_u32 v255, s3, v25\nv_add_u32 v31, s3, v26' % (L_P + 27648))
    def k_reads(late=False):
        if o['klate'] and not late: return []
        if o['q64'] == 3: return ['ds_read_b128 %s, v%d offset:%d' % (v(KF + 16 * kt + 4 * kk, 4), KA + kk, 4096 * kt) for kk in range(4) for kt in range(3)]
        return ['ds_read_b64 %s, v%d offset:%d' % (v(KF + 16 * kt + 2 * j, 2), KA + j, 4096 * kt) for j in range(8) for kt in range(3)]
    if o['mimic']: a(W0)
    unit_setup()
    if o['ocl'] > 1:
        assert o['sent'] and o['o64'] and o['rep'] == 1
        if o['ocl'] == 2: a('s_mul_i32 s3, s17, 384')
        else: a('s_and_b32 s3, s22, 2\ns_add_u32 s3, s3, s17\ns_lshl_b32 s3, s3, 7')
        a('s_sub_u32 s3, s3, 120\nv_add_u32 v2, s3, v30')
    if o['ack1'] == 2: a('s_lshl_b32 s41, s18, 10\ns_sub_u32 s41, 3072, s41')
    if o['own3']: a('v_add_u32 v1, s33, v25')
    a(W0)
    srd(SWS, 14, 'ws')
    if o['sat'] & 1: a('s_lshl_b32 s3, s59, 9\ns_add_u32 s42, s3, %d\ns_add_u32 s43, s42, 512\ns_mov_b32 s40, 1' % (256 + MOFF))
    def wreads(st, off, wa=WA): return ['ds_read_b64_tr_b16 %s, v%d offset:%d' % (v(st + 4 * t + 2 * hh, 2), wa + t, off + 1024 * hh) for t in range(4) for hh in range(2)]
    def reads_A(n, ks, st=None):
        st = st or F[ks]
        return ['ds_read_b128 %s, v%d offset:%d' % (v(st + 16 + 4 * q, 4), XA + ks, XS(n) + 2048 * q) for q in range(3)] + wreads(st, 16384 * (n % 3) + 8192 * ks)
    ORD = [(t, q if t % 2 == 0 else 2 - q) for t in range(4) for q in range(3)]
    def mfma(acc, ks, first, swap, od=None):
        out = []
        for t, q in od or ORD:
            d = v(acc + 4 * (3 * t + q), 4); x = v(F[ks] + 4 * t, 4); y = v(F[ks] + 16 + 4 * q, 4)
            if swap: x, y = y, x
            out.append(MF % (d, x, y, '0' if first else d))
        return out
    def cvt(d, s_): return ['v_cvt_pk_bf16_f32 v%d, v%d, v%d' % (d, s_, s_ + 1), 'v_cvt_pk_bf16_f32 v%d, v%d, v%d' % (d + 1, s_ + 2, s_ + 3)]
    def ds(txt, tag):
        def f(): a(txt); lg.issue(tag)
        return f
    def step(m, dsops, extra=(), waits=None, pre=(), xstart=0, dstart=0, xper=0):
        n = len(m); per = [[] for _ in range(n)]
        for i, x_ in enumerate(pre): per[i].append(x_)
        nd = n - dstart
        for i, x_ in enumerate(dsops): per[dstart + (i if len(dsops) <= nd else i * nd // len(dsops))].append(x_)
        nx = n - xstart
        for i, x_ in enumerate(extra): per[min(n - 1, xstart + int(i / xper)) if xper else xstart + (i * nx // len(extra))].append(x_)
        for i in range(n):
            if waits and i in waits: lg.wait(waits[i])
            a(m[i]); run(per[i])
    stC('C at B0', 3)
    a('s_barrier')
    stC('B0')
    def tA(n, ks): return [ds(x_, 'a%d%d%s' % (n, ks, 'lo' if i < 7 else 'hi')) for i, x_ in enumerate(reads_A(n, ks))]
    if o['atune']:
        bg = o['atune']
        run(tA(0, 0))
        for n in range(7):
            kr = [ds(x_, 'k') for x_ in k_reads()[6 * (n - 3):6 * (n - 2)]] if 3 <= n < 7 else []
            m = mfma(A, 0, n == 0, False)
            step(m[:10], tA(n, 1), waits={0: 'a%d0lo' % n, 6: 'a%d0hi' % n}); step(m[10:], [])
            m = mfma(A, 1, False, False)
            step(m[:bg], [], waits={0: 'a%d1lo' % n})
            lg.wait_all(); a('s_barrier')
            r = tA(n + 1, 0)
            run(r[:1]); step(m[bg:], r[1:] + kr)
        lg.seq = []
    else: run(reads_A(0, 0))
    for n in range(7 if o['atune'] else 0, 9):
        if n == 7 and o['tm']:
            assert not o['b8a']
            F2 = 204; QT = F[1]
            a(W0)
            run(interleave(mfma(A, 0, False, False), reads_A(7, 1), 0, 2))
            a(W0); a('s_barrier'); stC('B8')
            a(';WARM_ON')
            r0, r1 = reads_A(8, 0), reads_A(8, 1, F2)
            rr = []
            for idx in ([0], [3, 4], [5, 6], [1], [2], [7, 8], [9, 10]):
                rr += [r0[i] for i in idx] + [r1[i] for i in idx]
            run(interleave(mfma(A, 1, False, False), rr, 0, 2))
            stC('end 7,1', 3)
            m = []; qw = []
            for i, (tp, q) in enumerate([(tp, q) for tp in range(2) for q in range(3)]):
                for u in range(2):
                    t = 2 * tp + u; d = v(A + 4 * (3 * t + q), 4)
                    for st in (F[0], F2): m.append(MF % (d, v(st + 4 * t, 4), v(st + 16 + 4 * q, 4), d))
                    qw += cvt(QT + 4 * i + 2 * u, A + 4 * (3 * t + q))
                    if o['q64'] and 'q' not in o['hack']: qw[-1] += '\nds_write_b64 v%d, %s offset:%d' % (QA, v(QT + 4 * i + 2 * u, 2), q * 4096 + tp * 1024 + u * 512)
                if not o['q64']: qw[-1] += '\nds_write_b128 v%d, %s offset:%d' % (QA, v(QT + 4 * i, 4), q * 4096 + tp * 1024)
            m[0] = 's_waitcnt lgkmcnt(12)\n' + m[0]; m[4] = 's_waitcnt lgkmcnt(8)\n' + m[4]; m[8] = ('s_waitcnt lgkmcnt(%d)' % (1 if o['q64'] and o['qs'] <= 6 and 'q' not in o['hack'] else 0)) + '\n' + m[8]
            run(interleave(m, qw, o['qs'], 1))
            stC('Q issued', 3)
            if stamps == 3: a(W0); stC('Q done', 3)
            break
        if n == 8: stC('end 7,1', 3)
        a(W0)
        run(interleave(mfma(A, 0, n == 0, False), (['s_barrier'] if n == 8 and o['b8a'] else []) + reads_A(n, 1), 0, 2))
        if n < 8:
            a(W0)
            a('s_barrier')
            if n == 7: stC('B8')
            run(interleave(mfma(A, 1, False, False), reads_A(n + 1, 0) + (k_reads()[8 * (n - 4):8 * (n - 3)] if 4 <= n < 7 else []), 0, 2))
        else:
            stC('end 8,0', 3)
            a(W0)
            od = [(2 * tp + u, q) for tp in range(2) for q in range(3) for u in range(2)]
            qw = []
            for i, (t, q) in enumerate(od):
                qw += cvt(QT + 2 * i, A + 4 * (3 * t + q))
                if t & 1: qw[-1] += '\nds_write_b128 v%d, %s offset:%d' % (QA, v(QT + 2 * i - 2, 4), q * 4096 + (t >> 1) * 1024)
            run(interleave(mfma(A, 1, False, False, od), qw, 6, 2))
            stC('Q issued', 3)
            if stamps == 3: a(W0); stC('Q done', 3)
    if o['own3']:
        a('s_and_b32 s3, s21, 1\ns_lshl_b32 s3, s3, 6')
        for t in range(4): a('v_xor_b32 v%d, s3, v%d' % (WA + t, WA + t))
    if o['vf']:
        for t in range(4): a('v_add_u32 v%d, %d, v%d' % (250 + t, BASE2, WA + t))
    if o['uprio']: a('s_setprio %d' % o['uprio'])
    a('L_unit:')
    a(W0)
    a('s_barrier')
    stC('BQ')
    for kk in range(4):
        if o['klate']: run(k_reads(True)[3 * kk:3 * kk + 3])
        if o['q64'] == 1: a('ds_read2st64_b64 %s, v%d offset0:%d offset1:%d' % (v(QF + 4 * kk, 4), UA, 2 * kk, 2 * kk + 1))
        elif o['q64'] == 2: a('ds_read_b64 %s, v%d offset:%d\nds_read_b64 %s, v%d offset:%d' % (v(QF + 4 * kk, 2), UA, 1024 * kk, v(QF + 4 * kk + 2, 2), UA, 1024 * kk + 512))
        else: a('ds_read_b128 %s, v%d offset:%d' % (v(QF + 4 * kk, 4), UA, 1024 * kk))
    for kk in range(4):
        a('s_waitcnt lgkmcnt(%d)' % ((3 - kk) * (4 if o['klate'] else 2 if o['q64'] == 2 else 1)))
        for kt in range(3): a(MF % (v(S + 4 * kt, 4), v(KF + 16 * kt + 4 * kk, 4), v(QF + 4 * kk, 4), v(S + 4 * kt, 4) if kk else '0'))
    if o['bs']: a('s_barrier')
    if 's' in o['hack']: a('s_branch L_hs_skip')
    if 'h' in o['hack']: a('s_cmp_ge_u32 s20, 4\ns_cbranch_scc1 L_hs_skip')
    if o['mimic']:
        for rnd in range(2):
            for t in range(6): a('v_cvt_pk_bf16_f32 v%d, v%d, v%d' % (S + 2 * t + 1, S + 2 * t, S + 2 * t + 1))
            for t in range(6): a('v_lshlrev_b32 v%d, 16, v%d' % (S + 2 * t, S + 2 * t + 1))
            for t in range(6): a('v_and_b32 v%d, s25, v%d' % (S + 2 * t + 1, S + 2 * t + 1))
            if rnd == 0:
                for t in range(0, 12, 2): a('v_pk_mul_f32 v[%d:%d], v[%d:%d], s[26:27]' % (S + t, S + t + 1, S + t, S + t + 1))
    x, y = 6, 7
    a('v_max3_f32 v6, v%d, v%d, v%d\nv_max3_f32 v7, v%d, v%d, v%d' % (S, S + 1, S + 2, S + 3, S + 4, S + 5))
    a('v_max3_f32 v6, v6, v%d, v%d\nv_max3_f32 v7, v7, v%d, v%d\nv_max3_f32 v6, v6, v%d, v%d' % (S + 6, S + 7, S + 8, S + 9, S + 10, S + 11))
    def xl(op, first):
        a(first)
        a('v_permlane16_swap_b32 v6, v7\n%s v8, v6, v7\n%s v7, v6, v7\nv_permlane32_swap_b32 v8, v7\n%s v6, v8, v7' % (op, op, op))
    xl('v_max_f32', 'v_max_f32 v6, v6, v7\nv_mov_b32 v7, v6')
    a('v_mul_f32 v6, s50, v6')
    if o['pk']:
        for t in range(0, 12, 2): a('v_pk_fma_f32 v[%d:%d], v[%d:%d], s[50:51], v[6:7] op_sel_hi:[1,1,0] neg_lo:[0,0,1] neg_hi:[0,0,1]' % (S + t, S + t + 1, S + t, S + t + 1))
    else:
        for t in range(12): a('v_fma_f32 v%d, v%d, s50, -v6' % (S + t, S + t))
    for t in range(12): a('v_exp_f32 v%d, v%d' % (S + t, S + t))
    if o['pk']:
        a('v_pk_add_f32 v[6:7], v[%d:%d], v[%d:%d]\nv_pk_add_f32 v[4:5], v[%d:%d], v[%d:%d]' % (S, S + 1, S + 2, S + 3, S + 4, S + 5, S + 6, S + 7))
        a('v_pk_add_f32 v[6:7], v[6:7], v[%d:%d]\nv_pk_add_f32 v[4:5], v[4:5], v[%d:%d]\nv_pk_add_f32 v[4:5], v[4:5], v[6:7]' % (S + 8, S + 9, S + 10, S + 11))
    else:
        a('v_add_f32 v4, v%d, v%d\nv_add_f32 v5, v%d, v%d' % (S, S + 1, S + 2, S + 3))
        for t in range(4, 12, 2): a('v_add_f32 v4, v4, v%d\nv_add_f32 v5, v5, v%d' % (S + t, S + t + 1))
    xl('v_add_f32', 'v_add_f32 v6, v4, v5\nv_add_f32 v7, v4, v5')
    a('v_rcp_f32 v6, v6')
    if o['pk']:
        for t in range(0, 12, 2): a('v_pk_mul_f32 v[%d:%d], v[%d:%d], v[6:7] op_sel_hi:[1,0]' % (S + t, S + t + 1, S + t, S + t + 1))
    else:
        for t in range(12): a('v_mul_f32 v%d, v%d, v6' % (S + t, S + t))
    for t in range(6): a('v_cvt_pk_bf16_f32 v%d, v%d, v%d' % (P + t, S + 2 * t, S + 2 * t + 1))
    if o['hack']: a('L_hs_skip:')
    if 'e' not in o['hack'] and 'y' not in o['hack']:
        a('buffer_store_dwordx4 %s, v25, s[%d:%d], s49 offen sc1' % (v(P, 4), SWS, SWS + 3))
        a('buffer_store_dwordx2 %s, v26, s[%d:%d], s49 offen offset:1024 sc1' % (v(P + 4, 2), SWS, SWS + 3))
    if o['pds']: a('ds_write_b128 v255, %s\nds_write_b64 v31, %s offset:1024' % (v(P, 4), v(P + 4, 2)))
    stC('C at BP')
    a('s_barrier')
    a('s_cmp_ge_u32 s20, 4\ns_cbranch_scc1 L_help2')
    if o['cprio'] or o['uprio']: a('s_setprio %d' % o['cprio'])
    stC('BP')
    a('; ---- V*Wo: 8 pieces of 64 rows x 128 columns, results kept in registers as bf16 operands')
    def reads_W(p, ks):
        vp = (p >> 2) * 2 + (PC(p) & 1); tg = 'w%d%d' % (p, ks)
        r = ['ds_read_b128 %s, v%d offset:%d' % (v(F[ks] + 16 + 4 * q, 4), VA + ks, 12288 * vp + 2048 * q) for q in range(3)] + (wreads(F[ks], 16384 * WSLOT['w%d' % p] + 8192 * ks) if WSLOT['w%d' % p] < 4 else wreads(F[ks], 8192 * ks, 250))
        if (p, ks) == (0, 0) and o['fine0']:
            r = [r[0], r[3], r[4], r[1], r[2]] + r[5:]
            return [ds(x_, 'f%d' % i) for i, x_ in enumerate(r)]
        return [ds(x_, tg + ('lo' if i < 7 else 'hi')) for i, x_ in enumerate(r) if i >= 3 or not (o['alt'] and p & 1)]
    def wW(p, ks, more=()): return {0: 'f2', 1: 'f3', 2: 'f4', 3: 'f6', 6: 'f8', 9: 'f10'} if (p, ks) == (0, 0) and o['fine0'] else {0: ['w%d%dlo' % (p, ks)] + list(more), 6: ['w%d%dhi' % (p, ks)]}
    def vwpos(base, i, kt): return base + ([0, 2, 4][kt] if i % 2 == 0 else [8, 10, 6][kt])
    HACC = [B, A, B, A]; HDST = [C, C, B, B]
    def cvt_W(i): return [x_ for t in range(4) for kt in range(3) for x_ in cvt(vwpos(HDST[i] + 12 * t, i, kt), HACC[i] + 4 * (3 * t + kt))]
    def xb(nm): return [('s_waitcnt vmcnt(0)\n' if nm == o['ack'] and 'w' not in o['hack'] else '') + 's_barrier'] if nm in XN else []
    def xbc(nm):
        r_ = xb(nm)
        if r_ and o['vdry']: r_ = ['s_cbranch_execz %s\n%s\nL_xa_%s:' % ('L_vwret' if nm in o['vseg'] else 'L_xa_' + nm, r_[0], nm)]
        return r_
    def ins(lst, i, x_): return lst[:i] + [x_] + lst[i:]
    OS = [[108, 112, 116, 120, 124], [48, 52, 56, 60, 64], [80, 84, 88, 92, 96], [100, 128, 132, 68, 72]]; OACC = [[232, 236, 240], [32, 36, 40]]
    def rdO(kq):
        tg = 'os%d' % kq
        return [ds('ds_read_b128 %s, v%d offset:%d' % (v(OS[kq][kt], 4), OVA + (kq & 1), 12288 * (kq >> 1) + 2048 * kt), tg) for kt in range(3)] + \
               [ds('ds_read_b64_tr_b16 %s, v%d offset:%d' % (v(OS[kq][3 + e] + 2 * hh, 2), OA, 16384 * WSLOT['o%d' % e] + 4096 * kq + 512 * hh), tg) for e in range(2) for hh in range(2)]
    mfma_O = [MF % (v(OACC[e][kt], 4), v(OS[kq][kt], 4), v(OS[kq][3 + e], 4), v(OACC[e][kt], 4) if kq else '0') for kq in range(4) for e in range(2) for kt in range(3)]
    cvt_O = [x_ for e in range(2) for kt in range(3) for x_ in cvt(vwpos(VWO, e, kt), OACC[e][kt])]
    PFULL = [10, 11, 22, 23]; PHALF = [4, 5, 6, 7]; POF = [24, 21]; POH = [8, 9]
    padr = []
    for i in range(4):
        padr.append('s_xor_b32 s3, s53, %d\ns_mul_i32 s3, s3, 9216\ns_add_u32 s3, s3, s55' % i)
        padr.append('v_add_u32 v%d, s3, v25' % PFULL[i]); padr.append('v_add_u32 v%d, s3, v26' % PHALF[i])
        if i < 2:
            padr.append(('s_xor_b32 s3, s52, %d\ns_mul_i32 s3, s3, 9216\ns_add_u32 s3, s3, s55\n' % i if o['alt'] == 3 else '') + 's_add_u32 s3, s3, s54\nv_add_u32 v%d, s3, v25' % POF[i]); padr.append('v_add_u32 v%d, s3, v26' % POH[i])
    a('s_mul_i32 s55, s18, 4608\ns_and_b32 s54, s22, 1\ns_mul_i32 s54, s54, 4608\ns_sub_u32 s54, s54, s55\ns_add_u32 s55, s55, %d\ns_lshr_b32 s53, s16, 1\ns_xor_b32 s53, s53, s22\ns_xor_b32 s53, s53, 3' % L_P)
    if o['alt'] == 3: a('s_and_b32 s52, s22, 2\ns_xor_b32 s52, s52, s53')
    def preads(dst, fa, ha, qt, tag):
        off = 1536 * qt
        return [ds('ds_read_b128 %s, v%d offset:%d' % (v(dst[0], 4), fa[0], off), tag),
                ds('ds_read_b64 %s, v%d offset:%d' % (v(dst[1], 2), ha[0], off + 1024), tag),
                ds('ds_read_b64 %s, v%d offset:%d' % (v(dst[1] + 2, 2), ha[1], off + 1024), tag),
                ds('ds_read_b128 %s, v%d offset:%d' % (v(dst[2], 4), fa[1], off), tag)]
    PB = [[80 + 4 * k for k in range(6)], [108 + 4 * k for k in range(6)], [80 + 4 * k for k in range(6)]]
    def reads_F(qt): return preads(PB[qt][:3], PFULL[:2], PHALF[:2], qt, 'p%da' % qt) + preads(PB[qt][3:], PFULL[2:], PHALF[2:], qt, 'p%db' % qt)
    if o['vdry']: a('L_xa_BP:')
    run(reads_W(0, 0))
    for p in range(8):
        i = PC(p) >> 1; first = PC(p) & 1 == 0
        if p < 2: ex0, ex1 = (padr[:5], padr[5:10]) if p == 0 else (padr[10:], [] if o['vf'] == 1 else ['v_add_u32 v%d, %d, v%d' % (250 + t, L_P, WA + t) for t in range(4)])
        elif o['alt']:
            cv = cvt_W({3: 0, 4: 1, 7: 2}[p]) if p in (3, 4, 7) else []
            k_ = 12 if p != 4 else 10
            ex0, ex1 = cv[:k_], cv[k_:]
        else:
            cv = cvt_W(i - 1)
            ex0, ex1 = (cv[:6], cv[6:12]) if p % 2 == 0 else (cv[12:18], cv[18:])
        if 'E' in o['hack'] and p >= 6:
            st_ = lambda h: 'buffer_store_dwordx4 v[244:247], v25, s[%d:%d], s%d offen sc1\ns_add_u32 s%d, s%d, %d' % (SWS, SWS + 3, 56 + h, 56 + h, 56 + h, o['MQ'])
            if p == 6: ex1 = ex1 + [st_(0)]
            else: ex0 = ex0 + [st_(1)]; ex1 = ex1 + [st_(0)]
        step(mfma(HACC[i], 0, first, True), reads_W(p, 1), extra=ex0, xstart=(4 if p % 2 == 0 else 0) if not o['alt'] else 1, waits=wW(p, 0))
        step(mfma(HACC[i], 1, False, True), reads_W(p + 1, 0) if p < 7 else reads_F(0), extra=ex1, xstart=1, waits=wW(p, 1), pre=xbc('w%d' % p))
        stC('s%d' % p if p < 7 else 'VW end', 2 if p < 7 else 1)
    RACC = [[244, 248, 252, 104], [32, 36, 40, 44], [244, 248, 252, 104]]
    PK = [76, 12]; OP = [[108, 112, 116], [120, 124, 48], [52, 56, 60]]
    def fm(qt, t, k): return MF % (v(RACC[qt][t], 4), v([C, B][k // 3] + 12 * t + 4 * (k % 3), 4), v(PB[qt][k], 4), v(RACC[qt][t], 4) if k else '0')
    def store_F(qt, h):
        if o['own3'] == 2:
            pk = [76, 32, 44][qt] if h == 0 else PK[1]
            return cvt(pk, RACC[qt][2 * h]) + cvt(pk + 2, RACC[qt][2 * h + 1]) + ['buffer_store_dwordx4 %s, v%d, s[%d:%d], s%d offen sc1' % (v(pk, 4), 25 if h else 1, SWS, SWS + 3, 34 + 2 * qt + h)]
        if o['own3']:
            return cvt(PK[h], RACC[qt][2 * h]) + cvt(PK[h] + 2, RACC[qt][2 * h + 1]) + \
                ['buffer_store_dwordx4 %s, v%d, s[%d:%d], s%d offen sc1' % (v(PK[h], 4), 25 if h else 1, SWS, SWS + 3, 34 + 2 * qt + h)] + \
                (['s_mov_b64 exec, s[30:31]\nds_write_b128 v27, %s offset:%d\ns_mov_b64 exec, -1' % (v(PK[h], 4), 1024 * qt)] if h == 0 else [])
        l_ = 'L_own%d%d' % (qt, h)
        ownw = '\ns_cmp_lg_u32 s48, %d\ns_cbranch_scc1 %s\nds_write_b128 v27, %s offset:%d\n%s:' % (h, l_, v(PK[h], 4), 1024 * qt, l_) if o['own'] else ''
        if o['own'] and o['ownx']: ownw = '\ns_mov_b64 exec, s[%d:%d]\nds_write_b128 v27, %s offset:%d\ns_mov_b64 exec, -1' % (30 + 2 * h, 31 + 2 * h, v(PK[h], 4), 1024 * qt)
        return cvt(PK[h], RACC[qt][2 * h]) + cvt(PK[h] + 2, RACC[qt][2 * h + 1]) + \
               ['buffer_store_dwordx4 %s, v25, s[%d:%d], s%d offen sc1\ns_add_u32 s%d, s%d, %d' % (v(PK[h], 4), SWS, SWS + 3, 56 + h, 56 + h, 56 + h, o['MQ']) + ownw]
    def oflag(d):
        if o['ocl'] == 1: return flag(30, 256 + d)
        return FOP + ' v29, v2, s[%d:%d], 0 offen offset:%d sc1' % (SWS, SWS + 3, d)
    def sflag(off): return 's_atomic_add s40, s[14:15], s42\ns_atomic_add s40, s[14:15], s43'
    if 'N' in o['hack']:
        sG = store_F
        def store_F(qt, h): return sG(qt, h)[:4]
    if 'E' in o['hack']:
        sF = store_F
        def store_F(qt, h):
            r_ = sF(qt, h)
            if (qt, h) == (0, 1): return r_[:4] + ['s_waitcnt vmcnt(2)\n' + flag(28, 0)]
            if (qt, h) == (1, 1): return r_[:4] + ['s_waitcnt vmcnt(1)\n' + flag(28, 128)]
            return r_ if qt == 2 else r_[:4]
    def flag(reg, off): return FOP + ' v29, v%d, s[%d:%d], 0 offen offset:%d sc1' % (reg, SWS, SWS + 3, off)
    m = [fm(0, t, k) for k in range(6) for t in range(4)]
    c3 = cvt_W(3)
    c3 = [c3[6 * t + j] for t in range(4) for j in (4, 5)] + [c3[6 * t + j] for t in range(4) for j in range(4)]
    step(m[:19], reads_F(1), extra=c3, xstart=3, waits={0: ['p0a'], 11: ['p0b']})
    step(m[19:], [], extra=[st_(1)] if 'E' in o['hack'] else [])
    if o['vdry']: a('s_cbranch_execz L_vwret')
    stC('R0', 2)
    m = [fm(1, t, k) for t in range(4) for k in range(6)]
    step(m[:17], reads_F(2), extra=store_F(0, 0) + store_F(0, 1), xstart=2 if o['asap'] & 2 else 3, xper=1 if o['asap'] & 2 else 0, waits={0: ['p1a'], 3: ['p1b']})
    step(m[17:], [], extra=store_F(1, 0), xper=2 if o['asap'] & 2 else 0)
    stC('R1', 2)
    xo = o['xo']
    m = [fm(2, t, k) for t in range(4) for k in range(6)]
    step(m[:xo], [], extra=store_F(1, 1), xstart=2 if o['asap'] & 4 else 4, xper=1 if o['asap'] & 4 else 0, waits={0: ['p2a'], 3: ['p2b']})
    seq = rdO(0) + rdO(1); k1 = min(14, 24 - xo)
    def ownw(qts): return 's_mov_b64 exec, s[30:31]\n' + '\n'.join('ds_write_b128 v27, %s offset:%d' % (v([76, 32, 44][q_], 4), 1024 * q_) for q_ in qts) + '\ns_mov_b64 exec, -1'
    step(m[xo:], seq[:k1], extra=store_F(2, 0) + ([ownw([1])] if o['own3'] == 2 else []), xstart=max(0, (16 if o['asap'] & 4 else 18) - xo), xper=1 if o['asap'] & 4 else 0, pre=xb('O') + (['s_waitcnt vmcnt(2)\n' + flag(28, 0)] if o['f0at'] == 'R2' else []))
    stC('R2', 2)
    op = [x_ for qt in range(3) for x_ in preads(OP[qt], POF, POH, qt, 'po')]
    f0 = 's_waitcnt vmcnt(3)\n' + flag(28, 0)
    f1 = 's_waitcnt vmcnt(3)\n' + flag(28, 128)
    step(mfma_O[:12], seq[k1:] + rdO(2) + rdO(3), extra=store_F(2, 1) + ([flag(28, 256)] if 'c' in o['hack'] else []), xstart=1 if o['asap'] & 1 else 4, xper=1 if o['asap'] & 1 else 0, waits={0: ['os0'], 6: ['os1']}, pre=[f0] if o['ef'] >= 1 and 'E' not in o['hack'] and o['f0at'] == 'O' else [])
    def fo(k, first): return [MF % (v(SP + 4 * qt, 4), v(VWO + 4 * k, 4), v(OP[qt][k], 4), '0' if first else v(SP + 4 * qt, 4)) for qt in range(3)]
    if o['fo2']:
        assert o['ef'] == 2 and not o['e2'] and o['own3'] and 'E' not in o['hack']
        mo = mfma_O[12:15] + mfma_O[18:21] + mfma_O[15:18] + mfma_O[21:24]
        step(mo[:8], op[:10], waits={0: ['os2'], 3: ['os3']}, extra=[f1], xstart=min(7, o['e0']))
        step(mo[8:], op[10:], extra=cvt_O[:6], xstart=1)
        stC('O', 2)
        lg.wait('po')
        f0_, f2_, f1_ = fo(0, True), fo(2, False), fo(1, False)
        def ost(qt): return cvt(VWO + 2 * qt, SP + 4 * qt) + ['buffer_store_dwordx2 %s, v%d, s[%d:%d], s%d offen sc1' % (v(VWO + 2 * qt, 2), 3 if o['o64'] else 26, SWS, SWS + 3, [58, 56, 57][qt])]
        step(f0_, [], extra=cvt_O[6:])
        run([f2_[0], f1_[0], f2_[1], f1_[1], f2_[2], f1_[2]])
        if 'r' in o['hack']: a('s_mov_b64 exec, 0xfc'); a(oflag(0)); a('s_mov_b64 exec, -1\ns_cmp_lg_u32 s21, 3\ns_cbranch_scc1 L_hr\ns_sleep 60\nL_hr:\ns_nop 7')
        run(ost(0) + ost(1) + ost(2))
    else:
        step(mfma_O[12:], op, waits={0: ['os2'], 6: ['os3']}, extra=[f1] if o['ef'] >= 2 and 'E' not in o['hack'] else [], xstart=o['e0'])
        stC('O', 2)
        def fo(k, first): return [MF % (v(SP + 4 * qt, 4), v(VWO + 4 * k, 4), v(OP[qt][k], 4), '0' if first else v(SP + 4 * qt, 4)) for qt in range(3)]
        run(cvt_O[:6])
        step(fo(0, True), [], extra=cvt_O[6:], waits={0: ['po']})
        run(fo(2, False) + fo(1, False))
        if o['ef'] == 0: a('s_waitcnt vmcnt(4)'); a(flag(28, 0))
        if o['ef'] < 2: a('s_waitcnt vmcnt(3)'); a(flag(28, 128))
        if o['e2']: a('s_waitcnt vmcnt(1)'); a(flag(28, 256))
        if 'r' in o['hack']: a('s_mov_b64 exec, 0xfc'); a(oflag(0)); a('s_mov_b64 exec, -1\ns_cmp_lg_u32 s21, 3\ns_cbranch_scc1 L_hr\ns_sleep 60\nL_hr:')
        for qt in range(3):
            run(cvt(VWO + 2 * qt, SP + 4 * qt) + ['buffer_store_dwordx2 %s, v%d, s[%d:%d], s58 offen sc1\ns_add_u32 s58, s58, %d' % (v(VWO + 2 * qt, 2), 3 if o['o64'] else 26, SWS, SWS + 3, o['OT'] * (2 if o['o64'] else 1))])
    stC('final end')
    if o['sent']:
        assert (o['rep'] == 1 or o['ack1']) and o['atom']
        a('s_mov_b64 exec, %s' % ('4' if o['shc'] & 2 else '0x24' if o['shc'] & 4 else '0xfcfc' if o['rep'] > 1 else '0xfc')); a(oflag(8 if 'r' in o['hack'] else 0)); a('s_mov_b64 exec, -1')
    if o['own3'] == 2:
        assert o['xe'] in ('E', 'G', 'H')
        a(ownw([0, 2]))
    if o['own'] and not (o['own3'] == 2 and o['xe'] == 'H'): a(W0)
    if o['xe'] == 'E': a('s_barrier')
    if not o['e2'] and 'c' not in o['hack']: a('s_waitcnt vmcnt(%d)' % ((5 if o['ef'] == 0 else 4) + o['sent'] - ('E' in o['hack']))); a(sflag(256) if o['sat'] & 1 else flag(28, 256))
    if o['xe'] == 'H': a((W0 + '\n' if o['own3'] == 2 else '') + 's_barrier')
    if 'b' not in o['hack']: a('s_waitcnt vmcnt(%d)' % (o['sent'] + (0 if o['e2'] or 'c' in o['hack'] or o['sat'] & 1 else 1)))
    a('s_mov_b64 exec, %s' % ('4' if o['ack1'] and o['sent'] and o['o64'] else '0xfcfc')); a(flag(30, 256 + (64 - OOFF) * o['sent']).replace(', 0 offen', ', s41 offen' if o['ack1'] == 2 and o['sent'] and o['o64'] else ', 0 offen')); a('s_mov_b64 exec, -1')
    if o['xe'] == 'G': a('s_barrier')
    stC('flags sent')
    a(';WARM_OFF')
    stC.flush(0)
    a('s_endpgm')
    a('; ==== helpers')
    if o['padH']: a('.fill %d, 4, 0xbf800000' % o['padH'])
    a('L_help:')
    a('s_sub_u32 s18, s20, 5\ns_sub_u32 s52, s20, 1')
    a('v_lshlrev_b32 v25, 4, v0\nv_lshlrev_b32 v26, 3, v0')
    a('v_mov_b32 v12, 0\nv_mov_b32 v13, 0\nv_mov_b32 v14, 0\nv_mov_b32 v15, 0\nv_mov_b32 v29, 1\nv_mov_b32 v28, 0x7ff00000\nv_mov_b32 v30, v28\nv_mov_b32 v3, v28')
    a(W0)
    srd(SWS, 14, 'ws')
    if o['sent'] and o['clr'] == 'start': clears(False, 40, 44)
    def dry_run(name):
        a('s_mov_b64 exec, 0\ns_branch L_dry_%s\nL_dryret_%s:\ns_mov_b64 exec, -1' % (name, name))
    def warm_run(at):
        if o['dry'] and at == o['dryat'][0]: dry_run('mp')
        if o['dry'] and at == o['dryat'][1]: dry_run('op')
        if o['warm']:
            for c_, x_ in enumerate(o['wat']):
                if x_ == at: a('s_mov_b64 exec, 0\ns_branch L_wchain%d\nL_wret%d:\ns_mov_b64 exec, -1' % (c_, c_))
    if o['vdry']:
        a('s_cmp_lg_u32 s20, 6\ns_cbranch_scc1 L_nl\ns_cmp_ge_u32 s2, 32\ns_cbranch_scc1 L_nl\ns_lshl_b32 s3, s2, 12')
        for j in range(4): a('buffer_store_dwordx4 v[12:15], v25, s[%d:%d], s3 offen offset:%d sc1' % (SWS, SWS + 3, 1024 * j))
        a('L_nl:\ns_mov_b64 exec, 0\ns_cmp_eq_u32 s20, 5\ns_cbranch_scc1 L_xa_BP\ns_cmp_eq_u32 s20, 6\ns_cbranch_scc1 L_xa_%s\ns_branch L_xa_%s' % tuple(o['vseg']))
        a('L_vwret:\ns_mov_b64 exec, -1\ns_waitcnt lgkmcnt(0)\ns_nop 7')
        a('s_cmp_eq_u32 s20, 7\ns_cbranch_scc1 L_h2\ns_cmp_eq_u32 s20, 5\ns_cbranch_scc1 L_h0\ns_cmp_ge_u32 s2, 32\ns_cbranch_scc1 L_h0')
        if o['hs2']: a('s_waitcnt vmcnt(0)\ns_mov_b64 exec, 1\nglobal_atomic_add v12, v29, s[12:13] sc1\ns_mov_b64 exec, -1')
        else:
            a('s_lshl_b32 s3, s2, 2\nv_mov_b32 v16, s3\ns_waitcnt vmcnt(0)')
            a('s_mov_b64 exec, 1\nglobal_store_dword v16, v29, s[12:13] sc1\ns_mov_b64 exec, -1')
    else:
        a('s_cmp_eq_u32 s20, 7\ns_cbranch_scc1 L_h2')
        if o['ldr'] == [-1, -1]:
            a('s_cmp_eq_u32 s20, 5\ns_cbranch_scc1 L_h0')
            a('s_cmp_ge_u32 s2, 32\ns_cbranch_scc1 L_h0')
            a('s_lshl_b32 s3, s2, 12')
            assert G_FL == 0
            for j in range(4): a('buffer_store_dwordx4 v[12:15], v25, s[%d:%d], s3 offen offset:%d sc1' % (SWS, SWS + 3, 1024 * j))
            if o['hs2']: a('s_waitcnt vmcnt(0)\ns_mov_b64 exec, 1\nglobal_atomic_add v12, v29, s[12:13] sc1\ns_mov_b64 exec, -1')
            else:
                a('s_lshl_b32 s3, s2, 2\nv_mov_b32 v16, s3\ns_waitcnt vmcnt(0)')
                a('s_mov_b64 exec, 1\nglobal_store_dword v16, v29, s[12:13] sc1\ns_mov_b64 exec, -1')
    def leader(at):
        if o['ldr'] == [-1, -1] or at not in o['ldr']: return
        l_ = a.label('L_nl')
        a('s_cmp_lg_u32 s19, 0\ns_cbranch_scc1 %s' % l_)
        if at == o['ldr'][0]:
            a('s_lshl_b32 s3, s2, 12')
            for j in range(4): a('buffer_store_dwordx4 v[12:15], v25, s[%d:%d], s3 offen offset:%d sc1' % (SWS, SWS + 3, 1024 * j))
        if at == o['ldr'][1]: a('s_waitcnt vmcnt(0)\ns_mov_b64 exec, 1\nglobal_atomic_add v12, v29, s[12:13] sc1\ns_mov_b64 exec, -1')
        a(l_ + ':')
    if o['ldr'] != [-1, -1]: a('s_xor_b32 s19, s20, 6\ns_or_b32 s19, s19, s23'); leader(-1)
    a('L_h0:')
    unit_setup()
    for c in range(9 + o['b8a']):
        a('s_barrier')
        leader(c)
        if c == 4: run(k_reads())
    a('s_branch L_unit')
    a('L_h2:')
    if not o['cpfL']: code_prefetch()
    def odd_prefetch():
        a(kvbase('s3') + '\ns_lshr_b32 s17, s2, 7\ns_lshl_b32 s17, s17, %d\ns_add_u32 s3, s3, s17\ns_lshl_b32 s3, s3, 4\ns_bfe_u32 s17, s2, 0x40003\ns_add_u32 s3, s3, s17\ns_mul_i32 s3, s3, %d\ns_add_u32 s3, s3, 1024' % (KL, 16 * 1152))
        a('v_mul_u32_u24 v7, 1152, v1\nv_add_u32 v7, s3, v7\ns_mov_b64 exec, 0xffff\nglobal_load_dword v37, v7, s[8:9]\ns_mov_b64 exec, -1')
    def tlb_touch():
        a('s_lshl_b32 s3, s2, 7\nv_lshlrev_b32 v7, 21, v0\nv_add_u32 v7, s3, v7\nv_add_u32 v8, 0x1f0000, v7')
        a('s_mov_b64 exec, 0x7f\nglobal_load_dword v32, v8, s[14:15]')
        if o['tlb'] in (1, 3):
            a('s_mov_b64 exec, 7\nglobal_load_dword v33, v7, s[8:9]')
            a('s_mov_b64 exec, 3\nglobal_load_dword v34, v7, s[4:5]\nglobal_load_dword v35, v7, s[6:7]')
        a('s_mov_b64 exec, 1\nglobal_load_dword v36, v7, s[10:11]\ns_mov_b64 exec, -1')
    if o['tlb'] in (1, 2): tlb_touch()
    hs = 's_load_dwordx16 s[84:99], s[12:13], 0%s\ns_load_dwordx16 s[28:43], s[12:13], 64%s'
    warm_run(-1)
    for c in range(10 + o['b8a'] + o['bs']):
        a('s_barrier')
        warm_run(c)
        if c == o['hsbar']: a('s_load_dword s84, s[12:13], 0' if o['hs2'] else hs % ('', ''))
        if c == o['oddpf']: odd_prefetch()
        if c == o['cpf2']: code_prefetch('L_pc2')
        if c == 0 and o['tlb'] == 3: tlb_touch()
        if c == 8 and o['tlb'] == 4: tlb_touch()
    if o['hs2']:
        a('s_waitcnt lgkmcnt(0)\ns_cmp_ge_u32 s84, 32\ns_cbranch_scc1 L_hsok\ns_mov_b32 s54, %d\nv_mov_b32 v12, 0' % SPIN)
        if 'C' in o['hack']: a('v_mov_b32 v20, 160\ns_mov_b64 exec, 1\nglobal_atomic_add v20, v29, s[12:13] sc1\ns_mov_b64 exec, -1')
        a('L_hs:\nglobal_load_dword v13, v12, s[12:13] sc1\ns_sub_u32 s54, s54, 1\ns_cbranch_scc1 L_hsok\ns_waitcnt vmcnt(0)\nv_cmp_gt_u32 vcc, 32, v13\ns_cbranch_vccnz L_hs\nL_hsok:')
    else:
        a('s_mov_b32 s54, %d\nL_hs:\ns_waitcnt lgkmcnt(0)' % SPIN)
        and16(84); and16(28); a('s_and_b32 s84, s84, s28')
        a('s_cbranch_scc1 L_hsok\ns_sub_u32 s54, s54, 1\ns_cbranch_scc1 L_hsok')
        if 'C' in o['hack']: a('v_mov_b32 v20, 160\ns_mov_b64 exec, 1\nglobal_atomic_add v20, v29, s[12:13] sc1\ns_mov_b64 exec, -1')
        a(hs % (' glc', ' glc')); a('s_branch L_hs\nL_hsok:')
    a('s_barrier')
    if o['oddpf'] == 11: odd_prefetch()
    if o['cpf2'] == 11: code_prefetch('L_pc2')
    a('L_help2:')
    run(xb('w0'))
    a('s_mul_i32 s17, s18, 3072')
    srd(SOUT, 10, 'out')
    a('s_lshl_b32 s3, s2, 9\ns_lshl_b32 s53, s18, 7\ns_add_u32 s62, s3, s53\ns_add_u32 s66, s14, s62\ns_addc_u32 s67, s15, 0')
    a('s_and_b32 s3, s2, 0xe7\ns_lshl_b32 s3, s3, 9\ns_add_u32 s53, s53, s3\n' + ('' if o['atom'] else 's_lshl_b32 s3, s22, 2\ns_add_u32 s53, s53, s3\n') + 'v_lshlrev_b32 v21, 12, v0')
    a('s_mul_i32 s55, s2, %d\ns_mul_i32 s56, s18, %d\ns_add_u32 s55, s55, s56\ns_add_u32 s55, s55, %d\ns_add_u32 s56, s55, 4096' % (o['MO'], o['MQ'], G_PM))
    a('s_lshl_b32 s59, s23, 1\ns_lshr_b32 s3, s21, 2\ns_add_u32 s59, s59, s3\ns_mul_i32 s59, s59, 3\ns_add_u32 s59, s59, s18\ns_mul_i32 s59, s59, %d' % (16 * 1152))
    a('s_lshl_b32 s3, s22, 8\ns_add_u32 s59, s59, s3\ns_and_b32 s3, s21, 3\ns_lshl_b32 s3, s3, 6\ns_add_u32 s59, s59, s3')
    def pfetch(d):
        a('s_add_u32 m0, s17, %d\ns_xor_b32 s58, s2, %d\ns_mul_i32 s58, s58, 9216\ns_add_u32 s58, s58, s17\ns_add_u32 s58, s58, %d' % (L_P + 9216 * (3 - d), d << 3, G_P))
        for j in range(3):
            if 'e' not in o['hack'] and 'x' not in o['hack']: a('buffer_load_dwordx4 v25, s[%d:%d], s58 offen offset:%d sc1 lds' % (SWS, SWS + 3, 1024 * j))
    xs = [x_ for x_ in XN[:-1] if x_[0] == 'w' and x_ != 'w0']
    k = 0
    while True:
        nm = xs[k]; k += 1
        run(xb(nm))
        if nm == o['ack']:
            if o['sat'] & 2:
                a('s_mov_b32 s40, 1')
                for d in (1, 2, 3): a('s_xor_b32 s3, s62, %d\ns_atomic_add s40, s[14:15], s3' % (d << 12))
            else:
                a('s_mov_b64 exec, 15' + ('\ns_bitset0_b64 exec, s22' if o['noself'] else '') + '\n' + FOP + ' v29, v21, s[%d:%d], s53 offen sc1\ns_mov_b64 exec, -1' % (SWS, SWS + 3))
            stH('P flag sent')
        if o['ownp'] and not o['pds'] and nm == o['ownat']: pfetch(0)
        if o['sent'] and nm == o['clr']: clears()
        if nm == o['poll0']: break
    assert xs.index(o['ack']) < k and (o['vf'] == 1 or ALLN.index(xs[k]) >= ALLN.index('w5' if o['vf'] else 'w4')) and k < len(xs) - 1
    a('s_mov_b32 s54, %d\ns_mov_b32 s52, %d' % (SPIN, len(xs) - 1 - k))
    a('L_pp:\n' + ('s_load_dword s84' if o['atom'] else 's_load_dwordx4 s[84:87]') + ', s[66:67], 0 glc')
    a('s_cmp_eq_u32 s52, 0\ns_cbranch_scc1 L_pp1\ns_barrier\ns_sub_u32 s52, s52, 1\nL_pp1:')
    a('s_sub_u32 s54, s54, 1\ns_cbranch_scc1 L_ppok\ns_waitcnt lgkmcnt(0)')
    a(('' if o['atom'] else 's_add_u32 s84, s84, s85\ns_add_u32 s86, s86, s87\ns_add_u32 s84, s84, s86\n') + 's_cmp_%s_u32 s84, %d\ns_cbranch_scc0 L_pp\nL_ppok:' % ('le' if 'a' in o['hack'] else 'ge', 4 - o['noself']))
    stH('P flags ok')
    if 'S' in o['hack']:
        a('s_mul_i32 s19, s18, %d\nL_sg:\ns_cmp_eq_u32 s19, 0\ns_cbranch_scc1 L_sgd\ns_cmp_eq_u32 s52, 0\ns_cbranch_scc1 L_sgd\ns_barrier\ns_sub_u32 s52, s52, 1\ns_sub_u32 s19, s19, 1\ns_branch L_sg\nL_sgd:' % o.get('sk', 1))
    for d in range(o['ownp'], 4): pfetch(d)
    if o['sent'] and o['clr'] == 'p': clears()
    a('L_pb:\ns_cmp_eq_u32 s52, 0\ns_cbranch_scc1 L_pbd\ns_barrier\ns_sub_u32 s52, s52, 1\ns_branch L_pb\nL_pbd:')
    if 'S' in o['hack']: a('s_cmp_lg_u32 s18, 0\ns_cbranch_scc1 L_now')
    a('s_waitcnt vmcnt(%d)' % (2 if o['sent'] and o['clr'] == 'p' else 0))
    if 'S' in o['hack']: a('L_now:')
    stH('P landed')
    a('s_barrier')
    if o['sent'] and o['clr'] == 'w7' and 'Z' not in o['hack']: clears()
    a('s_waitcnt vmcnt(0)\ns_barrier')
    if 'f' in o['hack']: a('s_endpgm')
    a('s_mov_b32 s54, %d' % SPIN)
    a('s_lshl_b32 s3, s18, 10\ns_add_u32 s3, s3, %d\nv_add_u32 v27, s3, v25' % L_F)
    if o['shc'] & 1: a('s_andn2_b32 s62, s62, 512\ns_add_u32 s66, s14, s62\ns_addc_u32 s67, s15, 0')
    reduce('mp', 8, 4, MOFF, 25, 's59', stH)
    if stamps:
        a('s_waitcnt vmcnt(0)'); stH('end'); stH.flush(7)
    a('L_end:\ns_endpgm\nL_codeend:')
    a(kernel_desc(KN, 256, 256, o.get('nsgpr', 102)))
    if o['warm']:
        def size(l):
            t = l.split(';')[0].strip()
            if not t or t.endswith(':') or t.startswith('.'): return 0
            return 8 if t.startswith(('v_mfma', 'ds_', 'buffer_', 'global_', 'v_cvt_pk', 'v_pk_', 'v_max3', 's_load')) else 4.6
        out = []; on = False; acc = 0; pads = []
        for l in a.lines:
            if l == ';WARM_ON': on = True; acc = 1e9; continue
            if l == ';WARM_OFF': on = False; continue
            if on and acc >= o['wstep'] and size(l) and not l.startswith(('ds_write', 's_mov_b64 exec', 'buffer_atomic', 's_cbranch', 's_cselect', 's_addc')):
                pads.append(len(out)); out.append(None); acc = 4
            out.append(l); acc += size(l)
        n = len(pads); NC = len(o['wat']); per = -(-n // NC)
        order = list(range(n - 1, -1, -1))
        for j, k in enumerate(order):
            last = (j + 1) % per == 0 or j + 1 == n
            out[pads[k]] = 'L_wp%d:\ns_cbranch_execz %s' % (k, 'L_wret%d' % (j // per) if last else 'L_wp%d' % order[j + 1])
        txt = '\n'.join(out)
        for c_ in range(NC): txt = txt.replace('L_wchain%d' % c_, 'L_wp%d' % order[c_ * per] if c_ * per < n else 'L_wret%d' % c_)
        a.lines = txt.split('\n')
    else: a.lines = [l for l in a.lines if not l.startswith(';WARM')]
    a.lines = hazard.pad(a.lines, False)
    return a.text()
if __name__ == '__main__':
    import json
    name = sys.argv[1] if len(sys.argv) > 1 else 'p8_v11'
    opt = json.loads(sys.argv[2]) if len(sys.argv) > 2 else None
    open(name + '.s', 'w').write(gen(0, opt))
    open(name + '_st.s', 'w').write(gen(1, opt))
    open(name + '_st2.s', 'w').write(gen(2, opt))
    open(name + '_st3.s', 'w').write(gen(3, opt))
    open(name + '_st4.s', 'w').write(gen(4, opt))
```

```python
import sys, math, struct
from asmlib import *
import hazard
from gen_f16 import Cnt, interleave, f2i, v

L_W = 0; L_X0 = 49152; XOFF = [0, 12288, 49152]; L_K = 73728; L_Q = 49152; L_P = 73728; L_F = 159744; L_V = 110592
G_FL = 0x0
G_P = 0x40000
G_PM = 0x400000
G_PO = 0xD00000
SX, SWQ, SK, SV, SWO, SWS, SOUT = 24, 28, 32, 36, 40, 44, 48
SPIN = 1 << 16
MF = 'v_mfma_f32_16x16x32_bf16 %s, %s, %s, %s'

HEADER = """; Kernarg layout (64 bytes, pointers only, base s[0:1]):
;
; Hand-offs: data is stored write-through (sc1); after the stores are acknowledged the producer bumps a counter of the consumer
;   (device-scope atomic); the consumer polls it and then loads with sc1.  Counters are zeroed inside the launch by workgroups 0..31,
;   which report through a counter in debug.  The last, small hand-off is signalled before the acknowledgement: its slots are first filled with
;   a NaN marker in this launch, and a consumer that still sees a NaN waits for the acknowledged counter and reads again.
;   Nothing depends on workgroup placement except speed; every poll loop is bounded.
;            | 110592 V (4x12K) | 159744 own partial chunks.  Tiles are XOR-swizzled on the global side of the DMA."""

def gen(stamps=0, opt=None):
    o = dict(order='qqqKqqqqqq', win=24, codepf=True, rot='g3', pk=True, lprio=0, afterB8=1, afterBQ=4, ack='w1', poll0='w3', cprio=0, prog=False, x4=True, xo=14, ef=2, xe='', sent=1, clr='w7', e2=0, nt={}, split=1, uprio=0, early_flag=True, outsc='sc1', oddsc=None, btr=0, opre=0, o64=1, ack1=1, vdry=0, sub='', hoist=1, pre=0, lead=12, mimic=0, hs2=1, fo2=1, asap=7, repn=['op', 'mp'], ownlast=0, ocl=1, shc=1, ox4=1, ldr=[-1, -1], guard=[60, 44], leadk=1, lead0=2, vseg=['w2', 'w5'], first_half=False, hsbar=8, poll='s', psleep=0, tlb=0, remap=0, oddpf=8, rot2=1, lateat=3, own=1, ownx=1, tramp=[11], far=0, alt=3, klate=1, pds=1, own3=1, bs=0, vf=0, sat=0, dry=1, dryat=[-1, 0], cpf2=-9, qseq='', f0at='O', MQ=7168, MO=21504, OT=8192, kvmap=9, bm=0, cpfL=1, acc=1, warm=0, wstep=960, wat=[-1, 0, 1], padL=0, padC=0, padH=0, b8a=0, tm=1, q64=2, stlb=0, hack='', atom=1, rep=1, wsw=1, ownp=1, atune=0, oe=0, hsbar_=0, ownat='w3', e0=8, e1='end', m0o=1, rsl=6, qs=5, fine0=1, wqfirst=0, skip=['w0'], noself=1)
    if opt: o.update(opt)
    if stamps in (2, 3): o['pre'] = 0
    if o['klate']: o['order'] = 'q' * 9; o['q64'] = 3; o.setdefault('pre8', ['k0'] if 'plan' in o else ['k0', 'v0'])
    a = Asm()
    a(HEADER)
    a('; @launch grid=(256,1,1) block=(512,1,1) lds=163840')
    a(HEAD); a(kernel_begin(KN))
    def run(seq):
        for x in seq:
            if callable(x): x()
            else: a(x)
    class St:
        def __init__(s, base, n, r0): s.base = base; s.n = n; s.k = 0; s.r0 = r0
        def __call__(s, name='x', lvl=1):
            if ((stamps >= lvl and lvl < 2) or stamps == lvl) and (stamps != 5 or name in ('start', 'final end')):
                assert s.k < s.n, name
                a('; stamp %d %s' % (s.base + s.k, name))
                a('s_memrealtime s[%d:%d]' % (s.r0 + 2 * s.k, s.r0 + 1 + 2 * s.k)); s.k += 1
        def flush(s, wave):
            if stamps and s.k:
                l_ = a.label('L_nst')
                a('s_cmp_lg_u32 s20, %d\ns_cbranch_scc1 %s' % (wave, l_))
                a('s_waitcnt lgkmcnt(0)\nv_mov_b32 v31, 0\ns_lshl_b32 s3, s2, 9\ns_add_u32 s3, s3, %d' % (STAMP_OFF + 8 * s.base))
                for i in range(s.k):
                    a('v_mov_b32 v254, s%d\nv_mov_b32 v255, s%d' % (s.r0 + 2 * i, s.r0 + 1 + 2 * i))
                    a('buffer_store_dwordx2 v[254:255], v31, s[%d:%d], s3 offen offset:%d' % (SWS, SWS + 3, 8 * i))
                a(l_ + ':')
    stC = St(0, 21, 60); stL = St(24, 17, 68); stH = St(44, 6, 32)
    W0 = 's_waitcnt lgkmcnt(0)'
    def XS(c): return [0, 12288, 49152, 24576][(c + 2) % 4] if o['lead'] else XOFF[c % 3]
    KL = o['kvmap'] - 9; KJ = 1 << KL
    def kvbase(dst):
        src = 's21'
        if KL == 0: return 's_lshl_b32 %s, s21, 1' % dst
        if KL == 3: return 's_mov_b32 %s, s21' % dst
        return 's_and_b32 %s, s21, %d\ns_add_u32 %s, %s, s21' % (dst, 7 & ~(KJ - 1), dst, dst)
    def PC(p): return (p & 4) | ((p & 1) << 1) | ((p >> 1) & 1) if o['alt'] else p
    FOP = 'buffer_atomic_add' if o['atom'] else 'buffer_store_dword'
    MOFF = (4 if o['rep'] > 1 else 64) if o['atom'] else 32
    OOFF = 4 if o['rep'] > 1 else 0
    assert o['rep'] in (1, 2) and (o['atom'] or o['rep'] == 1)
    stC('start')
    a('s_cmp_ge_u32 s2, 256\ns_cbranch_scc1 L_end')
    a('s_load_dwordx2 s[%d:%d], s[0:1], %d' % (SX, SX + 1, SLOT['x']))
    a('s_load_dwordx2 s[%d:%d], s[0:1], %d' % (SWQ, SWQ + 1, SLOT['wq']))
    a('s_load_dwordx4 s[4:7], s[0:1], %d' % SLOT['k'])
    a('s_load_dwordx8 s[8:15], s[0:1], %d' % SLOT['wo'])
    if o['remap'] == 1: a('s_lshr_b32 s3, s2, 2\ns_and_b32 s3, s3, 0x18\ns_xor_b32 s2, s2, s3')
    if o['remap'] == 2: a('s_lshr_b32 s3, s2, 3\ns_and_b32 s3, s3, 0x18\ns_lshl_b32 s21, s2, 2\ns_and_b32 s21, s21, 0xe0\ns_and_b32 s2, s2, 7\ns_or_b32 s2, s2, s3\ns_or_b32 s2, s2, s21')
    if o['remap'] == 3: a('s_xor_b32 s2, s2, 0x18')
    if o['remap'] == 4: a('s_bfe_u32 s3, s2, 0x10002\ns_and_b32 s21, s2, 3\ns_lshl1_add_u32 s3, s21, s3\ns_and_b32 s2, s2, 0xf8\ns_or_b32 s2, s2, s3')
    if o['remap'] == 5: a('s_xor_b32 s2, s2, 1')
    a('v_lshrrev_b32 v1, 6, v0\nv_and_b32 v0, 63, v0\nv_readfirstlane_b32 s20, v1')
    if o['wsw']: a('s_xor_b32 s20, s20, 4')
    a('s_and_b32 s21, s2, 7\ns_bfe_u32 s22, s2, 0x20003\ns_lshr_b32 s23, s2, 5')
    a('v_and_b32 v1, 15, v0\nv_lshrrev_b32 v2, 4, v0')
    def srd(r, src, n):
        if src is not None: a('s_mov_b32 s%d, s%d\ns_mov_b32 s%d, s%d' % (r, src, r + 1, src + 1))
        a('s_mov_b32 s%d, %d\ns_mov_b32 s%d, 0x20000' % (r + 2, SIZES[n], r + 3))
    H0 = 's_and_b32 s16, s22, 2\ns_add_u32 s16, s16, s22\ns_xor_b32 s16, s16, s23'
    if o['rot2'] == 1: H0 = 's_and_b32 s16, s22, 2\ns_xor_b32 s16, s16, s23\ns_and_b32 s16, s16, 3\ns_lshl_b32 s16, s16, 1'
    if o['rot2'] == 2: H0 = 's_and_b32 s16, s22, 2\ns_lshl_b32 s16, s16, 1\ns_xor_b32 s16, s16, s23'
    if o['rot2'] == 3: H0 = 's_and_b32 s16, s23, 3\ns_lshl_b32 s16, s16, 1\ns_and_b32 s3, s22, 2\ns_add_u32 s3, s3, s22\ns_xor_b32 s16, s16, s3'
    if o['rot2'] == 4: H0 = 's_lshr_b32 s16, s22, 1\ns_xor_b32 s16, s16, s23\ns_and_b32 s16, s16, 1\ns_lshl_b32 s16, s16, 2'
    if o['alt'] == 1: H0 = 's_xor_b32 s16, s22, s23\ns_and_b32 s3, s16, 2\ns_and_b32 s16, s16, 3\ns_add_u32 s16, s16, s3'
    if o['alt'] == 2: H0 = 's_and_b32 s16, s22, 2\ns_xor_b32 s16, s16, s23\ns_and_b32 s3, s16, 2\ns_and_b32 s16, s16, 3\ns_add_u32 s16, s16, s3'
    if o['alt'] == 3: H0 = 's_and_b32 s16, s22, 1\ns_xor_b32 s16, s16, s23\ns_and_b32 s16, s16, 3'
    if o['alt'] == 4: H0 = 's_and_b32 s16, s22, 1\ns_xor_b32 s16, s16, s23\ns_and_b32 s16, s16, 3\ns_and_b32 s3, s22, 2\ns_lshl1_add_u32 s16, s3, s16'
    for i_ in range(len(o['tramp'])): a('s_cmp_eq_u32 s20, %d\ns_cbranch_scc1 L_tr%d' % (i_, i_))
    a('s_cmp_lt_u32 s20, 4\ns_cbranch_scc1 L_comp')
    a('s_cmp_gt_u32 s20, 4\ns_cbranch_scc1 L_help')
    def gpoll(name, nw, off, single=False):
        sl = ('s_sleep %d\n' % o['psleep']) if o['psleep'] else ''
        if name == 'op' and o['ocl'] > 1:
            ls = [0, 3] if o['ocl'] == 2 else [0, 1, 2, 3]
            a('L_op:')
            for i, l_ in enumerate(ls): a('s_load_dword s%d, s[66:67], %d glc' % (84 + i, 128 * l_ + 8))
            a('s_sub_u32 s54, s54, 1\ns_cbranch_scc1 L_opok\ns_waitcnt lgkmcnt(0)')
            for i in range(1, len(ls)): a('s_add_u32 s84, s84, s%d' % (84 + i))
            a('s_cmp_lt_u32 s84, 32\ns_cbranch_scc1 L_op\nL_opok:')
        elif o['rep'] == 2 and not single and name in o['repn']:
            a(W0 + '\ns_mov_b64 s[84:85], 0\ns_load_dword s85, s[66:67], %d glc\ns_sleep %d' % (off + 64, o['rsl']))
            a('L_%s:' % name)
            for r_ in range(2):
                a('s_load_dword s%d, s[66:67], %d glc\ns_waitcnt lgkmcnt(1)\ns_max_u32 s30, s84, s85\ns_cmp_ge_u32 s30, %d\ns_cbranch_scc1 L_%sok' % (84 + r_, off + 64 * r_, nw, name))
            a('s_sub_u32 s54, s54, 1\ns_cbranch_scc0 L_%s\nL_%sok:' % (name, name))
        elif o['atom']:
            a('L_%s:\n%ss_load_dword s84, s[66:67], %d glc\ns_sub_u32 s54, s54, 1\ns_cbranch_scc1 L_%sok\ns_waitcnt lgkmcnt(0)' % (name, sl, off, name))
            a('s_cmp_lt_u32 s84, %d\ns_cbranch_scc1 L_%s\nL_%sok:' % (nw, name, name))
        elif o['poll'] == 'p':
            a(W0)
            for i in range(0, nw, 2): a('s_mov_b64 s[%d:%d], 0' % (84 + i, 85 + i))
            a('L_%s:\ns_load_dwordx%d s[84:%d], s[66:67], %d glc\n%ss_sub_u32 s54, s54, 1\ns_cbranch_scc1 L_%sok' % (name, nw, 83 + nw, off, sl, name))
            a('s_and_b64 s[30:31], s[84:85], s[86:87]')
            for i in range(4, nw, 2): a('s_and_b64 s[30:31], s[30:31], s[%d:%d]' % (84 + i, 85 + i))
            a('s_and_b32 s30, s30, s31\ns_cbranch_scc0 L_%s\nL_%sok:' % (name, name))
        elif o['poll'] == 's':
            a('L_%s:\n%ss_load_dwordx%d s[84:%d], s[66:67], %d glc\ns_sub_u32 s54, s54, 1\ns_cbranch_scc1 L_%sok\ns_waitcnt lgkmcnt(0)' % (name, sl, nw, 83 + nw, off, name))
            k = nw
            while k > 2:
                k //= 2
                for i in range(0, k, 2): a('s_and_b64 s[%d:%d], s[%d:%d], s[%d:%d]' % (84 + i, 85 + i, 84 + i, 85 + i, 84 + k + i, 85 + k + i))
            a('s_and_b32 s84, s84, s85\ns_cbranch_scc0 L_%s\nL_%sok:' % (name, name))
        else:
            a('v_and_b32 v19, %d, v0\nv_lshlrev_b32 v19, 2, v19' % (nw - 1))
            a('L_%s:\n%sbuffer_load_dword v18, v19, s[%d:%d], s62 offen offset:%d sc1\ns_sub_u32 s54, s54, 1\ns_cbranch_scc1 L_%sok\ns_waitcnt vmcnt(0)' % (name, sl, SWS, SWS + 3, off, name))
            a('v_cmp_ne_u32 vcc, 1, v18\ns_cbranch_vccnz L_%s\nL_%sok:' % (name, name))
    def code_prefetch(lab='L_pc'):
        if o['codepf']:
            a('s_getpc_b64 s[66:67]\n%s:\ns_sub_u32 s66, s66, %s-%s\ns_subb_u32 s67, s67, 0' % (lab, lab, KN))
            a('s_lshr_b32 s3, s2, 3\ns_lshl_b32 s3, s3, 7\nv_lshlrev_b32 v100, 12, v0\nv_add_u32 v100, s3, v100')
            a('v_mov_b32 v103, s67\nv_add_co_u32 v102, vcc, s66, v100\nv_addc_co_u32 v103, vcc, 0, v103, vcc')
            a('v_cmp_gt_u32 vcc, L_codeend-%s, v100\ns_and_saveexec_b64 s[64:65], vcc' % KN)
            a('global_load_dword v101, v[102:103], off')
            a('s_mov_b64 exec, s[64:65]')
    def clears(all12=False, va=4, vd=12):
        a('s_lshl_b32 s3, s23, 1\ns_and_b32 s58, s22, 1\ns_add_u32 s3, s3, s58\ns_mul_i32 s3, s3, 3\n' + ('' if all12 else 's_add_u32 s3, s3, s18\n') + 's_mul_i32 s58, s3, %d' % (4 * o['OT']))
        a('s_lshl_b32 s3, s21, 1\ns_lshr_b32 s59, s22, 1\ns_add_u32 s3, s3, s59\ns_lshl_b32 s3, s3, 9\ns_add_u32 s58, s58, s3\ns_add_u32 s58, s58, %d' % G_PO) if all12 else \
        a('s_lshl_b32 s3, s21, 1\ns_lshr_b32 s57, s22, 1\ns_add_u32 s3, s3, s57\ns_lshl_b32 s3, s3, 9\ns_add_u32 s58, s58, s3\ns_add_u32 s58, s58, %d' % G_PO)
        a('v_and_b32 v%d, 31, v0\nv_lshrrev_b32 v%d, 5, v0\nv_mul_u32_u24 v%d, %d, v%d\nv_lshl_add_u32 v%d, v%d, 4, v%d' % (va, va + 1, va + 1, o['OT'], va + 1, va, va, va + 1))
        if 'Y' in o['hack']: a('s_cmp_ge_u32 s21, 4\ns_cselect_b32 s58, 0x7ff00000, s58')
        for i in range(4): a('v_mov_b32 v%d, -1' % (vd + i))
        for i in range(6 if all12 else 2):
            if i: a('s_add_u32 s58, s58, %d' % (2 * o['OT']))
            a('buffer_store_dwordx4 v[%d:%d], v%d, s[%d:%d], s58 offen sc1' % (vd, vd + 3, va, SWS, SWS + 3))
            if all12: vm.issue('clr')
    a('; ==== loader: pulls its share of this code into L2, streams 9 chunks of x | wq (rotated start), then K, V parts and wo pieces')
    vm = Cnt(a, 'vmcnt', 63)
    XV, WV, OV, KV, DV, VV = 8, 12, 16, 20, 24, 28
    if o['lprio']: a('s_setprio %d' % o['lprio'])
    if o['cpfL']: code_prefetch()
    srd(SX, None, 'x'); srd(SWQ, None, 'wq')
    a('v_lshrrev_b32 v3, 3, v0\nv_and_b32 v4, 7, v0')
    def quad(base, step):
        a('v_xor_b32 v7, 64, v%d\nv_add_u32 v%d, %d, v7' % (base, base + 1, step))
        a('v_add_u32 v%d, %d, v%d\nv_add_u32 v%d, %d, v%d' % (base + 2, 2 * step, base, base + 3, 2 * step, base + 1))
    a('v_mul_u32_u24 v5, 1152, v3\nv_xor_b32 v32, v4, v2\nv_lshl_add_u32 v%d, v32, 4, v5' % XV)
    quad(XV, 8 * 1152 - 1024)
    a('v_lshlrev_b32 v6, 1, v2\nv_xor_b32 v6, v6, v1\nv_lshlrev_b32 v6, 4, v6')
    a('v_lshl_add_u32 v%d, v2, 13, v6' % WV)
    a('v_add_u32 v%d, %d, v%d' % (WV + 1, 4 * 8192 - 1024, WV))
    a('v_xor_b32 v7, 128, v%d\nv_add_u32 v%d, %d, v7\nv_add_u32 v%d, %d, v7' % (WV, WV + 2, 2 * (4 * 8192 - 1024), WV + 3, 3 * (4 * 8192 - 1024)))
    if o['rot'] == 'g3':
        a('s_add_u32 s17, s22, s23\ns_mul_i32 s3, s17, 43\ns_lshr_b32 s3, s3, 7\ns_mul_i32 s3, s3, 3\ns_sub_u32 s17, s17, s3\ns_mul_i32 s17, s17, 3')
    elif o['rot'] in ('g3x', 'g3y', 'g3b'):
        a('s_add_u32 s17, s22, s23\ns_mul_i32 s3, s17, 43\ns_lshr_b32 s3, s3, 7\ns_mul_i32 s3, s3, 3\ns_sub_u32 s17, s17, s3\ns_mul_i32 s17, s17, 3')
        if o['rot'] == 'g3x': a('s_add_u32 s17, s17, s21')
        else: a('s_lshr_b32 s3, s21, %d\ns_add_u32 s17, s17, s3' % (2 if o['rot'] == 'g3y' else 1))
        a('s_cmp_ge_u32 s17, 9\ns_cselect_b32 s3, 9, 0\ns_sub_u32 s17, s17, s3')
    elif o['rot'] == 'g4':
        a('s_add_u32 s17, s22, s23\ns_and_b32 s17, s17, 3\ns_mul_i32 s17, s17, 9\ns_lshr_b32 s17, s17, 2')
    elif o['rot'] == 'g2':
        a('s_add_u32 s17, s22, s23\ns_and_b32 s17, s17, 1\ns_mul_i32 s17, s17, 5')
    elif o['rot'] == 'g9':
        a('s_lshl_b32 s17, s22, 1\ns_add_u32 s17, s17, s23\ns_cmp_ge_u32 s17, 9\ns_cselect_b32 s3, 9, 0\ns_sub_u32 s17, s17, s3')
    else: a('s_mov_b32 s17, 0')
    a('s_mul_i32 s52, s23, 110592')
    if 'm' in o['hack']: a('s_lshl_b32 s53, s21, 9\ns_and_b32 s3, s22, 2\ns_lshl_b32 s3, s3, 11\ns_add_u32 s53, s53, s3\ns_and_b32 s3, s22, 1\ns_lshl_b32 s3, s3, 8\ns_add_u32 s53, s53, s3')
    elif 'n' in o['hack']: a('s_lshl_b32 s53, s21, 8\ns_lshl_b32 s3, s22, 11\ns_add_u32 s53, s53, s3')
    elif 'p' in o['hack']: a('s_lshl_b32 s53, s21, 10\ns_xor_b32 s3, s22, 3\ns_lshl_b32 s3, s3, 8\ns_add_u32 s53, s53, s3')
    elif KL: a(kvbase('s53') + '\ns_lshl_b32 s53, s53, 9\ns_lshr_b32 s3, s22, 1\ns_lshl_b32 s3, s3, %d\ns_add_u32 s53, s53, s3\ns_and_b32 s3, s22, 1\ns_lshl_b32 s3, s3, 8\ns_add_u32 s53, s53, s3' % o['kvmap'])
    else: a('s_lshl_b32 s53, s21, 10\ns_lshl_b32 s3, s22, 8\ns_add_u32 s53, s53, s3')
    a('s_waitcnt lgkmcnt(0)')
    stL('L kernarg')
    if o['stlb'] >= 1:
        a('s_lshl_b32 s57, s17, 19\ns_add_u32 s57, s57, s53\ns_load_dword s58, s[%d:%d], s57' % (SWQ, SWQ + 1))
    if o['stlb'] >= 2:
        a('s_mov_b32 s57, 0x200000\ns_mov_b32 s59, 0x400000')
        for base in (SWQ, 8, 4, 6): a('s_load_dword s58, s[%d:%d], 0\ns_load_dword s58, s[%d:%d], s57' % (base, base + 1, base, base + 1))
        for base in (SWQ, 8): a('s_load_dword s58, s[%d:%d], s59' % (base, base + 1))
    ndma = [0]
    def group(vreg, n, srd_, lds, tag, adv=None, dyn=None, so='s57'):
        seq = [('s_add_u32 m0, %s, %d' % (dyn, lds) if dyn else 's_mov_b32 m0, %d' % lds) + ('\ns_add_u32 s57, s57, %s' % adv if adv else '')]
        for j in range(n):
            def f(j=j):
                ndma[0] += 1
                if ndma[0] - 1 in o['tramp']:
                    i_ = o['tramp'].index(ndma[0] - 1)
                    a('; compute wave 0 passes through here on its way to L_comp, which fetches the loader code that follows early\ns_branch L_ov%d\nL_tr%d:\ns_branch L_comp\nL_ov%d:' % (i_, i_, i_))
                if len(vm.seq) >= o['guard'][0]:
                    a('s_waitcnt vmcnt(%d)' % o['guard'][1]); vm.seq = vm.seq[-o['guard'][1]:]
                a('buffer_load_dwordx4 v%d, s[%d:%d], %s offen offset:%d %s lds' % (vreg + j, srd_, srd_ + 3, so, 1024 * j, o['nt'].get({SX: 'x', SWQ: 'q', SK: 'k', SV: 'v', SWO: 'o'}[srd_] + tag[-1], o['nt'].get({SX: 'x', SWQ: 'q', SK: 'k', SV: 'v', SWO: 'o'}[srd_], '')))); vm.issue(tag)
            seq.append(f)
        return seq
    def g8(vreg, n, sb, lds, tag):
        seq = []
        for j in range(n):
            if j % 8 == 0: seq.append('s_mov_b32 m0, %d' % (lds + 1024 * j + 4096))
            def f(j=j):
                if len(vm.seq) >= o['guard'][0]:
                    a('s_waitcnt vmcnt(%d)' % o['guard'][1]); vm.seq = vm.seq[-o['guard'][1]:]
                a('global_load_lds_dwordx4 v%d, s[%d:%d] offset:%d' % (vreg + j, sb, sb + 1, 1024 * (j % 8) - 4096)); vm.issue(tag)
            seq.append(f)
        return seq
    subs = {}
    def call(name, groups, tag, setup):
        if name not in subs:
            t_ = ['L_sub_%s:' % name]
            for vreg, n, srd_, mb, mi, so, adv in groups:
                t_.append('s_add_u32 m0, %s, %d' % (mb, mi))
                if adv: t_.append('s_add_u32 %s, %s, %d' % (so, so, adv))
                for j in range(n): t_.append('buffer_load_dwordx4 v%d, s[%d:%d], %s offen offset:%d lds' % (vreg + j, srd_, srd_ + 3, so, 1024 * j))
            t_.append('s_setpc_b64 s[18:19]')
            subs[name] = '\n'.join(t_)
        n_ = sum(g_[1] for g_ in groups)
        def f():
            if len(vm.seq) + n_ > 62:
                a('s_waitcnt vmcnt(%d)' % (62 - n_)); vm.seq = vm.seq[-(62 - n_):]
            a('s_call_b64 s[18:19], L_sub_%s' % name)
            for _ in range(n_): vm.issue(tag)
        return [setup, f]
    def item_q(c):
        st = c % 3; tag = 'n%d' % c
        m0o = o['m0o'] and c >= o['lateat']
        sx = ['s_lshl_b32 s57, s17, 7\ns_add_u32 s57, s57, s52']
        for t in range(3): sx += group(40 + 4 * t if m0o and t else XV, 4, SX, L_X0 + XS(c) + 4096 * t, tag, 32 * 1152 if t and not m0o else None)
        sw = ['s_lshl_b32 s57, s17, 19\ns_add_u32 s57, s57, s53']
        for t in range(4): sw += group(52 + 4 * t if m0o and t else WV, 4, SWQ, L_W + 16384 * st + 4096 * t, tag + ('b' if c == 8 and t >= 2 and o['b8a'] else ''), 16 * 8192 if t and not m0o else None)
        seq = sw + sx if o['wqfirst'] else sx + sw
        if o['hoist'] >= 2 and m0o:
            seq = ['s_lshl_b32 s58, s17, 19\ns_add_u32 s58, s58, s53'] + sx
            for t in range(4): seq += group(52 + 4 * t if t else WV, 4, SWQ, L_W + 16384 * st + 4096 * t, tag, None, None, 's58')
        if o['pre'] == 1 and m0o:
            seq = []
            for t in range(3): seq += group(40 + 4 * t if t else XV, 4, SX, L_X0 + XS(c) + 4096 * t, tag, None, None, 's%d' % (72 + 2 * c))
            for t in range(4): seq += group(52 + 4 * t if t else WV, 4, SWQ, L_W + 16384 * st + 4096 * t, tag, None, None, 's%d' % (73 + 2 * c))
            return seq
        if o['pre'] == 2 and m0o:
            return g8(110, 12, 64 + 4 * c, L_X0 + XS(c), tag) + g8(122, 16, 66 + 4 * c, L_W + 16384 * st, tag)
        if 'q' in o['sub'] and m0o:
            seq = call('q', [(40 + 4 * t if t else XV, 4, SX, 's55', 4096 * t, 's57', 0) for t in range(3)] + [(52 + 4 * t if t else WV, 4, SWQ, 's56', 4096 * t, 's58', 0) for t in range(4)], tag,
                       's_lshl_b32 s57, s17, 7\ns_add_u32 s57, s57, s52\ns_lshl_b32 s58, s17, 19\ns_add_u32 s58, s58, s53\ns_mov_b32 s55, %d\ns_mov_b32 s56, %d' % (L_X0 + XS(c), L_W + 16384 * st))
        if o['qseq']:
            if c == 0: seq += ['s_mov_b32 s63, s17\ns_add_u32 s64, s17, 3\ns_cmp_eq_u32 s64, 9\ns_cselect_b32 s64, 0, s64\ns_add_u32 s65, s64, 3\ns_cmp_eq_u32 s65, 9\ns_cselect_b32 s65, 0, s65']
            if c < 8: seq += ['s_add_u32 s17, s%d, %s' % (63 + o['qseq'][:c + 1].count(o['qseq'][c + 1]), o['qseq'][c + 1])]
            assert o['qseq'][0] == '0' and sorted(o['qseq']) == sorted('012' * 3)
        else: seq += ['s_add_u32 s17, s17, 1\ns_cmp_eq_u32 s17, 9\ns_cselect_b32 s17, 0, s17']
        return seq
    def item_k():
        seq = ['s_lshr_b32 s3, s22, 1\n' + ('s_lshl_b32 s3, s3, %d\n' % KL if KL else '') + 's_add_u32 s57, s54, s3\ns_mul_i32 s57, s57, 12288']
        for t in range(6): seq += group(KV, 4, SK, L_K + 4096 * t, 'k0', None if t == 0 else (4096 if t != 3 else 16 * 12288 - 8192))
        return seq
    WSLOT = {'w0': 0, 'w1': 1, 'w2': 2, 'w3': 4.5, 'w4': 3, 'w5': 0, 'w6': 1, 'w7': 2, 'o0': 3, 'o1': 0}
    assert L_P == 4.5 * 16384
    SP2 = 3; BASE2 = L_P
    if o['vf']:
        WSLOT = {'w0': 9, 'w1': 0, 'w2': 1, 'w3': 2, 'w4': 3, 'w5': 0, 'w6': 1, 'w7': 2, 'o0': 3, 'o1': 0}
        SP2 = 0; BASE2 = L_V + 36864; assert BASE2 == 9 * 16384
        if o['vf'] == 2: WSLOT.update({'w4': 4.5, 'w5': 3, 'w6': 0, 'w7': 1, 'o0': 2, 'o1': 3})
    NEED = {'w3': 1, 'w4': 2, 'w5': 3, 'w6': 5, 'w7': 6}
    L_O1 = L_P
    STAGES = ['w0', 'w1', 'o0', 'o1', 'w2', 'w3', 'w4', 'w5', 'w6', 'w7']
    def item_v(vp):
        seq = ['s_lshr_b32 s3, s16, 2\ns_xor_b32 s3, s3, %d\n' % (vp >> 1) + ('s_lshl_b32 s3, s3, %d\n' % KL if KL else '') + 's_add_u32 s57, ' + ('s63' if 'd' in o['hack'] else 's54') + ', s3\ns_mul_i32 s57, s57, 12288\ns_xor_b32 s3, s16, %d\ns_and_b32 s3, s3, 1\ns_lshl_b32 s3, s3, 7\ns_add_u32 s57, s57, s3' % (vp & 1)]
        for b in range(2):
            seq += group(VV, 4, SV, L_V + 12288 * vp + 6144 * b, 'v%d' % vp, 16 * 12288 - 8192 if b else None)
            seq += group(VV, 2, SV, L_V + 12288 * vp + 6144 * b + 4096, 'v%d' % vp, 8192)
        if 'v' in o['sub']:
            seq = call('v', [(VV, 4, SV, 's55', 0, 's57', 0), (VV, 2, SV, 's55', 4096, 's57', 8192), (VV, 4, SV, 's55', 6144, 's57', 16 * 12288 - 8192), (VV, 2, SV, 's55', 10240, 's57', 8192)], 'v%d' % vp,
                       seq[0] + '\ns_mov_b32 s55, %d' % (L_V + 12288 * vp))
        return seq
    def item_w(p):
        lds = int(L_W + 16384 * WSLOT['w%d' % p])
        seq = ['s_xor_b32 s3, s16, %d\n' % PC(p) + ('s_and_b32 s57, s3, 4\ns_mul_i32 s57, s57, %d\ns_add_u32 s3, s3, s57\n' % (KJ - 1) if KL else '') + 's_mul_i32 s57, s3, %d\ns_add_u32 s57, s57, s60' % (64 * 1152)]
        for t in range(4): seq += group(68 + 4 * t if o['m0o'] and t else OV, 4, SWO, lds + 4096 * t, 'w%d' % p, 16 * 1152 if t and not o['m0o'] else None)
        if 'w' in o['sub']:
            assert o['m0o']
            seq = call('w', [(68 + 4 * t if t else OV, 4, SWO, 's55', 4096 * t, 's57', 0) for t in range(4)], 'w%d' % p, seq[0] + '\ns_mov_b32 s55, %d' % lds)
        return seq
    def item_o(e):
        lds = L_W + 16384 * WSLOT['o%d' % e]; seq = []
        for hf in range(2):
            seq += ['s_xor_b32 s3, %s, %d\n' % ('s59' if o['alt'] == 3 else 's16', 2 * e + hf) + ('s_and_b32 s57, s3, 4\ns_mul_i32 s57, s57, %d\ns_add_u32 s3, s3, s57\n' % (KJ - 1) if KL else '') + 's_mul_i32 s57, s3, %d\ns_add_u32 s57, s57, s62' % (64 * 1152)]
            for t in range(2): seq += group(DV, 4, SWO, lds + 8192 * hf + 4096 * t, 'o%d' % e, 32 * 1152 if t else None)
        return seq
    def item(nm):
        seq = {'v': item_v, 'w': item_w, 'o': item_o, 'k': lambda _: item_k()}[nm[0]](int(nm[1]))
        if nm[:2] in o.get('drop', []): return []
        assert not (nm[2:] and nm[0] in o['sub'])
        cut = {'v': 9, 'k': 16}.get(nm[0], 11)
        if nm[2:] == 'a': return seq[:cut] + ['s_mov_b32 s61, s57']
        if nm[2:] == 'b': return ['s_mov_b32 s57, s61'] + seq[cut:]
        return seq
    def late_setup():
        srd(SK, 4, 'k'); srd(SV, 6, 'v'); srd(SWO, 8, 'wo'); srd(SWS, 14, 'ws')
        if 'd' in o['hack']: srd(SV, SX, 'x'); srd(SWO, SX, 'x')
        if 'k' in o['hack']: srd(SK, SX, 'x')
        a('v_mul_u32_u24 v7, 1152, v2\nv_add_u32 v%d, v7, v6\nv_add_u32 v%d, %d, v%d' % (OV, OV + 1, 4 * 1152 - 1024, OV))
        a('v_xor_b32 v6, 128, v6\nv_add_u32 v7, v7, v6\nv_add_u32 v%d, %d, v7\nv_add_u32 v%d, %d, v7' % (OV + 2, 2 * (4 * 1152 - 1024), OV + 3, 3 * (4 * 1152 - 1024)))
        a('v_xor_b32 v6, v1, v2\nv_lshlrev_b32 v6, 4, v6\nv_lshl_add_u32 v%d, v2, 8, v6' % KV)
        for j in range(1, 4): a('v_xor_b32 v%d, %d, v%d' % (KV + j, 64 * j, KV))
        a('v_and_b32 v6, 1, v2\nv_lshlrev_b32 v6, 1, v6\nv_xor_b32 v6, v6, v4\nv_lshl_add_u32 v%d, v6, 4, v5' % DV)
        quad(DV, 8 * 1152 - 1024)
        a('v_lshlrev_b32 v6, 8, v3\nv_lshl_add_u32 v%d, v32, 4, v6' % VV)
        quad(VV, 8 * 256 - 1024)
        if o['m0o']:
            for base, src, n, st_ in ((40, XV, 3, 32 * 1152), (52, WV, 4, 16 * 8192), (68, OV, 4, 16 * 1152)):
                for t in range(1, n):
                    a('s_mov_b32 s3, %d' % (t * st_))
                    for j in range(4): a('v_add_u32 v%d, s3, v%d' % (base + 4 * t + j, src + j))
        if o['pre']:
            assert not o['qseq'] and o['lateat'] >= 3
            for c in range(o['lateat'], 9):
                if o['pre'] == 1: a('s_lshl_b32 s3, s17, 7\ns_add_u32 s%d, s3, s52\ns_lshl_b32 s3, s17, 19\ns_add_u32 s%d, s3, s53' % (72 + 2 * c, 73 + 2 * c))
                else:
                    a('s_lshl_b32 s3, s17, 7\ns_add_u32 s3, s3, s52\ns_add_u32 s%d, s%d, s3\ns_addc_u32 s%d, s%d, 0' % (64 + 4 * c, SX, 65 + 4 * c, SX + 1))
                    a('s_lshl_b32 s3, s17, 19\ns_add_u32 s3, s3, s53\ns_add_u32 s%d, s%d, s3\ns_addc_u32 s%d, s%d, 0' % (66 + 4 * c, SWQ, 67 + 4 * c, SWQ + 1))
                if c < 8: a('s_add_u32 s17, s17, 1\ns_cmp_eq_u32 s17, 9\ns_cselect_b32 s17, 0, s17')
        if o['pre'] == 2:
            for base, src, n, st_ in ((110, XV, 3, 32 * 1152), (122, WV, 4, 16 * 8192)):
                for t in range(n):
                    a('s_mov_b32 s3, %d' % (t * st_ + (4096 if t % 2 == 0 else 0)))
                    for j in range(4): a('v_add_u32 v%d, s3, v%d' % (base + 4 * t + j, src + j))
        a(H0)
        if o['alt'] == 3: a('s_and_b32 s59, s22, 2\ns_lshl1_add_u32 s59, s59, s16')
        a('s_lshl_b32 s54, s23, 5\n' + kvbase('s3') + '\ns_add_u32 s54, s54, s3')
        if 'd' in o['hack']: a('s_and_b32 s63, s23, 1\ns_lshl_b32 s63, s63, 5')
        a(('s_mov_b32 s60, 0 ; %d' if 'd' in o['hack'] else 's_mul_i32 s60, s3, %d') % (256 * 1152))
        a('s_add_u32 s62, s60, 1024\ns_lshl_b32 s3, s22, 8\ns_add_u32 s60, s60, s3')
    L0 = len(a.lines)
    nq = 0; nbar = 0; since = {}
    def bar():
        nonlocal nbar
        vm.wait('n%d' % nbar)
        if nbar in (1, 2, 3, 8): stL('L at B%d' % nbar, 2)
        if nbar < 4: stL('L at B%d' % nbar, 3)
        a('s_barrier'); nbar += 1
    kdone = 0
    if o['lead']:
        assert o['klate'] and not o['wqfirst'] and not o['sub']
        def split(seq, n):
            k = 0
            for i_, x_ in enumerate(seq):
                if callable(x_):
                    k += 1
                    if k == n: return seq[:i_ + 1], seq[i_ + 1:]
        run(item_q(0)); run(item_q(1))
        for c in range(2, 9):
            h_, r_ = split(item_q(c), o['lead']) if c >= o['lead0'] else ([], item_q(c))
            if 'q%d' % c in o.get('drop', []): h_, r_ = [], r_[-1:]
            run(h_); bar(); run(r_)
            if c + 1 == o['lateat']: late_setup()
        if o['leadk']: run(item('k0a')); kdone = 1
        bar()
    else:
        for t in o['order']:
            if t == 'q':
                while nbar < nq - 1 and nq >= 3: bar()
                seq = item_q(nq)
                if 'q%d' % nq in o.get('drop', []): seq = seq[-1:]
                if o['first_half'] and nq in (1, 2) and nbar == nq - 1:
                    run(seq[:16]); bar(); run(seq[16:])
                else: run(seq)
                sz = 28; nq += 1
                if nq <= 2: stL('L issued q%d' % (nq - 1), 3)
                if o['sent'] and o['clr'] == 'L%d' % nq: srd(SWS, 14, 'ws'); clears(True, 90, 92)
                if nq == o['lateat']: late_setup()
            elif t == 'K': run(item_k()); sz = 24
            elif t == 'V': run(item_v(0)); sz = 12
            elif t == 'W': run(item_v(1)); sz = 12
            for c in list(since): since[c] += sz
            if t == 'q': since[nq - 1] = 0
            while nbar < nq and since[nbar] >= o['win']: bar()
        while nbar < 8: bar()
    pre8 = o['pre8'] if 'pre8' in o else (['w0'] if 'V' in o['order'] else ['v0', 'w0'])
    assert all(it[:2] in (('k0', 'v0', 'v1', 'v2', 'w0', 'w1') if o['vf'] else ('k0', 'v0', 'v1', 'v2', 'v3', 'w0')) for it in pre8)
    seq = [x_ for it in pre8 for x_ in item('k0b' if kdone and it == 'k0' else it)]
    if o['b8a']:
        run(seq[:-10]); bar(); run(seq[-10:]); vm.wait('n8b'); a('s_barrier')
    else:
        run(seq); bar()
    XB = [('BQ', []), ('BP', ['v0', 'w0']), ('w0', ['v1', 'w1']), ('w1', ['w2']), ('w2', ['w3']), ('w3', ['v2', 'w4']),
          ('w4', ['v3', 'w5']), ('w5', ['w6']), ('w6', ['w7']), ('w7', []), ('O', ['o0', 'o1'])]
    if o['alt']:
        XB = [('BQ', []), ('BP', ['v0', 'w0']), ('w0', ['w1']), ('w1', ['v1', 'w2']), ('w2', ['w3']), ('w3', ['v2', 'w4']),
              ('w4', ['w5']), ('w5', ['v3', 'w6']), ('w6', ['w7']), ('w7', []), ('O', ['o0', 'o1'])]
    if o['klate']: XB[0] = ('BQ', ['k0'])
    if o['bs']: XB.insert(1, ('BS', []))
    for sk in o['skip']:
        i_ = [x_[0] for x_ in XB].index(sk)
        XB[i_ - 1] = (XB[i_ - 1][0], XB[i_ - 1][1] + XB[i_][1]); del XB[i_]
    XN = [x_[0] for x_ in XB]
    plan = o.get('plan') or {'B8': ['w0'], 'BQ': ['w1', 'v1', 'w2'], 'BP': ['w3', 'v2', 'w4'], 'w1': ['w5'], 'w2': ['v3', 'w6'], 'w3': ['w7'], 'w6': ['o0'], 'w7': ['o1']}
    if o['vf'] and not o.get('plan'): plan = {'B8': ['v0', 'w0'], 'BQ': ['w1', 'v1', 'w2', 'w3'], 'BP': ['v2', 'w4'], 'w1': ['v3'], 'w2': ['w5'], 'w3': ['w6'], 'w4': ['w7'], 'w6': ['o0'], 'w7': ['o1']}
    FREEAT = {'w0': 'B8', 'w1': 'B8', 'w2': 'BQ', 'w3': ('BS' if o['bs'] else 'BP') if o['klate'] else 'BQ', 'w4': 'BS' if o['bs'] else 'BP', 'w5': 'w1', 'w6': 'w2', 'w7': 'w3', 'o0': 'w5', 'o1': 'w6'}
    if o['vf']: FREEAT.update({'w2': 'B8', 'w3': 'BQ', 'w5': 'w2', 'w6': 'w3', 'w7': 'w4', 'v3': 'w1'})
    if o['vf'] == 2: FREEAT.update({'w5': 'BP', 'w6': 'w2', 'w7': 'w3', 'o0': 'w4', 'o1': 'w6'})
    ALLN = ['B8', 'BQ', 'BS', 'BP'] + ['w%d' % i_ for i_ in range(8)] + ['O']
    names = ['B8'] + [x_[0] for x_ in XB]
    issued = set(x_[:2] for x_ in pre8 if x_[2:] != 'a') | ({'v0'} if 'V' in o['order'] else set()) | ({'v1'} if 'W' in o['order'] else set())
    last = 'B8'
    for nm, need in XB:
        for it in plan.get(last, []):
            assert it[:2] not in FREEAT or ALLN.index(FREEAT[it[:2]]) <= ALLN.index(last), (it, last)
            run(item(it))
            if it[2:] != 'a': issued.add(it[:2])
        assert all(x_ in issued for x_ in need), (nm, need)
        vm.wait(need)
        stL('L at ' + nm, 2)
        a('s_barrier'); last = nm
    assert len(issued) == 14 + o['klate']
    if o['hoist']:
        L_ = a.lines; i = L0
        while i < len(L_):
            if L_[i] == 's_barrier':
                j = i + 1
                while j < len(L_) and L_[j].startswith(('s_lshl', 's_lshr', 's_add_u32', 's_mul_i32', 's_xor', 's_and', 's_mov_b32')): j += 1
                k = i
                while L_[k - 1].startswith(('s_waitcnt vmcnt', 's_memrealtime', '; stamp')): k -= 1
                L_[k:j] = L_[i + 1:j] + L_[k:i + 1]
                i = j
            else: i += 1
    stL('L done')
    stL.flush(4)
    if o['padL']: a('s_branch L_padl\n.fill %d, 4, 0xbf800000\nL_padl:' % o['padL'])
    if 'f' in o['hack']: a('s_endpgm')
    if o['stlb']: a(W0)
    srd(SOUT, 10, 'out')
    a('s_lshl_b32 s52, s21, 1\ns_lshr_b32 s3, s22, 1\ns_add_u32 s52, s52, s3')
    if stamps == 4: a('s_min_u32 s52, s52, 11\ns_lshr_b32 s3, s52, 1\ns_and_b32 s75, s52, 1\ns_lshl_b32 s75, s75, 4\ns_or_b32 s75, s75, s3\ns_and_b32 s3, s2, 0xe8\ns_or_b32 s75, s75, s3')
    a('s_cmp_ge_u32 s52, 12\ns_cbranch_scc1 L_end')
    a('s_lshl_b32 s3, %s, 9\ns_add_u32 s62, s3, %d\ns_add_u32 s66, s14, s62\ns_addc_u32 s67, s15, 0' % ('s75' if stamps == 4 else 's2', G_FL + (0 if o['ocl'] > 1 else 384)))
    a('s_mov_b32 s54, %d' % SPIN)
    a('s_lshl_b32 s3, s23, 1\ns_and_b32 s53, s22, 1\ns_add_u32 s53, s53, s3')
    a('s_mul_i32 s55, s53, 12\ns_add_u32 s55, s55, s52\ns_mul_i32 s55, s55, %d\ns_add_u32 s55, s55, %d\ns_add_u32 s56, s55, 4096' % (o['OT'], G_PO))
    if o['o64']:
        a('s_cmp_ge_u32 s52, 6\ns_cselect_b32 s58, %d, 0\ns_mul_i32 s57, s53, 6\ns_add_u32 s57, s57, s52\ns_mul_i32 s57, s57, %d\ns_sub_u32 s57, s57, s58\ns_add_u32 s57, s57, 1024' % (48 * 1152 - 64, 8 * 1152))
    else:
        a('s_mul_i32 s58, s52, 43\ns_lshr_b32 s58, s58, 7\ns_mul_i32 s3, s58, 3\ns_sub_u32 s3, s52, s3')
        a('s_mul_i32 s57, s53, 3\ns_add_u32 s57, s57, s3\ns_mul_i32 s57, s57, %d\ns_lshl_b32 s58, s58, 5\ns_add_u32 s57, s57, s58\ns_add_u32 s57, s57, 1024' % (16 * 1152))
    if not o['ox4']: a('v_lshlrev_b32 v6, 3, v0')
    def and16(b):
        for i in range(0, 16, 4): a('s_and_b64 s[%d:%d], s[%d:%d], s[%d:%d]' % (b + i, b + 1 + i, b + i, b + 1 + i, b + 2 + i, b + 3 + i))
        a('s_and_b64 s[%d:%d], s[%d:%d], s[%d:%d]\ns_and_b64 s[%d:%d], s[%d:%d], s[%d:%d]\ns_and_b64 s[%d:%d], s[%d:%d], s[%d:%d]\ns_and_b32 s%d, s%d, s%d' % (
            b, b + 1, b, b + 1, b + 4, b + 5, b + 8, b + 9, b + 8, b + 9, b + 12, b + 13, b, b + 1, b, b + 1, b + 8, b + 9, b, b, b + 1))
    def reduce(name, nsrc, w, off, vaddr, outs, st=None):
        ox = o['ox4'] and w == 2
        nl, lw = (8, 4) if ox else (nsrc, w)
        per = nl // 2; sz = 256 * lw
        def ld(j): return 'buffer_load_dwordx%d %s, v%d, s[%d:%d], s%d offen offset:%d sc1' % (lw, v(32 + lw * j, lw), vaddr, SWS, SWS + 3, 55 + j // per, sz * (j % per))
        if ox:
            assert o['o64'] and o['acc'] == 1 and not o['bm']
            a('v_lshlrev_b32 v%d, 4, v0' % vaddr)
        if ('R' in o['hack'] and w == 4) or ('O' in o['hack'] and w == 2): a('s_mov_b32 s56, 0x7ff00000')
        osc = o['outsc'] if w == 4 or o['oddsc'] is None else o['oddsc']
        bt = o['btr'] & (1 if w == 4 else 2)
        if bt and w == 4:
            a('v_lshrrev_b32 v4, 2, v0\nv_and_b32 v5, 3, v0\nv_mul_u32_u24 v3, 1152, v4\nv_lshl_add_u32 v3, v5, 4, v3\nv_lshl_add_u32 v24, v5, 4, v4\nv_lshlrev_b32 v24, 2, v24')
        elif bt:
            a('v_lshrrev_b32 v4, 2, v0\nv_and_b32 v5, 3, v0\nv_mul_u32_u24 v3, 1152, v4\nv_lshl_add_u32 v3, v5, 3, v3\nv_lshl_add_u32 v24, v5, 4, v4\nv_lshlrev_b32 v24, 2, v24')
        elif ox: a('v_and_b32 v4, 3, v0\nv_lshrrev_b32 v5, 5, v0\nv_lshl_add_u32 v4, v4, 1, v5\nv_bfe_u32 v5, v0, 2, 3\nv_mul_u32_u24 v3, 1152, v4\nv_lshl_add_u32 v3, v5, 3, v3')
        elif o['o64'] and w == 2 and 'V' not in o['hack']: a('v_and_b32 v4, 7, v0\nv_lshrrev_b32 v5, 3, v0\nv_mul_u32_u24 v3, 1152, v4\nv_lshl_add_u32 v3, v5, 3, v3')
        elif 'U' in o['hack'] and w == 4: a('v_and_b32 v4, 7, v0\nv_lshrrev_b32 v5, 3, v0\nv_mul_u32_u24 v3, 1152, v4\nv_lshl_add_u32 v3, v5, 4, v3\ns_bitcmp1_b32 s59, 6\ns_cselect_b32 s3, %d, 0\ns_add_u32 s59, s59, s3' % (8 * 1152 - 64))
        elif 'W' in o['hack'] and w == 2: a('v_and_b32 v4, 7, v0\nv_lshrrev_b32 v5, 3, v0\nv_mul_u32_u24 v3, 1152, v4\nv_lshl_add_u32 v3, v5, 3, v3\ns_bitcmp1_b32 s57, 5\ns_cselect_b32 s3, %d, 0\ns_add_u32 s57, s57, s3' % (8 * 1152 - 32))
        elif 'V' in o['hack'] and w == 2: a('v_mov_b32 v3, 0x7ff00000')
        elif o['x4'] and w == 4: a('v_mul_u32_u24 v3, 1152, v1\nv_lshl_add_u32 v3, v2, 4, v3')
        else: a('v_mul_u32_u24 v3, 1152, v1\nv_lshl_add_u32 v3, v2, 3, v3')
        if o.get('dot'): a('s_mov_b32 s28, 0x00003f80\ns_mov_b32 s29, 0x3f800000')
        a('s_mov_b32 s29, 0xffff0000')
        if o['acc'] == 2: a('s_mov_b32 s28, 0x00003f80\ns_mov_b32 s31, 0x3f800000')
        if o['prog']:
            a('s_mov_b32 s63, 0')
            a('L_%s:\ns_load_dwordx%d s[84:%d], s[66:67], %d glc\ns_sub_u32 s54, s54, 1\ns_cselect_b32 s30, -1, 0\ns_waitcnt lgkmcnt(0)' % (name, nsrc, 83 + nsrc, off))
            k = nsrc; sh = 1
            while k > 1:
                for i in range(0, nsrc, 2 * sh):
                    if sh <= 4: a('s_lshl%d_add_u32 s%d, s%d, s%d' % (sh, 84 + i, 84 + i + sh, 84 + i))
                    else: a('s_lshl_b32 s%d, s%d, %d\ns_or_b32 s%d, s%d, s%d' % (84 + i + sh, 84 + i + sh, sh, 84 + i, 84 + i, 84 + i + sh))
                k //= 2; sh *= 2
            a('s_or_b32 s84, s84, s30\ns_and_b32 s84, s84, %d\ns_andn2_b32 s85, s84, s63\ns_cbranch_scc0 L_%s\ns_or_b32 s63, s63, s84' % ((1 << nsrc) - 1, name))
            for j in range(nsrc):
                a('s_bitcmp1_b32 s85, %d\ns_cbranch_scc0 L_%s_%d\n%s\nL_%s_%d:' % (j, name, j, ld(j), name, j))
            a('s_cmp_lg_u32 s63, %d\ns_cbranch_scc1 L_%s' % ((1 << nsrc) - 1, name))
            if st: st('flags ok')
            a('s_waitcnt vmcnt(0)')
        else:
            own = o['own'] and w == 4
            oe = own and o['oe'] and o['xe'] in ('E', 'G', 'H') and o['atom']
            if o['far']: a('s_branch L_far_%s\n.fill 300, 4, 0xbf800000\n.p2align 6\nL_far_%s:' % (name, name))
            if o['opre'] & (1 if w == 4 else 2): a('buffer_load_dword v22, v3, s[%d:%d], %s offen %s\ns_waitcnt vmcnt(0)' % (SOUT, SOUT + 3, outs, o.get('oprefl', '')))
            a(';WARM_ON')
            if o['xe']: a('s_barrier')
            if oe: a('ds_read_b128 v[32:35], v27')
            pm = o['bm'] >= (2 if w == 2 else 1) and o['bm'] != 3 or o['bm'] == 3 and w == 2
            full = (1 << nsrc) - 1
            if pm:
                a('s_mov_b32 s64, 0')
                a('L_%s:\ns_load_dword s84, s[66:67], %d glc\ns_sub_u32 s54, s54, 1\ns_cselect_b32 s30, %d, 0\ns_waitcnt lgkmcnt(0)' % (name, off, full))
                a('s_or_b32 s84, s84, s30\ns_andn2_b32 s85, s84, s64\ns_cbranch_scc0 L_%s\ns_mov_b32 s64, s84' % name)
                for j in range(nsrc):
                    a('s_bitcmp1_b32 s85, %d\ns_cbranch_scc0 L_%s_%d\n%s\nL_%s_%d:' % (j, name, j, 'ds_read_b128 v[32:35], v27' if own and j == 0 else ld(j), name, j))
                a('s_cmp_lg_u32 s64, %d\ns_cbranch_scc1 L_%s\ns_waitcnt vmcnt(0)' % (full, name))
                if o['sent'] and w == 2: a('s_mov_b32 s63, 0\ns_branch L_sum')
            else: gpoll(name, full if o['bm'] else (32 if w == 2 and o['o64'] else nsrc) - (1 if oe else 0), off)
            if stamps == 4: a('s_memrealtime s[68:69]')
            if st: st('flags ok')
            if o['sent'] and w == 2: a('s_mov_b32 s63, 0\nL_again:')
            if not pm or w == 2:
                for j in range(nl):
                    if j or not own: a(ld(j))
                if own and not oe: a('ds_read_b128 v[32:35], v27')
            if pm and w == 2: a('L_sum:')
            if o['dry']: a('L_dry_%s:' % name)
        order = list(range(1, nsrc)) + [0] if own and o['ownlast'] else list(range(nl))
        for jj, j in enumerate(order):
            if not o['prog'] and not (oe and j == 0): a(W0 if own and j == 0 else 's_waitcnt vmcnt(%d)' % (nl - 1 - j))
            if o['acc'] == 1:
                b_ = 32 + lw * j; tmp = 16 + 4 * (j & 1); j = jj
                for t in range(lw): a('v_lshlrev_b32 v%d, 16, v%d' % ((tmp if j else 8) + t, b_ + t))
                for t in range(lw): a('v_and_b32 v%d, s29, v%d' % ((b_ if j else 12) + t, b_ + t))
                if j:
                    for t in range(0, lw, 2): a('v_pk_add_f32 v[%d:%d], v[%d:%d], v[%d:%d]' % (8 + t, 9 + t, 8 + t, 9 + t, tmp + t, tmp + t + 1))
                    for t in range(0, lw, 2): a('v_pk_add_f32 v[%d:%d], v[%d:%d], v[%d:%d]' % (12 + t, 13 + t, 12 + t, 13 + t, b_ + t, b_ + t + 1))
                continue
            if o['acc'] == 2:
                b_ = 32 + w * j
                for t in range(w): a('v_dot2_f32_bf16 v%d, v%d, s28, %s' % (8 + t, b_ + t, 'v%d' % (8 + t) if j else '0'))
                for t in range(w): a('v_dot2_f32_bf16 v%d, v%d, s31, %s' % (12 + t, b_ + t, 'v%d' % (12 + t) if j else '0'))
                if j == nsrc - 1: a('s_nop 2')
                continue
            for t in range(w):
                src = 32 + w * j + t
                if j == 0: a('v_lshlrev_b32 v%d, 16, v%d\nv_and_b32 v%d, s29, v%d' % (8 + 2 * t, src, 9 + 2 * t, src))
                elif o.get('dot'): a('v_dot2_f32_bf16 v%d, v%d, s28, v%d\nv_dot2_f32_bf16 v%d, v%d, s29, v%d' % (8 + 2 * t, src, 8 + 2 * t, 9 + 2 * t, src, 9 + 2 * t))
                else: a('v_lshlrev_b32 v16, 16, v%d\nv_and_b32 v17, s29, v%d\nv_pk_add_f32 v[%d:%d], v[%d:%d], v[16:17]' % (src, src, 8 + 2 * t, 9 + 2 * t, 8 + 2 * t, 9 + 2 * t))
        if ox: a('v_permlane32_swap_b32 v8, v10\nv_permlane32_swap_b32 v9, v11\nv_permlane32_swap_b32 v12, v14\nv_permlane32_swap_b32 v13, v15\nv_pk_add_f32 v[8:9], v[8:9], v[10:11]\nv_pk_add_f32 v[12:13], v[12:13], v[14:15]')
        if o['sent'] and w == 2: a('v_cmp_u_f32 vcc, v8, v%d\n' % (9 if o['acc'] else 10) + 's_cbranch_vccnz L_retry\nL_accept:')
        if stamps == 4: a('s_memrealtime s[70:71]')
        for t in range(w): a('v_cvt_pk_bf16_f32 v%d, v%d, v%d' % ((8 + t, 8 + t, 12 + t) if o['acc'] else (8 + t, 8 + 2 * t, 9 + 2 * t)))
        if w == 4 and o['x4']:
            a('v_permlane32_swap_b32 v8, v10\nv_permlane32_swap_b32 v9, v11\nv_permlane16_swap_b32 v8, v10\nv_permlane16_swap_b32 v9, v11')
        if o['dry']: a('s_cbranch_execz L_dryret_%s' % name)
        if bt:
            for t in range(w): a('ds_bpermute_b32 v%d, v24, v%d' % (8 + t, 8 + t))
            a(W0)
        if w == 4 and o['x4']:
            a('buffer_store_dwordx4 v[8:11], v3, s[%d:%d], %s offen %s' % (SOUT, SOUT + 3, outs, osc))
        else:
            for t in range(w // 2): a('buffer_store_dwordx2 v[%d:%d], v3, s[%d:%d], %s offen offset:%d %s' % (8 + 2 * t, 9 + 2 * t, SOUT, SOUT + 3, outs, 32 * t, osc))
        a(';WARM_OFF')
        if stamps >= 4:
            a('s_waitcnt vmcnt(0)\ns_memrealtime s[72:73]\ns_waitcnt lgkmcnt(0)\nv_mov_b32 v31, 0\ns_lshl_b32 s3, s2, 9\ns_mul_i32 s74, s20, 24\ns_add_u32 s3, s3, s74\ns_add_u32 s3, s3, %d' % (STAMP_OFF + 8 * 50 - 96))
            for i in range(3) if stamps == 4 else [2]:
                a('v_mov_b32 v254, s%d\nv_mov_b32 v255, s%d' % (68 + 2 * i, 69 + 2 * i))
                a('buffer_store_dwordx2 v[254:255], v31, s[%d:%d], s3 offen offset:%d' % (SWS, SWS + 3, 8 * i))
    if stamps == 4:
        for w_, nm in enumerate(['odd', 'r0', 'r1', 'r2']):
            for i, x_ in enumerate(['flags', 'summed', 'end']): a('; stamp %d %s %s' % (50 + 3 * w_ + i, nm, x_))
    if o['shc'] & 2: a('s_cmp_ge_u32 s52, 6\ns_cselect_b32 s3, 3, 0\ns_and_b32 s62, s2, 0xe8\ns_or_b32 s3, s3, s62\ns_lshl_b32 s3, s3, 9\ns_add_u32 s62, s3, %d\ns_add_u32 s66, s14, s62\ns_addc_u32 s67, s15, 0' % (G_FL + 384))
    if o['shc'] & 4: a('s_mul_i32 s3, s52, 43\ns_lshr_b32 s3, s3, 7\ns_mul_i32 s3, s3, 3\ns_and_b32 s62, s3, 1\ns_lshl_b32 s62, s62, 4\ns_lshr_b32 s3, s3, 1\ns_or_b32 s3, s3, s62\ns_and_b32 s62, s2, 0xe8\ns_or_b32 s3, s3, s62\ns_lshl_b32 s3, s3, 9\ns_add_u32 s62, s3, %d\ns_add_u32 s66, s14, s62\ns_addc_u32 s67, s15, 0' % (G_FL + 384))
    reduce('op', 16, 2, OOFF, 6, 's57')
    a('s_endpgm')
    if o['sent']:
        a('; a slot still held the marker (or the data really is NaN): wait for the acknowledged counter, read once more and take that')
        a('L_retry:\ns_cmp_lg_u32 s63, 0\ns_cbranch_scc1 L_accept\ns_mov_b32 s63, 1\ns_mov_b32 s54, %d' % SPIN)
        if stamps == 5: a('v_mov_b32 v20, 160\nv_mov_b32 v21, 1\ns_mov_b64 exec, 1\nglobal_atomic_add v20, v21, s[12:13] sc1\ns_mov_b64 exec, -1')
        if o['ack1'] and o['o64']:
            a('s_cmp_ge_u32 s52, 6\ns_cselect_b32 s3, %s\n' % ('7, 6' if o['ack1'] == 2 else '3, 0') + 's_and_b32 s62, s2, 0xe8\ns_or_b32 s3, s3, s62\ns_lshl_b32 s3, s3, 9\ns_add_u32 s62, s3, %d\ns_add_u32 s66, s14, s62\ns_addc_u32 s67, s15, 0' % (G_FL + 384))
        gpoll('oq', 0xffff if o['bm'] else 32 if o['o64'] else 16, 64, True)
        a('s_branch L_again')
    for t_ in subs.values(): a(t_)
    if o['padC']: a('.fill %d, 4, 0xbf800000' % o['padC'])
    a('L_comp:')
    lg = Cnt(a, 'lgkmcnt', 15)
    stC('C entry', 3)
    XA, WA, VA, OVA, OA, QA, FRA, FUA, FV, FC, PFA = 10, 12, 16, 18, 20, 21, 22, 23, 24, 27, 31
    A = 32; F = [80, 108]; B = 136; C = 184; VWO = 232; SP = 244
    KF = B; QF = 80; S = 96; P = SP; KA = 184; UA = 254; QT = 192
    a('v_bfe_u32 v3, v0, 2, 2\nv_and_b32 v4, 3, v0')
    a('s_lshr_b32 s18, s20, 1\ns_and_b32 s17, s20, 1')
    a(H0)
    a('v_lshrrev_b32 v7, 1, v1\nv_xor_b32 v7, v7, v2\nv_lshlrev_b32 v7, 4, v7\nv_lshl_add_u32 v5, v1, 7, v7\nv_xor_b32 v6, 64, v5')
    a('s_mul_i32 s3, s18, 6144\ns_add_u32 s3, s3, %d' % L_X0)
    a('v_add_u32 v%d, s3, v5\nv_add_u32 v%d, s3, v6' % (XA, XA + 1))
    a('s_add_u32 s3, s3, %d\nv_add_u32 v%d, s3, v5\nv_add_u32 v%d, s3, v6' % (L_V - L_X0, VA, VA + 1))
    a('s_and_b32 s3, s22, 1\ns_mul_i32 s3, s3, 6144\ns_add_u32 s3, s3, %d' % L_V)
    if o['alt'] == 3: a('s_and_b32 s19, s22, 2\ns_mul_i32 s19, s19, 12288\ns_add_u32 s3, s3, s19')
    a('v_add_u32 v%d, s3, v5\nv_add_u32 v%d, s3, v6' % (OVA, OVA + 1))
    a('v_and_b32 v7, 1, v2\nv_lshl_add_u32 v7, v7, 2, v3\ns_lshl_b32 s3, s17, 2\nv_xor_b32 v7, s3, v7')
    a('v_lshl_add_u32 v5, v2, 3, v3\nv_lshlrev_b32 v8, 8, v5\nv_lshl_add_u32 v8, v4, 3, v8')
    assert L_W == 0
    for t in range(4): a('v_xor_b32 v9, %d, v7\nv_lshl_add_u32 v%d, v9, 5, v8' % (t, WA + t))
    a('v_and_b32 v7, 1, v2\nv_lshrrev_b32 v8, 1, v3\nv_lshl_add_u32 v7, v7, 1, v8\nv_xor_b32 v7, s20, v7')
    a('v_lshlrev_b32 v8, 7, v5\nv_lshl_add_u32 v8, v4, 3, v8\nv_lshl_add_u32 v%d, v7, 5, v8' % OA)
    a('s_mul_i32 s3, s18, 12288\ns_lshl_b32 s19, s17, 11\ns_add_u32 s3, s3, s19\ns_add_u32 s3, s3, %d' % L_Q)
    a('v_lshlrev_b32 v25, 4, v0\nv_lshlrev_b32 v26, 3, v0\nv_add_u32 v%d, s3, v%d' % (QA, 26 if o['q64'] else 25))
    if o['q64'] == 3: a('v_lshrrev_b32 v7, 1, v2\nv_lshl_add_u32 v7, v7, 4, v1\nv_lshlrev_b32 v7, 4, v7\nv_and_b32 v8, 1, v2\nv_lshl_add_u32 v7, v8, 3, v7\nv_add_u32 v%d, s3, v7' % QA)
    if o['own3']:
        assert o['own'] and not o['oe'] and not o['bm']
        a('s_and_b32 s59, s2, 0xf8\ns_lshl_b32 s48, s20, 1\ns_add_u32 s59, s59, s48\ns_and_b32 s3, s2, 1\ns_add_u32 s3, s3, s59\ns_mul_i32 s34, s3, %d\ns_xor_b32 s3, s3, 1\ns_mul_i32 s35, s3, %d' % (o['MO'], o['MO']))
        a('s_and_b32 s3, s21, 6\ns_xor_b32 s48, s48, s3\ns_lshl_b32 s3, s48, 10\ns_add_u32 s3, s3, %d\ns_add_u32 s34, s34, s3\ns_add_u32 s35, s35, s3\ns_add_u32 s35, s35, 1024' % G_PM)
        a('s_cmp_eq_u32 s48, 0\ns_cselect_b32 s33, 0x7ff00000, 0\ns_cselect_b64 s[30:31], -1, 0\nv_add_u32 v27, %d, v25' % L_F)
        for qt in (1, 2): a('s_add_u32 s%d, s34, %d\ns_add_u32 s%d, s35, %d' % (34 + 2 * qt, qt * o['MQ'], 35 + 2 * qt, qt * o['MQ']))
    else:
        a('s_and_b32 s59, s2, 0xf8\ns_lshl_b32 s48, s20, 1\ns_add_u32 s59, s59, s48\ns_mul_i32 s56, s59, %d\ns_add_u32 s56, s56, %d\ns_add_u32 s57, s56, %d' % (o['MO'], G_PM, o['MO']))
        a('s_xor_b32 s48, s48, s21\ns_lshl_b32 s3, s48, 10\ns_add_u32 s56, s56, s3\ns_xor_b32 s3, s3, 1024\ns_add_u32 s57, s57, s3')
        if o['own']:
            a('s_cmp_eq_u32 s48, 0\ns_cselect_b32 s56, 0x7ff00000, s56\ns_cselect_b64 s[30:31], -1, 0\ns_cmp_eq_u32 s48, 1\ns_cselect_b32 s57, 0x7ff00000, s57\ns_cselect_b64 s[32:33], -1, 0\nv_add_u32 v27, %d, v25' % L_F)
    a('s_lshl_b32 s3, s23, 1\ns_and_b32 s54, s22, 1\ns_add_u32 s3, s3, s54\ns_mul_i32 s3, s3, 12\n' + ('s_mul_i32 s54, s18, 6' if o['o64'] else 's_mul_i32 s54, s20, 3') + '\ns_add_u32 s3, s3, s54\ns_mul_i32 s58, s3, %d' % o['OT'])
    if o['o64']:
        assert not o['bm'] and not o['btr'] & 2
        a('s_lshl_b32 s3, s17, 8\ns_add_u32 s58, s58, s3')
    a('s_lshl_b32 s3, s21, 1\ns_lshr_b32 s55, s22, 1\ns_add_u32 s55, s55, s3\ns_lshl_b32 s3, s55, 9\ns_add_u32 s58, s58, s3\ns_add_u32 s58, s58, %d' % G_PO)
    a('v_and_b32 v5, 7, v0\nv_lshrrev_b32 v6, 3, v0')
    a('v_add_u32 v7, s59, v5\nv_lshlrev_b32 v7, 9, v7\n' + ('s_mov_b32 s3, %d' % (G_FL + MOFF) if o['atom'] else 's_lshl_b32 s3, s21, 2\ns_add_u32 s3, s3, %d' % (G_FL + MOFF)) + '\nv_add_u32 v7, s3, v7')
    a('s_sub_u32 s54, s54, 2\nv_add_u32 v8, s54, v5\nv_lshrrev_b32 v9, 1, v8\nv_and_b32 v8, 1, v8\nv_lshl_add_u32 v8, v8, 4, v9\ns_and_b32 s3, s2, 0xe8\nv_add_u32 v8, s3, v8\nv_lshlrev_b32 v8, 9, v8')
    a(('s_mov_b32 s3, %d' if o['atom'] else 's_lshl_b32 s3, s55, 2\ns_add_u32 s3, s3, %d') % (G_FL + 128 + OOFF) + '\nv_add_u32 v8, s3, v8\nv_mov_b32 v9, 0x7ff00000')
    a('v_lshl_add_u32 v7, v6, 6, v7\nv_lshl_add_u32 v8, v6, 6, v8\nv_cmp_gt_u32 vcc, %d, v6\nv_cndmask_b32 v5, 8, v5, vcc' % o['rep'])
    if o['own'] and o['oe'] and o['xe'] in ('E', 'G', 'H') and o['atom']: a('v_cmp_ne_u32 vcc, s48, v5\nv_cndmask_b32 v7, v9, v7, vcc')
    a('v_cmp_gt_u32 vcc, %d, v5\n' % (8 if o['o64'] else 5) + 'v_cndmask_b32 v8, v9, v8, vcc\nv_cmp_gt_u32 vcc, 2, v5\nv_cndmask_b32 v30, v8, v7, vcc\nv_cndmask_b32 v28, v9, v7, vcc\nv_mov_b32 v29, 1')
    if o['shc'] & 1: a('v_cmp_gt_u32 vcc, 1, v5\nv_cndmask_b32 v28, v9, v7, vcc')
    if o['bm']: a('v_xor_b32 v7, s48, v5\nv_mov_b32 v8, s55\nv_cndmask_b32 v7, v8, v7, vcc\nv_lshlrev_b32 v29, v7, v29')
    if o['fo2']: a('s_add_u32 s56, s58, %d\ns_add_u32 s57, s58, %d' % (o['OT'] * (2 if o['o64'] else 1), o['OT'] * (4 if o['o64'] else 2)))
    if 'T' in o['hack']: a('s_mov_b32 s35, 0x7ff00000\ns_mov_b32 s37, s35\ns_mov_b32 s39, s35')
    if 'Y' in o['hack']: a('s_cmp_ge_u32 s21, 4\ns_cselect_b32 s58, 0x7ff00000, s58\ns_cselect_b32 s56, 0x7ff00000, s56\ns_cselect_b32 s57, 0x7ff00000, s57')
    if 'g' in o['hack']: a('s_mov_b32 s58, 0x7ff00000\n' + '\n'.join('s_mov_b32 s%d, s58' % r_ for r_ in (34, 35, 36, 37, 38, 39, 56, 57)))
    if o['o64']: a('v_lshrrev_b32 v7, 3, v1\nv_mul_u32_u24 v7, %d, v7\nv_lshl_add_u32 v7, v2, 6, v7\nv_and_b32 v8, 7, v0\nv_lshl_add_u32 v3, v8, 3, v7' % o['OT'])
    a('s_mov_b32 s52, s20')
    def unit_setup():
        a('s_cmp_ge_u32 s52, 3\ns_cselect_b32 s3, 12288, 0\ns_add_u32 s3, s3, %d' % L_K)
        if o['q64'] == 3:
            a('v_xor_b32 v7, v1, v2\nv_lshlrev_b32 v7, 4, v7\nv_lshl_add_u32 v7, v1, 8, v7')
            for kk in range(4): a('v_xor_b32 v8, %d, v7\nv_add_u32 v%d, s3, v8' % (64 * kk, KA + kk))
        else:
            a('v_lshrrev_b32 v7, 1, v2\nv_xor_b32 v7, v1, v7\nv_lshlrev_b32 v7, 4, v7\nv_lshl_add_u32 v7, v1, 8, v7\nv_and_b32 v8, 1, v2\nv_lshl_add_u32 v7, v8, 3, v7')
            for j in range(8): a('v_xor_b32 v8, %d, v7\nv_add_u32 v%d, s3, v8' % (32 * j, KA + j))
        a('s_lshl_b32 s3, s52, 12\ns_add_u32 s3, s3, %d\nv_add_u32 v%d, s3, v%d' % (L_Q, UA, 26 if o['q64'] in (1, 2) else 25))
        a('s_mov_b32 s50, 0x%x\ns_mov_b32 s51, s50' % f2i((1 if o['mimic'] else 128 ** -0.5) * math.log2(math.e)))
        if o['mimic']: a('s_mov_b32 s26, 0x%x\ns_mov_b32 s27, s26\ns_mov_b32 s25, 0xffff0000' % f2i(128 ** -0.5))
        a('s_mul_i32 s3, s52, 1536\ns_mul_i32 s49, s2, 9216\ns_add_u32 s49, s49, s3\ns_add_u32 s49, s49, %d' % G_P)
        if o['pds']: a('s_add_u32 s3, s3, %d\nv_add_u32 v255, s3, v25\nv_add_u32 v31, s3, v26' % (L_P + 27648))
    def k_reads(late=False):
        if o['klate'] and not late: return []
        if o['q64'] == 3: return ['ds_read_b128 %s, v%d offset:%d' % (v(KF + 16 * kt + 4 * kk, 4), KA + kk, 4096 * kt) for kk in range(4) for kt in range(3)]
        return ['ds_read_b64 %s, v%d offset:%d' % (v(KF + 16 * kt + 2 * j, 2), KA + j, 4096 * kt) for j in range(8) for kt in range(3)]
    if o['mimic']: a(W0)
    unit_setup()
    if o['ocl'] > 1:
        assert o['sent'] and o['o64'] and o['rep'] == 1
        if o['ocl'] == 2: a('s_mul_i32 s3, s17, 384')
        else: a('s_and_b32 s3, s22, 2\ns_add_u32 s3, s3, s17\ns_lshl_b32 s3, s3, 7')
        a('s_sub_u32 s3, s3, 120\nv_add_u32 v2, s3, v30')
    if o['ack1'] == 2: a('s_lshl_b32 s41, s18, 10\ns_sub_u32 s41, 3072, s41')
    if o['own3']: a('v_add_u32 v1, s33, v25')
    a(W0)
    srd(SWS, 14, 'ws')
    if o['sat'] & 1: a('s_lshl_b32 s3, s59, 9\ns_add_u32 s42, s3, %d\ns_add_u32 s43, s42, 512\ns_mov_b32 s40, 1' % (256 + MOFF))
    def wreads(st, off, wa=WA): return ['ds_read_b64_tr_b16 %s, v%d offset:%d' % (v(st + 4 * t + 2 * hh, 2), wa + t, off + 1024 * hh) for t in range(4) for hh in range(2)]
    def reads_A(n, ks, st=None):
        st = st or F[ks]
        return ['ds_read_b128 %s, v%d offset:%d' % (v(st + 16 + 4 * q, 4), XA + ks, XS(n) + 2048 * q) for q in range(3)] + wreads(st, 16384 * (n % 3) + 8192 * ks)
    ORD = [(t, q if t % 2 == 0 else 2 - q) for t in range(4) for q in range(3)]
    def mfma(acc, ks, first, swap, od=None):
        out = []
        for t, q in od or ORD:
            d = v(acc + 4 * (3 * t + q), 4); x = v(F[ks] + 4 * t, 4); y = v(F[ks] + 16 + 4 * q, 4)
            if swap: x, y = y, x
            out.append(MF % (d, x, y, '0' if first else d))
        return out
    def cvt(d, s_): return ['v_cvt_pk_bf16_f32 v%d, v%d, v%d' % (d, s_, s_ + 1), 'v_cvt_pk_bf16_f32 v%d, v%d, v%d' % (d + 1, s_ + 2, s_ + 3)]
    def ds(txt, tag):
        def f(): a(txt); lg.issue(tag)
        return f
    def step(m, dsops, extra=(), waits=None, pre=(), xstart=0, dstart=0, xper=0):
        n = len(m); per = [[] for _ in range(n)]
        for i, x_ in enumerate(pre): per[i].append(x_)
        nd = n - dstart
        for i, x_ in enumerate(dsops): per[dstart + (i if len(dsops) <= nd else i * nd // len(dsops))].append(x_)
        nx = n - xstart
        for i, x_ in enumerate(extra): per[min(n - 1, xstart + int(i / xper)) if xper else xstart + (i * nx // len(extra))].append(x_)
        for i in range(n):
            if waits and i in waits: lg.wait(waits[i])
            a(m[i]); run(per[i])
    stC('C at B0', 3)
    a('s_barrier')
    stC('B0')
    def tA(n, ks): return [ds(x_, 'a%d%d%s' % (n, ks, 'lo' if i < 7 else 'hi')) for i, x_ in enumerate(reads_A(n, ks))]
    if o['atune']:
        bg = o['atune']
        run(tA(0, 0))
        for n in range(7):
            kr = [ds(x_, 'k') for x_ in k_reads()[6 * (n - 3):6 * (n - 2)]] if 3 <= n < 7 else []
            m = mfma(A, 0, n == 0, False)
            step(m[:10], tA(n, 1), waits={0: 'a%d0lo' % n, 6: 'a%d0hi' % n}); step(m[10:], [])
            m = mfma(A, 1, False, False)
            step(m[:bg], [], waits={0: 'a%d1lo' % n})
            lg.wait_all(); a('s_barrier')
            r = tA(n + 1, 0)
            run(r[:1]); step(m[bg:], r[1:] + kr)
        lg.seq = []
    else: run(reads_A(0, 0))
    for n in range(7 if o['atune'] else 0, 9):
        if n == 7 and o['tm']:
            assert not o['b8a']
            F2 = 204; QT = F[1]
            a(W0)
            run(interleave(mfma(A, 0, False, False), reads_A(7, 1), 0, 2))
            a(W0); a('s_barrier'); stC('B8')
            a(';WARM_ON')
            r0, r1 = reads_A(8, 0), reads_A(8, 1, F2)
            rr = []
            for idx in ([0], [3, 4], [5, 6], [1], [2], [7, 8], [9, 10]):
                rr += [r0[i] for i in idx] + [r1[i] for i in idx]
            run(interleave(mfma(A, 1, False, False), rr, 0, 2))
            stC('end 7,1', 3)
            m = []; qw = []
            for i, (tp, q) in enumerate([(tp, q) for tp in range(2) for q in range(3)]):
                for u in range(2):
                    t = 2 * tp + u; d = v(A + 4 * (3 * t + q), 4)
                    for st in (F[0], F2): m.append(MF % (d, v(st + 4 * t, 4), v(st + 16 + 4 * q, 4), d))
                    qw += cvt(QT + 4 * i + 2 * u, A + 4 * (3 * t + q))
                    if o['q64'] and 'q' not in o['hack']: qw[-1] += '\nds_write_b64 v%d, %s offset:%d' % (QA, v(QT + 4 * i + 2 * u, 2), q * 4096 + tp * 1024 + u * 512)
                if not o['q64']: qw[-1] += '\nds_write_b128 v%d, %s offset:%d' % (QA, v(QT + 4 * i, 4), q * 4096 + tp * 1024)
            m[0] = 's_waitcnt lgkmcnt(12)\n' + m[0]; m[4] = 's_waitcnt lgkmcnt(8)\n' + m[4]; m[8] = ('s_waitcnt lgkmcnt(%d)' % (1 if o['q64'] and o['qs'] <= 6 and 'q' not in o['hack'] else 0)) + '\n' + m[8]
            run(interleave(m, qw, o['qs'], 1))
            stC('Q issued', 3)
            if stamps == 3: a(W0); stC('Q done', 3)
            break
        if n == 8: stC('end 7,1', 3)
        a(W0)
        run(interleave(mfma(A, 0, n == 0, False), (['s_barrier'] if n == 8 and o['b8a'] else []) + reads_A(n, 1), 0, 2))
        if n < 8:
            a(W0)
            a('s_barrier')
            if n == 7: stC('B8')
            run(interleave(mfma(A, 1, False, False), reads_A(n + 1, 0) + (k_reads()[8 * (n - 4):8 * (n - 3)] if 4 <= n < 7 else []), 0, 2))
        else:
            stC('end 8,0', 3)
            a(W0)
            od = [(2 * tp + u, q) for tp in range(2) for q in range(3) for u in range(2)]
            qw = []
            for i, (t, q) in enumerate(od):
                qw += cvt(QT + 2 * i, A + 4 * (3 * t + q))
                if t & 1: qw[-1] += '\nds_write_b128 v%d, %s offset:%d' % (QA, v(QT + 2 * i - 2, 4), q * 4096 + (t >> 1) * 1024)
            run(interleave(mfma(A, 1, False, False, od), qw, 6, 2))
            stC('Q issued', 3)
            if stamps == 3: a(W0); stC('Q done', 3)
    if o['own3']:
        a('s_and_b32 s3, s21, 1\ns_lshl_b32 s3, s3, 6')
        for t in range(4): a('v_xor_b32 v%d, s3, v%d' % (WA + t, WA + t))
    if o['vf']:
        for t in range(4): a('v_add_u32 v%d, %d, v%d' % (250 + t, BASE2, WA + t))
    if o['uprio']: a('s_setprio %d' % o['uprio'])
    a('L_unit:')
    a(W0)
    a('s_barrier')
    stC('BQ')
    for kk in range(4):
        if o['klate']: run(k_reads(True)[3 * kk:3 * kk + 3])
        if o['q64'] == 1: a('ds_read2st64_b64 %s, v%d offset0:%d offset1:%d' % (v(QF + 4 * kk, 4), UA, 2 * kk, 2 * kk + 1))
        elif o['q64'] == 2: a('ds_read_b64 %s, v%d offset:%d\nds_read_b64 %s, v%d offset:%d' % (v(QF + 4 * kk, 2), UA, 1024 * kk, v(QF + 4 * kk + 2, 2), UA, 1024 * kk + 512))
        else: a('ds_read_b128 %s, v%d offset:%d' % (v(QF + 4 * kk, 4), UA, 1024 * kk))
    for kk in range(4):
        a('s_waitcnt lgkmcnt(%d)' % ((3 - kk) * (4 if o['klate'] else 2 if o['q64'] == 2 else 1)))
        for kt in range(3): a(MF % (v(S + 4 * kt, 4), v(KF + 16 * kt + 4 * kk, 4), v(QF + 4 * kk, 4), v(S + 4 * kt, 4) if kk else '0'))
    if o['bs']: a('s_barrier')
    if 's' in o['hack']: a('s_branch L_hs_skip')
    if 'h' in o['hack']: a('s_cmp_ge_u32 s20, 4\ns_cbranch_scc1 L_hs_skip')
    if o['mimic']:
        for rnd in range(2):
            for t in range(6): a('v_cvt_pk_bf16_f32 v%d, v%d, v%d' % (S + 2 * t + 1, S + 2 * t, S + 2 * t + 1))
            for t in range(6): a('v_lshlrev_b32 v%d, 16, v%d' % (S + 2 * t, S + 2 * t + 1))
            for t in range(6): a('v_and_b32 v%d, s25, v%d' % (S + 2 * t + 1, S + 2 * t + 1))
            if rnd == 0:
                for t in range(0, 12, 2): a('v_pk_mul_f32 v[%d:%d], v[%d:%d], s[26:27]' % (S + t, S + t + 1, S + t, S + t + 1))
    x, y = 6, 7
    a('v_max3_f32 v6, v%d, v%d, v%d\nv_max3_f32 v7, v%d, v%d, v%d' % (S, S + 1, S + 2, S + 3, S + 4, S + 5))
    a('v_max3_f32 v6, v6, v%d, v%d\nv_max3_f32 v7, v7, v%d, v%d\nv_max3_f32 v6, v6, v%d, v%d' % (S + 6, S + 7, S + 8, S + 9, S + 10, S + 11))
    def xl(op, first):
        a(first)
        a('v_permlane16_swap_b32 v6, v7\n%s v8, v6, v7\n%s v7, v6, v7\nv_permlane32_swap_b32 v8, v7\n%s v6, v8, v7' % (op, op, op))
    xl('v_max_f32', 'v_max_f32 v6, v6, v7\nv_mov_b32 v7, v6')
    a('v_mul_f32 v6, s50, v6')
    if o['pk']:
        for t in range(0, 12, 2): a('v_pk_fma_f32 v[%d:%d], v[%d:%d], s[50:51], v[6:7] op_sel_hi:[1,1,0] neg_lo:[0,0,1] neg_hi:[0,0,1]' % (S + t, S + t + 1, S + t, S + t + 1))
    else:
        for t in range(12): a('v_fma_f32 v%d, v%d, s50, -v6' % (S + t, S + t))
    for t in range(12): a('v_exp_f32 v%d, v%d' % (S + t, S + t))
    if o['pk']:
        a('v_pk_add_f32 v[6:7], v[%d:%d], v[%d:%d]\nv_pk_add_f32 v[4:5], v[%d:%d], v[%d:%d]' % (S, S + 1, S + 2, S + 3, S + 4, S + 5, S + 6, S + 7))
        a('v_pk_add_f32 v[6:7], v[6:7], v[%d:%d]\nv_pk_add_f32 v[4:5], v[4:5], v[%d:%d]\nv_pk_add_f32 v[4:5], v[4:5], v[6:7]' % (S + 8, S + 9, S + 10, S + 11))
    else:
        a('v_add_f32 v4, v%d, v%d\nv_add_f32 v5, v%d, v%d' % (S, S + 1, S + 2, S + 3))
        for t in range(4, 12, 2): a('v_add_f32 v4, v4, v%d\nv_add_f32 v5, v5, v%d' % (S + t, S + t + 1))
    xl('v_add_f32', 'v_add_f32 v6, v4, v5\nv_add_f32 v7, v4, v5')
    a('v_rcp_f32 v6, v6')
    if o['pk']:
        for t in range(0, 12, 2): a('v_pk_mul_f32 v[%d:%d], v[%d:%d], v[6:7] op_sel_hi:[1,0]' % (S + t, S + t + 1, S + t, S + t + 1))
    else:
        for t in range(12): a('v_mul_f32 v%d, v%d, v6' % (S + t, S + t))
    for t in range(6): a('v_cvt_pk_bf16_f32 v%d, v%d, v%d' % (P + t, S + 2 * t, S + 2 * t + 1))
    if o['hack']: a('L_hs_skip:')
    if 'e' not in o['hack'] and 'y' not in o['hack']:
        a('buffer_store_dwordx4 %s, v25, s[%d:%d], s49 offen sc1' % (v(P, 4), SWS, SWS + 3))
        a('buffer_store_dwordx2 %s, v26, s[%d:%d], s49 offen offset:1024 sc1' % (v(P + 4, 2), SWS, SWS + 3))
    if o['pds']: a('ds_write_b128 v255, %s\nds_write_b64 v31, %s offset:1024' % (v(P, 4), v(P + 4, 2)))
    stC('C at BP')
    a('s_barrier')
    a('s_cmp_ge_u32 s20, 4\ns_cbranch_scc1 L_help2')
    if o['cprio'] or o['uprio']: a('s_setprio %d' % o['cprio'])
    stC('BP')
    a('; ---- V*Wo: 8 pieces of 64 rows x 128 columns, results kept in registers as bf16 operands')
    def reads_W(p, ks):
        vp = (p >> 2) * 2 + (PC(p) & 1); tg = 'w%d%d' % (p, ks)
        r = ['ds_read_b128 %s, v%d offset:%d' % (v(F[ks] + 16 + 4 * q, 4), VA + ks, 12288 * vp + 2048 * q) for q in range(3)] + (wreads(F[ks], 16384 * WSLOT['w%d' % p] + 8192 * ks) if WSLOT['w%d' % p] < 4 else wreads(F[ks], 8192 * ks, 250))
        if (p, ks) == (0, 0) and o['fine0']:
            r = [r[0], r[3], r[4], r[1], r[2]] + r[5:]
            return [ds(x_, 'f%d' % i) for i, x_ in enumerate(r)]
        return [ds(x_, tg + ('lo' if i < 7 else 'hi')) for i, x_ in enumerate(r) if i >= 3 or not (o['alt'] and p & 1)]
    def wW(p, ks, more=()): return {0: 'f2', 1: 'f3', 2: 'f4', 3: 'f6', 6: 'f8', 9: 'f10'} if (p, ks) == (0, 0) and o['fine0'] else {0: ['w%d%dlo' % (p, ks)] + list(more), 6: ['w%d%dhi' % (p, ks)]}
    def vwpos(base, i, kt): return base + ([0, 2, 4][kt] if i % 2 == 0 else [8, 10, 6][kt])
    HACC = [B, A, B, A]; HDST = [C, C, B, B]
    def cvt_W(i): return [x_ for t in range(4) for kt in range(3) for x_ in cvt(vwpos(HDST[i] + 12 * t, i, kt), HACC[i] + 4 * (3 * t + kt))]
    def xb(nm): return [('s_waitcnt vmcnt(0)\n' if nm == o['ack'] and 'w' not in o['hack'] else '') + 's_barrier'] if nm in XN else []
    def xbc(nm):
        r_ = xb(nm)
        if r_ and o['vdry']: r_ = ['s_cbranch_execz %s\n%s\nL_xa_%s:' % ('L_vwret' if nm in o['vseg'] else 'L_xa_' + nm, r_[0], nm)]
        return r_
    def ins(lst, i, x_): return lst[:i] + [x_] + lst[i:]
    OS = [[108, 112, 116, 120, 124], [48, 52, 56, 60, 64], [80, 84, 88, 92, 96], [100, 128, 132, 68, 72]]; OACC = [[232, 236, 240], [32, 36, 40]]
    def rdO(kq):
        tg = 'os%d' % kq
        return [ds('ds_read_b128 %s, v%d offset:%d' % (v(OS[kq][kt], 4), OVA + (kq & 1), 12288 * (kq >> 1) + 2048 * kt), tg) for kt in range(3)] + \
               [ds('ds_read_b64_tr_b16 %s, v%d offset:%d' % (v(OS[kq][3 + e] + 2 * hh, 2), OA, 16384 * WSLOT['o%d' % e] + 4096 * kq + 512 * hh), tg) for e in range(2) for hh in range(2)]
    mfma_O = [MF % (v(OACC[e][kt], 4), v(OS[kq][kt], 4), v(OS[kq][3 + e], 4), v(OACC[e][kt], 4) if kq else '0') for kq in range(4) for e in range(2) for kt in range(3)]
    cvt_O = [x_ for e in range(2) for kt in range(3) for x_ in cvt(vwpos(VWO, e, kt), OACC[e][kt])]
    PFULL = [10, 11, 22, 23]; PHALF = [4, 5, 6, 7]; POF = [24, 21]; POH = [8, 9]
    padr = []
    for i in range(4):
        padr.append('s_xor_b32 s3, s53, %d\ns_mul_i32 s3, s3, 9216\ns_add_u32 s3, s3, s55' % i)
        padr.append('v_add_u32 v%d, s3, v25' % PFULL[i]); padr.append('v_add_u32 v%d, s3, v26' % PHALF[i])
        if i < 2:
            padr.append(('s_xor_b32 s3, s52, %d\ns_mul_i32 s3, s3, 9216\ns_add_u32 s3, s3, s55\n' % i if o['alt'] == 3 else '') + 's_add_u32 s3, s3, s54\nv_add_u32 v%d, s3, v25' % POF[i]); padr.append('v_add_u32 v%d, s3, v26' % POH[i])
    a('s_mul_i32 s55, s18, 4608\ns_and_b32 s54, s22, 1\ns_mul_i32 s54, s54, 4608\ns_sub_u32 s54, s54, s55\ns_add_u32 s55, s55, %d\ns_lshr_b32 s53, s16, 1\ns_xor_b32 s53, s53, s22\ns_xor_b32 s53, s53, 3' % L_P)
    if o['alt'] == 3: a('s_and_b32 s52, s22, 2\ns_xor_b32 s52, s52, s53')
    def preads(dst, fa, ha, qt, tag):
        off = 1536 * qt
        return [ds('ds_read_b128 %s, v%d offset:%d' % (v(dst[0], 4), fa[0], off), tag),
                ds('ds_read_b64 %s, v%d offset:%d' % (v(dst[1], 2), ha[0], off + 1024), tag),
                ds('ds_read_b64 %s, v%d offset:%d' % (v(dst[1] + 2, 2), ha[1], off + 1024), tag),
                ds('ds_read_b128 %s, v%d offset:%d' % (v(dst[2], 4), fa[1], off), tag)]
    PB = [[80 + 4 * k for k in range(6)], [108 + 4 * k for k in range(6)], [80 + 4 * k for k in range(6)]]
    def reads_F(qt): return preads(PB[qt][:3], PFULL[:2], PHALF[:2], qt, 'p%da' % qt) + preads(PB[qt][3:], PFULL[2:], PHALF[2:], qt, 'p%db' % qt)
    if o['vdry']: a('L_xa_BP:')
    run(reads_W(0, 0))
    for p in range(8):
        i = PC(p) >> 1; first = PC(p) & 1 == 0
        if p < 2: ex0, ex1 = (padr[:5], padr[5:10]) if p == 0 else (padr[10:], [] if o['vf'] == 1 else ['v_add_u32 v%d, %d, v%d' % (250 + t, L_P, WA + t) for t in range(4)])
        elif o['alt']:
            cv = cvt_W({3: 0, 4: 1, 7: 2}[p]) if p in (3, 4, 7) else []
            k_ = 12 if p != 4 else 10
            ex0, ex1 = cv[:k_], cv[k_:]
        else:
            cv = cvt_W(i - 1)
            ex0, ex1 = (cv[:6], cv[6:12]) if p % 2 == 0 else (cv[12:18], cv[18:])
        if 'E' in o['hack'] and p >= 6:
            st_ = lambda h: 'buffer_store_dwordx4 v[244:247], v25, s[%d:%d], s%d offen sc1\ns_add_u32 s%d, s%d, %d' % (SWS, SWS + 3, 56 + h, 56 + h, 56 + h, o['MQ'])
            if p == 6: ex1 = ex1 + [st_(0)]
            else: ex0 = ex0 + [st_(1)]; ex1 = ex1 + [st_(0)]
        step(mfma(HACC[i], 0, first, True), reads_W(p, 1), extra=ex0, xstart=(4 if p % 2 == 0 else 0) if not o['alt'] else 1, waits=wW(p, 0))
        step(mfma(HACC[i], 1, False, True), reads_W(p + 1, 0) if p < 7 else reads_F(0), extra=ex1, xstart=1, waits=wW(p, 1), pre=xbc('w%d' % p))
        stC('s%d' % p if p < 7 else 'VW end', 2 if p < 7 else 1)
    RACC = [[244, 248, 252, 104], [32, 36, 40, 44], [244, 248, 252, 104]]
    PK = [76, 12]; OP = [[108, 112, 116], [120, 124, 48], [52, 56, 60]]
    def fm(qt, t, k): return MF % (v(RACC[qt][t], 4), v([C, B][k // 3] + 12 * t + 4 * (k % 3), 4), v(PB[qt][k], 4), v(RACC[qt][t], 4) if k else '0')
    def store_F(qt, h):
        if o['own3'] == 2:
            pk = [76, 32, 44][qt] if h == 0 else PK[1]
            return cvt(pk, RACC[qt][2 * h]) + cvt(pk + 2, RACC[qt][2 * h + 1]) + ['buffer_store_dwordx4 %s, v%d, s[%d:%d], s%d offen sc1' % (v(pk, 4), 25 if h else 1, SWS, SWS + 3, 34 + 2 * qt + h)]
        if o['own3']:
            return cvt(PK[h], RACC[qt][2 * h]) + cvt(PK[h] + 2, RACC[qt][2 * h + 1]) + \
                ['buffer_store_dwordx4 %s, v%d, s[%d:%d], s%d offen sc1' % (v(PK[h], 4), 25 if h else 1, SWS, SWS + 3, 34 + 2 * qt + h)] + \
                (['s_mov_b64 exec, s[30:31]\nds_write_b128 v27, %s offset:%d\ns_mov_b64 exec, -1' % (v(PK[h], 4), 1024 * qt)] if h == 0 else [])
        l_ = 'L_own%d%d' % (qt, h)
        ownw = '\ns_cmp_lg_u32 s48, %d\ns_cbranch_scc1 %s\nds_write_b128 v27, %s offset:%d\n%s:' % (h, l_, v(PK[h], 4), 1024 * qt, l_) if o['own'] else ''
        if o['own'] and o['ownx']: ownw = '\ns_mov_b64 exec, s[%d:%d]\nds_write_b128 v27, %s offset:%d\ns_mov_b64 exec, -1' % (30 + 2 * h, 31 + 2 * h, v(PK[h], 4), 1024 * qt)
        return cvt(PK[h], RACC[qt][2 * h]) + cvt(PK[h] + 2, RACC[qt][2 * h + 1]) + \
               ['buffer_store_dwordx4 %s, v25, s[%d:%d], s%d offen sc1\ns_add_u32 s%d, s%d, %d' % (v(PK[h], 4), SWS, SWS + 3, 56 + h, 56 + h, 56 + h, o['MQ']) + ownw]
    def oflag(d):
        if o['ocl'] == 1: return flag(30, 256 + d)
        return FOP + ' v29, v2, s[%d:%d], 0 offen offset:%d sc1' % (SWS, SWS + 3, d)
    def sflag(off): return 's_atomic_add s40, s[14:15], s42\ns_atomic_add s40, s[14:15], s43'
    if 'N' in o['hack']:
        sG = store_F
        def store_F(qt, h): return sG(qt, h)[:4]
    if 'E' in o['hack']:
        sF = store_F
        def store_F(qt, h):
            r_ = sF(qt, h)
            if (qt, h) == (0, 1): return r_[:4] + ['s_waitcnt vmcnt(2)\n' + flag(28, 0)]
            if (qt, h) == (1, 1): return r_[:4] + ['s_waitcnt vmcnt(1)\n' + flag(28, 128)]
            return r_ if qt == 2 else r_[:4]
    def flag(reg, off): return FOP + ' v29, v%d, s[%d:%d], 0 offen offset:%d sc1' % (reg, SWS, SWS + 3, off)
    m = [fm(0, t, k) for k in range(6) for t in range(4)]
    c3 = cvt_W(3)
    c3 = [c3[6 * t + j] for t in range(4) for j in (4, 5)] + [c3[6 * t + j] for t in range(4) for j in range(4)]
    step(m[:19], reads_F(1), extra=c3, xstart=3, waits={0: ['p0a'], 11: ['p0b']})
    step(m[19:], [], extra=[st_(1)] if 'E' in o['hack'] else [])
    if o['vdry']: a('s_cbranch_execz L_vwret')
    stC('R0', 2)
    m = [fm(1, t, k) for t in range(4) for k in range(6)]
    step(m[:17], reads_F(2), extra=store_F(0, 0) + store_F(0, 1), xstart=2 if o['asap'] & 2 else 3, xper=1 if o['asap'] & 2 else 0, waits={0: ['p1a'], 3: ['p1b']})
    step(m[17:], [], extra=store_F(1, 0), xper=2 if o['asap'] & 2 else 0)
    stC('R1', 2)
    xo = o['xo']
    m = [fm(2, t, k) for t in range(4) for k in range(6)]
    step(m[:xo], [], extra=store_F(1, 1), xstart=2 if o['asap'] & 4 else 4, xper=1 if o['asap'] & 4 else 0, waits={0: ['p2a'], 3: ['p2b']})
    seq = rdO(0) + rdO(1); k1 = min(14, 24 - xo)
    def ownw(qts): return 's_mov_b64 exec, s[30:31]\n' + '\n'.join('ds_write_b128 v27, %s offset:%d' % (v([76, 32, 44][q_], 4), 1024 * q_) for q_ in qts) + '\ns_mov_b64 exec, -1'
    step(m[xo:], seq[:k1], extra=store_F(2, 0) + ([ownw([1])] if o['own3'] == 2 else []), xstart=max(0, (16 if o['asap'] & 4 else 18) - xo), xper=1 if o['asap'] & 4 else 0, pre=xb('O') + (['s_waitcnt vmcnt(2)\n' + flag(28, 0)] if o['f0at'] == 'R2' else []))
    stC('R2', 2)
    op = [x_ for qt in range(3) for x_ in preads(OP[qt], POF, POH, qt, 'po')]
    f0 = 's_waitcnt vmcnt(3)\n' + flag(28, 0)
    f1 = 's_waitcnt vmcnt(3)\n' + flag(28, 128)
    step(mfma_O[:12], seq[k1:] + rdO(2) + rdO(3), extra=store_F(2, 1) + ([flag(28, 256)] if 'c' in o['hack'] else []), xstart=1 if o['asap'] & 1 else 4, xper=1 if o['asap'] & 1 else 0, waits={0: ['os0'], 6: ['os1']}, pre=[f0] if o['ef'] >= 1 and 'E' not in o['hack'] and o['f0at'] == 'O' else [])
    def fo(k, first): return [MF % (v(SP + 4 * qt, 4), v(VWO + 4 * k, 4), v(OP[qt][k], 4), '0' if first else v(SP + 4 * qt, 4)) for qt in range(3)]
    if o['fo2']:
        assert o['ef'] == 2 and not o['e2'] and o['own3'] and 'E' not in o['hack']
        mo = mfma_O[12:15] + mfma_O[18:21] + mfma_O[15:18] + mfma_O[21:24]
        step(mo[:8], op[:10], waits={0: ['os2'], 3: ['os3']}, extra=[f1], xstart=min(7, o['e0']))
        step(mo[8:], op[10:], extra=cvt_O[:6], xstart=1)
        stC('O', 2)
        lg.wait('po')
        f0_, f2_, f1_ = fo(0, True), fo(2, False), fo(1, False)
        def ost(qt): return cvt(VWO + 2 * qt, SP + 4 * qt) + ['buffer_store_dwordx2 %s, v%d, s[%d:%d], s%d offen sc1' % (v(VWO + 2 * qt, 2), 3 if o['o64'] else 26, SWS, SWS + 3, [58, 56, 57][qt])]
        step(f0_, [], extra=cvt_O[6:])
        run([f2_[0], f1_[0], f2_[1], f1_[1], f2_[2], f1_[2]])
        if 'r' in o['hack']: a('s_mov_b64 exec, 0xfc'); a(oflag(0)); a('s_mov_b64 exec, -1\ns_cmp_lg_u32 s21, 3\ns_cbranch_scc1 L_hr\ns_sleep 60\nL_hr:\ns_nop 7')
        run(ost(0) + ost(1) + ost(2))
    else:
        step(mfma_O[12:], op, waits={0: ['os2'], 6: ['os3']}, extra=[f1] if o['ef'] >= 2 and 'E' not in o['hack'] else [], xstart=o['e0'])
        stC('O', 2)
        def fo(k, first): return [MF % (v(SP + 4 * qt, 4), v(VWO + 4 * k, 4), v(OP[qt][k], 4), '0' if first else v(SP + 4 * qt, 4)) for qt in range(3)]
        run(cvt_O[:6])
        step(fo(0, True), [], extra=cvt_O[6:], waits={0: ['po']})
        run(fo(2, False) + fo(1, False))
        if o['ef'] == 0: a('s_waitcnt vmcnt(4)'); a(flag(28, 0))
        if o['ef'] < 2: a('s_waitcnt vmcnt(3)'); a(flag(28, 128))
        if o['e2']: a('s_waitcnt vmcnt(1)'); a(flag(28, 256))
        if 'r' in o['hack']: a('s_mov_b64 exec, 0xfc'); a(oflag(0)); a('s_mov_b64 exec, -1\ns_cmp_lg_u32 s21, 3\ns_cbranch_scc1 L_hr\ns_sleep 60\nL_hr:')
        for qt in range(3):
            run(cvt(VWO + 2 * qt, SP + 4 * qt) + ['buffer_store_dwordx2 %s, v%d, s[%d:%d], s58 offen sc1\ns_add_u32 s58, s58, %d' % (v(VWO + 2 * qt, 2), 3 if o['o64'] else 26, SWS, SWS + 3, o['OT'] * (2 if o['o64'] else 1))])
    stC('final end')
    if o['sent']:
        assert (o['rep'] == 1 or o['ack1']) and o['atom']
        a('s_mov_b64 exec, %s' % ('4' if o['shc'] & 2 else '0x24' if o['shc'] & 4 else '0xfcfc' if o['rep'] > 1 else '0xfc')); a(oflag(8 if 'r' in o['hack'] else 0)); a('s_mov_b64 exec, -1')
    if o['own3'] == 2:
        assert o['xe'] in ('E', 'G', 'H')
        a(ownw([0, 2]))
    if o['own'] and not (o['own3'] == 2 and o['xe'] == 'H'): a(W0)
    if o['xe'] == 'E': a('s_barrier')
    if not o['e2'] and 'c' not in o['hack']: a('s_waitcnt vmcnt(%d)' % ((5 if o['ef'] == 0 else 4) + o['sent'] - ('E' in o['hack']))); a(sflag(256) if o['sat'] & 1 else flag(28, 256))
    if o['xe'] == 'H': a((W0 + '\n' if o['own3'] == 2 else '') + 's_barrier')
    if 'b' not in o['hack']: a('s_waitcnt vmcnt(%d)' % (o['sent'] + (0 if o['e2'] or 'c' in o['hack'] or o['sat'] & 1 else 1)))
    a('s_mov_b64 exec, %s' % ('4' if o['ack1'] and o['sent'] and o['o64'] else '0xfcfc')); a(flag(30, 256 + (64 - OOFF) * o['sent']).replace(', 0 offen', ', s41 offen' if o['ack1'] == 2 and o['sent'] and o['o64'] else ', 0 offen')); a('s_mov_b64 exec, -1')
    if o['xe'] == 'G': a('s_barrier')
    stC('flags sent')
    a(';WARM_OFF')
    stC.flush(0)
    a('s_endpgm')
    a('; ==== helpers')
    if o['padH']: a('.fill %d, 4, 0xbf800000' % o['padH'])
    a('L_help:')
    a('s_sub_u32 s18, s20, 5\ns_sub_u32 s52, s20, 1')
    a('v_lshlrev_b32 v25, 4, v0\nv_lshlrev_b32 v26, 3, v0')
    a('v_mov_b32 v12, 0\nv_mov_b32 v13, 0\nv_mov_b32 v14, 0\nv_mov_b32 v15, 0\nv_mov_b32 v29, 1\nv_mov_b32 v28, 0x7ff00000\nv_mov_b32 v30, v28\nv_mov_b32 v3, v28')
    a(W0)
    srd(SWS, 14, 'ws')
    if o['sent'] and o['clr'] == 'start': clears(False, 40, 44)
    def dry_run(name):
        a('; walk the arithmetic of a reduction once with no lane active (no memory instruction on that path) so that its code is cached')
        a('s_mov_b64 exec, 0\ns_branch L_dry_%s\nL_dryret_%s:\ns_mov_b64 exec, -1' % (name, name))
    def warm_run(at):
        if o['dry'] and at == o['dryat'][0]: dry_run('mp')
        if o['dry'] and at == o['dryat'][1]: dry_run('op')
        if o['warm']:
            for c_, x_ in enumerate(o['wat']):
                if x_ == at: a('s_mov_b64 exec, 0\ns_branch L_wchain%d\nL_wret%d:\ns_mov_b64 exec, -1' % (c_, c_))
    if o['vdry']:
        a('s_cmp_lg_u32 s20, 6\ns_cbranch_scc1 L_nl\ns_cmp_ge_u32 s2, 32\ns_cbranch_scc1 L_nl\ns_lshl_b32 s3, s2, 12')
        for j in range(4): a('buffer_store_dwordx4 v[12:15], v25, s[%d:%d], s3 offen offset:%d sc1' % (SWS, SWS + 3, 1024 * j))
        a('L_nl:\ns_mov_b64 exec, 0\ns_cmp_eq_u32 s20, 5\ns_cbranch_scc1 L_xa_BP\ns_cmp_eq_u32 s20, 6\ns_cbranch_scc1 L_xa_%s\ns_branch L_xa_%s' % tuple(o['vseg']))
        a('L_vwret:\ns_mov_b64 exec, -1\ns_waitcnt lgkmcnt(0)\ns_nop 7')
        a('s_cmp_eq_u32 s20, 7\ns_cbranch_scc1 L_h2\ns_cmp_eq_u32 s20, 5\ns_cbranch_scc1 L_h0\ns_cmp_ge_u32 s2, 32\ns_cbranch_scc1 L_h0')
        if o['hs2']: a('s_waitcnt vmcnt(0)\ns_mov_b64 exec, 1\nglobal_atomic_add v12, v29, s[12:13] sc1\ns_mov_b64 exec, -1')
        else:
            a('s_lshl_b32 s3, s2, 2\nv_mov_b32 v16, s3\ns_waitcnt vmcnt(0)')
            a('s_mov_b64 exec, 1\nglobal_store_dword v16, v29, s[12:13] sc1\ns_mov_b64 exec, -1')
    else:
        a('s_cmp_eq_u32 s20, 7\ns_cbranch_scc1 L_h2')
        if o['ldr'] == [-1, -1]:
            a('s_cmp_eq_u32 s20, 5\ns_cbranch_scc1 L_h0')
            a('s_cmp_ge_u32 s2, 32\ns_cbranch_scc1 L_h0')
            a('s_lshl_b32 s3, s2, 12')
            assert G_FL == 0
            for j in range(4): a('buffer_store_dwordx4 v[12:15], v25, s[%d:%d], s3 offen offset:%d sc1' % (SWS, SWS + 3, 1024 * j))
            if o['hs2']: a('s_waitcnt vmcnt(0)\ns_mov_b64 exec, 1\nglobal_atomic_add v12, v29, s[12:13] sc1\ns_mov_b64 exec, -1')
            else:
                a('s_lshl_b32 s3, s2, 2\nv_mov_b32 v16, s3\ns_waitcnt vmcnt(0)')
                a('s_mov_b64 exec, 1\nglobal_store_dword v16, v29, s[12:13] sc1\ns_mov_b64 exec, -1')
    def leader(at):
        if o['ldr'] == [-1, -1] or at not in o['ldr']: return
        l_ = a.label('L_nl')
        a('s_cmp_lg_u32 s19, 0\ns_cbranch_scc1 %s' % l_)
        if at == o['ldr'][0]:
            a('s_lshl_b32 s3, s2, 12')
            for j in range(4): a('buffer_store_dwordx4 v[12:15], v25, s[%d:%d], s3 offen offset:%d sc1' % (SWS, SWS + 3, 1024 * j))
        if at == o['ldr'][1]: a('s_waitcnt vmcnt(0)\ns_mov_b64 exec, 1\nglobal_atomic_add v12, v29, s[12:13] sc1\ns_mov_b64 exec, -1')
        a(l_ + ':')
    if o['ldr'] != [-1, -1]: a('s_xor_b32 s19, s20, 6\ns_or_b32 s19, s19, s23'); leader(-1)
    a('L_h0:')
    unit_setup()
    for c in range(9 + o['b8a']):
        a('s_barrier')
        leader(c)
        if c == 4: run(k_reads())
    a('s_branch L_unit')
    a('L_h2:')
    if not o['cpfL']: code_prefetch()
    def odd_prefetch():
        a(kvbase('s3') + '\ns_lshr_b32 s17, s2, 7\ns_lshl_b32 s17, s17, %d\ns_add_u32 s3, s3, s17\ns_lshl_b32 s3, s3, 4\ns_bfe_u32 s17, s2, 0x40003\ns_add_u32 s3, s3, s17\ns_mul_i32 s3, s3, %d\ns_add_u32 s3, s3, 1024' % (KL, 16 * 1152))
        a('v_mul_u32_u24 v7, 1152, v1\nv_add_u32 v7, s3, v7\ns_mov_b64 exec, 0xffff\nglobal_load_dword v37, v7, s[8:9]\ns_mov_b64 exec, -1')
    def tlb_touch():
        a('s_lshl_b32 s3, s2, 7\nv_lshlrev_b32 v7, 21, v0\nv_add_u32 v7, s3, v7\nv_add_u32 v8, 0x1f0000, v7')
        a('s_mov_b64 exec, 0x7f\nglobal_load_dword v32, v8, s[14:15]')
        if o['tlb'] in (1, 3):
            a('s_mov_b64 exec, 7\nglobal_load_dword v33, v7, s[8:9]')
            a('s_mov_b64 exec, 3\nglobal_load_dword v34, v7, s[4:5]\nglobal_load_dword v35, v7, s[6:7]')
        a('s_mov_b64 exec, 1\nglobal_load_dword v36, v7, s[10:11]\ns_mov_b64 exec, -1')
    if o['tlb'] in (1, 2): tlb_touch()
    hs = 's_load_dwordx16 s[84:99], s[12:13], 0%s\ns_load_dwordx16 s[28:43], s[12:13], 64%s'
    warm_run(-1)
    for c in range(10 + o['b8a'] + o['bs']):
        a('s_barrier')
        warm_run(c)
        if c == o['hsbar']: a('s_load_dword s84, s[12:13], 0' if o['hs2'] else hs % ('', ''))
        if c == o['oddpf']: odd_prefetch()
        if c == o['cpf2']: code_prefetch('L_pc2')
        if c == 0 and o['tlb'] == 3: tlb_touch()
        if c == 8 and o['tlb'] == 4: tlb_touch()
    if o['hs2']:
        a('s_waitcnt lgkmcnt(0)\ns_cmp_ge_u32 s84, 32\ns_cbranch_scc1 L_hsok\ns_mov_b32 s54, %d\nv_mov_b32 v12, 0' % SPIN)
        if 'C' in o['hack']: a('v_mov_b32 v20, 160\ns_mov_b64 exec, 1\nglobal_atomic_add v20, v29, s[12:13] sc1\ns_mov_b64 exec, -1')
        a('L_hs:\nglobal_load_dword v13, v12, s[12:13] sc1\ns_sub_u32 s54, s54, 1\ns_cbranch_scc1 L_hsok\ns_waitcnt vmcnt(0)\nv_cmp_gt_u32 vcc, 32, v13\ns_cbranch_vccnz L_hs\nL_hsok:')
    else:
        a('s_mov_b32 s54, %d\nL_hs:\ns_waitcnt lgkmcnt(0)' % SPIN)
        and16(84); and16(28); a('s_and_b32 s84, s84, s28')
        a('s_cbranch_scc1 L_hsok\ns_sub_u32 s54, s54, 1\ns_cbranch_scc1 L_hsok')
        if 'C' in o['hack']: a('v_mov_b32 v20, 160\ns_mov_b64 exec, 1\nglobal_atomic_add v20, v29, s[12:13] sc1\ns_mov_b64 exec, -1')
        a(hs % (' glc', ' glc')); a('s_branch L_hs\nL_hsok:')
    a('s_barrier')
    if o['oddpf'] == 11: odd_prefetch()
    if o['cpf2'] == 11: code_prefetch('L_pc2')
    a('L_help2:')
    run(xb('w0'))
    a('s_mul_i32 s17, s18, 3072')
    srd(SOUT, 10, 'out')
    a('s_lshl_b32 s3, s2, 9\ns_lshl_b32 s53, s18, 7\ns_add_u32 s62, s3, s53\ns_add_u32 s66, s14, s62\ns_addc_u32 s67, s15, 0')
    a('s_and_b32 s3, s2, 0xe7\ns_lshl_b32 s3, s3, 9\ns_add_u32 s53, s53, s3\n' + ('' if o['atom'] else 's_lshl_b32 s3, s22, 2\ns_add_u32 s53, s53, s3\n') + 'v_lshlrev_b32 v21, 12, v0')
    a('s_mul_i32 s55, s2, %d\ns_mul_i32 s56, s18, %d\ns_add_u32 s55, s55, s56\ns_add_u32 s55, s55, %d\ns_add_u32 s56, s55, 4096' % (o['MO'], o['MQ'], G_PM))
    a('s_lshl_b32 s59, s23, 1\ns_lshr_b32 s3, s21, 2\ns_add_u32 s59, s59, s3\ns_mul_i32 s59, s59, 3\ns_add_u32 s59, s59, s18\ns_mul_i32 s59, s59, %d' % (16 * 1152))
    a('s_lshl_b32 s3, s22, 8\ns_add_u32 s59, s59, s3\ns_and_b32 s3, s21, 3\ns_lshl_b32 s3, s3, 6\ns_add_u32 s59, s59, s3')
    def pfetch(d):
        a('s_add_u32 m0, s17, %d\ns_xor_b32 s58, s2, %d\ns_mul_i32 s58, s58, 9216\ns_add_u32 s58, s58, s17\ns_add_u32 s58, s58, %d' % (L_P + 9216 * (3 - d), d << 3, G_P))
        for j in range(3):
            if 'e' not in o['hack'] and 'x' not in o['hack']: a('buffer_load_dwordx4 v25, s[%d:%d], s58 offen offset:%d sc1 lds' % (SWS, SWS + 3, 1024 * j))
    xs = [x_ for x_ in XN[:-1] if x_[0] == 'w' and x_ != 'w0']
    k = 0
    while True:
        nm = xs[k]; k += 1
        run(xb(nm))
        if nm == o['ack']:
            if o['sat'] & 2:
                a('s_mov_b32 s40, 1')
                for d in (1, 2, 3): a('s_xor_b32 s3, s62, %d\ns_atomic_add s40, s[14:15], s3' % (d << 12))
            else:
                a('s_mov_b64 exec, 15' + ('\ns_bitset0_b64 exec, s22' if o['noself'] else '') + '\n' + FOP + ' v29, v21, s[%d:%d], s53 offen sc1\ns_mov_b64 exec, -1' % (SWS, SWS + 3))
            stH('P flag sent')
        if o['ownp'] and not o['pds'] and nm == o['ownat']: pfetch(0)
        if o['sent'] and nm == o['clr']: clears()
        if nm == o['poll0']: break
    assert xs.index(o['ack']) < k and (o['vf'] == 1 or ALLN.index(xs[k]) >= ALLN.index('w5' if o['vf'] else 'w4')) and k < len(xs) - 1
    a('s_mov_b32 s54, %d\ns_mov_b32 s52, %d' % (SPIN, len(xs) - 1 - k))
    a('L_pp:\n' + ('s_load_dword s84' if o['atom'] else 's_load_dwordx4 s[84:87]') + ', s[66:67], 0 glc')
    a('s_cmp_eq_u32 s52, 0\ns_cbranch_scc1 L_pp1\ns_barrier\ns_sub_u32 s52, s52, 1\nL_pp1:')
    a('s_sub_u32 s54, s54, 1\ns_cbranch_scc1 L_ppok\ns_waitcnt lgkmcnt(0)')
    a(('' if o['atom'] else 's_add_u32 s84, s84, s85\ns_add_u32 s86, s86, s87\ns_add_u32 s84, s84, s86\n') + 's_cmp_%s_u32 s84, %d\ns_cbranch_scc0 L_pp\nL_ppok:' % ('le' if 'a' in o['hack'] else 'ge', 4 - o['noself']))
    stH('P flags ok')
    if 'S' in o['hack']:
        a('s_mul_i32 s19, s18, %d\nL_sg:\ns_cmp_eq_u32 s19, 0\ns_cbranch_scc1 L_sgd\ns_cmp_eq_u32 s52, 0\ns_cbranch_scc1 L_sgd\ns_barrier\ns_sub_u32 s52, s52, 1\ns_sub_u32 s19, s19, 1\ns_branch L_sg\nL_sgd:' % o.get('sk', 1))
    for d in range(o['ownp'], 4): pfetch(d)
    if o['sent'] and o['clr'] == 'p': clears()
    a('L_pb:\ns_cmp_eq_u32 s52, 0\ns_cbranch_scc1 L_pbd\ns_barrier\ns_sub_u32 s52, s52, 1\ns_branch L_pb\nL_pbd:')
    if 'S' in o['hack']: a('s_cmp_lg_u32 s18, 0\ns_cbranch_scc1 L_now')
    a('s_waitcnt vmcnt(%d)' % (2 if o['sent'] and o['clr'] == 'p' else 0))
    if 'S' in o['hack']: a('L_now:')
    stH('P landed')
    a('s_barrier')
    if o['sent'] and o['clr'] == 'w7' and 'Z' not in o['hack']: clears()
    a('s_waitcnt vmcnt(0)\ns_barrier')
    if 'f' in o['hack']: a('s_endpgm')
    a('s_mov_b32 s54, %d' % SPIN)
    a('s_lshl_b32 s3, s18, 10\ns_add_u32 s3, s3, %d\nv_add_u32 v27, s3, v25' % L_F)
    if o['shc'] & 1: a('s_andn2_b32 s62, s62, 512\ns_add_u32 s66, s14, s62\ns_addc_u32 s67, s15, 0')
    reduce('mp', 8, 4, MOFF, 25, 's59', stH)
    if stamps:
        a('s_waitcnt vmcnt(0)'); stH('end'); stH.flush(7)
    a('L_end:\ns_endpgm\nL_codeend:')
    a(kernel_desc(KN, 256, 256, o.get('nsgpr', 102)))
    if o['warm']:
        def size(l):
            t = l.split(';')[0].strip()
            if not t or t.endswith(':') or t.startswith('.'): return 0
            return 8 if t.startswith(('v_mfma', 'ds_', 'buffer_', 'global_', 'v_cvt_pk', 'v_pk_', 'v_max3', 's_load')) else 4.6
        out = []; on = False; acc = 0; pads = []
        for l in a.lines:
            if l == ';WARM_ON': on = True; acc = 1e9; continue
            if l == ';WARM_OFF': on = False; continue
            if on and acc >= o['wstep'] and size(l) and not l.startswith(('ds_write', 's_mov_b64 exec', 'buffer_atomic', 's_cbranch', 's_cselect', 's_addc')):
                pads.append(len(out)); out.append(None); acc = 4
            out.append(l); acc += size(l)
        n = len(pads); NC = len(o['wat']); per = -(-n // NC)
        order = list(range(n - 1, -1, -1))
        for j, k in enumerate(order):
            last = (j + 1) % per == 0 or j + 1 == n
            out[pads[k]] = 'L_wp%d:\ns_cbranch_execz %s' % (k, 'L_wret%d' % (j // per) if last else 'L_wp%d' % order[j + 1])
        txt = '\n'.join(out)
        for c_ in range(NC): txt = txt.replace('L_wchain%d' % c_, 'L_wp%d' % order[c_ * per] if c_ * per < n else 'L_wret%d' % c_)
        a.lines = txt.split('\n')
    else: a.lines = [l for l in a.lines if not l.startswith(';WARM')]
    a.lines = hazard.pad(a.lines, False)
    return a.text()
if __name__ == '__main__':
    import json
    name = sys.argv[1] if len(sys.argv) > 1 else 'p8_v11'
    opt = json.loads(sys.argv[2]) if len(sys.argv) > 2 else None
    open(name + '.s', 'w').write(gen(0, opt))
    open(name + '_st.s', 'w').write(gen(1, opt))
    open(name + '_st2.s', 'w').write(gen(2, opt))
    open(name + '_st3.s', 'w').write(gen(3, opt))
    open(name + '_st4.s', 'w').write(gen(4, opt))
```

```python
import sys, math, struct
from asmlib import *
import hazard
from gen_f16 import Cnt, interleave, f2i, v

L_W = 0; L_X0 = 49152; XOFF = [0, 12288, 49152]; L_K = 73728; L_Q = 49152; L_P = 73728; L_F = 159744; L_V = 110592
G_FL = 0x0
G_P = 0x40000
G_PM = 0x400000
G_PO = 0xD00000
SX, SWQ, SK, SV, SWO, SWS, SOUT = 24, 28, 32, 36, 40, 44, 48
SPIN = 1 << 16
MF = 'v_mfma_f32_16x16x32_bf16 %s, %s, %s, %s'

HEADER = """; Kernarg layout (64 bytes, pointers only, base s[0:1]):
;
; Hand-offs: data is stored write-through (sc1); after the stores are acknowledged the producer bumps a counter of the consumer
;   (device-scope atomic); the consumer polls it and then loads with sc1.  Counters are zeroed inside the launch by workgroups 0..31,
;   which report through a counter in debug.  The last, small hand-off is signalled before the acknowledgement: its slots are first filled with
;   a NaN marker in this launch, and a consumer that still sees a NaN waits for the acknowledged counter and reads again.
;   Nothing depends on workgroup placement except speed; every poll loop is bounded.
;            | 110592 V (4x12K) | 159744 own partial chunks.  Tiles are XOR-swizzled on the global side of the DMA."""

def gen(stamps=0, opt=None):
    o = dict(order='qqqKqqqqqq', win=24, codepf=True, rot='g3', pk=True, lprio=0, afterB8=1, afterBQ=4, ack='w1', poll0='w3', cprio=0, prog=False, x4=True, xo=14, ef=2, xe='', sent=1, clr='w7', e2=0, nt={}, split=1, uprio=0, early_flag=True, outsc='sc1', oddsc=None, btr=0, opre=0, o64=1, ack1=1, vdry=0, sub='', hoist=1, pre=0, lead=12, mimic=0, hs2=1, fo2=1, asap=7, repn=['op', 'mp'], ownlast=0, ocl=1, shc=1, ox4=1, sm=0, r3=0, ldr=[-1, -1], guard=[60, 44], leadk=1, lead0=2, vseg=['w2', 'w5'], first_half=False, hsbar=8, poll='s', psleep=0, tlb=0, remap=0, oddpf=8, rot2=1, lateat=3, own=1, ownx=1, tramp=[11], far=0, alt=3, klate=1, pds=1, own3=1, bs=0, vf=0, sat=0, dry=1, dryat=[-1, 0], cpf2=-9, qseq='', f0at='O', MQ=7168, MO=21504, OT=8192, kvmap=9, bm=0, cpfL=1, acc=1, warm=0, wstep=960, wat=[-1, 0, 1], padL=0, padC=0, padH=0, b8a=0, tm=1, q64=2, stlb=0, hack='', atom=1, rep=1, wsw=1, ownp=1, atune=0, oe=0, hsbar_=0, ownat='w3', e0=8, e1='end', m0o=1, rsl=6, qs=5, fine0=1, wqfirst=0, skip=['w0'], noself=1)
    if opt: o.update(opt)
    if stamps in (2, 3): o['pre'] = 0
    if o['klate']: o['order'] = 'q' * 9; o['q64'] = 3; o.setdefault('pre8', ['k0'] if 'plan' in o else ['k0', 'v0'])
    a = Asm()
    a(HEADER)
    a('; @launch grid=(256,1,1) block=(512,1,1) lds=163840')
    a(HEAD); a(kernel_begin(KN))
    def run(seq):
        for x in seq:
            if callable(x): x()
            else: a(x)
    class St:
        def __init__(s, base, n, r0): s.base = base; s.n = n; s.k = 0; s.r0 = r0
        def __call__(s, name='x', lvl=1):
            if ((stamps >= lvl and lvl < 2) or stamps == lvl) and (stamps != 5 or name in ('start', 'final end')):
                assert s.k < s.n, name
                a('; stamp %d %s' % (s.base + s.k, name))
                a('s_memrealtime s[%d:%d]' % (s.r0 + 2 * s.k, s.r0 + 1 + 2 * s.k)); s.k += 1
        def flush(s, wave):
            if stamps and s.k:
                l_ = a.label('L_nst')
                a('s_cmp_lg_u32 s20, %d\ns_cbranch_scc1 %s' % (wave, l_))
                a('s_waitcnt lgkmcnt(0)\nv_mov_b32 v31, 0\ns_lshl_b32 s3, s2, 9\ns_add_u32 s3, s3, %d' % (STAMP_OFF + 8 * s.base))
                for i in range(s.k):
                    a('v_mov_b32 v254, s%d\nv_mov_b32 v255, s%d' % (s.r0 + 2 * i, s.r0 + 1 + 2 * i))
                    a('buffer_store_dwordx2 v[254:255], v31, s[%d:%d], s3 offen offset:%d' % (SWS, SWS + 3, 8 * i))
                a(l_ + ':')
    stC = St(0, 21, 60); stL = St(24, 17, 68); stH = St(44, 6, 32)
    W0 = 's_waitcnt lgkmcnt(0)'
    def XS(c): return [0, 12288, 49152, 24576][(c + 2) % 4] if o['lead'] else XOFF[c % 3]
    KL = o['kvmap'] - 9; KJ = 1 << KL
    def kvbase(dst):
        src = 's21'
        if KL == 0: return 's_lshl_b32 %s, s21, 1' % dst
        if KL == 3: return 's_mov_b32 %s, s21' % dst
        return 's_and_b32 %s, s21, %d\ns_add_u32 %s, %s, s21' % (dst, 7 & ~(KJ - 1), dst, dst)
    def PC(p): return (p & 4) | ((p & 1) << 1) | ((p >> 1) & 1) if o['alt'] else p
    FOP = 'buffer_atomic_add' if o['atom'] else 'buffer_store_dword'
    MOFF = (4 if o['rep'] > 1 else 64) if o['atom'] else 32
    OOFF = 4 if o['rep'] > 1 else 0
    assert o['rep'] in (1, 2) and (o['atom'] or o['rep'] == 1)
    stC('start')
    a('s_cmp_ge_u32 s2, 256\ns_cbranch_scc1 L_end')
    a('s_load_dwordx2 s[%d:%d], s[0:1], %d' % (SX, SX + 1, SLOT['x']))
    a('s_load_dwordx2 s[%d:%d], s[0:1], %d' % (SWQ, SWQ + 1, SLOT['wq']))
    a('s_load_dwordx4 s[4:7], s[0:1], %d' % SLOT['k'])
    a('s_load_dwordx8 s[8:15], s[0:1], %d' % SLOT['wo'])
    if o['remap'] == 1: a('s_lshr_b32 s3, s2, 2\ns_and_b32 s3, s3, 0x18\ns_xor_b32 s2, s2, s3')
    if o['remap'] == 2: a('s_lshr_b32 s3, s2, 3\ns_and_b32 s3, s3, 0x18\ns_lshl_b32 s21, s2, 2\ns_and_b32 s21, s21, 0xe0\ns_and_b32 s2, s2, 7\ns_or_b32 s2, s2, s3\ns_or_b32 s2, s2, s21')
    if o['remap'] == 3: a('s_xor_b32 s2, s2, 0x18')
    if o['remap'] == 4: a('s_bfe_u32 s3, s2, 0x10002\ns_and_b32 s21, s2, 3\ns_lshl1_add_u32 s3, s21, s3\ns_and_b32 s2, s2, 0xf8\ns_or_b32 s2, s2, s3')
    if o['remap'] == 5: a('s_xor_b32 s2, s2, 1')
    a('v_lshrrev_b32 v1, 6, v0\nv_and_b32 v0, 63, v0\nv_readfirstlane_b32 s20, v1')
    if o['wsw']: a('s_xor_b32 s20, s20, 4')
    a('s_and_b32 s21, s2, 7\ns_bfe_u32 s22, s2, 0x20003\ns_lshr_b32 s23, s2, 5')
    a('v_and_b32 v1, 15, v0\nv_lshrrev_b32 v2, 4, v0')
    def srd(r, src, n):
        if src is not None: a('s_mov_b32 s%d, s%d\ns_mov_b32 s%d, s%d' % (r, src, r + 1, src + 1))
        a('s_mov_b32 s%d, %d\ns_mov_b32 s%d, 0x20000' % (r + 2, SIZES[n], r + 3))
    H0 = 's_and_b32 s16, s22, 2\ns_add_u32 s16, s16, s22\ns_xor_b32 s16, s16, s23'
    if o['rot2'] == 1: H0 = 's_and_b32 s16, s22, 2\ns_xor_b32 s16, s16, s23\ns_and_b32 s16, s16, 3\ns_lshl_b32 s16, s16, 1'
    if o['rot2'] == 2: H0 = 's_and_b32 s16, s22, 2\ns_lshl_b32 s16, s16, 1\ns_xor_b32 s16, s16, s23'
    if o['rot2'] == 3: H0 = 's_and_b32 s16, s23, 3\ns_lshl_b32 s16, s16, 1\ns_and_b32 s3, s22, 2\ns_add_u32 s3, s3, s22\ns_xor_b32 s16, s16, s3'
    if o['rot2'] == 4: H0 = 's_lshr_b32 s16, s22, 1\ns_xor_b32 s16, s16, s23\ns_and_b32 s16, s16, 1\ns_lshl_b32 s16, s16, 2'
    if o['alt'] == 1: H0 = 's_xor_b32 s16, s22, s23\ns_and_b32 s3, s16, 2\ns_and_b32 s16, s16, 3\ns_add_u32 s16, s16, s3'
    if o['alt'] == 2: H0 = 's_and_b32 s16, s22, 2\ns_xor_b32 s16, s16, s23\ns_and_b32 s3, s16, 2\ns_and_b32 s16, s16, 3\ns_add_u32 s16, s16, s3'
    if o['alt'] == 3: H0 = 's_and_b32 s16, s22, 1\ns_xor_b32 s16, s16, s23\ns_and_b32 s16, s16, 3'
    if o['alt'] == 3 and o['r3'] == 1: H0 = 's_and_b32 s16, s23, 1\ns_lshl_b32 s16, s16, 1'
    if o['alt'] == 3 and o['r3'] == 2: H0 = 's_xor_b32 s16, s22, s23\ns_and_b32 s16, s16, 1'
    if o['alt'] == 3 and o['r3'] == 3: H0 = 's_and_b32 s16, s23, 3'
    if o['alt'] == 3 and o['r3'] == 4: H0 = 's_lshr_b32 s16, s22, 1\ns_xor_b32 s16, s16, s23\ns_and_b32 s16, s16, 3'
    if o['alt'] == 4: H0 = 's_and_b32 s16, s22, 1\ns_xor_b32 s16, s16, s23\ns_and_b32 s16, s16, 3\ns_and_b32 s3, s22, 2\ns_lshl1_add_u32 s16, s3, s16'
    for i_ in range(len(o['tramp'])): a('s_cmp_eq_u32 s20, %d\ns_cbranch_scc1 L_tr%d' % (i_, i_))
    a('s_cmp_lt_u32 s20, 4\ns_cbranch_scc1 L_comp')
    a('s_cmp_gt_u32 s20, 4\ns_cbranch_scc1 L_help')
    def gpoll(name, nw, off, single=False):
        sl = ('s_sleep %d\n' % o['psleep']) if o['psleep'] else ''
        if name == 'op' and o['ocl'] > 1:
            ls = [0, 3] if o['ocl'] == 2 else [0, 1, 2, 3]
            a('L_op:')
            for i, l_ in enumerate(ls): a('s_load_dword s%d, s[66:67], %d glc' % (84 + i, 128 * l_ + 8))
            a('s_sub_u32 s54, s54, 1\ns_cbranch_scc1 L_opok\ns_waitcnt lgkmcnt(0)')
            for i in range(1, len(ls)): a('s_add_u32 s84, s84, s%d' % (84 + i))
            a('s_cmp_lt_u32 s84, 32\ns_cbranch_scc1 L_op\nL_opok:')
        elif o['rep'] == 2 and not single and name in o['repn']:
            a(W0 + '\ns_mov_b64 s[84:85], 0\ns_load_dword s85, s[66:67], %d glc\ns_sleep %d' % (off + 64, o['rsl']))
            a('L_%s:' % name)
            for r_ in range(2):
                a('s_load_dword s%d, s[66:67], %d glc\ns_waitcnt lgkmcnt(1)\ns_max_u32 s30, s84, s85\ns_cmp_ge_u32 s30, %d\ns_cbranch_scc1 L_%sok' % (84 + r_, off + 64 * r_, nw, name))
            a('s_sub_u32 s54, s54, 1\ns_cbranch_scc0 L_%s\nL_%sok:' % (name, name))
        elif o['atom']:
            a('L_%s:\n%ss_load_dword s84, s[66:67], %d glc\ns_sub_u32 s54, s54, 1\ns_cbranch_scc1 L_%sok\ns_waitcnt lgkmcnt(0)' % (name, sl, off, name))
            a('s_cmp_lt_u32 s84, %d\ns_cbranch_scc1 L_%s\nL_%sok:' % (nw, name, name))
        elif o['poll'] == 'p':
            a(W0)
            for i in range(0, nw, 2): a('s_mov_b64 s[%d:%d], 0' % (84 + i, 85 + i))
            a('L_%s:\ns_load_dwordx%d s[84:%d], s[66:67], %d glc\n%ss_sub_u32 s54, s54, 1\ns_cbranch_scc1 L_%sok' % (name, nw, 83 + nw, off, sl, name))
            a('s_and_b64 s[30:31], s[84:85], s[86:87]')
            for i in range(4, nw, 2): a('s_and_b64 s[30:31], s[30:31], s[%d:%d]' % (84 + i, 85 + i))
            a('s_and_b32 s30, s30, s31\ns_cbranch_scc0 L_%s\nL_%sok:' % (name, name))
        elif o['poll'] == 's':
            a('L_%s:\n%ss_load_dwordx%d s[84:%d], s[66:67], %d glc\ns_sub_u32 s54, s54, 1\ns_cbranch_scc1 L_%sok\ns_waitcnt lgkmcnt(0)' % (name, sl, nw, 83 + nw, off, name))
            k = nw
            while k > 2:
                k //= 2
                for i in range(0, k, 2): a('s_and_b64 s[%d:%d], s[%d:%d], s[%d:%d]' % (84 + i, 85 + i, 84 + i, 85 + i, 84 + k + i, 85 + k + i))
            a('s_and_b32 s84, s84, s85\ns_cbranch_scc0 L_%s\nL_%sok:' % (name, name))
        else:
            a('v_and_b32 v19, %d, v0\nv_lshlrev_b32 v19, 2, v19' % (nw - 1))
            a('L_%s:\n%sbuffer_load_dword v18, v19, s[%d:%d], s62 offen offset:%d sc1\ns_sub_u32 s54, s54, 1\ns_cbranch_scc1 L_%sok\ns_waitcnt vmcnt(0)' % (name, sl, SWS, SWS + 3, off, name))
            a('v_cmp_ne_u32 vcc, 1, v18\ns_cbranch_vccnz L_%s\nL_%sok:' % (name, name))
    def code_prefetch(lab='L_pc'):
        if o['codepf']:
            a('s_getpc_b64 s[66:67]\n%s:\ns_sub_u32 s66, s66, %s-%s\ns_subb_u32 s67, s67, 0' % (lab, lab, KN))
            a('s_lshr_b32 s3, s2, 3\ns_lshl_b32 s3, s3, 7\nv_lshlrev_b32 v100, 12, v0\nv_add_u32 v100, s3, v100')
            a('v_mov_b32 v103, s67\nv_add_co_u32 v102, vcc, s66, v100\nv_addc_co_u32 v103, vcc, 0, v103, vcc')
            a('v_cmp_gt_u32 vcc, L_codeend-%s, v100\ns_and_saveexec_b64 s[64:65], vcc' % KN)
            a('global_load_dword v101, v[102:103], off')
            a('s_mov_b64 exec, s[64:65]')
    def clears(all12=False, va=4, vd=12):
        a('s_lshl_b32 s3, s23, 1\ns_and_b32 s58, s22, 1\ns_add_u32 s3, s3, s58\ns_mul_i32 s3, s3, 3\n' + ('' if all12 else 's_add_u32 s3, s3, s18\n') + 's_mul_i32 s58, s3, %d' % (4 * o['OT']))
        a('s_lshl_b32 s3, s21, 1\ns_lshr_b32 s59, s22, 1\ns_add_u32 s3, s3, s59\ns_lshl_b32 s3, s3, 9\ns_add_u32 s58, s58, s3\ns_add_u32 s58, s58, %d' % G_PO) if all12 else \
        a('s_lshl_b32 s3, s21, 1\ns_lshr_b32 s57, s22, 1\ns_add_u32 s3, s3, s57\ns_lshl_b32 s3, s3, 9\ns_add_u32 s58, s58, s3\ns_add_u32 s58, s58, %d' % G_PO)
        a('v_and_b32 v%d, 31, v0\nv_lshrrev_b32 v%d, 5, v0\nv_mul_u32_u24 v%d, %d, v%d\nv_lshl_add_u32 v%d, v%d, 4, v%d' % (va, va + 1, va + 1, o['OT'], va + 1, va, va, va + 1))
        if 'Y' in o['hack']: a('s_cmp_ge_u32 s21, 4\ns_cselect_b32 s58, 0x7ff00000, s58')
        for i in range(4): a('v_mov_b32 v%d, -1' % (vd + i))
        for i in range(6 if all12 else 2):
            if i: a('s_add_u32 s58, s58, %d' % (2 * o['OT']))
            a('buffer_store_dwordx4 v[%d:%d], v%d, s[%d:%d], s58 offen sc1' % (vd, vd + 3, va, SWS, SWS + 3))
            if all12: vm.issue('clr')
    a('; ==== loader: pulls its share of this code into L2, streams 9 chunks of x | wq (rotated start), then K, V parts and wo pieces')
    vm = Cnt(a, 'vmcnt', 63)
    XV, WV, OV, KV, DV, VV = 8, 12, 16, 20, 24, 28
    if o['lprio']: a('s_setprio %d' % o['lprio'])
    if o['cpfL']: code_prefetch()
    srd(SX, None, 'x'); srd(SWQ, None, 'wq')
    a('v_lshrrev_b32 v3, 3, v0\nv_and_b32 v4, 7, v0')
    def quad(base, step):
        a('v_xor_b32 v7, 64, v%d\nv_add_u32 v%d, %d, v7' % (base, base + 1, step))
        a('v_add_u32 v%d, %d, v%d\nv_add_u32 v%d, %d, v%d' % (base + 2, 2 * step, base, base + 3, 2 * step, base + 1))
    a('v_mul_u32_u24 v5, 1152, v3\nv_xor_b32 v32, v4, v2\nv_lshl_add_u32 v%d, v32, 4, v5' % XV)
    quad(XV, 8 * 1152 - 1024)
    a('v_lshlrev_b32 v6, 1, v2\nv_xor_b32 v6, v6, v1\nv_lshlrev_b32 v6, 4, v6')
    a('v_lshl_add_u32 v%d, v2, 13, v6' % WV)
    a('v_add_u32 v%d, %d, v%d' % (WV + 1, 4 * 8192 - 1024, WV))
    a('v_xor_b32 v7, 128, v%d\nv_add_u32 v%d, %d, v7\nv_add_u32 v%d, %d, v7' % (WV, WV + 2, 2 * (4 * 8192 - 1024), WV + 3, 3 * (4 * 8192 - 1024)))
    if o['rot'] == 'g3':
        a('s_add_u32 s17, s22, s23\ns_mul_i32 s3, s17, 43\ns_lshr_b32 s3, s3, 7\ns_mul_i32 s3, s3, 3\ns_sub_u32 s17, s17, s3\ns_mul_i32 s17, s17, 3')
    elif o['rot'] in ('g3x', 'g3y', 'g3b'):
        a('s_add_u32 s17, s22, s23\ns_mul_i32 s3, s17, 43\ns_lshr_b32 s3, s3, 7\ns_mul_i32 s3, s3, 3\ns_sub_u32 s17, s17, s3\ns_mul_i32 s17, s17, 3')
        if o['rot'] == 'g3x': a('s_add_u32 s17, s17, s21')
        else: a('s_lshr_b32 s3, s21, %d\ns_add_u32 s17, s17, s3' % (2 if o['rot'] == 'g3y' else 1))
        a('s_cmp_ge_u32 s17, 9\ns_cselect_b32 s3, 9, 0\ns_sub_u32 s17, s17, s3')
    elif o['rot'] == 'g4':
        a('s_add_u32 s17, s22, s23\ns_and_b32 s17, s17, 3\ns_mul_i32 s17, s17, 9\ns_lshr_b32 s17, s17, 2')
    elif o['rot'] == 'g2':
        a('s_add_u32 s17, s22, s23\ns_and_b32 s17, s17, 1\ns_mul_i32 s17, s17, 5')
    elif o['rot'] == 'g9':
        a('s_lshl_b32 s17, s22, 1\ns_add_u32 s17, s17, s23\ns_cmp_ge_u32 s17, 9\ns_cselect_b32 s3, 9, 0\ns_sub_u32 s17, s17, s3')
    else: a('s_mov_b32 s17, 0')
    a('s_mul_i32 s52, s23, 110592')
    if 'm' in o['hack']: a('s_lshl_b32 s53, s21, 9\ns_and_b32 s3, s22, 2\ns_lshl_b32 s3, s3, 11\ns_add_u32 s53, s53, s3\ns_and_b32 s3, s22, 1\ns_lshl_b32 s3, s3, 8\ns_add_u32 s53, s53, s3')
    elif 'n' in o['hack']: a('s_lshl_b32 s53, s21, 8\ns_lshl_b32 s3, s22, 11\ns_add_u32 s53, s53, s3')
    elif 'p' in o['hack']: a('s_lshl_b32 s53, s21, 10\ns_xor_b32 s3, s22, 3\ns_lshl_b32 s3, s3, 8\ns_add_u32 s53, s53, s3')
    elif KL: a(kvbase('s53') + '\ns_lshl_b32 s53, s53, 9\ns_lshr_b32 s3, s22, 1\ns_lshl_b32 s3, s3, %d\ns_add_u32 s53, s53, s3\ns_and_b32 s3, s22, 1\ns_lshl_b32 s3, s3, 8\ns_add_u32 s53, s53, s3' % o['kvmap'])
    else: a('s_lshl_b32 s53, s21, 10\ns_lshl_b32 s3, s22, 8\ns_add_u32 s53, s53, s3')
    a('s_waitcnt lgkmcnt(0)')
    stL('L kernarg')
    if o['stlb'] >= 1:
        a('s_lshl_b32 s57, s17, 19\ns_add_u32 s57, s57, s53\ns_load_dword s58, s[%d:%d], s57' % (SWQ, SWQ + 1))
    if o['stlb'] >= 2:
        a('s_mov_b32 s57, 0x200000\ns_mov_b32 s59, 0x400000')
        for base in (SWQ, 8, 4, 6): a('s_load_dword s58, s[%d:%d], 0\ns_load_dword s58, s[%d:%d], s57' % (base, base + 1, base, base + 1))
        for base in (SWQ, 8): a('s_load_dword s58, s[%d:%d], s59' % (base, base + 1))
    ndma = [0]
    def group(vreg, n, srd_, lds, tag, adv=None, dyn=None, so='s57'):
        seq = [('s_add_u32 m0, %s, %d' % (dyn, lds) if dyn else 's_mov_b32 m0, %d' % lds) + ('\ns_add_u32 s57, s57, %s' % adv if adv else '')]
        for j in range(n):
            def f(j=j):
                ndma[0] += 1
                if ndma[0] - 1 in o['tramp']:
                    i_ = o['tramp'].index(ndma[0] - 1)
                    a('; compute wave 0 passes through here on its way to L_comp, which fetches the loader code that follows early\ns_branch L_ov%d\nL_tr%d:\ns_branch L_comp\nL_ov%d:' % (i_, i_, i_))
                if len(vm.seq) >= o['guard'][0]:
                    a('s_waitcnt vmcnt(%d)' % o['guard'][1]); vm.seq = vm.seq[-o['guard'][1]:]
                a('buffer_load_dwordx4 v%d, s[%d:%d], %s offen offset:%d %s lds' % (vreg + j, srd_, srd_ + 3, so, 1024 * j, o['nt'].get({SX: 'x', SWQ: 'q', SK: 'k', SV: 'v', SWO: 'o'}[srd_] + tag[-1], o['nt'].get({SX: 'x', SWQ: 'q', SK: 'k', SV: 'v', SWO: 'o'}[srd_], '')))); vm.issue(tag)
            seq.append(f)
        return seq
    def g8(vreg, n, sb, lds, tag):
        seq = []
        for j in range(n):
            if j % 8 == 0: seq.append('s_mov_b32 m0, %d' % (lds + 1024 * j + 4096))
            def f(j=j):
                if len(vm.seq) >= o['guard'][0]:
                    a('s_waitcnt vmcnt(%d)' % o['guard'][1]); vm.seq = vm.seq[-o['guard'][1]:]
                a('global_load_lds_dwordx4 v%d, s[%d:%d] offset:%d' % (vreg + j, sb, sb + 1, 1024 * (j % 8) - 4096)); vm.issue(tag)
            seq.append(f)
        return seq
    subs = {}
    def call(name, groups, tag, setup):
        if name not in subs:
            t_ = ['L_sub_%s:' % name]
            for vreg, n, srd_, mb, mi, so, adv in groups:
                t_.append('s_add_u32 m0, %s, %d' % (mb, mi))
                if adv: t_.append('s_add_u32 %s, %s, %d' % (so, so, adv))
                for j in range(n): t_.append('buffer_load_dwordx4 v%d, s[%d:%d], %s offen offset:%d lds' % (vreg + j, srd_, srd_ + 3, so, 1024 * j))
            t_.append('s_setpc_b64 s[18:19]')
            subs[name] = '\n'.join(t_)
        n_ = sum(g_[1] for g_ in groups)
        def f():
            if len(vm.seq) + n_ > 62:
                a('s_waitcnt vmcnt(%d)' % (62 - n_)); vm.seq = vm.seq[-(62 - n_):]
            a('s_call_b64 s[18:19], L_sub_%s' % name)
            for _ in range(n_): vm.issue(tag)
        return [setup, f]
    def item_q(c):
        st = c % 3; tag = 'n%d' % c
        m0o = o['m0o'] and c >= o['lateat']
        sx = ['s_lshl_b32 s57, s17, 7\ns_add_u32 s57, s57, s52']
        for t in range(3): sx += group(40 + 4 * t if m0o and t else XV, 4, SX, L_X0 + XS(c) + 4096 * t, tag, 32 * 1152 if t and not m0o else None)
        sw = ['s_lshl_b32 s57, s17, 19\ns_add_u32 s57, s57, s53']
        for t in range(4): sw += group(52 + 4 * t if m0o and t else WV, 4, SWQ, L_W + 16384 * st + 4096 * t, tag + ('b' if c == 8 and t >= 2 and o['b8a'] else ''), 16 * 8192 if t and not m0o else None)
        seq = sw + sx if o['wqfirst'] else sx + sw
        if o['hoist'] >= 2 and m0o:
            seq = ['s_lshl_b32 s58, s17, 19\ns_add_u32 s58, s58, s53'] + sx
            for t in range(4): seq += group(52 + 4 * t if t else WV, 4, SWQ, L_W + 16384 * st + 4096 * t, tag, None, None, 's58')
        if o['pre'] == 1 and m0o:
            seq = []
            for t in range(3): seq += group(40 + 4 * t if t else XV, 4, SX, L_X0 + XS(c) + 4096 * t, tag, None, None, 's%d' % (72 + 2 * c))
            for t in range(4): seq += group(52 + 4 * t if t else WV, 4, SWQ, L_W + 16384 * st + 4096 * t, tag, None, None, 's%d' % (73 + 2 * c))
            return seq
        if o['pre'] == 2 and m0o:
            return g8(110, 12, 64 + 4 * c, L_X0 + XS(c), tag) + g8(122, 16, 66 + 4 * c, L_W + 16384 * st, tag)
        if 'q' in o['sub'] and m0o:
            seq = call('q', [(40 + 4 * t if t else XV, 4, SX, 's55', 4096 * t, 's57', 0) for t in range(3)] + [(52 + 4 * t if t else WV, 4, SWQ, 's56', 4096 * t, 's58', 0) for t in range(4)], tag,
                       's_lshl_b32 s57, s17, 7\ns_add_u32 s57, s57, s52\ns_lshl_b32 s58, s17, 19\ns_add_u32 s58, s58, s53\ns_mov_b32 s55, %d\ns_mov_b32 s56, %d' % (L_X0 + XS(c), L_W + 16384 * st))
        if o['qseq']:
            if c == 0: seq += ['s_mov_b32 s63, s17\ns_add_u32 s64, s17, 3\ns_cmp_eq_u32 s64, 9\ns_cselect_b32 s64, 0, s64\ns_add_u32 s65, s64, 3\ns_cmp_eq_u32 s65, 9\ns_cselect_b32 s65, 0, s65']
            if c < 8: seq += ['s_add_u32 s17, s%d, %s' % (63 + o['qseq'][:c + 1].count(o['qseq'][c + 1]), o['qseq'][c + 1])]
            assert o['qseq'][0] == '0' and sorted(o['qseq']) == sorted('012' * 3)
        else: seq += ['s_add_u32 s17, s17, 1\ns_cmp_eq_u32 s17, 9\ns_cselect_b32 s17, 0, s17']
        return seq
    def item_k():
        seq = ['s_lshr_b32 s3, s22, 1\n' + ('s_lshl_b32 s3, s3, %d\n' % KL if KL else '') + 's_add_u32 s57, s54, s3\ns_mul_i32 s57, s57, 12288']
        for t in range(6): seq += group(KV, 4, SK, L_K + 4096 * t, 'k0', None if t == 0 else (4096 if t != 3 else 16 * 12288 - 8192))
        return seq
    WSLOT = {'w0': 0, 'w1': 1, 'w2': 2, 'w3': 4.5, 'w4': 3, 'w5': 0, 'w6': 1, 'w7': 2, 'o0': 3, 'o1': 0}
    assert L_P == 4.5 * 16384
    if o['sm']: WSLOT.update({'w2': 3, 'w4': 2, 'w7': 3, 'o0': 2})
    SP2 = 3; BASE2 = L_P
    if o['vf']:
        WSLOT = {'w0': 9, 'w1': 0, 'w2': 1, 'w3': 2, 'w4': 3, 'w5': 0, 'w6': 1, 'w7': 2, 'o0': 3, 'o1': 0}
        SP2 = 0; BASE2 = L_V + 36864; assert BASE2 == 9 * 16384
        if o['vf'] == 2: WSLOT.update({'w4': 4.5, 'w5': 3, 'w6': 0, 'w7': 1, 'o0': 2, 'o1': 3})
    NEED = {'w3': 1, 'w4': 2, 'w5': 3, 'w6': 5, 'w7': 6}
    L_O1 = L_P
    STAGES = ['w0', 'w1', 'o0', 'o1', 'w2', 'w3', 'w4', 'w5', 'w6', 'w7']
    def item_v(vp):
        seq = ['s_lshr_b32 s3, s16, 2\ns_xor_b32 s3, s3, %d\n' % (vp >> 1) + ('s_lshl_b32 s3, s3, %d\n' % KL if KL else '') + 's_add_u32 s57, ' + ('s63' if 'd' in o['hack'] else 's54') + ', s3\ns_mul_i32 s57, s57, 12288\ns_xor_b32 s3, s16, %d\ns_and_b32 s3, s3, 1\ns_lshl_b32 s3, s3, 7\ns_add_u32 s57, s57, s3' % (vp & 1)]
        for b in range(2):
            seq += group(VV, 4, SV, L_V + 12288 * vp + 6144 * b, 'v%d' % vp, 16 * 12288 - 8192 if b else None)
            seq += group(VV, 2, SV, L_V + 12288 * vp + 6144 * b + 4096, 'v%d' % vp, 8192)
        if 'v' in o['sub']:
            seq = call('v', [(VV, 4, SV, 's55', 0, 's57', 0), (VV, 2, SV, 's55', 4096, 's57', 8192), (VV, 4, SV, 's55', 6144, 's57', 16 * 12288 - 8192), (VV, 2, SV, 's55', 10240, 's57', 8192)], 'v%d' % vp,
                       seq[0] + '\ns_mov_b32 s55, %d' % (L_V + 12288 * vp))
        return seq
    def item_w(p):
        lds = int(L_W + 16384 * WSLOT['w%d' % p])
        seq = ['s_xor_b32 s3, s16, %d\n' % PC(p) + ('s_and_b32 s57, s3, 4\ns_mul_i32 s57, s57, %d\ns_add_u32 s3, s3, s57\n' % (KJ - 1) if KL else '') + 's_mul_i32 s57, s3, %d\ns_add_u32 s57, s57, s60' % (64 * 1152)]
        for t in range(4): seq += group(68 + 4 * t if o['m0o'] and t else OV, 4, SWO, lds + 4096 * t, 'w%d' % p, 16 * 1152 if t and not o['m0o'] else None)
        if 'w' in o['sub']:
            assert o['m0o']
            seq = call('w', [(68 + 4 * t if t else OV, 4, SWO, 's55', 4096 * t, 's57', 0) for t in range(4)], 'w%d' % p, seq[0] + '\ns_mov_b32 s55, %d' % lds)
        return seq
    def item_o(e):
        lds = L_W + 16384 * WSLOT['o%d' % e]; seq = []
        for hf in range(2):
            seq += ['s_xor_b32 s3, %s, %d\n' % ('s59' if o['alt'] == 3 else 's16', 2 * e + hf) + ('s_and_b32 s57, s3, 4\ns_mul_i32 s57, s57, %d\ns_add_u32 s3, s3, s57\n' % (KJ - 1) if KL else '') + 's_mul_i32 s57, s3, %d\ns_add_u32 s57, s57, s62' % (64 * 1152)]
            for t in range(2): seq += group(DV, 4, SWO, lds + 8192 * hf + 4096 * t, 'o%d' % e, 32 * 1152 if t else None)
        return seq
    def item(nm):
        seq = {'v': item_v, 'w': item_w, 'o': item_o, 'k': lambda _: item_k()}[nm[0]](int(nm[1]))
        if nm[:2] in o.get('drop', []): return []
        assert not (nm[2:] and nm[0] in o['sub'])
        cut = {'v': 9, 'k': 16}.get(nm[0], 11)
        if nm[2:] == 'a': return seq[:cut] + ['s_mov_b32 s61, s57']
        if nm[2:] == 'b': return ['s_mov_b32 s57, s61'] + seq[cut:]
        return seq
    def late_setup():
        srd(SK, 4, 'k'); srd(SV, 6, 'v'); srd(SWO, 8, 'wo'); srd(SWS, 14, 'ws')
        if 'd' in o['hack']: srd(SV, SX, 'x'); srd(SWO, SX, 'x')
        if 'k' in o['hack']: srd(SK, SX, 'x')
        a('v_mul_u32_u24 v7, 1152, v2\nv_add_u32 v%d, v7, v6\nv_add_u32 v%d, %d, v%d' % (OV, OV + 1, 4 * 1152 - 1024, OV))
        a('v_xor_b32 v6, 128, v6\nv_add_u32 v7, v7, v6\nv_add_u32 v%d, %d, v7\nv_add_u32 v%d, %d, v7' % (OV + 2, 2 * (4 * 1152 - 1024), OV + 3, 3 * (4 * 1152 - 1024)))
        a('v_xor_b32 v6, v1, v2\nv_lshlrev_b32 v6, 4, v6\nv_lshl_add_u32 v%d, v2, 8, v6' % KV)
        for j in range(1, 4): a('v_xor_b32 v%d, %d, v%d' % (KV + j, 64 * j, KV))
        a('v_and_b32 v6, 1, v2\nv_lshlrev_b32 v6, 1, v6\nv_xor_b32 v6, v6, v4\nv_lshl_add_u32 v%d, v6, 4, v5' % DV)
        quad(DV, 8 * 1152 - 1024)
        a('v_lshlrev_b32 v6, 8, v3\nv_lshl_add_u32 v%d, v32, 4, v6' % VV)
        quad(VV, 8 * 256 - 1024)
        if o['m0o']:
            for base, src, n, st_ in ((40, XV, 3, 32 * 1152), (52, WV, 4, 16 * 8192), (68, OV, 4, 16 * 1152)):
                for t in range(1, n):
                    a('s_mov_b32 s3, %d' % (t * st_))
                    for j in range(4): a('v_add_u32 v%d, s3, v%d' % (base + 4 * t + j, src + j))
        if o['pre']:
            assert not o['qseq'] and o['lateat'] >= 3
            for c in range(o['lateat'], 9):
                if o['pre'] == 1: a('s_lshl_b32 s3, s17, 7\ns_add_u32 s%d, s3, s52\ns_lshl_b32 s3, s17, 19\ns_add_u32 s%d, s3, s53' % (72 + 2 * c, 73 + 2 * c))
                else:
                    a('s_lshl_b32 s3, s17, 7\ns_add_u32 s3, s3, s52\ns_add_u32 s%d, s%d, s3\ns_addc_u32 s%d, s%d, 0' % (64 + 4 * c, SX, 65 + 4 * c, SX + 1))
                    a('s_lshl_b32 s3, s17, 19\ns_add_u32 s3, s3, s53\ns_add_u32 s%d, s%d, s3\ns_addc_u32 s%d, s%d, 0' % (66 + 4 * c, SWQ, 67 + 4 * c, SWQ + 1))
                if c < 8: a('s_add_u32 s17, s17, 1\ns_cmp_eq_u32 s17, 9\ns_cselect_b32 s17, 0, s17')
        if o['pre'] == 2:
            for base, src, n, st_ in ((110, XV, 3, 32 * 1152), (122, WV, 4, 16 * 8192)):
                for t in range(n):
                    a('s_mov_b32 s3, %d' % (t * st_ + (4096 if t % 2 == 0 else 0)))
                    for j in range(4): a('v_add_u32 v%d, s3, v%d' % (base + 4 * t + j, src + j))
        a(H0)
        if o['alt'] == 3: a('s_and_b32 s59, s22, 2\ns_lshl1_add_u32 s59, s59, s16')
        a('s_lshl_b32 s54, s23, 5\n' + kvbase('s3') + '\ns_add_u32 s54, s54, s3')
        if 'd' in o['hack']: a('s_and_b32 s63, s23, 1\ns_lshl_b32 s63, s63, 5')
        a(('s_mov_b32 s60, 0 ; %d' if 'd' in o['hack'] else 's_mul_i32 s60, s3, %d') % (256 * 1152))
        a('s_add_u32 s62, s60, 1024\ns_lshl_b32 s3, s22, 8\ns_add_u32 s60, s60, s3')
    L0 = len(a.lines)
    nq = 0; nbar = 0; since = {}
    def bar():
        nonlocal nbar
        vm.wait('n%d' % nbar)
        if nbar in (1, 2, 3, 8): stL('L at B%d' % nbar, 2)
        if nbar < 4: stL('L at B%d' % nbar, 3)
        a('s_barrier'); nbar += 1
    kdone = 0
    if o['lead']:
        assert o['klate'] and not o['wqfirst'] and not o['sub']
        def split(seq, n):
            k = 0
            for i_, x_ in enumerate(seq):
                if callable(x_):
                    k += 1
                    if k == n: return seq[:i_ + 1], seq[i_ + 1:]
        run(item_q(0)); run(item_q(1))
        for c in range(2, 9):
            h_, r_ = split(item_q(c), o['lead']) if c >= o['lead0'] else ([], item_q(c))
            if 'q%d' % c in o.get('drop', []): h_, r_ = [], r_[-1:]
            run(h_); bar(); run(r_)
            if c + 1 == o['lateat']: late_setup()
        if o['leadk']: run(item('k0a')); kdone = 1
        bar()
    else:
        for t in o['order']:
            if t == 'q':
                while nbar < nq - 1 and nq >= 3: bar()
                seq = item_q(nq)
                if 'q%d' % nq in o.get('drop', []): seq = seq[-1:]
                if o['first_half'] and nq in (1, 2) and nbar == nq - 1:
                    run(seq[:16]); bar(); run(seq[16:])
                else: run(seq)
                sz = 28; nq += 1
                if nq <= 2: stL('L issued q%d' % (nq - 1), 3)
                if o['sent'] and o['clr'] == 'L%d' % nq: srd(SWS, 14, 'ws'); clears(True, 90, 92)
                if nq == o['lateat']: late_setup()
            elif t == 'K': run(item_k()); sz = 24
            elif t == 'V': run(item_v(0)); sz = 12
            elif t == 'W': run(item_v(1)); sz = 12
            for c in list(since): since[c] += sz
            if t == 'q': since[nq - 1] = 0
            while nbar < nq and since[nbar] >= o['win']: bar()
        while nbar < 8: bar()
    pre8 = o['pre8'] if 'pre8' in o else (['w0'] if 'V' in o['order'] else ['v0', 'w0'])
    assert all(it[:2] in (('k0', 'v0', 'v1', 'v2', 'w0', 'w1') if o['vf'] else ('k0', 'v0', 'v1', 'v2', 'v3', 'w0')) for it in pre8)
    seq = [x_ for it in pre8 for x_ in item('k0b' if kdone and it == 'k0' else it)]
    if o['b8a']:
        run(seq[:-10]); bar(); run(seq[-10:]); vm.wait('n8b'); a('s_barrier')
    else:
        run(seq); bar()
    XB = [('BQ', []), ('BP', ['v0', 'w0']), ('w0', ['v1', 'w1']), ('w1', ['w2']), ('w2', ['w3']), ('w3', ['v2', 'w4']),
          ('w4', ['v3', 'w5']), ('w5', ['w6']), ('w6', ['w7']), ('w7', []), ('O', ['o0', 'o1'])]
    if o['alt']:
        XB = [('BQ', []), ('BP', ['v0', 'w0']), ('w0', ['w1']), ('w1', ['v1', 'w2']), ('w2', ['w3']), ('w3', ['v2', 'w4']),
              ('w4', ['w5']), ('w5', ['v3', 'w6']), ('w6', ['w7']), ('w7', []), ('O', ['o0', 'o1'])]
    if o['klate']: XB[0] = ('BQ', ['k0'])
    if o['bs']: XB.insert(1, ('BS', []))
    for sk in o['skip']:
        i_ = [x_[0] for x_ in XB].index(sk)
        XB[i_ - 1] = (XB[i_ - 1][0], XB[i_ - 1][1] + XB[i_][1]); del XB[i_]
    XN = [x_[0] for x_ in XB]
    plan = o.get('plan') or {'B8': ['w0'], 'BQ': ['w1', 'v1', 'w2'], 'BP': ['w3', 'v2', 'w4'], 'w1': ['w5'], 'w2': ['v3', 'w6'], 'w3': ['w7'], 'w6': ['o0'], 'w7': ['o1']}
    if o['vf'] and not o.get('plan'): plan = {'B8': ['v0', 'w0'], 'BQ': ['w1', 'v1', 'w2', 'w3'], 'BP': ['v2', 'w4'], 'w1': ['v3'], 'w2': ['w5'], 'w3': ['w6'], 'w4': ['w7'], 'w6': ['o0'], 'w7': ['o1']}
    FREEAT = {'w0': 'B8', 'w1': 'B8', 'w2': 'BQ', 'w3': ('BS' if o['bs'] else 'BP') if o['klate'] else 'BQ', 'w4': 'BS' if o['bs'] else 'BP', 'w5': 'w1', 'w6': 'w2', 'w7': 'w3', 'o0': 'w5', 'o1': 'w6'}
    if o['vf']: FREEAT.update({'w2': 'B8', 'w3': 'BQ', 'w5': 'w2', 'w6': 'w3', 'w7': 'w4', 'v3': 'w1'})
    if o['vf'] == 2: FREEAT.update({'w5': 'BP', 'w6': 'w2', 'w7': 'w3', 'o0': 'w4', 'o1': 'w6'})
    if o['sm']: FREEAT.update({'w2': FREEAT['w4'], 'w4': 'BQ'})
    ALLN = ['B8', 'BQ', 'BS', 'BP'] + ['w%d' % i_ for i_ in range(8)] + ['O']
    names = ['B8'] + [x_[0] for x_ in XB]
    issued = set(x_[:2] for x_ in pre8 if x_[2:] != 'a') | ({'v0'} if 'V' in o['order'] else set()) | ({'v1'} if 'W' in o['order'] else set())
    last = 'B8'
    for nm, need in XB:
        for it in plan.get(last, []):
            assert it[:2] not in FREEAT or ALLN.index(FREEAT[it[:2]]) <= ALLN.index(last), (it, last)
            run(item(it))
            if it[2:] != 'a': issued.add(it[:2])
        assert all(x_ in issued for x_ in need), (nm, need)
        vm.wait(need)
        stL('L at ' + nm, 2)
        a('s_barrier'); last = nm
    assert len(issued) == 14 + o['klate']
    if o['hoist']:
        L_ = a.lines; i = L0
        while i < len(L_):
            if L_[i] == 's_barrier':
                j = i + 1
                while j < len(L_) and L_[j].startswith(('s_lshl', 's_lshr', 's_add_u32', 's_mul_i32', 's_xor', 's_and', 's_mov_b32')): j += 1
                k = i
                while L_[k - 1].startswith(('s_waitcnt vmcnt', 's_memrealtime', '; stamp')): k -= 1
                L_[k:j] = L_[i + 1:j] + L_[k:i + 1]
                i = j
            else: i += 1
    stL('L done')
    stL.flush(4)
    if o['padL']: a('s_branch L_padl\n.fill %d, 4, 0xbf800000\nL_padl:' % o['padL'])
    if 'f' in o['hack']: a('s_endpgm')
    if o['stlb']: a(W0)
    srd(SOUT, 10, 'out')
    a('s_lshl_b32 s52, s21, 1\ns_lshr_b32 s3, s22, 1\ns_add_u32 s52, s52, s3')
    if stamps == 4: a('s_min_u32 s52, s52, 11\ns_lshr_b32 s3, s52, 1\ns_and_b32 s75, s52, 1\ns_lshl_b32 s75, s75, 4\ns_or_b32 s75, s75, s3\ns_and_b32 s3, s2, 0xe8\ns_or_b32 s75, s75, s3')
    a('s_cmp_ge_u32 s52, 12\ns_cbranch_scc1 L_end')
    a('s_lshl_b32 s3, %s, 9\ns_add_u32 s62, s3, %d\ns_add_u32 s66, s14, s62\ns_addc_u32 s67, s15, 0' % ('s75' if stamps == 4 else 's2', G_FL + (0 if o['ocl'] > 1 else 384)))
    a('s_mov_b32 s54, %d' % SPIN)
    a('s_lshl_b32 s3, s23, 1\ns_and_b32 s53, s22, 1\ns_add_u32 s53, s53, s3')
    a('s_mul_i32 s55, s53, 12\ns_add_u32 s55, s55, s52\ns_mul_i32 s55, s55, %d\ns_add_u32 s55, s55, %d\ns_add_u32 s56, s55, 4096' % (o['OT'], G_PO))
    if o['o64']:
        a('s_cmp_ge_u32 s52, 6\ns_cselect_b32 s58, %d, 0\ns_mul_i32 s57, s53, 6\ns_add_u32 s57, s57, s52\ns_mul_i32 s57, s57, %d\ns_sub_u32 s57, s57, s58\ns_add_u32 s57, s57, 1024' % (48 * 1152 - 64, 8 * 1152))
    else:
        a('s_mul_i32 s58, s52, 43\ns_lshr_b32 s58, s58, 7\ns_mul_i32 s3, s58, 3\ns_sub_u32 s3, s52, s3')
        a('s_mul_i32 s57, s53, 3\ns_add_u32 s57, s57, s3\ns_mul_i32 s57, s57, %d\ns_lshl_b32 s58, s58, 5\ns_add_u32 s57, s57, s58\ns_add_u32 s57, s57, 1024' % (16 * 1152))
    if not o['ox4']: a('v_lshlrev_b32 v6, 3, v0')
    def and16(b):
        for i in range(0, 16, 4): a('s_and_b64 s[%d:%d], s[%d:%d], s[%d:%d]' % (b + i, b + 1 + i, b + i, b + 1 + i, b + 2 + i, b + 3 + i))
        a('s_and_b64 s[%d:%d], s[%d:%d], s[%d:%d]\ns_and_b64 s[%d:%d], s[%d:%d], s[%d:%d]\ns_and_b64 s[%d:%d], s[%d:%d], s[%d:%d]\ns_and_b32 s%d, s%d, s%d' % (
            b, b + 1, b, b + 1, b + 4, b + 5, b + 8, b + 9, b + 8, b + 9, b + 12, b + 13, b, b + 1, b, b + 1, b + 8, b + 9, b, b, b + 1))
    def reduce(name, nsrc, w, off, vaddr, outs, st=None):
        ox = o['ox4'] and w == 2
        nl, lw = (8, 4) if ox else (nsrc, w)
        per = nl // 2; sz = 256 * lw
        def ld(j): return 'buffer_load_dwordx%d %s, v%d, s[%d:%d], s%d offen offset:%d sc1' % (lw, v(32 + lw * j, lw), vaddr, SWS, SWS + 3, 55 + j // per, sz * (j % per))
        if ox:
            assert o['o64'] and o['acc'] == 1 and not o['bm']
            a('v_lshlrev_b32 v%d, 4, v0' % vaddr)
        if ('R' in o['hack'] and w == 4) or ('O' in o['hack'] and w == 2): a('s_mov_b32 s56, 0x7ff00000')
        osc = o['outsc'] if w == 4 or o['oddsc'] is None else o['oddsc']
        bt = o['btr'] & (1 if w == 4 else 2)
        if bt and w == 4:
            a('v_lshrrev_b32 v4, 2, v0\nv_and_b32 v5, 3, v0\nv_mul_u32_u24 v3, 1152, v4\nv_lshl_add_u32 v3, v5, 4, v3\nv_lshl_add_u32 v24, v5, 4, v4\nv_lshlrev_b32 v24, 2, v24')
        elif bt:
            a('v_lshrrev_b32 v4, 2, v0\nv_and_b32 v5, 3, v0\nv_mul_u32_u24 v3, 1152, v4\nv_lshl_add_u32 v3, v5, 3, v3\nv_lshl_add_u32 v24, v5, 4, v4\nv_lshlrev_b32 v24, 2, v24')
        elif ox: a('v_and_b32 v4, 3, v0\nv_lshrrev_b32 v5, 5, v0\nv_lshl_add_u32 v4, v4, 1, v5\nv_bfe_u32 v5, v0, 2, 3\nv_mul_u32_u24 v3, 1152, v4\nv_lshl_add_u32 v3, v5, 3, v3')
        elif o['o64'] and w == 2 and 'V' not in o['hack']: a('v_and_b32 v4, 7, v0\nv_lshrrev_b32 v5, 3, v0\nv_mul_u32_u24 v3, 1152, v4\nv_lshl_add_u32 v3, v5, 3, v3')
        elif 'U' in o['hack'] and w == 4: a('v_and_b32 v4, 7, v0\nv_lshrrev_b32 v5, 3, v0\nv_mul_u32_u24 v3, 1152, v4\nv_lshl_add_u32 v3, v5, 4, v3\ns_bitcmp1_b32 s59, 6\ns_cselect_b32 s3, %d, 0\ns_add_u32 s59, s59, s3' % (8 * 1152 - 64))
        elif 'W' in o['hack'] and w == 2: a('v_and_b32 v4, 7, v0\nv_lshrrev_b32 v5, 3, v0\nv_mul_u32_u24 v3, 1152, v4\nv_lshl_add_u32 v3, v5, 3, v3\ns_bitcmp1_b32 s57, 5\ns_cselect_b32 s3, %d, 0\ns_add_u32 s57, s57, s3' % (8 * 1152 - 32))
        elif 'V' in o['hack'] and w == 2: a('v_mov_b32 v3, 0x7ff00000')
        elif o['x4'] and w == 4: a('v_mul_u32_u24 v3, 1152, v1\nv_lshl_add_u32 v3, v2, 4, v3')
        else: a('v_mul_u32_u24 v3, 1152, v1\nv_lshl_add_u32 v3, v2, 3, v3')
        if o.get('dot'): a('s_mov_b32 s28, 0x00003f80\ns_mov_b32 s29, 0x3f800000')
        a('s_mov_b32 s29, 0xffff0000')
        if o['acc'] == 2: a('s_mov_b32 s28, 0x00003f80\ns_mov_b32 s31, 0x3f800000')
        if o['prog']:
            a('s_mov_b32 s63, 0')
            a('L_%s:\ns_load_dwordx%d s[84:%d], s[66:67], %d glc\ns_sub_u32 s54, s54, 1\ns_cselect_b32 s30, -1, 0\ns_waitcnt lgkmcnt(0)' % (name, nsrc, 83 + nsrc, off))
            k = nsrc; sh = 1
            while k > 1:
                for i in range(0, nsrc, 2 * sh):
                    if sh <= 4: a('s_lshl%d_add_u32 s%d, s%d, s%d' % (sh, 84 + i, 84 + i + sh, 84 + i))
                    else: a('s_lshl_b32 s%d, s%d, %d\ns_or_b32 s%d, s%d, s%d' % (84 + i + sh, 84 + i + sh, sh, 84 + i, 84 + i, 84 + i + sh))
                k //= 2; sh *= 2
            a('s_or_b32 s84, s84, s30\ns_and_b32 s84, s84, %d\ns_andn2_b32 s85, s84, s63\ns_cbranch_scc0 L_%s\ns_or_b32 s63, s63, s84' % ((1 << nsrc) - 1, name))
            for j in range(nsrc):
                a('s_bitcmp1_b32 s85, %d\ns_cbranch_scc0 L_%s_%d\n%s\nL_%s_%d:' % (j, name, j, ld(j), name, j))
            a('s_cmp_lg_u32 s63, %d\ns_cbranch_scc1 L_%s' % ((1 << nsrc) - 1, name))
            if st: st('flags ok')
            a('s_waitcnt vmcnt(0)')
        else:
            own = o['own'] and w == 4
            oe = own and o['oe'] and o['xe'] in ('E', 'G', 'H') and o['atom']
            if o['far']: a('s_branch L_far_%s\n.fill 300, 4, 0xbf800000\n.p2align 6\nL_far_%s:' % (name, name))
            if o['opre'] & (1 if w == 4 else 2): a('buffer_load_dword v22, v3, s[%d:%d], %s offen %s\ns_waitcnt vmcnt(0)' % (SOUT, SOUT + 3, outs, o.get('oprefl', '')))
            a(';WARM_ON')
            if o['xe']: a('s_barrier')
            if oe: a('ds_read_b128 v[32:35], v27')
            pm = o['bm'] >= (2 if w == 2 else 1) and o['bm'] != 3 or o['bm'] == 3 and w == 2
            full = (1 << nsrc) - 1
            if pm:
                a('s_mov_b32 s64, 0')
                a('L_%s:\ns_load_dword s84, s[66:67], %d glc\ns_sub_u32 s54, s54, 1\ns_cselect_b32 s30, %d, 0\ns_waitcnt lgkmcnt(0)' % (name, off, full))
                a('s_or_b32 s84, s84, s30\ns_andn2_b32 s85, s84, s64\ns_cbranch_scc0 L_%s\ns_mov_b32 s64, s84' % name)
                for j in range(nsrc):
                    a('s_bitcmp1_b32 s85, %d\ns_cbranch_scc0 L_%s_%d\n%s\nL_%s_%d:' % (j, name, j, 'ds_read_b128 v[32:35], v27' if own and j == 0 else ld(j), name, j))
                a('s_cmp_lg_u32 s64, %d\ns_cbranch_scc1 L_%s\ns_waitcnt vmcnt(0)' % (full, name))
                if o['sent'] and w == 2: a('s_mov_b32 s63, 0\ns_branch L_sum')
            else: gpoll(name, full if o['bm'] else (32 if w == 2 and o['o64'] else nsrc) - (1 if oe else 0), off)
            if stamps == 4: a('s_memrealtime s[68:69]')
            if st: st('flags ok')
            if o['sent'] and w == 2: a('s_mov_b32 s63, 0\nL_again:')
            if not pm or w == 2:
                for j in range(nl):
                    if j or not own: a(ld(j))
                if own and not oe: a('ds_read_b128 v[32:35], v27')
            if pm and w == 2: a('L_sum:')
            if o['dry']: a('L_dry_%s:' % name)
        order = list(range(1, nsrc)) + [0] if own and o['ownlast'] else list(range(nl))
        for jj, j in enumerate(order):
            if not o['prog'] and not (oe and j == 0): a(W0 if own and j == 0 else 's_waitcnt vmcnt(%d)' % (nl - 1 - j))
            if o['acc'] == 1:
                b_ = 32 + lw * j; tmp = 16 + 4 * (j & 1); j = jj
                for t in range(lw): a('v_lshlrev_b32 v%d, 16, v%d' % ((tmp if j else 8) + t, b_ + t))
                for t in range(lw): a('v_and_b32 v%d, s29, v%d' % ((b_ if j else 12) + t, b_ + t))
                if j:
                    for t in range(0, lw, 2): a('v_pk_add_f32 v[%d:%d], v[%d:%d], v[%d:%d]' % (8 + t, 9 + t, 8 + t, 9 + t, tmp + t, tmp + t + 1))
                    for t in range(0, lw, 2): a('v_pk_add_f32 v[%d:%d], v[%d:%d], v[%d:%d]' % (12 + t, 13 + t, 12 + t, 13 + t, b_ + t, b_ + t + 1))
                continue
            if o['acc'] == 2:
                b_ = 32 + w * j
                for t in range(w): a('v_dot2_f32_bf16 v%d, v%d, s28, %s' % (8 + t, b_ + t, 'v%d' % (8 + t) if j else '0'))
                for t in range(w): a('v_dot2_f32_bf16 v%d, v%d, s31, %s' % (12 + t, b_ + t, 'v%d' % (12 + t) if j else '0'))
                if j == nsrc - 1: a('s_nop 2')
                continue
            for t in range(w):
                src = 32 + w * j + t
                if j == 0: a('v_lshlrev_b32 v%d, 16, v%d\nv_and_b32 v%d, s29, v%d' % (8 + 2 * t, src, 9 + 2 * t, src))
                elif o.get('dot'): a('v_dot2_f32_bf16 v%d, v%d, s28, v%d\nv_dot2_f32_bf16 v%d, v%d, s29, v%d' % (8 + 2 * t, src, 8 + 2 * t, 9 + 2 * t, src, 9 + 2 * t))
                else: a('v_lshlrev_b32 v16, 16, v%d\nv_and_b32 v17, s29, v%d\nv_pk_add_f32 v[%d:%d], v[%d:%d], v[16:17]' % (src, src, 8 + 2 * t, 9 + 2 * t, 8 + 2 * t, 9 + 2 * t))
        if ox: a('v_permlane32_swap_b32 v8, v10\nv_permlane32_swap_b32 v9, v11\nv_permlane32_swap_b32 v12, v14\nv_permlane32_swap_b32 v13, v15\nv_pk_add_f32 v[8:9], v[8:9], v[10:11]\nv_pk_add_f32 v[12:13], v[12:13], v[14:15]')
        if o['sent'] and w == 2: a('v_cmp_u_f32 vcc, v8, v%d\n' % (9 if o['acc'] else 10) + 's_cbranch_vccnz L_retry\nL_accept:')
        if stamps == 4: a('s_memrealtime s[70:71]')
        for t in range(w): a('v_cvt_pk_bf16_f32 v%d, v%d, v%d' % ((8 + t, 8 + t, 12 + t) if o['acc'] else (8 + t, 8 + 2 * t, 9 + 2 * t)))
        if w == 4 and o['x4']:
            a('v_permlane32_swap_b32 v8, v10\nv_permlane32_swap_b32 v9, v11\nv_permlane16_swap_b32 v8, v10\nv_permlane16_swap_b32 v9, v11')
        if o['dry']: a('s_cbranch_execz L_dryret_%s' % name)
        if bt:
            for t in range(w): a('ds_bpermute_b32 v%d, v24, v%d' % (8 + t, 8 + t))
            a(W0)
        if w == 4 and o['x4']:
            a('buffer_store_dwordx4 v[8:11], v3, s[%d:%d], %s offen %s' % (SOUT, SOUT + 3, outs, osc))
        else:
            for t in range(w // 2): a('buffer_store_dwordx2 v[%d:%d], v3, s[%d:%d], %s offen offset:%d %s' % (8 + 2 * t, 9 + 2 * t, SOUT, SOUT + 3, outs, 32 * t, osc))
        a(';WARM_OFF')
        if stamps >= 4:
            a('s_waitcnt vmcnt(0)\ns_memrealtime s[72:73]\ns_waitcnt lgkmcnt(0)\nv_mov_b32 v31, 0\ns_lshl_b32 s3, s2, 9\ns_mul_i32 s74, s20, 24\ns_add_u32 s3, s3, s74\ns_add_u32 s3, s3, %d' % (STAMP_OFF + 8 * 50 - 96))
            for i in range(3) if stamps == 4 else [2]:
                a('v_mov_b32 v254, s%d\nv_mov_b32 v255, s%d' % (68 + 2 * i, 69 + 2 * i))
                a('buffer_store_dwordx2 v[254:255], v31, s[%d:%d], s3 offen offset:%d' % (SWS, SWS + 3, 8 * i))
    if stamps == 4:
        for w_, nm in enumerate(['odd', 'r0', 'r1', 'r2']):
            for i, x_ in enumerate(['flags', 'summed', 'end']): a('; stamp %d %s %s' % (50 + 3 * w_ + i, nm, x_))
    if o['shc'] & 2: a('s_cmp_ge_u32 s52, 6\ns_cselect_b32 s3, 3, 0\ns_and_b32 s62, s2, 0xe8\ns_or_b32 s3, s3, s62\ns_lshl_b32 s3, s3, 9\ns_add_u32 s62, s3, %d\ns_add_u32 s66, s14, s62\ns_addc_u32 s67, s15, 0' % (G_FL + 384))
    if o['shc'] & 4: a('s_mul_i32 s3, s52, 43\ns_lshr_b32 s3, s3, 7\ns_mul_i32 s3, s3, 3\ns_and_b32 s62, s3, 1\ns_lshl_b32 s62, s62, 4\ns_lshr_b32 s3, s3, 1\ns_or_b32 s3, s3, s62\ns_and_b32 s62, s2, 0xe8\ns_or_b32 s3, s3, s62\ns_lshl_b32 s3, s3, 9\ns_add_u32 s62, s3, %d\ns_add_u32 s66, s14, s62\ns_addc_u32 s67, s15, 0' % (G_FL + 384))
    reduce('op', 16, 2, OOFF, 6, 's57')
    a('s_endpgm')
    if o['sent']:
        a('; a slot still held the marker (or the data really is NaN): wait for the acknowledged counter, read once more and take that')
        a('L_retry:\ns_cmp_lg_u32 s63, 0\ns_cbranch_scc1 L_accept\ns_mov_b32 s63, 1\ns_mov_b32 s54, %d' % SPIN)
        if stamps == 5: a('v_mov_b32 v20, 160\nv_mov_b32 v21, 1\ns_mov_b64 exec, 1\nglobal_atomic_add v20, v21, s[12:13] sc1\ns_mov_b64 exec, -1')
        if o['ack1'] and o['o64']:
            a('s_cmp_ge_u32 s52, 6\ns_cselect_b32 s3, %s\n' % ('7, 6' if o['ack1'] == 2 else '3, 0') + 's_and_b32 s62, s2, 0xe8\ns_or_b32 s3, s3, s62\ns_lshl_b32 s3, s3, 9\ns_add_u32 s62, s3, %d\ns_add_u32 s66, s14, s62\ns_addc_u32 s67, s15, 0' % (G_FL + 384))
        gpoll('oq', 0xffff if o['bm'] else 32 if o['o64'] else 16, 64, True)
        a('s_branch L_again')
    for t_ in subs.values(): a(t_)
    if o['padC']: a('.fill %d, 4, 0xbf800000' % o['padC'])
    a('L_comp:')
    lg = Cnt(a, 'lgkmcnt', 15)
    stC('C entry', 3)
    XA, WA, VA, OVA, OA, QA, FRA, FUA, FV, FC, PFA = 10, 12, 16, 18, 20, 21, 22, 23, 24, 27, 31
    A = 32; F = [80, 108]; B = 136; C = 184; VWO = 232; SP = 244
    KF = B; QF = 80; S = 96; P = SP; KA = 184; UA = 254; QT = 192
    a('v_bfe_u32 v3, v0, 2, 2\nv_and_b32 v4, 3, v0')
    a('s_lshr_b32 s18, s20, 1\ns_and_b32 s17, s20, 1')
    a(H0)
    a('v_lshrrev_b32 v7, 1, v1\nv_xor_b32 v7, v7, v2\nv_lshlrev_b32 v7, 4, v7\nv_lshl_add_u32 v5, v1, 7, v7\nv_xor_b32 v6, 64, v5')
    a('s_mul_i32 s3, s18, 6144\ns_add_u32 s3, s3, %d' % L_X0)
    a('v_add_u32 v%d, s3, v5\nv_add_u32 v%d, s3, v6' % (XA, XA + 1))
    a('s_add_u32 s3, s3, %d\nv_add_u32 v%d, s3, v5\nv_add_u32 v%d, s3, v6' % (L_V - L_X0, VA, VA + 1))
    a('s_and_b32 s3, s22, 1\ns_mul_i32 s3, s3, 6144\ns_add_u32 s3, s3, %d' % L_V)
    if o['alt'] == 3: a('s_and_b32 s19, s22, 2\ns_mul_i32 s19, s19, 12288\ns_add_u32 s3, s3, s19')
    a('v_add_u32 v%d, s3, v5\nv_add_u32 v%d, s3, v6' % (OVA, OVA + 1))
    a('v_and_b32 v7, 1, v2\nv_lshl_add_u32 v7, v7, 2, v3\ns_lshl_b32 s3, s17, 2\nv_xor_b32 v7, s3, v7')
    a('v_lshl_add_u32 v5, v2, 3, v3\nv_lshlrev_b32 v8, 8, v5\nv_lshl_add_u32 v8, v4, 3, v8')
    assert L_W == 0
    for t in range(4): a('v_xor_b32 v9, %d, v7\nv_lshl_add_u32 v%d, v9, 5, v8' % (t, WA + t))
    a('v_and_b32 v7, 1, v2\nv_lshrrev_b32 v8, 1, v3\nv_lshl_add_u32 v7, v7, 1, v8\nv_xor_b32 v7, s20, v7')
    a('v_lshlrev_b32 v8, 7, v5\nv_lshl_add_u32 v8, v4, 3, v8\nv_lshl_add_u32 v%d, v7, 5, v8' % OA)
    a('s_mul_i32 s3, s18, 12288\ns_lshl_b32 s19, s17, 11\ns_add_u32 s3, s3, s19\ns_add_u32 s3, s3, %d' % L_Q)
    a('v_lshlrev_b32 v25, 4, v0\nv_lshlrev_b32 v26, 3, v0\nv_add_u32 v%d, s3, v%d' % (QA, 26 if o['q64'] else 25))
    if o['q64'] == 3: a('v_lshrrev_b32 v7, 1, v2\nv_lshl_add_u32 v7, v7, 4, v1\nv_lshlrev_b32 v7, 4, v7\nv_and_b32 v8, 1, v2\nv_lshl_add_u32 v7, v8, 3, v7\nv_add_u32 v%d, s3, v7' % QA)
    if o['own3']:
        assert o['own'] and not o['oe'] and not o['bm']
        a('s_and_b32 s59, s2, 0xf8\ns_lshl_b32 s48, s20, 1\ns_add_u32 s59, s59, s48\ns_and_b32 s3, s2, 1\ns_add_u32 s3, s3, s59\ns_mul_i32 s34, s3, %d\ns_xor_b32 s3, s3, 1\ns_mul_i32 s35, s3, %d' % (o['MO'], o['MO']))
        a('s_and_b32 s3, s21, 6\ns_xor_b32 s48, s48, s3\ns_lshl_b32 s3, s48, 10\ns_add_u32 s3, s3, %d\ns_add_u32 s34, s34, s3\ns_add_u32 s35, s35, s3\ns_add_u32 s35, s35, 1024' % G_PM)
        a('s_cmp_eq_u32 s48, 0\ns_cselect_b32 s33, 0x7ff00000, 0\ns_cselect_b64 s[30:31], -1, 0\nv_add_u32 v27, %d, v25' % L_F)
        for qt in (1, 2): a('s_add_u32 s%d, s34, %d\ns_add_u32 s%d, s35, %d' % (34 + 2 * qt, qt * o['MQ'], 35 + 2 * qt, qt * o['MQ']))
    else:
        a('s_and_b32 s59, s2, 0xf8\ns_lshl_b32 s48, s20, 1\ns_add_u32 s59, s59, s48\ns_mul_i32 s56, s59, %d\ns_add_u32 s56, s56, %d\ns_add_u32 s57, s56, %d' % (o['MO'], G_PM, o['MO']))
        a('s_xor_b32 s48, s48, s21\ns_lshl_b32 s3, s48, 10\ns_add_u32 s56, s56, s3\ns_xor_b32 s3, s3, 1024\ns_add_u32 s57, s57, s3')
        if o['own']:
            a('s_cmp_eq_u32 s48, 0\ns_cselect_b32 s56, 0x7ff00000, s56\ns_cselect_b64 s[30:31], -1, 0\ns_cmp_eq_u32 s48, 1\ns_cselect_b32 s57, 0x7ff00000, s57\ns_cselect_b64 s[32:33], -1, 0\nv_add_u32 v27, %d, v25' % L_F)
    a('s_lshl_b32 s3, s23, 1\ns_and_b32 s54, s22, 1\ns_add_u32 s3, s3, s54\ns_mul_i32 s3, s3, 12\n' + ('s_mul_i32 s54, s18, 6' if o['o64'] else 's_mul_i32 s54, s20, 3') + '\ns_add_u32 s3, s3, s54\ns_mul_i32 s58, s3, %d' % o['OT'])
    if o['o64']:
        assert not o['bm'] and not o['btr'] & 2
        a('s_lshl_b32 s3, s17, 8\ns_add_u32 s58, s58, s3')
    a('s_lshl_b32 s3, s21, 1\ns_lshr_b32 s55, s22, 1\ns_add_u32 s55, s55, s3\ns_lshl_b32 s3, s55, 9\ns_add_u32 s58, s58, s3\ns_add_u32 s58, s58, %d' % G_PO)
    a('v_and_b32 v5, 7, v0\nv_lshrrev_b32 v6, 3, v0')
    a('v_add_u32 v7, s59, v5\nv_lshlrev_b32 v7, 9, v7\n' + ('s_mov_b32 s3, %d' % (G_FL + MOFF) if o['atom'] else 's_lshl_b32 s3, s21, 2\ns_add_u32 s3, s3, %d' % (G_FL + MOFF)) + '\nv_add_u32 v7, s3, v7')
    a('s_sub_u32 s54, s54, 2\nv_add_u32 v8, s54, v5\nv_lshrrev_b32 v9, 1, v8\nv_and_b32 v8, 1, v8\nv_lshl_add_u32 v8, v8, 4, v9\ns_and_b32 s3, s2, 0xe8\nv_add_u32 v8, s3, v8\nv_lshlrev_b32 v8, 9, v8')
    a(('s_mov_b32 s3, %d' if o['atom'] else 's_lshl_b32 s3, s55, 2\ns_add_u32 s3, s3, %d') % (G_FL + 128 + OOFF) + '\nv_add_u32 v8, s3, v8\nv_mov_b32 v9, 0x7ff00000')
    a('v_lshl_add_u32 v7, v6, 6, v7\nv_lshl_add_u32 v8, v6, 6, v8\nv_cmp_gt_u32 vcc, %d, v6\nv_cndmask_b32 v5, 8, v5, vcc' % o['rep'])
    if o['own'] and o['oe'] and o['xe'] in ('E', 'G', 'H') and o['atom']: a('v_cmp_ne_u32 vcc, s48, v5\nv_cndmask_b32 v7, v9, v7, vcc')
    a('v_cmp_gt_u32 vcc, %d, v5\n' % (8 if o['o64'] else 5) + 'v_cndmask_b32 v8, v9, v8, vcc\nv_cmp_gt_u32 vcc, 2, v5\nv_cndmask_b32 v30, v8, v7, vcc\nv_cndmask_b32 v28, v9, v7, vcc\nv_mov_b32 v29, 1')
    if o['shc'] & 1: a('v_cmp_gt_u32 vcc, 1, v5\nv_cndmask_b32 v28, v9, v7, vcc')
    if o['bm']: a('v_xor_b32 v7, s48, v5\nv_mov_b32 v8, s55\nv_cndmask_b32 v7, v8, v7, vcc\nv_lshlrev_b32 v29, v7, v29')
    if o['fo2']: a('s_add_u32 s56, s58, %d\ns_add_u32 s57, s58, %d' % (o['OT'] * (2 if o['o64'] else 1), o['OT'] * (4 if o['o64'] else 2)))
    if 'T' in o['hack']: a('s_mov_b32 s35, 0x7ff00000\ns_mov_b32 s37, s35\ns_mov_b32 s39, s35')
    if 'Y' in o['hack']: a('s_cmp_ge_u32 s21, 4\ns_cselect_b32 s58, 0x7ff00000, s58\ns_cselect_b32 s56, 0x7ff00000, s56\ns_cselect_b32 s57, 0x7ff00000, s57')
    if 'g' in o['hack']: a('s_mov_b32 s58, 0x7ff00000\n' + '\n'.join('s_mov_b32 s%d, s58' % r_ for r_ in (34, 35, 36, 37, 38, 39, 56, 57)))
    if o['o64']: a('v_lshrrev_b32 v7, 3, v1\nv_mul_u32_u24 v7, %d, v7\nv_lshl_add_u32 v7, v2, 6, v7\nv_and_b32 v8, 7, v0\nv_lshl_add_u32 v3, v8, 3, v7' % o['OT'])
    a('s_mov_b32 s52, s20')
    def unit_setup():
        a('s_cmp_ge_u32 s52, 3\ns_cselect_b32 s3, 12288, 0\ns_add_u32 s3, s3, %d' % L_K)
        if o['q64'] == 3:
            a('v_xor_b32 v7, v1, v2\nv_lshlrev_b32 v7, 4, v7\nv_lshl_add_u32 v7, v1, 8, v7')
            for kk in range(4): a('v_xor_b32 v8, %d, v7\nv_add_u32 v%d, s3, v8' % (64 * kk, KA + kk))
        else:
            a('v_lshrrev_b32 v7, 1, v2\nv_xor_b32 v7, v1, v7\nv_lshlrev_b32 v7, 4, v7\nv_lshl_add_u32 v7, v1, 8, v7\nv_and_b32 v8, 1, v2\nv_lshl_add_u32 v7, v8, 3, v7')
            for j in range(8): a('v_xor_b32 v8, %d, v7\nv_add_u32 v%d, s3, v8' % (32 * j, KA + j))
        a('s_lshl_b32 s3, s52, 12\ns_add_u32 s3, s3, %d\nv_add_u32 v%d, s3, v%d' % (L_Q, UA, 26 if o['q64'] in (1, 2) else 25))
        a('s_mov_b32 s50, 0x%x\ns_mov_b32 s51, s50' % f2i((1 if o['mimic'] else 128 ** -0.5) * math.log2(math.e)))
        if o['mimic']: a('s_mov_b32 s26, 0x%x\ns_mov_b32 s27, s26\ns_mov_b32 s25, 0xffff0000' % f2i(128 ** -0.5))
        a('s_mul_i32 s3, s52, 1536\ns_mul_i32 s49, s2, 9216\ns_add_u32 s49, s49, s3\ns_add_u32 s49, s49, %d' % G_P)
        if o['pds']: a('s_add_u32 s3, s3, %d\nv_add_u32 v255, s3, v25\nv_add_u32 v31, s3, v26' % (L_P + 27648))
    def k_reads(late=False):
        if o['klate'] and not late: return []
        if o['q64'] == 3: return ['ds_read_b128 %s, v%d offset:%d' % (v(KF + 16 * kt + 4 * kk, 4), KA + kk, 4096 * kt) for kk in range(4) for kt in range(3)]
        return ['ds_read_b64 %s, v%d offset:%d' % (v(KF + 16 * kt + 2 * j, 2), KA + j, 4096 * kt) for j in range(8) for kt in range(3)]
    if o['mimic']: a(W0)
    unit_setup()
    if o['ocl'] > 1:
        assert o['sent'] and o['o64'] and o['rep'] == 1
        if o['ocl'] == 2: a('s_mul_i32 s3, s17, 384')
        else: a('s_and_b32 s3, s22, 2\ns_add_u32 s3, s3, s17\ns_lshl_b32 s3, s3, 7')
        a('s_sub_u32 s3, s3, 120\nv_add_u32 v2, s3, v30')
    if o['ack1'] == 2: a('s_lshl_b32 s41, s18, 10\ns_sub_u32 s41, 3072, s41')
    if o['own3']: a('v_add_u32 v1, s33, v25')
    a(W0)
    srd(SWS, 14, 'ws')
    if o['sat'] & 1: a('s_lshl_b32 s3, s59, 9\ns_add_u32 s42, s3, %d\ns_add_u32 s43, s42, 512\ns_mov_b32 s40, 1' % (256 + MOFF))
    def wreads(st, off, wa=WA): return ['ds_read_b64_tr_b16 %s, v%d offset:%d' % (v(st + 4 * t + 2 * hh, 2), wa + t, off + 1024 * hh) for t in range(4) for hh in range(2)]
    def reads_A(n, ks, st=None):
        st = st or F[ks]
        return ['ds_read_b128 %s, v%d offset:%d' % (v(st + 16 + 4 * q, 4), XA + ks, XS(n) + 2048 * q) for q in range(3)] + wreads(st, 16384 * (n % 3) + 8192 * ks)
    ORD = [(t, q if t % 2 == 0 else 2 - q) for t in range(4) for q in range(3)]
    def mfma(acc, ks, first, swap, od=None):
        out = []
        for t, q in od or ORD:
            d = v(acc + 4 * (3 * t + q), 4); x = v(F[ks] + 4 * t, 4); y = v(F[ks] + 16 + 4 * q, 4)
            if swap: x, y = y, x
            out.append(MF % (d, x, y, '0' if first else d))
        return out
    def cvt(d, s_): return ['v_cvt_pk_bf16_f32 v%d, v%d, v%d' % (d, s_, s_ + 1), 'v_cvt_pk_bf16_f32 v%d, v%d, v%d' % (d + 1, s_ + 2, s_ + 3)]
    def ds(txt, tag):
        def f(): a(txt); lg.issue(tag)
        return f
    def step(m, dsops, extra=(), waits=None, pre=(), xstart=0, dstart=0, xper=0):
        n = len(m); per = [[] for _ in range(n)]
        for i, x_ in enumerate(pre): per[i].append(x_)
        nd = n - dstart
        for i, x_ in enumerate(dsops): per[dstart + (i if len(dsops) <= nd else i * nd // len(dsops))].append(x_)
        nx = n - xstart
        for i, x_ in enumerate(extra): per[min(n - 1, xstart + int(i / xper)) if xper else xstart + (i * nx // len(extra))].append(x_)
        for i in range(n):
            if waits and i in waits: lg.wait(waits[i])
            a(m[i]); run(per[i])
    stC('C at B0', 3)
    a('s_barrier')
    stC('B0')
    def tA(n, ks): return [ds(x_, 'a%d%d%s' % (n, ks, 'lo' if i < 7 else 'hi')) for i, x_ in enumerate(reads_A(n, ks))]
    if o['atune']:
        bg = o['atune']
        run(tA(0, 0))
        for n in range(7):
            kr = [ds(x_, 'k') for x_ in k_reads()[6 * (n - 3):6 * (n - 2)]] if 3 <= n < 7 else []
            m = mfma(A, 0, n == 0, False)
            step(m[:10], tA(n, 1), waits={0: 'a%d0lo' % n, 6: 'a%d0hi' % n}); step(m[10:], [])
            m = mfma(A, 1, False, False)
            step(m[:bg], [], waits={0: 'a%d1lo' % n})
            lg.wait_all(); a('s_barrier')
            r = tA(n + 1, 0)
            run(r[:1]); step(m[bg:], r[1:] + kr)
        lg.seq = []
    else: run(reads_A(0, 0))
    for n in range(7 if o['atune'] else 0, 9):
        if n == 7 and o['tm']:
            assert not o['b8a']
            F2 = 204; QT = F[1]
            a(W0)
            run(interleave(mfma(A, 0, False, False), reads_A(7, 1), 0, 2))
            a(W0); a('s_barrier'); stC('B8')
            a(';WARM_ON')
            r0, r1 = reads_A(8, 0), reads_A(8, 1, F2)
            rr = []
            for idx in ([0], [3, 4], [5, 6], [1], [2], [7, 8], [9, 10]):
                rr += [r0[i] for i in idx] + [r1[i] for i in idx]
            run(interleave(mfma(A, 1, False, False), rr, 0, 2))
            stC('end 7,1', 3)
            m = []; qw = []
            for i, (tp, q) in enumerate([(tp, q) for tp in range(2) for q in range(3)]):
                for u in range(2):
                    t = 2 * tp + u; d = v(A + 4 * (3 * t + q), 4)
                    for st in (F[0], F2): m.append(MF % (d, v(st + 4 * t, 4), v(st + 16 + 4 * q, 4), d))
                    qw += cvt(QT + 4 * i + 2 * u, A + 4 * (3 * t + q))
                    if o['q64'] and 'q' not in o['hack']: qw[-1] += '\nds_write_b64 v%d, %s offset:%d' % (QA, v(QT + 4 * i + 2 * u, 2), q * 4096 + tp * 1024 + u * 512)
                if not o['q64']: qw[-1] += '\nds_write_b128 v%d, %s offset:%d' % (QA, v(QT + 4 * i, 4), q * 4096 + tp * 1024)
            m[0] = 's_waitcnt lgkmcnt(12)\n' + m[0]; m[4] = 's_waitcnt lgkmcnt(8)\n' + m[4]; m[8] = ('s_waitcnt lgkmcnt(%d)' % (1 if o['q64'] and o['qs'] <= 6 and 'q' not in o['hack'] else 0)) + '\n' + m[8]
            run(interleave(m, qw, o['qs'], 1))
            stC('Q issued', 3)
            if stamps == 3: a(W0); stC('Q done', 3)
            break
        if n == 8: stC('end 7,1', 3)
        a(W0)
        run(interleave(mfma(A, 0, n == 0, False), (['s_barrier'] if n == 8 and o['b8a'] else []) + reads_A(n, 1), 0, 2))
        if n < 8:
            a(W0)
            a('s_barrier')
            if n == 7: stC('B8')
            run(interleave(mfma(A, 1, False, False), reads_A(n + 1, 0) + (k_reads()[8 * (n - 4):8 * (n - 3)] if 4 <= n < 7 else []), 0, 2))
        else:
            stC('end 8,0', 3)
            a(W0)
            od = [(2 * tp + u, q) for tp in range(2) for q in range(3) for u in range(2)]
            qw = []
            for i, (t, q) in enumerate(od):
                qw += cvt(QT + 2 * i, A + 4 * (3 * t + q))
                if t & 1: qw[-1] += '\nds_write_b128 v%d, %s offset:%d' % (QA, v(QT + 2 * i - 2, 4), q * 4096 + (t >> 1) * 1024)
            run(interleave(mfma(A, 1, False, False, od), qw, 6, 2))
            stC('Q issued', 3)
            if stamps == 3: a(W0); stC('Q done', 3)
    if o['own3']:
        a('s_and_b32 s3, s21, 1\ns_lshl_b32 s3, s3, 6')
        for t in range(4): a('v_xor_b32 v%d, s3, v%d' % (WA + t, WA + t))
    if o['vf']:
        for t in range(4): a('v_add_u32 v%d, %d, v%d' % (250 + t, BASE2, WA + t))
    if o['uprio']: a('s_setprio %d' % o['uprio'])
    a('L_unit:')
    a(W0)
    a('s_barrier')
    stC('BQ')
    for kk in range(4):
        if o['klate']: run(k_reads(True)[3 * kk:3 * kk + 3])
        if o['q64'] == 1: a('ds_read2st64_b64 %s, v%d offset0:%d offset1:%d' % (v(QF + 4 * kk, 4), UA, 2 * kk, 2 * kk + 1))
        elif o['q64'] == 2: a('ds_read_b64 %s, v%d offset:%d\nds_read_b64 %s, v%d offset:%d' % (v(QF + 4 * kk, 2), UA, 1024 * kk, v(QF + 4 * kk + 2, 2), UA, 1024 * kk + 512))
        else: a('ds_read_b128 %s, v%d offset:%d' % (v(QF + 4 * kk, 4), UA, 1024 * kk))
    for kk in range(4):
        a('s_waitcnt lgkmcnt(%d)' % ((3 - kk) * (4 if o['klate'] else 2 if o['q64'] == 2 else 1)))
        for kt in range(3): a(MF % (v(S + 4 * kt, 4), v(KF + 16 * kt + 4 * kk, 4), v(QF + 4 * kk, 4), v(S + 4 * kt, 4) if kk else '0'))
    if o['bs']: a('s_barrier')
    if 's' in o['hack']: a('s_branch L_hs_skip')
    if 'h' in o['hack']: a('s_cmp_ge_u32 s20, 4\ns_cbranch_scc1 L_hs_skip')
    if o['mimic']:
        for rnd in range(2):
            for t in range(6): a('v_cvt_pk_bf16_f32 v%d, v%d, v%d' % (S + 2 * t + 1, S + 2 * t, S + 2 * t + 1))
            for t in range(6): a('v_lshlrev_b32 v%d, 16, v%d' % (S + 2 * t, S + 2 * t + 1))
            for t in range(6): a('v_and_b32 v%d, s25, v%d' % (S + 2 * t + 1, S + 2 * t + 1))
            if rnd == 0:
                for t in range(0, 12, 2): a('v_pk_mul_f32 v[%d:%d], v[%d:%d], s[26:27]' % (S + t, S + t + 1, S + t, S + t + 1))
    x, y = 6, 7
    a('v_max3_f32 v6, v%d, v%d, v%d\nv_max3_f32 v7, v%d, v%d, v%d' % (S, S + 1, S + 2, S + 3, S + 4, S + 5))
    a('v_max3_f32 v6, v6, v%d, v%d\nv_max3_f32 v7, v7, v%d, v%d\nv_max3_f32 v6, v6, v%d, v%d' % (S + 6, S + 7, S + 8, S + 9, S + 10, S + 11))
    def xl(op, first):
        a(first)
        a('v_permlane16_swap_b32 v6, v7\n%s v8, v6, v7\n%s v7, v6, v7\nv_permlane32_swap_b32 v8, v7\n%s v6, v8, v7' % (op, op, op))
    xl('v_max_f32', 'v_max_f32 v6, v6, v7\nv_mov_b32 v7, v6')
    a('v_mul_f32 v6, s50, v6')
    if o['pk']:
        for t in range(0, 12, 2): a('v_pk_fma_f32 v[%d:%d], v[%d:%d], s[50:51], v[6:7] op_sel_hi:[1,1,0] neg_lo:[0,0,1] neg_hi:[0,0,1]' % (S + t, S + t + 1, S + t, S + t + 1))
    else:
        for t in range(12): a('v_fma_f32 v%d, v%d, s50, -v6' % (S + t, S + t))
    for t in range(12): a('v_exp_f32 v%d, v%d' % (S + t, S + t))
    if o['pk']:
        a('v_pk_add_f32 v[6:7], v[%d:%d], v[%d:%d]\nv_pk_add_f32 v[4:5], v[%d:%d], v[%d:%d]' % (S, S + 1, S + 2, S + 3, S + 4, S + 5, S + 6, S + 7))
        a('v_pk_add_f32 v[6:7], v[6:7], v[%d:%d]\nv_pk_add_f32 v[4:5], v[4:5], v[%d:%d]\nv_pk_add_f32 v[4:5], v[4:5], v[6:7]' % (S + 8, S + 9, S + 10, S + 11))
    else:
        a('v_add_f32 v4, v%d, v%d\nv_add_f32 v5, v%d, v%d' % (S, S + 1, S + 2, S + 3))
        for t in range(4, 12, 2): a('v_add_f32 v4, v4, v%d\nv_add_f32 v5, v5, v%d' % (S + t, S + t + 1))
    xl('v_add_f32', 'v_add_f32 v6, v4, v5\nv_add_f32 v7, v4, v5')
    a('v_rcp_f32 v6, v6')
    if o['pk']:
        for t in range(0, 12, 2): a('v_pk_mul_f32 v[%d:%d], v[%d:%d], v[6:7] op_sel_hi:[1,0]' % (S + t, S + t + 1, S + t, S + t + 1))
    else:
        for t in range(12): a('v_mul_f32 v%d, v%d, v6' % (S + t, S + t))
    for t in range(6): a('v_cvt_pk_bf16_f32 v%d, v%d, v%d' % (P + t, S + 2 * t, S + 2 * t + 1))
    if o['hack']: a('L_hs_skip:')
    if 'e' not in o['hack'] and 'y' not in o['hack']:
        a('buffer_store_dwordx4 %s, v25, s[%d:%d], s49 offen sc1' % (v(P, 4), SWS, SWS + 3))
        a('buffer_store_dwordx2 %s, v26, s[%d:%d], s49 offen offset:1024 sc1' % (v(P + 4, 2), SWS, SWS + 3))
    if o['pds']: a('ds_write_b128 v255, %s\nds_write_b64 v31, %s offset:1024' % (v(P, 4), v(P + 4, 2)))
    stC('C at BP')
    a('s_barrier')
    a('s_cmp_ge_u32 s20, 4\ns_cbranch_scc1 L_help2')
    if o['cprio'] or o['uprio']: a('s_setprio %d' % o['cprio'])
    stC('BP')
    a('; ---- V*Wo: 8 pieces of 64 rows x 128 columns, results kept in registers as bf16 operands')
    def reads_W(p, ks):
        vp = (p >> 2) * 2 + (PC(p) & 1); tg = 'w%d%d' % (p, ks)
        r = ['ds_read_b128 %s, v%d offset:%d' % (v(F[ks] + 16 + 4 * q, 4), VA + ks, 12288 * vp + 2048 * q) for q in range(3)] + (wreads(F[ks], 16384 * WSLOT['w%d' % p] + 8192 * ks) if WSLOT['w%d' % p] < 4 else wreads(F[ks], 8192 * ks, 250))
        if (p, ks) == (0, 0) and o['fine0']:
            r = [r[0], r[3], r[4], r[1], r[2]] + r[5:]
            return [ds(x_, 'f%d' % i) for i, x_ in enumerate(r)]
        return [ds(x_, tg + ('lo' if i < 7 else 'hi')) for i, x_ in enumerate(r) if i >= 3 or not (o['alt'] and p & 1)]
    def wW(p, ks, more=()): return {0: 'f2', 1: 'f3', 2: 'f4', 3: 'f6', 6: 'f8', 9: 'f10'} if (p, ks) == (0, 0) and o['fine0'] else {0: ['w%d%dlo' % (p, ks)] + list(more), 6: ['w%d%dhi' % (p, ks)]}
    def vwpos(base, i, kt): return base + ([0, 2, 4][kt] if i % 2 == 0 else [8, 10, 6][kt])
    HACC = [B, A, B, A]; HDST = [C, C, B, B]
    def cvt_W(i): return [x_ for t in range(4) for kt in range(3) for x_ in cvt(vwpos(HDST[i] + 12 * t, i, kt), HACC[i] + 4 * (3 * t + kt))]
    def xb(nm): return [('s_waitcnt vmcnt(0)\n' if nm == o['ack'] and 'w' not in o['hack'] else '') + 's_barrier'] if nm in XN else []
    def xbc(nm):
        r_ = xb(nm)
        if r_ and o['vdry']: r_ = ['s_cbranch_execz %s\n%s\nL_xa_%s:' % ('L_vwret' if nm in o['vseg'] else 'L_xa_' + nm, r_[0], nm)]
        return r_
    def ins(lst, i, x_): return lst[:i] + [x_] + lst[i:]
    OS = [[108, 112, 116, 120, 124], [48, 52, 56, 60, 64], [80, 84, 88, 92, 96], [100, 128, 132, 68, 72]]; OACC = [[232, 236, 240], [32, 36, 40]]
    def rdO(kq):
        tg = 'os%d' % kq
        return [ds('ds_read_b128 %s, v%d offset:%d' % (v(OS[kq][kt], 4), OVA + (kq & 1), 12288 * (kq >> 1) + 2048 * kt), tg) for kt in range(3)] + \
               [ds('ds_read_b64_tr_b16 %s, v%d offset:%d' % (v(OS[kq][3 + e] + 2 * hh, 2), OA, 16384 * WSLOT['o%d' % e] + 4096 * kq + 512 * hh), tg) for e in range(2) for hh in range(2)]
    mfma_O = [MF % (v(OACC[e][kt], 4), v(OS[kq][kt], 4), v(OS[kq][3 + e], 4), v(OACC[e][kt], 4) if kq else '0') for kq in range(4) for e in range(2) for kt in range(3)]
    cvt_O = [x_ for e in range(2) for kt in range(3) for x_ in cvt(vwpos(VWO, e, kt), OACC[e][kt])]
    PFULL = [10, 11, 22, 23]; PHALF = [4, 5, 6, 7]; POF = [24, 21]; POH = [8, 9]
    padr = []
    for i in range(4):
        padr.append('s_xor_b32 s3, s53, %d\ns_mul_i32 s3, s3, 9216\ns_add_u32 s3, s3, s55' % i)
        padr.append('v_add_u32 v%d, s3, v25' % PFULL[i]); padr.append('v_add_u32 v%d, s3, v26' % PHALF[i])
        if i < 2:
            padr.append(('s_xor_b32 s3, s52, %d\ns_mul_i32 s3, s3, 9216\ns_add_u32 s3, s3, s55\n' % i if o['alt'] == 3 else '') + 's_add_u32 s3, s3, s54\nv_add_u32 v%d, s3, v25' % POF[i]); padr.append('v_add_u32 v%d, s3, v26' % POH[i])
    a('s_mul_i32 s55, s18, 4608\ns_and_b32 s54, s22, 1\ns_mul_i32 s54, s54, 4608\ns_sub_u32 s54, s54, s55\ns_add_u32 s55, s55, %d\ns_lshr_b32 s53, s16, 1\ns_xor_b32 s53, s53, s22\ns_xor_b32 s53, s53, 3' % L_P)
    if o['alt'] == 3: a('s_and_b32 s52, s22, 2\ns_xor_b32 s52, s52, s53')
    def preads(dst, fa, ha, qt, tag):
        off = 1536 * qt
        return [ds('ds_read_b128 %s, v%d offset:%d' % (v(dst[0], 4), fa[0], off), tag),
                ds('ds_read_b64 %s, v%d offset:%d' % (v(dst[1], 2), ha[0], off + 1024), tag),
                ds('ds_read_b64 %s, v%d offset:%d' % (v(dst[1] + 2, 2), ha[1], off + 1024), tag),
                ds('ds_read_b128 %s, v%d offset:%d' % (v(dst[2], 4), fa[1], off), tag)]
    PB = [[80 + 4 * k for k in range(6)], [108 + 4 * k for k in range(6)], [80 + 4 * k for k in range(6)]]
    def reads_F(qt): return preads(PB[qt][:3], PFULL[:2], PHALF[:2], qt, 'p%da' % qt) + preads(PB[qt][3:], PFULL[2:], PHALF[2:], qt, 'p%db' % qt)
    if o['vdry']: a('L_xa_BP:')
    run(reads_W(0, 0))
    for p in range(8):
        i = PC(p) >> 1; first = PC(p) & 1 == 0
        if p < 2: ex0, ex1 = (padr[:5], padr[5:10]) if p == 0 else (padr[10:], [] if o['vf'] == 1 else ['v_add_u32 v%d, %d, v%d' % (250 + t, L_P, WA + t) for t in range(4)])
        elif o['alt']:
            cv = cvt_W({3: 0, 4: 1, 7: 2}[p]) if p in (3, 4, 7) else []
            k_ = 12 if p != 4 else 10
            ex0, ex1 = cv[:k_], cv[k_:]
        else:
            cv = cvt_W(i - 1)
            ex0, ex1 = (cv[:6], cv[6:12]) if p % 2 == 0 else (cv[12:18], cv[18:])
        if 'E' in o['hack'] and p >= 6:
            st_ = lambda h: 'buffer_store_dwordx4 v[244:247], v25, s[%d:%d], s%d offen sc1\ns_add_u32 s%d, s%d, %d' % (SWS, SWS + 3, 56 + h, 56 + h, 56 + h, o['MQ'])
            if p == 6: ex1 = ex1 + [st_(0)]
            else: ex0 = ex0 + [st_(1)]; ex1 = ex1 + [st_(0)]
        step(mfma(HACC[i], 0, first, True), reads_W(p, 1), extra=ex0, xstart=(4 if p % 2 == 0 else 0) if not o['alt'] else 1, waits=wW(p, 0))
        step(mfma(HACC[i], 1, False, True), reads_W(p + 1, 0) if p < 7 else reads_F(0), extra=ex1, xstart=1, waits=wW(p, 1), pre=xbc('w%d' % p))
        stC('s%d' % p if p < 7 else 'VW end', 2 if p < 7 else 1)
    RACC = [[244, 248, 252, 104], [32, 36, 40, 44], [244, 248, 252, 104]]
    PK = [76, 12]; OP = [[108, 112, 116], [120, 124, 48], [52, 56, 60]]
    def fm(qt, t, k): return MF % (v(RACC[qt][t], 4), v([C, B][k // 3] + 12 * t + 4 * (k % 3), 4), v(PB[qt][k], 4), v(RACC[qt][t], 4) if k else '0')
    def store_F(qt, h):
        if o['own3'] == 2:
            pk = [76, 32, 44][qt] if h == 0 else PK[1]
            return cvt(pk, RACC[qt][2 * h]) + cvt(pk + 2, RACC[qt][2 * h + 1]) + ['buffer_store_dwordx4 %s, v%d, s[%d:%d], s%d offen sc1' % (v(pk, 4), 25 if h else 1, SWS, SWS + 3, 34 + 2 * qt + h)]
        if o['own3']:
            return cvt(PK[h], RACC[qt][2 * h]) + cvt(PK[h] + 2, RACC[qt][2 * h + 1]) + \
                ['buffer_store_dwordx4 %s, v%d, s[%d:%d], s%d offen sc1' % (v(PK[h], 4), 25 if h else 1, SWS, SWS + 3, 34 + 2 * qt + h)] + \
                (['s_mov_b64 exec, s[30:31]\nds_write_b128 v27, %s offset:%d\ns_mov_b64 exec, -1' % (v(PK[h], 4), 1024 * qt)] if h == 0 else [])
        l_ = 'L_own%d%d' % (qt, h)
        ownw = '\ns_cmp_lg_u32 s48, %d\ns_cbranch_scc1 %s\nds_write_b128 v27, %s offset:%d\n%s:' % (h, l_, v(PK[h], 4), 1024 * qt, l_) if o['own'] else ''
        if o['own'] and o['ownx']: ownw = '\ns_mov_b64 exec, s[%d:%d]\nds_write_b128 v27, %s offset:%d\ns_mov_b64 exec, -1' % (30 + 2 * h, 31 + 2 * h, v(PK[h], 4), 1024 * qt)
        return cvt(PK[h], RACC[qt][2 * h]) + cvt(PK[h] + 2, RACC[qt][2 * h + 1]) + \
               ['buffer_store_dwordx4 %s, v25, s[%d:%d], s%d offen sc1\ns_add_u32 s%d, s%d, %d' % (v(PK[h], 4), SWS, SWS + 3, 56 + h, 56 + h, 56 + h, o['MQ']) + ownw]
    def oflag(d):
        if o['ocl'] == 1: return flag(30, 256 + d)
        return FOP + ' v29, v2, s[%d:%d], 0 offen offset:%d sc1' % (SWS, SWS + 3, d)
    def sflag(off): return 's_atomic_add s40, s[14:15], s42\ns_atomic_add s40, s[14:15], s43'
    if 'N' in o['hack']:
        sG = store_F
        def store_F(qt, h): return sG(qt, h)[:4]
    if 'E' in o['hack']:
        sF = store_F
        def store_F(qt, h):
            r_ = sF(qt, h)
            if (qt, h) == (0, 1): return r_[:4] + ['s_waitcnt vmcnt(2)\n' + flag(28, 0)]
            if (qt, h) == (1, 1): return r_[:4] + ['s_waitcnt vmcnt(1)\n' + flag(28, 128)]
            return r_ if qt == 2 else r_[:4]
    def flag(reg, off): return FOP + ' v29, v%d, s[%d:%d], 0 offen offset:%d sc1' % (reg, SWS, SWS + 3, off)
    m = [fm(0, t, k) for k in range(6) for t in range(4)]
    c3 = cvt_W(3)
    c3 = [c3[6 * t + j] for t in range(4) for j in (4, 5)] + [c3[6 * t + j] for t in range(4) for j in range(4)]
    step(m[:19], reads_F(1), extra=c3, xstart=3, waits={0: ['p0a'], 11: ['p0b']})
    step(m[19:], [], extra=[st_(1)] if 'E' in o['hack'] else [])
    if o['vdry']: a('s_cbranch_execz L_vwret')
    stC('R0', 2)
    m = [fm(1, t, k) for t in range(4) for k in range(6)]
    step(m[:17], reads_F(2), extra=store_F(0, 0) + store_F(0, 1), xstart=2 if o['asap'] & 2 else 3, xper=1 if o['asap'] & 2 else 0, waits={0: ['p1a'], 3: ['p1b']})
    step(m[17:], [], extra=store_F(1, 0), xper=2 if o['asap'] & 2 else 0)
    stC('R1', 2)
    xo = o['xo']
    m = [fm(2, t, k) for t in range(4) for k in range(6)]
    step(m[:xo], [], extra=store_F(1, 1), xstart=2 if o['asap'] & 4 else 4, xper=1 if o['asap'] & 4 else 0, waits={0: ['p2a'], 3: ['p2b']})
    seq = rdO(0) + rdO(1); k1 = min(14, 24 - xo)
    def ownw(qts): return 's_mov_b64 exec, s[30:31]\n' + '\n'.join('ds_write_b128 v27, %s offset:%d' % (v([76, 32, 44][q_], 4), 1024 * q_) for q_ in qts) + '\ns_mov_b64 exec, -1'
    step(m[xo:], seq[:k1], extra=store_F(2, 0) + ([ownw([1])] if o['own3'] == 2 else []), xstart=max(0, (16 if o['asap'] & 4 else 18) - xo), xper=1 if o['asap'] & 4 else 0, pre=xb('O') + (['s_waitcnt vmcnt(2)\n' + flag(28, 0)] if o['f0at'] == 'R2' else []))
    stC('R2', 2)
    op = [x_ for qt in range(3) for x_ in preads(OP[qt], POF, POH, qt, 'po')]
    f0 = 's_waitcnt vmcnt(3)\n' + flag(28, 0)
    f1 = 's_waitcnt vmcnt(3)\n' + flag(28, 128)
    step(mfma_O[:12], seq[k1:] + rdO(2) + rdO(3), extra=store_F(2, 1) + ([flag(28, 256)] if 'c' in o['hack'] else []), xstart=1 if o['asap'] & 1 else 4, xper=1 if o['asap'] & 1 else 0, waits={0: ['os0'], 6: ['os1']}, pre=[f0] if o['ef'] >= 1 and 'E' not in o['hack'] and o['f0at'] == 'O' else [])
    def fo(k, first): return [MF % (v(SP + 4 * qt, 4), v(VWO + 4 * k, 4), v(OP[qt][k], 4), '0' if first else v(SP + 4 * qt, 4)) for qt in range(3)]
    if o['fo2']:
        assert o['ef'] == 2 and not o['e2'] and o['own3'] and 'E' not in o['hack']
        mo = mfma_O[12:15] + mfma_O[18:21] + mfma_O[15:18] + mfma_O[21:24]
        step(mo[:8], op[:10], waits={0: ['os2'], 3: ['os3']}, extra=[f1], xstart=min(7, o['e0']))
        step(mo[8:], op[10:], extra=cvt_O[:6], xstart=1)
        stC('O', 2)
        lg.wait('po')
        f0_, f2_, f1_ = fo(0, True), fo(2, False), fo(1, False)
        def ost(qt): return cvt(VWO + 2 * qt, SP + 4 * qt) + ['buffer_store_dwordx2 %s, v%d, s[%d:%d], s%d offen sc1' % (v(VWO + 2 * qt, 2), 3 if o['o64'] else 26, SWS, SWS + 3, [58, 56, 57][qt])]
        step(f0_, [], extra=cvt_O[6:])
        run([f2_[0], f1_[0], f2_[1], f1_[1], f2_[2], f1_[2]])
        if 'r' in o['hack']: a('s_mov_b64 exec, 0xfc'); a(oflag(0)); a('s_mov_b64 exec, -1\ns_cmp_lg_u32 s21, 3\ns_cbranch_scc1 L_hr\ns_sleep 60\nL_hr:\ns_nop 7')
        run(ost(0) + ost(1) + ost(2))
    else:
        step(mfma_O[12:], op, waits={0: ['os2'], 6: ['os3']}, extra=[f1] if o['ef'] >= 2 and 'E' not in o['hack'] else [], xstart=o['e0'])
        stC('O', 2)
        def fo(k, first): return [MF % (v(SP + 4 * qt, 4), v(VWO + 4 * k, 4), v(OP[qt][k], 4), '0' if first else v(SP + 4 * qt, 4)) for qt in range(3)]
        run(cvt_O[:6])
        step(fo(0, True), [], extra=cvt_O[6:], waits={0: ['po']})
        run(fo(2, False) + fo(1, False))
        if o['ef'] == 0: a('s_waitcnt vmcnt(4)'); a(flag(28, 0))
        if o['ef'] < 2: a('s_waitcnt vmcnt(3)'); a(flag(28, 128))
        if o['e2']: a('s_waitcnt vmcnt(1)'); a(flag(28, 256))
        if 'r' in o['hack']: a('s_mov_b64 exec, 0xfc'); a(oflag(0)); a('s_mov_b64 exec, -1\ns_cmp_lg_u32 s21, 3\ns_cbranch_scc1 L_hr\ns_sleep 60\nL_hr:')
        for qt in range(3):
            run(cvt(VWO + 2 * qt, SP + 4 * qt) + ['buffer_store_dwordx2 %s, v%d, s[%d:%d], s58 offen sc1\ns_add_u32 s58, s58, %d' % (v(VWO + 2 * qt, 2), 3 if o['o64'] else 26, SWS, SWS + 3, o['OT'] * (2 if o['o64'] else 1))])
    stC('final end')
    if o['sent']:
        assert (o['rep'] == 1 or o['ack1']) and o['atom']
        a('s_mov_b64 exec, %s' % ('4' if o['shc'] & 2 else '0x24' if o['shc'] & 4 else '0xfcfc' if o['rep'] > 1 else '0xfc')); a(oflag(8 if 'r' in o['hack'] else 0)); a('s_mov_b64 exec, -1')
    if o['own3'] == 2:
        assert o['xe'] in ('E', 'G', 'H')
        a(ownw([0, 2]))
    if o['own'] and not (o['own3'] == 2 and o['xe'] == 'H'): a(W0)
    if o['xe'] == 'E': a('s_barrier')
    if not o['e2'] and 'c' not in o['hack']: a('s_waitcnt vmcnt(%d)' % ((5 if o['ef'] == 0 else 4) + o['sent'] - ('E' in o['hack']))); a(sflag(256) if o['sat'] & 1 else flag(28, 256))
    if o['xe'] == 'H': a((W0 + '\n' if o['own3'] == 2 else '') + 's_barrier')
    if 'b' not in o['hack']: a('s_waitcnt vmcnt(%d)' % (o['sent'] + (0 if o['e2'] or 'c' in o['hack'] or o['sat'] & 1 else 1)))
    a('s_mov_b64 exec, %s' % ('4' if o['ack1'] and o['sent'] and o['o64'] else '0xfcfc')); a(flag(30, 256 + (64 - OOFF) * o['sent']).replace(', 0 offen', ', s41 offen' if o['ack1'] == 2 and o['sent'] and o['o64'] else ', 0 offen')); a('s_mov_b64 exec, -1')
    if o['xe'] == 'G': a('s_barrier')
    stC('flags sent')
    a(';WARM_OFF')
    stC.flush(0)
    a('s_endpgm')
    a('; ==== helpers')
    if o['padH']: a('.fill %d, 4, 0xbf800000' % o['padH'])
    a('L_help:')
    a('s_sub_u32 s18, s20, 5\ns_sub_u32 s52, s20, 1')
    a('v_lshlrev_b32 v25, 4, v0\nv_lshlrev_b32 v26, 3, v0')
    a('v_mov_b32 v12, 0\nv_mov_b32 v13, 0\nv_mov_b32 v14, 0\nv_mov_b32 v15, 0\nv_mov_b32 v29, 1\nv_mov_b32 v28, 0x7ff00000\nv_mov_b32 v30, v28\nv_mov_b32 v3, v28')
    a(W0)
    srd(SWS, 14, 'ws')
    if o['sent'] and o['clr'] == 'start': clears(False, 40, 44)
    def dry_run(name):
        a('; walk the arithmetic of a reduction once with no lane active (no memory instruction on that path) so that its code is cached')
        if name == 'op': a('s_mov_b64 vcc, 0\ns_mov_b32 s63, 1')
        a('s_mov_b64 exec, 0\ns_branch L_dry_%s\nL_dryret_%s:\ns_mov_b64 exec, -1' % (name, name))
    def warm_run(at):
        if o['dry'] and at == o['dryat'][0]: dry_run('mp')
        if o['dry'] and at == o['dryat'][1]: dry_run('op')
        if o['warm']:
            for c_, x_ in enumerate(o['wat']):
                if x_ == at: a('s_mov_b64 exec, 0\ns_branch L_wchain%d\nL_wret%d:\ns_mov_b64 exec, -1' % (c_, c_))
    if o['vdry']:
        a('s_cmp_lg_u32 s20, 6\ns_cbranch_scc1 L_nl\ns_cmp_ge_u32 s2, 32\ns_cbranch_scc1 L_nl\ns_lshl_b32 s3, s2, 12')
        for j in range(4): a('buffer_store_dwordx4 v[12:15], v25, s[%d:%d], s3 offen offset:%d sc1' % (SWS, SWS + 3, 1024 * j))
        a('L_nl:\ns_mov_b64 exec, 0\ns_cmp_eq_u32 s20, 5\ns_cbranch_scc1 L_xa_BP\ns_cmp_eq_u32 s20, 6\ns_cbranch_scc1 L_xa_%s\ns_branch L_xa_%s' % tuple(o['vseg']))
        a('L_vwret:\ns_mov_b64 exec, -1\ns_waitcnt lgkmcnt(0)\ns_nop 7')
        a('s_cmp_eq_u32 s20, 7\ns_cbranch_scc1 L_h2\ns_cmp_eq_u32 s20, 5\ns_cbranch_scc1 L_h0\ns_cmp_ge_u32 s2, 32\ns_cbranch_scc1 L_h0')
        if o['hs2']: a('s_waitcnt vmcnt(0)\ns_mov_b64 exec, 1\nglobal_atomic_add v12, v29, s[12:13] sc1\ns_mov_b64 exec, -1')
        else:
            a('s_lshl_b32 s3, s2, 2\nv_mov_b32 v16, s3\ns_waitcnt vmcnt(0)')
            a('s_mov_b64 exec, 1\nglobal_store_dword v16, v29, s[12:13] sc1\ns_mov_b64 exec, -1')
    else:
        a('s_cmp_eq_u32 s20, 7\ns_cbranch_scc1 L_h2')
        if o['ldr'] == [-1, -1]:
            a('s_cmp_eq_u32 s20, 5\ns_cbranch_scc1 L_h0')
            a('s_cmp_ge_u32 s2, 32\ns_cbranch_scc1 L_h0')
            a('s_lshl_b32 s3, s2, 12')
            assert G_FL == 0
            for j in range(4): a('buffer_store_dwordx4 v[12:15], v25, s[%d:%d], s3 offen offset:%d sc1' % (SWS, SWS + 3, 1024 * j))
            if o['hs2']: a('s_waitcnt vmcnt(0)\ns_mov_b64 exec, 1\nglobal_atomic_add v12, v29, s[12:13] sc1\ns_mov_b64 exec, -1')
            else:
                a('s_lshl_b32 s3, s2, 2\nv_mov_b32 v16, s3\ns_waitcnt vmcnt(0)')
                a('s_mov_b64 exec, 1\nglobal_store_dword v16, v29, s[12:13] sc1\ns_mov_b64 exec, -1')
    def leader(at):
        if o['ldr'] == [-1, -1] or at not in o['ldr']: return
        l_ = a.label('L_nl')
        a('s_cmp_lg_u32 s19, 0\ns_cbranch_scc1 %s' % l_)
        if at == o['ldr'][0]:
            a('s_lshl_b32 s3, s2, 12')
            for j in range(4): a('buffer_store_dwordx4 v[12:15], v25, s[%d:%d], s3 offen offset:%d sc1' % (SWS, SWS + 3, 1024 * j))
        if at == o['ldr'][1]: a('s_waitcnt vmcnt(0)\ns_mov_b64 exec, 1\nglobal_atomic_add v12, v29, s[12:13] sc1\ns_mov_b64 exec, -1')
        a(l_ + ':')
    if o['ldr'] != [-1, -1]: a('s_xor_b32 s19, s20, 6\ns_or_b32 s19, s19, s23'); leader(-1)
    a('L_h0:')
    unit_setup()
    for c in range(9 + o['b8a']):
        a('s_barrier')
        leader(c)
        if c == 4: run(k_reads())
    a('s_branch L_unit')
    a('L_h2:')
    if not o['cpfL']: code_prefetch()
    def odd_prefetch(t='s17'):
        a((kvbase('s3') + '\ns_lshr_b32 s17, s2, 7\ns_lshl_b32 s17, s17, %d\ns_add_u32 s3, s3, s17\ns_lshl_b32 s3, s3, 4\ns_bfe_u32 s17, s2, 0x40003\ns_add_u32 s3, s3, s17\ns_mul_i32 s3, s3, %d\ns_add_u32 s3, s3, 1024' % (KL, 16 * 1152)).replace('s17', t))
        a('v_mul_u32_u24 v7, 1152, v1\nv_add_u32 v7, s3, v7\ns_mov_b64 exec, 0xffff\nglobal_load_dword v37, v7, s[8:9]\ns_mov_b64 exec, -1')
    def tlb_touch():
        a('s_lshl_b32 s3, s2, 7\nv_lshlrev_b32 v7, 21, v0\nv_add_u32 v7, s3, v7\nv_add_u32 v8, 0x1f0000, v7')
        a('s_mov_b64 exec, 0x7f\nglobal_load_dword v32, v8, s[14:15]')
        if o['tlb'] in (1, 3):
            a('s_mov_b64 exec, 7\nglobal_load_dword v33, v7, s[8:9]')
            a('s_mov_b64 exec, 3\nglobal_load_dword v34, v7, s[4:5]\nglobal_load_dword v35, v7, s[6:7]')
        a('s_mov_b64 exec, 1\nglobal_load_dword v36, v7, s[10:11]\ns_mov_b64 exec, -1')
    if o['tlb'] in (1, 2): tlb_touch()
    hs = 's_load_dwordx16 s[84:99], s[12:13], 0%s\ns_load_dwordx16 s[28:43], s[12:13], 64%s'
    warm_run(-1)
    for c in range(10 + o['b8a'] + o['bs']):
        a('s_barrier')
        warm_run(c)
        if c == o['hsbar']: a('s_load_dword s84, s[12:13], 0' if o['hs2'] else hs % ('', ''))
        if c == o['oddpf']: odd_prefetch()
        if c == o['cpf2']: code_prefetch('L_pc2')
        if c == 0 and o['tlb'] == 3: tlb_touch()
        if c == 8 and o['tlb'] == 4: tlb_touch()
    if o['hs2']:
        a('s_waitcnt lgkmcnt(0)\ns_cmp_ge_u32 s84, 32\ns_cbranch_scc1 L_hsok\ns_mov_b32 s54, %d\nv_mov_b32 v12, 0' % SPIN)
        if 'C' in o['hack']: a('v_mov_b32 v20, 160\ns_mov_b64 exec, 1\nglobal_atomic_add v20, v29, s[12:13] sc1\ns_mov_b64 exec, -1')
        a('L_hs:\nglobal_load_dword v13, v12, s[12:13] sc1\ns_sub_u32 s54, s54, 1\ns_cbranch_scc1 L_hsok\ns_waitcnt vmcnt(0)\nv_cmp_gt_u32 vcc, 32, v13\ns_cbranch_vccnz L_hs\nL_hsok:')
    else:
        a('s_mov_b32 s54, %d\nL_hs:\ns_waitcnt lgkmcnt(0)' % SPIN)
        and16(84); and16(28); a('s_and_b32 s84, s84, s28')
        a('s_cbranch_scc1 L_hsok\ns_sub_u32 s54, s54, 1\ns_cbranch_scc1 L_hsok')
        if 'C' in o['hack']: a('v_mov_b32 v20, 160\ns_mov_b64 exec, 1\nglobal_atomic_add v20, v29, s[12:13] sc1\ns_mov_b64 exec, -1')
        a(hs % (' glc', ' glc')); a('s_branch L_hs\nL_hsok:')
    a('s_barrier')
    if o['oddpf'] == 11: odd_prefetch()
    if o['cpf2'] == 11: code_prefetch('L_pc2')
    a('L_help2:')
    run(xb('w0'))
    a('s_mul_i32 s17, s18, 3072')
    srd(SOUT, 10, 'out')
    a('s_lshl_b32 s3, s2, 9\ns_lshl_b32 s53, s18, 7\ns_add_u32 s62, s3, s53\ns_add_u32 s66, s14, s62\ns_addc_u32 s67, s15, 0')
    a('s_and_b32 s3, s2, 0xe7\ns_lshl_b32 s3, s3, 9\ns_add_u32 s53, s53, s3\n' + ('' if o['atom'] else 's_lshl_b32 s3, s22, 2\ns_add_u32 s53, s53, s3\n') + 'v_lshlrev_b32 v21, 12, v0')
    a('s_mul_i32 s55, s2, %d\ns_mul_i32 s56, s18, %d\ns_add_u32 s55, s55, s56\ns_add_u32 s55, s55, %d\ns_add_u32 s56, s55, 4096' % (o['MO'], o['MQ'], G_PM))
    a('s_lshl_b32 s59, s23, 1\ns_lshr_b32 s3, s21, 2\ns_add_u32 s59, s59, s3\ns_mul_i32 s59, s59, 3\ns_add_u32 s59, s59, s18\ns_mul_i32 s59, s59, %d' % (16 * 1152))
    a('s_lshl_b32 s3, s22, 8\ns_add_u32 s59, s59, s3\ns_and_b32 s3, s21, 3\ns_lshl_b32 s3, s3, 6\ns_add_u32 s59, s59, s3')
    def pfetch(d):
        a('s_add_u32 m0, s17, %d\ns_xor_b32 s58, s2, %d\ns_mul_i32 s58, s58, 9216\ns_add_u32 s58, s58, s17\ns_add_u32 s58, s58, %d' % (L_P + 9216 * (3 - d), d << 3, G_P))
        for j in range(3):
            if 'e' not in o['hack'] and 'x' not in o['hack']: a('buffer_load_dwordx4 v25, s[%d:%d], s58 offen offset:%d sc1 lds' % (SWS, SWS + 3, 1024 * j))
    xs = [x_ for x_ in XN[:-1] if x_[0] == 'w' and x_ != 'w0']
    k = 0
    while True:
        nm = xs[k]; k += 1
        run(xb(nm))
        if nm == o['ack']:
            if o['sat'] & 2:
                a('s_mov_b32 s40, 1')
                for d in (1, 2, 3): a('s_xor_b32 s3, s62, %d\ns_atomic_add s40, s[14:15], s3' % (d << 12))
            else:
                a('s_mov_b64 exec, 15' + ('\ns_bitset0_b64 exec, s22' if o['noself'] else '') + '\n' + FOP + ' v29, v21, s[%d:%d], s53 offen sc1\ns_mov_b64 exec, -1' % (SWS, SWS + 3))
            stH('P flag sent')
        if o['ownp'] and not o['pds'] and nm == o['ownat']: pfetch(0)
        if o['sent'] and nm == o['clr']: clears()
        if o['oddpf'] == nm: a('s_cmp_lg_u32 s18, 2\ns_cbranch_scc1 L_nopf'); odd_prefetch('s19'); a('L_nopf:')
        if nm == o['poll0']: break
    assert xs.index(o['ack']) < k and (o['vf'] == 1 or ALLN.index(xs[k]) >= ALLN.index('w5' if o['vf'] else 'w4')) and k < len(xs) - 1
    a('s_mov_b32 s54, %d\ns_mov_b32 s52, %d' % (SPIN, len(xs) - 1 - k))
    a('L_pp:\n' + ('s_load_dword s84' if o['atom'] else 's_load_dwordx4 s[84:87]') + ', s[66:67], 0 glc')
    a('s_cmp_eq_u32 s52, 0\ns_cbranch_scc1 L_pp1\ns_barrier\ns_sub_u32 s52, s52, 1\nL_pp1:')
    a('s_sub_u32 s54, s54, 1\ns_cbranch_scc1 L_ppok\ns_waitcnt lgkmcnt(0)')
    a(('' if o['atom'] else 's_add_u32 s84, s84, s85\ns_add_u32 s86, s86, s87\ns_add_u32 s84, s84, s86\n') + 's_cmp_%s_u32 s84, %d\ns_cbranch_scc0 L_pp\nL_ppok:' % ('le' if 'a' in o['hack'] else 'ge', 4 - o['noself']))
    stH('P flags ok')
    if 'S' in o['hack']:
        a('s_mul_i32 s19, s18, %d\nL_sg:\ns_cmp_eq_u32 s19, 0\ns_cbranch_scc1 L_sgd\ns_cmp_eq_u32 s52, 0\ns_cbranch_scc1 L_sgd\ns_barrier\ns_sub_u32 s52, s52, 1\ns_sub_u32 s19, s19, 1\ns_branch L_sg\nL_sgd:' % o.get('sk', 1))
    def opf():
        a('s_cmp_lg_u32 s18, 2\ns_cbranch_scc1 L_nopf'); odd_prefetch('s19'); a('L_nopf:')
    if o['oddpf'] == 12: opf()
    for d in range(o['ownp'], 4): pfetch(d)
    if o['oddpf'] == 13: opf()
    if o['sent'] and o['clr'] == 'p': clears()
    a('L_pb:\ns_cmp_eq_u32 s52, 0\ns_cbranch_scc1 L_pbd\ns_barrier\ns_sub_u32 s52, s52, 1\ns_branch L_pb\nL_pbd:')
    if 'S' in o['hack']: a('s_cmp_lg_u32 s18, 0\ns_cbranch_scc1 L_now')
    a('s_waitcnt vmcnt(%d)' % (2 if o['sent'] and o['clr'] == 'p' else 0))
    if 'S' in o['hack']: a('L_now:')
    stH('P landed')
    a('s_barrier')
    if o['sent'] and o['clr'] == 'w7' and 'Z' not in o['hack']: clears()
    a('s_waitcnt vmcnt(0)\ns_barrier')
    if 'f' in o['hack']: a('s_endpgm')
    a('s_mov_b32 s54, %d' % SPIN)
    a('s_lshl_b32 s3, s18, 10\ns_add_u32 s3, s3, %d\nv_add_u32 v27, s3, v25' % L_F)
    if o['shc'] & 1: a('s_andn2_b32 s62, s62, 512\ns_add_u32 s66, s14, s62\ns_addc_u32 s67, s15, 0')
    reduce('mp', 8, 4, MOFF, 25, 's59', stH)
    if stamps:
        a('s_waitcnt vmcnt(0)'); stH('end'); stH.flush(7)
    a('L_end:\ns_endpgm\nL_codeend:')
    a(kernel_desc(KN, 256, 256, o.get('nsgpr', 102)))
    if o['warm']:
        def size(l):
            t = l.split(';')[0].strip()
            if not t or t.endswith(':') or t.startswith('.'): return 0
            return 8 if t.startswith(('v_mfma', 'ds_', 'buffer_', 'global_', 'v_cvt_pk', 'v_pk_', 'v_max3', 's_load')) else 4.6
        out = []; on = False; acc = 0; pads = []
        for l in a.lines:
            if l == ';WARM_ON': on = True; acc = 1e9; continue
            if l == ';WARM_OFF': on = False; continue
            if on and acc >= o['wstep'] and size(l) and not l.startswith(('ds_write', 's_mov_b64 exec', 'buffer_atomic', 's_cbranch', 's_cselect', 's_addc')):
                pads.append(len(out)); out.append(None); acc = 4
            out.append(l); acc += size(l)
        n = len(pads); NC = len(o['wat']); per = -(-n // NC)
        order = list(range(n - 1, -1, -1))
        for j, k in enumerate(order):
            last = (j + 1) % per == 0 or j + 1 == n
            out[pads[k]] = 'L_wp%d:\ns_cbranch_execz %s' % (k, 'L_wret%d' % (j // per) if last else 'L_wp%d' % order[j + 1])
        txt = '\n'.join(out)
        for c_ in range(NC): txt = txt.replace('L_wchain%d' % c_, 'L_wp%d' % order[c_ * per] if c_ * per < n else 'L_wret%d' % c_)
        a.lines = txt.split('\n')
    else: a.lines = [l for l in a.lines if not l.startswith(';WARM')]
    a.lines = hazard.pad(a.lines, False)
    return a.text()
if __name__ == '__main__':
    import json
    name = sys.argv[1] if len(sys.argv) > 1 else 'p8_v11'
    opt = json.loads(sys.argv[2]) if len(sys.argv) > 2 else None
    open(name + '.s', 'w').write(gen(0, opt))
    open(name + '_st.s', 'w').write(gen(1, opt))
    open(name + '_st2.s', 'w').write(gen(2, opt))
    open(name + '_st3.s', 'w').write(gen(3, opt))
    open(name + '_st4.s', 'w').write(gen(4, opt))
```
